```python
import torch

def _softmax(x, axis=-1):
    return torch.softmax(x, dim=axis)
def _gelu(x):
    return torch.nn.functional.gelu(x, approximate="tanh")
def _silu(x):
    return torch.nn.functional.silu(x)
def _sigmoid(x):
    return torch.sigmoid(x)
def _layernorm(x, axis=-1, eps=1e-5):
    m = x.mean(dim=axis, keepdim=True)
    v = x.var(dim=axis, keepdim=True, unbiased=False)
    return (x - m) / torch.sqrt(v + eps)
def _scatter_add(tgt, idx, src, axis=0):
    return tgt.clone().index_add_(axis, idx, src)
def _segment_sum(src, seg, n):
    out = torch.zeros((n,) + src.shape[1:], dtype=src.dtype)
    return out.index_add_(0, seg, src)
def _pad(x, pw):
    flat = tuple(v for pair in reversed(pw) for v in pair)
    return torch.nn.functional.pad(x, flat)

kernel_name = 'parallel_sum__compressed_kv_cla__dense_activation_squared_relu__prompt'

def setup_inputs():

    _w = (lambda a: (lambda t: t.to(torch.bfloat16) if t.is_floating_point() else t)(torch.as_tensor(a)))
    def _A_setup():
        B, H, Sq, Sk, D, M = 1, 32, 2048, 2048, 128, 512
        Dc = 4 * D
        return {
            "x": _w((lambda *s: torch.randn(*s, dtype=torch.bfloat16) * 0.05)(B, Sq, M)),
            "c_kv": _w((lambda *s: torch.randn(*s, dtype=torch.bfloat16) * 1.6)(B, Sk, Dc)),
            "w_q": _w((lambda *s: torch.randn(*s, dtype=torch.bfloat16) * 1.6)(M, H, D) * (M ** -0.5)),
            "w_uk": _w((lambda *s: torch.randn(*s, dtype=torch.bfloat16) * 1.6)(Dc, H, D) * (Dc ** -0.5)),
            "w_uv": _w((lambda *s: torch.randn(*s, dtype=torch.bfloat16) * 1.6)(Dc, H, D) * (Dc ** -0.5)),
            "w_o": _w((lambda *s: torch.randn(*s, dtype=torch.bfloat16) * 1.6)(H, D, M) * ((H * D) ** -0.5)),
        }
    _A_in = _A_setup()

    def _B_setup():
        B, S, D, F = 1, 2048, 512, 1792
        return {
            "x": _w((lambda *s: torch.randn(*s, dtype=torch.bfloat16) * 0.05)(B, S, D)),
            "w1": _w((lambda *s: torch.randn(*s, dtype=torch.bfloat16) * 0.05)(D, F)),
            "b1": _w((lambda *s: torch.randn(*s, dtype=torch.bfloat16) * 0.4)(F)),
            "w2": _w((lambda *s: torch.randn(*s, dtype=torch.bfloat16) * 0.05)(F, D)),
            "b2": _w((lambda *s: torch.randn(*s, dtype=torch.bfloat16) * 1.6)(D)),
        }
    _B_in = _B_setup()

    return {
        "A_x": _A_in["x"],
        "A_c_kv": _A_in["c_kv"],
        "A_w_q": _A_in["w_q"],
        "A_w_uk": _A_in["w_uk"],
        "A_w_uv": _A_in["w_uv"],
        "A_w_o": _A_in["w_o"],
        "B_x": _B_in["x"],
        "B_w1": _B_in["w1"],
        "B_b1": _B_in["b1"],
        "B_w2": _B_in["w2"],
        "B_b2": _B_in["b2"],
    }

def reference(A_x, A_c_kv, A_w_q, A_w_uk, A_w_uv, A_w_o, B_x, B_w1, B_b1, B_w2, B_b2):
    def _A_ref(x, c_kv, w_q, w_uk, w_uv, w_o):
        B, Sq, M = x.shape[0], x.shape[1], x.shape[2]
        Sk = c_kv.shape[1]
        H, D = w_q.shape[1], w_q.shape[2]
        q = torch.einsum("bqm,mhd->bhqd", x, w_q)
        k = torch.einsum("bkc,chd->bhkd", c_kv, w_uk)
        v = torch.einsum("bkc,chd->bhkd", c_kv, w_uv)
        scores = torch.einsum("bhqd,bhkd->bhqk", q, k) * (D ** -0.5)
        off = Sk - Sq
        qi = torch.arange(Sq)[:, None]
        kj = torch.arange(Sk)[None, :]
        cmask = kj <= (qi + off)
        scores = torch.where(cmask[None, None], scores, -1e9)
        p = _softmax(scores, axis=-1)
        ctx = torch.einsum("bhqk,bhkd->bhqd", p, v)
        return torch.einsum("bhqd,hdm->bqm", ctx, w_o)

    def _B_ref(x, w1, b1, w2, b2):
        h = torch.einsum("bsd,df->bsf", x, w1) + b1
        zero = torch.zeros_like(h)
        r = torch.where(h > zero, h, zero)
        h = r * r
        out = torch.einsum("bsf,fd->bsd", h, w2) + b2
        return out

    x = A_x
    xn = _layernorm(x, axis=-1)
    return x + _A_ref(xn, A_c_kv, A_w_q, A_w_uk, A_w_uv, A_w_o) + _B_ref(xn, B_w1, B_b1, B_w2, B_b2)
```

```python
from gen import vr, sr, QF, KF, VF, AF, AF_BLK, PART
import math

SCALE_LOG2E = (128 ** -0.5) * math.log2(math.e)


def f32hex(x):
    import struct
    return "0x%08x" % struct.unpack("<I", struct.pack("<f", x))[0]


def gen_attn(a):
    V_LDS = 2
    V_DMA = 3
    V_M = 4
    V_L = 5
    V_NEG = 6
    V_T = 8
    V_Q = 16
    V_O = 48
    V_S = 112
    V_P = 128
    V_KA = 136
    V_KB = 168
    V_V = 200
    S_MASK = 40
    S_C = 36

    a.label("attn_kernel")
    a("s_cmp_ge_u32 s2, 512")
    a("s_cbranch_scc1 attn_end")
    a("s_load_dwordx2 s[8:9], s[0:1], 104")
    a("v_lshrrev_b32 v1, 6, v0")
    a("s_nop 0")
    a("v_readfirstlane_b32 s6, v1")
    a("v_and_b32 v1, 63, v0")
    a("s_and_b32 s3, s2, 7")
    a("s_lshl_b32 s3, s3, 2")
    a("s_lshr_b32 s4, s2, 3")
    a("s_and_b32 s4, s4, 3")
    a("s_add_u32 s3, s3, s4")
    a("s_lshr_b32 s4, s2, 5")
    a("s_sub_u32 s5, 15, s4")
    a("s_sub_u32 s7, s4, 8")
    a("s_cmp_lt_u32 s4, 8")
    a("s_cselect_b32 s5, s5, s7")
    a("s_mov_b32 s10, 0x10000000")
    a("s_mov_b32 s11, 0x20000")
    a("s_lshl_b32 s12, s3, 19")
    a("s_mov_b32 s%d, %s" % (S_C, f32hex(SCALE_LOG2E)))
    a("v_lshlrev_b32 v%d, 4, v1" % V_LDS)
    a("s_lshl_b32 s13, s6, 12")
    a("v_add_u32 v%d, s13, v%d" % (V_DMA, V_LDS))
    a("s_lshl_b32 s14, s5, 2")
    a("s_add_u32 s14, s14, s6")
    a("s_lshl_b32 s15, s14, 13")
    a("s_add_u32 s15, s15, s12")
    a("s_waitcnt lgkmcnt(0)")
    a("s_add_u32 s21, s15, 4096")
    for s in range(8):
        a("buffer_load_dwordx4 %s, v%d, s[8:11], s%d offen offset:%d" % (vr(V_Q + 4 * s, 4), V_LDS, 15 if s < 4 else 21, (s & 3) * 1024))
    a("s_add_u32 s16, s12, 0x%x" % KF)
    a("s_add_u32 s17, s12, 0x%x" % VF)

    def dma(buf):
        a("s_add_u32 m0, s13, %d" % (buf * 32768))
        a("s_nop 0")
        for i in range(4):
            a("buffer_load_dwordx4 v%d, s[8:11], s16 offen offset:%d lds" % (V_DMA, i * 1024))
        a("s_add_u32 m0, s13, %d" % (buf * 32768 + 16384))
        a("s_nop 0")
        for i in range(4):
            a("buffer_load_dwordx4 v%d, s[8:11], s17 offen offset:%d lds" % (V_DMA, i * 1024))
        a("s_add_u32 s16, s16, 16384")
        a("s_add_u32 s17, s17, 16384")

    dma(0)
    a("v_and_b32 v8, 31, v1")
    a("v_lshrrev_b32 v9, 5, v1")
    a("v_lshlrev_b32 v9, 2, v9")
    a("v_sub_u32 v8, v8, v9")
    for r in range(16):
        kl = 8 * (r >> 2) + (r & 3)
        a("v_cmp_le_i32 %s, %d, v8" % (sr(S_MASK + 2 * r, 2), kl))
    a("v_mov_b32 v%d, 0xf149f2ca" % V_NEG)
    a("v_mov_b32 v%d, 0xf149f2ca" % V_M)
    a("v_mov_b32 v%d, 0" % V_L)
    for i in range(64):
        a("v_mov_b32 v%d, 0" % (V_O + i))

    cnt = [0]

    def kreads(kreg, bo, u):
        for s in range(8):
            a("ds_read_b128 %s, v%d offset:%d" % (vr(kreg + 4 * s, 4), V_LDS, bo + u * 8192 + s * 1024))

    def vreads(bo, u):
        for i in range(8):
            a("ds_read_b128 %s, v%d offset:%d" % (vr(V_V + 4 * i, 4), V_LDS, bo + 16384 + u * 8192 + i * 1024))

    def subtile(kreg, bo, u, next_kreg, diag_u4):
        cnt[0] += 1
        L = "attn_st%d" % cnt[0]
        if diag_u4 is not None:
            a("s_cmp_lt_u32 s6, %d" % diag_u4)
            a("s_cbranch_scc1 %s_skip" % L)
        a("s_waitcnt lgkmcnt(0)")
        for s in range(8):
            c = "0" if s == 0 else vr(V_S, 16)
            a("v_mfma_f32_32x32x16_bf16 %s, %s, %s, %s" % (vr(V_S, 16), vr(kreg + 4 * s, 4), vr(V_Q + 4 * s, 4), c))
        vreads(bo, u)
        if next_kreg is not None:
            kreads(next_kreg, bo, u + 1)
        a.nop(12)
        if diag_u4 is not None:
            a("s_cmp_lg_u32 s6, %d" % diag_u4)
            a("s_cbranch_scc1 %s_nomask" % L)
            for r in range(16):
                a("v_cndmask_b32 v%d, v%d, v%d, %s" % (V_S + r, V_NEG, V_S + r, sr(S_MASK + 2 * r, 2)))
            a.label("%s_nomask" % L)
        S = V_S
        t0, t1 = V_T, V_T + 1
        a("v_max3_f32 v%d, v%d, v%d, v%d" % (t0, S, S + 1, S + 2))
        a("v_max3_f32 v%d, v%d, v%d, v%d" % (t1, S + 3, S + 4, S + 5))
        a("v_max3_f32 v%d, v%d, v%d, v%d" % (t0, t0, S + 6, S + 7))
        a("v_max3_f32 v%d, v%d, v%d, v%d" % (t1, t1, S + 8, S + 9))
        a("v_max3_f32 v%d, v%d, v%d, v%d" % (t0, t0, S + 10, S + 11))
        a("v_max3_f32 v%d, v%d, v%d, v%d" % (t1, t1, S + 12, S + 13))
        a("v_max3_f32 v%d, v%d, v%d, v%d" % (t0, t0, S + 14, S + 15))
        a("v_max_f32 v%d, v%d, v%d" % (t0, t0, t1))
        a("v_mov_b32 v%d, v%d" % (t1, t0))
        a.nop(2)
        a("v_permlane32_swap_b32 v%d, v%d" % (t0, t1))
        a.nop(1)
        a("v_max3_f32 v%d, v%d, v%d, v%d" % (t0, t0, t1, V_M))
        a("v_cmp_gt_f32 vcc, v%d, v%d" % (t0, V_M))
        a.nop(2)
        a("s_cbranch_vccz %s_nors" % L)
        a("v_sub_f32 v%d, v%d, v%d" % (t1, V_M, t0))
        a("v_mul_f32 v%d, s%d, v%d" % (t1, S_C, t1))
        a("v_exp_f32 v%d, v%d" % (t1, t1))
        a("v_mov_b32 v%d, v%d" % (V_M, t0))
        a("v_mul_f32 v%d, v%d, v%d" % (V_L, V_L, t1))
        for i in range(64):
            a("v_mul_f32 v%d, v%d, v%d" % (V_O + i, V_O + i, t1))
        a.label("%s_nors" % L)
        a("v_mul_f32 v%d, s%d, v%d" % (t1, S_C, V_M))
        for r in range(16):
            a("v_fma_f32 v%d, v%d, s%d, -v%d" % (S + r, S + r, S_C, t1))
        for r in range(16):
            a("v_exp_f32 v%d, v%d" % (S + r, S + r))
        a.nop(1)
        t2, t3 = V_T + 2, V_T + 3
        a("v_add_f32 v%d, v%d, v%d" % (t2, S, S + 1))
        a("v_add_f32 v%d, v%d, v%d" % (t3, S + 2, S + 3))
        for r in range(4, 16, 2):
            a("v_add_f32 v%d, v%d, v%d" % (t2, t2, S + r))
            a("v_add_f32 v%d, v%d, v%d" % (t3, t3, S + r + 1))
        a("v_add_f32 v%d, v%d, v%d" % (t2, t2, t3))
        a("v_add_f32 v%d, v%d, v%d" % (V_L, V_L, t2))
        for p in range(8):
            a("v_cvt_pk_bf16_f32 v%d, v%d, v%d" % (V_P + p, S + 2 * p, S + 2 * p + 1))
        if next_kreg is not None:
            a("s_waitcnt lgkmcnt(8)")
        else:
            a("s_waitcnt lgkmcnt(0)")
        a.nop(1)
        for t in range(2):
            for dt in range(4):
                o = vr(V_O + 16 * dt, 16)
                a("v_mfma_f32_32x32x16_bf16 %s, %s, %s, %s" % (o, vr(V_V + 4 * (dt * 2 + t), 4), vr(V_P + 4 * t, 4), o))
        if diag_u4 is not None:
            a.label("%s_skip" % L)

    def stage(buf, do_dma, diag_base):
        bo = buf * 32768
        a("s_waitcnt vmcnt(0)")
        a("s_barrier")
        kreads(V_KA, bo, 0)
        if do_dma:
            dma(buf ^ 1)
        subtile(V_KA, bo, 0, V_KB, None if diag_base is None else diag_base)
        subtile(V_KB, bo, 1, None, None if diag_base is None else diag_base + 1)

    a("s_mov_b32 s18, 0")
    a("s_cmp_eq_u32 s5, 0")
    a("s_cbranch_scc1 attn_diag")
    a.label("attn_loop")
    stage(0, True, None)
    stage(1, True, None)
    a("s_add_u32 s18, s18, 1")
    a("s_cmp_lt_u32 s18, s5")
    a("s_cbranch_scc1 attn_loop")
    a.label("attn_diag")
    stage(0, True, 0)
    stage(1, False, 2)
    a("s_waitcnt lgkmcnt(0)")
    a.nop(12)
    a("v_mov_b32 v8, v%d" % V_L)
    a.nop(2)
    a("v_permlane32_swap_b32 v%d, v8" % V_L)
    a.nop(1)
    a("v_add_f32 v8, v8, v%d" % V_L)
    a("v_rcp_f32 v8, v8")
    a.nop(1)
    for i in range(64):
        a("v_mul_f32 v%d, v%d, v8" % (V_O + i, V_O + i))
    a("s_mul_i32 s19, s14, %d" % AF_BLK)
    a("s_lshl_b32 s20, s3, 13")
    a("s_add_u32 s19, s19, s20")
    a("s_add_u32 s19, s19, 0x%x" % AF)
    a("s_add_u32 s21, s19, 4096")
    for dt in range(4):
        for t in range(2):
            d = V_KA + (dt * 2 + t) * 4
            for p in range(4):
                x0 = V_O + 16 * dt + 8 * t + 2 * p
                a("v_cvt_pk_bf16_f32 v%d, v%d, v%d" % (d + p, x0, x0 + 1))
            a("buffer_store_dwordx4 %s, v%d, s[8:11], s%d offen offset:%d" % (vr(d, 4), V_LDS, 19 if dt < 2 else 21, ((dt * 2 + t) & 3) * 1024))
    a.label("attn_end")
    a("s_endpgm")


def gen_ogemm(a):
    V_AL = 2
    V_TR = 4
    V_DA = 8
    V_DB = 9
    V_ST = 11
    V_F = 16
    V_ACC = 48
    NST = 23
    a.label("ogemm_kernel")
    a("s_cmp_ge_u32 s2, 256")
    a("s_cbranch_scc1 ogemm_end")
    a("s_load_dwordx2 s[8:9], s[0:1], 104")
    a("s_load_dwordx2 s[24:25], s[0:1], 40")
    a("s_load_dwordx2 s[26:27], s[0:1], 72")
    a("v_lshrrev_b32 v1, 6, v0")
    a("s_nop 0")
    a("v_readfirstlane_b32 s6, v1")
    a("v_and_b32 v1, 63, v0")
    a("s_and_b32 s3, s2, 15")
    a("s_lshr_b32 s4, s2, 4")
    a("s_and_b32 s4, s4, 3")
    a("s_lshr_b32 s5, s2, 6")
    a("s_mov_b32 s10, 0x10000000")
    a("s_mov_b32 s11, 0x20000")
    a("s_mov_b32 s15, 0x20000")
    a("s_lshr_b32 s30, s6, 2")
    a("s_lshr_b32 s31, s6, 1")
    a("s_and_b32 s31, s31, 1")
    a("s_and_b32 s32, s6, 1")
    a("v_lshlrev_b32 v%d, 4, v1" % V_ST)
    a("s_lshl_b32 s33, s31, 13")
    a("s_lshl_b32 s34, s30, 11")
    a("s_add_u32 s33, s33, s34")
    a("v_add_u32 v%d, s33, v%d" % (V_AL, V_ST))
    a("v_add_u32 v%d, 0x10000, v%d" % (V_AL + 1, V_AL))
    a("v_bfe_u32 v12, v1, 2, 2")
    a("v_lshrrev_b32 v13, 5, v1")
    a("v_lshl_add_u32 v13, v13, 2, v12")
    a("v_lshlrev_b32 v13, 8, v13")
    a("v_bfe_u32 v14, v1, 4, 1")
    a("v_lshl_add_u32 v13, v14, 5, v13")
    a("v_and_b32 v14, 3, v1")
    a("v_lshl_add_u32 v13, v14, 3, v13")
    a("s_lshl_b32 s33, s30, 13")
    a("s_add_u32 s33, s33, 16384")
    a("v_add_u32 v13, s33, v13")
    a("v_lshlrev_b32 v12, 6, v12")
    a("s_lshl_b32 s34, s32, 7")
    for ntl in range(2):
        a("s_add_u32 s35, s34, %d" % (ntl << 6))
        a("v_xor_b32 v14, s35, v12")
        a("v_add_u32 v%d, v13, v14" % (V_TR + ntl))
        a("v_add_u32 v%d, 0x10000, v%d" % (V_TR + 2 + ntl, V_TR + ntl))
    a("s_lshr_b32 s33, s6, 1")
    a("s_lshl_b32 s34, s3, 2")
    a("s_add_u32 s34, s34, s33")
    a("s_mul_i32 s34, s34, %d" % AF_BLK)
    a("s_lshl_b32 s35, s32, 11")
    a("s_add_u32 s34, s34, s35")
    a("s_add_u32 s34, s34, 0x%x" % AF)
    a("v_add_u32 v%d, s34, v%d" % (V_DA, V_ST))
    a("s_lshl_b32 s36, s6, 11")
    a("v_lshrrev_b32 v12, 4, v1")
    a("v_bfe_u32 v13, v1, 2, 2")
    a("v_xor_b32 v13, v13, v12")
    a("v_lshlrev_b32 v13, 6, v13")
    a("v_and_b32 v14, 3, v1")
    a("v_lshl_add_u32 v13, v14, 4, v13")
    a("s_lshl_b32 s33, s6, 3")
    a("v_add_u32 v12, s33, v12")
    a("v_lshlrev_b32 v12, 10, v12")
    a("v_add_u32 v12, v12, v13")
    a("s_lshl_b32 s33, s4, 8")
    a("v_add_u32 v%d, s33, v12" % V_DB)
    a("v_add_u32 v%d, 3072, v%d" % (V_DB + 1, V_DB))
    a("s_mov_b32 s42, 0x1c0000")
    a("s_mul_i32 s37, s5, %d" % NST)
    a("s_add_u32 s38, s37, %d" % NST)
    a("s_waitcnt lgkmcnt(0)")

    def dma(buf):
        a("s_cmp_lt_u32 s37, 64")
        a("s_cselect_b32 s12, s24, s26")
        a("s_cselect_b32 s13, s25, s27")
        a("s_cselect_b32 s14, 0x400000, s42")
        a("s_cselect_b32 s39, 0, 64")
        a("s_sub_u32 s39, s37, s39")
        a("s_lshl_b32 s39, s39, 16")
        a("s_lshl_b32 s40, s37, 12")
        a("s_cmp_lt_u32 s37, s38")
        a("s_cselect_b32 s14, s14, 0")
        a("s_cselect_b32 s40, s40, 0x10000000")
        a("s_add_u32 m0, s36, %d" % (buf * 32768))
        a("s_add_u32 s37, s37, 1")
        for i in range(2):
            a("buffer_load_dwordx4 v%d, s[8:11], s40 offen offset:%d lds" % (V_DA, i * 1024))
        a("s_add_u32 m0, s36, %d" % (buf * 32768 + 16384))
        a("s_nop 0")
        for i in range(2):
            a("buffer_load_dwordx4 v%d, s[12:15], s39 offen offset:%d lds" % (V_DB + i, i * 1024))

    def reads(buf, sl, st):
        hi = 1 if buf >= 2 else 0
        bo = (buf & 1) * 32768
        f = V_F + st * 16
        for mbl in range(2):
            a("ds_read_b128 %s, v%d offset:%d" % (vr(f + 4 * mbl, 4), V_AL + hi, bo + mbl * 4096 + sl * 1024))
        for ntl in range(2):
            for ird in range(2):
                a("ds_read_b64_tr_b16 %s, v%d offset:%d" % (
                    vr(f + 8 + 4 * ntl + 2 * ird, 2), V_TR + 2 * hi + ntl, bo + sl * 4096 + ird * 2048))

    def mfmas(st, first):
        f = V_F + st * 16
        for mbl in range(2):
            for ntl in range(2):
                acc = vr(V_ACC + 16 * (mbl * 2 + ntl), 16)
                c = "0" if first else acc
                a("v_mfma_f32_32x32x16_bf16 %s, %s, %s, %s" % (acc, vr(f + 8 + 4 * ntl, 4), vr(f + 4 * mbl, 4), c))

    dma(0)
    dma(1)
    for i in range(64):
        a("v_mov_b32 v%d, 0" % (V_ACC + i))
    a("s_mov_b32 s41, 0")
    a.label("ogemm_loop")
    for buf in range(4):
        a("s_waitcnt vmcnt(4)")
        a("s_barrier")
        reads(buf, 0, 0)
        reads(buf, 1, 1)
        dma((buf + 2) & 3)
        a("s_waitcnt lgkmcnt(6)")
        mfmas(0, False)
        a("s_waitcnt lgkmcnt(0)")
        mfmas(1, False)
        a("s_add_u32 s41, s41, 1")
        a("s_cmp_ge_u32 s41, %d" % NST)
        a("s_cbranch_scc1 ogemm_done")
    a("s_branch ogemm_loop")
    a.label("ogemm_done")
    a("s_waitcnt vmcnt(0)")
    a("s_barrier")
    a.nop(12)
    a("s_and_b32 s33, s6, 3")
    a("s_lshl_b32 s33, s33, 14")
    a("v_add_u32 v12, s33, v%d" % V_ST)
    a("s_cmp_eq_u32 s30, 0")
    a("s_cbranch_scc1 ogemm_g0")
    for i in range(16):
        a("ds_write_b128 v12, %s offset:%d" % (vr(V_ACC + 4 * i, 4), i * 1024))
    a("s_waitcnt lgkmcnt(0)")
    a("s_barrier")
    a("s_branch ogemm_end")
    a.label("ogemm_g0")
    a("s_barrier")
    for i in range(16):
        a("ds_read_b128 %s, v12 offset:%d" % (vr(112 + 4 * i, 4), i * 1024))
    a("s_lshl_b32 s34, s3, 2")
    a("s_add_u32 s34, s34, s4")
    a("s_lshl_b32 s34, s34, 16")
    a("s_add_u32 s34, s34, s33")
    a("s_lshl_b32 s35, s5, 22")
    a("s_add_u32 s34, s34, s35")
    a("s_add_u32 s34, s34, 0x%x" % PART)
    a("s_waitcnt lgkmcnt(0)")
    for i in range(64):
        a("v_add_f32 v%d, v%d, v%d" % (V_ACC + i, V_ACC + i, 112 + i))
    for i in range(16):
        if i == 4:
            a("s_add_u32 s34, s34, 4096")
        if i == 8:
            a("s_add_u32 s34, s34, 4096")
        if i == 12:
            a("s_add_u32 s34, s34, 4096")
        a("buffer_store_dwordx4 %s, v%d, s[8:11], s34 offen offset:%d" % (vr(V_ACC + 4 * i, 4), V_ST, (i & 3) * 1024))
    a.label("ogemm_end")
    a("s_endpgm")


def gen_reduce(a):
    a.label("reduce_kernel")
    a("s_cmp_ge_u32 s2, 1024")
    a("s_cbranch_scc1 reduce_end")
    a("s_load_dwordx2 s[8:9], s[0:1], 104")
    a("s_load_dwordx2 s[12:13], s[0:1], 0")
    a("s_load_dwordx2 s[16:17], s[0:1], 80")
    a("s_load_dwordx2 s[20:21], s[0:1], 88")
    a("s_mov_b32 s10, 0x10000000")
    a("s_mov_b32 s11, 0x20000")
    a("s_mov_b32 s14, 0x200000")
    a("s_mov_b32 s15, 0x20000")
    a("s_mov_b32 s18, 1024")
    a("s_mov_b32 s19, 0x20000")
    a("s_mov_b32 s22, 0x200000")
    a("s_mov_b32 s23, 0x20000")
    a("s_lshr_b32 s3, s2, 4")
    a("s_lshr_b32 s4, s2, 2")
    a("s_and_b32 s4, s4, 3")
    a("s_and_b32 s5, s2, 3")
    a("s_lshl_b32 s6, s2, 12")
    a("s_add_u32 s6, s6, 0x%x" % PART)
    a("v_lshlrev_b32 v1, 4, v0")
    a("s_waitcnt lgkmcnt(0)")
    a("buffer_load_dwordx4 v[4:7], v1, s[8:11], s6 offen")
    a("s_add_u32 s6, s6, 0x400000")
    a("buffer_load_dwordx4 v[8:11], v1, s[8:11], s6 offen")
    a("s_add_u32 s6, s6, 0x400000")
    a("buffer_load_dwordx4 v[12:15], v1, s[8:11], s6 offen")
    a("s_add_u32 s6, s6, 0x400000")
    a("buffer_load_dwordx4 v[16:19], v1, s[8:11], s6 offen")
    a("s_lshr_b32 s24, s3, 2")
    a("s_and_b32 s25, s3, 3")
    a("s_lshr_b32 s26, s4, 1")
    a("s_and_b32 s27, s4, 1")
    a("s_lshr_b32 s28, s5, 1")
    a("s_and_b32 s29, s5, 1")
    a("s_lshl_b32 s30, s24, 2")
    a("s_lshl_b32 s31, s26, 1")
    a("s_add_u32 s30, s30, s31")
    a("s_add_u32 s30, s30, s28")
    a("s_lshl_b32 s30, s30, 15")
    a("s_lshl_b32 s31, s25, 2")
    a("s_lshl_b32 s32, s27, 1")
    a("s_add_u32 s31, s31, s32")
    a("s_add_u32 s31, s31, s29")
    a("s_lshl_b32 s31, s31, 6")
    a("v_and_b32 v2, 31, v0")
    a("v_lshlrev_b32 v2, 10, v2")
    a("v_lshrrev_b32 v3, 6, v0")
    a("v_lshlrev_b32 v3, 4, v3")
    a("v_bfe_u32 v20, v0, 5, 1")
    a("v_lshl_add_u32 v3, v20, 3, v3")
    a("v_add_u32 v3, s31, v3")
    a("v_add_u32 v2, v2, v3")
    a("v_add_u32 v2, s30, v2")
    a("buffer_load_dwordx2 v[20:21], v2, s[12:15], 0 offen")
    a("buffer_load_dwordx2 v[22:23], v3, s[16:19], 0 offen")
    a("s_waitcnt vmcnt(2)")
    for i in range(4):
        a("v_add_f32 v%d, v%d, v%d" % (4 + i, 4 + i, 8 + i))
        a("v_add_f32 v%d, v%d, v%d" % (12 + i, 12 + i, 16 + i))
    for i in range(4):
        a("v_add_f32 v%d, v%d, v%d" % (4 + i, 4 + i, 12 + i))
    a("s_waitcnt vmcnt(0)")
    for p in range(2):
        a("v_lshlrev_b32 v24, 16, v%d" % (20 + p))
        a("v_and_b32 v25, 0xffff0000, v%d" % (20 + p))
        a("v_lshlrev_b32 v26, 16, v%d" % (22 + p))
        a("v_and_b32 v27, 0xffff0000, v%d" % (22 + p))
        a("v_add_f32 v24, v24, v26")
        a("v_add_f32 v25, v25, v27")
        a("v_add_f32 v%d, v%d, v24" % (4 + 2 * p, 4 + 2 * p))
        a("v_add_f32 v%d, v%d, v25" % (5 + 2 * p, 5 + 2 * p))
        a("v_cvt_pk_bf16_f32 v%d, v%d, v%d" % (28 + p, 4 + 2 * p, 5 + 2 * p))
    a("buffer_store_dwordx2 v[28:29], v2, s[20:23], 0 offen")
    a.label("reduce_end")
    a("s_endpgm")


KERNELS = [
    ("attn_kernel", gen_attn, (512, 1, 1), 256, 65536, 232, 80),
    ("ogemm_kernel", gen_ogemm, (256, 1, 1), 512, 131072, 176, 64),
    ("reduce_kernel", gen_reduce, (1024, 1, 1), 256, 0, 32, 40),
]
```

```python
import sys

NAME = "parallel_sum__compressed_kv_cla__dense_activation_squared_relu__prompt"

MB = 1 << 20
QF = 0
KF = 16 * MB
VF = 32 * MB
AF = 48 * MB
AF_BLK = 368 * 1024
PART = 80 * MB


class Asm:
    def __init__(self):
        self.lines = []

    def __call__(self, s):
        self.lines.append("  " + s)

    def label(self, s):
        self.lines.append(s + ":")

    def raw(self, s):
        self.lines.append(s)

    def nop(self, n):
        while n > 0:
            k = min(n, 16)
            self("s_nop %d" % (k - 1))
            n -= k


def vr(a, n):
    return "v[%d:%d]" % (a, a + n - 1)


def sr(a, n):
    return "s[%d:%d]" % (a, a + n - 1)


def gen_proj(a):
    V_LANE = 1
    V_TR = 2
    V_OFFC = 10
    V_OFFN = 11
    V_ST = 12
    V_T0 = 13
    V_B = 16
    V_ACC = 48
    V_A = 112
    V_ROWI = 13
    V_SWZ = 14
    V_T = 15

    a.label("proj_kernel")
    a("s_cmp_ge_u32 s2, 256")
    a("s_cbranch_scc1 proj_end")
    a("s_load_dwordx16 s[24:39], s[0:1], 0")
    a("s_load_dwordx4 s[40:43], s[0:1], 64")
    a("s_load_dwordx2 s[44:45], s[0:1], 104")
    a("s_lshr_b32 s3, s2, 5")
    a("s_and_b32 s4, s2, 31")
    a("v_lshrrev_b32 v1, 6, v0")
    a("s_nop 0")
    a("v_readfirstlane_b32 s6, v1")
    a("v_and_b32 v1, 63, v0")
    a("s_waitcnt lgkmcnt(0)")
    a("s_cmp_lt_u32 s4, 16")
    a("s_cselect_b32 s8, s24, s26")
    a("s_cselect_b32 s9, s25, s27")
    a("s_cselect_b32 s5, 0, 1")
    a("s_and_b32 s4, s4, 15")
    a("s_mov_b32 s10, 0x200000")
    a("s_mov_b32 s11, 0x20000")
    a("s_mov_b32 s16, s44")
    a("s_mov_b32 s17, s45")
    a("s_mov_b32 s18, 0x10000000")
    a("s_mov_b32 s19, 0x20000")
    a("s_mov_b32 s20, s40")
    a("s_mov_b32 s21, s41")
    a("s_mov_b32 s22, 3584")
    a("s_mov_b32 s23, 0x20000")
    a("s_mov_b32 s15, 0x20000")
    a("s_mov_b32 s51, 0x20000")
    a("s_lshl_b32 s58, s6, 12")
    a("s_lshl_b32 s59, s3, 3")
    a("s_add_u32 s59, s59, s6")
    a("v_and_b32 v13, 31, v1")
    a("v_lshlrev_b32 v13, 10, v13")
    a("v_lshrrev_b32 v14, 5, v1")
    a("v_lshlrev_b32 v14, 4, v14")
    a("v_add_u32 v13, v13, v14")
    a("s_lshl_b32 s60, s59, 15")
    a("v_add_u32 v13, s60, v13")
    for s in range(32):
        a("buffer_load_dwordx4 %s, v13, s[8:11], 0 offen offset:%d" % (vr(V_A + 4 * s, 4), s * 32))
    a("v_bfe_u32 v13, v1, 2, 2")
    a("v_lshrrev_b32 v14, 5, v1")
    a("v_lshl_add_u32 v14, v14, 3, v13")
    a("v_lshlrev_b32 v14, 8, v14")
    a("v_bfe_u32 v15, v1, 4, 1")
    a("v_lshl_add_u32 v14, v15, 5, v14")
    a("v_and_b32 v15, 3, v1")
    a("v_lshl_add_u32 v14, v15, 3, v14")
    a("v_lshlrev_b32 v13, 6, v13")
    for nt in range(4):
        a("v_xor_b32 v15, %d, v13" % (nt << 6))
        a("v_add_u32 v%d, v14, v15" % (V_TR + nt))
        a("v_add_u32 v%d, 0x10000, v%d" % (V_TR + 4 + nt, V_TR + nt))
    a("v_lshlrev_b32 v%d, 4, v1" % V_ST)
    a("v_lshrrev_b32 v13, 4, v1")
    a("v_bfe_u32 v14, v1, 2, 2")
    a("v_xor_b32 v14, v14, v13")
    a("v_lshlrev_b32 v14, 6, v14")
    a("v_and_b32 v15, 3, v1")
    a("v_lshl_add_u32 v14, v15, 4, v14")
    a("s_lshl_b32 s60, s6, 4")
    a("v_add_u32 v13, s60, v13")

    def set_params(which, wlo, whi, nrec, ldw, colexpr_reg):
        base = 12 if which == "cur" else 48
        sl, sc = (52, 53) if which == "cur" else (54, 55)
        voff = V_OFFC if which == "cur" else V_OFFN
        a("s_mov_b32 s%d, s%d" % (base, wlo))
        a("s_mov_b32 s%d, s%d" % (base + 1, whi))
        if isinstance(nrec, str):
            a("s_mov_b32 s%d, %s" % (base + 2, nrec))
        else:
            a("s_mov_b32 s%d, 0x%x" % (base + 2, nrec))
        a("s_mov_b32 s%d, %d" % (sl, ldw))
        a("s_mov_b32 s%d, %s" % (sc, colexpr_reg))
        a("v_mul_lo_u32 v%d, v%d, s%d" % (voff, V_ROWI, sl))
        a("v_add_u32 v%d, v%d, v%d" % (voff, voff, V_SWZ))

    def dma(kc, which):
        base = 12 if which == "cur" else 48
        sl, sc = (52, 53) if which == "cur" else (54, 55)
        voff = V_OFFC if which == "cur" else V_OFFN
        for i in range(4):
            a("s_add_u32 m0, s58, %d" % (kc * 32768 + i * 1024))
            a("s_mul_i32 s57, s%d, %d" % (sl, kc * 128 + 4 * i))
            a("s_add_u32 s57, s57, s%d" % sc)
            a("buffer_load_dwordx4 v%d, %s, s57 offen lds" % (voff, sr(base, 4)))

    def reads(kc, s, setidx):
        hi = 4 if kc >= 2 else 0
        off = (kc & 1) * 32768 + s * 4096
        for nt in range(4):
            for ird in range(2):
                a("ds_read_b64_tr_b16 %s, v%d offset:%d" % (
                    vr(V_B + setidx * 16 + nt * 4 + ird * 2, 2), V_TR + hi + nt, off + ird * 1024))

    def compute(kc, kind):
        reads(kc, 0, 0)
        for s in range(8):
            if s < 7:
                reads(kc, s + 1, (s + 1) & 1)
                a("s_waitcnt lgkmcnt(8)")
            else:
                a("s_waitcnt lgkmcnt(0)")
            ks = kc * 8 + s
            for nt in range(4):
                acc = vr(V_ACC + 16 * nt, 16)
                wf = vr(V_B + (s & 1) * 16 + nt * 4, 4)
                af = vr(V_A + 4 * ks, 4)
                c = "0" if ks == 0 else acc
                if kind == "V":
                    a("v_mfma_f32_32x32x16_bf16 %s, %s, %s, %s" % (acc, af, wf, c))
                else:
                    a("v_mfma_f32_32x32x16_bf16 %s, %s, %s, %s" % (acc, wf, af, c))

    def epilogue(kind):
        if kind == "H":
            a("v_lshrrev_b32 v15, 5, v1")
            a("v_lshlrev_b32 v15, 3, v15")
            for nt in range(4):
                for q in range(4):
                    a("buffer_load_dwordx2 %s, v15, s[20:23], s53 offen offset:%d" % (
                        vr(V_B + (nt * 4 + q) * 2, 2), 64 * nt + 16 * q))
            a.nop(12)
            a("s_waitcnt vmcnt(0)")
            for nt in range(4):
                for q in range(4):
                    r0 = V_ACC + 16 * nt + 4 * q
                    b0 = V_B + (nt * 4 + q) * 2
                    for p in range(2):
                        x0, x1 = r0 + 2 * p, r0 + 2 * p + 1
                        bb = b0 + p
                        a("v_cvt_pk_bf16_f32 v15, v%d, v%d" % (x0, x1))
                        a("v_lshlrev_b32 v%d, 16, v15" % x0)
                        a("v_and_b32 v%d, 0xffff0000, v15" % x1)
                        a("v_lshlrev_b32 v15, 16, v%d" % bb)
                        a("v_add_f32 v%d, v%d, v15" % (x0, x0))
                        a("v_and_b32 v15, 0xffff0000, v%d" % bb)
                        a("v_add_f32 v%d, v%d, v15" % (x1, x1))
                        a("v_cvt_pk_bf16_f32 v15, v%d, v%d" % (x0, x1))
                        a("v_lshlrev_b32 v%d, 16, v15" % x0)
                        a("v_and_b32 v%d, 0xffff0000, v15" % x1)
                        a("v_max_f32 v%d, 0, v%d" % (x0, x0))
                        a("v_max_f32 v%d, 0, v%d" % (x1, x1))
                        a("v_mul_f32 v%d, v%d, v%d" % (x0, x0, x0))
                        a("v_mul_f32 v%d, v%d, v%d" % (x1, x1, x1))
        else:
            a.nop(12)
        a("s_add_u32 s67, s56, 4096")
        for nt in range(4):
            for t in range(2):
                d = V_B + (nt * 2 + t) * 4
                for p in range(4):
                    x0 = V_ACC + 16 * nt + 8 * t + 2 * p
                    a("v_cvt_pk_bf16_f32 v%d, v%d, v%d" % (d + p, x0, x0 + 1))
                a("buffer_store_dwordx4 %s, v%d, s[16:19], s%d offen offset:%d" % (
                    vr(d, 4), V_ST, 56 if nt < 2 else 67, ((nt * 2 + t) & 3) * 1024))
        a.nop(2)

    def chunk(kind, set_next, set_out):
        set_next()
        set_out()
        for kc in range(4):
            a("s_waitcnt vmcnt(4)")
            a("s_barrier")
            if kc < 2:
                dma(kc + 2, "cur")
            else:
                dma(kc - 2, "next")
            compute(kc, kind)
        epilogue(kind)
        for i in range(3):
            a("s_mov_b32 s%d, s%d" % (12 + i, 48 + i))
        a("s_mov_b32 s52, s54")
        a("s_mov_b32 s53, s55")
        a("v_mov_b32 v%d, v%d" % (V_OFFC, V_OFFN))

    a("s_lshl_b32 s61, s4, 8")
    a("s_add_u32 s62, s61, 4096")
    a("s_lshl_b32 s63, s4, 19")
    a("s_lshl_b32 s64, s59, 13")
    a("s_add_u32 s63, s63, s64")
    a("s_cmp_eq_u32 s5, 1")
    a("s_cbranch_scc1 proj_ckv")

    set_params("cur", 28, 29, 0x400000, 8192, "s61")
    dma(0, "cur")
    dma(1, "cur")
    a("s_waitcnt vmcnt(8)")
    a("v_mov_b32 v16, 0")
    a("v_mov_b32 v17, 0")
    a("v_mov_b32 v18, 0")
    a("v_mov_b32 v19, 0")
    for i in range(128):
        r = V_A + i
        t = 20 + 2 * (i & 3)
        a("v_lshlrev_b32 v%d, 16, v%d" % (t, r))
        a("v_and_b32 v%d, 0xffff0000, v%d" % (t + 1, r))
        a("v_pk_add_f32 v[16:17], v[16:17], %s" % vr(t, 2))
        a("v_pk_fma_f32 v[18:19], %s, %s, v[18:19]" % (vr(t, 2), vr(t, 2)))
    a("v_add_f32 v16, v16, v17")
    a("v_add_f32 v18, v18, v19")
    a("v_mov_b32 v17, v16")
    a("v_mov_b32 v19, v18")
    a.nop(2)
    a("v_permlane32_swap_b32 v16, v17")
    a("v_permlane32_swap_b32 v18, v19")
    a.nop(2)
    a("v_add_f32 v16, v16, v17")
    a("v_add_f32 v18, v18, v19")
    a("v_mul_f32 v16, 0x3b000000, v16")
    a("v_mul_f32 v18, 0x3b000000, v18")
    a("v_fma_f32 v18, -v16, v16, v18")
    a("v_max_f32 v18, 0, v18")
    a("v_cvt_pk_bf16_f32 v16, v16, v18")
    a("v_and_b32 v18, 0xffff0000, v16")
    a("v_lshlrev_b32 v16, 16, v16")
    a("v_add_f32 v18, 0x3727c5ac, v18")
    a("v_cvt_pk_bf16_f32 v18, v18, v18")
    a("v_lshlrev_b32 v18, 16, v18")
    a("v_sqrt_f32 v18, v18")
    a("s_nop 0")
    a("v_cvt_pk_bf16_f32 v18, v18, v18")
    a("v_lshlrev_b32 v18, 16, v18")
    a("v_rcp_f32 v18, v18")
    a("v_mov_b32 v17, v16")
    a("s_nop 0")
    a("v_mov_b32 v19, v18")
    for i in range(128):
        r = V_A + i
        t = 20 + 4 * (i & 3)
        a("v_lshlrev_b32 v%d, 16, v%d" % (t, r))
        a("v_and_b32 v%d, 0xffff0000, v%d" % (t + 1, r))
        a("v_pk_add_f32 %s, %s, v[16:17] neg_lo:[0,1] neg_hi:[0,1]" % (vr(t, 2), vr(t, 2)))
        a("v_cvt_pk_bf16_f32 v%d, v%d, v%d" % (t + 2, t, t + 1))
        a("v_lshlrev_b32 v%d, 16, v%d" % (t, t + 2))
        a("v_and_b32 v%d, 0xffff0000, v%d" % (t + 1, t + 2))
        a("v_pk_mul_f32 %s, %s, v[18:19]" % (vr(t, 2), vr(t, 2)))
        a("v_cvt_pk_bf16_f32 v%d, v%d, v%d" % (r, t, t + 1))

    def out_q0():
        a("s_add_u32 s56, s63, 0x%x" % QF)

    def out_q1():
        a("s_add_u32 s56, s63, 0x%x" % (QF + 16 * 512 * 1024))

    def next_q1():
        set_params("next", 28, 29, 0x400000, 8192, "s62")

    def next_h():
        a("s_cmp_lt_u32 s4, 14")
        a("s_cselect_b32 s66, 0x1c0000, 0")
        set_params("next", 38, 39, "s66", 3584, "s61")

    def next_none():
        a("s_mov_b32 s66, 0")
        set_params("next", 38, 39, "s66", 3584, "s61")

    def out_h():
        a("s_mul_i32 s56, s59, %d" % AF_BLK)
        a("s_lshl_b32 s66, s4, 13")
        a("s_add_u32 s56, s56, s66")
        a("s_add_u32 s56, s56, 0x%x" % (AF + 256 * 1024))

    chunk("QK", next_q1, out_q0)
    chunk("QK", next_h, out_q1)
    a("s_cmp_ge_u32 s4, 14")
    a("s_cbranch_scc1 proj_end")
    chunk("H", next_none, out_h)
    a("s_branch proj_end")

    a.label("proj_ckv")
    set_params("cur", 30, 31, 0x400000, 8192, "s61")
    dma(0, "cur")
    dma(1, "cur")

    def out_k0():
        a("s_add_u32 s56, s63, 0x%x" % KF)

    def out_k1():
        a("s_add_u32 s56, s63, 0x%x" % (KF + 16 * 512 * 1024))

    def out_v0():
        a("s_add_u32 s56, s63, 0x%x" % VF)

    def out_v1():
        a("s_add_u32 s56, s63, 0x%x" % (VF + 16 * 512 * 1024))

    chunk("QK", lambda: set_params("next", 30, 31, 0x400000, 8192, "s62"), out_k0)
    chunk("QK", lambda: set_params("next", 32, 33, 0x400000, 8192, "s61"), out_k1)
    chunk("V", lambda: set_params("next", 32, 33, 0x400000, 8192, "s62"), out_v0)
    chunk("V", next_none, out_v1)
    a.label("proj_end")
    a("s_endpgm")


def descriptor(a, name, vgpr, sgpr, accum):
    a.raw(".p2align 6")
    a.raw(".amdhsa_kernel %s" % name)
    a.raw("  .amdhsa_next_free_vgpr %d" % vgpr)
    a.raw("  .amdhsa_next_free_sgpr %d" % sgpr)
    a.raw("  .amdhsa_accum_offset %d" % accum)
    a.raw("  .amdhsa_group_segment_fixed_size 0")
    a.raw("  .amdhsa_kernarg_size 112")
    a.raw("  .amdhsa_user_sgpr_count 2")
    a.raw("  .amdhsa_user_sgpr_kernarg_segment_ptr 1")
    a.raw("  .amdhsa_system_sgpr_workgroup_id_x 1")
    a.raw(".end_amdhsa_kernel")


def main():
    from gen_rest import KERNELS
    a = Asm()
    hdr = open("cdna_kernels/%s.s.ref" % NAME).read().split("\n")
    for l in hdr:
        if l.startswith(";") and "@launch" not in l:
            a.raw(l)
        elif not l.startswith(";"):
            break
    kernels = [("proj_kernel", gen_proj, (256, 1, 1), 512, 131072, 240, 80)] + KERNELS
    only = sys.argv[2].split(",") if len(sys.argv) > 2 else None
    if only:
        kernels = [k for k in kernels if k[0] in only]
    for (name, fn, grid, block, lds, vg, sg) in kernels:
        a.raw("; @launch kernel=%s grid=(%d,%d,%d) block=(%d,1,1) lds=%d" % (name, grid[0], grid[1], grid[2], block, lds))
    a.raw('.amdgcn_target "amdgcn-amd-amdhsa--gfx950"')
    a.raw(".text")
    for (name, fn, grid, block, lds, vg, sg) in kernels:
        a.raw(".globl %s" % name)
        a.raw(".p2align 8")
        a.raw(".type %s,@function" % name)
        fn(a)
    a.raw('.section .rodata,"a"')
    for (name, fn, grid, block, lds, vg, sg) in kernels:
        acc = (vg + 3) // 4 * 4
        descriptor(a, name, vg, sg, acc)
    out = sys.argv[1] if len(sys.argv) > 1 else "cdna_kernels/%s.s" % NAME
    open(out, "w").write("\n".join(a.lines) + "\n")


if __name__ == "__main__":
    main()
```

```python
from gen import vr, sr, QF, KF, VF, AF, AF_BLK, PART
import math
import os
EXP = os.environ.get("EXP", "")

SCALE_LOG2E = (128 ** -0.5) * math.log2(math.e)


def f32hex(x):
    import struct
    return "0x%08x" % struct.unpack("<I", struct.pack("<f", x))[0]


def interleave(a, mf, fl):
    n = len(mf)
    pos = 0
    for i in range(n):
        a(mf[i])
        end = (len(fl) * (i + 1)) // n
        while pos < end:
            a(fl[pos])
            pos += 1


def gen_attn(a):
    V_LDS = 2
    V_DMA = 3
    V_LG = 4
    V_NEG = 5
    V_RDV = 6
    V_RDK = 7
    V_M = 8
    V_L = 9
    V_T = 10
    V_Q = 16
    V_O = 48
    V_S = 112
    V_P = 144
    V_K = 152
    V_V = 184
    S_MASK = 36
    S_C = 35
    S_THR = 34
    NBUF = 5
    LDSZ = NBUF * 32768

    a.label("attn_kernel")
    a("s_cmp_ge_u32 s2, 256")
    a("s_cbranch_scc1 attn_end")
    a.stamp()
    a("s_load_dwordx2 s[8:9], s[0:1], 104")
    a("v_lshrrev_b32 v1, 6, v0")
    a("s_nop 0")
    a("v_readfirstlane_b32 s6, v1")
    a("v_and_b32 v1, 63, v0")
    a("s_lshr_b32 s22, s6, 2")
    a("s_and_b32 s23, s6, 3")
    a("s_and_b32 s3, s2, 7")
    a("s_lshl_b32 s3, s3, 2")
    a("s_lshr_b32 s4, s2, 3")
    a("s_and_b32 s4, s4, 3")
    a("s_add_u32 s3, s3, s4")
    a("s_lshr_b32 s4, s2, 5")
    a("s_sub_u32 s5, 15, s4")
    a("s_mov_b32 s24, 0")
    a("s_mov_b32 s10, 0x10000000")
    a("s_mov_b32 s11, 0x20000")
    a("s_lshl_b32 s12, s3, 19")
    a("s_mov_b32 s%d, %s" % (S_C, f32hex(SCALE_LOG2E)))
    a("s_mov_b32 s%d, %s" % (S_THR, f32hex(8.0 / SCALE_LOG2E)))
    a("v_lshlrev_b32 v%d, 4, v1" % V_LDS)
    a("s_lshl_b32 s13, s23, 11")
    a("s_lshl_b32 s25, s22, 13")
    a("s_add_u32 s25, s25, s13")
    a("v_add_u32 v%d, s25, v%d" % (V_DMA, V_LDS))
    a("s_lshl_b32 s26, s22, 14")
    a("v_add_u32 v%d, s26, v%d" % (V_LG, V_LDS))
    a("s_add_u32 s27, s26, s13")
    a("v_and_b32 v12, 31, v1")
    a("v_lshrrev_b32 v13, 5, v1")
    a("v_lshlrev_b32 v13, 2, v13")
    a("v_sub_u32 v12, v12, v13")
    for r in range(16):
        kl = 8 * (r >> 2) + (r & 3)
        a("v_cmp_le_i32 %s, %d, v12" % (sr(S_MASK + 2 * r, 2), kl))
    a("v_mov_b32 v%d, 0xf149f2ca" % V_NEG)
    a("s_waitcnt lgkmcnt(0)")

    def bump(sreg):
        return ["s_add_u32 s%d, s%d, 32768" % (sreg, sreg),
                "s_cmp_ge_u32 s%d, %d" % (sreg, LDSZ),
                "s_cselect_b32 s%d, 0, s%d" % (sreg, sreg)]

    def dma_ops():
        ops = []
        ops.append("s_add_u32 m0, s27, s28")
        ops.append("s_nop 0")
        for i in range(2):
            ops.append("buffer_load_dwordx4 v%d, s[8:11], s16 offen offset:%d lds" % (V_DMA, i * 1024))
        ops.append("s_add_u32 m0, m0, 8192")
        ops.append("s_add_u32 s16, s16, 16384")
        for i in range(2):
            ops.append("buffer_load_dwordx4 v%d, s[8:11], s17 offen offset:%d lds" % (V_DMA, i * 1024))
        ops.append("s_add_u32 s17, s17, 16384")
        ops += bump(28)
        return ops

    def dma():
        for x in dma_ops():
            a(x)

    def tstamp(k):
        if not os.environ.get("STAMP"):
            return
        a("s_memtime s[98:99]")
        a("s_waitcnt lgkmcnt(0)")
        a("s_cmp_eq_u32 s24, 0")
        a("s_cselect_b32 s%d, s98, s%d" % (69 + k, 69 + k))
        a("s_cselect_b32 s%d, s%d, s98" % (73 + k, 73 + k))

    def kread_ops():
        return ["ds_read_b128 %s, v%d offset:%d" % (vr(V_K + 4 * s, 4), V_RDK, s * 1024) for s in range(8)] + \
            bump(33) + ["v_add_u32 v%d, s33, v%d" % (V_RDK, V_LG)]

    def vread_ops():
        return ["ds_read_b128 %s, v%d offset:%d" % (vr(V_V + 4 * i, 4), V_RDV, 8192 + i * 1024) for i in range(8)] + \
            bump(32) + ["v_add_u32 v%d, s32, v%d" % (V_RDV, V_LG)]

    def qk_ops(sp):
        ops = []
        S = V_S + 16 * sp
        for s in range(8):
            c = "0" if s == 0 else vr(S, 16)
            ops.append("v_mfma_f32_32x32x16_bf16 %s, %s, %s, %s" % (vr(S, 16), vr(V_K + 4 * s, 4), vr(V_Q + 4 * s, 4), c))
        return ops

    def pv_ops():
        ops = []
        for t in range(2):
            for dt in range(4):
                o = vr(V_O + 16 * dt, 16)
                ops.append("v_mfma_f32_32x32x16_bf16 %s, %s, %s, %s" % (o, vr(V_V + 4 * (dt * 2 + t), 4), vr(V_P + 4 * t, 4), o))
        return ops

    def max_ops(S, t0, t1):
        return ["v_max3_f32 v%d, v%d, v%d, v%d" % (t0, S, S + 1, S + 2),
                "v_max3_f32 v%d, v%d, v%d, v%d" % (t1, S + 3, S + 4, S + 5),
                "v_max3_f32 v%d, v%d, v%d, v%d" % (t0, t0, S + 6, S + 7),
                "v_max3_f32 v%d, v%d, v%d, v%d" % (t1, t1, S + 8, S + 9),
                "v_max3_f32 v%d, v%d, v%d, v%d" % (t0, t0, S + 10, S + 11),
                "v_max3_f32 v%d, v%d, v%d, v%d" % (t1, t1, S + 12, S + 13),
                "v_max3_f32 v%d, v%d, v%d, v%d" % (t0, t0, S + 14, S + 15),
                "v_max_f32 v%d, v%d, v%d" % (t0, t0, t1),
                "v_mov_b32 v%d, v%d" % (t1, t0)]

    def soft_ops(S, tm, t2, t3):
        P = V_P
        vb = ["v_mul_f32 v%d, s%d, v%d" % (tm, S_C, V_M)]
        for r in range(16):
            vb.append("v_fma_f32 v%d, v%d, s%d, -v%d" % (S + r, S + r, S_C, tm))
            if r >= 1:
                vb.append("v_exp_f32 v%d, v%d" % (S + r - 1, S + r - 1))
            if r >= 3 and r % 2 == 1:
                q = r - 3
                vb.append("v_cvt_pk_bf16_f32 v%d, v%d, v%d" % (P + q // 2, S + q, S + q + 1))
                if q == 0:
                    vb.append("v_add_f32 v%d, v%d, v%d" % (t2, S, S + 1))
                elif q == 2:
                    vb.append("v_add_f32 v%d, v%d, v%d" % (t3, S + 2, S + 3))
                else:
                    vb.append("v_add_f32 v%d, v%d, v%d" % (t2, t2, S + q))
                    vb.append("v_add_f32 v%d, v%d, v%d" % (t3, t3, S + q + 1))
        vb.append("v_exp_f32 v%d, v%d" % (S + 15, S + 15))
        vb.append("v_add_f32 v%d, v%d, v%d" % (t2, t2, t3))
        vb.append("v_cvt_pk_bf16_f32 v%d, v%d, v%d" % (P + 7, S + 14, S + 15))
        vb.append("v_add_f32 v%d, v%d, v%d" % (t2, t2, S + 14))
        vb.append("v_add_f32 v%d, v%d, v%d" % (t2, t2, S + 15))
        vb.append("v_add_f32 v%d, v%d, v%d" % (V_L, V_L, t2))
        return vb

    cnt = [0]
    rare = []

    def phaseA(sp, diag):
        cnt[0] += 1
        L = "attn_it%d" % cnt[0]
        S = V_S + 16 * sp
        T = V_T
        if diag:
            a("s_lshl_b32 s29, s18, 1")
            a("s_add_u32 s29, s29, s22")
            a("s_cmp_lt_u32 s29, s30")
            a("s_cbranch_scc1 %s_nomask" % L)
            a("s_cmp_eq_u32 s29, s30")
            a("s_cbranch_scc1 %s_tri" % L)
            for r in range(16):
                a("v_mov_b32 v%d, v%d" % (S + r, V_NEG))
            a("s_branch %s_nomask" % L)
            a.label("%s_tri" % L)
            for r in range(16):
                a("v_cndmask_b32 v%d, v%d, v%d, %s" % (S + r, V_NEG, S + r, sr(S_MASK + 2 * r, 2)))
            a.label("%s_nomask" % L)
        qk = qk_ops(sp ^ 1)
        f1 = max_ops(S, T, T + 1)
        f1 += ["s_nop 1",
               "v_permlane32_swap_b32 v%d, v%d" % (T, T + 1),
               "s_nop 0",
               "v_max3_f32 v%d, v%d, v%d, v%d" % (T, T, T + 1, V_M),
               "v_sub_f32 v%d, v%d, v%d" % (T + 1, T, V_M),
               "v_cmp_lt_f32 vcc, s%d, v%d" % (S_THR, T + 1)]
        interleave(a, qk[:2], f1)
        a("s_nop 1")
        a("s_cbranch_vccnz %s_rs" % L)
        a.label("%s_nors" % L)
        blk = ["%s_rs:" % L,
               "v_mul_f32 v%d, s%d, v%d" % (T + 1, S_C, T + 1),
               "v_exp_f32 v%d, -v%d" % (T + 1, T + 1),
               "v_mov_b32 v%d, v%d" % (V_M, T),
               "v_mul_f32 v%d, v%d, v%d" % (V_L, V_L, T + 1)]
        for i in range(64):
            blk.append("v_mul_f32 v%d, v%d, v%d" % (V_O + i, V_O + i, T + 1))
        blk.append("s_branch %s_nors" % L)
        rare.append(blk)
        so = soft_ops(S, T + 2, T + 3, T + 4)
        vrd = vread_ops()
        mix = []
        step = len(so) // len(vrd)
        k = 0
        for i, x in enumerate(so):
            mix.append(x)
            if i % step == step - 1 and k < len(vrd):
                mix.append(vrd[k])
                k += 1
        mix += vrd[k:]
        interleave(a, qk[2:], mix)
        a("s_add_u32 s18, s18, 1")

    def phaseC(last=False):
        a("s_waitcnt lgkmcnt(0)")
        a("s_nop 0")
        f = [] if last else kread_ops() + dma_ops()
        interleave(a, pv_ops(), f)

    def bar():
        a("s_waitcnt vmcnt(4) lgkmcnt(0)")
        a("s_barrier")

    a.label("attn_tile")
    a("s_lshl_b32 s14, s5, 2")
    a("s_add_u32 s14, s14, s23")
    a("s_mov_b32 s30, s14")
    a("s_lshl_b32 s15, s14, 13")
    a("s_add_u32 s15, s15, s12")
    for k in range(2):
        for s in range(4):
            a("buffer_load_dwordx4 %s, v%d, s[8:11], s15 offen offset:%d" % (vr(V_Q + 16 * k + 4 * s, 4), V_LDS, s * 1024))
        a("s_add_u32 s15, s15, 4096")
    a("s_add_u32 s16, s12, 0x%x" % KF)
    a("s_add_u32 s17, s12, 0x%x" % VF)
    a("s_mov_b32 s28, 0")
    dma()
    dma()
    dma()
    dma()
    a("s_mov_b32 s32, 0")
    a("s_mov_b32 s33, 0")
    a("v_mov_b32 v%d, v%d" % (V_RDV, V_LG))
    a("v_mov_b32 v%d, v%d" % (V_RDK, V_LG))
    a("v_mov_b32 v%d, 0xf149f2ca" % V_M)
    a("v_mov_b32 v%d, 0" % V_L)
    for i in range(64):
        a("v_mov_b32 v%d, 0" % (V_O + i))
    a("s_lshl_b32 s19, s5, 1")
    a("s_mov_b32 s18, 0")
    a("s_waitcnt vmcnt(8)")
    a("s_barrier")
    tstamp(0)
    for x in kread_ops():
        a(x)
    a("s_waitcnt lgkmcnt(0)")
    for x in qk_ops(0):
        a(x)
    for x in kread_ops():
        a(x)
    a("s_cmp_eq_u32 s22, 1")
    a("s_cbranch_scc1 attn_g1")
    a("s_cmp_eq_u32 s5, 0")
    a("s_cbranch_scc1 attn_diag0")
    a.label("attn_loop0")
    a.inloop = "og" not in EXP
    for sp in range(2):
        bar()
        a("s_waitcnt lgkmcnt(0)")
        phaseA(sp, False)
        phaseC()
    a.inloop = False
    a("s_cmp_lt_u32 s18, s19")
    a("s_cbranch_scc1 attn_loop0")
    a.label("attn_diag0")
    tstamp(1)
    for sp in range(2):
        bar()
        a("s_waitcnt lgkmcnt(0)")
        phaseA(sp, True)
        phaseC()
    tstamp(2)
    a("s_branch attn_merge")
    a.label("attn_g1")
    bar()
    dma()
    a("s_waitcnt lgkmcnt(0)")
    a("s_cmp_eq_u32 s5, 0")
    a("s_cbranch_scc1 attn_diag1a")
    phaseA(0, False)
    a.label("attn_loop1")
    a.inloop = "og" not in EXP
    bar()
    phaseC()
    a("s_waitcnt lgkmcnt(0)")
    phaseA(1, False)
    a.inloop = False
    a("s_cmp_ge_u32 s18, s19")
    a("s_cbranch_scc1 attn_diag1")
    a.inloop = "og" not in EXP
    bar()
    phaseC()
    a("s_waitcnt lgkmcnt(0)")
    phaseA(0, False)
    a.inloop = False
    a("s_branch attn_loop1")
    a.label("attn_diag1")
    bar()
    phaseC()
    a("s_waitcnt lgkmcnt(0)")
    a.label("attn_diag1a")
    phaseA(0, True)
    bar()
    phaseC()
    a("s_waitcnt lgkmcnt(0)")
    phaseA(1, True)
    phaseC(last=True)
    a.label("attn_merge")
    a("s_waitcnt vmcnt(0) lgkmcnt(0)")
    a("s_barrier")
    a.nop(12)
    a("s_mul_i32 s29, s6, 9216")
    a("v_add_u32 v12, s29, v%d" % V_LDS)
    a("s_xor_b32 s31, s6, 4")
    a("s_mul_i32 s29, s31, 9216")
    a("v_add_u32 v13, s29, v%d" % V_LDS)
    for g in range(2):
        if g == 0:
            a("s_cmp_eq_u32 s22, 1")
            a("s_cbranch_scc1 attn_mg1")
        else:
            a.label("attn_mg1")
        keep, send = V_O + 32 * g, V_O + 32 * (1 - g)
        for i in range(8):
            a("ds_write_b128 v12, %s offset:%d" % (vr(send + 4 * i, 4), i * 1024))
        a("ds_write_b64 v12, v[%d:%d] offset:8192" % (V_M, V_L))
        a("s_waitcnt lgkmcnt(0)")
        a("s_barrier")
        a("ds_read_b64 v[14:15], v13 offset:8192")
        for i in range(8):
            a("ds_read_b128 %s, v13 offset:%d" % (vr(V_K + 4 * i, 4), i * 1024))
        a("s_waitcnt lgkmcnt(8)")
        a("v_max_f32 v10, v%d, v14" % V_M)
        a("v_sub_f32 v11, v%d, v10" % V_M)
        a("v_sub_f32 v10, v14, v10")
        a("v_mul_f32 v11, s%d, v11" % S_C)
        a("v_mul_f32 v10, s%d, v10" % S_C)
        a("v_exp_f32 v11, v11")
        a("v_exp_f32 v10, v10")
        a.nop(1)
        a("v_mul_f32 v%d, v%d, v11" % (V_L, V_L))
        a("v_fma_f32 v%d, v15, v10, v%d" % (V_L, V_L))
        a("v_mov_b32 v14, v%d" % V_L)
        a.nop(2)
        a("v_permlane32_swap_b32 v%d, v14" % V_L)
        a.nop(1)
        a("v_add_f32 v14, v14, v%d" % V_L)
        a("v_rcp_f32 v14, v14")
        a.nop(1)
        a("v_mul_f32 v11, v11, v14")
        a("v_mul_f32 v10, v10, v14")
        a("s_mul_i32 s20, s14, %d" % AF_BLK)
        a("s_lshl_b32 s21, s3, 13")
        a("s_add_u32 s20, s20, s21")
        a("s_add_u32 s20, s20, 0x%x" % (AF + 4096 * g))
        a("s_waitcnt lgkmcnt(0)")
        for i in range(32):
            a("v_mul_f32 v%d, v%d, v10" % (V_K + i, V_K + i))
            a("v_fma_f32 v%d, v%d, v11, v%d" % (V_K + i, keep + i, V_K + i))
        for k in range(4):
            d = V_V + k * 4
            for p in range(4):
                x0 = V_K + 8 * k + 2 * p
                a("v_cvt_pk_bf16_f32 v%d, v%d, v%d" % (d + p, x0, x0 + 1))
            a("buffer_store_dwordx4 %s, v%d, s[8:11], s20 offen offset:%d" % (vr(d, 4), V_LDS, k * 1024))
        if g == 0:
            a("s_branch attn_mgdone")
    a.label("attn_mgdone")
    tstamp(3)
    a.nst = 9
    a("s_cmp_eq_u32 s24, 1")
    a("s_cbranch_scc1 attn_fin")
    a("s_mov_b32 s24, 1")
    a("s_mov_b32 s5, s4")
    a("s_barrier")
    a("s_branch attn_tile")
    a.label("attn_fin")
    a.stamp_flush(0)
    a.label("attn_end")
    a("s_endpgm")
    for blk in rare:
        a.label(blk[0][:-1])
        for x in blk[1:]:
            a(x)


def gen_ogemm(a):
    V_AL = 2
    V_TR = 4
    V_DA = 8
    V_DB = 9
    V_ST = 11
    V_F = 16
    V_ACC = 48
    NST = 23
    a.label("ogemm_kernel")
    a("s_cmp_ge_u32 s2, 256")
    a("s_cbranch_scc1 ogemm_end")
    a.stamp()
    a("s_load_dwordx2 s[8:9], s[0:1], 104")
    a("s_load_dwordx2 s[24:25], s[0:1], 40")
    a("s_load_dwordx2 s[26:27], s[0:1], 72")
    a("v_lshrrev_b32 v1, 6, v0")
    a("s_nop 0")
    a("v_readfirstlane_b32 s6, v1")
    a("v_and_b32 v1, 63, v0")
    a("s_lshr_b32 s3, s2, 4")
    a("s_and_b32 s4, s2, 1")
    a("s_lshl_b32 s4, s4, 1")
    a("s_bfe_u32 s5, s2, 0x10003")
    a("s_or_b32 s4, s4, s5")
    a("s_bfe_u32 s5, s2, 0x20001")
    a("s_mov_b32 s10, 0x10000000")
    a("s_mov_b32 s11, 0x20000")
    a("s_mov_b32 s15, 0x20000")
    a("s_lshr_b32 s30, s6, 2")
    a("s_lshr_b32 s31, s6, 1")
    a("s_and_b32 s31, s31, 1")
    a("s_and_b32 s32, s6, 1")
    a("v_lshlrev_b32 v%d, 4, v1" % V_ST)
    a("s_lshl_b32 s33, s31, 13")
    a("s_lshl_b32 s34, s30, 11")
    a("s_add_u32 s33, s33, s34")
    a("v_add_u32 v%d, s33, v%d" % (V_AL, V_ST))
    a("v_add_u32 v%d, 0x10000, v%d" % (V_AL + 1, V_AL))
    a("v_bfe_u32 v12, v1, 2, 2")
    a("v_lshrrev_b32 v13, 5, v1")
    a("v_lshl_add_u32 v13, v13, 2, v12")
    a("v_lshlrev_b32 v13, 8, v13")
    a("v_bfe_u32 v14, v1, 4, 1")
    a("v_lshl_add_u32 v13, v14, 5, v13")
    a("v_and_b32 v14, 3, v1")
    a("v_lshl_add_u32 v13, v14, 3, v13")
    a("s_lshl_b32 s33, s30, 13")
    a("s_add_u32 s33, s33, 16384")
    a("v_add_u32 v13, s33, v13")
    a("v_lshlrev_b32 v12, 6, v12")
    a("s_lshl_b32 s34, s32, 7")
    for ntl in range(2):
        a("s_add_u32 s35, s34, %d" % (ntl << 6))
        a("v_xor_b32 v14, s35, v12")
        a("v_add_u32 v%d, v13, v14" % (V_TR + ntl))
        a("v_add_u32 v%d, 0x10000, v%d" % (V_TR + 2 + ntl, V_TR + ntl))
    a("s_lshr_b32 s33, s6, 1")
    a("s_lshl_b32 s34, s3, 2")
    a("s_add_u32 s34, s34, s33")
    a("s_mul_i32 s34, s34, %d" % AF_BLK)
    a("s_lshl_b32 s35, s32, 11")
    a("s_add_u32 s34, s34, s35")
    a("s_add_u32 s34, s34, 0x%x" % AF)
    a("v_add_u32 v%d, s34, v%d" % (V_DA, V_ST))
    a("s_lshl_b32 s36, s6, 11")
    a("v_lshrrev_b32 v12, 4, v1")
    a("v_bfe_u32 v13, v1, 2, 2")
    a("v_xor_b32 v13, v13, v12")
    a("v_lshlrev_b32 v13, 6, v13")
    a("v_and_b32 v14, 3, v1")
    a("v_lshl_add_u32 v13, v14, 4, v13")
    a("s_lshl_b32 s33, s6, 3")
    a("v_add_u32 v12, s33, v12")
    a("v_lshlrev_b32 v12, 10, v12")
    a("v_add_u32 v12, v12, v13")
    a("s_lshl_b32 s33, s4, 8")
    a("v_add_u32 v%d, s33, v12" % V_DB)
    a("v_add_u32 v%d, 3072, v%d" % (V_DB + 1, V_DB))
    a("s_mov_b32 s42, 0x1c0000")
    a("s_mul_i32 s37, s5, %d" % NST)
    a("s_add_u32 s38, s37, %d" % NST)
    a("s_waitcnt lgkmcnt(0)")

    def dma(buf):
        a("s_cmp_lt_u32 s37, 64")
        a("s_cselect_b32 s12, s24, s26")
        a("s_cselect_b32 s13, s25, s27")
        a("s_cselect_b32 s14, 0x400000, s42")
        a("s_cselect_b32 s39, 0, 64")
        a("s_sub_u32 s39, s37, s39")
        a("s_lshl_b32 s39, s39, 16")
        a("s_lshl_b32 s40, s37, 12")
        a("s_cmp_lt_u32 s37, s38")
        a("s_cselect_b32 s14, s14, 0")
        a("s_cselect_b32 s40, s40, 0x10000000")
        a("s_add_u32 m0, s36, %d" % (buf * 32768))
        a("s_add_u32 s37, s37, 1")
        for i in range(2):
            a("buffer_load_dwordx4 v%d, s[8:11], s40 offen offset:%d lds" % (V_DA, i * 1024))
        a("s_add_u32 m0, s36, %d" % (buf * 32768 + 16384))
        a("s_nop 0")
        for i in range(2):
            a("buffer_load_dwordx4 v%d, s[12:15], s39 offen offset:%d lds" % (V_DB + i, i * 1024))

    def reads(buf, sl, st):
        hi = 1 if buf >= 2 else 0
        bo = (buf & 1) * 32768
        f = V_F + st * 16
        for mbl in range(2):
            a("ds_read_b128 %s, v%d offset:%d" % (vr(f + 4 * mbl, 4), V_AL + hi, bo + mbl * 4096 + sl * 1024))
        for ntl in range(2):
            for ird in range(2):
                a("ds_read_b64_tr_b16 %s, v%d offset:%d" % (
                    vr(f + 8 + 4 * ntl + 2 * ird, 2), V_TR + 2 * hi + ntl, bo + sl * 4096 + ird * 2048))

    def mfmas(st, first):
        f = V_F + st * 16
        for mbl in range(2):
            for ntl in range(2):
                acc = vr(V_ACC + 16 * (mbl * 2 + ntl), 16)
                c = "0" if first else acc
                a("v_mfma_f32_32x32x16_bf16 %s, %s, %s, %s" % (acc, vr(f + 8 + 4 * ntl, 4), vr(f + 4 * mbl, 4), c))

    dma(0)
    dma(1)
    dma(2)
    for i in range(64):
        a("v_mov_b32 v%d, 0" % (V_ACC + i))
    a("s_mov_b32 s41, 0")
    a("s_waitcnt vmcnt(8)")
    a("s_barrier")
    a.stamp()
    reads(0, 0, 0)
    a.label("ogemm_loop")
    a.inloop = "og" in EXP
    for buf in range(4):
        a("s_waitcnt vmcnt(4)")
        a("s_barrier")
        reads(buf, 1, 1)
        a("s_waitcnt lgkmcnt(6)")
        mfmas(0, False)
        reads((buf + 1) & 3, 0, 0)
        dma((buf + 3) & 3)
        a("s_waitcnt lgkmcnt(6)")
        mfmas(1, False)
        a("s_add_u32 s41, s41, 1")
        a("s_cmp_ge_u32 s41, %d" % NST)
        a("s_cbranch_scc1 ogemm_done")
    a("s_branch ogemm_loop")
    a.inloop = False
    a.label("ogemm_done")
    a.stamp()
    a("s_waitcnt vmcnt(0) lgkmcnt(0)")
    a("s_barrier")
    a.nop(12)
    a("s_and_b32 s33, s6, 3")
    a("s_lshl_b32 s33, s33, 14")
    a("v_add_u32 v12, s33, v%d" % V_ST)
    a("s_cmp_eq_u32 s30, 0")
    a("s_cbranch_scc1 ogemm_g0")
    for i in range(16):
        a("ds_write_b128 v12, %s offset:%d" % (vr(V_ACC + 4 * i, 4), i * 1024))
    a("s_waitcnt lgkmcnt(0)")
    a("s_barrier")
    a("s_branch ogemm_end")
    a.label("ogemm_g0")
    a("s_barrier")
    for i in range(16):
        a("ds_read_b128 %s, v12 offset:%d" % (vr(112 + 4 * i, 4), i * 1024))
    a("s_lshl_b32 s34, s3, 2")
    a("s_add_u32 s34, s34, s4")
    a("s_lshl_b32 s34, s34, 16")
    a("s_add_u32 s34, s34, s33")
    a("s_lshl_b32 s35, s5, 22")
    a("s_add_u32 s34, s34, s35")
    a("s_add_u32 s34, s34, 0x%x" % PART)
    a("s_waitcnt lgkmcnt(0)")
    for i in range(64):
        a("v_add_f32 v%d, v%d, v%d" % (V_ACC + i, V_ACC + i, 112 + i))
    for i in range(16):
        if i == 4:
            a("s_add_u32 s34, s34, 4096")
        if i == 8:
            a("s_add_u32 s34, s34, 4096")
        if i == 12:
            a("s_add_u32 s34, s34, 4096")
        a("buffer_store_dwordx4 %s, v%d, s[8:11], s34 offen offset:%d" % (vr(V_ACC + 4 * i, 4), V_ST, (i & 3) * 1024))
    a.stamp()
    a.stamp_flush(0)
    a.label("ogemm_end")
    a("s_endpgm")


def gen_reduce(a):
    a.label("reduce_kernel")
    a("s_cmp_ge_u32 s2, 1024")
    a("s_cbranch_scc1 reduce_end")
    a("s_load_dwordx2 s[8:9], s[0:1], 104")
    a("s_load_dwordx2 s[12:13], s[0:1], 0")
    a("s_load_dwordx2 s[16:17], s[0:1], 80")
    a("s_load_dwordx2 s[20:21], s[0:1], 88")
    a("s_mov_b32 s10, 0x10000000")
    a("s_mov_b32 s11, 0x20000")
    a("s_mov_b32 s14, 0x200000")
    a("s_mov_b32 s15, 0x20000")
    a("s_mov_b32 s18, 1024")
    a("s_mov_b32 s19, 0x20000")
    a("s_mov_b32 s22, 0x200000")
    a("s_mov_b32 s23, 0x20000")
    a("s_lshr_b32 s3, s2, 4")
    a("s_lshr_b32 s4, s2, 2")
    a("s_and_b32 s4, s4, 3")
    a("s_and_b32 s5, s2, 3")
    a("s_lshl_b32 s6, s2, 12")
    a("s_add_u32 s6, s6, 0x%x" % PART)
    a("v_lshlrev_b32 v1, 4, v0")
    a("s_waitcnt lgkmcnt(0)")
    a("buffer_load_dwordx4 v[4:7], v1, s[8:11], s6 offen")
    a("s_add_u32 s6, s6, 0x400000")
    a("buffer_load_dwordx4 v[8:11], v1, s[8:11], s6 offen")
    a("s_add_u32 s6, s6, 0x400000")
    a("buffer_load_dwordx4 v[12:15], v1, s[8:11], s6 offen")
    a("s_add_u32 s6, s6, 0x400000")
    a("buffer_load_dwordx4 v[16:19], v1, s[8:11], s6 offen")
    a("s_lshr_b32 s24, s3, 2")
    a("s_and_b32 s25, s3, 3")
    a("s_lshr_b32 s26, s4, 1")
    a("s_and_b32 s27, s4, 1")
    a("s_lshr_b32 s28, s5, 1")
    a("s_and_b32 s29, s5, 1")
    a("s_lshl_b32 s30, s24, 2")
    a("s_lshl_b32 s31, s26, 1")
    a("s_add_u32 s30, s30, s31")
    a("s_add_u32 s30, s30, s28")
    a("s_lshl_b32 s30, s30, 15")
    a("s_lshl_b32 s31, s25, 2")
    a("s_lshl_b32 s32, s27, 1")
    a("s_add_u32 s31, s31, s32")
    a("s_add_u32 s31, s31, s29")
    a("s_lshl_b32 s31, s31, 6")
    a("v_and_b32 v2, 31, v0")
    a("v_lshlrev_b32 v2, 10, v2")
    a("v_lshrrev_b32 v3, 6, v0")
    a("v_lshlrev_b32 v3, 4, v3")
    a("v_bfe_u32 v20, v0, 5, 1")
    a("v_lshl_add_u32 v3, v20, 3, v3")
    a("v_add_u32 v3, s31, v3")
    a("v_add_u32 v2, v2, v3")
    a("v_add_u32 v2, s30, v2")
    a("buffer_load_dwordx2 v[20:21], v2, s[12:15], 0 offen")
    a("buffer_load_dwordx2 v[22:23], v3, s[16:19], 0 offen")
    a("s_waitcnt vmcnt(2)")
    for i in range(4):
        a("v_add_f32 v%d, v%d, v%d" % (4 + i, 4 + i, 8 + i))
        a("v_add_f32 v%d, v%d, v%d" % (12 + i, 12 + i, 16 + i))
    for i in range(4):
        a("v_add_f32 v%d, v%d, v%d" % (4 + i, 4 + i, 12 + i))
    a("s_waitcnt vmcnt(0)")
    for p in range(2):
        a("v_lshlrev_b32 v24, 16, v%d" % (20 + p))
        a("v_and_b32 v25, 0xffff0000, v%d" % (20 + p))
        a("v_lshlrev_b32 v26, 16, v%d" % (22 + p))
        a("v_and_b32 v27, 0xffff0000, v%d" % (22 + p))
        a("v_add_f32 v24, v24, v26")
        a("v_add_f32 v25, v25, v27")
        a("v_add_f32 v%d, v%d, v24" % (4 + 2 * p, 4 + 2 * p))
        a("v_add_f32 v%d, v%d, v25" % (5 + 2 * p, 5 + 2 * p))
        a("v_cvt_pk_bf16_f32 v%d, v%d, v%d" % (28 + p, 4 + 2 * p, 5 + 2 * p))
    a("buffer_store_dwordx2 v[28:29], v2, s[20:23], 0 offen")
    a.label("reduce_end")
    a("s_endpgm")


KERNELS = [
    ("attn_kernel", gen_attn, (256, 1, 1), 512, 163840, 216, 80),
    ("ogemm_kernel", gen_ogemm, (256, 1, 1), 512, 131072, 176, 64),
    ("reduce_kernel", gen_reduce, (1024, 1, 1), 256, 0, 32, 40),
]
```

```python
import sys

NAME = "parallel_sum__compressed_kv_cla__dense_activation_squared_relu__prompt"

MB = 1 << 20
QF = 0
KF = 16 * MB
VF = 32 * MB
AF = 48 * MB
AF_BLK = 368 * 1024
PART = 80 * MB


import os
STAMP = os.environ.get("STAMP")


class Asm:
    def __init__(self):
        self.lines = []
        self.nst = 0

    def stamp(self):
        if not STAMP:
            return
        self("s_memtime s[98:99]")
        self("s_waitcnt lgkmcnt(0)")
        self("s_mov_b32 s%d, s98" % (68 + self.nst))
        self.nst += 1

    def stamp_flush(self, wgsel, dbgptr_off=96):
        if not STAMP:
            return
        L = "stf_%d" % len(self.lines)
        self("s_cmp_lg_u32 s2, %d" % wgsel)
        self("s_cbranch_scc1 %s" % L)
        self("s_load_dwordx2 s[96:97], s[0:1], %d" % dbgptr_off)
        self("s_waitcnt lgkmcnt(0)")
        self("s_mov_b32 s98, 256")
        self("s_mov_b32 s99, 0x20000")
        self("v_cmp_eq_u32 vcc, 0, v0")
        self("s_and_saveexec_b64 s[94:95], vcc")
        self("s_cbranch_execz %s" % L)
        for i in range(self.nst):
            self("v_mov_b32 v1, s%d" % (68 + i))
            self("v_mov_b32 v2, %d" % (4 * i))
            self("buffer_store_dword v1, v2, s[96:99], 0 offen")
        self.label(L)
        self.nst = 0

    inloop = False

    def __call__(self, s):
        EXP = os.environ.get("EXP", "")
        if self.inloop:
            if "nomfma" in EXP and s.startswith("v_mfma"):
                return
            if "novalu" in EXP and s.startswith("v_") and not s.startswith("v_mfma") and not s.startswith("v_cmp") and "0x1ffff" not in s and "0x8000" not in s and not s.startswith("v_mov") and not s.startswith("v_add_u32"):
                return
            if "nolds" in EXP and s.startswith("ds_read"):
                return
            if "nodma" in EXP and s.startswith("buffer_load"):
                return
            if "nobar" in EXP and s.startswith("s_barrier"):
                return
        self.lines.append("  " + s)

    def label(self, s):
        self.lines.append(s + ":")

    def raw(self, s):
        self.lines.append(s)

    def nop(self, n):
        while n > 0:
            k = min(n, 16)
            self("s_nop %d" % (k - 1))
            n -= k


def vr(a, n):
    return "v[%d:%d]" % (a, a + n - 1)


def sr(a, n):
    return "s[%d:%d]" % (a, a + n - 1)


def gen_proj(a):
    V_LANE = 1
    V_TR = 2
    V_OFFC = 10
    V_OFFN = 11
    V_ST = 12
    V_T0 = 13
    V_B = 16
    V_ACC = 48
    V_A = 112
    V_ROWI = 13
    V_SWZ = 14
    V_T = 15

    a.label("proj_kernel")
    a("s_cmp_ge_u32 s2, 256")
    a("s_cbranch_scc1 proj_end")
    a.stamp()
    a("s_load_dwordx16 s[24:39], s[0:1], 0")
    a("s_load_dwordx4 s[40:43], s[0:1], 64")
    a("s_load_dwordx2 s[44:45], s[0:1], 104")
    a("s_lshr_b32 s3, s2, 5")
    a("s_and_b32 s4, s2, 31")
    a("v_lshrrev_b32 v1, 6, v0")
    a("s_nop 0")
    a("v_readfirstlane_b32 s6, v1")
    a("v_and_b32 v1, 63, v0")
    a("s_waitcnt lgkmcnt(0)")
    a("s_cmp_lt_u32 s4, 16")
    a("s_cselect_b32 s8, s24, s26")
    a("s_cselect_b32 s9, s25, s27")
    a("s_cselect_b32 s5, 0, 1")
    a("s_and_b32 s4, s4, 15")
    a("s_mov_b32 s10, 0x200000")
    a("s_mov_b32 s11, 0x20000")
    a("s_mov_b32 s16, s44")
    a("s_mov_b32 s17, s45")
    a("s_mov_b32 s18, 0x10000000")
    a("s_mov_b32 s19, 0x20000")
    a("s_mov_b32 s20, s40")
    a("s_mov_b32 s21, s41")
    a("s_mov_b32 s22, 3584")
    a("s_mov_b32 s23, 0x20000")
    a("s_mov_b32 s15, 0x20000")
    a("s_mov_b32 s51, 0x20000")
    a("s_lshl_b32 s58, s6, 12")
    a("s_lshl_b32 s59, s3, 3")
    a("s_add_u32 s59, s59, s6")
    a("v_and_b32 v13, 31, v1")
    a("v_lshlrev_b32 v13, 10, v13")
    a("v_lshrrev_b32 v14, 5, v1")
    a("v_lshlrev_b32 v14, 4, v14")
    a("v_add_u32 v13, v13, v14")
    a("s_lshl_b32 s60, s59, 15")
    a("v_add_u32 v13, s60, v13")
    for s in range(32):
        a("buffer_load_dwordx4 %s, v13, s[8:11], 0 offen offset:%d" % (vr(V_A + 4 * s, 4), s * 32))
    a("v_bfe_u32 v13, v1, 2, 2")
    a("v_lshrrev_b32 v14, 5, v1")
    a("v_lshl_add_u32 v14, v14, 3, v13")
    a("v_lshlrev_b32 v14, 8, v14")
    a("v_bfe_u32 v15, v1, 4, 1")
    a("v_lshl_add_u32 v14, v15, 5, v14")
    a("v_and_b32 v15, 3, v1")
    a("v_lshl_add_u32 v14, v15, 3, v14")
    a("v_lshlrev_b32 v13, 6, v13")
    for nt in range(4):
        a("v_xor_b32 v15, %d, v13" % (nt << 6))
        a("v_add_u32 v%d, v14, v15" % (V_TR + nt))
        a("v_add_u32 v%d, 0x10000, v%d" % (V_TR + 4 + nt, V_TR + nt))
    a("v_lshlrev_b32 v%d, 4, v1" % V_ST)
    a("v_lshrrev_b32 v13, 4, v1")
    a("v_bfe_u32 v14, v1, 2, 2")
    a("v_xor_b32 v14, v14, v13")
    a("v_lshlrev_b32 v14, 6, v14")
    a("v_and_b32 v15, 3, v1")
    a("v_lshl_add_u32 v14, v15, 4, v14")
    a("s_lshl_b32 s60, s6, 4")
    a("v_add_u32 v13, s60, v13")

    def set_params(which, wlo, whi, nrec, ldw, colexpr_reg):
        base = 12 if which == "cur" else 48
        sl, sc = (52, 53) if which == "cur" else (54, 55)
        voff = V_OFFC if which == "cur" else V_OFFN
        a("s_mov_b32 s%d, s%d" % (base, wlo))
        a("s_mov_b32 s%d, s%d" % (base + 1, whi))
        if isinstance(nrec, str):
            a("s_mov_b32 s%d, %s" % (base + 2, nrec))
        else:
            a("s_mov_b32 s%d, 0x%x" % (base + 2, nrec))
        a("s_mov_b32 s%d, %d" % (sl, ldw))
        a("s_mov_b32 s%d, %s" % (sc, colexpr_reg))
        a("v_mul_lo_u32 v%d, v%d, s%d" % (voff, V_ROWI, sl))
        a("v_add_u32 v%d, v%d, v%d" % (voff, voff, V_SWZ))

    def dma(kc, which):
        base = 12 if which == "cur" else 48
        sl, sc = (52, 53) if which == "cur" else (54, 55)
        voff = V_OFFC if which == "cur" else V_OFFN
        for i in range(4):
            a("s_add_u32 m0, s58, %d" % (kc * 32768 + i * 1024))
            a("s_mul_i32 s57, s%d, %d" % (sl, kc * 128 + 4 * i))
            a("s_add_u32 s57, s57, s%d" % sc)
            a("buffer_load_dwordx4 v%d, %s, s57 offen lds" % (voff, sr(base, 4)))

    def reads(kc, s, setidx):
        hi = 4 if kc >= 2 else 0
        off = (kc & 1) * 32768 + s * 4096
        for nt in range(4):
            for ird in range(2):
                a("ds_read_b64_tr_b16 %s, v%d offset:%d" % (
                    vr(V_B + setidx * 16 + nt * 4 + ird * 2, 2), V_TR + hi + nt, off + ird * 1024))

    def compute(kc, kind):
        reads(kc, 0, 0)
        for s in range(8):
            if s < 7:
                reads(kc, s + 1, (s + 1) & 1)
                a("s_waitcnt lgkmcnt(8)")
            else:
                a("s_waitcnt lgkmcnt(0)")
            ks = kc * 8 + s
            for nt in range(4):
                acc = vr(V_ACC + 16 * nt, 16)
                wf = vr(V_B + (s & 1) * 16 + nt * 4, 4)
                af = vr(V_A + 4 * ks, 4)
                c = "0" if ks == 0 else acc
                if kind == "V":
                    a("v_mfma_f32_32x32x16_bf16 %s, %s, %s, %s" % (acc, af, wf, c))
                else:
                    a("v_mfma_f32_32x32x16_bf16 %s, %s, %s, %s" % (acc, wf, af, c))

    def epilogue(kind):
        if kind == "H":
            a("v_lshrrev_b32 v15, 5, v1")
            a("v_lshlrev_b32 v15, 3, v15")
            for nt in range(4):
                for q in range(4):
                    a("buffer_load_dwordx2 %s, v15, s[20:23], s53 offen offset:%d" % (
                        vr(V_B + (nt * 4 + q) * 2, 2), 64 * nt + 16 * q))
            a.nop(12)
            a("s_waitcnt vmcnt(0)")
            for nt in range(4):
                for q in range(4):
                    r0 = V_ACC + 16 * nt + 4 * q
                    b0 = V_B + (nt * 4 + q) * 2
                    for p in range(2):
                        x0, x1 = r0 + 2 * p, r0 + 2 * p + 1
                        bb = b0 + p
                        a("v_cvt_pk_bf16_f32 v15, v%d, v%d" % (x0, x1))
                        a("v_lshlrev_b32 v%d, 16, v15" % x0)
                        a("v_and_b32 v%d, 0xffff0000, v15" % x1)
                        a("v_lshlrev_b32 v15, 16, v%d" % bb)
                        a("v_add_f32 v%d, v%d, v15" % (x0, x0))
                        a("v_and_b32 v15, 0xffff0000, v%d" % bb)
                        a("v_add_f32 v%d, v%d, v15" % (x1, x1))
                        a("v_cvt_pk_bf16_f32 v15, v%d, v%d" % (x0, x1))
                        a("v_lshlrev_b32 v%d, 16, v15" % x0)
                        a("v_and_b32 v%d, 0xffff0000, v15" % x1)
                        a("v_max_f32 v%d, 0, v%d" % (x0, x0))
                        a("v_max_f32 v%d, 0, v%d" % (x1, x1))
                        a("v_mul_f32 v%d, v%d, v%d" % (x0, x0, x0))
                        a("v_mul_f32 v%d, v%d, v%d" % (x1, x1, x1))
        else:
            a.nop(12)
        a("s_add_u32 s67, s56, 4096")
        for nt in range(4):
            for t in range(2):
                d = V_B + (nt * 2 + t) * 4
                for p in range(4):
                    x0 = V_ACC + 16 * nt + 8 * t + 2 * p
                    a("v_cvt_pk_bf16_f32 v%d, v%d, v%d" % (d + p, x0, x0 + 1))
                a("buffer_store_dwordx4 %s, v%d, s[16:19], s%d offen offset:%d" % (
                    vr(d, 4), V_ST, 56 if nt < 2 else 67, ((nt * 2 + t) & 3) * 1024))
        a.nop(2)

    def chunk(kind, set_next, set_out):
        set_next()
        set_out()
        for kc in range(4):
            a("s_waitcnt vmcnt(4)")
            a("s_barrier")
            if kc < 2:
                dma(kc + 2, "cur")
            else:
                dma(kc - 2, "next")
            if kc == 0:
                a.stamp()
            compute(kc, kind)
        a.stamp()
        epilogue(kind)
        a.stamp()
        for i in range(3):
            a("s_mov_b32 s%d, s%d" % (12 + i, 48 + i))
        a("s_mov_b32 s52, s54")
        a("s_mov_b32 s53, s55")
        a("v_mov_b32 v%d, v%d" % (V_OFFC, V_OFFN))

    a("s_lshl_b32 s61, s4, 8")
    a("s_add_u32 s62, s61, 4096")
    a("s_lshl_b32 s63, s4, 19")
    a("s_lshl_b32 s64, s59, 13")
    a("s_add_u32 s63, s63, s64")
    a("s_cmp_eq_u32 s5, 1")
    a("s_cbranch_scc1 proj_ckv")

    set_params("cur", 28, 29, 0x400000, 8192, "s61")
    dma(0, "cur")
    dma(1, "cur")
    a("s_waitcnt vmcnt(8)")
    a.stamp()
    a("v_mov_b32 v16, 0")
    a("v_mov_b32 v17, 0")
    a("v_mov_b32 v18, 0")
    a("v_mov_b32 v19, 0")
    for i in range(128):
        r = V_A + i
        t = 20 + 2 * (i & 3)
        a("v_lshlrev_b32 v%d, 16, v%d" % (t, r))
        a("v_and_b32 v%d, 0xffff0000, v%d" % (t + 1, r))
        a("v_pk_add_f32 v[16:17], v[16:17], %s" % vr(t, 2))
        a("v_pk_fma_f32 v[18:19], %s, %s, v[18:19]" % (vr(t, 2), vr(t, 2)))
    a("v_add_f32 v16, v16, v17")
    a("v_add_f32 v18, v18, v19")
    a("v_mov_b32 v17, v16")
    a("v_mov_b32 v19, v18")
    a.nop(2)
    a("v_permlane32_swap_b32 v16, v17")
    a("v_permlane32_swap_b32 v18, v19")
    a.nop(2)
    a("v_add_f32 v16, v16, v17")
    a("v_add_f32 v18, v18, v19")
    a("v_mul_f32 v16, 0x3b000000, v16")
    a("v_mul_f32 v18, 0x3b000000, v18")
    a("v_fma_f32 v18, -v16, v16, v18")
    a("v_max_f32 v18, 0, v18")
    a("v_cvt_pk_bf16_f32 v16, v16, v18")
    a("v_and_b32 v18, 0xffff0000, v16")
    a("v_lshlrev_b32 v16, 16, v16")
    a("v_add_f32 v18, 0x3727c5ac, v18")
    a("v_cvt_pk_bf16_f32 v18, v18, v18")
    a("v_lshlrev_b32 v18, 16, v18")
    a("v_sqrt_f32 v18, v18")
    a("s_nop 0")
    a("v_cvt_pk_bf16_f32 v18, v18, v18")
    a("v_lshlrev_b32 v18, 16, v18")
    a("v_rcp_f32 v18, v18")
    a("v_mov_b32 v17, v16")
    a("s_nop 0")
    a("v_mov_b32 v19, v18")
    for i in range(128):
        r = V_A + i
        t = 20 + 4 * (i & 3)
        a("v_lshlrev_b32 v%d, 16, v%d" % (t, r))
        a("v_and_b32 v%d, 0xffff0000, v%d" % (t + 1, r))
        a("v_pk_add_f32 %s, %s, v[16:17] neg_lo:[0,1] neg_hi:[0,1]" % (vr(t, 2), vr(t, 2)))
        a("v_cvt_pk_bf16_f32 v%d, v%d, v%d" % (t + 2, t, t + 1))
        a("v_lshlrev_b32 v%d, 16, v%d" % (t, t + 2))
        a("v_and_b32 v%d, 0xffff0000, v%d" % (t + 1, t + 2))
        a("v_pk_mul_f32 %s, %s, v[18:19]" % (vr(t, 2), vr(t, 2)))
        a("v_cvt_pk_bf16_f32 v%d, v%d, v%d" % (r, t, t + 1))

    a.stamp()

    def out_q0():
        a("s_add_u32 s56, s63, 0x%x" % QF)

    def out_q1():
        a("s_add_u32 s56, s63, 0x%x" % (QF + 16 * 512 * 1024))

    def next_q1():
        set_params("next", 28, 29, 0x400000, 8192, "s62")

    def next_h():
        a("s_cmp_lt_u32 s4, 14")
        a("s_cselect_b32 s66, 0x1c0000, 0")
        set_params("next", 38, 39, "s66", 3584, "s61")

    def next_none():
        a("s_mov_b32 s66, 0")
        set_params("next", 38, 39, "s66", 3584, "s61")

    def out_h():
        a("s_mul_i32 s56, s59, %d" % AF_BLK)
        a("s_lshl_b32 s66, s4, 13")
        a("s_add_u32 s56, s56, s66")
        a("s_add_u32 s56, s56, 0x%x" % (AF + 256 * 1024))

    chunk("QK", next_q1, out_q0)
    chunk("QK", next_h, out_q1)
    a("s_cmp_ge_u32 s4, 14")
    a("s_cbranch_scc1 proj_end")
    chunk("H", next_none, out_h)
    a.stamp_flush(0)
    a("s_branch proj_end")
    a.nst = 1

    a.label("proj_ckv")
    set_params("cur", 30, 31, 0x400000, 8192, "s61")
    dma(0, "cur")
    dma(1, "cur")

    def out_k0():
        a("s_add_u32 s56, s63, 0x%x" % KF)

    def out_k1():
        a("s_add_u32 s56, s63, 0x%x" % (KF + 16 * 512 * 1024))

    def out_v0():
        a("s_add_u32 s56, s63, 0x%x" % VF)

    def out_v1():
        a("s_add_u32 s56, s63, 0x%x" % (VF + 16 * 512 * 1024))

    chunk("QK", lambda: set_params("next", 30, 31, 0x400000, 8192, "s62"), out_k0)
    chunk("QK", lambda: set_params("next", 32, 33, 0x400000, 8192, "s61"), out_k1)
    chunk("V", lambda: set_params("next", 32, 33, 0x400000, 8192, "s62"), out_v0)
    chunk("V", next_none, out_v1)
    a.stamp_flush(int(STAMP) if STAMP else 0)
    a.label("proj_end")
    a("s_endpgm")


def descriptor(a, name, vgpr, sgpr, accum):
    a.raw(".p2align 6")
    a.raw(".amdhsa_kernel %s" % name)
    a.raw("  .amdhsa_next_free_vgpr %d" % vgpr)
    a.raw("  .amdhsa_next_free_sgpr %d" % sgpr)
    a.raw("  .amdhsa_accum_offset %d" % accum)
    a.raw("  .amdhsa_group_segment_fixed_size 0")
    a.raw("  .amdhsa_kernarg_size 112")
    a.raw("  .amdhsa_user_sgpr_count 2")
    a.raw("  .amdhsa_user_sgpr_kernarg_segment_ptr 1")
    a.raw("  .amdhsa_system_sgpr_workgroup_id_x 1")
    a.raw(".end_amdhsa_kernel")


def main():
    from gen_rest import KERNELS
    a = Asm()
    hdr = open("cdna_kernels/%s.s.ref" % NAME).read().split("\n")
    for l in hdr:
        if l.startswith(";") and "@launch" not in l:
            a.raw(l)
        elif not l.startswith(";"):
            break
    kernels = [("proj_kernel", gen_proj, (256, 1, 1), 512, 131072, 240, 80)] + KERNELS
    only = sys.argv[2].split(",") if len(sys.argv) > 2 else None
    if only:
        kernels = [k for k in kernels if k[0] in only]
    for (name, fn, grid, block, lds, vg, sg) in kernels:
        a.raw("; @launch kernel=%s grid=(%d,%d,%d) block=(%d,1,1) lds=%d" % (name, grid[0], grid[1], grid[2], block, lds))
    a.raw('.amdgcn_target "amdgcn-amd-amdhsa--gfx950"')
    a.raw(".text")
    for (name, fn, grid, block, lds, vg, sg) in kernels:
        a.raw(".globl %s" % name)
        a.raw(".p2align 8")
        a.raw(".type %s,@function" % name)
        fn(a)
    a.raw('.section .rodata,"a"')
    for (name, fn, grid, block, lds, vg, sg) in kernels:
        if isinstance(vg, tuple):
            acc = (vg[0] + 3) // 4 * 4
            vg = acc + vg[1]
        else:
            acc = (vg + 3) // 4 * 4
        descriptor(a, name, vg, 102 if STAMP else sg, acc)
    out = sys.argv[1] if len(sys.argv) > 1 else "cdna_kernels/%s.s" % NAME
    open(out, "w").write("\n".join(a.lines) + "\n")


if __name__ == "__main__":
    main()
```

```python
from gen import vr, sr, QF, KF, VF, AF, AF_BLK, PART
import math
import os
EXP = os.environ.get("EXP", "")

SCALE_LOG2E = (128 ** -0.5) * math.log2(math.e)


def f32hex(x):
    import struct
    return "0x%08x" % struct.unpack("<I", struct.pack("<f", x))[0]


def interleave(a, mf, fl):
    n = len(mf)
    pos = 0
    for i in range(n):
        a(mf[i])
        end = (len(fl) * (i + 1)) // n
        while pos < end:
            a(fl[pos])
            pos += 1


def gen_attn(a):
    V_LDS = 2
    V_DMA = 3
    V_LG = 4
    V_NEG = 5
    V_RDV = 6
    V_RDK = 7
    V_M = 8
    V_L = 9
    V_T = 10
    V_Q = 16
    V_O = 48
    V_S = 112
    V_P = 144
    V_K = 152
    V_V = 184
    S_MASK = 36
    S_C = 35
    S_THR = 34
    NBUF = 5
    LDSZ = NBUF * 32768

    a.label("attn_kernel")
    a.stamp()
    a("s_load_dwordx2 s[8:9], s[0:1], 104")
    a("v_lshrrev_b32 v1, 6, v0")
    a("s_nop 0")
    a("v_readfirstlane_b32 s6, v1")
    a("v_and_b32 v1, 63, v0")
    a("s_lshr_b32 s22, s6, 2")
    a("s_and_b32 s23, s6, 3")
    a("s_and_b32 s3, s2, 7")
    a("s_lshl_b32 s3, s3, 2")
    a("s_lshr_b32 s4, s2, 3")
    a("s_and_b32 s4, s4, 3")
    a("s_add_u32 s3, s3, s4")
    a("s_lshr_b32 s4, s2, 5")
    a("s_sub_u32 s5, 15, s4")
    a("s_mov_b32 s24, 0")
    a("s_mov_b32 s10, 0x10000000")
    a("s_mov_b32 s11, 0x20000")
    a("s_lshl_b32 s12, s3, 19")
    a("s_mov_b32 s%d, %s" % (S_C, f32hex(SCALE_LOG2E)))
    a("s_mov_b32 s%d, %s" % (S_THR, f32hex(8.0 / SCALE_LOG2E)))
    a("v_lshlrev_b32 v%d, 4, v1" % V_LDS)
    a("s_lshl_b32 s13, s23, 11")
    a("s_lshl_b32 s25, s22, 13")
    a("s_add_u32 s25, s25, s13")
    a("v_add_u32 v%d, s25, v%d" % (V_DMA, V_LDS))
    a("s_lshl_b32 s26, s22, 14")
    a("v_add_u32 v%d, s26, v%d" % (V_LG, V_LDS))
    a("s_add_u32 s27, s26, s13")
    a("v_and_b32 v12, 31, v1")
    a("v_lshrrev_b32 v13, 5, v1")
    a("v_lshlrev_b32 v13, 2, v13")
    a("v_sub_u32 v12, v12, v13")
    for r in range(16):
        kl = 8 * (r >> 2) + (r & 3)
        a("v_cmp_le_i32 %s, %d, v12" % (sr(S_MASK + 2 * r, 2), kl))
    a("v_mov_b32 v%d, 0xf149f2ca" % V_NEG)
    a("s_waitcnt lgkmcnt(0)")

    def bump(sreg):
        return ["s_add_u32 s%d, s%d, 32768" % (sreg, sreg),
                "s_cmp_ge_u32 s%d, %d" % (sreg, LDSZ),
                "s_cselect_b32 s%d, 0, s%d" % (sreg, sreg)]

    def dma_ops():
        ops = []
        ops.append("s_add_u32 m0, s27, s28")
        ops.append("s_nop 0")
        for i in range(2):
            ops.append("buffer_load_dwordx4 v%d, s[8:11], s16 offen offset:%d lds" % (V_DMA, i * 1024))
        ops.append("s_add_u32 m0, m0, 8192")
        ops.append("s_add_u32 s16, s16, 16384")
        for i in range(2):
            ops.append("buffer_load_dwordx4 v%d, s[8:11], s17 offen offset:%d lds" % (V_DMA, i * 1024))
        ops.append("s_add_u32 s17, s17, 16384")
        ops += bump(28)
        return ops

    def dma():
        for x in dma_ops():
            a(x)

    def tstamp(k):
        if not os.environ.get("STAMP"):
            return
        a("s_memtime s[98:99]")
        a("s_waitcnt lgkmcnt(0)")
        a("s_cmp_eq_u32 s24, 0")
        a("s_cselect_b32 s%d, s98, s%d" % (69 + k, 69 + k))
        a("s_cselect_b32 s%d, s%d, s98" % (73 + k, 73 + k))

    def kread_ops():
        return ["ds_read_b128 %s, v%d offset:%d" % (vr(V_K + 4 * s, 4), V_RDK, s * 1024) for s in range(8)] + \
            bump(33) + ["v_add_u32 v%d, s33, v%d" % (V_RDK, V_LG)]

    def vread_ops():
        return ["ds_read_b128 %s, v%d offset:%d" % (vr(V_V + 4 * i, 4), V_RDV, 8192 + i * 1024) for i in range(8)] + \
            bump(32) + ["v_add_u32 v%d, s32, v%d" % (V_RDV, V_LG)]

    def qk_ops(sp):
        ops = []
        S = V_S + 16 * sp
        for s in range(8):
            c = "0" if s == 0 else vr(S, 16)
            ops.append("v_mfma_f32_32x32x16_bf16 %s, %s, %s, %s" % (vr(S, 16), vr(V_K + 4 * s, 4), vr(V_Q + 4 * s, 4), c))
        return ops

    def pv_ops():
        ops = []
        for t in range(2):
            for dt in range(4):
                o = vr(V_O + 16 * dt, 16)
                ops.append("v_mfma_f32_32x32x16_bf16 %s, %s, %s, %s" % (o, vr(V_V + 4 * (dt * 2 + t), 4), vr(V_P + 4 * t, 4), o))
        return ops

    def max_ops(S, t0, t1):
        return ["v_max3_f32 v%d, v%d, v%d, v%d" % (t0, S, S + 1, S + 2),
                "v_max3_f32 v%d, v%d, v%d, v%d" % (t1, S + 3, S + 4, S + 5),
                "v_max3_f32 v%d, v%d, v%d, v%d" % (t0, t0, S + 6, S + 7),
                "v_max3_f32 v%d, v%d, v%d, v%d" % (t1, t1, S + 8, S + 9),
                "v_max3_f32 v%d, v%d, v%d, v%d" % (t0, t0, S + 10, S + 11),
                "v_max3_f32 v%d, v%d, v%d, v%d" % (t1, t1, S + 12, S + 13),
                "v_max3_f32 v%d, v%d, v%d, v%d" % (t0, t0, S + 14, S + 15),
                "v_max_f32 v%d, v%d, v%d" % (t0, t0, t1),
                "v_mov_b32 v%d, v%d" % (t1, t0)]

    def soft_ops(S, tm, t2, t3):
        P = V_P
        vb = ["v_mul_f32 v%d, s%d, v%d" % (tm, S_C, V_M)]
        for r in range(16):
            vb.append("v_fma_f32 v%d, v%d, s%d, -v%d" % (S + r, S + r, S_C, tm))
            if r >= 1:
                vb.append("v_exp_f32 v%d, v%d" % (S + r - 1, S + r - 1))
            if r >= 3 and r % 2 == 1:
                q = r - 3
                vb.append("v_cvt_pk_bf16_f32 v%d, v%d, v%d" % (P + q // 2, S + q, S + q + 1))
                if q == 0:
                    vb.append("v_add_f32 v%d, v%d, v%d" % (t2, S, S + 1))
                elif q == 2:
                    vb.append("v_add_f32 v%d, v%d, v%d" % (t3, S + 2, S + 3))
                else:
                    vb.append("v_add_f32 v%d, v%d, v%d" % (t2, t2, S + q))
                    vb.append("v_add_f32 v%d, v%d, v%d" % (t3, t3, S + q + 1))
        vb.append("v_exp_f32 v%d, v%d" % (S + 15, S + 15))
        vb.append("v_add_f32 v%d, v%d, v%d" % (t2, t2, t3))
        vb.append("v_cvt_pk_bf16_f32 v%d, v%d, v%d" % (P + 7, S + 14, S + 15))
        vb.append("v_add_f32 v%d, v%d, v%d" % (t2, t2, S + 14))
        vb.append("v_add_f32 v%d, v%d, v%d" % (t2, t2, S + 15))
        vb.append("v_add_f32 v%d, v%d, v%d" % (V_L, V_L, t2))
        return vb

    cnt = [0]
    rare = []

    def phaseA(sp, diag):
        cnt[0] += 1
        L = "attn_it%d" % cnt[0]
        S = V_S + 16 * sp
        T = V_T
        if diag:
            a("s_lshl_b32 s29, s18, 1")
            a("s_add_u32 s29, s29, s22")
            a("s_cmp_lt_u32 s29, s30")
            a("s_cbranch_scc1 %s_nomask" % L)
            a("s_cmp_eq_u32 s29, s30")
            a("s_cbranch_scc1 %s_tri" % L)
            for r in range(16):
                a("v_mov_b32 v%d, v%d" % (S + r, V_NEG))
            a("s_branch %s_nomask" % L)
            a.label("%s_tri" % L)
            for r in range(16):
                a("v_cndmask_b32 v%d, v%d, v%d, %s" % (S + r, V_NEG, S + r, sr(S_MASK + 2 * r, 2)))
            a.label("%s_nomask" % L)
        qk = qk_ops(sp ^ 1)
        f1 = max_ops(S, T, T + 1)
        f1 += ["s_nop 1",
               "v_permlane32_swap_b32 v%d, v%d" % (T, T + 1),
               "s_nop 0",
               "v_max3_f32 v%d, v%d, v%d, v%d" % (T, T, T + 1, V_M),
               "v_sub_f32 v%d, v%d, v%d" % (T + 1, T, V_M),
               "v_cmp_lt_f32 vcc, s%d, v%d" % (S_THR, T + 1)]
        interleave(a, qk[:2], f1)
        a("s_nop 1")
        a("s_cbranch_vccnz %s_rs" % L)
        a.label("%s_nors" % L)
        blk = ["%s_rs:" % L,
               "v_mul_f32 v%d, s%d, v%d" % (T + 1, S_C, T + 1),
               "v_exp_f32 v%d, -v%d" % (T + 1, T + 1),
               "v_mov_b32 v%d, v%d" % (V_M, T),
               "v_mul_f32 v%d, v%d, v%d" % (V_L, V_L, T + 1)]
        for i in range(64):
            blk.append("v_mul_f32 v%d, v%d, v%d" % (V_O + i, V_O + i, T + 1))
        blk.append("s_branch %s_nors" % L)
        rare.append(blk)
        so = soft_ops(S, T + 2, T + 3, T + 4)
        vrd = vread_ops()
        mix = []
        step = len(so) // len(vrd)
        k = 0
        for i, x in enumerate(so):
            mix.append(x)
            if i % step == step - 1 and k < len(vrd):
                mix.append(vrd[k])
                k += 1
        mix += vrd[k:]
        interleave(a, qk[2:], mix)
        a("s_add_u32 s18, s18, 1")

    def phaseC(last=False):
        a("s_waitcnt lgkmcnt(0)")
        a("s_nop 0")
        f = [] if last else kread_ops() + dma_ops()
        interleave(a, pv_ops(), f)

    def bar():
        a("s_waitcnt vmcnt(4) lgkmcnt(0)")
        a("s_barrier")

    a.label("attn_tile")
    a("s_lshl_b32 s14, s5, 2")
    a("s_add_u32 s14, s14, s23")
    a("s_mov_b32 s30, s14")
    a("s_lshl_b32 s15, s14, 13")
    a("s_add_u32 s15, s15, s12")
    for k in range(2):
        for s in range(4):
            a("buffer_load_dwordx4 %s, v%d, s[8:11], s15 offen offset:%d" % (vr(V_Q + 16 * k + 4 * s, 4), V_LDS, s * 1024))
        a("s_add_u32 s15, s15, 4096")
    a("s_add_u32 s16, s12, 0x%x" % KF)
    a("s_add_u32 s17, s12, 0x%x" % VF)
    a("s_mov_b32 s28, 0")
    dma()
    dma()
    dma()
    dma()
    a("s_mov_b32 s32, 0")
    a("s_mov_b32 s33, 0")
    a("v_mov_b32 v%d, v%d" % (V_RDV, V_LG))
    a("v_mov_b32 v%d, v%d" % (V_RDK, V_LG))
    a("v_mov_b32 v%d, 0xf149f2ca" % V_M)
    a("v_mov_b32 v%d, 0" % V_L)
    for i in range(64):
        a("v_mov_b32 v%d, 0" % (V_O + i))
    a("s_lshl_b32 s19, s5, 1")
    a("s_mov_b32 s18, 0")
    a("s_waitcnt vmcnt(8)")
    a("s_barrier")
    tstamp(0)
    for x in kread_ops():
        a(x)
    a("s_waitcnt lgkmcnt(0)")
    for x in qk_ops(0):
        a(x)
    for x in kread_ops():
        a(x)
    a("s_cmp_eq_u32 s22, 1")
    a("s_cbranch_scc1 attn_g1")
    a("s_cmp_eq_u32 s5, 0")
    a("s_cbranch_scc1 attn_diag0")
    a.label("attn_loop0")
    a.inloop = "og" not in EXP
    for sp in range(2):
        bar()
        a("s_waitcnt lgkmcnt(0)")
        phaseA(sp, False)
        phaseC()
    a.inloop = False
    a("s_cmp_lt_u32 s18, s19")
    a("s_cbranch_scc1 attn_loop0")
    a.label("attn_diag0")
    tstamp(1)
    for sp in range(2):
        bar()
        a("s_waitcnt lgkmcnt(0)")
        phaseA(sp, True)
        phaseC()
    tstamp(2)
    a("s_branch attn_merge")
    a.label("attn_g1")
    bar()
    dma()
    a("s_waitcnt lgkmcnt(0)")
    a("s_cmp_eq_u32 s5, 0")
    a("s_cbranch_scc1 attn_diag1a")
    phaseA(0, False)
    a.label("attn_loop1")
    a.inloop = "og" not in EXP
    bar()
    phaseC()
    a("s_waitcnt lgkmcnt(0)")
    phaseA(1, False)
    a.inloop = False
    a("s_cmp_ge_u32 s18, s19")
    a("s_cbranch_scc1 attn_diag1")
    a.inloop = "og" not in EXP
    bar()
    phaseC()
    a("s_waitcnt lgkmcnt(0)")
    phaseA(0, False)
    a.inloop = False
    a("s_branch attn_loop1")
    a.label("attn_diag1")
    bar()
    phaseC()
    a("s_waitcnt lgkmcnt(0)")
    a.label("attn_diag1a")
    phaseA(0, True)
    bar()
    phaseC()
    a("s_waitcnt lgkmcnt(0)")
    phaseA(1, True)
    phaseC(last=True)
    a.label("attn_merge")
    a("s_waitcnt vmcnt(0) lgkmcnt(0)")
    a("s_barrier")
    a.nop(12)
    a("s_mul_i32 s29, s6, 9216")
    a("v_add_u32 v12, s29, v%d" % V_LDS)
    a("s_xor_b32 s31, s6, 4")
    a("s_mul_i32 s29, s31, 9216")
    a("v_add_u32 v13, s29, v%d" % V_LDS)
    for g in range(2):
        if g == 0:
            a("s_cmp_eq_u32 s22, 1")
            a("s_cbranch_scc1 attn_mg1")
        else:
            a.label("attn_mg1")
        keep, send = V_O + 32 * g, V_O + 32 * (1 - g)
        for i in range(8):
            a("ds_write_b128 v12, %s offset:%d" % (vr(send + 4 * i, 4), i * 1024))
        a("ds_write_b64 v12, v[%d:%d] offset:8192" % (V_M, V_L))
        a("s_waitcnt lgkmcnt(0)")
        a("s_barrier")
        a("ds_read_b64 v[14:15], v13 offset:8192")
        for i in range(8):
            a("ds_read_b128 %s, v13 offset:%d" % (vr(V_K + 4 * i, 4), i * 1024))
        a("s_waitcnt lgkmcnt(8)")
        a("v_max_f32 v10, v%d, v14" % V_M)
        a("v_sub_f32 v11, v%d, v10" % V_M)
        a("v_sub_f32 v10, v14, v10")
        a("v_mul_f32 v11, s%d, v11" % S_C)
        a("v_mul_f32 v10, s%d, v10" % S_C)
        a("v_exp_f32 v11, v11")
        a("v_exp_f32 v10, v10")
        a.nop(1)
        a("v_mul_f32 v%d, v%d, v11" % (V_L, V_L))
        a("v_fma_f32 v%d, v15, v10, v%d" % (V_L, V_L))
        a("v_mov_b32 v14, v%d" % V_L)
        a.nop(2)
        a("v_permlane32_swap_b32 v%d, v14" % V_L)
        a.nop(1)
        a("v_add_f32 v14, v14, v%d" % V_L)
        a("v_rcp_f32 v14, v14")
        a.nop(1)
        a("v_mul_f32 v11, v11, v14")
        a("v_mul_f32 v10, v10, v14")
        a("s_mul_i32 s20, s14, %d" % AF_BLK)
        a("s_lshl_b32 s21, s3, 13")
        a("s_add_u32 s20, s20, s21")
        a("s_add_u32 s20, s20, 0x%x" % (AF + 4096 * g))
        a("s_waitcnt lgkmcnt(0)")
        for i in range(32):
            a("v_mul_f32 v%d, v%d, v10" % (V_K + i, V_K + i))
            a("v_fma_f32 v%d, v%d, v11, v%d" % (V_K + i, keep + i, V_K + i))
        for k in range(4):
            d = V_V + k * 4
            for p in range(4):
                x0 = V_K + 8 * k + 2 * p
                a("v_cvt_pk_bf16_f32 v%d, v%d, v%d" % (d + p, x0, x0 + 1))
            a("buffer_store_dwordx4 %s, v%d, s[8:11], s20 offen offset:%d sc1" % (vr(d, 4), V_LDS, k * 1024))
        if g == 0:
            a("s_branch attn_mgdone")
    a.label("attn_mgdone")
    tstamp(3)
    a.nst = 9
    a("s_cmp_eq_u32 s24, 1")
    a("s_cbranch_scc1 attn_fin")
    a("s_mov_b32 s24, 1")
    a("s_mov_b32 s5, s4")
    a("s_barrier")
    a("s_branch attn_tile")
    a.label("attn_fin")
    a.stamp_flush(0)
    a.label("attn_end")
    a("s_branch attn_after")
    for blk in rare:
        a.label(blk[0][:-1])
        for x in blk[1:]:
            a(x)
    a.label("attn_after")
    a.gridbar(1)


def gen_ogemm(a):
    V_AL = 2
    V_TR = 4
    V_DA = 8
    V_DB = 9
    V_ST = 11
    V_F = 16
    V_ACC = 48
    NST = 23
    a.label("ogemm_kernel")
    a.stamp()
    a("s_load_dwordx2 s[8:9], s[0:1], 104")
    a("s_load_dwordx2 s[24:25], s[0:1], 40")
    a("s_load_dwordx2 s[26:27], s[0:1], 72")
    a("v_lshrrev_b32 v1, 6, v0")
    a("s_nop 0")
    a("v_readfirstlane_b32 s6, v1")
    a("v_and_b32 v1, 63, v0")
    a("s_lshr_b32 s3, s2, 4")
    a("s_and_b32 s4, s2, 1")
    a("s_lshl_b32 s4, s4, 1")
    a("s_bfe_u32 s5, s2, 0x10003")
    a("s_or_b32 s4, s4, s5")
    a("s_bfe_u32 s5, s2, 0x20001")
    if "same" in EXP:
        a("s_mov_b32 s3, 0")
        a("s_mov_b32 s4, 0")
        a("s_mov_b32 s5, 0")
    if "map1" not in EXP:
        a("s_and_b32 s3, s2, 1")
        a("s_lshl_b32 s3, s3, 3")
        a("s_bfe_u32 s4, s2, 0x30003")
        a("s_or_b32 s3, s3, s4")
        a("s_lshr_b32 s4, s2, 6")
    a("s_mov_b32 s10, 0x10000000")
    a("s_mov_b32 s11, 0x20000")
    a("s_mov_b32 s15, 0x20000")
    a("s_lshr_b32 s30, s6, 2")
    a("s_lshr_b32 s31, s6, 1")
    a("s_and_b32 s31, s31, 1")
    a("s_and_b32 s32, s6, 1")
    a("v_lshlrev_b32 v%d, 4, v1" % V_ST)
    a("s_lshl_b32 s33, s31, 13")
    a("s_lshl_b32 s34, s30, 11")
    a("s_add_u32 s33, s33, s34")
    a("v_add_u32 v%d, s33, v%d" % (V_AL, V_ST))
    a("v_add_u32 v%d, 0x10000, v%d" % (V_AL + 1, V_AL))
    a("v_bfe_u32 v12, v1, 2, 2")
    a("v_lshrrev_b32 v13, 5, v1")
    a("v_lshl_add_u32 v13, v13, 2, v12")
    a("v_lshlrev_b32 v13, 8, v13")
    a("v_bfe_u32 v14, v1, 4, 1")
    a("v_lshl_add_u32 v13, v14, 5, v13")
    a("v_and_b32 v14, 3, v1")
    a("v_lshl_add_u32 v13, v14, 3, v13")
    a("s_lshl_b32 s33, s30, 13")
    a("s_add_u32 s33, s33, 16384")
    a("v_add_u32 v13, s33, v13")
    a("v_lshlrev_b32 v12, 6, v12")
    a("s_lshl_b32 s34, s32, 7")
    for ntl in range(2):
        a("s_add_u32 s35, s34, %d" % (ntl << 6))
        a("v_xor_b32 v14, s35, v12")
        a("v_add_u32 v%d, v13, v14" % (V_TR + ntl))
        a("v_add_u32 v%d, 0x10000, v%d" % (V_TR + 2 + ntl, V_TR + ntl))
    a("s_lshr_b32 s33, s6, 1")
    a("s_lshl_b32 s34, s3, 2")
    a("s_add_u32 s34, s34, s33")
    a("s_mul_i32 s34, s34, %d" % AF_BLK)
    a("s_lshl_b32 s35, s32, 11")
    a("s_add_u32 s34, s34, s35")
    a("s_add_u32 s34, s34, 0x%x" % AF)
    a("v_add_u32 v%d, s34, v%d" % (V_DA, V_ST))
    a("s_lshl_b32 s36, s6, 11")
    a("v_lshrrev_b32 v12, 4, v1")
    a("v_bfe_u32 v13, v1, 2, 2")
    a("v_xor_b32 v13, v13, v12")
    a("v_lshlrev_b32 v13, 6, v13")
    a("v_and_b32 v14, 3, v1")
    a("v_lshl_add_u32 v13, v14, 4, v13")
    a("s_lshl_b32 s33, s6, 3")
    a("v_add_u32 v12, s33, v12")
    a("v_lshlrev_b32 v12, 10, v12")
    a("v_add_u32 v12, v12, v13")
    a("s_lshl_b32 s33, s4, 8")
    a("v_add_u32 v%d, s33, v12" % V_DB)
    a("v_add_u32 v%d, 3072, v%d" % (V_DB + 1, V_DB))
    a("s_mov_b32 s42, 0x1c0000")
    a("s_mul_i32 s37, s5, %d" % NST)
    a("s_add_u32 s38, s37, %d" % NST)
    a("s_waitcnt lgkmcnt(0)")

    def dma(buf):
        a("s_cmp_lt_u32 s37, 64")
        a("s_cselect_b32 s12, s24, s26")
        a("s_cselect_b32 s13, s25, s27")
        a("s_cselect_b32 s14, 0x400000, s42")
        a("s_cselect_b32 s39, 0, 64")
        a("s_sub_u32 s39, s37, s39")
        a("s_lshl_b32 s39, s39, 16")
        a("s_lshl_b32 s40, s37, 12")
        a("s_cmp_lt_u32 s37, s38")
        a("s_cselect_b32 s14, s14, 0")
        a("s_cselect_b32 s40, s40, 0x10000000")
        a("s_add_u32 m0, s36, %d" % (buf * 32768))
        a("s_add_u32 s37, s37, 1")
        for i in range(2):
            a("buffer_load_dwordx4 v%d, s[8:11], s40 offen offset:%d lds" % (V_DA, i * 1024))
        a("s_add_u32 m0, s36, %d" % (buf * 32768 + 16384))
        a("s_nop 0")
        for i in range(2):
            a("buffer_load_dwordx4 v%d, s[12:15], s39 offen offset:%d lds" % (V_DB + i, i * 1024))

    def reads(buf, sl, st):
        hi = 1 if buf >= 2 else 0
        bo = (buf & 1) * 32768
        f = V_F + st * 16
        for mbl in range(2):
            a("ds_read_b128 %s, v%d offset:%d" % (vr(f + 4 * mbl, 4), V_AL + hi, bo + mbl * 4096 + sl * 1024))
        for ntl in range(2):
            for ird in range(2):
                a("ds_read_b64_tr_b16 %s, v%d offset:%d" % (
                    vr(f + 8 + 4 * ntl + 2 * ird, 2), V_TR + 2 * hi + ntl, bo + sl * 4096 + ird * 2048))

    def mfmas(st, first):
        f = V_F + st * 16
        for mbl in range(2):
            for ntl in range(2):
                acc = vr(V_ACC + 16 * (mbl * 2 + ntl), 16)
                c = "0" if first else acc
                a("v_mfma_f32_32x32x16_bf16 %s, %s, %s, %s" % (acc, vr(f + 8 + 4 * ntl, 4), vr(f + 4 * mbl, 4), c))

    dma(0)
    dma(1)
    dma(2)
    for i in range(64):
        a("v_mov_b32 v%d, 0" % (V_ACC + i))
    a("s_mov_b32 s41, 0")
    a("s_waitcnt vmcnt(8)")
    a("s_barrier")
    a.stamp()
    reads(0, 0, 0)
    a.label("ogemm_loop")
    a.inloop = "og" in EXP
    for buf in range(4):
        a("s_waitcnt vmcnt(4)")
        a("s_barrier")
        reads(buf, 1, 1)
        a("s_waitcnt lgkmcnt(6)")
        mfmas(0, False)
        reads((buf + 1) & 3, 0, 0)
        dma((buf + 3) & 3)
        a("s_waitcnt lgkmcnt(6)")
        mfmas(1, False)
        a("s_add_u32 s41, s41, 1")
        a("s_cmp_ge_u32 s41, %d" % NST)
        a("s_cbranch_scc1 ogemm_done")
    a("s_branch ogemm_loop")
    a.inloop = False
    a.label("ogemm_done")
    a.stamp()
    a("s_waitcnt vmcnt(0) lgkmcnt(0)")
    a("s_barrier")
    a.nop(12)
    a("s_and_b32 s33, s6, 3")
    a("s_lshl_b32 s33, s33, 14")
    a("v_add_u32 v12, s33, v%d" % V_ST)
    a("s_cmp_eq_u32 s30, 0")
    a("s_cbranch_scc1 ogemm_g0")
    for i in range(16):
        a("ds_write_b128 v12, %s offset:%d" % (vr(V_ACC + 4 * i, 4), i * 1024))
    a("s_waitcnt lgkmcnt(0)")
    a("s_barrier")
    a("s_branch ogemm_end")
    a.label("ogemm_g0")
    a("s_barrier")
    for i in range(16):
        a("ds_read_b128 %s, v12 offset:%d" % (vr(112 + 4 * i, 4), i * 1024))
    a("s_lshl_b32 s34, s3, 2")
    a("s_add_u32 s34, s34, s4")
    a("s_lshl_b32 s34, s34, 16")
    a("s_add_u32 s34, s34, s33")
    a("s_lshl_b32 s35, s5, 22")
    a("s_add_u32 s34, s34, s35")
    a("s_add_u32 s34, s34, 0x%x" % PART)
    a("s_waitcnt lgkmcnt(0)")
    for i in range(64):
        a("v_add_f32 v%d, v%d, v%d" % (V_ACC + i, V_ACC + i, 112 + i))
    for i in range(16):
        if i == 4:
            a("s_add_u32 s34, s34, 4096")
        if i == 8:
            a("s_add_u32 s34, s34, 4096")
        if i == 12:
            a("s_add_u32 s34, s34, 4096")
        a("buffer_store_dwordx4 %s, v%d, s[8:11], s34 offen offset:%d sc1" % (vr(V_ACC + 4 * i, 4), V_ST, (i & 3) * 1024))
    a.stamp()
    a.stamp_flush(0)
    a.label("ogemm_end")
    a.gridbar(2)


def gen_reduce(a):
    a.label("reduce_kernel")
    a.stamp()
    a("s_load_dwordx2 s[8:9], s[0:1], 104")
    a("s_load_dwordx2 s[12:13], s[0:1], 0")
    a("s_load_dwordx2 s[16:17], s[0:1], 80")
    a("s_load_dwordx2 s[20:21], s[0:1], 88")
    a("s_mov_b32 s10, 0x10000000")
    a("s_mov_b32 s11, 0x20000")
    a("s_mov_b32 s14, 0x200000")
    a("s_mov_b32 s15, 0x20000")
    a("s_mov_b32 s18, 1024")
    a("s_mov_b32 s19, 0x20000")
    a("s_mov_b32 s22, 0x200000")
    a("s_mov_b32 s23, 0x20000")
    a("v_lshrrev_b32 v1, 8, v0")
    a("s_nop 0")
    a("v_readfirstlane_b32 s40, v1")
    a("v_and_b32 v70, 255, v0")
    a("s_lshl_b32 s41, s2, 2")
    a("s_add_u32 s41, s41, s40")
    a("v_lshlrev_b32 v1, 4, v70")
    a("s_waitcnt lgkmcnt(0)")
    for j in range(2):
        B = 4 + 32 * j
        a("s_lshl_b32 s6, s41, 12")
        a("s_add_u32 s6, s6, 0x%x" % (PART + j * 8192))
        for p in range(4):
            a("buffer_load_dwordx4 %s, v1, s[8:11], s6 offen" % vr(B + 4 * p, 4))
            if p < 3:
                a("s_add_u32 s6, s6, 0x400000")
    for j in range(2):
        B = 4 + 32 * j
        a("s_add_u32 s42, s41, %d" % (2 * j))
        a("s_lshr_b32 s3, s42, 4")
        a("s_lshr_b32 s4, s42, 2")
        a("s_and_b32 s4, s4, 3")
        a("s_and_b32 s5, s42, 3")
        a("s_lshr_b32 s24, s3, 2")
        a("s_and_b32 s25, s3, 3")
        a("s_lshr_b32 s26, s4, 1")
        a("s_and_b32 s27, s4, 1")
        a("s_lshr_b32 s28, s5, 1")
        a("s_and_b32 s29, s5, 1")
        a("s_lshl_b32 s30, s24, 2")
        a("s_lshl_b32 s31, s26, 1")
        a("s_add_u32 s30, s30, s31")
        a("s_add_u32 s30, s30, s28")
        a("s_lshl_b32 s30, s30, 15")
        a("s_lshl_b32 s31, s25, 2")
        a("s_lshl_b32 s32, s27, 1")
        a("s_add_u32 s31, s31, s32")
        a("s_add_u32 s31, s31, s29")
        a("s_lshl_b32 s31, s31, 6")
        a("v_and_b32 v2, 31, v70")
        a("v_lshlrev_b32 v2, 10, v2")
        a("v_lshrrev_b32 v3, 6, v70")
        a("v_lshlrev_b32 v3, 4, v3")
        a("v_bfe_u32 v%d, v70, 5, 1" % (B + 16))
        a("v_lshl_add_u32 v3, v%d, 3, v3" % (B + 16))
        a("v_add_u32 v3, s31, v3")
        a("v_add_u32 v2, v2, v3")
        a("v_add_u32 v%d, s30, v2" % (B + 26))
        a("buffer_load_dwordx2 %s, v%d, s[12:15], 0 offen" % (vr(B + 16, 2), B + 26))
        a("buffer_load_dwordx2 %s, v3, s[16:19], 0 offen" % vr(B + 18, 2))
    for j in range(2):
        B = 4 + 32 * j
        a("s_waitcnt vmcnt(%d)" % (8 - 4 * j))
        for i in range(4):
            a("v_add_f32 v%d, v%d, v%d" % (B + i, B + i, B + 4 + i))
            a("v_add_f32 v%d, v%d, v%d" % (B + 8 + i, B + 8 + i, B + 12 + i))
        for i in range(4):
            a("v_add_f32 v%d, v%d, v%d" % (B + i, B + i, B + 8 + i))
    for j in range(2):
        B = 4 + 32 * j
        a("s_waitcnt vmcnt(%d)" % (2 - 2 * j))
        for p in range(2):
            a("v_lshlrev_b32 v%d, 16, v%d" % (B + 20, B + 16 + p))
            a("v_and_b32 v%d, 0xffff0000, v%d" % (B + 21, B + 16 + p))
            a("v_lshlrev_b32 v%d, 16, v%d" % (B + 22, B + 18 + p))
            a("v_and_b32 v%d, 0xffff0000, v%d" % (B + 23, B + 18 + p))
            a("v_add_f32 v%d, v%d, v%d" % (B + 20, B + 20, B + 22))
            a("v_add_f32 v%d, v%d, v%d" % (B + 21, B + 21, B + 23))
            a("v_add_f32 v%d, v%d, v%d" % (B + 2 * p, B + 2 * p, B + 20))
            a("v_add_f32 v%d, v%d, v%d" % (B + 1 + 2 * p, B + 1 + 2 * p, B + 21))
            a("v_cvt_pk_bf16_f32 v%d, v%d, v%d" % (B + 24 + p, B + 2 * p, B + 1 + 2 * p))
        a("buffer_store_dwordx2 %s, v%d, s[20:23], 0 offen" % (vr(B + 24, 2), B + 26))
    a.stamp()
    a.stamp_flush(0)
    a("s_endpgm")
```

```python
import sys

NAME = "parallel_sum__compressed_kv_cla__dense_activation_squared_relu__prompt"

MB = 1 << 20
QF = 0
KF = 16 * MB
VF = 32 * MB
AF = 48 * MB
AF_BLK = 368 * 1024
PART = 80 * MB
CTR = 100 * MB


import os
STAMP = os.environ.get("STAMP")


class Asm:
    def __init__(self):
        self.lines = []
        self.nst = 0

    def stamp(self):
        if not STAMP:
            return
        self("s_memtime s[98:99]")
        self("s_waitcnt lgkmcnt(0)")
        self("s_mov_b32 s%d, s98" % (68 + self.nst))
        self.nst += 1

    def stamp_flush(self, wgsel, dbgptr_off=96):
        if not STAMP:
            return
        L = "stf_%d" % len(self.lines)
        self("s_cmp_lg_u32 s2, %d" % wgsel)
        self("s_cbranch_scc1 %s" % L)
        self("s_load_dwordx2 s[96:97], s[0:1], %d" % dbgptr_off)
        self("s_waitcnt lgkmcnt(0)")
        self("s_mov_b32 s98, 4096")
        self("s_mov_b32 s99, 0x20000")
        self("v_cmp_eq_u32 vcc, 0, v0")
        self("s_and_saveexec_b64 s[94:95], vcc")
        self("s_cbranch_execz %s" % L)
        for i in range(self.nst):
            self("v_mov_b32 v1, s%d" % (68 + i))
            self("v_mov_b32 v2, %d" % (4 * i + 512 * (self.phase + 1)))
            self("buffer_store_dword v1, v2, s[96:99], 0 offen")
        self.label(L)
        self("s_mov_b64 exec, -1")
        self.nst = 0

    phase = 0

    def gridbar(self, k):
        a = self
        if STAMP:
            a("s_memrealtime s[14:15]")
        if k == 0:
            a("s_cmp_ge_u32 s2, 32")
            a("s_cbranch_scc1 gb_noinit")
            a("s_load_dwordx2 s[8:9], s[0:1], 104")
            a("s_mov_b32 s10, 0x10000000")
            a("s_mov_b32 s11, 0x20000")
            a("s_lshl_b32 s12, s2, 12")
            a("s_add_u32 s12, s12, 0x%x" % CTR)
            a("v_mov_b32 v1, 0")
            a("v_mov_b32 v2, 0")
            a("s_waitcnt lgkmcnt(0)")
            a("buffer_store_dword v1, v2, s[8:11], s12 offen sc0 sc1")
            a.label("gb_noinit")
        a("s_waitcnt vmcnt(0) lgkmcnt(0)")
        a("s_barrier")
        if STAMP:
            a("s_memrealtime s[16:17]")
        a("v_lshrrev_b32 v1, 6, v0")
        a("s_nop 0")
        a("v_readfirstlane_b32 s6, v1")
        a("s_cmp_lg_u32 s6, 0")
        a("s_cbranch_scc1 gb_wait%d" % k)
        a("s_load_dwordx2 s[8:9], s[0:1], 96")
        a("s_load_dwordx2 s[24:25], s[0:1], 104")
        a("s_mov_b32 s10, 256")
        a("s_mov_b32 s11, 0x20000")
        a("s_mov_b32 s26, 0x10000000")
        a("s_mov_b32 s27, 0x20000")
        a("s_mov_b64 exec, 1")
        a("v_mov_b32 v1, 1")
        a("v_mov_b32 v2, %d" % (4 * k))
        a("s_waitcnt lgkmcnt(0)")
        tgt = 256
        if True:
            tgt = 16
            a("s_and_b32 s12, s2, 15")
            a("v_mov_b32 v3, 1")
            a("v_mov_b32 v4, 0")
            if k > 0:
                a("s_lshl_b32 s12, s12, 12")
                a("s_add_u32 s12, s12, 0x%x" % (CTR + (k - 1) * 65536))
                a("buffer_atomic_add v3, v4, s[24:27], s12 offen sc0 sc1")
            else:
                a("s_lshl_b32 s12, s12, 2")
                a("s_add_u32 s12, s12, 128")
                a("buffer_atomic_add v3, v4, s[8:11], s12 offen sc0 sc1")
            a("s_waitcnt vmcnt(0)")
            a("v_readfirstlane_b32 s13, v3")
            a("s_cmp_lg_u32 s13, 15")
            a("s_cbranch_scc1 gb_nr%d" % k)
        a("buffer_atomic_add v1, v2, s[8:11], 0 offen sc1")
        if True:
            a.label("gb_nr%d" % k)
        a("s_mov_b32 s12, 0")
        a.label("gb_loop%d" % k)
        a("buffer_load_dword v3, v2, s[8:11], 0 offen %s" % os.environ.get("PSC", "sc1"))
        a("s_waitcnt vmcnt(0)")
        a("v_readfirstlane_b32 s13, v3")
        a("s_cmp_ge_u32 s13, %d" % tgt)
        a("s_cbranch_scc1 gb_done%d" % k)
        a("s_add_u32 s12, s12, 1")
        a("s_cmp_gt_u32 s12, 40000")
        a("s_cbranch_scc1 gb_done%d" % k)
        a("s_sleep %s" % os.environ.get("SLEEP", "8"))
        a("s_branch gb_loop%d" % k)
        a.label("gb_done%d" % k)
        if STAMP:
            a("s_memrealtime s[18:19]")
            a("s_mov_b32 s10, 65536")
            a("s_lshl_b32 s20, s2, 4")
            a("s_add_u32 s20, s20, %d" % (4096 + 4096 * k))
            a("s_waitcnt lgkmcnt(0)")
            a("s_mov_b64 exec, 1")
            a("v_mov_b32 v4, s14")
            a("v_mov_b32 v5, s16")
            a("v_mov_b32 v6, s18")
            a("v_mov_b32 v7, s92")
            a("v_mov_b32 v2, 0")
            a("buffer_store_dwordx4 v[4:7], v2, s[8:11], s20 offen")
        a("s_mov_b64 exec, -1")
        a.label("gb_wait%d" % k)
        a("s_barrier")
        if "inv" in os.environ.get("EXP", ""):
            a("buffer_inv sc1")
        self.phase = k + 1

    inloop = False

    def __call__(self, s):
        EXP = os.environ.get("EXP", "")
        if self.inloop:
            if "nomfma" in EXP and s.startswith("v_mfma"):
                return
            if "novalu" in EXP and s.startswith("v_") and not s.startswith("v_mfma") and not s.startswith("v_cmp") and "0x1ffff" not in s and "0x8000" not in s and not s.startswith("v_mov") and not s.startswith("v_add_u32"):
                return
            if "nolds" in EXP and s.startswith("ds_read"):
                return
            if "nodma" in EXP and s.startswith("buffer_load"):
                return
            if "nobar" in EXP and s.startswith("s_barrier"):
                return
        if "nosc1" in EXP and s.startswith("buffer_store") and s.endswith(" sc1"):
            s = s[:-4]
        self.lines.append("  " + s)

    def label(self, s):
        self.lines.append(s + ":")

    def raw(self, s):
        self.lines.append(s)

    def nop(self, n):
        while n > 0:
            k = min(n, 16)
            self("s_nop %d" % (k - 1))
            n -= k


def vr(a, n):
    return "v[%d:%d]" % (a, a + n - 1)


def sr(a, n):
    return "s[%d:%d]" % (a, a + n - 1)


def gen_proj(a):
    V_LANE = 1
    V_TR = 2
    V_OFFC = 10
    V_OFFN = 11
    V_ST = 12
    V_T0 = 13
    V_B = 16
    V_ACC = 48
    V_A = 112
    V_ROWI = 13
    V_SWZ = 14
    V_T = 15

    a.label("mega_kernel")
    a("s_cmp_lt_u32 s2, 256")
    a("s_cbranch_scc1 proj_start")
    a("s_endpgm")
    a.label("proj_start")
    if STAMP:
        a("s_memrealtime s[92:93]")
    a.stamp()
    a("s_load_dwordx16 s[24:39], s[0:1], 0")
    a("s_load_dwordx4 s[40:43], s[0:1], 64")
    a("s_load_dwordx2 s[44:45], s[0:1], 104")
    a("s_lshr_b32 s3, s2, 5")
    a("s_and_b32 s4, s2, 31")
    a("v_lshrrev_b32 v1, 6, v0")
    a("s_nop 0")
    a("v_readfirstlane_b32 s6, v1")
    a("v_and_b32 v1, 63, v0")
    a("s_waitcnt lgkmcnt(0)")
    a("s_cmp_lt_u32 s4, 16")
    a("s_cselect_b32 s8, s24, s26")
    a("s_cselect_b32 s9, s25, s27")
    a("s_cselect_b32 s5, 0, 1")
    a("s_and_b32 s4, s4, 15")
    a("s_mov_b32 s10, 0x200000")
    a("s_mov_b32 s11, 0x20000")
    a("s_mov_b32 s16, s44")
    a("s_mov_b32 s17, s45")
    a("s_mov_b32 s18, 0x10000000")
    a("s_mov_b32 s19, 0x20000")
    a("s_mov_b32 s20, s40")
    a("s_mov_b32 s21, s41")
    a("s_mov_b32 s22, 3584")
    a("s_mov_b32 s23, 0x20000")
    a("s_mov_b32 s15, 0x20000")
    a("s_mov_b32 s51, 0x20000")
    a("s_lshl_b32 s58, s6, 12")
    a("s_lshl_b32 s59, s3, 3")
    a("s_add_u32 s59, s59, s6")
    a("v_and_b32 v13, 31, v1")
    a("v_lshlrev_b32 v13, 10, v13")
    a("v_lshrrev_b32 v14, 5, v1")
    a("v_lshlrev_b32 v14, 4, v14")
    a("v_add_u32 v13, v13, v14")
    a("s_lshl_b32 s60, s59, 15")
    a("v_add_u32 v13, s60, v13")
    for s in range(32):
        a("buffer_load_dwordx4 %s, v13, s[8:11], 0 offen offset:%d" % (vr(V_A + 4 * s, 4), s * 32))
    a("v_bfe_u32 v13, v1, 2, 2")
    a("v_lshrrev_b32 v14, 5, v1")
    a("v_lshl_add_u32 v14, v14, 3, v13")
    a("v_lshlrev_b32 v14, 8, v14")
    a("v_bfe_u32 v15, v1, 4, 1")
    a("v_lshl_add_u32 v14, v15, 5, v14")
    a("v_and_b32 v15, 3, v1")
    a("v_lshl_add_u32 v14, v15, 3, v14")
    a("v_lshlrev_b32 v13, 6, v13")
    for nt in range(4):
        a("v_xor_b32 v15, %d, v13" % (nt << 6))
        a("v_add_u32 v%d, v14, v15" % (V_TR + nt))
        a("v_add_u32 v%d, 0x10000, v%d" % (V_TR + 4 + nt, V_TR + nt))
    a("v_lshlrev_b32 v%d, 4, v1" % V_ST)
    a("v_lshrrev_b32 v13, 4, v1")
    a("v_bfe_u32 v14, v1, 2, 2")
    a("v_xor_b32 v14, v14, v13")
    a("v_lshlrev_b32 v14, 6, v14")
    a("v_and_b32 v15, 3, v1")
    a("v_lshl_add_u32 v14, v15, 4, v14")
    a("s_lshl_b32 s60, s6, 4")
    a("v_add_u32 v13, s60, v13")

    def set_params(which, wlo, whi, nrec, ldw, colexpr_reg):
        base = 12 if which == "cur" else 48
        sl, sc = (52, 53) if which == "cur" else (54, 55)
        voff = V_OFFC if which == "cur" else V_OFFN
        a("s_mov_b32 s%d, s%d" % (base, wlo))
        a("s_mov_b32 s%d, s%d" % (base + 1, whi))
        if isinstance(nrec, str):
            a("s_mov_b32 s%d, %s" % (base + 2, nrec))
        else:
            a("s_mov_b32 s%d, 0x%x" % (base + 2, nrec))
        a("s_mov_b32 s%d, %d" % (sl, ldw))
        a("s_mov_b32 s%d, %s" % (sc, colexpr_reg))
        a("v_mul_lo_u32 v%d, v%d, s%d" % (voff, V_ROWI, sl))
        a("v_add_u32 v%d, v%d, v%d" % (voff, voff, V_SWZ))

    def dma(kc, which):
        base = 12 if which == "cur" else 48
        sl, sc = (52, 53) if which == "cur" else (54, 55)
        voff = V_OFFC if which == "cur" else V_OFFN
        for i in range(4):
            a("s_add_u32 m0, s58, %d" % (kc * 32768 + i * 1024))
            a("s_mul_i32 s57, s%d, %d" % (sl, kc * 128 + 4 * i))
            a("s_add_u32 s57, s57, s%d" % sc)
            a("buffer_load_dwordx4 v%d, %s, s57 offen lds" % (voff, sr(base, 4)))

    def reads(kc, s, setidx):
        hi = 4 if kc >= 2 else 0
        off = (kc & 1) * 32768 + s * 4096
        for nt in range(4):
            for ird in range(2):
                a("ds_read_b64_tr_b16 %s, v%d offset:%d" % (
                    vr(V_B + setidx * 16 + nt * 4 + ird * 2, 2), V_TR + hi + nt, off + ird * 1024))

    def compute(kc, kind):
        reads(kc, 0, 0)
        for s in range(8):
            if s < 7:
                reads(kc, s + 1, (s + 1) & 1)
                a("s_waitcnt lgkmcnt(8)")
            else:
                a("s_waitcnt lgkmcnt(0)")
            ks = kc * 8 + s
            for nt in range(4):
                acc = vr(V_ACC + 16 * nt, 16)
                wf = vr(V_B + (s & 1) * 16 + nt * 4, 4)
                af = vr(V_A + 4 * ks, 4)
                c = "0" if ks == 0 else acc
                if kind == "V":
                    a("v_mfma_f32_32x32x16_bf16 %s, %s, %s, %s" % (acc, af, wf, c))
                else:
                    a("v_mfma_f32_32x32x16_bf16 %s, %s, %s, %s" % (acc, wf, af, c))

    def epilogue(kind):
        if kind == "H":
            a("v_lshrrev_b32 v15, 5, v1")
            a("v_lshlrev_b32 v15, 3, v15")
            for nt in range(4):
                for q in range(4):
                    a("buffer_load_dwordx2 %s, v15, s[20:23], s53 offen offset:%d" % (
                        vr(V_B + (nt * 4 + q) * 2, 2), 64 * nt + 16 * q))
            a.nop(12)
            a("s_waitcnt vmcnt(0)")
            for nt in range(4):
                for q in range(4):
                    r0 = V_ACC + 16 * nt + 4 * q
                    b0 = V_B + (nt * 4 + q) * 2
                    for p in range(2):
                        x0, x1 = r0 + 2 * p, r0 + 2 * p + 1
                        bb = b0 + p
                        a("v_cvt_pk_bf16_f32 v15, v%d, v%d" % (x0, x1))
                        a("v_lshlrev_b32 v%d, 16, v15" % x0)
                        a("v_and_b32 v%d, 0xffff0000, v15" % x1)
                        a("v_lshlrev_b32 v15, 16, v%d" % bb)
                        a("v_add_f32 v%d, v%d, v15" % (x0, x0))
                        a("v_and_b32 v15, 0xffff0000, v%d" % bb)
                        a("v_add_f32 v%d, v%d, v15" % (x1, x1))
                        a("v_cvt_pk_bf16_f32 v15, v%d, v%d" % (x0, x1))
                        a("v_lshlrev_b32 v%d, 16, v15" % x0)
                        a("v_and_b32 v%d, 0xffff0000, v15" % x1)
                        a("v_max_f32 v%d, 0, v%d" % (x0, x0))
                        a("v_max_f32 v%d, 0, v%d" % (x1, x1))
                        a("v_mul_f32 v%d, v%d, v%d" % (x0, x0, x0))
                        a("v_mul_f32 v%d, v%d, v%d" % (x1, x1, x1))
        else:
            a.nop(12)
        a("s_add_u32 s67, s56, 4096")
        for nt in range(4):
            for t in range(2):
                d = V_B + (nt * 2 + t) * 4
                for p in range(4):
                    x0 = V_ACC + 16 * nt + 8 * t + 2 * p
                    a("v_cvt_pk_bf16_f32 v%d, v%d, v%d" % (d + p, x0, x0 + 1))
                a("buffer_store_dwordx4 %s, v%d, s[16:19], s%d offen offset:%d sc1" % (
                    vr(d, 4), V_ST, 56 if nt < 2 else 67, ((nt * 2 + t) & 3) * 1024))
        a.nop(2)

    def chunk(kind, set_next, set_out):
        set_next()
        set_out()
        for kc in range(4):
            a("s_waitcnt vmcnt(4)")
            a("s_barrier")
            if kc < 2:
                dma(kc + 2, "cur")
            else:
                dma(kc - 2, "next")
            if kc == 0:
                a.stamp()
            compute(kc, kind)
        a.stamp()
        epilogue(kind)
        a.stamp()
        for i in range(3):
            a("s_mov_b32 s%d, s%d" % (12 + i, 48 + i))
        a("s_mov_b32 s52, s54")
        a("s_mov_b32 s53, s55")
        a("v_mov_b32 v%d, v%d" % (V_OFFC, V_OFFN))

    a("s_lshl_b32 s61, s4, 8")
    a("s_add_u32 s62, s61, 4096")
    a("s_lshl_b32 s63, s4, 19")
    a("s_lshl_b32 s64, s59, 13")
    a("s_add_u32 s63, s63, s64")
    a("s_cmp_eq_u32 s5, 1")
    a("s_cbranch_scc1 proj_ckv")

    set_params("cur", 28, 29, 0x400000, 8192, "s61")
    dma(0, "cur")
    dma(1, "cur")
    a("s_waitcnt vmcnt(8)")
    a.stamp()
    a("v_mov_b32 v16, 0")
    a("v_mov_b32 v17, 0")
    a("v_mov_b32 v18, 0")
    a("v_mov_b32 v19, 0")
    for i in range(128):
        r = V_A + i
        t = 20 + 2 * (i & 3)
        a("v_lshlrev_b32 v%d, 16, v%d" % (t, r))
        a("v_and_b32 v%d, 0xffff0000, v%d" % (t + 1, r))
        a("v_pk_add_f32 v[16:17], v[16:17], %s" % vr(t, 2))
        a("v_pk_fma_f32 v[18:19], %s, %s, v[18:19]" % (vr(t, 2), vr(t, 2)))
    a("v_add_f32 v16, v16, v17")
    a("v_add_f32 v18, v18, v19")
    a("v_mov_b32 v17, v16")
    a("v_mov_b32 v19, v18")
    a.nop(2)
    a("v_permlane32_swap_b32 v16, v17")
    a("v_permlane32_swap_b32 v18, v19")
    a.nop(2)
    a("v_add_f32 v16, v16, v17")
    a("v_add_f32 v18, v18, v19")
    a("v_mul_f32 v16, 0x3b000000, v16")
    a("v_mul_f32 v18, 0x3b000000, v18")
    a("v_fma_f32 v18, -v16, v16, v18")
    a("v_max_f32 v18, 0, v18")
    a("v_cvt_pk_bf16_f32 v16, v16, v18")
    a("v_and_b32 v18, 0xffff0000, v16")
    a("v_lshlrev_b32 v16, 16, v16")
    a("v_add_f32 v18, 0x3727c5ac, v18")
    a("v_cvt_pk_bf16_f32 v18, v18, v18")
    a("v_lshlrev_b32 v18, 16, v18")
    a("v_sqrt_f32 v18, v18")
    a("s_nop 0")
    a("v_cvt_pk_bf16_f32 v18, v18, v18")
    a("v_lshlrev_b32 v18, 16, v18")
    a("v_rcp_f32 v18, v18")
    a("v_mov_b32 v17, v16")
    a("s_nop 0")
    a("v_mov_b32 v19, v18")
    for i in range(128):
        r = V_A + i
        t = 20 + 4 * (i & 3)
        a("v_lshlrev_b32 v%d, 16, v%d" % (t, r))
        a("v_and_b32 v%d, 0xffff0000, v%d" % (t + 1, r))
        a("v_pk_add_f32 %s, %s, v[16:17] neg_lo:[0,1] neg_hi:[0,1]" % (vr(t, 2), vr(t, 2)))
        a("v_cvt_pk_bf16_f32 v%d, v%d, v%d" % (t + 2, t, t + 1))
        a("v_lshlrev_b32 v%d, 16, v%d" % (t, t + 2))
        a("v_and_b32 v%d, 0xffff0000, v%d" % (t + 1, t + 2))
        a("v_pk_mul_f32 %s, %s, v[18:19]" % (vr(t, 2), vr(t, 2)))
        a("v_cvt_pk_bf16_f32 v%d, v%d, v%d" % (r, t, t + 1))

    a.stamp()

    def out_q0():
        a("s_add_u32 s56, s63, 0x%x" % QF)

    def out_q1():
        a("s_add_u32 s56, s63, 0x%x" % (QF + 16 * 512 * 1024))

    def next_q1():
        set_params("next", 28, 29, 0x400000, 8192, "s62")

    def next_h():
        a("s_cmp_lt_u32 s4, 14")
        a("s_cselect_b32 s66, 0x1c0000, 0")
        set_params("next", 38, 39, "s66", 3584, "s61")

    def next_none():
        a("s_mov_b32 s66, 0")
        set_params("next", 38, 39, "s66", 3584, "s61")

    def out_h():
        a("s_mul_i32 s56, s59, %d" % AF_BLK)
        a("s_lshl_b32 s66, s4, 13")
        a("s_add_u32 s56, s56, s66")
        a("s_add_u32 s56, s56, 0x%x" % (AF + 256 * 1024))

    chunk("QK", next_q1, out_q0)
    chunk("QK", next_h, out_q1)
    a("s_cmp_ge_u32 s4, 14")
    a("s_cbranch_scc1 proj_end")
    chunk("H", next_none, out_h)
    a.stamp_flush(0)
    a("s_branch proj_end")
    a.nst = 1

    a.label("proj_ckv")
    set_params("cur", 30, 31, 0x400000, 8192, "s61")
    dma(0, "cur")
    dma(1, "cur")

    def out_k0():
        a("s_add_u32 s56, s63, 0x%x" % KF)

    def out_k1():
        a("s_add_u32 s56, s63, 0x%x" % (KF + 16 * 512 * 1024))

    def out_v0():
        a("s_add_u32 s56, s63, 0x%x" % VF)

    def out_v1():
        a("s_add_u32 s56, s63, 0x%x" % (VF + 16 * 512 * 1024))

    chunk("QK", lambda: set_params("next", 30, 31, 0x400000, 8192, "s62"), out_k0)
    chunk("QK", lambda: set_params("next", 32, 33, 0x400000, 8192, "s61"), out_k1)
    chunk("V", lambda: set_params("next", 32, 33, 0x400000, 8192, "s62"), out_v0)
    chunk("V", next_none, out_v1)
    a.stamp_flush(int(STAMP) if STAMP else 0)
    a.label("proj_end")
    a.gridbar(0)


def descriptor(a, name, vgpr, sgpr, accum):
    a.raw(".p2align 6")
    a.raw(".amdhsa_kernel %s" % name)
    a.raw("  .amdhsa_next_free_vgpr %d" % vgpr)
    a.raw("  .amdhsa_next_free_sgpr %d" % sgpr)
    a.raw("  .amdhsa_accum_offset %d" % accum)
    a.raw("  .amdhsa_group_segment_fixed_size 0")
    a.raw("  .amdhsa_kernarg_size 112")
    a.raw("  .amdhsa_user_sgpr_count 2")
    a.raw("  .amdhsa_user_sgpr_kernarg_segment_ptr 1")
    a.raw("  .amdhsa_system_sgpr_workgroup_id_x 1")
    a.raw(".end_amdhsa_kernel")


def main():
    from gen_rest import gen_attn, gen_ogemm, gen_reduce
    a = Asm()
    hdr = open("cdna_kernels/%s.s.ref" % NAME).read().split("\n")
    for l in hdr:
        if l.startswith(";") and "@launch" not in l:
            a.raw(l)
        elif not l.startswith(";"):
            break
    a.raw("; @launch kernel=mega_kernel grid=(256,1,1) block=(512,1,1) lds=163840")
    a.raw('.amdgcn_target "amdgcn-amd-amdhsa--gfx950"')
    a.raw(".text")
    a.raw(".globl mega_kernel")
    a.raw(".p2align 8")
    a.raw(".type mega_kernel,@function")
    gen_proj(a)
    gen_attn(a)
    gen_ogemm(a)
    gen_reduce(a)
    a.raw('.section .rodata,"a"')
    descriptor(a, "mega_kernel", 240, 102, 240)
    out = sys.argv[1] if len(sys.argv) > 1 else "cdna_kernels/%s.s" % NAME
    open(out, "w").write("\n".join(a.lines) + "\n")


if __name__ == "__main__":
    main()
```

```python
from gen import vr, sr, QF, KF, VF, AF, AF_BLK, PART
import math
import os
EXP = os.environ.get("EXP", "")

SCALE_LOG2E = (128 ** -0.5) * math.log2(math.e)


def f32hex(x):
    import struct
    return "0x%08x" % struct.unpack("<I", struct.pack("<f", x))[0]


def interleave(a, mf, fl):
    n = len(mf)
    pos = 0
    for i in range(n):
        a(mf[i])
        end = (len(fl) * (i + 1)) // n
        while pos < end:
            a(fl[pos])
            pos += 1


def gen_attn(a):
    V_LDS = 2
    V_DMA = 3
    V_LG = 4
    V_NEG = 5
    V_RDV = 6
    V_RDK = 7
    V_M = 8
    V_L = 9
    V_T = 10
    V_Q = 16
    V_O = 48
    V_S = 112
    V_P = 144
    V_K = 152
    V_V = 184
    S_MASK = 36
    S_LB = 35
    S_THR = 34
    V_C = 216
    V_E = 232
    NBUF = 5
    LDSZ = NBUF * 32768

    a.label("attn_kernel")
    a.stamp()
    a("s_load_dwordx2 s[8:9], s[0:1], 104")
    a("v_lshrrev_b32 v1, 6, v0")
    a("s_nop 0")
    a("v_readfirstlane_b32 s6, v1")
    a("v_and_b32 v1, 63, v0")
    a("s_lshr_b32 s22, s6, 2")
    a("s_and_b32 s23, s6, 3")
    a("s_and_b32 s3, s2, 7")
    a("s_lshl_b32 s3, s3, 2")
    a("s_lshr_b32 s4, s2, 3")
    a("s_and_b32 s4, s4, 3")
    a("s_add_u32 s3, s3, s4")
    a("s_lshr_b32 s4, s2, 5")
    a("s_sub_u32 s5, 15, s4")
    a("s_mov_b32 s24, 0")
    a("s_mov_b32 s77, 1000000")
    a("s_mov_b32 s10, 0x10000000")
    a("s_mov_b32 s11, 0x20000")
    a("s_lshl_b32 s12, s3, 19")
    a("v_lshlrev_b32 v%d, 4, v1" % V_LDS)
    a("s_lshl_b32 s13, s23, 11")
    a("s_lshl_b32 s25, s22, 13")
    a("s_add_u32 s25, s25, s13")
    a("v_add_u32 v%d, s25, v%d" % (V_DMA, V_LDS))
    a("s_lshl_b32 s26, s22, 14")
    a("v_add_u32 v%d, s26, v%d" % (V_LG, V_LDS))
    a("s_add_u32 s27, s26, s13")
    a("v_and_b32 v12, 31, v1")
    a("v_lshrrev_b32 v13, 5, v1")
    a("v_lshlrev_b32 v13, 2, v13")
    a("v_sub_u32 v12, v12, v13")
    for r in range(16):
        kl = 8 * (r >> 2) + (r & 3)
        a("v_cmp_le_i32 %s, %d, v12" % (sr(S_MASK + 2 * r, 2), kl))
    a("v_mov_b32 v%d, 0xf149f2ca" % V_NEG)
    a("s_waitcnt lgkmcnt(0)")

    def bump(sreg):
        return ["s_add_u32 s%d, s%d, 32768" % (sreg, sreg),
                "s_cmp_ge_u32 s%d, %d" % (sreg, LDSZ),
                "s_cselect_b32 s%d, 0, s%d" % (sreg, sreg)]

    def dma_ops():
        ops = []
        ops.append("s_add_u32 m0, s27, s28")
        ops.append("s_nop 0")
        for i in range(2):
            ops.append("buffer_load_dwordx4 v%d, s[8:11], s16 offen offset:%d lds" % (V_DMA, i * 1024))
        ops.append("s_add_u32 m0, m0, 8192")
        ops.append("s_add_u32 s16, s16, 16384")
        for i in range(2):
            ops.append("buffer_load_dwordx4 v%d, s[8:11], s17 offen offset:%d lds" % (V_DMA, i * 1024))
        ops.append("s_add_u32 s17, s17, 16384")
        ops += bump(28)
        return ops

    def dma():
        for x in dma_ops():
            a(x)

    def tstamp(k):
        if not os.environ.get("STAMP"):
            return
        a("s_memtime s[98:99]")
        a("s_waitcnt lgkmcnt(0)")
        a("s_cmp_eq_u32 s24, 0")
        a("s_cselect_b32 s%d, s98, s%d" % (69 + k, 69 + k))
        a("s_cselect_b32 s%d, s%d, s98" % (73 + k, 73 + k))

    def kread_ops():
        return ["ds_read_b128 %s, v%d offset:%d" % (vr(V_K + 4 * s, 4), V_RDK, s * 1024) for s in range(8)] + \
            bump(33) + ["v_add_u32 v%d, s33, v%d" % (V_RDK, V_LG)]

    def vread_ops():
        return ["ds_read_b128 %s, v%d offset:%d" % (vr(V_V + 4 * i, 4), V_RDV, 8192 + i * 1024) for i in range(8)] + \
            bump(32) + ["v_add_u32 v%d, s32, v%d" % (V_RDV, V_LG)]

    def qk_ops(sp):
        ops = []
        S = V_S + 16 * sp
        for s in range(8):
            c = vr(V_C, 16) if s == 0 else vr(S, 16)
            ops.append("v_mfma_f32_32x32x16_bf16 %s, %s, %s, %s" % (vr(S, 16), vr(V_K + 4 * s, 4), vr(V_Q + 4 * s, 4), c))
        return ops

    def pv_ops():
        ops = []
        for t in range(2):
            for dt in range(4):
                o = vr(V_O + 16 * dt, 16)
                ops.append("v_mfma_f32_32x32x16_bf16 %s, %s, %s, %s" % (o, vr(V_V + 4 * (dt * 2 + t), 4), vr(V_P + 4 * t, 4), o))
        return ops

    def max_ops(S, t0, t1):
        return ["v_max3_f32 v%d, v%d, v%d, v%d" % (t0, S, S + 1, S + 2),
                "v_max3_f32 v%d, v%d, v%d, v%d" % (t1, S + 3, S + 4, S + 5),
                "v_max3_f32 v%d, v%d, v%d, v%d" % (t0, t0, S + 6, S + 7),
                "v_max3_f32 v%d, v%d, v%d, v%d" % (t1, t1, S + 8, S + 9),
                "v_max3_f32 v%d, v%d, v%d, v%d" % (t0, t0, S + 10, S + 11),
                "v_max3_f32 v%d, v%d, v%d, v%d" % (t1, t1, S + 12, S + 13),
                "v_max3_f32 v%d, v%d, v%d, v%d" % (t0, t0, S + 14, S + 15),
                "v_max_f32 v%d, v%d, v%d" % (t0, t0, t1),
                "v_mov_b32 v%d, v%d" % (t1, t0)]

    def soft_ops(S, t2, t3):
        P = V_P
        E = V_E
        vb = []
        for r in range(16):
            vb.append("v_exp_f32 v%d, v%d" % (E + r, S + r))
            if r >= 3 and r % 2 == 1:
                q = r - 3
                vb.append("v_cvt_pk_bf16_f32 v%d, v%d, v%d" % (P + q // 2, E + q, E + q + 1))
                if q == 0:
                    vb.append("v_add_f32 v%d, v%d, v%d" % (t2, E, E + 1))
                elif q == 2:
                    vb.append("v_add_f32 v%d, v%d, v%d" % (t3, E + 2, E + 3))
                else:
                    vb.append("v_add_f32 v%d, v%d, v%d" % (t2, t2, E + q))
                    vb.append("v_add_f32 v%d, v%d, v%d" % (t3, t3, E + q + 1))
        vb.append("v_add_f32 v%d, v%d, v%d" % (t2, t2, t3))
        vb.append("v_cvt_pk_bf16_f32 v%d, v%d, v%d" % (P + 7, E + 14, E + 15))
        vb.append("v_add_f32 v%d, v%d, v%d" % (t3, E + 14, E + 15))
        vb.append("v_add_f32 v%d, v%d, v%d" % (t2, t2, t3))
        return vb

    cnt = [0]
    rare = []

    def phaseA(sp, diag):
        cnt[0] += 1
        L = "attn_it%d" % cnt[0]
        S = V_S + 16 * sp
        T = V_T
        if diag:
            a("s_lshl_b32 s29, s18, 1")
            a("s_add_u32 s29, s29, s22")
            a("s_cmp_lt_u32 s29, s30")
            a("s_cbranch_scc1 %s_nomask" % L)
            a("s_cmp_eq_u32 s29, s30")
            a("s_cbranch_scc1 %s_tri" % L)
            for r in range(16):
                a("v_mov_b32 v%d, v%d" % (S + r, V_NEG))
            a("s_branch %s_nomask" % L)
            a.label("%s_tri" % L)
            for r in range(16):
                a("v_cndmask_b32 v%d, v%d, v%d, %s" % (S + r, V_NEG, S + r, sr(S_MASK + 2 * r, 2)))
            a.label("%s_nomask" % L)
        qk = qk_ops(sp ^ 1)
        S2 = V_S + 16 * (sp ^ 1)
        so = soft_ops(S, T + 3, T + 4)
        vrd = vread_ops()
        mix = []
        step = len(so) // len(vrd)
        k = 0
        for i, x in enumerate(so):
            mix.append(x)
            if i % step == step - 1 and k < len(vrd):
                mix.append(vrd[k])
                k += 1
        mix += vrd[k:]
        interleave(a, qk, mix)
        a("v_cmp_lt_f32 vcc, s%d, v%d" % (S_THR, T + 3))
        a("s_nop 1")
        a("s_cbranch_vccnz %s_rs" % L)
        a.label("%s_nors" % L)
        a("v_add_f32 v%d, v%d, v%d" % (V_L, V_L, T + 3))
        blk = ["%s_rs:" % L]
        if os.environ.get("STAMP"):
            blk.append("s_add_u32 s77, s77, 1")
        blk += max_ops(S, T, T + 1)
        blk += ["s_nop 1",
                "v_permlane32_swap_b32 v%d, v%d" % (T, T + 1),
                "s_nop 0",
                "v_max3_f32 v%d, v%d, v%d, s%d" % (T, T, T + 1, S_LB),
                "v_exp_f32 v%d, -v%d" % (T + 1, T),
                "v_add_f32 v%d, v%d, v%d" % (V_M, V_M, T),
                "v_min_f32 v%d, 0x7149f2ca, v%d" % (T + 1, T + 1),
                "s_mov_b32 s%d, 0x53800000" % S_THR,
                "s_mov_b32 s%d, 0" % S_LB,
                "v_mul_f32 v%d, v%d, v%d" % (V_L, V_L, T + 1)]
        for i in range(64):
            blk.append("v_mul_f32 v%d, v%d, v%d" % (V_O + i, V_O + i, T + 1))
        for r in range(16):
            blk.append("v_sub_f32 v%d, v%d, v%d" % (S + r, S + r, T))
        blk += so
        for r in range(16):
            blk.append("v_sub_f32 v%d, v%d, v%d" % (V_C + r, V_C + r, T))
        for r in range(16):
            blk.append("v_sub_f32 v%d, v%d, v%d" % (S2 + r, S2 + r, T))
        blk.append("s_branch %s_nors" % L)
        rare.append(blk)
        a("s_add_u32 s18, s18, 1")

    def phaseC(last=False):
        a("s_waitcnt lgkmcnt(0)")
        a("s_nop 0")
        f = [] if last else kread_ops() + dma_ops()
        interleave(a, pv_ops(), f)

    def bar():
        a("s_waitcnt vmcnt(4) lgkmcnt(0)")
        a("s_barrier")

    def tile_front(qt):
        a("s_lshl_b32 s15, s%d, 2" % qt)
        a("s_add_u32 s15, s15, s23")
        a("s_lshl_b32 s15, s15, 13")
        a("s_add_u32 s15, s15, s12")
        for k in range(2):
            for s in range(4):
                a("buffer_load_dwordx4 %s, v%d, s[8:11], s15 offen offset:%d" % (vr(V_Q + 16 * k + 4 * s, 4), V_LDS, s * 1024))
            a("s_add_u32 s15, s15, 4096")
        a("s_add_u32 s16, s12, 0x%x" % KF)
        a("s_add_u32 s17, s12, 0x%x" % VF)
        a("s_mov_b32 s28, 98304")
        dma()
        dma()

    tile_front(5)
    a.label("attn_tile")
    a("s_lshl_b32 s14, s5, 2")
    a("s_add_u32 s14, s14, s23")
    a("s_mov_b32 s30, s14")
    dma()
    dma()
    a("s_mov_b32 s32, 98304")
    a("s_mov_b32 s33, 98304")
    a("v_add_u32 v%d, s32, v%d" % (V_RDV, V_LG))
    a("v_add_u32 v%d, s32, v%d" % (V_RDK, V_LG))
    a("v_mov_b32 v%d, 0" % V_M)
    a("s_mov_b32 s%d, 0xbf800000" % S_THR)
    a("s_mov_b32 s%d, 0xff7fffff" % S_LB)
    for i in range(16):
        a("v_mov_b32 v%d, 0" % (V_C + i))
    a("v_mov_b32 v%d, 0" % V_L)
    for i in range(64):
        a("v_mov_b32 v%d, 0" % (V_O + i))
    a("s_lshl_b32 s19, s5, 1")
    a("s_mov_b32 s18, 0")
    a("s_waitcnt vmcnt(12)")
    a("s_cmp_eq_u32 s24, 1")
    a("s_cbranch_scc1 attn_w2")
    a("s_waitcnt vmcnt(8)")
    a.label("attn_w2")
    a("s_barrier")
    tstamp(0)
    for x in kread_ops():
        a(x)
    a("s_waitcnt lgkmcnt(0)")
    for x in qk_ops(0):
        a(x)
    for x in kread_ops():
        a(x)
    a("s_cmp_eq_u32 s22, 1")
    a("s_cbranch_scc1 attn_g1")
    a("s_cmp_eq_u32 s5, 0")
    a("s_cbranch_scc1 attn_diag0")
    a.label("attn_loop0")
    a.inloop = "og" not in EXP
    for sp in range(2):
        bar()
        a("s_waitcnt lgkmcnt(0)")
        phaseA(sp, False)
        phaseC()
    a.inloop = False
    a("s_cmp_lt_u32 s18, s19")
    a("s_cbranch_scc1 attn_loop0")
    a.label("attn_diag0")
    tstamp(1)
    for sp in range(2):
        bar()
        a("s_waitcnt lgkmcnt(0)")
        phaseA(sp, True)
        phaseC()
    tstamp(2)
    a("s_branch attn_merge")
    a.label("attn_g1")
    bar()
    dma()
    a("s_waitcnt lgkmcnt(0)")
    a("s_cmp_eq_u32 s5, 0")
    a("s_cbranch_scc1 attn_diag1a")
    phaseA(0, False)
    a.label("attn_loop1")
    a.inloop = "og" not in EXP
    bar()
    phaseC()
    a("s_waitcnt lgkmcnt(0)")
    phaseA(1, False)
    a.inloop = False
    a("s_cmp_ge_u32 s18, s19")
    a("s_cbranch_scc1 attn_diag1")
    a.inloop = "og" not in EXP
    bar()
    phaseC()
    a("s_waitcnt lgkmcnt(0)")
    phaseA(0, False)
    a.inloop = False
    a("s_branch attn_loop1")
    a.label("attn_diag1")
    bar()
    phaseC()
    a("s_waitcnt lgkmcnt(0)")
    a.label("attn_diag1a")
    phaseA(0, True)
    bar()
    phaseC()
    a("s_waitcnt lgkmcnt(0)")
    phaseA(1, True)
    phaseC(last=True)
    a.label("attn_merge")
    a("s_waitcnt vmcnt(0) lgkmcnt(0)")
    a("s_barrier")
    a("s_cmp_eq_u32 s24, 1")
    a("s_cbranch_scc1 attn_nofront")
    tile_front(4)
    a.label("attn_nofront")
    a.nop(12)
    a("s_mul_i32 s29, s6, 9216")
    a("v_add_u32 v12, s29, v%d" % V_LDS)
    a("s_xor_b32 s31, s6, 4")
    a("s_mul_i32 s29, s31, 9216")
    a("v_add_u32 v13, s29, v%d" % V_LDS)
    for g in range(2):
        if g == 0:
            a("s_cmp_eq_u32 s22, 1")
            a("s_cbranch_scc1 attn_mg1")
        else:
            a.label("attn_mg1")
        keep, send = V_O + 32 * g, V_O + 32 * (1 - g)
        for i in range(8):
            a("ds_write_b128 v12, %s offset:%d" % (vr(send + 4 * i, 4), i * 1024))
        a("ds_write_b64 v12, v[%d:%d] offset:8192" % (V_M, V_L))
        a("s_waitcnt lgkmcnt(0)")
        a("s_barrier")
        a("ds_read_b64 v[14:15], v13 offset:8192")
        for i in range(8):
            a("ds_read_b128 %s, v13 offset:%d" % (vr(V_K + 4 * i, 4), i * 1024))
        a("s_waitcnt lgkmcnt(8)")
        a("v_max_f32 v10, v%d, v14" % V_M)
        a("v_sub_f32 v11, v%d, v10" % V_M)
        a("v_sub_f32 v10, v14, v10")
        a("v_exp_f32 v11, v11")
        a("v_exp_f32 v10, v10")
        a.nop(1)
        a("v_mul_f32 v%d, v%d, v11" % (V_L, V_L))
        a("v_fma_f32 v%d, v15, v10, v%d" % (V_L, V_L))
        a("v_mov_b32 v14, v%d" % V_L)
        a.nop(2)
        a("v_permlane32_swap_b32 v%d, v14" % V_L)
        a.nop(1)
        a("v_add_f32 v14, v14, v%d" % V_L)
        a("v_rcp_f32 v14, v14")
        a.nop(1)
        a("v_mul_f32 v11, v11, v14")
        a("v_mul_f32 v10, v10, v14")
        a("s_mul_i32 s20, s14, %d" % AF_BLK)
        a("s_lshl_b32 s21, s3, 13")
        a("s_add_u32 s20, s20, s21")
        a("s_add_u32 s20, s20, 0x%x" % (AF + 4096 * g))
        a("s_waitcnt lgkmcnt(0)")
        for i in range(32):
            a("v_mul_f32 v%d, v%d, v10" % (V_K + i, V_K + i))
            a("v_fma_f32 v%d, v%d, v11, v%d" % (V_K + i, keep + i, V_K + i))
        for k in range(4):
            d = V_V + k * 4
            for p in range(4):
                x0 = V_K + 8 * k + 2 * p
                a("v_cvt_pk_bf16_f32 v%d, v%d, v%d" % (d + p, x0, x0 + 1))
            a("buffer_store_dwordx4 %s, v%d, s[8:11], s20 offen offset:%d sc1" % (vr(d, 4), V_LDS, k * 1024))
        if g == 0:
            a("s_branch attn_mgdone")
    a.label("attn_mgdone")
    tstamp(3)
    a.nst = 10
    a("s_cmp_eq_u32 s24, 1")
    a("s_cbranch_scc1 attn_fin")
    a("s_mov_b32 s24, 1")
    a("s_mov_b32 s5, s4")
    a("s_barrier")
    a("s_branch attn_tile")
    a.label("attn_fin")
    a.stamp_flush(0)
    a.label("attn_end")
    a("s_branch attn_after")
    for blk in rare:
        a.label(blk[0][:-1])
        for x in blk[1:]:
            a(x)
    a.label("attn_after")
    a.gridbar(1)


def gen_ogemm(a):
    V_AL = 2
    V_TR = 4
    V_DA = 8
    V_DB = 9
    V_ST = 11
    V_F = 16
    V_ACC = 48
    NST = 23
    a.label("ogemm_kernel")
    a.stamp()
    a("s_load_dwordx2 s[8:9], s[0:1], 104")
    a("s_load_dwordx2 s[24:25], s[0:1], 40")
    a("s_load_dwordx2 s[26:27], s[0:1], 72")
    a("v_lshrrev_b32 v1, 6, v0")
    a("s_nop 0")
    a("v_readfirstlane_b32 s6, v1")
    a("v_and_b32 v1, 63, v0")
    a("s_lshr_b32 s3, s2, 4")
    a("s_and_b32 s4, s2, 1")
    a("s_lshl_b32 s4, s4, 1")
    a("s_bfe_u32 s5, s2, 0x10003")
    a("s_or_b32 s4, s4, s5")
    a("s_bfe_u32 s5, s2, 0x20001")
    if "same" in EXP:
        a("s_mov_b32 s3, 0")
        a("s_mov_b32 s4, 0")
        a("s_mov_b32 s5, 0")
    if "map1" not in EXP:
        a("s_and_b32 s3, s2, 1")
        a("s_lshl_b32 s3, s3, 3")
        a("s_bfe_u32 s4, s2, 0x30003")
        a("s_or_b32 s3, s3, s4")
        a("s_lshr_b32 s4, s2, 6")
    a("s_mov_b32 s10, 0x10000000")
    a("s_mov_b32 s11, 0x20000")
    a("s_mov_b32 s15, 0x20000")
    a("s_lshr_b32 s30, s6, 2")
    a("s_lshr_b32 s31, s6, 1")
    a("s_and_b32 s31, s31, 1")
    a("s_and_b32 s32, s6, 1")
    a("v_lshlrev_b32 v%d, 4, v1" % V_ST)
    a("s_lshl_b32 s33, s31, 13")
    a("s_lshl_b32 s34, s30, 11")
    a("s_add_u32 s33, s33, s34")
    a("v_add_u32 v%d, s33, v%d" % (V_AL, V_ST))
    a("v_add_u32 v%d, 0x10000, v%d" % (V_AL + 1, V_AL))
    a("v_bfe_u32 v12, v1, 2, 2")
    a("v_lshrrev_b32 v13, 5, v1")
    a("v_lshl_add_u32 v13, v13, 2, v12")
    a("v_lshlrev_b32 v13, 8, v13")
    a("v_bfe_u32 v14, v1, 4, 1")
    a("v_lshl_add_u32 v13, v14, 5, v13")
    a("v_and_b32 v14, 3, v1")
    a("v_lshl_add_u32 v13, v14, 3, v13")
    a("s_lshl_b32 s33, s30, 13")
    a("s_add_u32 s33, s33, 16384")
    a("v_add_u32 v13, s33, v13")
    a("v_lshlrev_b32 v12, 6, v12")
    a("s_lshl_b32 s34, s32, 7")
    for ntl in range(2):
        a("s_add_u32 s35, s34, %d" % (ntl << 6))
        a("v_xor_b32 v14, s35, v12")
        a("v_add_u32 v%d, v13, v14" % (V_TR + ntl))
        a("v_add_u32 v%d, 0x10000, v%d" % (V_TR + 2 + ntl, V_TR + ntl))
    a("s_lshr_b32 s33, s6, 1")
    a("s_lshl_b32 s34, s3, 2")
    a("s_add_u32 s34, s34, s33")
    a("s_mul_i32 s34, s34, %d" % AF_BLK)
    a("s_lshl_b32 s35, s32, 11")
    a("s_add_u32 s34, s34, s35")
    a("s_add_u32 s34, s34, 0x%x" % AF)
    a("v_add_u32 v%d, s34, v%d" % (V_DA, V_ST))
    a("s_lshl_b32 s36, s6, 11")
    a("v_lshrrev_b32 v12, 4, v1")
    a("v_bfe_u32 v13, v1, 2, 2")
    a("v_xor_b32 v13, v13, v12")
    a("v_lshlrev_b32 v13, 6, v13")
    a("v_and_b32 v14, 3, v1")
    a("v_lshl_add_u32 v13, v14, 4, v13")
    a("s_lshl_b32 s33, s6, 3")
    a("v_add_u32 v12, s33, v12")
    a("v_lshlrev_b32 v12, 10, v12")
    a("v_add_u32 v12, v12, v13")
    a("s_lshl_b32 s33, s4, 8")
    a("v_add_u32 v%d, s33, v12" % V_DB)
    a("v_add_u32 v%d, 3072, v%d" % (V_DB + 1, V_DB))
    a("s_mov_b32 s42, 0x1c0000")
    a("s_mul_i32 s37, s5, %d" % NST)
    a("s_add_u32 s38, s37, %d" % NST)
    a("s_waitcnt lgkmcnt(0)")

    def dma(buf):
        a("s_cmp_lt_u32 s37, 64")
        a("s_cselect_b32 s12, s24, s26")
        a("s_cselect_b32 s13, s25, s27")
        a("s_cselect_b32 s14, 0x400000, s42")
        a("s_cselect_b32 s39, 0, 64")
        a("s_sub_u32 s39, s37, s39")
        a("s_lshl_b32 s39, s39, 16")
        a("s_lshl_b32 s40, s37, 12")
        a("s_cmp_lt_u32 s37, s38")
        a("s_cselect_b32 s14, s14, 0")
        a("s_cselect_b32 s40, s40, 0x10000000")
        a("s_add_u32 m0, s36, %d" % (buf * 32768))
        a("s_add_u32 s37, s37, 1")
        for i in range(2):
            a("buffer_load_dwordx4 v%d, s[8:11], s40 offen offset:%d lds" % (V_DA, i * 1024))
        a("s_add_u32 m0, s36, %d" % (buf * 32768 + 16384))
        a("s_nop 0")
        for i in range(2):
            a("buffer_load_dwordx4 v%d, s[12:15], s39 offen offset:%d lds" % (V_DB + i, i * 1024))

    def reads(buf, sl, st):
        hi = 1 if buf >= 2 else 0
        bo = (buf & 1) * 32768
        f = V_F + st * 16
        for mbl in range(2):
            a("ds_read_b128 %s, v%d offset:%d" % (vr(f + 4 * mbl, 4), V_AL + hi, bo + mbl * 4096 + sl * 1024))
        for ntl in range(2):
            for ird in range(2):
                a("ds_read_b64_tr_b16 %s, v%d offset:%d" % (
                    vr(f + 8 + 4 * ntl + 2 * ird, 2), V_TR + 2 * hi + ntl, bo + sl * 4096 + ird * 2048))

    def mfmas(st, first):
        f = V_F + st * 16
        for mbl in range(2):
            for ntl in range(2):
                acc = vr(V_ACC + 16 * (mbl * 2 + ntl), 16)
                c = "0" if first else acc
                a("v_mfma_f32_32x32x16_bf16 %s, %s, %s, %s" % (acc, vr(f + 8 + 4 * ntl, 4), vr(f + 4 * mbl, 4), c))

    dma(0)
    dma(1)
    dma(2)
    for i in range(64):
        a("v_mov_b32 v%d, 0" % (V_ACC + i))
    a("s_mov_b32 s41, 0")
    a("s_waitcnt vmcnt(8)")
    a("s_barrier")
    a.stamp()
    reads(0, 0, 0)
    a.label("ogemm_loop")
    a.inloop = "og" in EXP
    for buf in range(4):
        a("s_waitcnt vmcnt(4)")
        a("s_barrier")
        reads(buf, 1, 1)
        a("s_waitcnt lgkmcnt(6)")
        mfmas(0, False)
        reads((buf + 1) & 3, 0, 0)
        dma((buf + 3) & 3)
        a("s_waitcnt lgkmcnt(6)")
        mfmas(1, False)
        a("s_add_u32 s41, s41, 1")
        a("s_cmp_ge_u32 s41, %d" % NST)
        a("s_cbranch_scc1 ogemm_done")
    a("s_branch ogemm_loop")
    a.inloop = False
    a.label("ogemm_done")
    a.stamp()
    a("s_waitcnt vmcnt(0) lgkmcnt(0)")
    a("s_barrier")
    a.nop(12)
    a("s_and_b32 s33, s6, 3")
    a("s_lshl_b32 s33, s33, 14")
    a("v_add_u32 v12, s33, v%d" % V_ST)
    a("s_cmp_eq_u32 s30, 0")
    a("s_cbranch_scc1 ogemm_g0")
    for i in range(16):
        a("ds_write_b128 v12, %s offset:%d" % (vr(V_ACC + 4 * i, 4), i * 1024))
    a("s_waitcnt lgkmcnt(0)")
    a("s_barrier")
    a("s_branch ogemm_end")
    a.label("ogemm_g0")
    a("s_barrier")
    for i in range(16):
        a("ds_read_b128 %s, v12 offset:%d" % (vr(112 + 4 * i, 4), i * 1024))
    a("s_lshl_b32 s34, s3, 2")
    a("s_add_u32 s34, s34, s4")
    a("s_lshl_b32 s34, s34, 16")
    a("s_add_u32 s34, s34, s33")
    a("s_lshl_b32 s35, s5, 22")
    a("s_add_u32 s34, s34, s35")
    a("s_add_u32 s34, s34, 0x%x" % PART)
    a("s_waitcnt lgkmcnt(0)")
    for i in range(64):
        a("v_add_f32 v%d, v%d, v%d" % (V_ACC + i, V_ACC + i, 112 + i))
    for i in range(16):
        if i == 4:
            a("s_add_u32 s34, s34, 4096")
        if i == 8:
            a("s_add_u32 s34, s34, 4096")
        if i == 12:
            a("s_add_u32 s34, s34, 4096")
        a("buffer_store_dwordx4 %s, v%d, s[8:11], s34 offen offset:%d sc1" % (vr(V_ACC + 4 * i, 4), V_ST, (i & 3) * 1024))
    a.stamp()
    a.stamp_flush(0)
    a.label("ogemm_end")
    a.gridbar(2)


def gen_reduce(a):
    a.label("reduce_kernel")
    a.stamp()
    a("s_load_dwordx2 s[8:9], s[0:1], 104")
    a("s_load_dwordx2 s[12:13], s[0:1], 0")
    a("s_load_dwordx2 s[16:17], s[0:1], 80")
    a("s_load_dwordx2 s[20:21], s[0:1], 88")
    a("s_mov_b32 s10, 0x10000000")
    a("s_mov_b32 s11, 0x20000")
    a("s_mov_b32 s14, 0x200000")
    a("s_mov_b32 s15, 0x20000")
    a("s_mov_b32 s18, 1024")
    a("s_mov_b32 s19, 0x20000")
    a("s_mov_b32 s22, 0x200000")
    a("s_mov_b32 s23, 0x20000")
    a("v_lshrrev_b32 v1, 8, v0")
    a("s_nop 0")
    a("v_readfirstlane_b32 s40, v1")
    a("v_and_b32 v70, 255, v0")
    a("s_lshl_b32 s41, s2, 2")
    a("s_add_u32 s41, s41, s40")
    a("v_lshlrev_b32 v1, 4, v70")
    a("s_waitcnt lgkmcnt(0)")
    for j in range(2):
        B = 4 + 32 * j
        a("s_lshl_b32 s6, s41, 12")
        a("s_add_u32 s6, s6, 0x%x" % (PART + j * 8192))
        for p in range(4):
            a("buffer_load_dwordx4 %s, v1, s[8:11], s6 offen" % vr(B + 4 * p, 4))
            if p < 3:
                a("s_add_u32 s6, s6, 0x400000")
    for j in range(2):
        B = 4 + 32 * j
        a("s_add_u32 s42, s41, %d" % (2 * j))
        a("s_lshr_b32 s3, s42, 4")
        a("s_lshr_b32 s4, s42, 2")
        a("s_and_b32 s4, s4, 3")
        a("s_and_b32 s5, s42, 3")
        a("s_lshr_b32 s24, s3, 2")
        a("s_and_b32 s25, s3, 3")
        a("s_lshr_b32 s26, s4, 1")
        a("s_and_b32 s27, s4, 1")
        a("s_lshr_b32 s28, s5, 1")
        a("s_and_b32 s29, s5, 1")
        a("s_lshl_b32 s30, s24, 2")
        a("s_lshl_b32 s31, s26, 1")
        a("s_add_u32 s30, s30, s31")
        a("s_add_u32 s30, s30, s28")
        a("s_lshl_b32 s30, s30, 15")
        a("s_lshl_b32 s31, s25, 2")
        a("s_lshl_b32 s32, s27, 1")
        a("s_add_u32 s31, s31, s32")
        a("s_add_u32 s31, s31, s29")
        a("s_lshl_b32 s31, s31, 6")
        a("v_and_b32 v2, 31, v70")
        a("v_lshlrev_b32 v2, 10, v2")
        a("v_lshrrev_b32 v3, 6, v70")
        a("v_lshlrev_b32 v3, 4, v3")
        a("v_bfe_u32 v%d, v70, 5, 1" % (B + 16))
        a("v_lshl_add_u32 v3, v%d, 3, v3" % (B + 16))
        a("v_add_u32 v3, s31, v3")
        a("v_add_u32 v2, v2, v3")
        a("v_add_u32 v%d, s30, v2" % (B + 26))
        a("buffer_load_dwordx2 %s, v%d, s[12:15], 0 offen" % (vr(B + 16, 2), B + 26))
        a("buffer_load_dwordx2 %s, v3, s[16:19], 0 offen" % vr(B + 18, 2))
    for j in range(2):
        B = 4 + 32 * j
        a("s_waitcnt vmcnt(%d)" % (8 - 4 * j))
        for i in range(4):
            a("v_add_f32 v%d, v%d, v%d" % (B + i, B + i, B + 4 + i))
            a("v_add_f32 v%d, v%d, v%d" % (B + 8 + i, B + 8 + i, B + 12 + i))
        for i in range(4):
            a("v_add_f32 v%d, v%d, v%d" % (B + i, B + i, B + 8 + i))
    for j in range(2):
        B = 4 + 32 * j
        a("s_waitcnt vmcnt(%d)" % (2 - 2 * j))
        for p in range(2):
            a("v_lshlrev_b32 v%d, 16, v%d" % (B + 20, B + 16 + p))
            a("v_and_b32 v%d, 0xffff0000, v%d" % (B + 21, B + 16 + p))
            a("v_lshlrev_b32 v%d, 16, v%d" % (B + 22, B + 18 + p))
            a("v_and_b32 v%d, 0xffff0000, v%d" % (B + 23, B + 18 + p))
            a("v_add_f32 v%d, v%d, v%d" % (B + 20, B + 20, B + 22))
            a("v_add_f32 v%d, v%d, v%d" % (B + 21, B + 21, B + 23))
            a("v_add_f32 v%d, v%d, v%d" % (B + 2 * p, B + 2 * p, B + 20))
            a("v_add_f32 v%d, v%d, v%d" % (B + 1 + 2 * p, B + 1 + 2 * p, B + 21))
            a("v_cvt_pk_bf16_f32 v%d, v%d, v%d" % (B + 24 + p, B + 2 * p, B + 1 + 2 * p))
        a("buffer_store_dwordx2 %s, v%d, s[20:23], 0 offen" % (vr(B + 24, 2), B + 26))
    a.stamp()
    a.stamp_flush(0)
    if os.environ.get("STAMP"):
        a("s_waitcnt vmcnt(0)")
        a("s_memrealtime s[18:19]")
        a("s_load_dwordx2 s[8:9], s[0:1], 96")
        a("s_mov_b32 s10, 65536")
        a("s_mov_b32 s11, 0x20000")
        a("s_lshl_b32 s20, s2, 4")
        a("s_add_u32 s20, s20, %d" % (4096 + 4096 * 3))
        a("s_waitcnt lgkmcnt(0)")
        a("s_mov_b64 exec, 1")
        a("v_mov_b32 v4, s18")
        a("v_mov_b32 v5, s18")
        a("v_mov_b32 v6, s18")
        a("v_mov_b32 v7, s92")
        a("v_mov_b32 v2, 0")
        a("buffer_store_dwordx4 v[4:7], v2, s[8:11], s20 offen")
    a("s_endpgm")
```

```python
import sys

NAME = "parallel_sum__compressed_kv_cla__dense_activation_squared_relu__prompt"

MB = 1 << 20
QF = 0
KF = 16 * MB
VF = 32 * MB
AF = 48 * MB
AF_BLK = 368 * 1024
PART = 80 * MB
CTR = 100 * MB
import math, struct
QSC = struct.unpack("<I", struct.pack("<f", (128 ** -0.5) * math.log2(math.e)))[0]


import os
STAMP = os.environ.get("STAMP")


class Asm:
    def __init__(self):
        self.lines = []
        self.nst = 0

    def stamp(self):
        if not STAMP:
            return
        self("s_memtime s[98:99]")
        self("s_waitcnt lgkmcnt(0)")
        self("s_mov_b32 s%d, s98" % (68 + self.nst))
        self.nst += 1

    def stamp_flush(self, wgsel, dbgptr_off=96):
        if not STAMP:
            return
        L = "stf_%d" % len(self.lines)
        self("s_cmp_lg_u32 s2, %d" % wgsel)
        self("s_cbranch_scc1 %s" % L)
        self("s_load_dwordx2 s[96:97], s[0:1], %d" % dbgptr_off)
        self("s_waitcnt lgkmcnt(0)")
        self("s_mov_b32 s98, 4096")
        self("s_mov_b32 s99, 0x20000")
        self("v_cmp_eq_u32 vcc, 0, v0")
        self("s_and_saveexec_b64 s[94:95], vcc")
        self("s_cbranch_execz %s" % L)
        for i in range(self.nst):
            self("v_mov_b32 v1, s%d" % (68 + i))
            self("v_mov_b32 v2, %d" % (4 * i + 512 * (self.phase + 1)))
            self("buffer_store_dword v1, v2, s[96:99], 0 offen")
        self.label(L)
        self("s_mov_b64 exec, -1")
        self.nst = 0

    phase = 0

    def gridbar(self, k):
        a = self
        if STAMP:
            a("s_memrealtime s[14:15]")
        if k == 0:
            a("s_cmp_ge_u32 s2, 32")
            a("s_cbranch_scc1 gb_noinit")
            a("s_load_dwordx2 s[8:9], s[0:1], 104")
            a("s_mov_b32 s10, 0x10000000")
            a("s_mov_b32 s11, 0x20000")
            a("s_lshl_b32 s12, s2, 12")
            a("s_add_u32 s12, s12, 0x%x" % CTR)
            a("v_mov_b32 v1, 0")
            a("v_mov_b32 v2, 0")
            a("s_waitcnt lgkmcnt(0)")
            a("buffer_store_dword v1, v2, s[8:11], s12 offen sc0 sc1")
            a.label("gb_noinit")
        a("s_waitcnt vmcnt(0) lgkmcnt(0)")
        a("s_barrier")
        if STAMP:
            a("s_memrealtime s[16:17]")
        a("v_lshrrev_b32 v1, 6, v0")
        a("s_nop 0")
        a("v_readfirstlane_b32 s6, v1")
        a("s_cmp_lg_u32 s6, 0")
        a("s_cbranch_scc1 gb_wait%d" % k)
        a("s_load_dwordx2 s[8:9], s[0:1], 96")
        a("s_load_dwordx2 s[24:25], s[0:1], 104")
        a("s_mov_b32 s10, 256")
        a("s_mov_b32 s11, 0x20000")
        a("s_mov_b32 s26, 0x10000000")
        a("s_mov_b32 s27, 0x20000")
        a("s_mov_b64 exec, 1")
        a("v_mov_b32 v1, 1")
        a("v_mov_b32 v2, %d" % (4 * k))
        a("s_waitcnt lgkmcnt(0)")
        tgt = 256
        if True:
            tgt = 16
            a("s_and_b32 s12, s2, 15")
            a("v_mov_b32 v3, 1")
            a("v_mov_b32 v4, 0")
            if k > 0:
                a("s_lshl_b32 s12, s12, 12")
                a("s_add_u32 s12, s12, 0x%x" % (CTR + (k - 1) * 65536))
                a("buffer_atomic_add v3, v4, s[24:27], s12 offen sc0 sc1")
            else:
                a("s_lshl_b32 s12, s12, 2")
                a("s_add_u32 s12, s12, 128")
                a("buffer_atomic_add v3, v4, s[8:11], s12 offen sc0 sc1")
            a("s_waitcnt vmcnt(0)")
            a("v_readfirstlane_b32 s13, v3")
            a("s_cmp_lg_u32 s13, 15")
            a("s_cbranch_scc1 gb_nr%d" % k)
        a("buffer_atomic_add v1, v2, s[8:11], 0 offen sc1")
        if True:
            a.label("gb_nr%d" % k)
        a("s_mov_b32 s12, 0")
        a.label("gb_loop%d" % k)
        a("buffer_load_dword v3, v2, s[8:11], 0 offen %s" % os.environ.get("PSC", "sc1"))
        a("s_waitcnt vmcnt(0)")
        a("v_readfirstlane_b32 s13, v3")
        a("s_cmp_ge_u32 s13, %d" % tgt)
        a("s_cbranch_scc1 gb_done%d" % k)
        a("s_add_u32 s12, s12, 1")
        a("s_cmp_gt_u32 s12, 40000")
        a("s_cbranch_scc1 gb_done%d" % k)
        a("s_sleep %s" % os.environ.get("SLEEP", "8"))
        a("s_branch gb_loop%d" % k)
        a.label("gb_done%d" % k)
        if STAMP:
            a("s_memrealtime s[18:19]")
            a("s_mov_b32 s10, 65536")
            a("s_lshl_b32 s20, s2, 4")
            a("s_add_u32 s20, s20, %d" % (4096 + 4096 * k))
            a("s_waitcnt lgkmcnt(0)")
            a("s_mov_b64 exec, 1")
            a("v_mov_b32 v4, s14")
            a("v_mov_b32 v5, s16")
            a("v_mov_b32 v6, s18")
            a("v_mov_b32 v7, s92")
            a("v_mov_b32 v2, 0")
            a("buffer_store_dwordx4 v[4:7], v2, s[8:11], s20 offen")
        a("s_mov_b64 exec, -1")
        a.label("gb_wait%d" % k)
        a("s_barrier")
        if "inv" in os.environ.get("EXP", ""):
            a("buffer_inv sc1")
        self.phase = k + 1

    inloop = False

    def __call__(self, s):
        EXP = os.environ.get("EXP", "")
        if self.inloop:
            if "nomfma" in EXP and s.startswith("v_mfma"):
                return
            if "novalu" in EXP and s.startswith("v_") and not s.startswith("v_mfma") and not s.startswith("v_cmp") and "0x1ffff" not in s and "0x8000" not in s and not s.startswith("v_mov") and not s.startswith("v_add_u32"):
                return
            if "nolds" in EXP and s.startswith("ds_read"):
                return
            if "nodma" in EXP and s.startswith("buffer_load"):
                return
            if "nobar" in EXP and s.startswith("s_barrier"):
                return
        if "nosc1" in EXP and s.startswith("buffer_store") and s.endswith(" sc1"):
            s = s[:-4]
        self.lines.append("  " + s)

    def label(self, s):
        self.lines.append(s + ":")

    def raw(self, s):
        self.lines.append(s)

    def nop(self, n):
        while n > 0:
            k = min(n, 16)
            self("s_nop %d" % (k - 1))
            n -= k


def vr(a, n):
    return "v[%d:%d]" % (a, a + n - 1)


def sr(a, n):
    return "s[%d:%d]" % (a, a + n - 1)


def gen_proj(a):
    V_LANE = 1
    V_TR = 2
    V_OFFC = 10
    V_OFFN = 11
    V_ST = 12
    V_T0 = 13
    V_B = 16
    V_ACC = 48
    V_A = 112
    V_ROWI = 13
    V_SWZ = 14
    V_T = 15
    V_AOFF = 240

    a.label("mega_kernel")
    a("s_cmp_lt_u32 s2, 256")
    a("s_cbranch_scc1 proj_start")
    a("s_endpgm")
    a.label("proj_start")
    if STAMP:
        a("s_memrealtime s[92:93]")
    a.stamp()
    a("s_load_dwordx16 s[24:39], s[0:1], 0")
    a("s_load_dwordx4 s[40:43], s[0:1], 64")
    a("s_load_dwordx2 s[44:45], s[0:1], 104")
    PM = os.environ.get("PM", "0")
    if PM == "0":
        a("s_lshr_b32 s3, s2, 5")
        a("s_and_b32 s4, s2, 31")
    elif PM == "1":
        a("s_and_b32 s3, s2, 7")
        a("s_lshr_b32 s4, s2, 3")
    elif PM == "2":
        a("s_and_b32 s3, s2, 3")
        a("s_bfe_u32 s4, s2, 0x10003")
        a("s_lshl_b32 s4, s4, 2")
        a("s_or_b32 s3, s3, s4")
        a("s_bfe_u32 s4, s2, 0x10002")
        a("s_lshr_b32 s5, s2, 4")
        a("s_lshl_b32 s5, s5, 1")
        a("s_or_b32 s4, s4, s5")
    elif PM == "3":
        a("s_and_b32 s3, s2, 1")
        a("s_bfe_u32 s4, s2, 0x20003")
        a("s_lshl_b32 s4, s4, 1")
        a("s_or_b32 s3, s3, s4")
        a("s_bfe_u32 s4, s2, 0x20001")
        a("s_lshr_b32 s5, s2, 5")
        a("s_lshl_b32 s5, s5, 2")
        a("s_or_b32 s4, s4, s5")
    a("v_lshrrev_b32 v1, 6, v0")
    a("s_nop 0")
    a("v_readfirstlane_b32 s6, v1")
    a("v_and_b32 v1, 63, v0")
    a("s_waitcnt lgkmcnt(0)")
    a.stamp()
    a("s_cmp_lt_u32 s4, 16")
    a("s_cselect_b32 s8, s24, s26")
    a("s_cselect_b32 s9, s25, s27")
    a("s_cselect_b32 s5, 0, 1")
    a("s_and_b32 s4, s4, 15")
    a("s_mov_b32 s10, 0x200000")
    a("s_mov_b32 s11, 0x20000")
    a("s_mov_b32 s16, s44")
    a("s_mov_b32 s17, s45")
    a("s_mov_b32 s18, 0x10000000")
    a("s_mov_b32 s19, 0x20000")
    a("s_mov_b32 s20, s40")
    a("s_mov_b32 s21, s41")
    a("s_mov_b32 s22, 3584")
    a("s_mov_b32 s23, 0x20000")
    a("s_mov_b32 s15, 0x20000")
    a("s_mov_b32 s51, 0x20000")
    a("s_lshl_b32 s58, s6, 12")
    a("s_lshl_b32 s59, s3, 3")
    a("s_add_u32 s59, s59, s6")
    a("v_and_b32 v13, 15, v1")
    a("v_lshlrev_b32 v13, 10, v13")
    a("v_lshrrev_b32 v14, 4, v1")
    a("v_lshlrev_b32 v14, 4, v14")
    a("v_add_u32 v13, v13, v14")
    a("s_movk_i32 s65, 0x4000")
    a("s_lshl_b32 s60, s59, 15")
    a("v_add_u32 v13, s60, v13")
    a("v_mov_b32 v%d, v13" % V_AOFF)

    def aloads(lo, hi):
        for s in range(lo, hi):
            a("buffer_load_dwordx4 %s, v%d, s[8:11], %s offen offset:%d" % (
                vr(V_A + 4 * s, 4), V_AOFF, "s65" if s & 1 else "0", (s >> 1) * 64))

    def aswaps(lo, hi):
        for s in range(lo, hi, 2):
            for j in range(4):
                a("v_permlane16_swap_b32 v%d, v%d" % (V_A + 4 * s + j, V_A + 4 * s + 4 + j))
        a("s_nop 1")
    a("v_bfe_u32 v13, v1, 2, 2")
    a("v_lshrrev_b32 v14, 5, v1")
    a("v_lshl_add_u32 v14, v14, 4, v13")
    a("v_lshlrev_b32 v14, 8, v14")
    a("v_bfe_u32 v15, v1, 4, 1")
    a("v_lshl_add_u32 v14, v15, 5, v14")
    a("v_and_b32 v15, 3, v1")
    a("v_lshl_add_u32 v14, v15, 3, v14")
    a("v_lshlrev_b32 v13, 6, v13")
    for nt in range(4):
        a("v_xor_b32 v15, %d, v13" % (nt << 6))
        a("v_add_u32 v%d, v14, v15" % (V_TR + nt))
        a("v_add_u32 v%d, 0x10000, v%d" % (V_TR + 4 + nt, V_TR + nt))
    a("v_lshlrev_b32 v%d, 4, v1" % V_ST)
    a("v_lshrrev_b32 v13, 4, v1")
    a("v_bfe_u32 v14, v1, 2, 2")
    a("v_xor_b32 v14, v14, v13")
    a("v_lshlrev_b32 v14, 6, v14")
    a("v_and_b32 v15, 3, v1")
    a("v_lshl_add_u32 v14, v15, 4, v14")
    a("s_lshl_b32 s60, s6, 4")
    a("v_add_u32 v13, s60, v13")

    def set_params(which, wlo, whi, nrec, ldw, colexpr_reg):
        base = 12 if which == "cur" else 48
        sl, sc = (52, 53) if which == "cur" else (54, 55)
        voff = V_OFFC if which == "cur" else V_OFFN
        a("s_mov_b32 s%d, s%d" % (base, wlo))
        a("s_mov_b32 s%d, s%d" % (base + 1, whi))
        if isinstance(nrec, str):
            a("s_mov_b32 s%d, %s" % (base + 2, nrec))
        else:
            a("s_mov_b32 s%d, 0x%x" % (base + 2, nrec))
        a("s_mov_b32 s%d, %d" % (sl, ldw))
        a("s_mov_b32 s%d, %s" % (sc, colexpr_reg))
        a("v_mul_lo_u32 v%d, v%d, s%d" % (voff, V_ROWI, sl))
        a("v_add_u32 v%d, v%d, v%d" % (voff, voff, V_SWZ))

    def dma(kc, which):
        base = 12 if which == "cur" else 48
        sl, sc = (52, 53) if which == "cur" else (54, 55)
        voff = V_OFFC if which == "cur" else V_OFFN
        for i in range(4):
            a("s_add_u32 m0, s58, %d" % (kc * 32768 + i * 1024))
            a("s_mul_i32 s57, s%d, %d" % (sl, kc * 128 + 4 * i))
            a("s_add_u32 s57, s57, s%d" % sc)
            a("buffer_load_dwordx4 v%d, %s, s57 offen lds" % (voff, sr(base, 4)))

    def reads(kc, s, setidx):
        hi = 4 if kc >= 2 else 0
        off = (kc & 1) * 32768 + (s >> 1) * 8192 + (s & 1) * 2048
        for nt in range(4):
            for ird in range(2):
                a("ds_read_b64_tr_b16 %s, v%d offset:%d" % (
                    vr(V_B + setidx * 16 + nt * 4 + ird * 2, 2), V_TR + hi + nt, off + ird * 1024))

    def compute(kc, kind, extra=None):
        extra = list(extra or [])
        per = -(-len(extra) // 32)
        reads(kc, 0, 0)
        for s in range(8):
            if s < 7:
                reads(kc, s + 1, (s + 1) & 1)
                a("s_waitcnt lgkmcnt(8)")
            else:
                a("s_waitcnt lgkmcnt(0)")
            ks = kc * 8 + s
            for nt in range(4):
                acc = vr(V_ACC + 16 * nt, 16)
                wf = vr(V_B + (s & 1) * 16 + nt * 4, 4)
                af = vr(V_A + 4 * ks, 4)
                c = "0" if ks == 0 else acc
                if kind == "V":
                    a("v_mfma_f32_32x32x16_bf16 %s, %s, %s, %s" % (acc, af, wf, c))
                else:
                    a("v_mfma_f32_32x32x16_bf16 %s, %s, %s, %s" % (acc, wf, af, c))
                for x in extra[:per]:
                    a(x)
                extra = extra[per:]
        assert not extra

    def aload_ops(lo, hi):
        ops = []
        for s in range(lo, hi):
            ops.append("buffer_load_dwordx4 %s, v%d, s[8:11], %s offen offset:%d" % (
                vr(V_A + 4 * s, 4), V_AOFF, "s65" if s & 1 else "0", (s >> 1) * 64))
            ops += ["s_nop 0"] * 3
        return ops

    V_LNM = 244
    V_LNR = 246
    V_LNT = 248

    def norm_ops(q):
        ops = []
        for i in range(32 * q, 32 * q + 32):
            r = V_A + i
            t = 20 + 4 * (i & 3)
            ops.append("v_lshlrev_b32 v%d, 16, v%d" % (t, r))
            ops.append("v_and_b32 v%d, 0xffff0000, v%d" % (t + 1, r))
            ops.append("v_pk_add_f32 %s, %s, %s neg_lo:[0,1] neg_hi:[0,1]" % (vr(t, 2), vr(t, 2), vr(V_LNM, 2)))
            ops.append("v_cvt_pk_bf16_f32 v%d, v%d, v%d" % (t + 2, t, t + 1))
            ops.append("v_lshlrev_b32 v%d, 16, v%d" % (t, t + 2))
            ops.append("v_and_b32 v%d, 0xffff0000, v%d" % (t + 1, t + 2))
            ops.append("v_pk_mul_f32 %s, %s, %s" % (vr(t, 2), vr(t, 2), vr(V_LNR, 2)))
            ops.append("v_cvt_pk_bf16_f32 v%d, v%d, v%d" % (r, t, t + 1))
        return ops

    def epilogue(kind):
        if kind == "H":
            a("v_lshrrev_b32 v15, 5, v1")
            a("v_lshlrev_b32 v15, 3, v15")
            for nt in range(4):
                for q in range(4):
                    a("buffer_load_dwordx2 %s, v15, s[20:23], s53 offen offset:%d" % (
                        vr(V_B + (nt * 4 + q) * 2, 2), 64 * nt + 16 * q))
            a.nop(12)
            a("s_waitcnt vmcnt(0)")
            for nt in range(4):
                for q in range(4):
                    r0 = V_ACC + 16 * nt + 4 * q
                    b0 = V_B + (nt * 4 + q) * 2
                    for p in range(2):
                        x0, x1 = r0 + 2 * p, r0 + 2 * p + 1
                        bb = b0 + p
                        a("v_cvt_pk_bf16_f32 v15, v%d, v%d" % (x0, x1))
                        a("v_lshlrev_b32 v%d, 16, v15" % x0)
                        a("v_and_b32 v%d, 0xffff0000, v15" % x1)
                        a("v_lshlrev_b32 v15, 16, v%d" % bb)
                        a("v_add_f32 v%d, v%d, v15" % (x0, x0))
                        a("v_and_b32 v15, 0xffff0000, v%d" % bb)
                        a("v_add_f32 v%d, v%d, v15" % (x1, x1))
                        a("v_cvt_pk_bf16_f32 v15, v%d, v%d" % (x0, x1))
                        a("v_lshlrev_b32 v%d, 16, v15" % x0)
                        a("v_and_b32 v%d, 0xffff0000, v15" % x1)
                        a("v_max_f32 v%d, 0, v%d" % (x0, x0))
                        a("v_max_f32 v%d, 0, v%d" % (x1, x1))
                        a("v_mul_f32 v%d, v%d, v%d" % (x0, x0, x0))
                        a("v_mul_f32 v%d, v%d, v%d" % (x1, x1, x1))
        else:
            a.nop(12)
        if kind == "Q":
            for i in range(64):
                a("v_mul_f32 v%d, 0x%08x, v%d" % (V_ACC + i, QSC, V_ACC + i))
        a("s_add_u32 s67, s56, 4096")
        for nt in range(4):
            for t in range(2):
                d = V_B + (nt * 2 + t) * 4
                for p in range(4):
                    x0 = V_ACC + 16 * nt + 8 * t + 2 * p
                    a("v_cvt_pk_bf16_f32 v%d, v%d, v%d" % (d + p, x0, x0 + 1))
                a("buffer_store_dwordx4 %s, v%d, s[16:19], s%d offen offset:%d sc1" % (
                    vr(d, 4), V_ST, 56 if nt < 2 else 67, ((nt * 2 + t) & 3) * 1024))
        a.nop(2)

    def chunk(kind, set_next, set_out, waits=(12, 12, 4, 4), swaps=False, ln=False):
        set_next()
        set_out()
        for kc in range(4):
            if swaps and kc == 0:
                a.stamp()
            a("s_waitcnt vmcnt(%d)" % waits[kc])
            if swaps and kc == 0:
                a.stamp()
            if swaps:
                aswaps(8 * kc, 8 * kc + 8)
            a("s_barrier")
            if kc < 2:
                dma(kc + 2, "cur")
            else:
                dma(kc - 2, "next")
            if kc == 0:
                a.stamp()
            if swaps and kc < 2:
                compute(kc, kind, aload_ops(16 + 8 * kc, 24 + 8 * kc))
            elif ln and kc < 3:
                compute(kc, kind, norm_ops(kc + 1))
            else:
                compute(kc, kind)
        a.stamp()
        epilogue(kind)
        a.stamp()
        for i in range(3):
            a("s_mov_b32 s%d, s%d" % (12 + i, 48 + i))
        a("s_mov_b32 s52, s54")
        a("s_mov_b32 s53, s55")
        a("v_mov_b32 v%d, v%d" % (V_OFFC, V_OFFN))

    a("s_lshl_b32 s61, s4, 8")
    a("s_add_u32 s62, s61, 4096")
    a("s_lshl_b32 s63, s4, 19")
    a("s_lshl_b32 s64, s59, 13")
    a("s_add_u32 s63, s63, s64")
    a("v_and_b32 v24, 31, v1")
    a("v_lshrrev_b32 v25, 5, v1")
    a("v_xor_b32 v26, v24, v25")
    a("v_lshlrev_b32 v26, 4, v26")
    a("v_lshl_add_u32 v26, v25, 10, v26")
    a("s_lshl_b32 s60, s59, 15")
    a("v_add_u32 v28, s60, v26")
    a("s_lshl_b32 s66, s6, 14")
    a("s_add_u32 s66, s66, 32768")
    a("v_lshlrev_b32 v26, 4, v24")
    a("v_lshlrev_b32 v27, 5, v25")
    a("v_xor_b32 v26, v26, v27")
    a("v_lshl_add_u32 v26, v24, 9, v26")
    a("v_add_u32 v29, s66, v26")

    def a_dma(half):
        for i in range(16):
            a("v_xor_b32 v%d, %d, v28" % (30 + (i & 3), 32 * i))
            a("s_add_u32 m0, s66, %d" % (1024 * i))
            a("s_movk_i32 s67, %d" % (2048 * i + 512 * half))
            a("buffer_load_dwordx4 v%d, s[8:11], s67 offen lds" % (30 + (i & 3)))

    def a_read(half):
        for s_ in range(16):
            ks = (4 * (s_ >> 1) + (s_ & 1)) * 16
            a("v_xor_b32 v%d, %d, v29" % (30 + (s_ & 3), ks))
            a("ds_read_b128 %s, v%d" % (vr(V_A + 4 * (16 * half + s_), 4), 30 + (s_ & 3)))

    def stats(q):
        for i in range(32 * q, 32 * q + 32):
            r = V_A + i
            t = 20 + 2 * (i & 3)
            a("v_lshlrev_b32 v%d, 16, v%d" % (t, r))
            a("v_and_b32 v%d, 0xffff0000, v%d" % (t + 1, r))
            a("v_pk_add_f32 v[16:17], v[16:17], %s" % vr(t, 2))
            a("v_pk_fma_f32 v[18:19], %s, %s, v[18:19]" % (vr(t, 2), vr(t, 2)))

    a_dma(0)
    a("s_cmp_eq_u32 s5, 1")
    a("s_cbranch_scc1 proj_ckv")
    a("s_mov_b32 s46, 0x3f803f80")
    a("s_mov_b32 s47, 0x00003f80")
    a("s_mov_b32 s7, 0x3f800000")
    set_params("cur", 28, 29, 0x400000, 8192, "s61")
    dma(0, "cur")
    a("v_mov_b32 v16, 0")
    a("v_mov_b32 v17, 0")
    a("v_mov_b32 v18, 0")
    a("v_mov_b32 v19, 0")
    a("s_waitcnt vmcnt(4)")
    a_read(0)
    a("s_waitcnt lgkmcnt(0)")
    a_dma(1)
    stats(0)
    stats(1)
    a("s_waitcnt vmcnt(0)")
    a_read(1)
    a("s_waitcnt lgkmcnt(0)")
    a("s_barrier")
    dma(1, "cur")
    stats(2)
    stats(3)
    a.stamp()
    a("v_add_f32 v16, v16, v17")
    a("v_add_f32 v18, v18, v19")
    a("v_mov_b32 v17, v16")
    a("v_mov_b32 v19, v18")
    a.nop(2)
    a("v_permlane32_swap_b32 v16, v17")
    a("v_permlane32_swap_b32 v18, v19")
    a.nop(2)
    a("v_add_f32 v16, v16, v17")
    a("v_add_f32 v18, v18, v19")
    a("v_mul_f32 v16, 0x3b000000, v16")
    a("v_mul_f32 v18, 0x3b000000, v18")
    a("v_fma_f32 v18, -v16, v16, v18")
    a("v_max_f32 v18, 0, v18")
    a("v_cvt_pk_bf16_f32 v16, v16, v18")
    a("v_and_b32 v18, 0xffff0000, v16")
    a("v_lshlrev_b32 v16, 16, v16")
    a("v_add_f32 v18, 0x3727c5ac, v18")
    a("v_cvt_pk_bf16_f32 v18, v18, v18")
    a("v_lshlrev_b32 v18, 16, v18")
    a("v_sqrt_f32 v18, v18")
    a("s_nop 0")
    a("v_cvt_pk_bf16_f32 v18, v18, v18")
    a("v_lshlrev_b32 v18, 16, v18")
    a("v_rcp_f32 v18, v18")
    a("v_mov_b32 v%d, v16" % V_LNM)
    a("v_mov_b32 v%d, v16" % (V_LNM + 1))
    a("v_mov_b32 v%d, v18" % V_LNR)
    a("v_mov_b32 v%d, v18" % (V_LNR + 1))
    for q in range(4):
        for x in norm_ops(q):
            a(x)
    a.stamp()

    def out_q0():
        a("s_add_u32 s56, s63, 0x%x" % QF)

    def out_q1():
        a("s_add_u32 s56, s63, 0x%x" % (QF + 16 * 512 * 1024))

    def next_q1():
        set_params("next", 28, 29, 0x400000, 8192, "s62")

    def next_h():
        a("s_cmp_lt_u32 s4, 14")
        a("s_cselect_b32 s66, 0x1c0000, 0")
        set_params("next", 38, 39, "s66", 3584, "s61")

    def next_none():
        a("s_mov_b32 s66, 0")
        set_params("next", 38, 39, "s66", 3584, "s61")

    def out_h():
        a("s_mul_i32 s56, s59, %d" % AF_BLK)
        a("s_lshl_b32 s66, s4, 13")
        a("s_add_u32 s56, s56, s66")
        a("s_add_u32 s56, s56, 0x%x" % (AF + 256 * 1024))

    chunk("Q", next_q1, out_q0, (4, 4, 4, 4), False, False)
    chunk("Q", next_h, out_q1)
    a("s_cmp_ge_u32 s4, 14")
    a("s_cbranch_scc1 proj_end")
    chunk("H", next_none, out_h)
    a.stamp_flush(0)
    a("s_branch proj_end")
    a.nst = 2

    a.label("proj_ckv")
    set_params("cur", 30, 31, 0x400000, 8192, "s61")
    dma(0, "cur")
    a("s_waitcnt vmcnt(4)")
    a_read(0)
    a("s_waitcnt lgkmcnt(0)")
    a_dma(1)
    a("s_waitcnt vmcnt(0)")
    a_read(1)
    a("s_waitcnt lgkmcnt(0)")
    a("s_barrier")
    dma(1, "cur")

    def out_k0():
        a("s_add_u32 s56, s63, 0x%x" % KF)

    def out_k1():
        a("s_add_u32 s56, s63, 0x%x" % (KF + 16 * 512 * 1024))

    def out_v0():
        a("s_add_u32 s56, s63, 0x%x" % VF)

    def out_v1():
        a("s_add_u32 s56, s63, 0x%x" % (VF + 16 * 512 * 1024))

    chunk("QK", lambda: set_params("next", 30, 31, 0x400000, 8192, "s62"), out_k0, (4, 4, 4, 4))
    chunk("QK", lambda: set_params("next", 32, 33, 0x400000, 8192, "s61"), out_k1)
    chunk("V", lambda: set_params("next", 32, 33, 0x400000, 8192, "s62"), out_v0)
    chunk("V", next_none, out_v1)
    a.stamp_flush(int(STAMP) if STAMP else 0)
    a.label("proj_end")
    a.gridbar(0)


def descriptor(a, name, vgpr, sgpr, accum):
    a.raw(".p2align 6")
    a.raw(".amdhsa_kernel %s" % name)
    a.raw("  .amdhsa_next_free_vgpr %d" % vgpr)
    a.raw("  .amdhsa_next_free_sgpr %d" % sgpr)
    a.raw("  .amdhsa_accum_offset %d" % accum)
    a.raw("  .amdhsa_group_segment_fixed_size 0")
    a.raw("  .amdhsa_kernarg_size 112")
    a.raw("  .amdhsa_user_sgpr_count 2")
    a.raw("  .amdhsa_user_sgpr_kernarg_segment_ptr 1")
    a.raw("  .amdhsa_system_sgpr_workgroup_id_x 1")
    a.raw(".end_amdhsa_kernel")


def main():
    from gen_rest import gen_attn, gen_ogemm, gen_reduce
    a = Asm()
    hdr = open("cdna_kernels/%s.s.ref" % NAME).read().split("\n")
    for l in hdr:
        if l.startswith(";") and "@launch" not in l:
            a.raw(l)
        elif not l.startswith(";"):
            break
    a.raw("; @launch kernel=mega_kernel grid=(256,1,1) block=(512,1,1) lds=163840")
    a.raw('.amdgcn_target "amdgcn-amd-amdhsa--gfx950"')
    a.raw(".text")
    a.raw(".globl mega_kernel")
    a.raw(".p2align 8")
    a.raw(".type mega_kernel,@function")
    gen_proj(a)
    gen_attn(a)
    gen_ogemm(a)
    gen_reduce(a)
    a.raw('.section .rodata,"a"')
    descriptor(a, "mega_kernel", 256, 102, 256)
    out = sys.argv[1] if len(sys.argv) > 1 else "cdna_kernels/%s.s" % NAME
    open(out, "w").write("\n".join(a.lines) + "\n")


if __name__ == "__main__":
    main()
```

```python
from gen import vr, sr, QF, KF, VF, AF, AF_BLK, PART, CTR
import math
import os
EXP = os.environ.get("EXP", "")

SCALE_LOG2E = (128 ** -0.5) * math.log2(math.e)


def f32hex(x):
    import struct
    return "0x%08x" % struct.unpack("<I", struct.pack("<f", x))[0]


def interleave(a, mf, fl):
    n = len(mf)
    pos = 0
    for i in range(n):
        a(mf[i])
        end = (len(fl) * (i + 1)) // n
        while pos < end:
            a(fl[pos])
            pos += 1


def gen_attn(a):
    V_LDS = 2
    V_DMA = 3
    V_LG = 4
    V_NEG = 5
    V_RDV = 6
    V_RDK = 7
    V_M = 8
    V_L = 9
    V_T = 10
    V_Q = 16
    V_O = 48
    V_S = 112
    V_P = 144
    V_K = 152
    V_V = 184
    S_MASK = 36
    S_LB = 35
    S_THR = 34
    V_C = 216
    V_E = 232
    NBUF = 5
    LDSZ = NBUF * 32768

    a.label("attn_kernel")
    a.stamp()
    a("s_load_dwordx2 s[8:9], s[0:1], 104")
    a("v_lshrrev_b32 v1, 6, v0")
    a("s_nop 0")
    a("v_readfirstlane_b32 s6, v1")
    a("v_and_b32 v1, 63, v0")
    a("s_lshr_b32 s22, s6, 2")
    a("s_and_b32 s23, s6, 3")
    a("s_and_b32 s3, s2, 7")
    a("s_lshl_b32 s3, s3, 2")
    a("s_lshr_b32 s4, s2, 3")
    a("s_and_b32 s4, s4, 3")
    a("s_add_u32 s3, s3, s4")
    a("s_lshr_b32 s4, s2, 5")
    a("s_sub_u32 s5, 15, s4")
    a("s_mov_b32 s24, 0")
    a("s_mov_b32 s77, 1000000")
    a("s_mov_b32 s10, 0x10000000")
    a("s_mov_b32 s11, 0x20000")
    a("s_lshl_b32 s12, s3, 19")
    a("v_lshlrev_b32 v%d, 4, v1" % V_LDS)
    a("s_lshl_b32 s13, s23, 11")
    a("s_lshl_b32 s25, s22, 13")
    a("s_add_u32 s25, s25, s13")
    a("v_add_u32 v%d, s25, v%d" % (V_DMA, V_LDS))
    a("s_lshl_b32 s26, s22, 14")
    a("v_add_u32 v%d, s26, v%d" % (V_LG, V_LDS))
    a("s_add_u32 s27, s26, s13")
    a("v_and_b32 v12, 31, v1")
    a("v_lshrrev_b32 v13, 5, v1")
    a("v_lshlrev_b32 v13, 2, v13")
    a("v_sub_u32 v12, v12, v13")
    for r in range(16):
        kl = 8 * (r >> 2) + (r & 3)
        a("v_cmp_le_i32 %s, %d, v12" % (sr(S_MASK + 2 * r, 2), kl))
    a("v_mov_b32 v%d, 0xf149f2ca" % V_NEG)
    a("s_waitcnt lgkmcnt(0)")

    def bump(sreg):
        return ["s_add_u32 s%d, s%d, 32768" % (sreg, sreg),
                "s_cmp_ge_u32 s%d, %d" % (sreg, LDSZ),
                "s_cselect_b32 s%d, 0, s%d" % (sreg, sreg)]

    def dma_ops():
        ops = []
        ops.append("s_add_u32 m0, s27, s28")
        ops.append("s_nop 0")
        for i in range(2):
            ops.append("buffer_load_dwordx4 v%d, s[8:11], s16 offen offset:%d lds" % (V_DMA, i * 1024))
        ops.append("s_add_u32 m0, m0, 8192")
        ops.append("s_add_u32 s16, s16, 16384")
        for i in range(2):
            ops.append("buffer_load_dwordx4 v%d, s[8:11], s17 offen offset:%d lds" % (V_DMA, i * 1024))
        ops.append("s_add_u32 s17, s17, 16384")
        ops += bump(28)
        return ops

    def dma():
        for x in dma_ops():
            a(x)

    def tstamp(k):
        if not os.environ.get("STAMP"):
            return
        a("s_memtime s[98:99]")
        a("s_waitcnt lgkmcnt(0)")
        a("s_cmp_eq_u32 s24, 0")
        a("s_cselect_b32 s%d, s98, s%d" % (69 + k, 69 + k))
        a("s_cselect_b32 s%d, s%d, s98" % (73 + k, 73 + k))

    def kread_ops():
        return ["ds_read_b128 %s, v%d offset:%d" % (vr(V_K + 4 * s, 4), V_RDK, s * 1024) for s in range(8)] + \
            bump(33) + ["v_add_u32 v%d, s33, v%d" % (V_RDK, V_LG)]

    def vread_ops():
        return ["ds_read_b128 %s, v%d offset:%d" % (vr(V_V + 4 * i, 4), V_RDV, 8192 + i * 1024) for i in range(8)] + \
            bump(32) + ["v_add_u32 v%d, s32, v%d" % (V_RDV, V_LG)]

    def qk_ops(sp):
        ops = []
        S = V_S + 16 * sp
        for s in range(8):
            c = vr(V_C, 16) if s == 0 else vr(S, 16)
            ops.append("v_mfma_f32_32x32x16_bf16 %s, %s, %s, %s" % (vr(S, 16), vr(V_K + 4 * s, 4), vr(V_Q + 4 * s, 4), c))
        return ops

    def pv_ops():
        ops = []
        for t in range(2):
            for dt in range(4):
                o = vr(V_O + 16 * dt, 16)
                ops.append("v_mfma_f32_32x32x16_bf16 %s, %s, %s, %s" % (o, vr(V_V + 4 * (dt * 2 + t), 4), vr(V_P + 4 * t, 4), o))
        return ops

    def max_ops(S, t0, t1):
        return ["v_max3_f32 v%d, v%d, v%d, v%d" % (t0, S, S + 1, S + 2),
                "v_max3_f32 v%d, v%d, v%d, v%d" % (t1, S + 3, S + 4, S + 5),
                "v_max3_f32 v%d, v%d, v%d, v%d" % (t0, t0, S + 6, S + 7),
                "v_max3_f32 v%d, v%d, v%d, v%d" % (t1, t1, S + 8, S + 9),
                "v_max3_f32 v%d, v%d, v%d, v%d" % (t0, t0, S + 10, S + 11),
                "v_max3_f32 v%d, v%d, v%d, v%d" % (t1, t1, S + 12, S + 13),
                "v_max3_f32 v%d, v%d, v%d, v%d" % (t0, t0, S + 14, S + 15),
                "v_max_f32 v%d, v%d, v%d" % (t0, t0, t1),
                "v_mov_b32 v%d, v%d" % (t1, t0)]

    def soft_ops(S, t2, t3):
        P = V_P
        E = V_E
        vb = []
        for r in range(16):
            vb.append("v_exp_f32 v%d, v%d" % (E + r, S + r))
            if r >= 3 and r % 2 == 1:
                q = r - 3
                vb.append("v_cvt_pk_bf16_f32 v%d, v%d, v%d" % (P + q // 2, E + q, E + q + 1))
                if q == 0:
                    vb.append("v_add_f32 v%d, v%d, v%d" % (t2, E, E + 1))
                elif q == 2:
                    vb.append("v_add_f32 v%d, v%d, v%d" % (t3, E + 2, E + 3))
                else:
                    vb.append("v_add_f32 v%d, v%d, v%d" % (t2, t2, E + q))
                    vb.append("v_add_f32 v%d, v%d, v%d" % (t3, t3, E + q + 1))
        vb.append("v_add_f32 v%d, v%d, v%d" % (t2, t2, t3))
        vb.append("v_cvt_pk_bf16_f32 v%d, v%d, v%d" % (P + 7, E + 14, E + 15))
        vb.append("v_add_f32 v%d, v%d, v%d" % (t3, E + 14, E + 15))
        vb.append("v_add_f32 v%d, v%d, v%d" % (t2, t2, t3))
        return vb

    cnt = [0]
    rare = []

    def phaseA(sp, diag):
        cnt[0] += 1
        L = "attn_it%d" % cnt[0]
        S = V_S + 16 * sp
        T = V_T
        if diag:
            a("s_lshl_b32 s29, s18, 1")
            a("s_add_u32 s29, s29, s22")
            a("s_cmp_lt_u32 s29, s30")
            a("s_cbranch_scc1 %s_nomask" % L)
            a("s_cmp_eq_u32 s29, s30")
            a("s_cbranch_scc1 %s_tri" % L)
            for r in range(16):
                a("v_mov_b32 v%d, v%d" % (S + r, V_NEG))
            a("s_branch %s_nomask" % L)
            a.label("%s_tri" % L)
            for r in range(16):
                a("v_cndmask_b32 v%d, v%d, v%d, %s" % (S + r, V_NEG, S + r, sr(S_MASK + 2 * r, 2)))
            a.label("%s_nomask" % L)
        qk = qk_ops(sp ^ 1)
        S2 = V_S + 16 * (sp ^ 1)
        so = soft_ops(S, T + 3, T + 4)
        vrd = vread_ops()
        mix = []
        step = len(so) // len(vrd)
        k = 0
        for i, x in enumerate(so):
            mix.append(x)
            if i % step == step - 1 and k < len(vrd):
                mix.append(vrd[k])
                k += 1
        mix += vrd[k:]
        interleave(a, qk, mix)
        a("v_cmp_lt_f32 vcc, s%d, v%d" % (S_THR, T + 3))
        a("s_nop 1")
        a("s_cbranch_vccnz %s_rs" % L)
        a.label("%s_nors" % L)
        a("v_add_f32 v%d, v%d, v%d" % (V_L, V_L, T + 3))
        blk = ["%s_rs:" % L]
        if os.environ.get("STAMP"):
            blk.append("s_add_u32 s77, s77, 1")
        blk += max_ops(S, T, T + 1)
        blk += ["s_nop 1",
                "v_permlane32_swap_b32 v%d, v%d" % (T, T + 1),
                "s_nop 0",
                "v_max3_f32 v%d, v%d, v%d, s%d" % (T, T, T + 1, S_LB),
                "v_exp_f32 v%d, -v%d" % (T + 1, T),
                "v_add_f32 v%d, v%d, v%d" % (V_M, V_M, T),
                "v_min_f32 v%d, 0x7149f2ca, v%d" % (T + 1, T + 1),
                "s_mov_b32 s%d, 0x53800000" % S_THR,
                "s_mov_b32 s%d, 0" % S_LB,
                "v_mul_f32 v%d, v%d, v%d" % (V_L, V_L, T + 1)]
        for i in range(64):
            blk.append("v_mul_f32 v%d, v%d, v%d" % (V_O + i, V_O + i, T + 1))
        for r in range(16):
            blk.append("v_sub_f32 v%d, v%d, v%d" % (S + r, S + r, T))
        blk += so
        for r in range(16):
            blk.append("v_sub_f32 v%d, v%d, v%d" % (V_C + r, V_C + r, T))
        for r in range(16):
            blk.append("v_sub_f32 v%d, v%d, v%d" % (S2 + r, S2 + r, T))
        blk.append("s_branch %s_nors" % L)
        rare.append(blk)
        a("s_add_u32 s18, s18, 1")

    def phaseC(last=False):
        a("s_waitcnt lgkmcnt(0)")
        a("s_nop 0")
        f = [] if last else kread_ops() + dma_ops()
        interleave(a, pv_ops(), f)

    def bar():
        a("s_waitcnt vmcnt(4) lgkmcnt(0)")
        a("s_barrier")

    def tile_front(qt):
        a("s_lshl_b32 s15, s%d, 2" % qt)
        a("s_add_u32 s15, s15, s23")
        a("s_lshl_b32 s15, s15, 13")
        a("s_add_u32 s15, s15, s12")
        for k in range(2):
            for s in range(4):
                a("buffer_load_dwordx4 %s, v%d, s[8:11], s15 offen offset:%d" % (vr(V_Q + 16 * k + 4 * s, 4), V_LDS, s * 1024))
            a("s_add_u32 s15, s15, 4096")
        a("s_add_u32 s16, s12, 0x%x" % KF)
        a("s_add_u32 s17, s12, 0x%x" % VF)
        a("s_mov_b32 s28, 98304")
        dma()
        dma()

    tile_front(5)
    a.label("attn_tile")
    a("s_lshl_b32 s14, s5, 2")
    a("s_add_u32 s14, s14, s23")
    a("s_mov_b32 s30, s14")
    dma()
    dma()
    a("s_mov_b32 s32, 98304")
    a("s_mov_b32 s33, 98304")
    a("v_add_u32 v%d, s32, v%d" % (V_RDV, V_LG))
    a("v_add_u32 v%d, s32, v%d" % (V_RDK, V_LG))
    a("v_mov_b32 v%d, 0" % V_M)
    a("s_mov_b32 s%d, 0xbf800000" % S_THR)
    a("s_mov_b32 s%d, 0xff7fffff" % S_LB)
    for i in range(16):
        a("v_mov_b32 v%d, 0" % (V_C + i))
    a("v_mov_b32 v%d, 0" % V_L)
    for i in range(64):
        a("v_mov_b32 v%d, 0" % (V_O + i))
    a("s_lshl_b32 s19, s5, 1")
    a("s_mov_b32 s18, 0")
    a("s_waitcnt vmcnt(12)")
    a("s_cmp_eq_u32 s24, 1")
    a("s_cbranch_scc1 attn_w2")
    a("s_waitcnt vmcnt(8)")
    a.label("attn_w2")
    a("s_barrier")
    tstamp(0)
    for x in kread_ops():
        a(x)
    a("s_waitcnt lgkmcnt(0)")
    for x in qk_ops(0):
        a(x)
    for x in kread_ops():
        a(x)
    a("s_cmp_eq_u32 s22, 1")
    a("s_cbranch_scc1 attn_g1")
    a("s_cmp_eq_u32 s5, 0")
    a("s_cbranch_scc1 attn_diag0")
    a.label("attn_loop0")
    a.inloop = "og" not in EXP
    for sp in range(2):
        bar()
        a("s_waitcnt lgkmcnt(0)")
        phaseA(sp, False)
        phaseC()
    a.inloop = False
    a("s_cmp_lt_u32 s18, s19")
    a("s_cbranch_scc1 attn_loop0")
    a.label("attn_diag0")
    tstamp(1)
    for sp in range(2):
        bar()
        a("s_waitcnt lgkmcnt(0)")
        phaseA(sp, True)
        phaseC()
    tstamp(2)
    a("s_branch attn_merge")
    a.label("attn_g1")
    bar()
    dma()
    a("s_waitcnt lgkmcnt(0)")
    a("s_cmp_eq_u32 s5, 0")
    a("s_cbranch_scc1 attn_diag1a")
    phaseA(0, False)
    a.label("attn_loop1")
    a.inloop = "og" not in EXP
    bar()
    phaseC()
    a("s_waitcnt lgkmcnt(0)")
    phaseA(1, False)
    a.inloop = False
    a("s_cmp_ge_u32 s18, s19")
    a("s_cbranch_scc1 attn_diag1")
    a.inloop = "og" not in EXP
    bar()
    phaseC()
    a("s_waitcnt lgkmcnt(0)")
    phaseA(0, False)
    a.inloop = False
    a("s_branch attn_loop1")
    a.label("attn_diag1")
    bar()
    phaseC()
    a("s_waitcnt lgkmcnt(0)")
    a.label("attn_diag1a")
    phaseA(0, True)
    bar()
    phaseC()
    a("s_waitcnt lgkmcnt(0)")
    phaseA(1, True)
    phaseC(last=True)
    a.label("attn_merge")
    a("s_waitcnt vmcnt(0) lgkmcnt(0)")
    a("s_barrier")
    a("s_cmp_eq_u32 s24, 1")
    a("s_cbranch_scc1 attn_nofront")
    tile_front(4)
    a.label("attn_nofront")
    a.nop(12)
    a("s_mul_i32 s29, s6, 9216")
    a("v_add_u32 v12, s29, v%d" % V_LDS)
    a("s_xor_b32 s31, s6, 4")
    a("s_mul_i32 s29, s31, 9216")
    a("v_add_u32 v13, s29, v%d" % V_LDS)
    for g in range(2):
        if g == 0:
            a("s_cmp_eq_u32 s22, 1")
            a("s_cbranch_scc1 attn_mg1")
        else:
            a.label("attn_mg1")
        keep, send = V_O + 32 * g, V_O + 32 * (1 - g)
        for i in range(8):
            a("ds_write_b128 v12, %s offset:%d" % (vr(send + 4 * i, 4), i * 1024))
        a("ds_write_b64 v12, v[%d:%d] offset:8192" % (V_M, V_L))
        a("s_waitcnt lgkmcnt(0)")
        a("s_barrier")
        a("ds_read_b64 v[14:15], v13 offset:8192")
        for i in range(8):
            a("ds_read_b128 %s, v13 offset:%d" % (vr(V_K + 4 * i, 4), i * 1024))
        a("s_waitcnt lgkmcnt(8)")
        a("v_max_f32 v10, v%d, v14" % V_M)
        a("v_sub_f32 v11, v%d, v10" % V_M)
        a("v_sub_f32 v10, v14, v10")
        a("v_exp_f32 v11, v11")
        a("v_exp_f32 v10, v10")
        a.nop(1)
        a("v_mul_f32 v%d, v%d, v11" % (V_L, V_L))
        a("v_fma_f32 v%d, v15, v10, v%d" % (V_L, V_L))
        a("v_mov_b32 v14, v%d" % V_L)
        a.nop(2)
        a("v_permlane32_swap_b32 v%d, v14" % V_L)
        a.nop(1)
        a("v_add_f32 v14, v14, v%d" % V_L)
        a("v_rcp_f32 v14, v14")
        a.nop(1)
        a("v_mul_f32 v11, v11, v14")
        a("v_mul_f32 v10, v10, v14")
        a("s_mul_i32 s20, s14, %d" % AF_BLK)
        a("s_lshl_b32 s21, s3, 13")
        a("s_add_u32 s20, s20, s21")
        a("s_add_u32 s20, s20, 0x%x" % (AF + 4096 * g))
        a("s_waitcnt lgkmcnt(0)")
        for i in range(32):
            a("v_mul_f32 v%d, v%d, v10" % (V_K + i, V_K + i))
            a("v_fma_f32 v%d, v%d, v11, v%d" % (V_K + i, keep + i, V_K + i))
        for k in range(4):
            d = V_V + k * 4
            for p in range(4):
                x0 = V_K + 8 * k + 2 * p
                a("v_cvt_pk_bf16_f32 v%d, v%d, v%d" % (d + p, x0, x0 + 1))
            a("buffer_store_dwordx4 %s, v%d, s[8:11], s20 offen offset:%d sc1" % (vr(d, 4), V_LDS, k * 1024))
        if g == 0:
            a("s_branch attn_mgdone")
    a.label("attn_mgdone")
    tstamp(3)
    a.nst = 10
    a("s_cmp_eq_u32 s24, 1")
    a("s_cbranch_scc1 attn_fin")
    a("s_mov_b32 s24, 1")
    a("s_mov_b32 s5, s4")
    a("s_barrier")
    a("s_branch attn_tile")
    a.label("attn_fin")
    a.stamp_flush(0)
    a.label("attn_end")
    a("s_branch attn_after")
    for blk in rare:
        a.label(blk[0][:-1])
        for x in blk[1:]:
            a(x)
    a.label("attn_after")
    a("s_waitcnt vmcnt(0) lgkmcnt(0)")
    a("s_barrier")
    a.phase = 2


def gen_ogemm(a):
    V_AL = 2
    V_TR = 4
    V_DA = 8
    V_DB = 9
    V_ST = 11
    V_F = 16
    V_ACC = 48
    NST = 23
    a.label("ogemm_kernel")
    a.stamp()
    a("s_load_dwordx2 s[8:9], s[0:1], 104")
    a("s_load_dwordx2 s[24:25], s[0:1], 40")
    a("s_load_dwordx2 s[26:27], s[0:1], 72")
    a("v_lshrrev_b32 v1, 6, v0")
    a("s_nop 0")
    a("v_readfirstlane_b32 s6, v1")
    a("v_and_b32 v1, 63, v0")
    a("s_lshr_b32 s3, s2, 4")
    a("s_and_b32 s4, s2, 1")
    a("s_lshl_b32 s4, s4, 1")
    a("s_bfe_u32 s5, s2, 0x10003")
    a("s_or_b32 s4, s4, s5")
    a("s_bfe_u32 s5, s2, 0x20001")
    if "same" in EXP:
        a("s_mov_b32 s3, 0")
        a("s_mov_b32 s4, 0")
        a("s_mov_b32 s5, 0")
    if "map1" not in EXP:
        a("s_and_b32 s3, s2, 1")
        a("s_lshl_b32 s3, s3, 3")
        a("s_bfe_u32 s4, s2, 0x30003")
        a("s_or_b32 s3, s3, s4")
        a("s_lshr_b32 s4, s2, 6")
    a("s_mov_b32 s10, 0x10000000")
    a("s_mov_b32 s11, 0x20000")
    a("s_mov_b32 s15, 0x20000")
    a("s_lshr_b32 s30, s6, 2")
    a("s_lshr_b32 s31, s6, 1")
    a("s_and_b32 s31, s31, 1")
    a("s_and_b32 s32, s6, 1")
    a("v_lshlrev_b32 v%d, 4, v1" % V_ST)
    a("s_lshl_b32 s33, s31, 13")
    a("s_lshl_b32 s34, s30, 11")
    a("s_add_u32 s33, s33, s34")
    a("v_add_u32 v%d, s33, v%d" % (V_AL, V_ST))
    a("v_add_u32 v%d, 0x10000, v%d" % (V_AL + 1, V_AL))
    a("v_bfe_u32 v12, v1, 2, 2")
    a("v_lshrrev_b32 v13, 5, v1")
    a("v_lshl_add_u32 v13, v13, 2, v12")
    a("v_lshlrev_b32 v13, 8, v13")
    a("v_bfe_u32 v14, v1, 4, 1")
    a("v_lshl_add_u32 v13, v14, 5, v13")
    a("v_and_b32 v14, 3, v1")
    a("v_lshl_add_u32 v13, v14, 3, v13")
    a("s_lshl_b32 s33, s30, 13")
    a("s_add_u32 s33, s33, 16384")
    a("v_add_u32 v13, s33, v13")
    a("v_lshlrev_b32 v12, 6, v12")
    a("s_lshl_b32 s34, s32, 7")
    for ntl in range(2):
        a("s_add_u32 s35, s34, %d" % (ntl << 6))
        a("v_xor_b32 v14, s35, v12")
        a("v_add_u32 v%d, v13, v14" % (V_TR + ntl))
        a("v_add_u32 v%d, 0x10000, v%d" % (V_TR + 2 + ntl, V_TR + ntl))
    a("s_lshr_b32 s33, s6, 1")
    a("s_lshl_b32 s34, s3, 2")
    a("s_add_u32 s34, s34, s33")
    a("s_mul_i32 s34, s34, %d" % AF_BLK)
    a("s_lshl_b32 s35, s32, 11")
    a("s_add_u32 s34, s34, s35")
    a("s_add_u32 s34, s34, 0x%x" % AF)
    a("v_add_u32 v%d, s34, v%d" % (V_DA, V_ST))
    a("s_lshl_b32 s36, s6, 11")
    a("v_lshrrev_b32 v12, 4, v1")
    a("v_bfe_u32 v13, v1, 2, 2")
    a("v_xor_b32 v13, v13, v12")
    a("v_lshlrev_b32 v13, 6, v13")
    a("v_and_b32 v14, 3, v1")
    a("v_lshl_add_u32 v13, v14, 4, v13")
    a("s_lshl_b32 s33, s6, 3")
    a("v_add_u32 v12, s33, v12")
    a("v_lshlrev_b32 v12, 10, v12")
    a("v_add_u32 v12, v12, v13")
    a("s_lshl_b32 s33, s4, 8")
    a("v_add_u32 v%d, s33, v12" % V_DB)
    a("v_add_u32 v%d, 3072, v%d" % (V_DB + 1, V_DB))
    a("s_mov_b32 s42, 0x1c0000")
    a("s_mul_i32 s37, s5, 7")
    a("s_add_u32 s37, s37, 64")
    a("s_lshl_b32 s44, s5, 4")
    a("s_mov_b32 s43, 0")
    a("s_waitcnt lgkmcnt(0)")

    def dma(buf):
        a("s_cmp_lt_u32 s37, 64")
        a("s_cselect_b32 s12, s24, s26")
        a("s_cselect_b32 s13, s25, s27")
        a("s_cselect_b32 s14, 0x400000, s42")
        a("s_cselect_b32 s39, 0, 64")
        a("s_sub_u32 s39, s37, s39")
        a("s_lshl_b32 s39, s39, 16")
        a("s_lshl_b32 s40, s37, 12")
        a("s_cmp_lt_u32 s43, %d" % NST)
        a("s_cselect_b32 s14, s14, 0")
        a("s_cselect_b32 s40, s40, 0x10000000")
        a("s_add_u32 s37, s37, 1")
        a("s_add_u32 s43, s43, 1")
        a("s_cmp_eq_u32 s43, 7")
        a("s_cselect_b32 s37, s44, s37")
        a("s_add_u32 m0, s36, %d" % (buf * 32768))
        a("s_nop 0")
        for i in range(2):
            a("buffer_load_dwordx4 v%d, s[8:11], s40 offen offset:%d lds" % (V_DA, i * 1024))
        a("s_add_u32 m0, s36, %d" % (buf * 32768 + 16384))
        a("s_nop 0")
        for i in range(2):
            a("buffer_load_dwordx4 v%d, s[12:15], s39 offen offset:%d lds" % (V_DB + i, i * 1024))

    def reads(buf, sl, st):
        hi = 1 if buf >= 2 else 0
        bo = (buf & 1) * 32768
        f = V_F + st * 16
        for mbl in range(2):
            a("ds_read_b128 %s, v%d offset:%d" % (vr(f + 4 * mbl, 4), V_AL + hi, bo + mbl * 4096 + sl * 1024))
        for ntl in range(2):
            for ird in range(2):
                a("ds_read_b64_tr_b16 %s, v%d offset:%d" % (
                    vr(f + 8 + 4 * ntl + 2 * ird, 2), V_TR + 2 * hi + ntl, bo + sl * 4096 + ird * 2048))

    def mfmas(st, first):
        f = V_F + st * 16
        for mbl in range(2):
            for ntl in range(2):
                acc = vr(V_ACC + 16 * (mbl * 2 + ntl), 16)
                c = "0" if first else acc
                a("v_mfma_f32_32x32x16_bf16 %s, %s, %s, %s" % (acc, vr(f + 8 + 4 * ntl, 4), vr(f + 4 * mbl, 4), c))

    dma(0)
    dma(1)
    dma(2)
    for i in range(64):
        a("v_mov_b32 v%d, 0" % (V_ACC + i))
    a("s_cmp_lg_u32 s6, 0")
    a("s_cbranch_scc1 ogemm_nosig")
    a.gb_signal(1)
    a.label("ogemm_nosig")
    a("s_mov_b32 s41, 0")
    a("s_waitcnt vmcnt(8)")
    a("s_barrier")
    a.stamp()
    reads(0, 0, 0)

    def body(buf, hook=None, check=True):
        a("s_waitcnt vmcnt(4)")
        a("s_barrier")
        reads(buf, 1, 1)
        a("s_waitcnt lgkmcnt(6)")
        mfmas(0, False)
        reads((buf + 1) & 3, 0, 0)
        if hook:
            hook()
        dma((buf + 3) & 3)
        a("s_waitcnt lgkmcnt(6)")
        mfmas(1, False)
        a("s_add_u32 s41, s41, 1")
        if check:
            a("s_cmp_ge_u32 s41, %d" % NST)
            a("s_cbranch_scc1 ogemm_done")

    def pollhook():
        a("s_cmp_lg_u32 s6, 0")
        a("s_cbranch_scc1 ogemm_nopoll")
        a.gb_poll(1)
        a.label("ogemm_nopoll")
        a("s_barrier")
        a.stamp()

    for it in range(8):
        body(it & 3, pollhook if it == 4 else None, False)
    a.label("ogemm_loop")
    a.inloop = "og" in EXP
    for buf in range(4):
        body(buf)
    a("s_branch ogemm_loop")
    a.inloop = False
    a.label("ogemm_done")
    a.stamp()
    a("s_waitcnt vmcnt(0) lgkmcnt(0)")
    a("s_barrier")
    a.nop(12)
    a("s_and_b32 s33, s6, 3")
    a("s_lshl_b32 s33, s33, 14")
    a("v_add_u32 v12, s33, v%d" % V_ST)
    a("s_cmp_eq_u32 s30, 0")
    a("s_cbranch_scc1 ogemm_g0")
    for i in range(16):
        a("ds_write_b128 v12, %s offset:%d" % (vr(V_ACC + 4 * i, 4), i * 1024))
    a("s_waitcnt lgkmcnt(0)")
    a("s_barrier")
    a("s_branch ogemm_end")
    a.label("ogemm_g0")
    a("s_barrier")
    for i in range(16):
        a("ds_read_b128 %s, v12 offset:%d" % (vr(112 + 4 * i, 4), i * 1024))
    a("s_lshl_b32 s34, s3, 2")
    a("s_add_u32 s34, s34, s4")
    a("s_lshl_b32 s34, s34, 16")
    a("s_add_u32 s34, s34, s33")
    a("s_lshl_b32 s35, s5, 22")
    a("s_add_u32 s34, s34, s35")
    a("s_add_u32 s34, s34, 0x%x" % PART)
    a("s_waitcnt lgkmcnt(0)")
    for i in range(64):
        a("v_add_f32 v%d, v%d, v%d" % (V_ACC + i, V_ACC + i, 112 + i))
    for i in range(16):
        if i == 4:
            a("s_add_u32 s34, s34, 4096")
        if i == 8:
            a("s_add_u32 s34, s34, 4096")
        if i == 12:
            a("s_add_u32 s34, s34, 4096")
        a("buffer_store_dwordx4 %s, v%d, s[8:11], s34 offen offset:%d sc1" % (vr(V_ACC + 4 * i, 4), V_ST, (i & 3) * 1024))
    a.stamp()
    a.stamp_flush(0)
    a.label("ogemm_end")
    a("s_lshl_b32 s49, s3, 2")
    a("s_add_u32 s49, s49, s4")
    a("s_lshl_b32 s45, s49, 4")
    a("s_lshl_b32 s46, s5, 2")
    a("s_add_u32 s45, s45, s46")
    reduce_pre(a)
    a("s_waitcnt vmcnt(0) lgkmcnt(0)")
    a("s_barrier")
    a("s_cmp_lg_u32 s6, 0")
    a("s_cbranch_scc1 tb_wait")
    a("s_add_u32 s46, s49, 32")
    a("s_lshl_b32 s46, s46, 12")
    a("s_add_u32 s46, s46, 0x%x" % CTR)
    a("s_mov_b64 exec, 1")
    a("v_mov_b32 v12, 1")
    a("v_mov_b32 v13, 0")
    a("buffer_atomic_add v12, v13, s[8:11], s46 offen sc1")
    a("s_mov_b32 s47, 0")
    a.label("tb_loop")
    a("buffer_load_dword v14, v13, s[8:11], s46 offen sc1")
    a("s_waitcnt vmcnt(0)")
    a("v_readfirstlane_b32 s48, v14")
    a("s_cmp_ge_u32 s48, 4")
    a("s_cbranch_scc1 tb_done")
    a("s_add_u32 s47, s47, 1")
    a("s_cmp_gt_u32 s47, 40000")
    a("s_cbranch_scc1 tb_done")
    a("s_sleep 4")
    a("s_branch tb_loop")
    a.label("tb_done")
    a("s_mov_b64 exec, -1")
    a.label("tb_wait")
    a("s_barrier")
    a.phase = 3


RB = 176


def reduce_pre(a):
    a("s_load_dwordx2 s[52:53], s[0:1], 0")
    a("s_load_dwordx2 s[56:57], s[0:1], 80")
    a("s_load_dwordx2 s[60:61], s[0:1], 88")
    a("s_mov_b32 s54, 0x200000")
    a("s_mov_b32 s55, 0x20000")
    a("s_mov_b32 s58, 1024")
    a("s_mov_b32 s59, 0x20000")
    a("s_mov_b32 s62, 0x200000")
    a("s_mov_b32 s63, 0x20000")
    T = RB + 70
    a("s_lshr_b32 s40, s6, 2")
    a("v_and_b32 v%d, 255, v0" % T)
    a("s_add_u32 s41, s45, s40")
    a("v_lshlrev_b32 v%d, 4, v%d" % (RB + 1, T))
    a("s_waitcnt lgkmcnt(0)")
    for j in range(2):
        B = RB + 4 + 32 * j
        v2, v3 = RB + 2, RB + 3
        a("s_add_u32 s42, s41, %d" % (2 * j))
        a("s_lshr_b32 s64, s42, 4")
        a("s_lshr_b32 s65, s42, 2")
        a("s_and_b32 s65, s65, 3")
        a("s_and_b32 s66, s42, 3")
        a("s_lshr_b32 s24, s64, 2")
        a("s_and_b32 s25, s64, 3")
        a("s_lshr_b32 s26, s65, 1")
        a("s_and_b32 s27, s65, 1")
        a("s_lshr_b32 s28, s66, 1")
        a("s_and_b32 s29, s66, 1")
        a("s_lshl_b32 s30, s24, 2")
        a("s_lshl_b32 s31, s26, 1")
        a("s_add_u32 s30, s30, s31")
        a("s_add_u32 s30, s30, s28")
        a("s_lshl_b32 s30, s30, 15")
        a("s_lshl_b32 s31, s25, 2")
        a("s_lshl_b32 s32, s27, 1")
        a("s_add_u32 s31, s31, s32")
        a("s_add_u32 s31, s31, s29")
        a("s_lshl_b32 s31, s31, 6")
        a("v_and_b32 v%d, 31, v%d" % (v2, T))
        a("v_lshlrev_b32 v%d, 10, v%d" % (v2, v2))
        a("v_lshrrev_b32 v%d, 6, v%d" % (v3, T))
        a("v_lshlrev_b32 v%d, 4, v%d" % (v3, v3))
        a("v_bfe_u32 v%d, v%d, 5, 1" % (B + 16, T))
        a("v_lshl_add_u32 v%d, v%d, 3, v%d" % (v3, B + 16, v3))
        a("v_add_u32 v%d, s31, v%d" % (v3, v3))
        a("v_add_u32 v%d, v%d, v%d" % (v2, v2, v3))
        a("v_add_u32 v%d, s30, v%d" % (B + 26, v2))
        a("buffer_load_dwordx2 %s, v%d, s[52:55], 0 offen" % (vr(B + 16, 2), B + 26))
        a("buffer_load_dwordx2 %s, v%d, s[56:59], 0 offen" % (vr(B + 18, 2), v3))


def gen_reduce(a):
    a.label("reduce_kernel")
    a.stamp()
    for j in range(2):
        B = RB + 4 + 32 * j
        a("s_lshl_b32 s42, s41, 12")
        a("s_add_u32 s42, s42, 0x%x" % (PART + j * 8192))
        for p in range(4):
            a("buffer_load_dwordx4 %s, v%d, s[8:11], s42 offen" % (vr(B + 4 * p, 4), RB + 1))
            if p < 3:
                a("s_add_u32 s42, s42, 0x400000")
    for j in range(2):
        B = RB + 4 + 32 * j
        for p in range(2):
            a("v_lshlrev_b32 v%d, 16, v%d" % (B + 20, B + 16 + p))
            a("v_and_b32 v%d, 0xffff0000, v%d" % (B + 21, B + 16 + p))
            a("v_lshlrev_b32 v%d, 16, v%d" % (B + 22, B + 18 + p))
            a("v_and_b32 v%d, 0xffff0000, v%d" % (B + 23, B + 18 + p))
            a("v_add_f32 v%d, v%d, v%d" % (B + 28 + 2 * p, B + 20, B + 22))
            a("v_add_f32 v%d, v%d, v%d" % (B + 29 + 2 * p, B + 21, B + 23))
    for j in range(2):
        B = RB + 4 + 32 * j
        a("s_waitcnt vmcnt(%d)" % (4 - 4 * j))
        for i in range(4):
            a("v_add_f32 v%d, v%d, v%d" % (B + i, B + i, B + 4 + i))
            a("v_add_f32 v%d, v%d, v%d" % (B + 8 + i, B + 8 + i, B + 12 + i))
        for i in range(4):
            a("v_add_f32 v%d, v%d, v%d" % (B + i, B + i, B + 8 + i))
        for i in range(4):
            a("v_add_f32 v%d, v%d, v%d" % (B + i, B + i, B + 28 + i))
        for p in range(2):
            a("v_cvt_pk_bf16_f32 v%d, v%d, v%d" % (B + 24 + p, B + 2 * p, B + 1 + 2 * p))
        a("buffer_store_dwordx2 %s, v%d, s[60:63], 0 offen" % (vr(B + 24, 2), B + 26))
    a.stamp()
    a.stamp_flush(0)
    if os.environ.get("STAMP"):
        a("s_waitcnt vmcnt(0)")
        a("s_memrealtime s[18:19]")
        a("s_load_dwordx2 s[8:9], s[0:1], 96")
        a("s_mov_b32 s10, 65536")
        a("s_mov_b32 s11, 0x20000")
        a("s_lshl_b32 s20, s2, 4")
        a("s_add_u32 s20, s20, %d" % (4096 + 4096 * 3))
        a("s_waitcnt lgkmcnt(0)")
        a("s_mov_b64 exec, 1")
        a("v_mov_b32 v4, s18")
        a("v_mov_b32 v5, s18")
        a("v_mov_b32 v6, s18")
        a("v_mov_b32 v7, s92")
        a("v_mov_b32 v2, 0")
        a("buffer_store_dwordx4 v[4:7], v2, s[8:11], s20 offen")
    a("s_endpgm")
```

```python
import sys

NAME = "parallel_sum__compressed_kv_cla__dense_activation_squared_relu__prompt"

MB = 1 << 20
QF = 0
KF = 16 * MB
VF = 32 * MB
AF = 49 * MB
AF_BLK = 368 * 1024
PART = 80 * MB
CTR = 100 * MB
import math, struct
QSC = struct.unpack("<I", struct.pack("<f", (128 ** -0.5) * math.log2(math.e)))[0]


import os
STAMP = os.environ.get("STAMP")


class Asm:
    def __init__(self):
        self.lines = []
        self.nst = 0

    def stamp(self):
        if not STAMP:
            return
        self("s_memtime s[98:99]")
        self("s_waitcnt lgkmcnt(0)")
        self("s_mov_b32 s%d, s98" % (68 + self.nst))
        self.nst += 1

    def stamp_flush(self, wgsel, dbgptr_off=96):
        if not STAMP:
            return
        L = "stf_%d" % len(self.lines)
        self("s_cmp_lg_u32 s2, %d" % wgsel)
        self("s_cbranch_scc1 %s" % L)
        self("s_load_dwordx2 s[96:97], s[0:1], %d" % dbgptr_off)
        self("s_waitcnt lgkmcnt(0)")
        self("s_mov_b32 s98, 4096")
        self("s_mov_b32 s99, 0x20000")
        self("v_cmp_eq_u32 vcc, 0, v0")
        self("s_and_saveexec_b64 s[94:95], vcc")
        self("s_cbranch_execz %s" % L)
        for i in range(self.nst):
            self("v_mov_b32 v1, s%d" % (68 + i))
            self("v_mov_b32 v2, %d" % (4 * i + 512 * (self.phase + 1)))
            self("buffer_store_dword v1, v2, s[96:99], 0 offen")
        self.label(L)
        self("s_mov_b64 exec, -1")
        self.nst = 0

    phase = 0

    def gb_signal(self, k):
        a = self
        a("s_load_dwordx2 s[80:81], s[0:1], 96")
        a("s_load_dwordx2 s[84:85], s[0:1], 104")
        a("s_mov_b32 s82, 256")
        a("s_mov_b32 s83, 0x20000")
        a("s_mov_b32 s86, 0x10000000")
        a("s_mov_b32 s87, 0x20000")
        a("s_mov_b64 exec, 1")
        a("v_mov_b32 v12, 1")
        a("v_mov_b32 v13, %d" % (4 * k))
        a("v_mov_b32 v14, 1")
        a("v_mov_b32 v15, 0")
        a("s_and_b32 s88, s2, 15")
        a("s_lshl_b32 s88, s88, 12")
        a("s_add_u32 s88, s88, 0x%x" % (CTR + (k - 1) * 65536))
        a("s_waitcnt lgkmcnt(0)")
        a("buffer_atomic_add v14, v15, s[84:87], s88 offen sc0 sc1")
        a("s_waitcnt vmcnt(0)")
        a("v_readfirstlane_b32 s89, v14")
        a("s_cmp_lg_u32 s89, 15")
        a("s_cbranch_scc1 gs_nr%d" % k)
        a("buffer_atomic_add v12, v13, s[80:83], 0 offen sc1")
        a.label("gs_nr%d" % k)
        a("s_mov_b64 exec, -1")

    def gb_poll(self, k):
        a = self
        a("s_mov_b64 exec, 1")
        a("v_mov_b32 v13, %d" % (4 * k))
        a("s_mov_b32 s88, 0")
        a.label("gp_loop%d" % k)
        a("buffer_load_dword v14, v13, s[80:83], 0 offen sc1")
        a("s_waitcnt vmcnt(0)")
        a("v_readfirstlane_b32 s89, v14")
        a("s_cmp_ge_u32 s89, 16")
        a("s_cbranch_scc1 gp_done%d" % k)
        a("s_add_u32 s88, s88, 1")
        a("s_cmp_gt_u32 s88, 40000")
        a("s_cbranch_scc1 gp_done%d" % k)
        a("s_sleep 8")
        a("s_branch gp_loop%d" % k)
        a.label("gp_done%d" % k)
        a("s_mov_b64 exec, -1")

    def gridbar(self, k):
        a = self
        if STAMP:
            a("s_memrealtime s[14:15]")
        if k == 0:
            a("s_cmp_ge_u32 s2, 96")
            a("s_cbranch_scc1 gb_noinit")
            a("s_load_dwordx2 s[8:9], s[0:1], 104")
            a("s_mov_b32 s10, 0x10000000")
            a("s_mov_b32 s11, 0x20000")
            a("s_lshl_b32 s12, s2, 12")
            a("s_add_u32 s12, s12, 0x%x" % CTR)
            a("v_mov_b32 v1, 0")
            a("v_mov_b32 v2, 0")
            a("s_waitcnt lgkmcnt(0)")
            a("buffer_store_dword v1, v2, s[8:11], s12 offen sc0 sc1")
            a.label("gb_noinit")
        a("s_waitcnt vmcnt(0) lgkmcnt(0)")
        a("s_barrier")
        if STAMP:
            a("s_memrealtime s[16:17]")
        a("v_lshrrev_b32 v1, 6, v0")
        a("s_nop 0")
        a("v_readfirstlane_b32 s6, v1")
        a("s_cmp_lg_u32 s6, 0")
        a("s_cbranch_scc1 gb_wait%d" % k)
        a("s_load_dwordx2 s[8:9], s[0:1], 96")
        a("s_load_dwordx2 s[24:25], s[0:1], 104")
        a("s_mov_b32 s10, 256")
        a("s_mov_b32 s11, 0x20000")
        a("s_mov_b32 s26, 0x10000000")
        a("s_mov_b32 s27, 0x20000")
        a("s_mov_b64 exec, 1")
        a("v_mov_b32 v1, 1")
        a("v_mov_b32 v2, %d" % (4 * k))
        a("s_waitcnt lgkmcnt(0)")
        tgt = 256
        if True:
            tgt = 16
            a("s_and_b32 s12, s2, 15")
            a("v_mov_b32 v3, 1")
            a("v_mov_b32 v4, 0")
            if k > 0:
                a("s_lshl_b32 s12, s12, 12")
                a("s_add_u32 s12, s12, 0x%x" % (CTR + (k - 1) * 65536))
                a("buffer_atomic_add v3, v4, s[24:27], s12 offen sc0 sc1")
            else:
                a("s_lshl_b32 s12, s12, 2")
                a("s_add_u32 s12, s12, 128")
                a("buffer_atomic_add v3, v4, s[8:11], s12 offen sc0 sc1")
            a("s_waitcnt vmcnt(0)")
            a("v_readfirstlane_b32 s13, v3")
            a("s_cmp_lg_u32 s13, 15")
            a("s_cbranch_scc1 gb_nr%d" % k)
        a("buffer_atomic_add v1, v2, s[8:11], 0 offen sc1")
        if True:
            a.label("gb_nr%d" % k)
        a("s_mov_b32 s12, 0")
        a.label("gb_loop%d" % k)
        a("buffer_load_dword v3, v2, s[8:11], 0 offen %s" % os.environ.get("PSC", "sc1"))
        a("s_waitcnt vmcnt(0)")
        a("v_readfirstlane_b32 s13, v3")
        a("s_cmp_ge_u32 s13, %d" % tgt)
        a("s_cbranch_scc1 gb_done%d" % k)
        a("s_add_u32 s12, s12, 1")
        a("s_cmp_gt_u32 s12, 40000")
        a("s_cbranch_scc1 gb_done%d" % k)
        a("s_sleep %s" % os.environ.get("SLEEP", "8"))
        a("s_branch gb_loop%d" % k)
        a.label("gb_done%d" % k)
        if STAMP:
            a("s_memrealtime s[18:19]")
            a("s_mov_b32 s10, 65536")
            a("s_lshl_b32 s20, s2, 4")
            a("s_add_u32 s20, s20, %d" % (4096 + 4096 * k))
            a("s_waitcnt lgkmcnt(0)")
            a("s_mov_b64 exec, 1")
            a("v_mov_b32 v4, s14")
            a("v_mov_b32 v5, s16")
            a("v_mov_b32 v6, s18")
            a("v_mov_b32 v7, s92")
            a("v_mov_b32 v2, 0")
            a("buffer_store_dwordx4 v[4:7], v2, s[8:11], s20 offen")
        a("s_mov_b64 exec, -1")
        a.label("gb_wait%d" % k)
        a("s_barrier")
        if "inv" in os.environ.get("EXP", ""):
            a("buffer_inv sc1")
        self.phase = k + 1

    inloop = False

    def __call__(self, s):
        EXP = os.environ.get("EXP", "")
        if self.inloop:
            if "nomfma" in EXP and s.startswith("v_mfma"):
                return
            if "novalu" in EXP and s.startswith("v_") and not s.startswith("v_mfma") and not s.startswith("v_cmp") and "0x1ffff" not in s and "0x8000" not in s and not s.startswith("v_mov") and not s.startswith("v_add_u32"):
                return
            if "nolds" in EXP and s.startswith("ds_read"):
                return
            if "nodma" in EXP and s.startswith("buffer_load"):
                return
            if "nobar" in EXP and s.startswith("s_barrier"):
                return
        if "nosc1" in EXP and s.startswith("buffer_store") and s.endswith(" sc1"):
            s = s[:-4]
        self.lines.append("  " + s)

    def label(self, s):
        self.lines.append(s + ":")

    def raw(self, s):
        self.lines.append(s)

    def nop(self, n):
        while n > 0:
            k = min(n, 16)
            self("s_nop %d" % (k - 1))
            n -= k


def vr(a, n):
    return "v[%d:%d]" % (a, a + n - 1)


def sr(a, n):
    return "s[%d:%d]" % (a, a + n - 1)


def gen_proj(a):
    V_LANE = 1
    V_TR = 2
    V_OFFC = 10
    V_OFFN = 11
    V_ST = 12
    V_T0 = 13
    V_B = 16
    V_ACC = 48
    V_A = 112
    V_ROWI = 13
    V_SWZ = 14
    V_T = 15
    V_AOFF = 240

    a.label("mega_kernel")
    a("s_cmp_lt_u32 s2, 256")
    a("s_cbranch_scc1 proj_start")
    a("s_endpgm")
    a.label("proj_start")
    if STAMP:
        a("s_memrealtime s[92:93]")
    a.stamp()
    a("s_load_dwordx16 s[24:39], s[0:1], 0")
    a("s_load_dwordx4 s[40:43], s[0:1], 64")
    a("s_load_dwordx2 s[44:45], s[0:1], 104")
    PM = os.environ.get("PM", "0")
    if PM == "0":
        a("s_lshr_b32 s3, s2, 5")
        a("s_and_b32 s4, s2, 31")
    elif PM == "1":
        a("s_and_b32 s3, s2, 7")
        a("s_lshr_b32 s4, s2, 3")
    elif PM == "2":
        a("s_and_b32 s3, s2, 3")
        a("s_bfe_u32 s4, s2, 0x10003")
        a("s_lshl_b32 s4, s4, 2")
        a("s_or_b32 s3, s3, s4")
        a("s_bfe_u32 s4, s2, 0x10002")
        a("s_lshr_b32 s5, s2, 4")
        a("s_lshl_b32 s5, s5, 1")
        a("s_or_b32 s4, s4, s5")
    elif PM == "3":
        a("s_and_b32 s3, s2, 1")
        a("s_bfe_u32 s4, s2, 0x20003")
        a("s_lshl_b32 s4, s4, 1")
        a("s_or_b32 s3, s3, s4")
        a("s_bfe_u32 s4, s2, 0x20001")
        a("s_lshr_b32 s5, s2, 5")
        a("s_lshl_b32 s5, s5, 2")
        a("s_or_b32 s4, s4, s5")
    a("v_lshrrev_b32 v1, 6, v0")
    a("s_nop 0")
    a("v_readfirstlane_b32 s6, v1")
    a("v_and_b32 v1, 63, v0")
    a("s_waitcnt lgkmcnt(0)")
    a.stamp()
    a("s_cmp_lt_u32 s4, 16")
    a("s_cselect_b32 s8, s24, s26")
    a("s_cselect_b32 s9, s25, s27")
    a("s_cselect_b32 s5, 0, 1")
    a("s_and_b32 s4, s4, 15")
    a("s_mov_b32 s10, 0x200000")
    a("s_mov_b32 s11, 0x20000")
    a("s_mov_b32 s16, s44")
    a("s_mov_b32 s17, s45")
    a("s_mov_b32 s18, 0x10000000")
    a("s_mov_b32 s19, 0x20000")
    a("s_mov_b32 s20, s40")
    a("s_mov_b32 s21, s41")
    a("s_mov_b32 s22, 3584")
    a("s_mov_b32 s23, 0x20000")
    a("s_mov_b32 s15, 0x20000")
    a("s_mov_b32 s51, 0x20000")
    a("s_lshl_b32 s58, s6, 12")
    a("s_lshl_b32 s59, s3, 3")
    a("s_add_u32 s59, s59, s6")
    a("v_and_b32 v13, 15, v1")
    a("v_lshlrev_b32 v13, 10, v13")
    a("v_lshrrev_b32 v14, 4, v1")
    a("v_lshlrev_b32 v14, 4, v14")
    a("v_add_u32 v13, v13, v14")
    a("s_movk_i32 s65, 0x4000")
    a("s_lshl_b32 s60, s59, 15")
    a("v_add_u32 v13, s60, v13")
    a("v_mov_b32 v%d, v13" % V_AOFF)

    def aloads(lo, hi):
        for s in range(lo, hi):
            a("buffer_load_dwordx4 %s, v%d, s[8:11], %s offen offset:%d" % (
                vr(V_A + 4 * s, 4), V_AOFF, "s65" if s & 1 else "0", (s >> 1) * 64))

    def aswaps(lo, hi):
        for s in range(lo, hi, 2):
            for j in range(4):
                a("v_permlane16_swap_b32 v%d, v%d" % (V_A + 4 * s + j, V_A + 4 * s + 4 + j))
        a("s_nop 1")
    a("v_bfe_u32 v13, v1, 2, 2")
    a("v_lshrrev_b32 v14, 5, v1")
    a("v_lshl_add_u32 v14, v14, 4, v13")
    a("v_lshlrev_b32 v14, 8, v14")
    a("v_bfe_u32 v15, v1, 4, 1")
    a("v_lshl_add_u32 v14, v15, 5, v14")
    a("v_and_b32 v15, 3, v1")
    a("v_lshl_add_u32 v14, v15, 3, v14")
    a("v_lshlrev_b32 v13, 6, v13")
    for nt in range(4):
        a("v_xor_b32 v15, %d, v13" % (nt << 6))
        a("v_add_u32 v%d, v14, v15" % (V_TR + nt))
        a("v_add_u32 v%d, 0x10000, v%d" % (V_TR + 4 + nt, V_TR + nt))
    a("v_lshlrev_b32 v%d, 4, v1" % V_ST)
    a("v_lshrrev_b32 v13, 4, v1")
    a("v_bfe_u32 v14, v1, 2, 2")
    a("v_xor_b32 v14, v14, v13")
    a("v_lshlrev_b32 v14, 6, v14")
    a("v_and_b32 v15, 3, v1")
    a("v_lshl_add_u32 v14, v15, 4, v14")
    a("s_lshl_b32 s60, s6, 4")
    a("v_add_u32 v13, s60, v13")

    def set_params(which, wlo, whi, nrec, ldw, colexpr_reg):
        base = 12 if which == "cur" else 48
        sl, sc = (52, 53) if which == "cur" else (54, 55)
        voff = V_OFFC if which == "cur" else V_OFFN
        a("s_mov_b32 s%d, s%d" % (base, wlo))
        a("s_mov_b32 s%d, s%d" % (base + 1, whi))
        if isinstance(nrec, str):
            a("s_mov_b32 s%d, %s" % (base + 2, nrec))
        else:
            a("s_mov_b32 s%d, 0x%x" % (base + 2, nrec))
        a("s_mov_b32 s%d, %d" % (sl, ldw))
        a("s_mov_b32 s%d, %s" % (sc, colexpr_reg))
        a("v_mul_lo_u32 v%d, v%d, s%d" % (voff, V_ROWI, sl))
        a("v_add_u32 v%d, v%d, v%d" % (voff, voff, V_SWZ))

    def dma(kc, which):
        base = 12 if which == "cur" else 48
        sl, sc = (52, 53) if which == "cur" else (54, 55)
        voff = V_OFFC if which == "cur" else V_OFFN
        for i in range(4):
            a("s_add_u32 m0, s58, %d" % (kc * 32768 + i * 1024))
            a("s_mul_i32 s57, s%d, %d" % (sl, kc * 128 + 4 * i))
            a("s_add_u32 s57, s57, s%d" % sc)
            a("buffer_load_dwordx4 v%d, %s, s57 offen lds" % (voff, sr(base, 4)))

    def reads(kc, s, setidx):
        hi = 4 if kc >= 2 else 0
        off = (kc & 1) * 32768 + (s >> 1) * 8192 + (s & 1) * 2048
        for nt in range(4):
            for ird in range(2):
                a("ds_read_b64_tr_b16 %s, v%d offset:%d" % (
                    vr(V_B + setidx * 16 + nt * 4 + ird * 2, 2), V_TR + hi + nt, off + ird * 1024))

    def epi_part(kind, nt):
        if kind == "Q":
            for i in range(16):
                a("v_mul_f32 v%d, v%d, v%d" % (V_ACC + 16 * nt + i, V_LNR + 1, V_ACC + 16 * nt + i))
        for t in range(2):
            d = V_ACC + 16 * nt + 8 * t
            for p in range(4):
                x0 = V_ACC + 16 * nt + 8 * t + 2 * p
                a("v_cvt_pk_bf16_f32 v%d, v%d, v%d" % (d + p, x0, x0 + 1))
            a("buffer_store_dwordx4 %s, v%d, s[16:19], s%d offen offset:%d sc1" % (
                vr(d, 4), V_ST, 90 if nt < 2 else 91, ((nt * 2 + t) & 3) * 1024))
        a("s_nop 1")

    def compute(kc, kind, extra=None, prev=None):
        extra = list(extra or [])
        per = -(-len(extra) // 32)
        for s in range(8):
            if s < 7:
                reads(kc, s + 1, (s + 1) & 1)
            else:
                reads((kc + 1) & 3, 0, 0)
            a("s_waitcnt lgkmcnt(8)")
            ks = kc * 8 + s
            for nt in range(4):
                acc = vr(V_ACC + 16 * nt, 16)
                wf = vr(V_B + (s & 1) * 16 + nt * 4, 4)
                af = vr(V_A + 4 * ks, 4)
                c = "0" if ks == 0 else acc
                if prev and ks == 0:
                    epi_part(prev, nt)
                if kind == "V":
                    a("v_mfma_f32_32x32x16_bf16 %s, %s, %s, %s" % (acc, af, wf, c))
                else:
                    a("v_mfma_f32_32x32x16_bf16 %s, %s, %s, %s" % (acc, wf, af, c))
                for x in extra[:per]:
                    a(x)
                extra = extra[per:]
        assert not extra

    def aload_ops(lo, hi):
        ops = []
        for s in range(lo, hi):
            ops.append("buffer_load_dwordx4 %s, v%d, s[8:11], %s offen offset:%d" % (
                vr(V_A + 4 * s, 4), V_AOFF, "s65" if s & 1 else "0", (s >> 1) * 64))
            ops += ["s_nop 0"] * 3
        return ops

    V_LNM = 244
    V_LNR = 246
    V_LNT = 248

    def norm_ops(q):
        ops = []
        for i in range(32 * q, 32 * q + 32):
            r = V_A + i
            t = 20 + 4 * (i & 3)
            ops.append("v_lshlrev_b32 v%d, 16, v%d" % (t, r))
            ops.append("v_and_b32 v%d, 0xffff0000, v%d" % (t + 1, r))
            ops.append("v_pk_add_f32 %s, %s, %s neg_lo:[0,1] neg_hi:[0,1]" % (vr(t, 2), vr(t, 2), vr(V_LNM, 2)))
            ops.append("v_cvt_pk_bf16_f32 v%d, v%d, v%d" % (r, t, t + 1))
        return ops

    def epilogue(kind):
        if kind == "H":
            a("s_waitcnt lgkmcnt(0)")
            a("v_lshrrev_b32 v15, 5, v1")
            a("v_lshlrev_b32 v15, 3, v15")
            for nt in range(4):
                for q in range(4):
                    a("buffer_load_dwordx2 %s, v15, s[20:23], s53 offen offset:%d" % (
                        vr(V_B + (nt * 4 + q) * 2, 2), 64 * nt + 16 * q))
            a.nop(12)
            for i in range(64):
                a("v_mul_f32 v%d, v%d, v%d" % (V_ACC + i, V_LNR, V_ACC + i))
            a("s_waitcnt vmcnt(0)")
            for nt in range(4):
                for q in range(4):
                    r0 = V_ACC + 16 * nt + 4 * q
                    b0 = V_B + (nt * 4 + q) * 2
                    for p in range(2):
                        x0, x1 = r0 + 2 * p, r0 + 2 * p + 1
                        bb = b0 + p
                        a("v_cvt_pk_bf16_f32 v15, v%d, v%d" % (x0, x1))
                        a("v_lshlrev_b32 v%d, 16, v15" % x0)
                        a("v_and_b32 v%d, 0xffff0000, v15" % x1)
                        a("v_lshlrev_b32 v15, 16, v%d" % bb)
                        a("v_add_f32 v%d, v%d, v15" % (x0, x0))
                        a("v_and_b32 v15, 0xffff0000, v%d" % bb)
                        a("v_add_f32 v%d, v%d, v15" % (x1, x1))
                        a("v_cvt_pk_bf16_f32 v15, v%d, v%d" % (x0, x1))
                        a("v_lshlrev_b32 v%d, 16, v15" % x0)
                        a("v_and_b32 v%d, 0xffff0000, v15" % x1)
                        a("v_max_f32 v%d, 0, v%d" % (x0, x0))
                        a("v_max_f32 v%d, 0, v%d" % (x1, x1))
                        a("v_mul_f32 v%d, v%d, v%d" % (x0, x0, x0))
                        a("v_mul_f32 v%d, v%d, v%d" % (x1, x1, x1))
        else:
            a.nop(12)
        if kind == "Q":
            for i in range(64):
                a("v_mul_f32 v%d, v%d, v%d" % (V_ACC + i, V_LNR + 1, V_ACC + i))
        a("s_add_u32 s67, s56, 4096")
        for nt in range(4):
            for t in range(2):
                d = V_ACC + 16 * nt + 8 * t
                for p in range(4):
                    x0 = V_ACC + 16 * nt + 8 * t + 2 * p
                    a("v_cvt_pk_bf16_f32 v%d, v%d, v%d" % (d + p, x0, x0 + 1))
                a("buffer_store_dwordx4 %s, v%d, s[16:19], s%d offen offset:%d sc1" % (
                    vr(d, 4), V_ST, 56 if nt < 2 else 67, ((nt * 2 + t) & 3) * 1024))
        a.nop(2)

    def chunk(kind, set_next, set_out, prev=None, defer=False):
        waits = (4, 12, 12, 4) if prev else (4, 4, 4, 4)
        if prev:
            a("s_mov_b32 s90, s56")
            a("s_add_u32 s91, s56, 4096")
        set_next()
        set_out()
        for kc in range(4):
            a("s_waitcnt vmcnt(%d)" % waits[kc])
            a("s_barrier")
            if kc < 1:
                dma(kc + 3, "cur")
            else:
                dma(kc - 1, "next")
            if kc == 0:
                a.stamp()
            compute(kc, kind, None, prev)
        a.stamp()
        if not defer:
            epilogue(kind)
        a.stamp()
        for i in range(3):
            a("s_mov_b32 s%d, s%d" % (12 + i, 48 + i))
        a("s_mov_b32 s52, s54")
        a("s_mov_b32 s53, s55")
        a("v_mov_b32 v%d, v%d" % (V_OFFC, V_OFFN))

    a("s_lshl_b32 s61, s4, 8")
    a("s_add_u32 s62, s61, 4096")
    a("s_lshl_b32 s63, s4, 19")
    a("s_lshl_b32 s64, s59, 13")
    a("s_add_u32 s63, s63, s64")
    a("v_and_b32 v24, 31, v1")
    a("v_lshrrev_b32 v25, 5, v1")
    a("v_xor_b32 v26, v24, v25")
    a("v_lshlrev_b32 v26, 4, v26")
    a("v_lshl_add_u32 v26, v25, 10, v26")
    a("s_lshl_b32 s60, s59, 15")
    a("v_add_u32 v28, s60, v26")
    a("s_lshl_b32 s66, s6, 14")
    a("s_add_u32 s66, s66, 32768")
    a("v_lshlrev_b32 v26, 4, v24")
    a("v_lshlrev_b32 v27, 5, v25")
    a("v_xor_b32 v26, v26, v27")
    a("v_lshl_add_u32 v26, v24, 9, v26")
    a("v_add_u32 v29, s66, v26")

    def a_dma(half):
        for i in range(16):
            a("v_xor_b32 v%d, %d, v28" % (30 + (i & 3), 32 * i))
            a("s_add_u32 m0, s66, %d" % (1024 * i))
            a("s_movk_i32 s67, %d" % (2048 * i + 512 * half))
            a("buffer_load_dwordx4 v%d, s[8:11], s67 offen lds" % (30 + (i & 3)))

    def a_read(half):
        for s_ in range(16):
            ks = (4 * (s_ >> 1) + (s_ & 1)) * 16
            a("v_xor_b32 v%d, %d, v29" % (30 + (s_ & 3), ks))
            a("ds_read_b128 %s, v%d" % (vr(V_A + 4 * (16 * half + s_), 4), 30 + (s_ & 3)))

    def stats(q):
        for i in range(32 * q, 32 * q + 32):
            r = V_A + i
            t = 20 + 2 * (i & 3)
            a("v_lshlrev_b32 v%d, 16, v%d" % (t, r))
            a("v_and_b32 v%d, 0xffff0000, v%d" % (t + 1, r))
            a("v_pk_add_f32 v[16:17], v[16:17], %s" % vr(t, 2))
            a("v_pk_fma_f32 v[18:19], %s, %s, v[18:19]" % (vr(t, 2), vr(t, 2)))

    a_dma(0)
    a("s_cmp_eq_u32 s5, 1")
    a("s_cbranch_scc1 proj_ckv")
    a("s_mov_b32 s46, 0x3f803f80")
    a("s_mov_b32 s47, 0x00003f80")
    a("s_mov_b32 s7, 0x3f800000")
    set_params("cur", 28, 29, 0x400000, 8192, "s61")
    dma(0, "cur")
    a("v_mov_b32 v16, 0")
    a("v_mov_b32 v17, 0")
    a("v_mov_b32 v18, 0")
    a("v_mov_b32 v19, 0")
    a("s_waitcnt vmcnt(4)")
    a_read(0)
    a("s_waitcnt lgkmcnt(0)")
    a_dma(1)
    stats(0)
    stats(1)
    a("s_waitcnt vmcnt(0)")
    a_read(1)
    a("s_waitcnt lgkmcnt(0)")
    a("s_barrier")
    dma(1, "cur")
    dma(2, "cur")
    stats(2)
    stats(3)
    a.stamp()
    a("v_add_f32 v16, v16, v17")
    a("v_add_f32 v18, v18, v19")
    a("v_mov_b32 v17, v16")
    a("v_mov_b32 v19, v18")
    a.nop(2)
    a("v_permlane32_swap_b32 v16, v17")
    a("v_permlane32_swap_b32 v18, v19")
    a.nop(2)
    a("v_add_f32 v16, v16, v17")
    a("v_add_f32 v18, v18, v19")
    a("v_mul_f32 v16, 0x3b000000, v16")
    a("v_mul_f32 v18, 0x3b000000, v18")
    a("v_fma_f32 v18, -v16, v16, v18")
    a("v_max_f32 v18, 0, v18")
    a("v_cvt_pk_bf16_f32 v16, v16, v18")
    a("v_and_b32 v18, 0xffff0000, v16")
    a("v_lshlrev_b32 v16, 16, v16")
    a("v_add_f32 v18, 0x3727c5ac, v18")
    a("v_cvt_pk_bf16_f32 v18, v18, v18")
    a("v_lshlrev_b32 v18, 16, v18")
    a("v_sqrt_f32 v18, v18")
    a("s_nop 0")
    a("v_cvt_pk_bf16_f32 v18, v18, v18")
    a("v_lshlrev_b32 v18, 16, v18")
    a("v_rcp_f32 v18, v18")
    a("v_mov_b32 v%d, v16" % V_LNM)
    a("v_mov_b32 v%d, v16" % (V_LNM + 1))
    a("v_mov_b32 v%d, v18" % V_LNR)
    a("v_mul_f32 v%d, 0x%08x, v18" % (V_LNR + 1, QSC))
    for q in range(4):
        for x in norm_ops(q):
            a(x)
    reads(0, 0, 0)
    a.stamp()

    def out_q0():
        a("s_add_u32 s56, s63, 0x%x" % QF)

    def out_q1():
        a("s_add_u32 s56, s63, 0x%x" % (QF + 16 * 512 * 1024))

    def next_q1():
        set_params("next", 28, 29, 0x400000, 8192, "s62")

    def next_h():
        a("s_cmp_lt_u32 s4, 14")
        a("s_cselect_b32 s66, 0x1c0000, 0")
        set_params("next", 38, 39, "s66", 3584, "s61")

    def next_none():
        a("s_mov_b32 s66, 0")
        set_params("next", 38, 39, "s66", 3584, "s61")

    def out_h():
        a("s_mul_i32 s56, s59, %d" % AF_BLK)
        a("s_lshl_b32 s66, s4, 13")
        a("s_add_u32 s56, s56, s66")
        a("s_add_u32 s56, s56, 0x%x" % (AF + 256 * 1024))

    chunk("Q", next_q1, out_q0, None, True)
    chunk("Q", next_h, out_q1, "Q", True)
    a("s_cmp_lt_u32 s4, 14")
    a("s_cbranch_scc1 proj_h")
    epilogue("Q")
    a("s_branch proj_end")
    a.label("proj_h")
    chunk("H", next_none, out_h, "Q", False)
    a.stamp_flush(0)
    a("s_branch proj_end")
    a.nst = 2

    a.label("proj_ckv")
    set_params("cur", 30, 31, 0x400000, 8192, "s61")
    dma(0, "cur")
    a("s_waitcnt vmcnt(4)")
    a_read(0)
    a("s_waitcnt lgkmcnt(0)")
    a_dma(1)
    a("s_waitcnt vmcnt(0)")
    a_read(1)
    a("s_waitcnt lgkmcnt(0)")
    a("s_barrier")
    dma(1, "cur")
    dma(2, "cur")
    reads(0, 0, 0)

    def out_k0():
        a("s_add_u32 s56, s63, 0x%x" % KF)

    def out_k1():
        a("s_add_u32 s56, s63, 0x%x" % (KF + 16 * 512 * 1024))

    def out_v0():
        a("s_add_u32 s56, s63, 0x%x" % VF)

    def out_v1():
        a("s_add_u32 s56, s63, 0x%x" % (VF + 16 * 512 * 1024))

    chunk("QK", lambda: set_params("next", 30, 31, 0x400000, 8192, "s62"), out_k0, None, True)
    chunk("QK", lambda: set_params("next", 32, 33, 0x400000, 8192, "s61"), out_k1, "QK", True)
    chunk("V", lambda: set_params("next", 32, 33, 0x400000, 8192, "s62"), out_v0, "QK", True)
    chunk("V", next_none, out_v1, "V", False)
    a.stamp_flush(int(STAMP) if STAMP else 0)
    a.label("proj_end")
    a.gridbar(0)


def descriptor(a, name, vgpr, sgpr, accum):
    a.raw(".p2align 6")
    a.raw(".amdhsa_kernel %s" % name)
    a.raw("  .amdhsa_next_free_vgpr %d" % vgpr)
    a.raw("  .amdhsa_next_free_sgpr %d" % sgpr)
    a.raw("  .amdhsa_accum_offset %d" % accum)
    a.raw("  .amdhsa_group_segment_fixed_size 0")
    a.raw("  .amdhsa_kernarg_size 112")
    a.raw("  .amdhsa_user_sgpr_count 2")
    a.raw("  .amdhsa_user_sgpr_kernarg_segment_ptr 1")
    a.raw("  .amdhsa_system_sgpr_workgroup_id_x 1")
    a.raw(".end_amdhsa_kernel")


def main():
    from gen_rest import gen_attn, gen_ogemm, gen_reduce
    a = Asm()
    hdr = open("cdna_kernels/%s.s.ref" % NAME).read().split("\n")
    for l in hdr:
        if l.startswith(";") and "@launch" not in l:
            a.raw(l)
        elif not l.startswith(";"):
            break
    a.raw("; @launch kernel=mega_kernel grid=(256,1,1) block=(512,1,1) lds=163840")
    a.raw('.amdgcn_target "amdgcn-amd-amdhsa--gfx950"')
    a.raw(".text")
    a.raw(".globl mega_kernel")
    a.raw(".p2align 8")
    a.raw(".type mega_kernel,@function")
    gen_proj(a)
    gen_attn(a)
    gen_ogemm(a)
    gen_reduce(a)
    a.raw('.section .rodata,"a"')
    descriptor(a, "mega_kernel", 256, 102, 256)
    out = sys.argv[1] if len(sys.argv) > 1 else "cdna_kernels/%s.s" % NAME
    open(out, "w").write("\n".join(a.lines) + "\n")


if __name__ == "__main__":
    main()
```

```python
from gen import vr, sr, QF, KF, VF, AF, AF_BLK, PART, CTR
import math
import os
EXP = os.environ.get("EXP", "")

SCALE_LOG2E = (128 ** -0.5) * math.log2(math.e)


def f32hex(x):
    import struct
    return "0x%08x" % struct.unpack("<I", struct.pack("<f", x))[0]


def interleave(a, mf, fl):
    n = len(mf)
    pos = 0
    for i in range(n):
        a(mf[i])
        end = (len(fl) * (i + 1)) // n
        while pos < end:
            a(fl[pos])
            pos += 1


def gen_attn(a):
    V_LDS = 2
    V_DMA = 3
    V_LG = 4
    V_NEG = 5
    V_RDV = 6
    V_RDK = 7
    V_M = 8
    V_L = 9
    V_T = 10
    V_Q = 16
    V_O = 48
    V_S = 112
    V_P = 144
    V_K = 152
    V_V = 184
    S_MASK = 36
    S_LB = 35
    S_THR = 34
    V_C = 216
    V_E = 232
    NBUF = 5
    LDSZ = NBUF * 32768

    a.label("attn_kernel")
    a.stamp()
    a("s_load_dwordx2 s[8:9], s[0:1], 104")
    a("v_lshrrev_b32 v1, 6, v0")
    a("s_nop 0")
    a("v_readfirstlane_b32 s6, v1")
    a("v_and_b32 v1, 63, v0")
    a("s_lshr_b32 s22, s6, 2")
    a("s_and_b32 s23, s6, 3")
    a("s_and_b32 s3, s2, 7")
    a("s_lshl_b32 s3, s3, 2")
    a("s_lshr_b32 s4, s2, 3")
    a("s_and_b32 s4, s4, 3")
    a("s_add_u32 s3, s3, s4")
    a("s_lshr_b32 s4, s2, 5")
    a("s_sub_u32 s5, 15, s4")
    a("s_mov_b32 s24, 0")
    a("s_mov_b32 s77, 1000000")
    a("s_mov_b32 s10, 0x10000000")
    a("s_mov_b32 s11, 0x20000")
    a("s_lshl_b32 s12, s3, 19")
    a("v_lshlrev_b32 v%d, 4, v1" % V_LDS)
    a("s_lshl_b32 s13, s23, 11")
    a("s_lshl_b32 s25, s22, 13")
    a("s_add_u32 s25, s25, s13")
    a("v_add_u32 v%d, s25, v%d" % (V_DMA, V_LDS))
    a("s_lshl_b32 s26, s22, 14")
    a("v_add_u32 v%d, s26, v%d" % (V_LG, V_LDS))
    a("s_add_u32 s27, s26, s13")
    a("v_and_b32 v12, 31, v1")
    a("v_lshrrev_b32 v13, 5, v1")
    a("v_lshlrev_b32 v13, 2, v13")
    a("v_sub_u32 v12, v12, v13")
    for r in range(16):
        kl = 8 * (r >> 2) + (r & 3)
        a("v_cmp_le_i32 %s, %d, v12" % (sr(S_MASK + 2 * r, 2), kl))
    a("v_mov_b32 v%d, 0xf149f2ca" % V_NEG)
    a("s_waitcnt lgkmcnt(0)")

    def bump(sreg):
        return ["s_add_u32 s%d, s%d, 32768" % (sreg, sreg),
                "s_cmp_ge_u32 s%d, %d" % (sreg, LDSZ),
                "s_cselect_b32 s%d, 0, s%d" % (sreg, sreg)]

    def dma_ops():
        ops = []
        ops.append("s_add_u32 m0, s27, s28")
        ops.append("s_nop 0")
        for i in range(2):
            ops.append("buffer_load_dwordx4 v%d, s[8:11], s16 offen offset:%d lds" % (V_DMA, i * 1024))
        ops.append("s_add_u32 m0, m0, 8192")
        ops.append("s_add_u32 s16, s16, 16384")
        for i in range(2):
            ops.append("buffer_load_dwordx4 v%d, s[8:11], s17 offen offset:%d lds" % (V_DMA, i * 1024))
        ops.append("s_add_u32 s17, s17, 16384")
        ops += bump(28)
        return ops

    def dma():
        for x in dma_ops():
            a(x)

    def tstamp(k):
        if not os.environ.get("STAMP"):
            return
        a("s_memtime s[98:99]")
        a("s_waitcnt lgkmcnt(0)")
        a("s_cmp_eq_u32 s24, 0")
        a("s_cselect_b32 s%d, s98, s%d" % (69 + k, 69 + k))
        a("s_cselect_b32 s%d, s%d, s98" % (73 + k, 73 + k))

    def kread_ops():
        return ["ds_read_b128 %s, v%d offset:%d" % (vr(V_K + 4 * s, 4), V_RDK, s * 1024) for s in range(8)] + \
            bump(33) + ["v_add_u32 v%d, s33, v%d" % (V_RDK, V_LG)]

    def vread_ops():
        return ["ds_read_b128 %s, v%d offset:%d" % (vr(V_V + 4 * i, 4), V_RDV, 8192 + i * 1024) for i in range(8)] + \
            bump(32) + ["v_add_u32 v%d, s32, v%d" % (V_RDV, V_LG)]

    def qk_ops(sp):
        ops = []
        S = V_S + 16 * sp
        for s in range(8):
            c = vr(V_C, 16) if s == 0 else vr(S, 16)
            ops.append("v_mfma_f32_32x32x16_bf16 %s, %s, %s, %s" % (vr(S, 16), vr(V_K + 4 * s, 4), vr(V_Q + 4 * s, 4), c))
        return ops

    def pv_ops():
        ops = []
        for t in range(2):
            for dt in range(4):
                o = vr(V_O + 16 * dt, 16)
                ops.append("v_mfma_f32_32x32x16_bf16 %s, %s, %s, %s" % (o, vr(V_V + 4 * (dt * 2 + t), 4), vr(V_P + 4 * t, 4), o))
        return ops

    def max_ops(S, t0, t1):
        return ["v_max3_f32 v%d, v%d, v%d, v%d" % (t0, S, S + 1, S + 2),
                "v_max3_f32 v%d, v%d, v%d, v%d" % (t1, S + 3, S + 4, S + 5),
                "v_max3_f32 v%d, v%d, v%d, v%d" % (t0, t0, S + 6, S + 7),
                "v_max3_f32 v%d, v%d, v%d, v%d" % (t1, t1, S + 8, S + 9),
                "v_max3_f32 v%d, v%d, v%d, v%d" % (t0, t0, S + 10, S + 11),
                "v_max3_f32 v%d, v%d, v%d, v%d" % (t1, t1, S + 12, S + 13),
                "v_max3_f32 v%d, v%d, v%d, v%d" % (t0, t0, S + 14, S + 15),
                "v_max_f32 v%d, v%d, v%d" % (t0, t0, t1),
                "v_mov_b32 v%d, v%d" % (t1, t0)]

    def soft_ops(S, t2, t3):
        P = V_P
        E = V_E
        vb = []
        for r in range(16):
            vb.append("v_exp_f32 v%d, v%d" % (E + r, S + r))
            if r >= 3 and r % 2 == 1:
                q = r - 3
                vb.append("v_cvt_pk_bf16_f32 v%d, v%d, v%d" % (P + q // 2, E + q, E + q + 1))
                if q == 0:
                    vb.append("v_add_f32 v%d, v%d, v%d" % (t2, E, E + 1))
                elif q == 2:
                    vb.append("v_add_f32 v%d, v%d, v%d" % (t3, E + 2, E + 3))
                else:
                    vb.append("v_add_f32 v%d, v%d, v%d" % (t2, t2, E + q))
                    vb.append("v_add_f32 v%d, v%d, v%d" % (t3, t3, E + q + 1))
        vb.append("v_add_f32 v%d, v%d, v%d" % (t2, t2, t3))
        vb.append("v_cvt_pk_bf16_f32 v%d, v%d, v%d" % (P + 7, E + 14, E + 15))
        vb.append("v_add_f32 v%d, v%d, v%d" % (t3, E + 14, E + 15))
        vb.append("v_add_f32 v%d, v%d, v%d" % (t2, t2, t3))
        return vb

    cnt = [0]
    rare = []

    def phaseA(sp, diag):
        cnt[0] += 1
        L = "attn_it%d" % cnt[0]
        S = V_S + 16 * sp
        T = V_T
        if diag:
            a("s_lshl_b32 s29, s18, 1")
            a("s_add_u32 s29, s29, s22")
            a("s_cmp_lt_u32 s29, s30")
            a("s_cbranch_scc1 %s_nomask" % L)
            a("s_cmp_eq_u32 s29, s30")
            a("s_cbranch_scc1 %s_tri" % L)
            for r in range(16):
                a("v_mov_b32 v%d, v%d" % (S + r, V_NEG))
            a("s_branch %s_nomask" % L)
            a.label("%s_tri" % L)
            for r in range(16):
                a("v_cndmask_b32 v%d, v%d, v%d, %s" % (S + r, V_NEG, S + r, sr(S_MASK + 2 * r, 2)))
            a.label("%s_nomask" % L)
        qk = qk_ops(sp ^ 1)
        S2 = V_S + 16 * (sp ^ 1)
        so = soft_ops(S, T + 3, T + 4)
        vrd = vread_ops()
        mix = []
        step = len(so) // len(vrd)
        k = 0
        for i, x in enumerate(so):
            mix.append(x)
            if i % step == step - 1 and k < len(vrd):
                mix.append(vrd[k])
                k += 1
        mix += vrd[k:]
        interleave(a, qk, mix)
        a("v_cmp_lt_f32 vcc, s%d, v%d" % (S_THR, T + 3))
        a("s_nop 1")
        a("s_cbranch_vccnz %s_rs" % L)
        a.label("%s_nors" % L)
        a("v_add_f32 v%d, v%d, v%d" % (V_L, V_L, T + 3))
        blk = ["%s_rs:" % L]
        if os.environ.get("STAMP"):
            blk.append("s_add_u32 s77, s77, 1")
        blk += max_ops(S, T, T + 1)
        blk += ["s_nop 1",
                "v_permlane32_swap_b32 v%d, v%d" % (T, T + 1),
                "s_nop 0",
                "v_max3_f32 v%d, v%d, v%d, s%d" % (T, T, T + 1, S_LB),
                "v_exp_f32 v%d, -v%d" % (T + 1, T),
                "v_add_f32 v%d, v%d, v%d" % (V_M, V_M, T),
                "v_min_f32 v%d, 0x7149f2ca, v%d" % (T + 1, T + 1),
                "s_mov_b32 s%d, 0x53800000" % S_THR,
                "s_mov_b32 s%d, 0" % S_LB,
                "v_mul_f32 v%d, v%d, v%d" % (V_L, V_L, T + 1)]
        for i in range(64):
            blk.append("v_mul_f32 v%d, v%d, v%d" % (V_O + i, V_O + i, T + 1))
        for r in range(16):
            blk.append("v_sub_f32 v%d, v%d, v%d" % (S + r, S + r, T))
        blk += so
        for r in range(16):
            blk.append("v_sub_f32 v%d, v%d, v%d" % (V_C + r, V_C + r, T))
        for r in range(16):
            blk.append("v_sub_f32 v%d, v%d, v%d" % (S2 + r, S2 + r, T))
        blk.append("s_branch %s_nors" % L)
        rare.append(blk)
        a("s_add_u32 s18, s18, 1")

    def phaseC(last=False):
        a("s_waitcnt lgkmcnt(0)")
        a("s_nop 0")
        f = [] if last else kread_ops() + dma_ops()
        interleave(a, pv_ops(), f)

    def bar():
        a("s_waitcnt vmcnt(4) lgkmcnt(0)")
        a("s_barrier")

    def tile_front(qt):
        a("s_lshl_b32 s15, s%d, 2" % qt)
        a("s_add_u32 s15, s15, s23")
        a("s_lshl_b32 s15, s15, 13")
        a("s_add_u32 s15, s15, s12")
        for k in range(2):
            for s in range(4):
                a("buffer_load_dwordx4 %s, v%d, s[8:11], s15 offen offset:%d" % (vr(V_Q + 16 * k + 4 * s, 4), V_LDS, s * 1024))
            a("s_add_u32 s15, s15, 4096")
        a("s_add_u32 s16, s12, 0x%x" % KF)
        a("s_add_u32 s17, s12, 0x%x" % VF)
        a("s_mov_b32 s28, 98304")
        dma()
        dma()

    tile_front(5)
    a.label("attn_tile")
    a("s_lshl_b32 s14, s5, 2")
    a("s_add_u32 s14, s14, s23")
    a("s_mov_b32 s30, s14")
    dma()
    dma()
    a("s_mov_b32 s32, 98304")
    a("s_mov_b32 s33, 98304")
    a("v_add_u32 v%d, s32, v%d" % (V_RDV, V_LG))
    a("v_add_u32 v%d, s32, v%d" % (V_RDK, V_LG))
    a("v_mov_b32 v%d, 0" % V_M)
    a("s_mov_b32 s%d, 0xbf800000" % S_THR)
    a("s_mov_b32 s%d, 0xff7fffff" % S_LB)
    for i in range(16):
        a("v_mov_b32 v%d, 0" % (V_C + i))
    a("v_mov_b32 v%d, 0" % V_L)
    for i in range(64):
        a("v_mov_b32 v%d, 0" % (V_O + i))
    a("s_lshl_b32 s19, s5, 1")
    a("s_mov_b32 s18, 0")
    a("s_waitcnt vmcnt(12)")
    a("s_cmp_eq_u32 s24, 1")
    a("s_cbranch_scc1 attn_w2")
    a("s_waitcnt vmcnt(8)")
    a.label("attn_w2")
    a("s_barrier")
    tstamp(0)
    for x in kread_ops():
        a(x)
    a("s_waitcnt lgkmcnt(0)")
    for x in qk_ops(0):
        a(x)
    for x in kread_ops():
        a(x)
    a("s_cmp_eq_u32 s22, 1")
    a("s_cbranch_scc1 attn_g1")
    a("s_cmp_eq_u32 s5, 0")
    a("s_cbranch_scc1 attn_diag0")
    a.label("attn_loop0")
    a.inloop = "og" not in EXP
    for sp in range(2):
        bar()
        a("s_waitcnt lgkmcnt(0)")
        phaseA(sp, False)
        phaseC()
    a.inloop = False
    a("s_cmp_lt_u32 s18, s19")
    a("s_cbranch_scc1 attn_loop0")
    a.label("attn_diag0")
    tstamp(1)
    for sp in range(2):
        bar()
        a("s_waitcnt lgkmcnt(0)")
        phaseA(sp, True)
        phaseC()
    tstamp(2)
    a("s_branch attn_merge")
    a.label("attn_g1")
    bar()
    dma()
    a("s_waitcnt lgkmcnt(0)")
    a("s_cmp_eq_u32 s5, 0")
    a("s_cbranch_scc1 attn_diag1a")
    phaseA(0, False)
    a.label("attn_loop1")
    a.inloop = "og" not in EXP
    bar()
    phaseC()
    a("s_waitcnt lgkmcnt(0)")
    phaseA(1, False)
    a.inloop = False
    a("s_cmp_ge_u32 s18, s19")
    a("s_cbranch_scc1 attn_diag1")
    a.inloop = "og" not in EXP
    bar()
    phaseC()
    a("s_waitcnt lgkmcnt(0)")
    phaseA(0, False)
    a.inloop = False
    a("s_branch attn_loop1")
    a.label("attn_diag1")
    bar()
    phaseC()
    a("s_waitcnt lgkmcnt(0)")
    a.label("attn_diag1a")
    phaseA(0, True)
    bar()
    phaseC()
    a("s_waitcnt lgkmcnt(0)")
    phaseA(1, True)
    phaseC(last=True)
    a.label("attn_merge")
    a("s_waitcnt vmcnt(0) lgkmcnt(0)")
    a("s_barrier")
    a("s_cmp_eq_u32 s24, 1")
    a("s_cbranch_scc1 attn_nofront")
    tile_front(4)
    a.label("attn_nofront")
    a.nop(12)
    a("s_mul_i32 s29, s6, 9216")
    a("v_add_u32 v12, s29, v%d" % V_LDS)
    a("s_xor_b32 s31, s6, 4")
    a("s_mul_i32 s29, s31, 9216")
    a("v_add_u32 v13, s29, v%d" % V_LDS)
    for g in range(2):
        if g == 0:
            a("s_cmp_eq_u32 s22, 1")
            a("s_cbranch_scc1 attn_mg1")
        else:
            a.label("attn_mg1")
        keep, send = V_O + 32 * g, V_O + 32 * (1 - g)
        for i in range(8):
            a("ds_write_b128 v12, %s offset:%d" % (vr(send + 4 * i, 4), i * 1024))
        a("ds_write_b64 v12, v[%d:%d] offset:8192" % (V_M, V_L))
        a("s_waitcnt lgkmcnt(0)")
        a("s_barrier")
        a("ds_read_b64 v[14:15], v13 offset:8192")
        for i in range(8):
            a("ds_read_b128 %s, v13 offset:%d" % (vr(V_K + 4 * i, 4), i * 1024))
        a("s_waitcnt lgkmcnt(8)")
        a("v_max_f32 v10, v%d, v14" % V_M)
        a("v_sub_f32 v11, v%d, v10" % V_M)
        a("v_sub_f32 v10, v14, v10")
        a("v_exp_f32 v11, v11")
        a("v_exp_f32 v10, v10")
        a.nop(1)
        a("v_mul_f32 v%d, v%d, v11" % (V_L, V_L))
        a("v_fma_f32 v%d, v15, v10, v%d" % (V_L, V_L))
        a("v_mov_b32 v14, v%d" % V_L)
        a.nop(2)
        a("v_permlane32_swap_b32 v%d, v14" % V_L)
        a.nop(1)
        a("v_add_f32 v14, v14, v%d" % V_L)
        a("v_rcp_f32 v14, v14")
        a.nop(1)
        a("v_mul_f32 v11, v11, v14")
        a("v_mul_f32 v10, v10, v14")
        a("s_mul_i32 s20, s14, %d" % AF_BLK)
        a("s_lshl_b32 s21, s3, 13")
        a("s_add_u32 s20, s20, s21")
        a("s_add_u32 s20, s20, 0x%x" % (AF + 4096 * g))
        a("s_waitcnt lgkmcnt(0)")
        for i in range(32):
            a("v_mul_f32 v%d, v%d, v10" % (V_K + i, V_K + i))
            a("v_fma_f32 v%d, v%d, v11, v%d" % (V_K + i, keep + i, V_K + i))
        for k in range(4):
            d = V_V + k * 4
            for p in range(4):
                x0 = V_K + 8 * k + 2 * p
                a("v_cvt_pk_bf16_f32 v%d, v%d, v%d" % (d + p, x0, x0 + 1))
            a("buffer_store_dwordx4 %s, v%d, s[8:11], s20 offen offset:%d sc1" % (vr(d, 4), V_LDS, k * 1024))
        if g == 0:
            a("s_branch attn_mgdone")
    a.label("attn_mgdone")
    tstamp(3)
    a.nst = 10
    a("s_cmp_eq_u32 s24, 1")
    a("s_cbranch_scc1 attn_fin")
    a("s_mov_b32 s24, 1")
    a("s_mov_b32 s5, s4")
    a("s_barrier")
    a("s_branch attn_tile")
    a.label("attn_fin")
    a.stamp_flush(0)
    a.label("attn_end")
    a("s_branch attn_after")
    for blk in rare:
        a.label(blk[0][:-1])
        for x in blk[1:]:
            a(x)
    a.label("attn_after")
    a("s_waitcnt vmcnt(0) lgkmcnt(0)")
    a("s_barrier")
    a.phase = 2


def gen_ogemm(a):
    V_AL = 2
    V_TR = 4
    V_DA = 8
    V_DB = 9
    V_ST = 11
    V_F = 16
    V_ACC = 48
    NST = 23
    a.label("ogemm_kernel")
    a.stamp()
    a("s_load_dwordx2 s[8:9], s[0:1], 104")
    a("s_load_dwordx2 s[24:25], s[0:1], 40")
    a("s_load_dwordx2 s[26:27], s[0:1], 72")
    a("v_lshrrev_b32 v1, 6, v0")
    a("s_nop 0")
    a("v_readfirstlane_b32 s6, v1")
    a("v_and_b32 v1, 63, v0")
    a("s_lshr_b32 s3, s2, 4")
    a("s_and_b32 s4, s2, 1")
    a("s_lshl_b32 s4, s4, 1")
    a("s_bfe_u32 s5, s2, 0x10003")
    a("s_or_b32 s4, s4, s5")
    a("s_bfe_u32 s5, s2, 0x20001")
    if "same" in EXP:
        a("s_mov_b32 s3, 0")
        a("s_mov_b32 s4, 0")
        a("s_mov_b32 s5, 0")
    if "map1" not in EXP:
        a("s_and_b32 s3, s2, 1")
        a("s_lshl_b32 s3, s3, 3")
        a("s_bfe_u32 s4, s2, 0x30003")
        a("s_or_b32 s3, s3, s4")
        a("s_lshr_b32 s4, s2, 6")
    a("s_mov_b32 s10, 0x10000000")
    a("s_mov_b32 s11, 0x20000")
    a("s_mov_b32 s15, 0x20000")
    a("s_lshr_b32 s30, s6, 2")
    a("s_lshr_b32 s31, s6, 1")
    a("s_and_b32 s31, s31, 1")
    a("s_and_b32 s32, s6, 1")
    a("v_lshlrev_b32 v%d, 4, v1" % V_ST)
    a("s_lshl_b32 s33, s31, 13")
    a("s_lshl_b32 s34, s30, 11")
    a("s_add_u32 s33, s33, s34")
    a("v_add_u32 v%d, s33, v%d" % (V_AL, V_ST))
    a("v_add_u32 v%d, 0x10000, v%d" % (V_AL + 1, V_AL))
    a("v_bfe_u32 v12, v1, 2, 2")
    a("v_lshrrev_b32 v13, 5, v1")
    a("v_lshl_add_u32 v13, v13, 2, v12")
    a("v_lshlrev_b32 v13, 8, v13")
    a("v_bfe_u32 v14, v1, 4, 1")
    a("v_lshl_add_u32 v13, v14, 5, v13")
    a("v_and_b32 v14, 3, v1")
    a("v_lshl_add_u32 v13, v14, 3, v13")
    a("s_lshl_b32 s33, s30, 13")
    a("s_add_u32 s33, s33, 16384")
    a("v_add_u32 v13, s33, v13")
    a("v_lshlrev_b32 v12, 6, v12")
    a("s_lshl_b32 s34, s32, 7")
    for ntl in range(2):
        a("s_add_u32 s35, s34, %d" % (ntl << 6))
        a("v_xor_b32 v14, s35, v12")
        a("v_add_u32 v%d, v13, v14" % (V_TR + ntl))
        a("v_add_u32 v%d, 0x10000, v%d" % (V_TR + 2 + ntl, V_TR + ntl))
    a("s_lshr_b32 s33, s6, 1")
    a("s_lshl_b32 s34, s3, 2")
    a("s_add_u32 s34, s34, s33")
    a("s_mul_i32 s34, s34, %d" % AF_BLK)
    a("s_lshl_b32 s35, s32, 11")
    a("s_add_u32 s34, s34, s35")
    a("s_add_u32 s34, s34, 0x%x" % AF)
    a("v_add_u32 v%d, s34, v%d" % (V_DA, V_ST))
    a("s_lshl_b32 s36, s6, 11")
    a("v_lshrrev_b32 v12, 4, v1")
    a("v_bfe_u32 v13, v1, 2, 2")
    a("v_xor_b32 v13, v13, v12")
    a("v_lshlrev_b32 v13, 6, v13")
    a("v_and_b32 v14, 3, v1")
    a("v_lshl_add_u32 v13, v14, 4, v13")
    a("s_lshl_b32 s33, s6, 3")
    a("v_add_u32 v12, s33, v12")
    a("v_lshlrev_b32 v12, 10, v12")
    a("v_add_u32 v12, v12, v13")
    a("s_lshl_b32 s33, s4, 8")
    a("v_add_u32 v%d, s33, v12" % V_DB)
    a("v_add_u32 v%d, 3072, v%d" % (V_DB + 1, V_DB))
    a("s_mov_b32 s42, 0x1c0000")
    a("s_mul_i32 s37, s5, 7")
    a("s_add_u32 s37, s37, 64")
    a("s_lshl_b32 s44, s5, 4")
    a("s_mov_b32 s43, 0")
    a("s_waitcnt lgkmcnt(0)")

    def dma(buf):
        a("s_cmp_lt_u32 s37, 64")
        a("s_cselect_b32 s12, s24, s26")
        a("s_cselect_b32 s13, s25, s27")
        a("s_cselect_b32 s14, 0x400000, s42")
        a("s_cselect_b32 s39, 0, 64")
        a("s_sub_u32 s39, s37, s39")
        a("s_lshl_b32 s39, s39, 16")
        a("s_lshl_b32 s40, s37, 12")
        a("s_cmp_lt_u32 s43, %d" % NST)
        a("s_cselect_b32 s14, s14, 0")
        a("s_cselect_b32 s40, s40, 0x10000000")
        a("s_add_u32 s37, s37, 1")
        a("s_add_u32 s43, s43, 1")
        a("s_cmp_eq_u32 s43, 7")
        a("s_cselect_b32 s37, s44, s37")
        a("s_add_u32 m0, s36, %d" % (buf * 32768))
        a("s_nop 0")
        for i in range(2):
            a("buffer_load_dwordx4 v%d, s[8:11], s40 offen offset:%d lds" % (V_DA, i * 1024))
        a("s_add_u32 m0, s36, %d" % (buf * 32768 + 16384))
        a("s_nop 0")
        for i in range(2):
            a("buffer_load_dwordx4 v%d, s[12:15], s39 offen offset:%d lds" % (V_DB + i, i * 1024))

    def reads(buf, sl, st):
        hi = 1 if buf >= 2 else 0
        bo = (buf & 1) * 32768
        f = V_F + st * 16
        for mbl in range(2):
            a("ds_read_b128 %s, v%d offset:%d" % (vr(f + 4 * mbl, 4), V_AL + hi, bo + mbl * 4096 + sl * 1024))
        for ntl in range(2):
            for ird in range(2):
                a("ds_read_b64_tr_b16 %s, v%d offset:%d" % (
                    vr(f + 8 + 4 * ntl + 2 * ird, 2), V_TR + 2 * hi + ntl, bo + sl * 4096 + ird * 2048))

    def mfmas(st, first):
        f = V_F + st * 16
        for mbl in range(2):
            for ntl in range(2):
                acc = vr(V_ACC + 16 * (mbl * 2 + ntl), 16)
                c = "0" if first else acc
                a("v_mfma_f32_32x32x16_bf16 %s, %s, %s, %s" % (acc, vr(f + 8 + 4 * ntl, 4), vr(f + 4 * mbl, 4), c))

    dma(0)
    dma(1)
    dma(2)
    for i in range(64):
        a("v_mov_b32 v%d, 0" % (V_ACC + i))
    a("s_cmp_lg_u32 s6, 0")
    a("s_cbranch_scc1 ogemm_nosig")
    a.gb_signal(1)
    a.label("ogemm_nosig")
    a("s_mov_b32 s41, 0")
    a("s_waitcnt vmcnt(8)")
    a("s_barrier")
    a.stamp()
    reads(0, 0, 0)

    def body(buf, hook=None, check=True):
        a("s_waitcnt vmcnt(4)")
        a("s_barrier")
        reads(buf, 1, 1)
        a("s_waitcnt lgkmcnt(6)")
        mfmas(0, False)
        reads((buf + 1) & 3, 0, 0)
        if hook:
            hook()
        dma((buf + 3) & 3)
        a("s_waitcnt lgkmcnt(6)")
        mfmas(1, False)
        a("s_add_u32 s41, s41, 1")
        if check:
            a("s_cmp_ge_u32 s41, %d" % NST)
            a("s_cbranch_scc1 ogemm_done")

    def pollhook():
        a("s_cmp_lg_u32 s6, 0")
        a("s_cbranch_scc1 ogemm_nopoll")
        a.gb_poll(1)
        a.label("ogemm_nopoll")
        a("s_barrier")
        a.stamp()

    for it in range(8):
        body(it & 3, pollhook if it == 4 else None, False)
    a.label("ogemm_loop")
    a.inloop = "og" in EXP
    for buf in range(4):
        body(buf)
    a("s_branch ogemm_loop")
    a.inloop = False
    a.label("ogemm_done")
    a.stamp()
    a("s_waitcnt vmcnt(0) lgkmcnt(0)")
    a("s_barrier")
    a.nop(12)
    a("s_and_b32 s33, s6, 3")
    a("s_lshl_b32 s33, s33, 14")
    a("s_lshl_b32 s34, s6, 13")
    a("v_add_u32 v12, s34, v%d" % V_ST)
    a("s_xor_b32 s34, s34, 0x8000")
    a("v_add_u32 v13, s34, v%d" % V_ST)
    a("s_lshl_b32 s34, s3, 2")
    a("s_add_u32 s34, s34, s4")
    a("s_lshl_b32 s34, s34, 16")
    a("s_add_u32 s34, s34, s33")
    a("s_lshl_b32 s35, s5, 22")
    a("s_add_u32 s34, s34, s35")
    a("s_add_u32 s34, s34, 0x%x" % PART)
    a("s_cmp_eq_u32 s30, 0")
    a("s_cbranch_scc1 ogemm_g0")
    for g in (1, 0):
        if g == 0:
            a.label("ogemm_g0")
        keep, send = V_ACC + 32 * g, V_ACC + 32 * (1 - g)
        for i in range(8):
            a("ds_write_b128 v12, %s offset:%d" % (vr(send + 4 * i, 4), i * 1024))
        a("s_waitcnt lgkmcnt(0)")
        a("s_barrier")
        for i in range(8):
            a("ds_read_b128 %s, v13 offset:%d" % (vr(112 + 4 * i, 4), i * 1024))
        a("s_add_u32 s34, s34, %d" % (8192 * g))
        for i in range(8):
            a("s_waitcnt lgkmcnt(%d)" % (7 - i))
            for k in range(4):
                a("v_add_f32 v%d, v%d, v%d" % (keep + 4 * i + k, keep + 4 * i + k, 112 + 4 * i + k))
            if i == 4:
                a("s_add_u32 s34, s34, 4096")
            a("buffer_store_dwordx4 %s, v%d, s[8:11], s34 offen offset:%d sc1" % (vr(keep + 4 * i, 4), V_ST, (i & 3) * 1024))
        if g == 1:
            a("s_branch ogemm_end")
    a.stamp()
    a.stamp_flush(0)
    a.label("ogemm_end")
    a("s_lshl_b32 s49, s3, 2")
    a("s_add_u32 s49, s49, s4")
    a("s_lshl_b32 s45, s49, 4")
    a("s_lshl_b32 s46, s5, 2")
    a("s_add_u32 s45, s45, s46")
    reduce_pre(a)
    a("s_waitcnt vmcnt(0) lgkmcnt(0)")
    a("s_barrier")
    a("s_cmp_lg_u32 s6, 0")
    a("s_cbranch_scc1 tb_wait")
    a("s_add_u32 s46, s49, 32")
    a("s_lshl_b32 s46, s46, 12")
    a("s_add_u32 s46, s46, 0x%x" % CTR)
    a("s_mov_b64 exec, 1")
    a("v_mov_b32 v12, 1")
    a("v_mov_b32 v13, 0")
    a("buffer_atomic_add v12, v13, s[8:11], s46 offen sc1")
    a("s_mov_b32 s47, 0")
    a.label("tb_loop")
    a("buffer_load_dword v14, v13, s[8:11], s46 offen sc1")
    a("s_waitcnt vmcnt(0)")
    a("v_readfirstlane_b32 s48, v14")
    a("s_cmp_ge_u32 s48, 4")
    a("s_cbranch_scc1 tb_done")
    a("s_add_u32 s47, s47, 1")
    a("s_cmp_gt_u32 s47, 40000")
    a("s_cbranch_scc1 tb_done")
    a("s_sleep 4")
    a("s_branch tb_loop")
    a.label("tb_done")
    a("s_mov_b64 exec, -1")
    a.label("tb_wait")
    a("s_barrier")
    a.phase = 3


RB = 176


def reduce_pre(a):
    a("s_load_dwordx2 s[52:53], s[0:1], 0")
    a("s_load_dwordx2 s[56:57], s[0:1], 80")
    a("s_load_dwordx2 s[60:61], s[0:1], 88")
    a("s_mov_b32 s54, 0x200000")
    a("s_mov_b32 s55, 0x20000")
    a("s_mov_b32 s58, 1024")
    a("s_mov_b32 s59, 0x20000")
    a("s_mov_b32 s62, 0x200000")
    a("s_mov_b32 s63, 0x20000")
    T = RB + 70
    a("s_lshr_b32 s40, s6, 2")
    a("v_and_b32 v%d, 255, v0" % T)
    a("s_add_u32 s41, s45, s40")
    a("v_lshlrev_b32 v%d, 4, v%d" % (RB + 1, T))
    a("s_waitcnt lgkmcnt(0)")
    for j in range(2):
        B = RB + 4 + 32 * j
        v2, v3 = RB + 2, RB + 3
        a("s_add_u32 s42, s41, %d" % (2 * j))
        a("s_lshr_b32 s64, s42, 4")
        a("s_lshr_b32 s65, s42, 2")
        a("s_and_b32 s65, s65, 3")
        a("s_and_b32 s66, s42, 3")
        a("s_lshr_b32 s24, s64, 2")
        a("s_and_b32 s25, s64, 3")
        a("s_lshr_b32 s26, s65, 1")
        a("s_and_b32 s27, s65, 1")
        a("s_lshr_b32 s28, s66, 1")
        a("s_and_b32 s29, s66, 1")
        a("s_lshl_b32 s30, s24, 2")
        a("s_lshl_b32 s31, s26, 1")
        a("s_add_u32 s30, s30, s31")
        a("s_add_u32 s30, s30, s28")
        a("s_lshl_b32 s30, s30, 15")
        a("s_lshl_b32 s31, s25, 2")
        a("s_lshl_b32 s32, s27, 1")
        a("s_add_u32 s31, s31, s32")
        a("s_add_u32 s31, s31, s29")
        a("s_lshl_b32 s31, s31, 6")
        a("v_and_b32 v%d, 31, v%d" % (v2, T))
        a("v_lshlrev_b32 v%d, 10, v%d" % (v2, v2))
        a("v_lshrrev_b32 v%d, 6, v%d" % (v3, T))
        a("v_lshlrev_b32 v%d, 4, v%d" % (v3, v3))
        a("v_bfe_u32 v%d, v%d, 5, 1" % (B + 16, T))
        a("v_lshl_add_u32 v%d, v%d, 3, v%d" % (v3, B + 16, v3))
        a("v_add_u32 v%d, s31, v%d" % (v3, v3))
        a("v_add_u32 v%d, v%d, v%d" % (v2, v2, v3))
        a("v_add_u32 v%d, s30, v%d" % (B + 26, v2))
        a("buffer_load_dwordx2 %s, v%d, s[52:55], 0 offen" % (vr(B + 16, 2), B + 26))
        a("buffer_load_dwordx2 %s, v%d, s[56:59], 0 offen" % (vr(B + 18, 2), v3))


def gen_reduce(a):
    a.label("reduce_kernel")
    a.stamp()
    for j in range(2):
        B = RB + 4 + 32 * j
        a("s_lshl_b32 s42, s41, 12")
        a("s_add_u32 s42, s42, 0x%x" % (PART + j * 8192))
        for p in range(4):
            a("buffer_load_dwordx4 %s, v%d, s[8:11], s42 offen" % (vr(B + 4 * p, 4), RB + 1))
            if p < 3:
                a("s_add_u32 s42, s42, 0x400000")
    for j in range(2):
        B = RB + 4 + 32 * j
        for p in range(2):
            a("v_lshlrev_b32 v%d, 16, v%d" % (B + 20, B + 16 + p))
            a("v_and_b32 v%d, 0xffff0000, v%d" % (B + 21, B + 16 + p))
            a("v_lshlrev_b32 v%d, 16, v%d" % (B + 22, B + 18 + p))
            a("v_and_b32 v%d, 0xffff0000, v%d" % (B + 23, B + 18 + p))
            a("v_add_f32 v%d, v%d, v%d" % (B + 28 + 2 * p, B + 20, B + 22))
            a("v_add_f32 v%d, v%d, v%d" % (B + 29 + 2 * p, B + 21, B + 23))
    for j in range(2):
        B = RB + 4 + 32 * j
        a("s_waitcnt vmcnt(%d)" % (4 - 4 * j))
        for i in range(4):
            a("v_add_f32 v%d, v%d, v%d" % (B + i, B + i, B + 4 + i))
            a("v_add_f32 v%d, v%d, v%d" % (B + 8 + i, B + 8 + i, B + 12 + i))
        for i in range(4):
            a("v_add_f32 v%d, v%d, v%d" % (B + i, B + i, B + 8 + i))
        for i in range(4):
            a("v_add_f32 v%d, v%d, v%d" % (B + i, B + i, B + 28 + i))
        for p in range(2):
            a("v_cvt_pk_bf16_f32 v%d, v%d, v%d" % (B + 24 + p, B + 2 * p, B + 1 + 2 * p))
        a("buffer_store_dwordx2 %s, v%d, s[60:63], 0 offen" % (vr(B + 24, 2), B + 26))
    a.stamp()
    a.stamp_flush(0)
    if os.environ.get("STAMP"):
        a("s_waitcnt vmcnt(0)")
        a("s_memrealtime s[18:19]")
        a("s_load_dwordx2 s[8:9], s[0:1], 96")
        a("s_mov_b32 s10, 65536")
        a("s_mov_b32 s11, 0x20000")
        a("s_lshl_b32 s20, s2, 4")
        a("s_add_u32 s20, s20, %d" % (4096 + 4096 * 3))
        a("s_waitcnt lgkmcnt(0)")
        a("s_mov_b64 exec, 1")
        a("v_mov_b32 v4, s18")
        a("v_mov_b32 v5, s93")
        a("v_mov_b32 v6, s18")
        a("v_mov_b32 v7, s92")
        a("v_mov_b32 v2, 0")
        a("buffer_store_dwordx4 v[4:7], v2, s[8:11], s20 offen")
    a("s_endpgm")
```

```python
import sys

NAME = "parallel_sum__compressed_kv_cla__dense_activation_squared_relu__prompt"

MB = 1 << 20
QF = 0
KF = 16 * MB
VF = 32 * MB
AF = 49 * MB
AF_BLK = 368 * 1024
PART = 80 * MB
CTR = 100 * MB
import math, struct
QSC = struct.unpack("<I", struct.pack("<f", (128 ** -0.5) * math.log2(math.e)))[0]


import os
STAMP = os.environ.get("STAMP")


class Asm:
    def __init__(self):
        self.lines = []
        self.nst = 0

    def stamp(self):
        if not STAMP:
            return
        self("s_memtime s[98:99]")
        self("s_waitcnt lgkmcnt(0)")
        self("s_mov_b32 s%d, s98" % (68 + self.nst))
        self.nst += 1

    def stamp_flush(self, wgsel, dbgptr_off=96):
        if not STAMP:
            return
        L = "stf_%d" % len(self.lines)
        self("s_cmp_lg_u32 s2, %d" % wgsel)
        self("s_cbranch_scc1 %s" % L)
        self("s_load_dwordx2 s[96:97], s[0:1], %d" % dbgptr_off)
        self("s_waitcnt lgkmcnt(0)")
        self("s_mov_b32 s98, 4096")
        self("s_mov_b32 s99, 0x20000")
        self("v_cmp_eq_u32 vcc, 0, v0")
        self("s_and_saveexec_b64 s[94:95], vcc")
        self("s_cbranch_execz %s" % L)
        for i in range(self.nst):
            self("v_mov_b32 v1, s%d" % (68 + i))
            self("v_mov_b32 v2, %d" % (4 * i + 512 * (self.phase + 1)))
            self("buffer_store_dword v1, v2, s[96:99], 0 offen")
        self.label(L)
        self("s_mov_b64 exec, -1")
        self.nst = 0

    phase = 0

    def gb_signal(self, k):
        a = self
        a("s_load_dwordx2 s[80:81], s[0:1], 96")
        a("s_load_dwordx2 s[84:85], s[0:1], 104")
        a("s_mov_b32 s82, 256")
        a("s_mov_b32 s83, 0x20000")
        a("s_mov_b32 s86, 0x10000000")
        a("s_mov_b32 s87, 0x20000")
        a("s_mov_b64 exec, 1")
        a("v_mov_b32 v12, 1")
        a("v_mov_b32 v13, %d" % (4 * k))
        a("v_mov_b32 v14, 1")
        a("v_mov_b32 v15, 0")
        a("s_and_b32 s88, s2, 15")
        a("s_lshl_b32 s88, s88, 12")
        a("s_add_u32 s88, s88, 0x%x" % (CTR + (k - 1) * 65536))
        a("s_waitcnt lgkmcnt(0)")
        a("buffer_atomic_add v14, v15, s[84:87], s88 offen sc0 sc1")
        a("s_waitcnt vmcnt(0)")
        a("v_readfirstlane_b32 s89, v14")
        a("s_cmp_lg_u32 s89, 15")
        a("s_cbranch_scc1 gs_nr%d" % k)
        a("buffer_atomic_add v12, v13, s[80:83], 0 offen sc1")
        a.label("gs_nr%d" % k)
        a("s_mov_b64 exec, -1")

    def gb_poll(self, k):
        a = self
        a("s_mov_b64 exec, 1")
        a("v_mov_b32 v13, %d" % (4 * k))
        a("s_mov_b32 s88, 0")
        a.label("gp_loop%d" % k)
        a("buffer_load_dword v14, v13, s[80:83], 0 offen sc1")
        a("s_waitcnt vmcnt(0)")
        a("v_readfirstlane_b32 s89, v14")
        a("s_cmp_ge_u32 s89, 16")
        a("s_cbranch_scc1 gp_done%d" % k)
        a("s_add_u32 s88, s88, 1")
        a("s_cmp_gt_u32 s88, 40000")
        a("s_cbranch_scc1 gp_done%d" % k)
        a("s_sleep 8")
        a("s_branch gp_loop%d" % k)
        a.label("gp_done%d" % k)
        a("s_mov_b64 exec, -1")

    def gridbar(self, k):
        a = self
        if STAMP:
            a("s_memrealtime s[14:15]")
        if k == 0:
            a("s_cmp_ge_u32 s2, 96")
            a("s_cbranch_scc1 gb_noinit")
            a("s_load_dwordx2 s[8:9], s[0:1], 104")
            a("s_mov_b32 s10, 0x10000000")
            a("s_mov_b32 s11, 0x20000")
            a("s_lshl_b32 s12, s2, 12")
            a("s_add_u32 s12, s12, 0x%x" % CTR)
            a("v_mov_b32 v1, 0")
            a("v_mov_b32 v2, 0")
            a("s_waitcnt lgkmcnt(0)")
            a("buffer_store_dword v1, v2, s[8:11], s12 offen sc0 sc1")
            a.label("gb_noinit")
        a("s_waitcnt vmcnt(0) lgkmcnt(0)")
        a("s_barrier")
        if STAMP:
            a("s_memrealtime s[16:17]")
        a("v_lshrrev_b32 v1, 6, v0")
        a("s_nop 0")
        a("v_readfirstlane_b32 s6, v1")
        a("s_cmp_lg_u32 s6, 0")
        a("s_cbranch_scc1 gb_wait%d" % k)
        a("s_load_dwordx2 s[8:9], s[0:1], 96")
        a("s_load_dwordx2 s[24:25], s[0:1], 104")
        a("s_mov_b32 s10, 256")
        a("s_mov_b32 s11, 0x20000")
        a("s_mov_b32 s26, 0x10000000")
        a("s_mov_b32 s27, 0x20000")
        a("s_mov_b64 exec, 1")
        a("v_mov_b32 v1, 1")
        a("v_mov_b32 v2, %d" % (4 * k))
        a("s_waitcnt lgkmcnt(0)")
        tgt = 256
        if True:
            tgt = 16
            a("s_and_b32 s12, s2, 15")
            a("v_mov_b32 v3, 1")
            a("v_mov_b32 v4, 0")
            if k > 0:
                a("s_lshl_b32 s12, s12, 12")
                a("s_add_u32 s12, s12, 0x%x" % (CTR + (k - 1) * 65536))
                a("buffer_atomic_add v3, v4, s[24:27], s12 offen sc0 sc1")
            else:
                a("s_lshl_b32 s12, s12, 2")
                a("s_add_u32 s12, s12, 128")
                a("buffer_atomic_add v3, v4, s[8:11], s12 offen sc0 sc1")
            a("s_waitcnt vmcnt(0)")
            a("v_readfirstlane_b32 s13, v3")
            a("s_cmp_lg_u32 s13, 15")
            a("s_cbranch_scc1 gb_nr%d" % k)
        a("buffer_atomic_add v1, v2, s[8:11], 0 offen sc1")
        if True:
            a.label("gb_nr%d" % k)
        a("s_mov_b32 s12, 0")
        a.label("gb_loop%d" % k)
        a("buffer_load_dword v3, v2, s[8:11], 0 offen %s" % os.environ.get("PSC", "sc1"))
        a("s_waitcnt vmcnt(0)")
        a("v_readfirstlane_b32 s13, v3")
        a("s_cmp_ge_u32 s13, %d" % tgt)
        a("s_cbranch_scc1 gb_done%d" % k)
        a("s_add_u32 s12, s12, 1")
        a("s_cmp_gt_u32 s12, 40000")
        a("s_cbranch_scc1 gb_done%d" % k)
        a("s_sleep %s" % os.environ.get("SLEEP", "8"))
        a("s_branch gb_loop%d" % k)
        a.label("gb_done%d" % k)
        if STAMP:
            a("s_memrealtime s[18:19]")
            a("s_mov_b32 s10, 65536")
            a("s_lshl_b32 s20, s2, 4")
            a("s_add_u32 s20, s20, %d" % (4096 + 4096 * k))
            a("s_waitcnt lgkmcnt(0)")
            a("s_mov_b64 exec, 1")
            a("v_mov_b32 v4, s14")
            a("v_mov_b32 v5, s16")
            a("v_mov_b32 v6, s18")
            a("v_mov_b32 v7, s92")
            a("v_mov_b32 v2, 0")
            a("buffer_store_dwordx4 v[4:7], v2, s[8:11], s20 offen")
        a("s_mov_b64 exec, -1")
        a("s_waitcnt lgkmcnt(0)")
        a.label("gb_wait%d" % k)
        a("s_barrier")
        if "inv" in os.environ.get("EXP", ""):
            a("buffer_inv sc1")
        self.phase = k + 1

    inloop = False

    def __call__(self, s):
        EXP = os.environ.get("EXP", "")
        if self.inloop:
            if "nomfma" in EXP and s.startswith("v_mfma"):
                return
            if "novalu" in EXP and s.startswith("v_") and not s.startswith("v_mfma") and not s.startswith("v_cmp") and "0x1ffff" not in s and "0x8000" not in s and not s.startswith("v_mov") and not s.startswith("v_add_u32"):
                return
            if "nolds" in EXP and s.startswith("ds_read"):
                return
            if "nodma" in EXP and s.startswith("buffer_load"):
                return
            if "nobar" in EXP and s.startswith("s_barrier"):
                return
        if "nosc1" in EXP and s.startswith("buffer_store") and s.endswith(" sc1"):
            s = s[:-4]
        self.lines.append("  " + s)

    def label(self, s):
        self.lines.append(s + ":")

    def raw(self, s):
        self.lines.append(s)

    def nop(self, n):
        while n > 0:
            k = min(n, 16)
            self("s_nop %d" % (k - 1))
            n -= k


def vr(a, n):
    return "v[%d:%d]" % (a, a + n - 1)


def sr(a, n):
    return "s[%d:%d]" % (a, a + n - 1)


def gen_proj(a):
    V_LANE = 1
    V_TR = 2
    V_OFFC = 10
    V_OFFN = 11
    V_ST = 12
    V_T0 = 13
    V_B = 16
    V_ACC = 48
    V_A = 112
    V_ROWI = 13
    V_SWZ = 14
    V_T = 15
    V_AOFF = 240

    a.label("mega_kernel")
    a("s_cmp_lt_u32 s2, 256")
    a("s_cbranch_scc1 proj_start")
    a("s_endpgm")
    a.label("proj_start")
    if STAMP:
        a("s_memrealtime s[92:93]")
    a.stamp()
    a("s_load_dwordx2 s[8:9], s[0:1], 96")
    a("s_load_dwordx16 s[24:39], s[0:1], 0")
    a("s_load_dwordx4 s[40:43], s[0:1], 64")
    a("s_load_dwordx2 s[44:45], s[0:1], 104")
    EXPF = os.environ.get("EXP", "")
    if "tick" in EXPF:
        a("v_lshrrev_b32 v1, 6, v0")
        a("v_lshlrev_b32 v4, 14, v1")
        a("v_add_u32 v4, 0x8000, v4")
        a("v_readfirstlane_b32 s6, v1")
        a("s_getreg_b32 s4, hwreg(HW_REG_XCC_ID)")
        a("s_and_b32 s4, s4, 7")
        if "tkforce" in EXPF:
            a("s_min_u32 s4, s4, 4")
        a("s_mov_b32 s10, 256")
        a("s_mov_b32 s11, 0x20000")
        a("s_lshl_b32 s5, s4, 2")
        a("s_add_u32 s5, s5, 192")
        a("v_mov_b32 v2, s5")
        a("v_mov_b32 v3, 1")
        a("s_cmp_eq_u32 s6, 0")
        a("s_cbranch_scc1 tk_w0")
        a("s_cmp_lg_u32 s6, 7")
        a("s_cbranch_scc1 tk_wait")
        a("s_mov_b64 exec, 1")
        a("s_waitcnt lgkmcnt(0)")
        a("v_subrev_u32 v2, 160, v2")
        a("buffer_atomic_add v3, v2, s[8:11], 0 offen sc1")
        a("s_mov_b64 exec, -1")
        a("s_branch tk_wait")
        a.label("tk_w0")
        a("s_mov_b64 exec, 1")
        a("s_waitcnt lgkmcnt(0)")
        a("buffer_atomic_add v3, v2, s[8:11], 0 offen sc0%s" % (" sc1" if "tkforce" in EXPF or "tkglob" in EXPF else ""))
        a("s_waitcnt vmcnt(0)")
        a("v_readfirstlane_b32 s5, v3")
        a("s_cmp_lt_u32 s5, 32")
        a("s_cbranch_scc1 tk_got")
        a("s_mov_b32 s7, 0")
        a("v_mov_b32 v2, 32")
        a.label("tk_poll")
        a("buffer_load_dwordx4 v[8:11], v2, s[8:11], 0 offen sc1")
        a("buffer_load_dwordx4 v[12:15], v2, s[8:11], 0 offen offset:16 sc1")
        a("s_waitcnt vmcnt(0)")
        a("s_mov_b32 s12, 0")
        for i in range(8):
            a("v_readfirstlane_b32 s%d, v%d" % (48 + i, 8 + i))
            a("s_add_u32 s12, s12, s%d" % (48 + i))
        a("s_cmp_ge_u32 s12, 256")
        a("s_cbranch_scc1 tk_full")
        a("s_add_u32 s7, s7, 1")
        a("s_sleep 8")
        a("s_cmp_lt_u32 s7, 40000")
        a("s_cbranch_scc1 tk_poll")
        a.label("tk_fail")
        a("s_lshr_b32 s5, s2, 3")
        a("s_and_b32 s4, s2, 7")
        a("s_branch tk_got")
        a.label("tk_full")
        a("s_sub_u32 s5, s5, 32")
        for i in range(7):
            a("s_max_u32 s12, s%d, 32" % (48 + i))
            a("s_sub_u32 s12, s12, 32")
            a("s_cmp_gt_u32 s4, %d" % i)
            a("s_cselect_b32 s12, s12, 0")
            a("s_add_u32 s5, s5, s12")
        for i in range(8):
            a("s_min_u32 s12, s%d, 32" % (48 + i))
            a("s_sub_u32 s13, 32, s12")
            a("s_mov_b32 s4, %d" % i)
            a("s_cmp_lt_u32 s5, s13")
            a("s_cbranch_scc1 tk_slot")
            a("s_sub_u32 s5, s5, s13")
        a("s_branch tk_fail")
        a.label("tk_slot")
        a("s_add_u32 s5, s5, s12")
        a.label("tk_got")
        a("s_lshl_b32 s5, s5, 3")
        a("s_add_u32 s5, s5, s4")
        a("s_mov_b64 exec, 0xff")
        a("v_lshlrev_b32 v2, 14, v0")
        a("v_add_u32 v2, 0x8000, v2")
        a("v_mov_b32 v3, s5")
        a("ds_write_b32 v2, v3")
        a("s_mov_b64 exec, -1")
        a("s_waitcnt lgkmcnt(0)")
        a.label("tk_wait")
        a("s_barrier")
        a("ds_read_b32 v3, v4")
        a("s_waitcnt lgkmcnt(0)")
        a("v_readfirstlane_b32 s2, v3")
        a("s_and_b32 s2, s2, 255")
        if STAMP:
            a("s_memrealtime s[96:97]")
            a("s_waitcnt lgkmcnt(0)")
            a("s_mov_b32 s93, s96")
    PM = os.environ.get("PM", "0")
    if PM == "0":
        a("s_lshr_b32 s3, s2, 5")
        a("s_and_b32 s4, s2, 31")
    elif PM == "1":
        a("s_and_b32 s3, s2, 7")
        a("s_lshr_b32 s4, s2, 3")
    elif PM == "2":
        a("s_and_b32 s3, s2, 3")
        a("s_bfe_u32 s4, s2, 0x10003")
        a("s_lshl_b32 s4, s4, 2")
        a("s_or_b32 s3, s3, s4")
        a("s_bfe_u32 s4, s2, 0x10002")
        a("s_lshr_b32 s5, s2, 4")
        a("s_lshl_b32 s5, s5, 1")
        a("s_or_b32 s4, s4, s5")
    elif PM == "3":
        a("s_and_b32 s3, s2, 1")
        a("s_bfe_u32 s4, s2, 0x20003")
        a("s_lshl_b32 s4, s4, 1")
        a("s_or_b32 s3, s3, s4")
        a("s_bfe_u32 s4, s2, 0x20001")
        a("s_lshr_b32 s5, s2, 5")
        a("s_lshl_b32 s5, s5, 2")
        a("s_or_b32 s4, s4, s5")
    a("v_lshrrev_b32 v1, 6, v0")
    a("s_nop 0")
    a("v_readfirstlane_b32 s6, v1")
    a("v_and_b32 v1, 63, v0")
    a("s_waitcnt lgkmcnt(0)")
    a.stamp()
    a("s_cmp_lt_u32 s4, 16")
    a("s_cselect_b32 s8, s24, s26")
    a("s_cselect_b32 s9, s25, s27")
    a("s_cselect_b32 s5, 0, 1")
    a("s_and_b32 s4, s4, 15")
    a("s_mov_b32 s10, 0x200000")
    a("s_mov_b32 s11, 0x20000")
    a("s_mov_b32 s16, s44")
    a("s_mov_b32 s17, s45")
    a("s_mov_b32 s18, 0x10000000")
    a("s_mov_b32 s19, 0x20000")
    a("s_mov_b32 s20, s40")
    a("s_mov_b32 s21, s41")
    a("s_mov_b32 s22, 3584")
    a("s_mov_b32 s23, 0x20000")
    a("s_mov_b32 s15, 0x20000")
    a("s_mov_b32 s51, 0x20000")
    a("s_lshl_b32 s58, s6, 12")
    a("s_lshl_b32 s59, s3, 3")
    a("s_add_u32 s59, s59, s6")
    a("v_and_b32 v13, 15, v1")
    a("v_lshlrev_b32 v13, 10, v13")
    a("v_lshrrev_b32 v14, 4, v1")
    a("v_lshlrev_b32 v14, 4, v14")
    a("v_add_u32 v13, v13, v14")
    a("s_movk_i32 s65, 0x4000")
    a("s_lshl_b32 s60, s59, 15")
    a("v_add_u32 v13, s60, v13")
    a("v_mov_b32 v%d, v13" % V_AOFF)

    def aloads(lo, hi):
        for s in range(lo, hi):
            a("buffer_load_dwordx4 %s, v%d, s[8:11], %s offen offset:%d" % (
                vr(V_A + 4 * s, 4), V_AOFF, "s65" if s & 1 else "0", (s >> 1) * 64))

    def aswaps(lo, hi):
        for s in range(lo, hi, 2):
            for j in range(4):
                a("v_permlane16_swap_b32 v%d, v%d" % (V_A + 4 * s + j, V_A + 4 * s + 4 + j))
        a("s_nop 1")
    a("v_bfe_u32 v13, v1, 2, 2")
    a("v_lshrrev_b32 v14, 5, v1")
    a("v_lshl_add_u32 v14, v14, 4, v13")
    a("v_lshlrev_b32 v14, 8, v14")
    a("v_bfe_u32 v15, v1, 4, 1")
    a("v_lshl_add_u32 v14, v15, 5, v14")
    a("v_and_b32 v15, 3, v1")
    a("v_lshl_add_u32 v14, v15, 3, v14")
    a("v_lshlrev_b32 v13, 6, v13")
    for nt in range(4):
        a("v_xor_b32 v15, %d, v13" % (nt << 6))
        a("v_add_u32 v%d, v14, v15" % (V_TR + nt))
        a("v_add_u32 v%d, 0x10000, v%d" % (V_TR + 4 + nt, V_TR + nt))
    a("v_lshlrev_b32 v%d, 4, v1" % V_ST)
    a("v_lshrrev_b32 v13, 4, v1")
    a("v_bfe_u32 v14, v1, 2, 2")
    a("v_xor_b32 v14, v14, v13")
    a("v_lshlrev_b32 v14, 6, v14")
    a("v_and_b32 v15, 3, v1")
    a("v_lshl_add_u32 v14, v15, 4, v14")
    a("s_lshl_b32 s60, s6, 4")
    a("v_add_u32 v13, s60, v13")

    def set_params(which, wlo, whi, nrec, ldw, colexpr_reg):
        base = 12 if which == "cur" else 48
        sl, sc = (52, 53) if which == "cur" else (54, 55)
        voff = V_OFFC if which == "cur" else V_OFFN
        a("s_mov_b32 s%d, s%d" % (base, wlo))
        a("s_mov_b32 s%d, s%d" % (base + 1, whi))
        if isinstance(nrec, str):
            a("s_mov_b32 s%d, %s" % (base + 2, nrec))
        else:
            a("s_mov_b32 s%d, 0x%x" % (base + 2, nrec))
        a("s_mov_b32 s%d, %d" % (sl, ldw))
        a("s_mov_b32 s%d, %s" % (sc, colexpr_reg))
        a("v_mul_lo_u32 v%d, v%d, s%d" % (voff, V_ROWI, sl))
        a("v_add_u32 v%d, v%d, v%d" % (voff, voff, V_SWZ))

    def dma(kc, which):
        base = 12 if which == "cur" else 48
        sl, sc = (52, 53) if which == "cur" else (54, 55)
        voff = V_OFFC if which == "cur" else V_OFFN
        for i in range(4):
            a("s_add_u32 m0, s58, %d" % (kc * 32768 + i * 1024))
            a("s_mul_i32 s57, s%d, %d" % (sl, kc * 128 + 4 * i))
            a("s_add_u32 s57, s57, s%d" % sc)
            a("buffer_load_dwordx4 v%d, %s, s57 offen lds" % (voff, sr(base, 4)))

    def reads(kc, s, setidx):
        hi = 4 if kc >= 2 else 0
        off = (kc & 1) * 32768 + (s >> 1) * 8192 + (s & 1) * 2048
        for nt in range(4):
            for ird in range(2):
                a("ds_read_b64_tr_b16 %s, v%d offset:%d" % (
                    vr(V_B + setidx * 16 + nt * 4 + ird * 2, 2), V_TR + hi + nt, off + ird * 1024))

    def epi_part(kind, nt):
        if kind == "Q":
            for i in range(16):
                a("v_mul_f32 v%d, v%d, v%d" % (V_ACC + 16 * nt + i, V_LNR + 1, V_ACC + 16 * nt + i))
        for t in range(2):
            d = V_ACC + 16 * nt + 8 * t
            for p in range(4):
                x0 = V_ACC + 16 * nt + 8 * t + 2 * p
                a("v_cvt_pk_bf16_f32 v%d, v%d, v%d" % (d + p, x0, x0 + 1))
            a("buffer_store_dwordx4 %s, v%d, s[16:19], s%d offen offset:%d sc1" % (
                vr(d, 4), V_ST, 90 if nt < 2 else 91, ((nt * 2 + t) & 3) * 1024))
        a("s_nop 1")

    def compute(kc, kind, extra=None, prev=None):
        extra = list(extra or [])
        per = -(-len(extra) // 32)
        for s in range(8):
            if s < 7:
                reads(kc, s + 1, (s + 1) & 1)
            else:
                reads((kc + 1) & 3, 0, 0)
            a("s_waitcnt lgkmcnt(8)")
            ks = kc * 8 + s
            for nt in range(4):
                acc = vr(V_ACC + 16 * nt, 16)
                wf = vr(V_B + (s & 1) * 16 + nt * 4, 4)
                af = vr(V_A + 4 * ks, 4)
                c = "0" if ks == 0 else acc
                if prev and ks == 0:
                    epi_part(prev, nt)
                if kind == "V":
                    a("v_mfma_f32_32x32x16_bf16 %s, %s, %s, %s" % (acc, af, wf, c))
                else:
                    a("v_mfma_f32_32x32x16_bf16 %s, %s, %s, %s" % (acc, wf, af, c))
                for x in extra[:per]:
                    a(x)
                extra = extra[per:]
        assert not extra

    def aload_ops(lo, hi):
        ops = []
        for s in range(lo, hi):
            ops.append("buffer_load_dwordx4 %s, v%d, s[8:11], %s offen offset:%d" % (
                vr(V_A + 4 * s, 4), V_AOFF, "s65" if s & 1 else "0", (s >> 1) * 64))
            ops += ["s_nop 0"] * 3
        return ops

    V_LNM = 244
    V_LNR = 246
    V_LNT = 248

    def norm_ops(q):
        ops = []
        for i in range(32 * q, 32 * q + 32):
            r = V_A + i
            t = 20 + 4 * (i & 3)
            ops.append("v_lshlrev_b32 v%d, 16, v%d" % (t, r))
            ops.append("v_and_b32 v%d, 0xffff0000, v%d" % (t + 1, r))
            ops.append("v_pk_add_f32 %s, %s, %s neg_lo:[0,1] neg_hi:[0,1]" % (vr(t, 2), vr(t, 2), vr(V_LNM, 2)))
            ops.append("v_cvt_pk_bf16_f32 v%d, v%d, v%d" % (r, t, t + 1))
        return ops

    def epilogue(kind):
        if kind == "H":
            a("s_waitcnt lgkmcnt(0)")
            a("v_lshrrev_b32 v15, 5, v1")
            a("v_lshlrev_b32 v15, 3, v15")
            for nt in range(4):
                for q in range(4):
                    a("buffer_load_dwordx2 %s, v15, s[20:23], s53 offen offset:%d" % (
                        vr(V_B + (nt * 4 + q) * 2, 2), 64 * nt + 16 * q))
            a.nop(12)
            for i in range(64):
                a("v_mul_f32 v%d, v%d, v%d" % (V_ACC + i, V_LNR, V_ACC + i))
            a("s_waitcnt vmcnt(0)")
            for nt in range(4):
                for q in range(4):
                    r0 = V_ACC + 16 * nt + 4 * q
                    b0 = V_B + (nt * 4 + q) * 2
                    for p in range(2):
                        x0, x1 = r0 + 2 * p, r0 + 2 * p + 1
                        bb = b0 + p
                        a("v_cvt_pk_bf16_f32 v15, v%d, v%d" % (x0, x1))
                        a("v_lshlrev_b32 v%d, 16, v15" % x0)
                        a("v_and_b32 v%d, 0xffff0000, v15" % x1)
                        a("v_lshlrev_b32 v15, 16, v%d" % bb)
                        a("v_add_f32 v%d, v%d, v15" % (x0, x0))
                        a("v_and_b32 v15, 0xffff0000, v%d" % bb)
                        a("v_add_f32 v%d, v%d, v15" % (x1, x1))
                        a("v_cvt_pk_bf16_f32 v15, v%d, v%d" % (x0, x1))
                        a("v_lshlrev_b32 v%d, 16, v15" % x0)
                        a("v_and_b32 v%d, 0xffff0000, v15" % x1)
                        a("v_max_f32 v%d, 0, v%d" % (x0, x0))
                        a("v_max_f32 v%d, 0, v%d" % (x1, x1))
                        a("v_mul_f32 v%d, v%d, v%d" % (x0, x0, x0))
                        a("v_mul_f32 v%d, v%d, v%d" % (x1, x1, x1))
        else:
            a.nop(12)
        if kind == "Q":
            for i in range(64):
                a("v_mul_f32 v%d, v%d, v%d" % (V_ACC + i, V_LNR + 1, V_ACC + i))
        a("s_add_u32 s67, s56, 4096")
        for nt in range(4):
            for t in range(2):
                d = V_ACC + 16 * nt + 8 * t
                for p in range(4):
                    x0 = V_ACC + 16 * nt + 8 * t + 2 * p
                    a("v_cvt_pk_bf16_f32 v%d, v%d, v%d" % (d + p, x0, x0 + 1))
                a("buffer_store_dwordx4 %s, v%d, s[16:19], s%d offen offset:%d sc1" % (
                    vr(d, 4), V_ST, 56 if nt < 2 else 67, ((nt * 2 + t) & 3) * 1024))
        a.nop(2)

    def chunk(kind, set_next, set_out, prev=None, defer=False):
        waits = (4, 12, 12, 4) if prev else (4, 4, 4, 4)
        if prev:
            a("s_mov_b32 s90, s56")
            a("s_add_u32 s91, s56, 4096")
        set_next()
        set_out()
        for kc in range(4):
            a("s_waitcnt vmcnt(%d)" % waits[kc])
            a("s_barrier")
            if kc < 1:
                dma(kc + 3, "cur")
            else:
                dma(kc - 1, "next")
            if kc == 0:
                a.stamp()
            compute(kc, kind, None, prev)
        a.stamp()
        if not defer:
            epilogue(kind)
        a.stamp()
        for i in range(3):
            a("s_mov_b32 s%d, s%d" % (12 + i, 48 + i))
        a("s_mov_b32 s52, s54")
        a("s_mov_b32 s53, s55")
        a("v_mov_b32 v%d, v%d" % (V_OFFC, V_OFFN))

    a("s_lshl_b32 s61, s4, 8")
    a("s_add_u32 s62, s61, 4096")
    a("s_lshl_b32 s63, s4, 19")
    a("s_lshl_b32 s64, s59, 13")
    a("s_add_u32 s63, s63, s64")
    a("v_and_b32 v24, 31, v1")
    a("v_lshrrev_b32 v25, 5, v1")
    a("v_xor_b32 v26, v24, v25")
    a("v_lshlrev_b32 v26, 4, v26")
    a("v_lshl_add_u32 v26, v25, 10, v26")
    a("s_lshl_b32 s60, s59, 15")
    a("v_add_u32 v28, s60, v26")
    a("s_lshl_b32 s66, s6, 14")
    a("s_add_u32 s66, s66, 32768")
    a("v_lshlrev_b32 v26, 4, v24")
    a("v_lshlrev_b32 v27, 5, v25")
    a("v_xor_b32 v26, v26, v27")
    a("v_lshl_add_u32 v26, v24, 9, v26")
    a("v_add_u32 v29, s66, v26")

    def a_dma(half):
        for i in range(16):
            a("v_xor_b32 v%d, %d, v28" % (30 + (i & 3), 32 * i))
            a("s_add_u32 m0, s66, %d" % (1024 * i))
            a("s_movk_i32 s67, %d" % (2048 * i + 512 * half))
            a("buffer_load_dwordx4 v%d, s[8:11], s67 offen lds" % (30 + (i & 3)))

    def a_read(half):
        for s_ in range(16):
            ks = (4 * (s_ >> 1) + (s_ & 1)) * 16
            a("v_xor_b32 v%d, %d, v29" % (30 + (s_ & 3), ks))
            a("ds_read_b128 %s, v%d" % (vr(V_A + 4 * (16 * half + s_), 4), 30 + (s_ & 3)))

    def stats(q):
        for i in range(32 * q, 32 * q + 32):
            r = V_A + i
            t = 20 + 2 * (i & 3)
            a("v_lshlrev_b32 v%d, 16, v%d" % (t, r))
            a("v_and_b32 v%d, 0xffff0000, v%d" % (t + 1, r))
            a("v_pk_add_f32 v[16:17], v[16:17], %s" % vr(t, 2))
            a("v_pk_fma_f32 v[18:19], %s, %s, v[18:19]" % (vr(t, 2), vr(t, 2)))

    a_dma(0)
    a("s_cmp_eq_u32 s5, 1")
    a("s_cbranch_scc1 proj_ckv")
    a("s_mov_b32 s46, 0x3f803f80")
    a("s_mov_b32 s47, 0x00003f80")
    a("s_mov_b32 s7, 0x3f800000")
    set_params("cur", 28, 29, 0x400000, 8192, "s61")
    dma(0, "cur")
    a("v_mov_b32 v16, 0")
    a("v_mov_b32 v17, 0")
    a("v_mov_b32 v18, 0")
    a("v_mov_b32 v19, 0")
    a("s_waitcnt vmcnt(4)")
    a_read(0)
    a("s_waitcnt lgkmcnt(0)")
    a_dma(1)
    stats(0)
    stats(1)
    a("s_waitcnt vmcnt(0)")
    a_read(1)
    a("s_waitcnt lgkmcnt(0)")
    a("s_barrier")
    dma(1, "cur")
    dma(2, "cur")
    stats(2)
    stats(3)
    a.stamp()
    a("v_add_f32 v16, v16, v17")
    a("v_add_f32 v18, v18, v19")
    a("v_mov_b32 v17, v16")
    a("v_mov_b32 v19, v18")
    a.nop(2)
    a("v_permlane32_swap_b32 v16, v17")
    a("v_permlane32_swap_b32 v18, v19")
    a.nop(2)
    a("v_add_f32 v16, v16, v17")
    a("v_add_f32 v18, v18, v19")
    a("v_mul_f32 v16, 0x3b000000, v16")
    a("v_mul_f32 v18, 0x3b000000, v18")
    a("v_fma_f32 v18, -v16, v16, v18")
    a("v_max_f32 v18, 0, v18")
    a("v_cvt_pk_bf16_f32 v16, v16, v18")
    a("v_and_b32 v18, 0xffff0000, v16")
    a("v_lshlrev_b32 v16, 16, v16")
    a("v_add_f32 v18, 0x3727c5ac, v18")
    a("v_cvt_pk_bf16_f32 v18, v18, v18")
    a("v_lshlrev_b32 v18, 16, v18")
    a("v_sqrt_f32 v18, v18")
    a("s_nop 0")
    a("v_cvt_pk_bf16_f32 v18, v18, v18")
    a("v_lshlrev_b32 v18, 16, v18")
    a("v_rcp_f32 v18, v18")
    a("v_mov_b32 v%d, v16" % V_LNM)
    a("v_mov_b32 v%d, v16" % (V_LNM + 1))
    a("v_mov_b32 v%d, v18" % V_LNR)
    a("v_mul_f32 v%d, 0x%08x, v18" % (V_LNR + 1, QSC))
    for q in range(4):
        for x in norm_ops(q):
            a(x)
    reads(0, 0, 0)
    a.stamp()

    def out_q0():
        a("s_add_u32 s56, s63, 0x%x" % QF)

    def out_q1():
        a("s_add_u32 s56, s63, 0x%x" % (QF + 16 * 512 * 1024))

    def next_q1():
        set_params("next", 28, 29, 0x400000, 8192, "s62")

    def next_h():
        a("s_cmp_lt_u32 s4, 14")
        a("s_cselect_b32 s66, 0x1c0000, 0")
        set_params("next", 38, 39, "s66", 3584, "s61")

    def next_none():
        a("s_mov_b32 s66, 0")
        set_params("next", 38, 39, "s66", 3584, "s61")

    def out_h():
        a("s_mul_i32 s56, s59, %d" % AF_BLK)
        a("s_lshl_b32 s66, s4, 13")
        a("s_add_u32 s56, s56, s66")
        a("s_add_u32 s56, s56, 0x%x" % (AF + 256 * 1024))

    chunk("Q", next_q1, out_q0, None, True)
    chunk("Q", next_h, out_q1, "Q", True)
    a("s_cmp_lt_u32 s4, 14")
    a("s_cbranch_scc1 proj_h")
    epilogue("Q")
    a("s_branch proj_end")
    a.label("proj_h")
    chunk("H", next_none, out_h, "Q", False)
    a.stamp_flush(0)
    a("s_branch proj_end")
    a.nst = 2

    a.label("proj_ckv")
    set_params("cur", 30, 31, 0x400000, 8192, "s61")
    dma(0, "cur")
    a("s_waitcnt vmcnt(4)")
    a_read(0)
    a("s_waitcnt lgkmcnt(0)")
    a_dma(1)
    a("s_waitcnt vmcnt(0)")
    a_read(1)
    a("s_waitcnt lgkmcnt(0)")
    a("s_barrier")
    dma(1, "cur")
    dma(2, "cur")
    reads(0, 0, 0)

    def out_k0():
        a("s_add_u32 s56, s63, 0x%x" % KF)

    def out_k1():
        a("s_add_u32 s56, s63, 0x%x" % (KF + 16 * 512 * 1024))

    def out_v0():
        a("s_add_u32 s56, s63, 0x%x" % VF)

    def out_v1():
        a("s_add_u32 s56, s63, 0x%x" % (VF + 16 * 512 * 1024))

    chunk("QK", lambda: set_params("next", 30, 31, 0x400000, 8192, "s62"), out_k0, None, True)
    chunk("QK", lambda: set_params("next", 32, 33, 0x400000, 8192, "s61"), out_k1, "QK", True)
    chunk("V", lambda: set_params("next", 32, 33, 0x400000, 8192, "s62"), out_v0, "QK", True)
    chunk("V", next_none, out_v1, "V", False)
    a.stamp_flush(int(STAMP) if STAMP else 0)
    a.label("proj_end")
    a.gridbar(0)


def descriptor(a, name, vgpr, sgpr, accum):
    a.raw(".p2align 6")
    a.raw(".amdhsa_kernel %s" % name)
    a.raw("  .amdhsa_next_free_vgpr %d" % vgpr)
    a.raw("  .amdhsa_next_free_sgpr %d" % sgpr)
    a.raw("  .amdhsa_accum_offset %d" % accum)
    a.raw("  .amdhsa_group_segment_fixed_size 0")
    a.raw("  .amdhsa_kernarg_size 112")
    a.raw("  .amdhsa_user_sgpr_count 2")
    a.raw("  .amdhsa_user_sgpr_kernarg_segment_ptr 1")
    a.raw("  .amdhsa_system_sgpr_workgroup_id_x 1")
    a.raw(".end_amdhsa_kernel")


def main():
    from gen_rest import gen_attn, gen_ogemm, gen_reduce
    a = Asm()
    hdr = open("cdna_kernels/%s.s.ref" % NAME).read().split("\n")
    for l in hdr:
        if l.startswith(";") and "@launch" not in l:
            a.raw(l)
        elif not l.startswith(";"):
            break
    a.raw("; @launch kernel=mega_kernel grid=(256,1,1) block=(512,1,1) lds=163840")
    a.raw('.amdgcn_target "amdgcn-amd-amdhsa--gfx950"')
    a.raw(".text")
    a.raw(".globl mega_kernel")
    a.raw(".p2align 8")
    a.raw(".type mega_kernel,@function")
    gen_proj(a)
    gen_attn(a)
    gen_ogemm(a)
    gen_reduce(a)
    a.raw('.section .rodata,"a"')
    descriptor(a, "mega_kernel", 256, 102, 256)
    out = sys.argv[1] if len(sys.argv) > 1 else "cdna_kernels/%s.s" % NAME
    open(out, "w").write("\n".join(a.lines) + "\n")


if __name__ == "__main__":
    main()
```

```python
import sys

NAME = "parallel_sum__compressed_kv_cla__dense_activation_squared_relu__prompt"

MB = 1 << 20
QF = 0
KF = 16 * MB
VF = 32 * MB
AF = 49 * MB
AF_BLK = 368 * 1024
PART = 80 * MB
CTR = 100 * MB
import math, struct
QSC = struct.unpack("<I", struct.pack("<f", (128 ** -0.5) * math.log2(math.e)))[0]


import os
STAMP = os.environ.get("STAMP")


class Asm:
    def __init__(self):
        self.lines = []
        self.nst = 0

    def stamp(self):
        if not STAMP:
            return
        self("s_memtime s[98:99]")
        self("s_waitcnt lgkmcnt(0)")
        self("s_mov_b32 s%d, s98" % (68 + self.nst))
        self.nst += 1

    def stamp_flush(self, wgsel, dbgptr_off=96):
        if not STAMP:
            return
        L = "stf_%d" % len(self.lines)
        self("s_cmp_lg_u32 s2, %d" % wgsel)
        self("s_cbranch_scc1 %s" % L)
        self("s_load_dwordx2 s[96:97], s[0:1], %d" % dbgptr_off)
        self("s_waitcnt lgkmcnt(0)")
        self("s_mov_b32 s98, 4096")
        self("s_mov_b32 s99, 0x20000")
        self("v_cmp_eq_u32 vcc, 0, v0")
        self("s_and_saveexec_b64 s[94:95], vcc")
        self("s_cbranch_execz %s" % L)
        for i in range(self.nst):
            self("v_mov_b32 v1, s%d" % (68 + i))
            self("v_mov_b32 v2, %d" % (4 * i + 512 * (self.phase + 1)))
            self("buffer_store_dword v1, v2, s[96:99], 0 offen")
        self.label(L)
        self("s_mov_b64 exec, -1")
        self.nst = 0

    phase = 0

    def gb_signal(self, k):
        a = self
        a("s_load_dwordx2 s[80:81], s[0:1], 96")
        a("s_load_dwordx2 s[84:85], s[0:1], 104")
        a("s_mov_b32 s82, 256")
        a("s_mov_b32 s83, 0x20000")
        a("s_mov_b32 s86, 0x10000000")
        a("s_mov_b32 s87, 0x20000")
        a("s_mov_b64 exec, 1")
        a("v_mov_b32 v12, 1")
        a("v_mov_b32 v13, %d" % (4 * k))
        a("v_mov_b32 v14, 1")
        a("v_mov_b32 v15, 0")
        a("s_and_b32 s88, s2, 15")
        a("s_lshl_b32 s88, s88, 12")
        a("s_add_u32 s88, s88, 0x%x" % (CTR + (k - 1) * 65536))
        a("s_waitcnt lgkmcnt(0)")
        a("buffer_atomic_add v14, v15, s[84:87], s88 offen sc0 sc1")
        a("s_waitcnt vmcnt(0)")
        a("v_readfirstlane_b32 s89, v14")
        a("s_cmp_lg_u32 s89, 15")
        a("s_cbranch_scc1 gs_nr%d" % k)
        a("buffer_atomic_add v12, v13, s[80:83], 0 offen sc1")
        a.label("gs_nr%d" % k)
        a("s_mov_b64 exec, -1")

    def gb_poll(self, k):
        a = self
        a("s_mov_b64 exec, 1")
        a("v_mov_b32 v13, %d" % (4 * k))
        a("s_mov_b32 s88, 0")
        a.label("gp_loop%d" % k)
        a("buffer_load_dword v14, v13, s[80:83], 0 offen sc1")
        a("s_waitcnt vmcnt(0)")
        a("v_readfirstlane_b32 s89, v14")
        a("s_cmp_ge_u32 s89, 16")
        a("s_cbranch_scc1 gp_done%d" % k)
        a("s_add_u32 s88, s88, 1")
        a("s_cmp_gt_u32 s88, 40000")
        a("s_cbranch_scc1 gp_done%d" % k)
        a("s_sleep 8")
        a("s_branch gp_loop%d" % k)
        a.label("gp_done%d" % k)
        a("s_mov_b64 exec, -1")

    def gridbar(self, k):
        a = self
        if STAMP:
            a("s_memrealtime s[14:15]")
        if k == 0:
            a("s_cmp_ge_u32 s2, 96")
            a("s_cbranch_scc1 gb_noinit")
            a("s_load_dwordx2 s[8:9], s[0:1], 104")
            a("s_mov_b32 s10, 0x10000000")
            a("s_mov_b32 s11, 0x20000")
            a("s_lshl_b32 s12, s2, 12")
            a("s_add_u32 s12, s12, 0x%x" % CTR)
            a("v_mov_b32 v1, 0")
            a("v_mov_b32 v2, 0")
            a("s_waitcnt lgkmcnt(0)")
            a("buffer_store_dword v1, v2, s[8:11], s12 offen sc0 sc1")
            a.label("gb_noinit")
        a("s_waitcnt vmcnt(0) lgkmcnt(0)")
        a("s_barrier")
        if STAMP:
            a("s_memrealtime s[16:17]")
        a("v_lshrrev_b32 v1, 6, v0")
        a("s_nop 0")
        a("v_readfirstlane_b32 s6, v1")
        a("s_cmp_lg_u32 s6, 0")
        a("s_cbranch_scc1 gb_wait%d" % k)
        a("s_load_dwordx2 s[8:9], s[0:1], 96")
        a("s_load_dwordx2 s[24:25], s[0:1], 104")
        a("s_mov_b32 s10, 256")
        a("s_mov_b32 s11, 0x20000")
        a("s_mov_b32 s26, 0x10000000")
        a("s_mov_b32 s27, 0x20000")
        a("s_mov_b64 exec, 1")
        a("v_mov_b32 v1, 1")
        a("v_mov_b32 v2, %d" % (4 * k))
        a("s_waitcnt lgkmcnt(0)")
        tgt = 256
        if True:
            tgt = 16
            a("s_and_b32 s12, s2, 15")
            a("v_mov_b32 v3, 1")
            a("v_mov_b32 v4, 0")
            if k > 0:
                a("s_lshl_b32 s12, s12, 12")
                a("s_add_u32 s12, s12, 0x%x" % (CTR + (k - 1) * 65536))
                a("buffer_atomic_add v3, v4, s[24:27], s12 offen sc0 sc1")
            else:
                a("s_lshl_b32 s12, s12, 2")
                a("s_add_u32 s12, s12, 128")
                a("buffer_atomic_add v3, v4, s[8:11], s12 offen sc0 sc1")
            a("s_waitcnt vmcnt(0)")
            a("v_readfirstlane_b32 s13, v3")
            a("s_cmp_lg_u32 s13, 15")
            a("s_cbranch_scc1 gb_nr%d" % k)
        a("buffer_atomic_add v1, v2, s[8:11], 0 offen sc1")
        if True:
            a.label("gb_nr%d" % k)
        a("s_mov_b32 s12, 0")
        a.label("gb_loop%d" % k)
        a("buffer_load_dword v3, v2, s[8:11], 0 offen %s" % os.environ.get("PSC", "sc1"))
        a("s_waitcnt vmcnt(0)")
        a("v_readfirstlane_b32 s13, v3")
        a("s_cmp_ge_u32 s13, %d" % tgt)
        a("s_cbranch_scc1 gb_done%d" % k)
        a("s_add_u32 s12, s12, 1")
        a("s_cmp_gt_u32 s12, 40000")
        a("s_cbranch_scc1 gb_done%d" % k)
        a("s_sleep %s" % os.environ.get("SLEEP", "8"))
        a("s_branch gb_loop%d" % k)
        a.label("gb_done%d" % k)
        if STAMP:
            a("s_memrealtime s[18:19]")
            a("s_mov_b32 s10, 65536")
            a("s_lshl_b32 s20, s2, 4")
            a("s_add_u32 s20, s20, %d" % (4096 + 4096 * k))
            a("s_waitcnt lgkmcnt(0)")
            a("s_mov_b64 exec, 1")
            a("v_mov_b32 v4, s14")
            a("v_mov_b32 v5, s16")
            a("v_mov_b32 v6, s18")
            a("v_mov_b32 v7, s92")
            a("v_mov_b32 v2, 0")
            a("buffer_store_dwordx4 v[4:7], v2, s[8:11], s20 offen")
        a("s_mov_b64 exec, -1")
        a("s_waitcnt lgkmcnt(0)")
        a.label("gb_wait%d" % k)
        a("s_barrier")
        if "inv" in os.environ.get("EXP", ""):
            a("buffer_inv sc1")
        self.phase = k + 1

    inloop = False

    def __call__(self, s):
        EXP = os.environ.get("EXP", "")
        if self.inloop:
            if "nomfma" in EXP and s.startswith("v_mfma"):
                return
            if "novalu" in EXP and s.startswith("v_") and not s.startswith("v_mfma") and not s.startswith("v_cmp") and "0x1ffff" not in s and "0x8000" not in s and not s.startswith("v_mov") and not s.startswith("v_add_u32"):
                return
            if "nolds" in EXP and s.startswith("ds_read"):
                return
            if "nodma" in EXP and s.startswith("buffer_load"):
                return
            if "nobar" in EXP and s.startswith("s_barrier"):
                return
        if "nosc1" in EXP and s.startswith("buffer_store") and s.endswith(" sc1"):
            s = s[:-4]
        self.lines.append("  " + s)

    def label(self, s):
        self.lines.append(s + ":")

    def raw(self, s):
        self.lines.append(s)

    def nop(self, n):
        while n > 0:
            k = min(n, 16)
            self("s_nop %d" % (k - 1))
            n -= k


def vr(a, n):
    return "v[%d:%d]" % (a, a + n - 1)


def sr(a, n):
    return "s[%d:%d]" % (a, a + n - 1)


def gen_proj(a):
    V_LANE = 1
    V_TR = 2
    V_OFFC = 10
    V_OFFN = 11
    V_ST = 12
    V_T0 = 13
    V_B = 16
    V_ACC = 48
    V_A = 112
    V_ROWI = 13
    V_SWZ = 14
    V_T = 15
    V_AOFF = 240

    a.label("mega_kernel")
    a("s_cmp_lt_u32 s2, 256")
    a("s_cbranch_scc1 proj_start")
    a("s_endpgm")
    a.label("proj_start")
    if STAMP:
        a("s_memrealtime s[92:93]")
    a.stamp()
    a("s_load_dwordx2 s[8:9], s[0:1], 96")
    a("s_load_dwordx16 s[24:39], s[0:1], 0")
    a("s_load_dwordx4 s[40:43], s[0:1], 64")
    a("s_load_dwordx2 s[44:45], s[0:1], 104")
    EXPF = os.environ.get("EXP", "")
    if "tick" in EXPF:
        a("v_lshrrev_b32 v1, 6, v0")
        a("v_lshlrev_b32 v4, 14, v1")
        a("v_add_u32 v4, 0x8000, v4")
        a("v_readfirstlane_b32 s6, v1")
        a("s_getreg_b32 s4, hwreg(HW_REG_XCC_ID)")
        a("s_and_b32 s4, s4, 7")
        if "tkforce" in EXPF:
            a("s_min_u32 s4, s4, 4")
        a("s_mov_b32 s10, 256")
        a("s_mov_b32 s11, 0x20000")
        a("s_lshl_b32 s5, s4, 2")
        a("s_add_u32 s5, s5, 192")
        a("v_mov_b32 v2, s5")
        a("v_mov_b32 v3, 1")
        a("s_cmp_eq_u32 s6, 0")
        a("s_cbranch_scc1 tk_w0")
        a("s_cmp_lg_u32 s6, 7")
        a("s_cbranch_scc1 tk_wait")
        a("s_mov_b64 exec, 1")
        a("s_waitcnt lgkmcnt(0)")
        a("v_subrev_u32 v2, 160, v2")
        a("buffer_atomic_add v3, v2, s[8:11], 0 offen sc1")
        a("s_mov_b64 exec, -1")
        a("s_branch tk_wait")
        a.label("tk_w0")
        a("s_mov_b64 exec, 1")
        a("s_waitcnt lgkmcnt(0)")
        a("buffer_atomic_add v3, v2, s[8:11], 0 offen sc0%s" % (" sc1" if "tkforce" in EXPF or "tkglob" in EXPF else ""))
        a("s_waitcnt vmcnt(0)")
        a("v_readfirstlane_b32 s5, v3")
        a("s_cmp_lt_u32 s5, 32")
        a("s_cbranch_scc1 tk_got")
        a("s_mov_b32 s7, 0")
        a("v_mov_b32 v2, 32")
        a.label("tk_poll")
        a("buffer_load_dwordx4 v[8:11], v2, s[8:11], 0 offen sc1")
        a("buffer_load_dwordx4 v[12:15], v2, s[8:11], 0 offen offset:16 sc1")
        a("s_waitcnt vmcnt(0)")
        a("s_mov_b32 s12, 0")
        for i in range(8):
            a("v_readfirstlane_b32 s%d, v%d" % (48 + i, 8 + i))
            a("s_add_u32 s12, s12, s%d" % (48 + i))
        a("s_cmp_ge_u32 s12, 256")
        a("s_cbranch_scc1 tk_full")
        a("s_add_u32 s7, s7, 1")
        a("s_sleep 8")
        a("s_cmp_lt_u32 s7, 40000")
        a("s_cbranch_scc1 tk_poll")
        a.label("tk_fail")
        a("s_lshr_b32 s5, s2, 3")
        a("s_and_b32 s4, s2, 7")
        a("s_branch tk_got")
        a.label("tk_full")
        a("s_sub_u32 s5, s5, 32")
        for i in range(7):
            a("s_max_u32 s12, s%d, 32" % (48 + i))
            a("s_sub_u32 s12, s12, 32")
            a("s_cmp_gt_u32 s4, %d" % i)
            a("s_cselect_b32 s12, s12, 0")
            a("s_add_u32 s5, s5, s12")
        for i in range(8):
            a("s_min_u32 s12, s%d, 32" % (48 + i))
            a("s_sub_u32 s13, 32, s12")
            a("s_mov_b32 s4, %d" % i)
            a("s_cmp_lt_u32 s5, s13")
            a("s_cbranch_scc1 tk_slot")
            a("s_sub_u32 s5, s5, s13")
        a("s_branch tk_fail")
        a.label("tk_slot")
        a("s_add_u32 s5, s5, s12")
        a.label("tk_got")
        a("s_lshl_b32 s5, s5, 3")
        a("s_add_u32 s5, s5, s4")
        a("s_mov_b64 exec, 0xff")
        a("v_lshlrev_b32 v2, 14, v0")
        a("v_add_u32 v2, 0x8000, v2")
        a("v_mov_b32 v3, s5")
        a("ds_write_b32 v2, v3")
        a("s_mov_b64 exec, -1")
        a("s_waitcnt lgkmcnt(0)")
        a.label("tk_wait")
        a("s_barrier")
        a("ds_read_b32 v3, v4")
        a("s_waitcnt lgkmcnt(0)")
        a("v_readfirstlane_b32 s2, v3")
        a("s_and_b32 s2, s2, 255")
        if STAMP:
            a("s_memrealtime s[96:97]")
            a("s_waitcnt lgkmcnt(0)")
            a("s_mov_b32 s93, s96")
    PM = os.environ.get("PM", "3")
    if PM == "0":
        a("s_lshr_b32 s3, s2, 5")
        a("s_and_b32 s4, s2, 31")
    elif PM == "1":
        a("s_and_b32 s3, s2, 7")
        a("s_lshr_b32 s4, s2, 3")
    elif PM == "2":
        a("s_and_b32 s3, s2, 3")
        a("s_bfe_u32 s4, s2, 0x10003")
        a("s_lshl_b32 s4, s4, 2")
        a("s_or_b32 s3, s3, s4")
        a("s_bfe_u32 s4, s2, 0x10002")
        a("s_lshr_b32 s5, s2, 4")
        a("s_lshl_b32 s5, s5, 1")
        a("s_or_b32 s4, s4, s5")
    elif PM == "3":
        a("s_and_b32 s3, s2, 1")
        a("s_bfe_u32 s4, s2, 0x20003")
        a("s_lshl_b32 s4, s4, 1")
        a("s_or_b32 s3, s3, s4")
        a("s_bfe_u32 s4, s2, 0x20001")
        a("s_lshr_b32 s5, s2, 5")
        a("s_lshl_b32 s5, s5, 2")
        a("s_or_b32 s4, s4, s5")
    elif PM == "4":
        a("s_lshr_b32 s3, s2, 5")
        a("s_bfe_u32 s4, s2, 0x40001")
        a("s_and_b32 s5, s2, 1")
        a("s_lshl_b32 s5, s5, 4")
        a("s_or_b32 s4, s4, s5")
    elif PM == "5":
        a("s_bfe_u32 s3, s2, 0x10001")
        a("s_bfe_u32 s4, s2, 0x20003")
        a("s_lshl_b32 s4, s4, 1")
        a("s_or_b32 s3, s3, s4")
        a("s_bfe_u32 s4, s2, 0x10002")
        a("s_lshr_b32 s5, s2, 5")
        a("s_lshl_b32 s5, s5, 1")
        a("s_or_b32 s4, s4, s5")
        a("s_and_b32 s5, s2, 1")
        a("s_lshl_b32 s5, s5, 4")
        a("s_or_b32 s4, s4, s5")
    elif PM == "6":
        a("s_bfe_u32 s3, s2, 0x30001")
        a("s_lshr_b32 s4, s2, 4")
        a("s_and_b32 s5, s2, 1")
        a("s_lshl_b32 s5, s5, 4")
        a("s_or_b32 s4, s4, s5")
    a("v_lshrrev_b32 v1, 6, v0")
    a("s_nop 0")
    a("v_readfirstlane_b32 s6, v1")
    a("v_and_b32 v1, 63, v0")
    a("s_waitcnt lgkmcnt(0)")
    a.stamp()
    a("s_cmp_lt_u32 s4, 16")
    a("s_cselect_b32 s8, s24, s26")
    a("s_cselect_b32 s9, s25, s27")
    a("s_cselect_b32 s5, 0, 1")
    a("s_and_b32 s4, s4, 15")
    a("s_mov_b32 s10, 0x200000")
    a("s_mov_b32 s11, 0x20000")
    a("s_mov_b32 s16, s44")
    a("s_mov_b32 s17, s45")
    a("s_mov_b32 s18, 0x10000000")
    a("s_mov_b32 s19, 0x20000")
    a("s_mov_b32 s20, s40")
    a("s_mov_b32 s21, s41")
    a("s_mov_b32 s22, 3584")
    a("s_mov_b32 s23, 0x20000")
    a("s_mov_b32 s15, 0x20000")
    a("s_mov_b32 s51, 0x20000")
    a("s_lshl_b32 s58, s6, 12")
    a("s_lshl_b32 s59, s3, 3")
    a("s_add_u32 s59, s59, s6")
    a("v_and_b32 v13, 15, v1")
    a("v_lshlrev_b32 v13, 10, v13")
    a("v_lshrrev_b32 v14, 4, v1")
    a("v_lshlrev_b32 v14, 4, v14")
    a("v_add_u32 v13, v13, v14")
    a("s_movk_i32 s65, 0x4000")
    a("s_lshl_b32 s60, s59, 15")
    a("v_add_u32 v13, s60, v13")
    a("v_mov_b32 v%d, v13" % V_AOFF)

    def aloads(lo, hi):
        for s in range(lo, hi):
            a("buffer_load_dwordx4 %s, v%d, s[8:11], %s offen offset:%d" % (
                vr(V_A + 4 * s, 4), V_AOFF, "s65" if s & 1 else "0", (s >> 1) * 64))

    def aswaps(lo, hi):
        for s in range(lo, hi, 2):
            for j in range(4):
                a("v_permlane16_swap_b32 v%d, v%d" % (V_A + 4 * s + j, V_A + 4 * s + 4 + j))
        a("s_nop 1")
    a("v_bfe_u32 v13, v1, 2, 2")
    a("v_lshrrev_b32 v14, 5, v1")
    a("v_lshl_add_u32 v14, v14, 4, v13")
    a("v_lshlrev_b32 v14, 8, v14")
    a("v_bfe_u32 v15, v1, 4, 1")
    a("v_lshl_add_u32 v14, v15, 5, v14")
    a("v_and_b32 v15, 3, v1")
    a("v_lshl_add_u32 v14, v15, 3, v14")
    a("v_lshlrev_b32 v13, 6, v13")
    for nt in range(4):
        a("v_xor_b32 v15, %d, v13" % (nt << 6))
        a("v_add_u32 v%d, v14, v15" % (V_TR + nt))
        a("v_add_u32 v%d, 0x10000, v%d" % (V_TR + 4 + nt, V_TR + nt))
    a("v_lshlrev_b32 v%d, 4, v1" % V_ST)
    a("v_lshrrev_b32 v13, 4, v1")
    a("v_bfe_u32 v14, v1, 2, 2")
    a("v_xor_b32 v14, v14, v13")
    a("v_lshlrev_b32 v14, 6, v14")
    a("v_and_b32 v15, 3, v1")
    a("v_lshl_add_u32 v14, v15, 4, v14")
    a("s_lshl_b32 s60, s6, 4")
    a("v_add_u32 v13, s60, v13")

    def set_params(which, wlo, whi, nrec, ldw, colexpr_reg):
        base = 12 if which == "cur" else 48
        sl, sc = (52, 53) if which == "cur" else (54, 55)
        voff = V_OFFC if which == "cur" else V_OFFN
        a("s_mov_b32 s%d, s%d" % (base, wlo))
        a("s_mov_b32 s%d, s%d" % (base + 1, whi))
        if isinstance(nrec, str):
            a("s_mov_b32 s%d, %s" % (base + 2, nrec))
        else:
            a("s_mov_b32 s%d, 0x%x" % (base + 2, nrec))
        a("s_mov_b32 s%d, %d" % (sl, ldw))
        a("s_mov_b32 s%d, %s" % (sc, colexpr_reg))
        a("v_mul_lo_u32 v%d, v%d, s%d" % (voff, V_ROWI, sl))
        a("v_add_u32 v%d, v%d, v%d" % (voff, voff, V_SWZ))

    def dma(kc, which):
        base = 12 if which == "cur" else 48
        sl, sc = (52, 53) if which == "cur" else (54, 55)
        voff = V_OFFC if which == "cur" else V_OFFN
        for i in range(4):
            a("s_add_u32 m0, s58, %d" % (kc * 32768 + i * 1024))
            a("s_mul_i32 s57, s%d, %d" % (sl, kc * 128 + 4 * i))
            a("s_add_u32 s57, s57, s%d" % sc)
            a("buffer_load_dwordx4 v%d, %s, s57 offen lds" % (voff, sr(base, 4)))

    def reads(kc, s, setidx):
        hi = 4 if kc >= 2 else 0
        off = (kc & 1) * 32768 + (s >> 1) * 8192 + (s & 1) * 2048
        for nt in range(4):
            for ird in range(2):
                a("ds_read_b64_tr_b16 %s, v%d offset:%d" % (
                    vr(V_B + setidx * 16 + nt * 4 + ird * 2, 2), V_TR + hi + nt, off + ird * 1024))

    def epi_part(kind, nt):
        if kind == "Q":
            for i in range(16):
                a("v_mul_f32 v%d, v%d, v%d" % (V_ACC + 16 * nt + i, V_LNR + 1, V_ACC + 16 * nt + i))
        for t in range(2):
            d = V_ACC + 16 * nt + 8 * t
            for p in range(4):
                x0 = V_ACC + 16 * nt + 8 * t + 2 * p
                a("v_cvt_pk_bf16_f32 v%d, v%d, v%d" % (d + p, x0, x0 + 1))
            a("buffer_store_dwordx4 %s, v%d, s[16:19], s%d offen offset:%d sc1" % (
                vr(d, 4), V_ST, 90 if nt < 2 else 91, ((nt * 2 + t) & 3) * 1024))
        a("s_nop 1")

    def compute(kc, kind, extra=None, prev=None):
        extra = list(extra or [])
        per = -(-len(extra) // 32)
        for s in range(8):
            if s < 7:
                reads(kc, s + 1, (s + 1) & 1)
            else:
                reads((kc + 1) & 3, 0, 0)
            a("s_waitcnt lgkmcnt(8)")
            ks = kc * 8 + s
            for nt in range(4):
                acc = vr(V_ACC + 16 * nt, 16)
                wf = vr(V_B + (s & 1) * 16 + nt * 4, 4)
                af = vr(V_A + 4 * ks, 4)
                c = "0" if ks == 0 else acc
                if prev and ks == 0:
                    epi_part(prev, nt)
                if kind == "V":
                    a("v_mfma_f32_32x32x16_bf16 %s, %s, %s, %s" % (acc, af, wf, c))
                else:
                    a("v_mfma_f32_32x32x16_bf16 %s, %s, %s, %s" % (acc, wf, af, c))
                for x in extra[:per]:
                    a(x)
                extra = extra[per:]
        assert not extra

    def aload_ops(lo, hi):
        ops = []
        for s in range(lo, hi):
            ops.append("buffer_load_dwordx4 %s, v%d, s[8:11], %s offen offset:%d" % (
                vr(V_A + 4 * s, 4), V_AOFF, "s65" if s & 1 else "0", (s >> 1) * 64))
            ops += ["s_nop 0"] * 3
        return ops

    V_LNM = 244
    V_LNR = 246
    V_LNT = 248

    def norm_ops(q):
        ops = []
        for i in range(32 * q, 32 * q + 32):
            r = V_A + i
            t = 20 + 4 * (i & 3)
            ops.append("v_lshlrev_b32 v%d, 16, v%d" % (t, r))
            ops.append("v_and_b32 v%d, 0xffff0000, v%d" % (t + 1, r))
            ops.append("v_pk_add_f32 %s, %s, %s neg_lo:[0,1] neg_hi:[0,1]" % (vr(t, 2), vr(t, 2), vr(V_LNM, 2)))
            ops.append("v_cvt_pk_bf16_f32 v%d, v%d, v%d" % (r, t, t + 1))
        return ops

    def epilogue(kind):
        if kind == "H":
            a("s_waitcnt lgkmcnt(0)")
            a("v_lshrrev_b32 v15, 5, v1")
            a("v_lshlrev_b32 v15, 3, v15")
            for nt in range(4):
                for q in range(4):
                    a("buffer_load_dwordx2 %s, v15, s[20:23], s53 offen offset:%d" % (
                        vr(V_B + (nt * 4 + q) * 2, 2), 64 * nt + 16 * q))
            a.nop(12)
            for i in range(64):
                a("v_mul_f32 v%d, v%d, v%d" % (V_ACC + i, V_LNR, V_ACC + i))
            a("s_waitcnt vmcnt(0)")
            for nt in range(4):
                for q in range(4):
                    r0 = V_ACC + 16 * nt + 4 * q
                    b0 = V_B + (nt * 4 + q) * 2
                    for p in range(2):
                        x0, x1 = r0 + 2 * p, r0 + 2 * p + 1
                        bb = b0 + p
                        a("v_cvt_pk_bf16_f32 v15, v%d, v%d" % (x0, x1))
                        a("v_lshlrev_b32 v%d, 16, v15" % x0)
                        a("v_and_b32 v%d, 0xffff0000, v15" % x1)
                        a("v_lshlrev_b32 v15, 16, v%d" % bb)
                        a("v_add_f32 v%d, v%d, v15" % (x0, x0))
                        a("v_and_b32 v15, 0xffff0000, v%d" % bb)
                        a("v_add_f32 v%d, v%d, v15" % (x1, x1))
                        a("v_cvt_pk_bf16_f32 v15, v%d, v%d" % (x0, x1))
                        a("v_lshlrev_b32 v%d, 16, v15" % x0)
                        a("v_and_b32 v%d, 0xffff0000, v15" % x1)
                        a("v_max_f32 v%d, 0, v%d" % (x0, x0))
                        a("v_max_f32 v%d, 0, v%d" % (x1, x1))
                        a("v_mul_f32 v%d, v%d, v%d" % (x0, x0, x0))
                        a("v_mul_f32 v%d, v%d, v%d" % (x1, x1, x1))
        else:
            a.nop(12)
        if kind == "Q":
            for i in range(64):
                a("v_mul_f32 v%d, v%d, v%d" % (V_ACC + i, V_LNR + 1, V_ACC + i))
        a("s_add_u32 s67, s56, 4096")
        for nt in range(4):
            for t in range(2):
                d = V_ACC + 16 * nt + 8 * t
                for p in range(4):
                    x0 = V_ACC + 16 * nt + 8 * t + 2 * p
                    a("v_cvt_pk_bf16_f32 v%d, v%d, v%d" % (d + p, x0, x0 + 1))
                a("buffer_store_dwordx4 %s, v%d, s[16:19], s%d offen offset:%d sc1" % (
                    vr(d, 4), V_ST, 56 if nt < 2 else 67, ((nt * 2 + t) & 3) * 1024))
        a.nop(2)

    def chunk(kind, set_next, set_out, prev=None, defer=False):
        waits = (4, 12, 12, 4) if prev else (4, 4, 4, 4)
        if prev:
            a("s_mov_b32 s90, s56")
            a("s_add_u32 s91, s56, 4096")
        set_next()
        set_out()
        for kc in range(4):
            a("s_waitcnt vmcnt(%d)" % waits[kc])
            a("s_barrier")
            if kc < 1:
                dma(kc + 3, "cur")
            else:
                dma(kc - 1, "next")
            if kc == 0:
                a.stamp()
            compute(kc, kind, None, prev)
        a.stamp()
        if not defer:
            epilogue(kind)
        a.stamp()
        for i in range(3):
            a("s_mov_b32 s%d, s%d" % (12 + i, 48 + i))
        a("s_mov_b32 s52, s54")
        a("s_mov_b32 s53, s55")
        a("v_mov_b32 v%d, v%d" % (V_OFFC, V_OFFN))

    a("s_lshl_b32 s61, s4, 8")
    a("s_add_u32 s62, s61, 4096")
    a("s_lshl_b32 s63, s4, 19")
    a("s_lshl_b32 s64, s59, 13")
    a("s_add_u32 s63, s63, s64")
    a("v_and_b32 v24, 31, v1")
    a("v_lshrrev_b32 v25, 5, v1")
    a("v_xor_b32 v26, v24, v25")
    a("v_lshlrev_b32 v26, 4, v26")
    a("v_lshl_add_u32 v26, v25, 10, v26")
    a("s_lshl_b32 s60, s59, 15")
    a("v_add_u32 v28, s60, v26")
    a("s_lshl_b32 s66, s6, 14")
    a("s_add_u32 s66, s66, 32768")
    a("v_lshlrev_b32 v26, 4, v24")
    a("v_lshlrev_b32 v27, 5, v25")
    a("v_xor_b32 v26, v26, v27")
    a("v_lshl_add_u32 v26, v24, 9, v26")
    a("v_add_u32 v29, s66, v26")

    def a_dma(half):
        for i in range(16):
            a("v_xor_b32 v%d, %d, v28" % (30 + (i & 3), 32 * i))
            a("s_add_u32 m0, s66, %d" % (1024 * i))
            a("s_movk_i32 s67, %d" % (2048 * i + 512 * half))
            a("buffer_load_dwordx4 v%d, s[8:11], s67 offen lds" % (30 + (i & 3)))

    def a_read(half):
        for s_ in range(16):
            ks = (4 * (s_ >> 1) + (s_ & 1)) * 16
            a("v_xor_b32 v%d, %d, v29" % (30 + (s_ & 3), ks))
            a("ds_read_b128 %s, v%d" % (vr(V_A + 4 * (16 * half + s_), 4), 30 + (s_ & 3)))

    def stats(q):
        for i in range(32 * q, 32 * q + 32):
            r = V_A + i
            t = 20 + 2 * (i & 3)
            a("v_lshlrev_b32 v%d, 16, v%d" % (t, r))
            a("v_and_b32 v%d, 0xffff0000, v%d" % (t + 1, r))
            a("v_pk_add_f32 v[16:17], v[16:17], %s" % vr(t, 2))
            a("v_pk_fma_f32 v[18:19], %s, %s, v[18:19]" % (vr(t, 2), vr(t, 2)))

    a_dma(0)
    a("s_cmp_eq_u32 s5, 1")
    a("s_cbranch_scc1 proj_ckv")
    a("s_mov_b32 s46, 0x3f803f80")
    a("s_mov_b32 s47, 0x00003f80")
    a("s_mov_b32 s7, 0x3f800000")
    set_params("cur", 28, 29, 0x400000, 8192, "s61")
    dma(0, "cur")
    a("v_mov_b32 v16, 0")
    a("v_mov_b32 v17, 0")
    a("v_mov_b32 v18, 0")
    a("v_mov_b32 v19, 0")
    a("s_waitcnt vmcnt(4)")
    a_read(0)
    a("s_waitcnt lgkmcnt(0)")
    a_dma(1)
    stats(0)
    stats(1)
    a("s_waitcnt vmcnt(0)")
    a_read(1)
    a("s_waitcnt lgkmcnt(0)")
    a("s_barrier")
    dma(1, "cur")
    dma(2, "cur")
    stats(2)
    stats(3)
    a.stamp()
    a("v_add_f32 v16, v16, v17")
    a("v_add_f32 v18, v18, v19")
    a("v_mov_b32 v17, v16")
    a("v_mov_b32 v19, v18")
    a.nop(2)
    a("v_permlane32_swap_b32 v16, v17")
    a("v_permlane32_swap_b32 v18, v19")
    a.nop(2)
    a("v_add_f32 v16, v16, v17")
    a("v_add_f32 v18, v18, v19")
    a("v_mul_f32 v16, 0x3b000000, v16")
    a("v_mul_f32 v18, 0x3b000000, v18")
    a("v_fma_f32 v18, -v16, v16, v18")
    a("v_max_f32 v18, 0, v18")
    a("v_cvt_pk_bf16_f32 v16, v16, v18")
    a("v_and_b32 v18, 0xffff0000, v16")
    a("v_lshlrev_b32 v16, 16, v16")
    a("v_add_f32 v18, 0x3727c5ac, v18")
    a("v_cvt_pk_bf16_f32 v18, v18, v18")
    a("v_lshlrev_b32 v18, 16, v18")
    a("v_sqrt_f32 v18, v18")
    a("s_nop 0")
    a("v_cvt_pk_bf16_f32 v18, v18, v18")
    a("v_lshlrev_b32 v18, 16, v18")
    a("v_rcp_f32 v18, v18")
    a("v_mov_b32 v%d, v16" % V_LNM)
    a("v_mov_b32 v%d, v16" % (V_LNM + 1))
    a("v_mov_b32 v%d, v18" % V_LNR)
    a("v_mul_f32 v%d, 0x%08x, v18" % (V_LNR + 1, QSC))
    for q in range(4):
        for x in norm_ops(q):
            a(x)
    reads(0, 0, 0)
    a.stamp()

    def out_q0():
        a("s_add_u32 s56, s63, 0x%x" % QF)

    def out_q1():
        a("s_add_u32 s56, s63, 0x%x" % (QF + 16 * 512 * 1024))

    def next_q1():
        set_params("next", 28, 29, 0x400000, 8192, "s62")

    def next_h():
        a("s_cmp_lt_u32 s4, 14")
        a("s_cselect_b32 s66, 0x1c0000, 0")
        set_params("next", 38, 39, "s66", 3584, "s61")

    def next_none():
        a("s_mov_b32 s66, 0")
        set_params("next", 38, 39, "s66", 3584, "s61")

    def out_h():
        a("s_mul_i32 s56, s59, %d" % AF_BLK)
        a("s_lshl_b32 s66, s4, 13")
        a("s_add_u32 s56, s56, s66")
        a("s_add_u32 s56, s56, 0x%x" % (AF + 256 * 1024))

    chunk("Q", next_q1, out_q0, None, True)
    chunk("Q", next_h, out_q1, "Q", True)
    a("s_cmp_lt_u32 s4, 14")
    a("s_cbranch_scc1 proj_h")
    epilogue("Q")
    a("s_branch proj_end")
    a.label("proj_h")
    chunk("H", next_none, out_h, "Q", False)
    a.stamp_flush(0)
    a("s_branch proj_end")
    a.nst = 2

    a.label("proj_ckv")
    set_params("cur", 30, 31, 0x400000, 8192, "s61")
    dma(0, "cur")
    a("s_waitcnt vmcnt(4)")
    a_read(0)
    a("s_waitcnt lgkmcnt(0)")
    a_dma(1)
    a("s_waitcnt vmcnt(0)")
    a_read(1)
    a("s_waitcnt lgkmcnt(0)")
    a("s_barrier")
    dma(1, "cur")
    dma(2, "cur")
    reads(0, 0, 0)

    def out_k0():
        a("s_add_u32 s56, s63, 0x%x" % KF)

    def out_k1():
        a("s_add_u32 s56, s63, 0x%x" % (KF + 16 * 512 * 1024))

    def out_v0():
        a("s_add_u32 s56, s63, 0x%x" % VF)

    def out_v1():
        a("s_add_u32 s56, s63, 0x%x" % (VF + 16 * 512 * 1024))

    chunk("QK", lambda: set_params("next", 30, 31, 0x400000, 8192, "s62"), out_k0, None, True)
    chunk("QK", lambda: set_params("next", 32, 33, 0x400000, 8192, "s61"), out_k1, "QK", True)
    chunk("V", lambda: set_params("next", 32, 33, 0x400000, 8192, "s62"), out_v0, "QK", True)
    chunk("V", next_none, out_v1, "V", False)
    a.stamp_flush(int(STAMP) if STAMP else 0)
    a.label("proj_end")
    a.gridbar(0)


def descriptor(a, name, vgpr, sgpr, accum):
    a.raw(".p2align 6")
    a.raw(".amdhsa_kernel %s" % name)
    a.raw("  .amdhsa_next_free_vgpr %d" % vgpr)
    a.raw("  .amdhsa_next_free_sgpr %d" % sgpr)
    a.raw("  .amdhsa_accum_offset %d" % accum)
    a.raw("  .amdhsa_group_segment_fixed_size 0")
    a.raw("  .amdhsa_kernarg_size 112")
    a.raw("  .amdhsa_user_sgpr_count 2")
    a.raw("  .amdhsa_user_sgpr_kernarg_segment_ptr 1")
    a.raw("  .amdhsa_system_sgpr_workgroup_id_x 1")
    a.raw(".end_amdhsa_kernel")


def main():
    from gen_rest import gen_attn, gen_ogemm, gen_reduce
    a = Asm()
    hdr = open("cdna_kernels/%s.s.ref" % NAME).read().split("\n")
    for l in hdr:
        if l.startswith(";") and "@launch" not in l:
            a.raw(l)
        elif not l.startswith(";"):
            break
    a.raw("; @launch kernel=mega_kernel grid=(256,1,1) block=(512,1,1) lds=163840")
    a.raw('.amdgcn_target "amdgcn-amd-amdhsa--gfx950"')
    a.raw(".text")
    a.raw(".globl mega_kernel")
    a.raw(".p2align 8")
    a.raw(".type mega_kernel,@function")
    gen_proj(a)
    gen_attn(a)
    gen_ogemm(a)
    gen_reduce(a)
    a.raw('.section .rodata,"a"')
    descriptor(a, "mega_kernel", 256, 102, 256)
    out = sys.argv[1] if len(sys.argv) > 1 else "cdna_kernels/%s.s" % NAME
    open(out, "w").write("\n".join(a.lines) + "\n")


if __name__ == "__main__":
    main()
```

```python
import sys

NAME = "parallel_sum__compressed_kv_cla__dense_activation_squared_relu__prompt"

MB = 1 << 20
QF = 0
KF = 16 * MB
VF = 32 * MB
AF = 49 * MB
AF_BLK = 368 * 1024
PART = 80 * MB
CTR = 100 * MB
import math, struct
QSC = struct.unpack("<I", struct.pack("<f", (128 ** -0.5) * math.log2(math.e)))[0]


import os
STAMP = os.environ.get("STAMP")


class Asm:
    def __init__(self):
        self.lines = []
        self.nst = 0

    def stamp(self):
        if not STAMP:
            return
        self("s_memtime s[98:99]")
        self("s_waitcnt lgkmcnt(0)")
        self("s_mov_b32 s%d, s98" % (68 + self.nst))
        self.nst += 1

    def stamp_flush(self, wgsel, dbgptr_off=96):
        if not STAMP:
            return
        L = "stf_%d" % len(self.lines)
        self("s_cmp_lg_u32 s2, %d" % wgsel)
        self("s_cbranch_scc1 %s" % L)
        self("s_load_dwordx2 s[96:97], s[0:1], %d" % dbgptr_off)
        self("s_waitcnt lgkmcnt(0)")
        self("s_mov_b32 s98, 4096")
        self("s_mov_b32 s99, 0x20000")
        self("v_cmp_eq_u32 vcc, 0, v0")
        self("s_and_saveexec_b64 s[94:95], vcc")
        self("s_cbranch_execz %s" % L)
        for i in range(self.nst):
            self("v_mov_b32 v1, s%d" % (68 + i))
            self("v_mov_b32 v2, %d" % (4 * i + 512 * (self.phase + 1)))
            self("buffer_store_dword v1, v2, s[96:99], 0 offen")
        self.label(L)
        self("s_mov_b64 exec, -1")
        self.nst = 0

    phase = 0

    def gb_signal(self, k):
        a = self
        a("s_load_dwordx2 s[80:81], s[0:1], 96")
        a("s_load_dwordx2 s[84:85], s[0:1], 104")
        a("s_mov_b32 s82, 256")
        a("s_mov_b32 s83, 0x20000")
        a("s_mov_b32 s86, 0x10000000")
        a("s_mov_b32 s87, 0x20000")
        a("s_mov_b64 exec, 1")
        a("v_mov_b32 v12, 1")
        a("v_mov_b32 v13, %d" % (4 * k))
        a("v_mov_b32 v14, 1")
        a("v_mov_b32 v15, 0")
        a("s_and_b32 s88, s2, 15")
        a("s_lshl_b32 s88, s88, 12")
        a("s_add_u32 s88, s88, 0x%x" % (CTR + (k - 1) * 65536))
        a("s_waitcnt lgkmcnt(0)")
        a("buffer_atomic_add v14, v15, s[84:87], s88 offen sc0 sc1")
        a("s_waitcnt vmcnt(0)")
        a("v_readfirstlane_b32 s89, v14")
        a("s_cmp_lg_u32 s89, 15")
        a("s_cbranch_scc1 gs_nr%d" % k)
        a("buffer_atomic_add v12, v13, s[80:83], 0 offen sc1")
        a.label("gs_nr%d" % k)
        a("s_mov_b64 exec, -1")

    def gb_poll(self, k):
        a = self
        a("s_mov_b64 exec, 1")
        a("v_mov_b32 v13, %d" % (4 * k))
        a("s_mov_b32 s88, 0")
        a.label("gp_loop%d" % k)
        a("buffer_load_dword v14, v13, s[80:83], 0 offen sc1")
        a("s_waitcnt vmcnt(0)")
        a("v_readfirstlane_b32 s89, v14")
        a("s_cmp_ge_u32 s89, 16")
        a("s_cbranch_scc1 gp_done%d" % k)
        a("s_add_u32 s88, s88, 1")
        a("s_cmp_gt_u32 s88, 40000")
        a("s_cbranch_scc1 gp_done%d" % k)
        a("s_sleep 8")
        a("s_branch gp_loop%d" % k)
        a.label("gp_done%d" % k)
        a("s_mov_b64 exec, -1")

    def gridbar(self, k):
        a = self
        if STAMP:
            a("s_memrealtime s[14:15]")
        if k == 0:
            a("s_cmp_ge_u32 s2, 96")
            a("s_cbranch_scc1 gb_noinit")
            a("s_load_dwordx2 s[8:9], s[0:1], 104")
            a("s_mov_b32 s10, 0x10000000")
            a("s_mov_b32 s11, 0x20000")
            a("s_lshl_b32 s12, s2, 12")
            a("s_add_u32 s12, s12, 0x%x" % CTR)
            a("v_mov_b32 v1, 0")
            a("v_mov_b32 v2, 0")
            a("s_waitcnt lgkmcnt(0)")
            a("buffer_store_dword v1, v2, s[8:11], s12 offen sc0 sc1")
            a.label("gb_noinit")
        a("s_waitcnt vmcnt(0) lgkmcnt(0)")
        a("s_barrier")
        if STAMP:
            a("s_memrealtime s[16:17]")
        a("v_lshrrev_b32 v1, 6, v0")
        a("s_nop 0")
        a("v_readfirstlane_b32 s6, v1")
        a("s_cmp_lg_u32 s6, 0")
        a("s_cbranch_scc1 gb_wait%d" % k)
        a("s_load_dwordx2 s[8:9], s[0:1], 96")
        a("s_load_dwordx2 s[24:25], s[0:1], 104")
        a("s_mov_b32 s10, 256")
        a("s_mov_b32 s11, 0x20000")
        a("s_mov_b32 s26, 0x10000000")
        a("s_mov_b32 s27, 0x20000")
        a("s_mov_b64 exec, 1")
        a("v_mov_b32 v1, 1")
        a("v_mov_b32 v2, %d" % (4 * k))
        a("s_waitcnt lgkmcnt(0)")
        tgt = 256
        if True:
            tgt = 16
            a("s_and_b32 s12, s2, 15")
            a("v_mov_b32 v3, 1")
            a("v_mov_b32 v4, 0")
            if k > 0:
                a("s_lshl_b32 s12, s12, 12")
                a("s_add_u32 s12, s12, 0x%x" % (CTR + (k - 1) * 65536))
                a("buffer_atomic_add v3, v4, s[24:27], s12 offen sc0 sc1")
            else:
                a("s_lshl_b32 s12, s12, 2")
                a("s_add_u32 s12, s12, 128")
                a("buffer_atomic_add v3, v4, s[8:11], s12 offen sc0 sc1")
            a("s_waitcnt vmcnt(0)")
            a("v_readfirstlane_b32 s13, v3")
            a("s_cmp_lg_u32 s13, 15")
            a("s_cbranch_scc1 gb_nr%d" % k)
        a("buffer_atomic_add v1, v2, s[8:11], 0 offen sc1")
        if True:
            a.label("gb_nr%d" % k)
        a("s_mov_b32 s12, 0")
        a.label("gb_loop%d" % k)
        a("buffer_load_dword v3, v2, s[8:11], 0 offen %s" % os.environ.get("PSC", "sc1"))
        a("s_waitcnt vmcnt(0)")
        a("v_readfirstlane_b32 s13, v3")
        a("s_cmp_ge_u32 s13, %d" % tgt)
        a("s_cbranch_scc1 gb_done%d" % k)
        a("s_add_u32 s12, s12, 1")
        a("s_cmp_gt_u32 s12, 40000")
        a("s_cbranch_scc1 gb_done%d" % k)
        a("s_sleep %s" % os.environ.get("SLEEP", "8"))
        a("s_branch gb_loop%d" % k)
        a.label("gb_done%d" % k)
        if STAMP:
            a("s_memrealtime s[18:19]")
            a("s_mov_b32 s10, 65536")
            a("s_lshl_b32 s20, s2, 4")
            a("s_add_u32 s20, s20, %d" % (4096 + 4096 * k))
            a("s_waitcnt lgkmcnt(0)")
            a("s_mov_b64 exec, 1")
            a("v_mov_b32 v4, s14")
            a("v_mov_b32 v5, s16")
            a("v_mov_b32 v6, s18")
            a("v_mov_b32 v7, s92")
            a("v_mov_b32 v2, 0")
            a("buffer_store_dwordx4 v[4:7], v2, s[8:11], s20 offen")
        a("s_mov_b64 exec, -1")
        a("s_waitcnt lgkmcnt(0)")
        a.label("gb_wait%d" % k)
        a("s_barrier")
        if "inv" in os.environ.get("EXP", ""):
            a("buffer_inv sc1")
        self.phase = k + 1

    inloop = False

    def __call__(self, s):
        EXP = os.environ.get("EXP", "")
        if self.inloop:
            if "nomfma" in EXP and s.startswith("v_mfma"):
                return
            if "novalu" in EXP and s.startswith("v_") and not s.startswith("v_mfma") and not s.startswith("v_cmp") and "0x1ffff" not in s and "0x8000" not in s and not s.startswith("v_mov") and not s.startswith("v_add_u32"):
                return
            if "nolds" in EXP and s.startswith("ds_read"):
                return
            if "nodma" in EXP and s.startswith("buffer_load"):
                return
            if "nobar" in EXP and s.startswith("s_barrier"):
                return
        if "nosc1" in EXP and s.startswith("buffer_store") and s.endswith(" sc1"):
            s = s[:-4]
        self.lines.append("  " + s)

    def label(self, s):
        self.lines.append(s + ":")

    def raw(self, s):
        self.lines.append(s)

    def nop(self, n):
        while n > 0:
            k = min(n, 16)
            self("s_nop %d" % (k - 1))
            n -= k


def vr(a, n):
    return "v[%d:%d]" % (a, a + n - 1)


def sr(a, n):
    return "s[%d:%d]" % (a, a + n - 1)


def gen_proj(a):
    V_LANE = 1
    V_TR = 2
    V_OFFC = 10
    V_OFFN = 11
    V_ST = 12
    V_T0 = 13
    V_B = 16
    V_ACC = 48
    V_A = 112
    V_ROWI = 13
    V_SWZ = 14
    V_T = 15
    V_AOFF = 240

    a.label("mega_kernel")
    a("s_cmp_lt_u32 s2, 256")
    a("s_cbranch_scc1 proj_start")
    a("s_endpgm")
    a.label("proj_start")
    if STAMP:
        a("s_memrealtime s[92:93]")
    a.stamp()
    a("s_load_dwordx2 s[8:9], s[0:1], 96")
    a("s_load_dwordx16 s[24:39], s[0:1], 0")
    a("s_load_dwordx4 s[40:43], s[0:1], 64")
    a("s_load_dwordx2 s[44:45], s[0:1], 104")
    EXPF = os.environ.get("EXP", "")
    if "tick" in EXPF:
        a("v_lshrrev_b32 v1, 6, v0")
        a("v_lshlrev_b32 v4, 14, v1")
        a("v_add_u32 v4, 0x8000, v4")
        a("v_readfirstlane_b32 s6, v1")
        a("s_getreg_b32 s4, hwreg(HW_REG_XCC_ID)")
        a("s_and_b32 s4, s4, 7")
        if "tkforce" in EXPF:
            a("s_min_u32 s4, s4, 4")
        a("s_mov_b32 s10, 256")
        a("s_mov_b32 s11, 0x20000")
        a("s_lshl_b32 s5, s4, 2")
        a("s_add_u32 s5, s5, 192")
        a("v_mov_b32 v2, s5")
        a("v_mov_b32 v3, 1")
        a("s_cmp_eq_u32 s6, 0")
        a("s_cbranch_scc1 tk_w0")
        a("s_cmp_lg_u32 s6, 7")
        a("s_cbranch_scc1 tk_wait")
        a("s_mov_b64 exec, 1")
        a("s_waitcnt lgkmcnt(0)")
        a("v_subrev_u32 v2, 160, v2")
        a("buffer_atomic_add v3, v2, s[8:11], 0 offen sc1")
        a("s_mov_b64 exec, -1")
        a("s_branch tk_wait")
        a.label("tk_w0")
        a("s_mov_b64 exec, 1")
        a("s_waitcnt lgkmcnt(0)")
        a("buffer_atomic_add v3, v2, s[8:11], 0 offen sc0%s" % (" sc1" if "tkforce" in EXPF or "tkglob" in EXPF else ""))
        a("s_waitcnt vmcnt(0)")
        a("v_readfirstlane_b32 s5, v3")
        a("s_cmp_lt_u32 s5, 32")
        a("s_cbranch_scc1 tk_got")
        a("s_mov_b32 s7, 0")
        a("v_mov_b32 v2, 32")
        a.label("tk_poll")
        a("buffer_load_dwordx4 v[8:11], v2, s[8:11], 0 offen sc1")
        a("buffer_load_dwordx4 v[12:15], v2, s[8:11], 0 offen offset:16 sc1")
        a("s_waitcnt vmcnt(0)")
        a("s_mov_b32 s12, 0")
        for i in range(8):
            a("v_readfirstlane_b32 s%d, v%d" % (48 + i, 8 + i))
            a("s_add_u32 s12, s12, s%d" % (48 + i))
        a("s_cmp_ge_u32 s12, 256")
        a("s_cbranch_scc1 tk_full")
        a("s_add_u32 s7, s7, 1")
        a("s_sleep 8")
        a("s_cmp_lt_u32 s7, 40000")
        a("s_cbranch_scc1 tk_poll")
        a.label("tk_fail")
        a("s_lshr_b32 s5, s2, 3")
        a("s_and_b32 s4, s2, 7")
        a("s_branch tk_got")
        a.label("tk_full")
        a("s_sub_u32 s5, s5, 32")
        for i in range(7):
            a("s_max_u32 s12, s%d, 32" % (48 + i))
            a("s_sub_u32 s12, s12, 32")
            a("s_cmp_gt_u32 s4, %d" % i)
            a("s_cselect_b32 s12, s12, 0")
            a("s_add_u32 s5, s5, s12")
        for i in range(8):
            a("s_min_u32 s12, s%d, 32" % (48 + i))
            a("s_sub_u32 s13, 32, s12")
            a("s_mov_b32 s4, %d" % i)
            a("s_cmp_lt_u32 s5, s13")
            a("s_cbranch_scc1 tk_slot")
            a("s_sub_u32 s5, s5, s13")
        a("s_branch tk_fail")
        a.label("tk_slot")
        a("s_add_u32 s5, s5, s12")
        a.label("tk_got")
        a("s_lshl_b32 s5, s5, 3")
        a("s_add_u32 s5, s5, s4")
        a("s_mov_b64 exec, 0xff")
        a("v_lshlrev_b32 v2, 14, v0")
        a("v_add_u32 v2, 0x8000, v2")
        a("v_mov_b32 v3, s5")
        a("ds_write_b32 v2, v3")
        a("s_mov_b64 exec, -1")
        a("s_waitcnt lgkmcnt(0)")
        a.label("tk_wait")
        a("s_barrier")
        a("ds_read_b32 v3, v4")
        a("s_waitcnt lgkmcnt(0)")
        a("v_readfirstlane_b32 s2, v3")
        a("s_and_b32 s2, s2, 255")
        if STAMP:
            a("s_memrealtime s[96:97]")
            a("s_waitcnt lgkmcnt(0)")
            a("s_mov_b32 s93, s96")
    PM = os.environ.get("PM", "5")
    if PM == "0":
        a("s_lshr_b32 s3, s2, 5")
        a("s_and_b32 s4, s2, 31")
    elif PM == "1":
        a("s_and_b32 s3, s2, 7")
        a("s_lshr_b32 s4, s2, 3")
    elif PM == "2":
        a("s_and_b32 s3, s2, 3")
        a("s_bfe_u32 s4, s2, 0x10003")
        a("s_lshl_b32 s4, s4, 2")
        a("s_or_b32 s3, s3, s4")
        a("s_bfe_u32 s4, s2, 0x10002")
        a("s_lshr_b32 s5, s2, 4")
        a("s_lshl_b32 s5, s5, 1")
        a("s_or_b32 s4, s4, s5")
    elif PM == "3":
        a("s_and_b32 s3, s2, 1")
        a("s_bfe_u32 s4, s2, 0x20003")
        a("s_lshl_b32 s4, s4, 1")
        a("s_or_b32 s3, s3, s4")
        a("s_bfe_u32 s4, s2, 0x20001")
        a("s_lshr_b32 s5, s2, 5")
        a("s_lshl_b32 s5, s5, 2")
        a("s_or_b32 s4, s4, s5")
    elif PM == "4":
        a("s_lshr_b32 s3, s2, 5")
        a("s_bfe_u32 s4, s2, 0x40001")
        a("s_and_b32 s5, s2, 1")
        a("s_lshl_b32 s5, s5, 4")
        a("s_or_b32 s4, s4, s5")
    elif PM == "5":
        a("s_bfe_u32 s3, s2, 0x10001")
        a("s_bfe_u32 s4, s2, 0x20003")
        a("s_lshl_b32 s4, s4, 1")
        a("s_or_b32 s3, s3, s4")
        a("s_bfe_u32 s4, s2, 0x10002")
        a("s_lshr_b32 s5, s2, 5")
        a("s_lshl_b32 s5, s5, 1")
        a("s_or_b32 s4, s4, s5")
        a("s_and_b32 s5, s2, 1")
        a("s_lshl_b32 s5, s5, 4")
        a("s_or_b32 s4, s4, s5")
    elif PM == "6":
        a("s_bfe_u32 s3, s2, 0x30001")
        a("s_lshr_b32 s4, s2, 4")
        a("s_and_b32 s5, s2, 1")
        a("s_lshl_b32 s5, s5, 4")
        a("s_or_b32 s4, s4, s5")
    a("v_lshrrev_b32 v1, 6, v0")
    a("s_nop 0")
    a("v_readfirstlane_b32 s6, v1")
    a("v_and_b32 v1, 63, v0")
    a("s_waitcnt lgkmcnt(0)")
    a.stamp()
    a("s_cmp_lt_u32 s4, 16")
    a("s_cselect_b32 s8, s24, s26")
    a("s_cselect_b32 s9, s25, s27")
    a("s_cselect_b32 s5, 0, 1")
    a("s_and_b32 s4, s4, 15")
    a("s_mov_b32 s10, 0x200000")
    a("s_mov_b32 s11, 0x20000")
    a("s_mov_b32 s16, s44")
    a("s_mov_b32 s17, s45")
    a("s_mov_b32 s18, 0x10000000")
    a("s_mov_b32 s19, 0x20000")
    a("s_mov_b32 s20, s40")
    a("s_mov_b32 s21, s41")
    a("s_mov_b32 s22, 3584")
    a("s_mov_b32 s23, 0x20000")
    a("s_mov_b32 s15, 0x20000")
    a("s_mov_b32 s51, 0x20000")
    a("s_lshl_b32 s58, s6, 12")
    a("s_lshl_b32 s59, s3, 3")
    a("s_add_u32 s59, s59, s6")
    a("v_and_b32 v13, 15, v1")
    a("v_lshlrev_b32 v13, 10, v13")
    a("v_lshrrev_b32 v14, 4, v1")
    a("v_lshlrev_b32 v14, 4, v14")
    a("v_add_u32 v13, v13, v14")
    a("s_movk_i32 s65, 0x4000")
    a("s_lshl_b32 s60, s59, 15")
    a("v_add_u32 v13, s60, v13")
    a("v_mov_b32 v%d, v13" % V_AOFF)

    def aloads(lo, hi):
        for s in range(lo, hi):
            a("buffer_load_dwordx4 %s, v%d, s[8:11], %s offen offset:%d" % (
                vr(V_A + 4 * s, 4), V_AOFF, "s65" if s & 1 else "0", (s >> 1) * 64))

    def aswaps(lo, hi):
        for s in range(lo, hi, 2):
            for j in range(4):
                a("v_permlane16_swap_b32 v%d, v%d" % (V_A + 4 * s + j, V_A + 4 * s + 4 + j))
        a("s_nop 1")
    a("v_bfe_u32 v13, v1, 2, 2")
    a("v_lshrrev_b32 v14, 5, v1")
    a("v_lshl_add_u32 v14, v14, 4, v13")
    a("v_lshlrev_b32 v14, 8, v14")
    a("v_bfe_u32 v15, v1, 4, 1")
    a("v_lshl_add_u32 v14, v15, 5, v14")
    a("v_and_b32 v15, 3, v1")
    a("v_lshl_add_u32 v14, v15, 3, v14")
    a("v_lshlrev_b32 v13, 6, v13")
    for nt in range(4):
        a("v_xor_b32 v15, %d, v13" % (nt << 6))
        a("v_add_u32 v%d, v14, v15" % (V_TR + nt))
        a("v_add_u32 v%d, 0x10000, v%d" % (V_TR + 4 + nt, V_TR + nt))
    a("v_lshlrev_b32 v%d, 4, v1" % V_ST)
    a("v_lshrrev_b32 v13, 4, v1")
    a("v_bfe_u32 v14, v1, 2, 2")
    a("v_xor_b32 v14, v14, v13")
    a("v_lshlrev_b32 v14, 6, v14")
    a("v_and_b32 v15, 3, v1")
    a("v_lshl_add_u32 v14, v15, 4, v14")
    a("s_lshl_b32 s60, s6, 4")
    a("v_add_u32 v13, s60, v13")

    def set_params(which, wlo, whi, nrec, ldw, colexpr_reg):
        base = 12 if which == "cur" else 48
        sl, sc = (52, 53) if which == "cur" else (54, 55)
        voff = V_OFFC if which == "cur" else V_OFFN
        a("s_mov_b32 s%d, s%d" % (base, wlo))
        a("s_mov_b32 s%d, s%d" % (base + 1, whi))
        if isinstance(nrec, str):
            a("s_mov_b32 s%d, %s" % (base + 2, nrec))
        else:
            a("s_mov_b32 s%d, 0x%x" % (base + 2, nrec))
        a("s_mov_b32 s%d, %d" % (sl, ldw))
        a("s_mov_b32 s%d, %s" % (sc, colexpr_reg))
        a("v_mul_lo_u32 v%d, v%d, s%d" % (voff, V_ROWI, sl))
        a("v_add_u32 v%d, v%d, v%d" % (voff, voff, V_SWZ))

    def dma(kc, which):
        base = 12 if which == "cur" else 48
        sl, sc = (52, 53) if which == "cur" else (54, 55)
        voff = V_OFFC if which == "cur" else V_OFFN
        for i in range(4):
            a("s_add_u32 m0, s58, %d" % (kc * 32768 + i * 1024))
            a("s_mul_i32 s57, s%d, %d" % (sl, kc * 128 + 4 * i))
            a("s_add_u32 s57, s57, s%d" % sc)
            a("buffer_load_dwordx4 v%d, %s, s57 offen lds" % (voff, sr(base, 4)))

    def reads(kc, s, setidx):
        hi = 4 if kc >= 2 else 0
        off = (kc & 1) * 32768 + (s >> 1) * 8192 + (s & 1) * 2048
        for nt in range(4):
            for ird in range(2):
                a("ds_read_b64_tr_b16 %s, v%d offset:%d" % (
                    vr(V_B + setidx * 16 + nt * 4 + ird * 2, 2), V_TR + hi + nt, off + ird * 1024))

    def epi_part(kind, nt):
        if kind == "Q":
            for i in range(16):
                a("v_mul_f32 v%d, v%d, v%d" % (V_ACC + 16 * nt + i, V_LNR + 1, V_ACC + 16 * nt + i))
        for t in range(2):
            d = V_ACC + 16 * nt + 8 * t
            for p in range(4):
                x0 = V_ACC + 16 * nt + 8 * t + 2 * p
                a("v_cvt_pk_bf16_f32 v%d, v%d, v%d" % (d + p, x0, x0 + 1))
            a("buffer_store_dwordx4 %s, v%d, s[16:19], s%d offen offset:%d sc1" % (
                vr(d, 4), V_ST, 90 if nt < 2 else 91, ((nt * 2 + t) & 3) * 1024))
        a("s_nop 1")

    def compute(kc, kind, extra=None, prev=None):
        extra = list(extra or [])
        per = -(-len(extra) // 32)
        for s in range(8):
            if s < 7:
                reads(kc, s + 1, (s + 1) & 1)
            else:
                reads((kc + 1) & 3, 0, 0)
            a("s_waitcnt lgkmcnt(8)")
            ks = kc * 8 + s
            for nt in range(4):
                acc = vr(V_ACC + 16 * nt, 16)
                wf = vr(V_B + (s & 1) * 16 + nt * 4, 4)
                af = vr(V_A + 4 * ks, 4)
                c = "0" if ks == 0 else acc
                if prev and ks == 0:
                    epi_part(prev, nt)
                if kind == "V":
                    a("v_mfma_f32_32x32x16_bf16 %s, %s, %s, %s" % (acc, af, wf, c))
                else:
                    a("v_mfma_f32_32x32x16_bf16 %s, %s, %s, %s" % (acc, wf, af, c))
                for x in extra[:per]:
                    a(x)
                extra = extra[per:]
        assert not extra

    def aload_ops(lo, hi):
        ops = []
        for s in range(lo, hi):
            ops.append("buffer_load_dwordx4 %s, v%d, s[8:11], %s offen offset:%d" % (
                vr(V_A + 4 * s, 4), V_AOFF, "s65" if s & 1 else "0", (s >> 1) * 64))
            ops += ["s_nop 0"] * 3
        return ops

    V_LNM = 244
    V_LNR = 246
    V_LNT = 248

    def norm_ops(q):
        ops = []
        for i in range(32 * q, 32 * q + 32):
            r = V_A + i
            t = 20 + 4 * (i & 3)
            ops.append("v_lshlrev_b32 v%d, 16, v%d" % (t, r))
            ops.append("v_and_b32 v%d, 0xffff0000, v%d" % (t + 1, r))
            ops.append("v_pk_add_f32 %s, %s, %s neg_lo:[0,1] neg_hi:[0,1]" % (vr(t, 2), vr(t, 2), vr(V_LNM, 2)))
            ops.append("v_cvt_pk_bf16_f32 v%d, v%d, v%d" % (r, t, t + 1))
        return ops

    def epilogue(kind):
        if kind == "H":
            a("s_waitcnt lgkmcnt(0)")
            a("v_lshrrev_b32 v15, 5, v1")
            a("v_lshlrev_b32 v15, 3, v15")
            for nt in range(4):
                for q in range(4):
                    a("buffer_load_dwordx2 %s, v15, s[20:23], s53 offen offset:%d" % (
                        vr(V_B + (nt * 4 + q) * 2, 2), 64 * nt + 16 * q))
            a.nop(12)
            for i in range(64):
                a("v_mul_f32 v%d, v%d, v%d" % (V_ACC + i, V_LNR, V_ACC + i))
            a("s_waitcnt vmcnt(0)")
            for nt in range(4):
                for q in range(4):
                    r0 = V_ACC + 16 * nt + 4 * q
                    b0 = V_B + (nt * 4 + q) * 2
                    for p in range(2):
                        x0, x1 = r0 + 2 * p, r0 + 2 * p + 1
                        bb = b0 + p
                        a("v_cvt_pk_bf16_f32 v15, v%d, v%d" % (x0, x1))
                        a("v_lshlrev_b32 v%d, 16, v15" % x0)
                        a("v_and_b32 v%d, 0xffff0000, v15" % x1)
                        a("v_lshlrev_b32 v15, 16, v%d" % bb)
                        a("v_add_f32 v%d, v%d, v15" % (x0, x0))
                        a("v_and_b32 v15, 0xffff0000, v%d" % bb)
                        a("v_add_f32 v%d, v%d, v15" % (x1, x1))
                        a("v_cvt_pk_bf16_f32 v15, v%d, v%d" % (x0, x1))
                        a("v_lshlrev_b32 v%d, 16, v15" % x0)
                        a("v_and_b32 v%d, 0xffff0000, v15" % x1)
                        a("v_max_f32 v%d, 0, v%d" % (x0, x0))
                        a("v_max_f32 v%d, 0, v%d" % (x1, x1))
                        a("v_mul_f32 v%d, v%d, v%d" % (x0, x0, x0))
                        a("v_mul_f32 v%d, v%d, v%d" % (x1, x1, x1))
        else:
            a.nop(12)
        if kind == "Q":
            for i in range(64):
                a("v_mul_f32 v%d, v%d, v%d" % (V_ACC + i, V_LNR + 1, V_ACC + i))
        a("s_add_u32 s67, s56, 4096")
        for nt in range(4):
            for t in range(2):
                d = V_ACC + 16 * nt + 8 * t
                for p in range(4):
                    x0 = V_ACC + 16 * nt + 8 * t + 2 * p
                    a("v_cvt_pk_bf16_f32 v%d, v%d, v%d" % (d + p, x0, x0 + 1))
                a("buffer_store_dwordx4 %s, v%d, s[16:19], s%d offen offset:%d sc1" % (
                    vr(d, 4), V_ST, 56 if nt < 2 else 67, ((nt * 2 + t) & 3) * 1024))
        a.nop(2)

    def chunk(kind, set_next, set_out, prev=None, defer=False):
        waits = (4, 12, 12, 4) if prev else (4 + NPF, 4 + NPF, 4, 4)
        if prev:
            a("s_mov_b32 s90, s56")
            a("s_add_u32 s91, s56, 4096")
        set_next()
        set_out()
        for kc in range(4):
            a("s_waitcnt vmcnt(%d)" % waits[kc])
            a("s_barrier")
            if kc < 1:
                dma(kc + 3, "cur")
            else:
                dma(kc - 1, "next")
            if kc == 0:
                a.stamp()
            compute(kc, kind, None, prev)
        a.stamp()
        if not defer:
            epilogue(kind)
        a.stamp()
        for i in range(3):
            a("s_mov_b32 s%d, s%d" % (12 + i, 48 + i))
        a("s_mov_b32 s52, s54")
        a("s_mov_b32 s53, s55")
        a("v_mov_b32 v%d, v%d" % (V_OFFC, V_OFFN))

    a("s_lshl_b32 s61, s4, 8")
    a("s_add_u32 s62, s61, 4096")
    a("s_lshl_b32 s63, s4, 19")
    a("s_lshl_b32 s64, s59, 13")
    a("s_add_u32 s63, s63, s64")
    a("v_and_b32 v24, 31, v1")
    a("v_lshrrev_b32 v25, 5, v1")
    a("v_xor_b32 v26, v24, v25")
    a("v_lshlrev_b32 v26, 4, v26")
    a("v_lshl_add_u32 v26, v25, 10, v26")
    a("s_lshl_b32 s60, s59, 15")
    a("v_add_u32 v28, s60, v26")
    a("s_lshl_b32 s66, s6, 14")
    a("s_add_u32 s66, s66, 32768")
    a("v_lshlrev_b32 v26, 4, v24")
    a("v_lshlrev_b32 v27, 5, v25")
    a("v_xor_b32 v26, v26, v27")
    a("v_lshl_add_u32 v26, v24, 9, v26")
    a("v_add_u32 v29, s66, v26")

    def a_dma(half):
        for i in range(16):
            a("v_xor_b32 v%d, %d, v28" % (30 + (i & 3), 32 * i))
            a("s_add_u32 m0, s66, %d" % (1024 * i))
            a("s_movk_i32 s67, %d" % (2048 * i + 512 * half))
            a("buffer_load_dwordx4 v%d, s[8:11], s67 offen lds" % (30 + (i & 3)))

    def a_read(half):
        for s_ in range(16):
            ks = (4 * (s_ >> 1) + (s_ & 1)) * 16
            a("v_xor_b32 v%d, %d, v29" % (30 + (s_ & 3), ks))
            a("ds_read_b128 %s, v%d" % (vr(V_A + 4 * (16 * half + s_), 4), 30 + (s_ & 3)))

    def stats(q):
        for i in range(32 * q, 32 * q + 32):
            r = V_A + i
            t = 20 + 2 * (i & 3)
            a("v_lshlrev_b32 v%d, 16, v%d" % (t, r))
            a("v_and_b32 v%d, 0xffff0000, v%d" % (t + 1, r))
            a("v_pk_add_f32 v[16:17], v[16:17], %s" % vr(t, 2))
            a("v_pk_fma_f32 v[18:19], %s, %s, v[18:19]" % (vr(t, 2), vr(t, 2)))

    NPF = 0 if "nopf" in EXPF else 4

    def prefetch():
        if not NPF:
            return
        a("s_lshl_b32 s88, s2, 3")
        a("s_add_u32 s88, s88, s6")
        a("v_lshlrev_b32 v250, 7, v1")
        a("s_lshr_b32 s89, s88, 9")
        a("s_mov_b32 s84, s28")
        a("s_mov_b32 s85, s29")
        for m in range(1, 4):
            a("s_cmp_eq_u32 s89, %d" % m)
            a("s_cselect_b32 s84, s%d, s84" % (28 + 2 * m))
            a("s_cselect_b32 s85, s%d, s85" % (29 + 2 * m))
        a("s_mov_b32 s86, 0x400000")
        a("s_mov_b32 s87, 0x20000")
        a("s_and_b32 s89, s88, 511")
        a("s_lshl_b32 s89, s89, 13")
        a("buffer_load_dword v252, v250, s[84:87], s89 offen")
        a("buffer_load_dword v253, v250, s[84:87], s89 offen offset:64")
        a("s_cmp_lt_u32 s88, 224")
        a("s_cselect_b32 s84, s38, s42")
        a("s_cselect_b32 s85, s39, s43")
        a("s_cselect_b32 s89, 0, 224")
        a("s_sub_u32 s89, s88, s89")
        a("s_lshl_b32 s89, s89, 13")
        a("s_cmp_lt_u32 s88, 448")
        a("s_cselect_b32 s86, 0x1c0000, 0")
        a("buffer_load_dword v254, v250, s[84:87], s89 offen")
        a("buffer_load_dword v255, v250, s[84:87], s89 offen offset:64")

    a_dma(0)
    a("s_cmp_eq_u32 s5, 1")
    a("s_cbranch_scc1 proj_ckv")
    a("s_mov_b32 s46, 0x3f803f80")
    a("s_mov_b32 s47, 0x00003f80")
    a("s_mov_b32 s7, 0x3f800000")
    set_params("cur", 28, 29, 0x400000, 8192, "s61")
    dma(0, "cur")
    a("v_mov_b32 v16, 0")
    a("v_mov_b32 v17, 0")
    a("v_mov_b32 v18, 0")
    a("v_mov_b32 v19, 0")
    a("s_waitcnt vmcnt(4)")
    a_read(0)
    a("s_waitcnt lgkmcnt(0)")
    a_dma(1)
    stats(0)
    stats(1)
    a("s_waitcnt vmcnt(0)")
    a_read(1)
    a("s_waitcnt lgkmcnt(0)")
    a("s_barrier")
    dma(1, "cur")
    dma(2, "cur")
    prefetch()
    stats(2)
    stats(3)
    a.stamp()
    a("v_add_f32 v16, v16, v17")
    a("v_add_f32 v18, v18, v19")
    a("v_mov_b32 v17, v16")
    a("v_mov_b32 v19, v18")
    a.nop(2)
    a("v_permlane32_swap_b32 v16, v17")
    a("v_permlane32_swap_b32 v18, v19")
    a.nop(2)
    a("v_add_f32 v16, v16, v17")
    a("v_add_f32 v18, v18, v19")
    a("v_mul_f32 v16, 0x3b000000, v16")
    a("v_mul_f32 v18, 0x3b000000, v18")
    a("v_fma_f32 v18, -v16, v16, v18")
    a("v_max_f32 v18, 0, v18")
    a("v_cvt_pk_bf16_f32 v16, v16, v18")
    a("v_and_b32 v18, 0xffff0000, v16")
    a("v_lshlrev_b32 v16, 16, v16")
    a("v_add_f32 v18, 0x3727c5ac, v18")
    a("v_cvt_pk_bf16_f32 v18, v18, v18")
    a("v_lshlrev_b32 v18, 16, v18")
    a("v_sqrt_f32 v18, v18")
    a("s_nop 0")
    a("v_cvt_pk_bf16_f32 v18, v18, v18")
    a("v_lshlrev_b32 v18, 16, v18")
    a("v_rcp_f32 v18, v18")
    a("v_mov_b32 v%d, v16" % V_LNM)
    a("v_mov_b32 v%d, v16" % (V_LNM + 1))
    a("v_mov_b32 v%d, v18" % V_LNR)
    a("v_mul_f32 v%d, 0x%08x, v18" % (V_LNR + 1, QSC))
    for q in range(4):
        for x in norm_ops(q):
            a(x)
    reads(0, 0, 0)
    a.stamp()

    def out_q0():
        a("s_add_u32 s56, s63, 0x%x" % QF)

    def out_q1():
        a("s_add_u32 s56, s63, 0x%x" % (QF + 16 * 512 * 1024))

    def next_q1():
        set_params("next", 28, 29, 0x400000, 8192, "s62")

    def next_h():
        a("s_cmp_lt_u32 s4, 14")
        a("s_cselect_b32 s66, 0x1c0000, 0")
        set_params("next", 38, 39, "s66", 3584, "s61")

    def next_none():
        a("s_mov_b32 s66, 0")
        set_params("next", 38, 39, "s66", 3584, "s61")

    def out_h():
        a("s_mul_i32 s56, s59, %d" % AF_BLK)
        a("s_lshl_b32 s66, s4, 13")
        a("s_add_u32 s56, s56, s66")
        a("s_add_u32 s56, s56, 0x%x" % (AF + 256 * 1024))

    chunk("Q", next_q1, out_q0, None, True)
    chunk("Q", next_h, out_q1, "Q", True)
    a("s_cmp_lt_u32 s4, 14")
    a("s_cbranch_scc1 proj_h")
    epilogue("Q")
    a("s_branch proj_end")
    a.label("proj_h")
    chunk("H", next_none, out_h, "Q", False)
    a.stamp_flush(0)
    a("s_branch proj_end")
    a.nst = 2

    a.label("proj_ckv")
    set_params("cur", 30, 31, 0x400000, 8192, "s61")
    dma(0, "cur")
    a("s_waitcnt vmcnt(4)")
    a_read(0)
    a("s_waitcnt lgkmcnt(0)")
    a_dma(1)
    a("s_waitcnt vmcnt(0)")
    a_read(1)
    a("s_waitcnt lgkmcnt(0)")
    a("s_barrier")
    dma(1, "cur")
    dma(2, "cur")
    prefetch()
    reads(0, 0, 0)

    def out_k0():
        a("s_add_u32 s56, s63, 0x%x" % KF)

    def out_k1():
        a("s_add_u32 s56, s63, 0x%x" % (KF + 16 * 512 * 1024))

    def out_v0():
        a("s_add_u32 s56, s63, 0x%x" % VF)

    def out_v1():
        a("s_add_u32 s56, s63, 0x%x" % (VF + 16 * 512 * 1024))

    chunk("QK", lambda: set_params("next", 30, 31, 0x400000, 8192, "s62"), out_k0, None, True)
    chunk("QK", lambda: set_params("next", 32, 33, 0x400000, 8192, "s61"), out_k1, "QK", True)
    chunk("V", lambda: set_params("next", 32, 33, 0x400000, 8192, "s62"), out_v0, "QK", True)
    chunk("V", next_none, out_v1, "V", False)
    a.stamp_flush(int(STAMP) if STAMP else 0)
    a.label("proj_end")
    a.gridbar(0)


def descriptor(a, name, vgpr, sgpr, accum):
    a.raw(".p2align 6")
    a.raw(".amdhsa_kernel %s" % name)
    a.raw("  .amdhsa_next_free_vgpr %d" % vgpr)
    a.raw("  .amdhsa_next_free_sgpr %d" % sgpr)
    a.raw("  .amdhsa_accum_offset %d" % accum)
    a.raw("  .amdhsa_group_segment_fixed_size 0")
    a.raw("  .amdhsa_kernarg_size 112")
    a.raw("  .amdhsa_user_sgpr_count 2")
    a.raw("  .amdhsa_user_sgpr_kernarg_segment_ptr 1")
    a.raw("  .amdhsa_system_sgpr_workgroup_id_x 1")
    a.raw(".end_amdhsa_kernel")


def main():
    from gen_rest import gen_attn, gen_ogemm, gen_reduce
    a = Asm()
    hdr = open("cdna_kernels/%s.s.ref" % NAME).read().split("\n")
    for l in hdr:
        if l.startswith(";") and "@launch" not in l:
            a.raw(l)
        elif not l.startswith(";"):
            break
    a.raw("; @launch kernel=mega_kernel grid=(256,1,1) block=(512,1,1) lds=163840")
    a.raw('.amdgcn_target "amdgcn-amd-amdhsa--gfx950"')
    a.raw(".text")
    a.raw(".globl mega_kernel")
    a.raw(".p2align 8")
    a.raw(".type mega_kernel,@function")
    gen_proj(a)
    gen_attn(a)
    gen_ogemm(a)
    gen_reduce(a)
    a.raw('.section .rodata,"a"')
    descriptor(a, "mega_kernel", 256, 102, 256)
    out = sys.argv[1] if len(sys.argv) > 1 else "cdna_kernels/%s.s" % NAME
    open(out, "w").write("\n".join(a.lines) + "\n")


if __name__ == "__main__":
    main()
```

```python
from gen import vr, sr, QF, KF, VF, AF, AF_BLK, PART, CTR
import math
import os
EXP = os.environ.get("EXP", "")

SCALE_LOG2E = (128 ** -0.5) * math.log2(math.e)


def f32hex(x):
    import struct
    return "0x%08x" % struct.unpack("<I", struct.pack("<f", x))[0]


def interleave(a, mf, fl):
    n = len(mf)
    pos = 0
    for i in range(n):
        a(mf[i])
        end = (len(fl) * (i + 1)) // n
        while pos < end:
            a(fl[pos])
            pos += 1


def gen_attn(a):
    V_LDS = 2
    V_DMA = 3
    V_LG = 4
    V_NEG = 5
    V_RDV = 6
    V_RDK = 7
    V_M = 8
    V_L = 9
    V_T = 10
    V_Q = 16
    V_O = 48
    V_S = 112
    V_P = 144
    V_K = 152
    V_V = 184
    S_MASK = 36
    S_LB = 35
    S_THR = 34
    V_C = 216
    V_E = 232
    NBUF = 5
    LDSZ = NBUF * 32768

    a.label("attn_kernel")
    a.stamp()
    a("s_load_dwordx2 s[8:9], s[0:1], 104")
    a("v_lshrrev_b32 v1, 6, v0")
    a("s_nop 0")
    a("v_readfirstlane_b32 s6, v1")
    a("v_and_b32 v1, 63, v0")
    a("s_lshr_b32 s22, s6, 2")
    a("s_and_b32 s23, s6, 3")
    a("s_and_b32 s3, s2, 7")
    a("s_lshl_b32 s3, s3, 2")
    a("s_lshr_b32 s4, s2, 3")
    a("s_and_b32 s4, s4, 3")
    a("s_add_u32 s3, s3, s4")
    a("s_lshr_b32 s4, s2, 5")
    a("s_sub_u32 s5, 15, s4")
    a("s_mov_b32 s24, 0")
    a("s_mov_b32 s77, 1000000")
    a("s_mov_b32 s10, 0x10000000")
    a("s_mov_b32 s11, 0x20000")
    a("s_lshl_b32 s12, s3, 19")
    a("v_lshlrev_b32 v%d, 4, v1" % V_LDS)
    a("s_lshl_b32 s13, s23, 11")
    a("s_lshl_b32 s25, s22, 13")
    a("s_add_u32 s25, s25, s13")
    a("v_add_u32 v%d, s25, v%d" % (V_DMA, V_LDS))
    a("s_lshl_b32 s26, s22, 14")
    a("v_add_u32 v%d, s26, v%d" % (V_LG, V_LDS))
    a("s_add_u32 s27, s26, s13")
    a("v_and_b32 v12, 31, v1")
    a("v_lshrrev_b32 v13, 5, v1")
    a("v_lshlrev_b32 v13, 2, v13")
    a("v_sub_u32 v12, v12, v13")
    for r in range(16):
        kl = 8 * (r >> 2) + (r & 3)
        a("v_cmp_le_i32 %s, %d, v12" % (sr(S_MASK + 2 * r, 2), kl))
    a("v_mov_b32 v%d, 0xf149f2ca" % V_NEG)
    a("s_waitcnt lgkmcnt(0)")

    def bump(sreg):
        return ["s_add_u32 s%d, s%d, 32768" % (sreg, sreg),
                "s_cmp_ge_u32 s%d, %d" % (sreg, LDSZ),
                "s_cselect_b32 s%d, 0, s%d" % (sreg, sreg)]

    def dma_ops():
        ops = []
        ops.append("s_add_u32 m0, s27, s28")
        ops.append("s_nop 0")
        for i in range(2):
            ops.append("buffer_load_dwordx4 v%d, s[8:11], s16 offen offset:%d lds" % (V_DMA, i * 1024))
        ops.append("s_add_u32 m0, m0, 8192")
        ops.append("s_add_u32 s16, s16, 16384")
        for i in range(2):
            ops.append("buffer_load_dwordx4 v%d, s[8:11], s17 offen offset:%d lds" % (V_DMA, i * 1024))
        ops.append("s_add_u32 s17, s17, 16384")
        ops += bump(28)
        return ops

    def dma():
        for x in dma_ops():
            a(x)

    def tstamp(k):
        if not os.environ.get("STAMP"):
            return
        a("s_memtime s[98:99]")
        a("s_waitcnt lgkmcnt(0)")
        a("s_cmp_eq_u32 s24, 0")
        a("s_cselect_b32 s%d, s98, s%d" % (69 + k, 69 + k))
        a("s_cselect_b32 s%d, s%d, s98" % (73 + k, 73 + k))

    def kread_ops():
        return ["ds_read_b128 %s, v%d offset:%d" % (vr(V_K + 4 * s, 4), V_RDK, s * 1024) for s in range(8)] + \
            bump(33) + ["v_add_u32 v%d, s33, v%d" % (V_RDK, V_LG)]

    def vread_ops():
        return ["ds_read_b128 %s, v%d offset:%d" % (vr(V_V + 4 * i, 4), V_RDV, 8192 + i * 1024) for i in range(8)] + \
            bump(32) + ["v_add_u32 v%d, s32, v%d" % (V_RDV, V_LG)]

    def qk_ops(sp):
        ops = []
        S = V_S + 16 * sp
        for s in range(8):
            c = vr(V_C, 16) if s == 0 else vr(S, 16)
            ops.append("v_mfma_f32_32x32x16_bf16 %s, %s, %s, %s" % (vr(S, 16), vr(V_K + 4 * s, 4), vr(V_Q + 4 * s, 4), c))
        return ops

    def pv_ops():
        ops = []
        for t in range(2):
            for dt in range(4):
                o = vr(V_O + 16 * dt, 16)
                ops.append("v_mfma_f32_32x32x16_bf16 %s, %s, %s, %s" % (o, vr(V_V + 4 * (dt * 2 + t), 4), vr(V_P + 4 * t, 4), o))
        return ops

    def max_ops(S, t0, t1):
        return ["v_max3_f32 v%d, v%d, v%d, v%d" % (t0, S, S + 1, S + 2),
                "v_max3_f32 v%d, v%d, v%d, v%d" % (t1, S + 3, S + 4, S + 5),
                "v_max3_f32 v%d, v%d, v%d, v%d" % (t0, t0, S + 6, S + 7),
                "v_max3_f32 v%d, v%d, v%d, v%d" % (t1, t1, S + 8, S + 9),
                "v_max3_f32 v%d, v%d, v%d, v%d" % (t0, t0, S + 10, S + 11),
                "v_max3_f32 v%d, v%d, v%d, v%d" % (t1, t1, S + 12, S + 13),
                "v_max3_f32 v%d, v%d, v%d, v%d" % (t0, t0, S + 14, S + 15),
                "v_max_f32 v%d, v%d, v%d" % (t0, t0, t1),
                "v_mov_b32 v%d, v%d" % (t1, t0)]

    def soft_ops(S, t2, t3):
        P = V_P
        E = V_E
        vb = []
        for r in range(16):
            vb.append("v_exp_f32 v%d, v%d" % (E + r, S + r))
            if r >= 3 and r % 2 == 1:
                q = r - 3
                vb.append("v_cvt_pk_bf16_f32 v%d, v%d, v%d" % (P + q // 2, E + q, E + q + 1))
                if q == 0:
                    vb.append("v_add_f32 v%d, v%d, v%d" % (t2, E, E + 1))
                elif q == 2:
                    vb.append("v_add_f32 v%d, v%d, v%d" % (t3, E + 2, E + 3))
                else:
                    vb.append("v_add_f32 v%d, v%d, v%d" % (t2, t2, E + q))
                    vb.append("v_add_f32 v%d, v%d, v%d" % (t3, t3, E + q + 1))
        vb.append("v_add_f32 v%d, v%d, v%d" % (t2, t2, t3))
        vb.append("v_cvt_pk_bf16_f32 v%d, v%d, v%d" % (P + 7, E + 14, E + 15))
        vb.append("v_add_f32 v%d, v%d, v%d" % (t3, E + 14, E + 15))
        vb.append("v_add_f32 v%d, v%d, v%d" % (t2, t2, t3))
        return vb

    cnt = [0]
    rare = []

    def phaseA(sp, diag):
        cnt[0] += 1
        L = "attn_it%d" % cnt[0]
        S = V_S + 16 * sp
        T = V_T
        if diag:
            a("s_lshl_b32 s29, s18, 1")
            a("s_add_u32 s29, s29, s22")
            a("s_cmp_lt_u32 s29, s30")
            a("s_cbranch_scc1 %s_nomask" % L)
            a("s_cmp_eq_u32 s29, s30")
            a("s_cbranch_scc1 %s_tri" % L)
            for r in range(16):
                a("v_mov_b32 v%d, v%d" % (S + r, V_NEG))
            a("s_branch %s_nomask" % L)
            a.label("%s_tri" % L)
            for r in range(16):
                a("v_cndmask_b32 v%d, v%d, v%d, %s" % (S + r, V_NEG, S + r, sr(S_MASK + 2 * r, 2)))
            a.label("%s_nomask" % L)
        qk = qk_ops(sp ^ 1)
        S2 = V_S + 16 * (sp ^ 1)
        so = soft_ops(S, T + 3, T + 4)
        vrd = vread_ops()
        mix = []
        step = len(so) // len(vrd)
        k = 0
        for i, x in enumerate(so):
            mix.append(x)
            if i % step == step - 1 and k < len(vrd):
                mix.append(vrd[k])
                k += 1
        mix += vrd[k:]
        interleave(a, qk, mix)
        a("v_cmp_lt_f32 vcc, s%d, v%d" % (S_THR, T + 3))
        a("s_nop 1")
        a("s_cbranch_vccnz %s_rs" % L)
        a.label("%s_nors" % L)
        a("v_add_f32 v%d, v%d, v%d" % (V_L, V_L, T + 3))
        blk = ["%s_rs:" % L]
        if os.environ.get("STAMP"):
            blk.append("s_add_u32 s77, s77, 1")
        blk += max_ops(S, T, T + 1)
        blk += ["s_nop 1",
                "v_permlane32_swap_b32 v%d, v%d" % (T, T + 1),
                "s_nop 0",
                "v_max3_f32 v%d, v%d, v%d, s%d" % (T, T, T + 1, S_LB),
                "v_exp_f32 v%d, -v%d" % (T + 1, T),
                "v_add_f32 v%d, v%d, v%d" % (V_M, V_M, T),
                "v_min_f32 v%d, 0x7149f2ca, v%d" % (T + 1, T + 1),
                "s_mov_b32 s%d, 0x53800000" % S_THR,
                "s_mov_b32 s%d, 0" % S_LB,
                "v_mul_f32 v%d, v%d, v%d" % (V_L, V_L, T + 1)]
        for i in range(64):
            blk.append("v_mul_f32 v%d, v%d, v%d" % (V_O + i, V_O + i, T + 1))
        for r in range(16):
            blk.append("v_sub_f32 v%d, v%d, v%d" % (S + r, S + r, T))
        blk += so
        for r in range(16):
            blk.append("v_sub_f32 v%d, v%d, v%d" % (V_C + r, V_C + r, T))
        for r in range(16):
            blk.append("v_sub_f32 v%d, v%d, v%d" % (S2 + r, S2 + r, T))
        blk.append("s_branch %s_nors" % L)
        rare.append(blk)
        a("s_add_u32 s18, s18, 1")

    def phaseC(last=False):
        a("s_waitcnt lgkmcnt(0)")
        a("s_nop 0")
        f = [] if last else kread_ops() + dma_ops()
        interleave(a, pv_ops(), f)

    def bar():
        a("s_waitcnt vmcnt(4) lgkmcnt(0)")
        a("s_barrier")

    def tile_front(qt):
        a("s_lshl_b32 s15, s%d, 2" % qt)
        a("s_add_u32 s15, s15, s23")
        a("s_lshl_b32 s15, s15, 13")
        a("s_add_u32 s15, s15, s12")
        for k in range(2):
            for s in range(4):
                a("buffer_load_dwordx4 %s, v%d, s[8:11], s15 offen offset:%d" % (vr(V_Q + 16 * k + 4 * s, 4), V_LDS, s * 1024))
            a("s_add_u32 s15, s15, 4096")
        a("s_add_u32 s16, s12, 0x%x" % KF)
        a("s_add_u32 s17, s12, 0x%x" % VF)
        a("s_mov_b32 s28, 98304")
        dma()
        dma()

    tile_front(5)
    a.label("attn_tile")
    a("s_lshl_b32 s14, s5, 2")
    a("s_add_u32 s14, s14, s23")
    a("s_mov_b32 s30, s14")
    dma()
    dma()
    a("s_mov_b32 s32, 98304")
    a("s_mov_b32 s33, 98304")
    a("v_add_u32 v%d, s32, v%d" % (V_RDV, V_LG))
    a("v_add_u32 v%d, s32, v%d" % (V_RDK, V_LG))
    a("v_mov_b32 v%d, 0" % V_M)
    a("s_mov_b32 s%d, 0xbf800000" % S_THR)
    a("s_mov_b32 s%d, 0xff7fffff" % S_LB)
    for i in range(16):
        a("v_mov_b32 v%d, 0" % (V_C + i))
    a("v_mov_b32 v%d, 0" % V_L)
    for i in range(64):
        a("v_mov_b32 v%d, 0" % (V_O + i))
    a("s_lshl_b32 s19, s5, 1")
    a("s_mov_b32 s18, 0")
    a("s_waitcnt vmcnt(12)")
    a("s_cmp_eq_u32 s24, 1")
    a("s_cbranch_scc1 attn_w2")
    a("s_waitcnt vmcnt(8)")
    a.label("attn_w2")
    a("s_barrier")
    tstamp(0)
    for x in kread_ops():
        a(x)
    a("s_waitcnt lgkmcnt(0)")
    for x in qk_ops(0):
        a(x)
    for x in kread_ops():
        a(x)
    a("s_cmp_eq_u32 s22, 1")
    a("s_cbranch_scc1 attn_g1")
    a("s_cmp_eq_u32 s5, 0")
    a("s_cbranch_scc1 attn_diag0")
    a.label("attn_loop0")
    a.inloop = "og" not in EXP
    for sp in range(2):
        bar()
        a("s_waitcnt lgkmcnt(0)")
        phaseA(sp, False)
        phaseC()
    a.inloop = False
    a("s_cmp_lt_u32 s18, s19")
    a("s_cbranch_scc1 attn_loop0")
    a.label("attn_diag0")
    tstamp(1)
    for sp in range(2):
        bar()
        a("s_waitcnt lgkmcnt(0)")
        phaseA(sp, True)
        phaseC()
    tstamp(2)
    a("s_branch attn_merge")
    a.label("attn_g1")
    bar()
    dma()
    a("s_waitcnt lgkmcnt(0)")
    a("s_cmp_eq_u32 s5, 0")
    a("s_cbranch_scc1 attn_diag1a")
    phaseA(0, False)
    a.label("attn_loop1")
    a.inloop = "og" not in EXP
    bar()
    phaseC()
    a("s_waitcnt lgkmcnt(0)")
    phaseA(1, False)
    a.inloop = False
    a("s_cmp_ge_u32 s18, s19")
    a("s_cbranch_scc1 attn_diag1")
    a.inloop = "og" not in EXP
    bar()
    phaseC()
    a("s_waitcnt lgkmcnt(0)")
    phaseA(0, False)
    a.inloop = False
    a("s_branch attn_loop1")
    a.label("attn_diag1")
    bar()
    phaseC()
    a("s_waitcnt lgkmcnt(0)")
    a.label("attn_diag1a")
    phaseA(0, True)
    bar()
    phaseC()
    a("s_waitcnt lgkmcnt(0)")
    phaseA(1, True)
    phaseC(last=True)
    a.label("attn_merge")
    a("s_waitcnt vmcnt(0) lgkmcnt(0)")
    a("s_barrier")
    a("s_cmp_eq_u32 s24, 1")
    a("s_cbranch_scc1 attn_nofront")
    tile_front(4)
    a.label("attn_nofront")
    a.nop(12)
    a("s_mul_i32 s29, s6, 9216")
    a("v_add_u32 v12, s29, v%d" % V_LDS)
    a("s_xor_b32 s31, s6, 4")
    a("s_mul_i32 s29, s31, 9216")
    a("v_add_u32 v13, s29, v%d" % V_LDS)
    for g in range(2):
        if g == 0:
            a("s_cmp_eq_u32 s22, 1")
            a("s_cbranch_scc1 attn_mg1")
        else:
            a.label("attn_mg1")
        keep, send = V_O + 32 * g, V_O + 32 * (1 - g)
        for i in range(8):
            a("ds_write_b128 v12, %s offset:%d" % (vr(send + 4 * i, 4), i * 1024))
        a("ds_write_b64 v12, v[%d:%d] offset:8192" % (V_M, V_L))
        a("s_waitcnt lgkmcnt(0)")
        a("s_barrier")
        a("ds_read_b64 v[14:15], v13 offset:8192")
        for i in range(8):
            a("ds_read_b128 %s, v13 offset:%d" % (vr(V_K + 4 * i, 4), i * 1024))
        a("s_waitcnt lgkmcnt(8)")
        a("v_max_f32 v10, v%d, v14" % V_M)
        a("v_sub_f32 v11, v%d, v10" % V_M)
        a("v_sub_f32 v10, v14, v10")
        a("v_exp_f32 v11, v11")
        a("v_exp_f32 v10, v10")
        a.nop(1)
        a("v_mul_f32 v%d, v%d, v11" % (V_L, V_L))
        a("v_fma_f32 v%d, v15, v10, v%d" % (V_L, V_L))
        a("v_mov_b32 v14, v%d" % V_L)
        a.nop(2)
        a("v_permlane32_swap_b32 v%d, v14" % V_L)
        a.nop(1)
        a("v_add_f32 v14, v14, v%d" % V_L)
        a("v_rcp_f32 v14, v14")
        a.nop(1)
        a("v_mul_f32 v11, v11, v14")
        a("v_mul_f32 v10, v10, v14")
        a("s_mul_i32 s20, s14, %d" % AF_BLK)
        a("s_lshl_b32 s21, s3, 13")
        a("s_add_u32 s20, s20, s21")
        a("s_add_u32 s20, s20, 0x%x" % (AF + 4096 * g))
        a("s_waitcnt lgkmcnt(0)")
        for i in range(32):
            a("v_mul_f32 v%d, v%d, v10" % (V_K + i, V_K + i))
            a("v_fma_f32 v%d, v%d, v11, v%d" % (V_K + i, keep + i, V_K + i))
        for k in range(4):
            d = V_V + k * 4
            for p in range(4):
                x0 = V_K + 8 * k + 2 * p
                a("v_cvt_pk_bf16_f32 v%d, v%d, v%d" % (d + p, x0, x0 + 1))
            a("buffer_store_dwordx4 %s, v%d, s[8:11], s20 offen offset:%d sc1" % (vr(d, 4), V_LDS, k * 1024))
        if g == 0:
            a("s_branch attn_mgdone")
    a.label("attn_mgdone")
    tstamp(3)
    a.nst = 10
    a("s_cmp_eq_u32 s24, 1")
    a("s_cbranch_scc1 attn_fin")
    a("s_mov_b32 s24, 1")
    a("s_mov_b32 s5, s4")
    a("s_barrier")
    a("s_branch attn_tile")
    a.label("attn_fin")
    a.stamp_flush(0)
    a.label("attn_end")
    a("s_branch attn_after")
    for blk in rare:
        a.label(blk[0][:-1])
        for x in blk[1:]:
            a(x)
    a.label("attn_after")
    a.ostamp()
    a("s_waitcnt vmcnt(0) lgkmcnt(0)")
    a("s_barrier")
    a.phase = 2


def gen_ogemm(a):
    V_AL = 2
    V_TR = 4
    V_DA = 8
    V_DB = 9
    V_ST = 11
    V_F = 16
    V_ACC = 48
    NST = 23
    a.label("ogemm_kernel")
    a.stamp()
    a("s_load_dwordx2 s[8:9], s[0:1], 104")
    a("s_load_dwordx2 s[24:25], s[0:1], 40")
    a("s_load_dwordx2 s[26:27], s[0:1], 72")
    a("v_lshrrev_b32 v1, 6, v0")
    a("s_nop 0")
    a("v_readfirstlane_b32 s6, v1")
    a("v_and_b32 v1, 63, v0")
    a("s_lshr_b32 s3, s2, 4")
    a("s_and_b32 s4, s2, 1")
    a("s_lshl_b32 s4, s4, 1")
    a("s_bfe_u32 s5, s2, 0x10003")
    a("s_or_b32 s4, s4, s5")
    a("s_bfe_u32 s5, s2, 0x20001")
    if "same" in EXP:
        a("s_mov_b32 s3, 0")
        a("s_mov_b32 s4, 0")
        a("s_mov_b32 s5, 0")
    if "map1" not in EXP:
        a("s_and_b32 s3, s2, 1")
        a("s_lshl_b32 s3, s3, 3")
        a("s_bfe_u32 s4, s2, 0x30003")
        a("s_or_b32 s3, s3, s4")
        a("s_lshr_b32 s4, s2, 6")
    a("s_mov_b32 s10, 0x10000000")
    a("s_mov_b32 s11, 0x20000")
    a("s_mov_b32 s15, 0x20000")
    a("s_lshr_b32 s30, s6, 2")
    a("s_lshr_b32 s31, s6, 1")
    a("s_and_b32 s31, s31, 1")
    a("s_and_b32 s32, s6, 1")
    a("v_lshlrev_b32 v%d, 4, v1" % V_ST)
    a("s_lshl_b32 s33, s31, 13")
    a("s_lshl_b32 s34, s30, 11")
    a("s_add_u32 s33, s33, s34")
    a("v_add_u32 v%d, s33, v%d" % (V_AL, V_ST))
    a("v_add_u32 v%d, 0x10000, v%d" % (V_AL + 1, V_AL))
    a("v_bfe_u32 v12, v1, 2, 2")
    a("v_lshrrev_b32 v13, 5, v1")
    a("v_lshl_add_u32 v13, v13, 2, v12")
    a("v_lshlrev_b32 v13, 8, v13")
    a("v_bfe_u32 v14, v1, 4, 1")
    a("v_lshl_add_u32 v13, v14, 5, v13")
    a("v_and_b32 v14, 3, v1")
    a("v_lshl_add_u32 v13, v14, 3, v13")
    a("s_lshl_b32 s33, s30, 13")
    a("s_add_u32 s33, s33, 16384")
    a("v_add_u32 v13, s33, v13")
    a("v_lshlrev_b32 v12, 6, v12")
    a("s_lshl_b32 s34, s32, 7")
    for ntl in range(2):
        a("s_add_u32 s35, s34, %d" % (ntl << 6))
        a("v_xor_b32 v14, s35, v12")
        a("v_add_u32 v%d, v13, v14" % (V_TR + ntl))
        a("v_add_u32 v%d, 0x10000, v%d" % (V_TR + 2 + ntl, V_TR + ntl))
    a("s_lshr_b32 s33, s6, 1")
    a("s_lshl_b32 s34, s3, 2")
    a("s_add_u32 s34, s34, s33")
    a("s_mul_i32 s34, s34, %d" % AF_BLK)
    a("s_lshl_b32 s35, s32, 11")
    a("s_add_u32 s34, s34, s35")
    a("s_add_u32 s34, s34, 0x%x" % AF)
    a("v_add_u32 v%d, s34, v%d" % (V_DA, V_ST))
    a("s_lshl_b32 s36, s6, 11")
    a("v_lshrrev_b32 v12, 4, v1")
    a("v_bfe_u32 v13, v1, 2, 2")
    a("v_xor_b32 v13, v13, v12")
    a("v_lshlrev_b32 v13, 6, v13")
    a("v_and_b32 v14, 3, v1")
    a("v_lshl_add_u32 v13, v14, 4, v13")
    a("s_lshl_b32 s33, s6, 3")
    a("v_add_u32 v12, s33, v12")
    a("v_lshlrev_b32 v12, 10, v12")
    a("v_add_u32 v12, v12, v13")
    a("s_lshl_b32 s33, s4, 8")
    a("v_add_u32 v%d, s33, v12" % V_DB)
    a("v_add_u32 v%d, 3072, v%d" % (V_DB + 1, V_DB))
    a("s_mov_b32 s42, 0x1c0000")
    a("s_mul_i32 s37, s5, 7")
    a("s_add_u32 s37, s37, 64")
    a("s_lshl_b32 s44, s5, 4")
    a("s_mov_b32 s43, 0")
    a("s_waitcnt lgkmcnt(0)")

    def dma(buf):
        a("s_cmp_lt_u32 s37, 64")
        a("s_cselect_b32 s12, s24, s26")
        a("s_cselect_b32 s13, s25, s27")
        a("s_cselect_b32 s14, 0x400000, s42")
        a("s_cselect_b32 s39, 0, 64")
        a("s_sub_u32 s39, s37, s39")
        a("s_lshl_b32 s39, s39, 16")
        a("s_lshl_b32 s40, s37, 12")
        a("s_cmp_lt_u32 s43, %d" % NST)
        a("s_cselect_b32 s14, s14, 0")
        a("s_cselect_b32 s40, s40, 0x10000000")
        a("s_add_u32 s37, s37, 1")
        a("s_add_u32 s43, s43, 1")
        a("s_cmp_eq_u32 s43, 7")
        a("s_cselect_b32 s37, s44, s37")
        a("s_add_u32 m0, s36, %d" % (buf * 32768))
        a("s_nop 0")
        for i in range(2):
            a("buffer_load_dwordx4 v%d, s[8:11], s40 offen offset:%d lds" % (V_DA, i * 1024))
        a("s_add_u32 m0, s36, %d" % (buf * 32768 + 16384))
        a("s_nop 0")
        for i in range(2):
            a("buffer_load_dwordx4 v%d, s[12:15], s39 offen offset:%d lds" % (V_DB + i, i * 1024))

    def reads(buf, sl, st):
        hi = 1 if buf >= 2 else 0
        bo = (buf & 1) * 32768
        f = V_F + st * 16
        for mbl in range(2):
            a("ds_read_b128 %s, v%d offset:%d" % (vr(f + 4 * mbl, 4), V_AL + hi, bo + mbl * 4096 + sl * 1024))
        for ntl in range(2):
            for ird in range(2):
                a("ds_read_b64_tr_b16 %s, v%d offset:%d" % (
                    vr(f + 8 + 4 * ntl + 2 * ird, 2), V_TR + 2 * hi + ntl, bo + sl * 4096 + ird * 2048))

    def mfmas(st, first):
        f = V_F + st * 16
        for mbl in range(2):
            for ntl in range(2):
                acc = vr(V_ACC + 16 * (mbl * 2 + ntl), 16)
                c = "0" if first else acc
                a("v_mfma_f32_32x32x16_bf16 %s, %s, %s, %s" % (acc, vr(f + 8 + 4 * ntl, 4), vr(f + 4 * mbl, 4), c))

    dma(0)
    dma(1)
    dma(2)
    for i in range(64):
        a("v_mov_b32 v%d, 0" % (V_ACC + i))
    a("s_cmp_lg_u32 s6, 0")
    a("s_cbranch_scc1 ogemm_nosig")
    a.gb_signal(1)
    a.label("ogemm_nosig")
    a("s_mov_b32 s41, 0")
    a("s_waitcnt vmcnt(8)")
    a("s_barrier")
    a.stamp()
    reads(0, 0, 0)

    def body(buf, hook=None, check=True):
        a("s_waitcnt vmcnt(4)")
        a("s_barrier")
        reads(buf, 1, 1)
        a("s_waitcnt lgkmcnt(6)")
        mfmas(0, False)
        reads((buf + 1) & 3, 0, 0)
        if hook:
            hook()
        dma((buf + 3) & 3)
        a("s_waitcnt lgkmcnt(6)")
        mfmas(1, False)
        a("s_add_u32 s41, s41, 1")
        if check:
            a("s_cmp_ge_u32 s41, %d" % NST)
            a("s_cbranch_scc1 ogemm_done")

    def pollhook():
        a("s_cmp_lg_u32 s6, 0")
        a("s_cbranch_scc1 ogemm_nopoll")
        a.gb_poll(1)
        a.label("ogemm_nopoll")
        a("s_barrier")
        a.stamp()

    for it in range(8):
        body(it & 3, pollhook if it == 4 else None, False)
    a.label("ogemm_loop")
    a.inloop = "og" in EXP
    for buf in range(4):
        body(buf)
    a("s_branch ogemm_loop")
    a.inloop = False
    a.label("ogemm_done")
    a.ostamp()
    a.stamp()
    a("s_waitcnt vmcnt(0) lgkmcnt(0)")
    a("s_barrier")
    a.nop(12)
    a("s_and_b32 s33, s6, 3")
    a("s_lshl_b32 s33, s33, 14")
    a("s_lshl_b32 s34, s6, 13")
    a("v_add_u32 v12, s34, v%d" % V_ST)
    a("s_xor_b32 s34, s34, 0x8000")
    a("v_add_u32 v13, s34, v%d" % V_ST)
    a("s_lshl_b32 s34, s3, 2")
    a("s_add_u32 s34, s34, s4")
    a("s_lshl_b32 s34, s34, 16")
    a("s_add_u32 s34, s34, s33")
    a("s_lshl_b32 s35, s5, 22")
    a("s_add_u32 s34, s34, s35")
    a("s_add_u32 s34, s34, 0x%x" % PART)
    a("s_cmp_eq_u32 s30, 0")
    a("s_cbranch_scc1 ogemm_g0")
    for g in (1, 0):
        if g == 0:
            a.label("ogemm_g0")
        keep, send = V_ACC + 32 * g, V_ACC + 32 * (1 - g)
        for i in range(8):
            a("ds_write_b128 v12, %s offset:%d" % (vr(send + 4 * i, 4), i * 1024))
        a("s_waitcnt lgkmcnt(0)")
        a("s_barrier")
        for i in range(8):
            a("ds_read_b128 %s, v13 offset:%d" % (vr(112 + 4 * i, 4), i * 1024))
        a("s_add_u32 s34, s34, %d" % (8192 * g))
        for i in range(8):
            a("s_waitcnt lgkmcnt(%d)" % (7 - i))
            for k in range(4):
                a("v_add_f32 v%d, v%d, v%d" % (keep + 4 * i + k, keep + 4 * i + k, 112 + 4 * i + k))
            if i == 4:
                a("s_add_u32 s34, s34, 4096")
            a("buffer_store_dwordx4 %s, v%d, s[8:11], s34 offen offset:%d sc1" % (vr(keep + 4 * i, 4), V_ST, (i & 3) * 1024))
        if g == 1:
            a("s_branch ogemm_end")
    a.stamp()
    a.stamp_flush(0)
    a.label("ogemm_end")
    a("s_lshl_b32 s49, s3, 2")
    a("s_add_u32 s49, s49, s4")
    a("s_lshl_b32 s45, s49, 4")
    a("s_lshl_b32 s46, s5, 2")
    a("s_add_u32 s45, s45, s46")
    reduce_pre(a)
    a("s_waitcnt vmcnt(0) lgkmcnt(0)")
    a("s_barrier")
    a("s_cmp_lg_u32 s6, 0")
    a("s_cbranch_scc1 tb_wait")
    a("s_add_u32 s46, s49, 32")
    a("s_lshl_b32 s46, s46, 12")
    a("s_add_u32 s46, s46, 0x%x" % CTR)
    a("s_mov_b64 exec, 1")
    a("v_mov_b32 v12, 1")
    a("v_mov_b32 v13, 0")
    a("buffer_atomic_add v12, v13, s[8:11], s46 offen sc1")
    a("s_mov_b32 s47, 0")
    a.label("tb_loop")
    a("buffer_load_dword v14, v13, s[8:11], s46 offen sc1")
    a("s_waitcnt vmcnt(0)")
    a("v_readfirstlane_b32 s48, v14")
    a("s_cmp_ge_u32 s48, 4")
    a("s_cbranch_scc1 tb_done")
    a("s_add_u32 s47, s47, 1")
    a("s_cmp_gt_u32 s47, 40000")
    a("s_cbranch_scc1 tb_done")
    a("s_sleep 4")
    a("s_branch tb_loop")
    a.label("tb_done")
    a("s_mov_b64 exec, -1")
    a.label("tb_wait")
    a("s_barrier")
    a.phase = 3


RB = 176


def reduce_pre(a):
    a("s_load_dwordx2 s[52:53], s[0:1], 0")
    a("s_load_dwordx2 s[56:57], s[0:1], 80")
    a("s_load_dwordx2 s[60:61], s[0:1], 88")
    a("s_mov_b32 s54, 0x200000")
    a("s_mov_b32 s55, 0x20000")
    a("s_mov_b32 s58, 1024")
    a("s_mov_b32 s59, 0x20000")
    a("s_mov_b32 s62, 0x200000")
    a("s_mov_b32 s63, 0x20000")
    T = RB + 70
    a("s_lshr_b32 s40, s6, 2")
    a("v_and_b32 v%d, 255, v0" % T)
    a("s_add_u32 s41, s45, s40")
    a("v_lshlrev_b32 v%d, 4, v%d" % (RB + 1, T))
    a("s_waitcnt lgkmcnt(0)")
    for j in range(2):
        B = RB + 4 + 32 * j
        v2, v3 = RB + 2, RB + 3
        a("s_add_u32 s42, s41, %d" % (2 * j))
        a("s_lshr_b32 s64, s42, 4")
        a("s_lshr_b32 s65, s42, 2")
        a("s_and_b32 s65, s65, 3")
        a("s_and_b32 s66, s42, 3")
        a("s_lshr_b32 s24, s64, 2")
        a("s_and_b32 s25, s64, 3")
        a("s_lshr_b32 s26, s65, 1")
        a("s_and_b32 s27, s65, 1")
        a("s_lshr_b32 s28, s66, 1")
        a("s_and_b32 s29, s66, 1")
        a("s_lshl_b32 s30, s24, 2")
        a("s_lshl_b32 s31, s26, 1")
        a("s_add_u32 s30, s30, s31")
        a("s_add_u32 s30, s30, s28")
        a("s_lshl_b32 s30, s30, 15")
        a("s_lshl_b32 s31, s25, 2")
        a("s_lshl_b32 s32, s27, 1")
        a("s_add_u32 s31, s31, s32")
        a("s_add_u32 s31, s31, s29")
        a("s_lshl_b32 s31, s31, 6")
        a("v_and_b32 v%d, 31, v%d" % (v2, T))
        a("v_lshlrev_b32 v%d, 10, v%d" % (v2, v2))
        a("v_lshrrev_b32 v%d, 6, v%d" % (v3, T))
        a("v_lshlrev_b32 v%d, 4, v%d" % (v3, v3))
        a("v_bfe_u32 v%d, v%d, 5, 1" % (B + 16, T))
        a("v_lshl_add_u32 v%d, v%d, 3, v%d" % (v3, B + 16, v3))
        a("v_add_u32 v%d, s31, v%d" % (v3, v3))
        a("v_add_u32 v%d, v%d, v%d" % (v2, v2, v3))
        a("v_add_u32 v%d, s30, v%d" % (B + 26, v2))
        a("buffer_load_dwordx2 %s, v%d, s[52:55], 0 offen" % (vr(B + 16, 2), B + 26))
        a("buffer_load_dwordx2 %s, v%d, s[56:59], 0 offen" % (vr(B + 18, 2), v3))


def gen_reduce(a):
    a.label("reduce_kernel")
    a.ostamp()
    a.stamp()
    for j in range(2):
        B = RB + 4 + 32 * j
        a("s_lshl_b32 s42, s41, 12")
        a("s_add_u32 s42, s42, 0x%x" % (PART + j * 8192))
        for p in range(4):
            a("buffer_load_dwordx4 %s, v%d, s[8:11], s42 offen" % (vr(B + 4 * p, 4), RB + 1))
            if p < 3:
                a("s_add_u32 s42, s42, 0x400000")
    for j in range(2):
        B = RB + 4 + 32 * j
        for p in range(2):
            a("v_lshlrev_b32 v%d, 16, v%d" % (B + 20, B + 16 + p))
            a("v_and_b32 v%d, 0xffff0000, v%d" % (B + 21, B + 16 + p))
            a("v_lshlrev_b32 v%d, 16, v%d" % (B + 22, B + 18 + p))
            a("v_and_b32 v%d, 0xffff0000, v%d" % (B + 23, B + 18 + p))
            a("v_add_f32 v%d, v%d, v%d" % (B + 28 + 2 * p, B + 20, B + 22))
            a("v_add_f32 v%d, v%d, v%d" % (B + 29 + 2 * p, B + 21, B + 23))
    for j in range(2):
        B = RB + 4 + 32 * j
        a("s_waitcnt vmcnt(%d)" % (4 - 4 * j))
        for i in range(4):
            a("v_add_f32 v%d, v%d, v%d" % (B + i, B + i, B + 4 + i))
            a("v_add_f32 v%d, v%d, v%d" % (B + 8 + i, B + 8 + i, B + 12 + i))
        for i in range(4):
            a("v_add_f32 v%d, v%d, v%d" % (B + i, B + i, B + 8 + i))
        for i in range(4):
            a("v_add_f32 v%d, v%d, v%d" % (B + i, B + i, B + 28 + i))
        for p in range(2):
            a("v_cvt_pk_bf16_f32 v%d, v%d, v%d" % (B + 24 + p, B + 2 * p, B + 1 + 2 * p))
        a("buffer_store_dwordx2 %s, v%d, s[60:63], 0 offen" % (vr(B + 24, 2), B + 26))
    a.stamp()
    a.stamp_flush(0)
    if os.environ.get("STAMP"):
        a("s_waitcnt vmcnt(0)")
        a("s_memrealtime s[18:19]")
        a("s_load_dwordx2 s[8:9], s[0:1], 96")
        a("s_mov_b32 s10, 65536")
        a("s_mov_b32 s11, 0x20000")
        a("s_lshl_b32 s20, s2, 4")
        a("s_add_u32 s20, s20, %d" % (4096 + 4096 * 3))
        a("s_waitcnt lgkmcnt(0)")
        a("s_mov_b64 exec, 1")
        a("v_mov_b32 v4, s18")
        a("v_mov_b32 v5, s93")
        a("v_mov_b32 v6, s18")
        a("v_mov_b32 v7, s92")
        a("v_mov_b32 v2, 0")
        a("buffer_store_dwordx4 v[4:7], v2, s[8:11], s20 offen")
    if os.environ.get("OST"):
        a("s_waitcnt vmcnt(0)")
    a.ostamp(True)
    a("s_endpgm")
```

```python
import sys

NAME = "parallel_sum__compressed_kv_cla__dense_activation_squared_relu__prompt"

MB = 1 << 20
QF = 0
KF = 16 * MB
VF = 32 * MB
AF = 49 * MB
AF_BLK = 368 * 1024
PART = 80 * MB
CTR = 100 * MB
import math, struct
QSC = struct.unpack("<I", struct.pack("<f", (128 ** -0.5) * math.log2(math.e)))[0]


import os
STAMP = os.environ.get("STAMP")


class Asm:
    def __init__(self):
        self.lines = []
        self.nst = 0

    def stamp(self):
        if not STAMP:
            return
        self("s_memtime s[98:99]")
        self("s_waitcnt lgkmcnt(0)")
        self("s_mov_b32 s%d, s98" % (68 + self.nst))
        self.nst += 1

    def stamp_flush(self, wgsel, dbgptr_off=96):
        if not STAMP:
            return
        L = "stf_%d" % len(self.lines)
        self("s_cmp_lg_u32 s2, %d" % wgsel)
        self("s_cbranch_scc1 %s" % L)
        self("s_load_dwordx2 s[96:97], s[0:1], %d" % dbgptr_off)
        self("s_waitcnt lgkmcnt(0)")
        self("s_mov_b32 s98, 4096")
        self("s_mov_b32 s99, 0x20000")
        self("v_cmp_eq_u32 vcc, 0, v0")
        self("s_and_saveexec_b64 s[94:95], vcc")
        self("s_cbranch_execz %s" % L)
        for i in range(self.nst):
            self("v_mov_b32 v1, s%d" % (68 + i))
            self("v_mov_b32 v2, %d" % (4 * i + 512 * (self.phase + 1)))
            self("buffer_store_dword v1, v2, s[96:99], 0 offen")
        self.label(L)
        self("s_mov_b64 exec, -1")
        self.nst = 0

    phase = 0
    on = 0

    def ostamp(self, last=False):
        OST = os.environ.get("OST")
        if not OST:
            return
        a = self
        a("s_memrealtime s[98:99]")
        a("s_waitcnt lgkmcnt(0)")
        a("s_mov_b32 s%d, s98" % (68 + self.on if self.on else 93))
        self.on += 1
        if last:
            a("s_cmp_lg_u32 s2, %s" % OST)
            a("s_cbranch_scc1 ost_skip")
            a("s_load_dwordx2 s[96:97], s[0:1], 96")
            a("s_mov_b32 s98, 256")
            a("s_mov_b32 s99, 0x20000")
            a("v_cmp_eq_u32 vcc, 0, v0")
            a("s_and_saveexec_b64 s[94:95], vcc")
            a("s_cbranch_execz ost_skip")
            a("s_waitcnt lgkmcnt(0)")
            for i in range(1, self.on):
                a("s_sub_u32 s94, s%d, s93" % (68 + i))
                a("v_mov_b32 v1, s94")
                a("v_mov_b32 v2, %d" % (28 + 4 * i))
                a("buffer_store_dword v1, v2, s[96:99], 0 offen")
            a.label("ost_skip")
            a("s_mov_b64 exec, -1")

    def gb_signal(self, k):
        a = self
        a("s_load_dwordx2 s[80:81], s[0:1], 96")
        a("s_load_dwordx2 s[84:85], s[0:1], 104")
        a("s_mov_b32 s82, 256")
        a("s_mov_b32 s83, 0x20000")
        a("s_mov_b32 s86, 0x10000000")
        a("s_mov_b32 s87, 0x20000")
        a("s_mov_b64 exec, 1")
        a("v_mov_b32 v12, 1")
        a("v_mov_b32 v13, %d" % (4 * k))
        a("v_mov_b32 v14, 1")
        a("v_mov_b32 v15, 0")
        a("s_and_b32 s88, s2, 15")
        a("s_lshl_b32 s88, s88, 12")
        a("s_add_u32 s88, s88, 0x%x" % (CTR + (k - 1) * 65536))
        a("s_waitcnt lgkmcnt(0)")
        a("buffer_atomic_add v14, v15, s[84:87], s88 offen sc0 sc1")
        a("s_waitcnt vmcnt(0)")
        a("v_readfirstlane_b32 s89, v14")
        a("s_cmp_lg_u32 s89, 15")
        a("s_cbranch_scc1 gs_nr%d" % k)
        a("buffer_atomic_add v12, v13, s[80:83], 0 offen sc1")
        a.label("gs_nr%d" % k)
        a("s_mov_b64 exec, -1")

    def gb_poll(self, k):
        a = self
        a("s_mov_b64 exec, 1")
        a("v_mov_b32 v13, %d" % (4 * k))
        a("s_mov_b32 s88, 0")
        a.label("gp_loop%d" % k)
        a("buffer_load_dword v14, v13, s[80:83], 0 offen sc1")
        a("s_waitcnt vmcnt(0)")
        a("v_readfirstlane_b32 s89, v14")
        a("s_cmp_ge_u32 s89, 16")
        a("s_cbranch_scc1 gp_done%d" % k)
        a("s_add_u32 s88, s88, 1")
        a("s_cmp_gt_u32 s88, 40000")
        a("s_cbranch_scc1 gp_done%d" % k)
        a("s_sleep 8")
        a("s_branch gp_loop%d" % k)
        a.label("gp_done%d" % k)
        a("s_mov_b64 exec, -1")

    def gridbar(self, k):
        a = self
        if STAMP:
            a("s_memrealtime s[14:15]")
        if k == 0:
            a("s_cmp_ge_u32 s2, 96")
            a("s_cbranch_scc1 gb_noinit")
            a("s_load_dwordx2 s[8:9], s[0:1], 104")
            a("s_mov_b32 s10, 0x10000000")
            a("s_mov_b32 s11, 0x20000")
            a("s_lshl_b32 s12, s2, 12")
            a("s_add_u32 s12, s12, 0x%x" % CTR)
            a("v_mov_b32 v1, 0")
            a("v_mov_b32 v2, 0")
            a("s_waitcnt lgkmcnt(0)")
            a("buffer_store_dword v1, v2, s[8:11], s12 offen sc0 sc1")
            a.label("gb_noinit")
        a("s_waitcnt vmcnt(0) lgkmcnt(0)")
        a("s_barrier")
        if STAMP:
            a("s_memrealtime s[16:17]")
        a("v_lshrrev_b32 v1, 6, v0")
        a("s_nop 0")
        a("v_readfirstlane_b32 s6, v1")
        a("s_cmp_lg_u32 s6, 0")
        a("s_cbranch_scc1 gb_wait%d" % k)
        a("s_load_dwordx2 s[8:9], s[0:1], 96")
        a("s_load_dwordx2 s[24:25], s[0:1], 104")
        a("s_mov_b32 s10, 256")
        a("s_mov_b32 s11, 0x20000")
        a("s_mov_b32 s26, 0x10000000")
        a("s_mov_b32 s27, 0x20000")
        a("s_mov_b64 exec, 1")
        a("v_mov_b32 v1, 1")
        a("v_mov_b32 v2, %d" % (4 * k))
        a("s_waitcnt lgkmcnt(0)")
        tgt = 256
        if True:
            tgt = 16
            a("s_and_b32 s12, s2, 15")
            a("v_mov_b32 v3, 1")
            a("v_mov_b32 v4, 0")
            if k > 0:
                a("s_lshl_b32 s12, s12, 12")
                a("s_add_u32 s12, s12, 0x%x" % (CTR + (k - 1) * 65536))
                a("buffer_atomic_add v3, v4, s[24:27], s12 offen sc0 sc1")
            else:
                a("s_lshl_b32 s12, s12, 2")
                a("s_add_u32 s12, s12, 128")
                a("buffer_atomic_add v3, v4, s[8:11], s12 offen sc0 sc1")
            a("s_waitcnt vmcnt(0)")
            a("v_readfirstlane_b32 s13, v3")
            a("s_cmp_lg_u32 s13, 15")
            a("s_cbranch_scc1 gb_nr%d" % k)
        a("buffer_atomic_add v1, v2, s[8:11], 0 offen sc1")
        if True:
            a.label("gb_nr%d" % k)
        a("s_mov_b32 s12, 0")
        a.label("gb_loop%d" % k)
        a("buffer_load_dword v3, v2, s[8:11], 0 offen %s" % os.environ.get("PSC", "sc1"))
        a("s_waitcnt vmcnt(0)")
        a("v_readfirstlane_b32 s13, v3")
        a("s_cmp_ge_u32 s13, %d" % tgt)
        a("s_cbranch_scc1 gb_done%d" % k)
        a("s_add_u32 s12, s12, 1")
        a("s_cmp_gt_u32 s12, 40000")
        a("s_cbranch_scc1 gb_done%d" % k)
        a("s_sleep %s" % os.environ.get("SLEEP", "8"))
        a("s_branch gb_loop%d" % k)
        a.label("gb_done%d" % k)
        if STAMP:
            a("s_memrealtime s[18:19]")
            a("s_mov_b32 s10, 65536")
            a("s_lshl_b32 s20, s2, 4")
            a("s_add_u32 s20, s20, %d" % (4096 + 4096 * k))
            a("s_waitcnt lgkmcnt(0)")
            a("s_mov_b64 exec, 1")
            a("v_mov_b32 v4, s14")
            a("v_mov_b32 v5, s16")
            a("v_mov_b32 v6, s18")
            a("v_mov_b32 v7, s92")
            a("v_mov_b32 v2, 0")
            a("buffer_store_dwordx4 v[4:7], v2, s[8:11], s20 offen")
        a("s_mov_b64 exec, -1")
        a("s_waitcnt lgkmcnt(0)")
        a.label("gb_wait%d" % k)
        a("s_barrier")
        if "inv" in os.environ.get("EXP", ""):
            a("buffer_inv sc1")
        self.phase = k + 1

    inloop = False

    def __call__(self, s):
        EXP = os.environ.get("EXP", "")
        if self.inloop:
            if "nomfma" in EXP and s.startswith("v_mfma"):
                return
            if "novalu" in EXP and s.startswith("v_") and not s.startswith("v_mfma") and not s.startswith("v_cmp") and "0x1ffff" not in s and "0x8000" not in s and not s.startswith("v_mov") and not s.startswith("v_add_u32"):
                return
            if "nolds" in EXP and s.startswith("ds_read"):
                return
            if "nodma" in EXP and s.startswith("buffer_load"):
                return
            if "nobar" in EXP and s.startswith("s_barrier"):
                return
        if "nosc1" in EXP and s.startswith("buffer_store") and s.endswith(" sc1"):
            s = s[:-4]
        self.lines.append("  " + s)

    def label(self, s):
        self.lines.append(s + ":")

    def raw(self, s):
        self.lines.append(s)

    def nop(self, n):
        while n > 0:
            k = min(n, 16)
            self("s_nop %d" % (k - 1))
            n -= k


def vr(a, n):
    return "v[%d:%d]" % (a, a + n - 1)


def sr(a, n):
    return "s[%d:%d]" % (a, a + n - 1)


def gen_proj(a):
    V_LANE = 1
    V_TR = 2
    V_OFFC = 10
    V_OFFN = 11
    V_ST = 12
    V_T0 = 13
    V_B = 16
    V_ACC = 48
    V_A = 112
    V_ROWI = 13
    V_SWZ = 14
    V_T = 15
    V_AOFF = 240

    a.label("mega_kernel")
    a("s_cmp_lt_u32 s2, 256")
    a("s_cbranch_scc1 proj_start")
    a("s_endpgm")
    a.label("proj_start")
    a.ostamp()
    if STAMP:
        a("s_memrealtime s[92:93]")
    a.stamp()
    a("s_load_dwordx2 s[8:9], s[0:1], 96")
    a("s_load_dwordx16 s[24:39], s[0:1], 0")
    a("s_load_dwordx4 s[40:43], s[0:1], 64")
    a("s_load_dwordx2 s[44:45], s[0:1], 104")
    EXPF = os.environ.get("EXP", "")
    if "tick" in EXPF:
        a("v_lshrrev_b32 v1, 6, v0")
        a("v_lshlrev_b32 v4, 14, v1")
        a("v_add_u32 v4, 0x8000, v4")
        a("v_readfirstlane_b32 s6, v1")
        a("s_getreg_b32 s4, hwreg(HW_REG_XCC_ID)")
        a("s_and_b32 s4, s4, 7")
        if "tkforce" in EXPF:
            a("s_min_u32 s4, s4, 4")
        a("s_mov_b32 s10, 256")
        a("s_mov_b32 s11, 0x20000")
        a("s_lshl_b32 s5, s4, 2")
        a("s_add_u32 s5, s5, 192")
        a("v_mov_b32 v2, s5")
        a("v_mov_b32 v3, 1")
        a("s_cmp_eq_u32 s6, 0")
        a("s_cbranch_scc1 tk_w0")
        a("s_cmp_lg_u32 s6, 7")
        a("s_cbranch_scc1 tk_wait")
        a("s_mov_b64 exec, 1")
        a("s_waitcnt lgkmcnt(0)")
        a("v_subrev_u32 v2, 160, v2")
        a("buffer_atomic_add v3, v2, s[8:11], 0 offen sc1")
        a("s_mov_b64 exec, -1")
        a("s_branch tk_wait")
        a.label("tk_w0")
        a("s_mov_b64 exec, 1")
        a("s_waitcnt lgkmcnt(0)")
        a("buffer_atomic_add v3, v2, s[8:11], 0 offen sc0%s" % (" sc1" if "tkforce" in EXPF or "tkglob" in EXPF else ""))
        a("s_waitcnt vmcnt(0)")
        a("v_readfirstlane_b32 s5, v3")
        a("s_cmp_lt_u32 s5, 32")
        a("s_cbranch_scc1 tk_got")
        a("s_mov_b32 s7, 0")
        a("v_mov_b32 v2, 32")
        a.label("tk_poll")
        a("buffer_load_dwordx4 v[8:11], v2, s[8:11], 0 offen sc1")
        a("buffer_load_dwordx4 v[12:15], v2, s[8:11], 0 offen offset:16 sc1")
        a("s_waitcnt vmcnt(0)")
        a("s_mov_b32 s12, 0")
        for i in range(8):
            a("v_readfirstlane_b32 s%d, v%d" % (48 + i, 8 + i))
            a("s_add_u32 s12, s12, s%d" % (48 + i))
        a("s_cmp_ge_u32 s12, 256")
        a("s_cbranch_scc1 tk_full")
        a("s_add_u32 s7, s7, 1")
        a("s_sleep 8")
        a("s_cmp_lt_u32 s7, 40000")
        a("s_cbranch_scc1 tk_poll")
        a.label("tk_fail")
        a("s_lshr_b32 s5, s2, 3")
        a("s_and_b32 s4, s2, 7")
        a("s_branch tk_got")
        a.label("tk_full")
        a("s_sub_u32 s5, s5, 32")
        for i in range(7):
            a("s_max_u32 s12, s%d, 32" % (48 + i))
            a("s_sub_u32 s12, s12, 32")
            a("s_cmp_gt_u32 s4, %d" % i)
            a("s_cselect_b32 s12, s12, 0")
            a("s_add_u32 s5, s5, s12")
        for i in range(8):
            a("s_min_u32 s12, s%d, 32" % (48 + i))
            a("s_sub_u32 s13, 32, s12")
            a("s_mov_b32 s4, %d" % i)
            a("s_cmp_lt_u32 s5, s13")
            a("s_cbranch_scc1 tk_slot")
            a("s_sub_u32 s5, s5, s13")
        a("s_branch tk_fail")
        a.label("tk_slot")
        a("s_add_u32 s5, s5, s12")
        a.label("tk_got")
        a("s_lshl_b32 s5, s5, 3")
        a("s_add_u32 s5, s5, s4")
        a("s_mov_b64 exec, 0xff")
        a("v_lshlrev_b32 v2, 14, v0")
        a("v_add_u32 v2, 0x8000, v2")
        a("v_mov_b32 v3, s5")
        a("ds_write_b32 v2, v3")
        a("s_mov_b64 exec, -1")
        a("s_waitcnt lgkmcnt(0)")
        a.label("tk_wait")
        a("s_barrier")
        a("ds_read_b32 v3, v4")
        a("s_waitcnt lgkmcnt(0)")
        a("v_readfirstlane_b32 s2, v3")
        a("s_and_b32 s2, s2, 255")
        if STAMP:
            a("s_memrealtime s[96:97]")
            a("s_waitcnt lgkmcnt(0)")
            a("s_mov_b32 s93, s96")
    PM = os.environ.get("PM", "5")
    if PM == "0":
        a("s_lshr_b32 s3, s2, 5")
        a("s_and_b32 s4, s2, 31")
    elif PM == "1":
        a("s_and_b32 s3, s2, 7")
        a("s_lshr_b32 s4, s2, 3")
    elif PM == "2":
        a("s_and_b32 s3, s2, 3")
        a("s_bfe_u32 s4, s2, 0x10003")
        a("s_lshl_b32 s4, s4, 2")
        a("s_or_b32 s3, s3, s4")
        a("s_bfe_u32 s4, s2, 0x10002")
        a("s_lshr_b32 s5, s2, 4")
        a("s_lshl_b32 s5, s5, 1")
        a("s_or_b32 s4, s4, s5")
    elif PM == "3":
        a("s_and_b32 s3, s2, 1")
        a("s_bfe_u32 s4, s2, 0x20003")
        a("s_lshl_b32 s4, s4, 1")
        a("s_or_b32 s3, s3, s4")
        a("s_bfe_u32 s4, s2, 0x20001")
        a("s_lshr_b32 s5, s2, 5")
        a("s_lshl_b32 s5, s5, 2")
        a("s_or_b32 s4, s4, s5")
    elif PM == "4":
        a("s_lshr_b32 s3, s2, 5")
        a("s_bfe_u32 s4, s2, 0x40001")
        a("s_and_b32 s5, s2, 1")
        a("s_lshl_b32 s5, s5, 4")
        a("s_or_b32 s4, s4, s5")
    elif PM == "5":
        a("s_bfe_u32 s3, s2, 0x10001")
        a("s_bfe_u32 s4, s2, 0x20003")
        a("s_lshl_b32 s4, s4, 1")
        a("s_or_b32 s3, s3, s4")
        a("s_bfe_u32 s4, s2, 0x10002")
        a("s_lshr_b32 s5, s2, 5")
        a("s_lshl_b32 s5, s5, 1")
        a("s_or_b32 s4, s4, s5")
        a("s_and_b32 s5, s2, 1")
        a("s_lshl_b32 s5, s5, 4")
        a("s_or_b32 s4, s4, s5")
    elif PM == "6":
        a("s_bfe_u32 s3, s2, 0x30001")
        a("s_lshr_b32 s4, s2, 4")
        a("s_and_b32 s5, s2, 1")
        a("s_lshl_b32 s5, s5, 4")
        a("s_or_b32 s4, s4, s5")
    a("v_lshrrev_b32 v1, 6, v0")
    a("s_nop 0")
    a("v_readfirstlane_b32 s6, v1")
    a("v_and_b32 v1, 63, v0")
    a("s_waitcnt lgkmcnt(0)")
    a.stamp()
    a("s_cmp_lt_u32 s4, 16")
    a("s_cselect_b32 s8, s24, s26")
    a("s_cselect_b32 s9, s25, s27")
    a("s_cselect_b32 s5, 0, 1")
    a("s_and_b32 s4, s4, 15")
    a("s_mov_b32 s10, 0x200000")
    a("s_mov_b32 s11, 0x20000")
    a("s_mov_b32 s16, s44")
    a("s_mov_b32 s17, s45")
    a("s_mov_b32 s18, 0x10000000")
    a("s_mov_b32 s19, 0x20000")
    a("s_mov_b32 s20, s40")
    a("s_mov_b32 s21, s41")
    a("s_mov_b32 s22, 3584")
    a("s_mov_b32 s23, 0x20000")
    a("s_mov_b32 s15, 0x20000")
    a("s_mov_b32 s51, 0x20000")
    a("s_lshl_b32 s58, s6, 12")
    a("s_lshl_b32 s59, s3, 3")
    a("s_add_u32 s59, s59, s6")
    a("v_and_b32 v13, 15, v1")
    a("v_lshlrev_b32 v13, 10, v13")
    a("v_lshrrev_b32 v14, 4, v1")
    a("v_lshlrev_b32 v14, 4, v14")
    a("v_add_u32 v13, v13, v14")
    a("s_movk_i32 s65, 0x4000")
    a("s_lshl_b32 s60, s59, 15")
    a("v_add_u32 v13, s60, v13")
    a("v_mov_b32 v%d, v13" % V_AOFF)

    def aloads(lo, hi):
        for s in range(lo, hi):
            a("buffer_load_dwordx4 %s, v%d, s[8:11], %s offen offset:%d" % (
                vr(V_A + 4 * s, 4), V_AOFF, "s65" if s & 1 else "0", (s >> 1) * 64))

    def aswaps(lo, hi):
        for s in range(lo, hi, 2):
            for j in range(4):
                a("v_permlane16_swap_b32 v%d, v%d" % (V_A + 4 * s + j, V_A + 4 * s + 4 + j))
        a("s_nop 1")
    a("v_bfe_u32 v13, v1, 2, 2")
    a("v_lshrrev_b32 v14, 5, v1")
    a("v_lshl_add_u32 v14, v14, 4, v13")
    a("v_lshlrev_b32 v14, 8, v14")
    a("v_bfe_u32 v15, v1, 4, 1")
    a("v_lshl_add_u32 v14, v15, 5, v14")
    a("v_and_b32 v15, 3, v1")
    a("v_lshl_add_u32 v14, v15, 3, v14")
    a("v_lshlrev_b32 v13, 6, v13")
    for nt in range(4):
        a("v_xor_b32 v15, %d, v13" % (nt << 6))
        a("v_add_u32 v%d, v14, v15" % (V_TR + nt))
        a("v_add_u32 v%d, 0x10000, v%d" % (V_TR + 4 + nt, V_TR + nt))
    a("v_lshlrev_b32 v%d, 4, v1" % V_ST)
    a("v_lshrrev_b32 v13, 4, v1")
    a("v_bfe_u32 v14, v1, 2, 2")
    a("v_xor_b32 v14, v14, v13")
    a("v_lshlrev_b32 v14, 6, v14")
    a("v_and_b32 v15, 3, v1")
    a("v_lshl_add_u32 v14, v15, 4, v14")
    a("s_lshl_b32 s60, s6, 4")
    a("v_add_u32 v13, s60, v13")

    def set_params(which, wlo, whi, nrec, ldw, colexpr_reg):
        base = 12 if which == "cur" else 48
        sl, sc = (52, 53) if which == "cur" else (54, 55)
        voff = V_OFFC if which == "cur" else V_OFFN
        a("s_mov_b32 s%d, s%d" % (base, wlo))
        a("s_mov_b32 s%d, s%d" % (base + 1, whi))
        if isinstance(nrec, str):
            a("s_mov_b32 s%d, %s" % (base + 2, nrec))
        else:
            a("s_mov_b32 s%d, 0x%x" % (base + 2, nrec))
        a("s_mov_b32 s%d, %d" % (sl, ldw))
        a("s_mov_b32 s%d, %s" % (sc, colexpr_reg))
        a("v_mul_lo_u32 v%d, v%d, s%d" % (voff, V_ROWI, sl))
        a("v_add_u32 v%d, v%d, v%d" % (voff, voff, V_SWZ))

    def dma(kc, which):
        base = 12 if which == "cur" else 48
        sl, sc = (52, 53) if which == "cur" else (54, 55)
        voff = V_OFFC if which == "cur" else V_OFFN
        for i in range(4):
            a("s_add_u32 m0, s58, %d" % (kc * 32768 + i * 1024))
            a("s_mul_i32 s57, s%d, %d" % (sl, kc * 128 + 4 * i))
            a("s_add_u32 s57, s57, s%d" % sc)
            a("buffer_load_dwordx4 v%d, %s, s57 offen lds" % (voff, sr(base, 4)))

    def reads(kc, s, setidx):
        hi = 4 if kc >= 2 else 0
        off = (kc & 1) * 32768 + (s >> 1) * 8192 + (s & 1) * 2048
        for nt in range(4):
            for ird in range(2):
                a("ds_read_b64_tr_b16 %s, v%d offset:%d" % (
                    vr(V_B + setidx * 16 + nt * 4 + ird * 2, 2), V_TR + hi + nt, off + ird * 1024))

    def epi_part(kind, nt):
        if kind == "Q":
            for i in range(16):
                a("v_mul_f32 v%d, v%d, v%d" % (V_ACC + 16 * nt + i, V_LNR + 1, V_ACC + 16 * nt + i))
        for t in range(2):
            d = V_ACC + 16 * nt + 8 * t
            for p in range(4):
                x0 = V_ACC + 16 * nt + 8 * t + 2 * p
                a("v_cvt_pk_bf16_f32 v%d, v%d, v%d" % (d + p, x0, x0 + 1))
            a("buffer_store_dwordx4 %s, v%d, s[16:19], s%d offen offset:%d sc1" % (
                vr(d, 4), V_ST, 90 if nt < 2 else 91, ((nt * 2 + t) & 3) * 1024))
        a("s_nop 1")

    def compute(kc, kind, extra=None, prev=None):
        extra = list(extra or [])
        per = -(-len(extra) // 32)
        for s in range(8):
            if s < 7:
                reads(kc, s + 1, (s + 1) & 1)
            else:
                reads((kc + 1) & 3, 0, 0)
            a("s_waitcnt lgkmcnt(8)")
            ks = kc * 8 + s
            for nt in range(4):
                acc = vr(V_ACC + 16 * nt, 16)
                wf = vr(V_B + (s & 1) * 16 + nt * 4, 4)
                af = vr(V_A + 4 * ks, 4)
                c = "0" if ks == 0 else acc
                if prev and ks == 0:
                    epi_part(prev, nt)
                if kind == "V":
                    a("v_mfma_f32_32x32x16_bf16 %s, %s, %s, %s" % (acc, af, wf, c))
                else:
                    a("v_mfma_f32_32x32x16_bf16 %s, %s, %s, %s" % (acc, wf, af, c))
                for x in extra[:per]:
                    a(x)
                extra = extra[per:]
        assert not extra

    def aload_ops(lo, hi):
        ops = []
        for s in range(lo, hi):
            ops.append("buffer_load_dwordx4 %s, v%d, s[8:11], %s offen offset:%d" % (
                vr(V_A + 4 * s, 4), V_AOFF, "s65" if s & 1 else "0", (s >> 1) * 64))
            ops += ["s_nop 0"] * 3
        return ops

    V_LNM = 244
    V_LNR = 246
    V_LNT = 248

    def norm_ops(q):
        ops = []
        for i in range(32 * q, 32 * q + 32):
            r = V_A + i
            t = 20 + 4 * (i & 3)
            ops.append("v_lshlrev_b32 v%d, 16, v%d" % (t, r))
            ops.append("v_and_b32 v%d, 0xffff0000, v%d" % (t + 1, r))
            ops.append("v_pk_add_f32 %s, %s, %s neg_lo:[0,1] neg_hi:[0,1]" % (vr(t, 2), vr(t, 2), vr(V_LNM, 2)))
            ops.append("v_cvt_pk_bf16_f32 v%d, v%d, v%d" % (r, t, t + 1))
        return ops

    def epilogue(kind):
        if kind == "H":
            a("s_waitcnt lgkmcnt(0)")
            a("v_lshrrev_b32 v15, 5, v1")
            a("v_lshlrev_b32 v15, 3, v15")
            for nt in range(4):
                for q in range(4):
                    a("buffer_load_dwordx2 %s, v15, s[20:23], s53 offen offset:%d" % (
                        vr(V_B + (nt * 4 + q) * 2, 2), 64 * nt + 16 * q))
            a.nop(12)
            for i in range(64):
                a("v_mul_f32 v%d, v%d, v%d" % (V_ACC + i, V_LNR, V_ACC + i))
            a("s_waitcnt vmcnt(0)")
            for nt in range(4):
                for q in range(4):
                    r0 = V_ACC + 16 * nt + 4 * q
                    b0 = V_B + (nt * 4 + q) * 2
                    for p in range(2):
                        x0, x1 = r0 + 2 * p, r0 + 2 * p + 1
                        bb = b0 + p
                        a("v_cvt_pk_bf16_f32 v15, v%d, v%d" % (x0, x1))
                        a("v_lshlrev_b32 v%d, 16, v15" % x0)
                        a("v_and_b32 v%d, 0xffff0000, v15" % x1)
                        a("v_lshlrev_b32 v15, 16, v%d" % bb)
                        a("v_add_f32 v%d, v%d, v15" % (x0, x0))
                        a("v_and_b32 v15, 0xffff0000, v%d" % bb)
                        a("v_add_f32 v%d, v%d, v15" % (x1, x1))
                        a("v_cvt_pk_bf16_f32 v15, v%d, v%d" % (x0, x1))
                        a("v_lshlrev_b32 v%d, 16, v15" % x0)
                        a("v_and_b32 v%d, 0xffff0000, v15" % x1)
                        a("v_max_f32 v%d, 0, v%d" % (x0, x0))
                        a("v_max_f32 v%d, 0, v%d" % (x1, x1))
                        a("v_mul_f32 v%d, v%d, v%d" % (x0, x0, x0))
                        a("v_mul_f32 v%d, v%d, v%d" % (x1, x1, x1))
        else:
            a.nop(12)
        if kind == "Q":
            for i in range(64):
                a("v_mul_f32 v%d, v%d, v%d" % (V_ACC + i, V_LNR + 1, V_ACC + i))
        a("s_add_u32 s67, s56, 4096")
        for nt in range(4):
            for t in range(2):
                d = V_ACC + 16 * nt + 8 * t
                for p in range(4):
                    x0 = V_ACC + 16 * nt + 8 * t + 2 * p
                    a("v_cvt_pk_bf16_f32 v%d, v%d, v%d" % (d + p, x0, x0 + 1))
                a("buffer_store_dwordx4 %s, v%d, s[16:19], s%d offen offset:%d sc1" % (
                    vr(d, 4), V_ST, 56 if nt < 2 else 67, ((nt * 2 + t) & 3) * 1024))
        a.nop(2)

    def chunk(kind, set_next, set_out, prev=None, defer=False):
        waits = (4, 12, 12, 4) if prev else (4 + NPF, 4 + NPF, 4, 4)
        if prev:
            a("s_mov_b32 s90, s56")
            a("s_add_u32 s91, s56, 4096")
        set_next()
        set_out()
        for kc in range(4):
            a("s_waitcnt vmcnt(%d)" % waits[kc])
            a("s_barrier")
            if kc < 1:
                dma(kc + 3, "cur")
            else:
                dma(kc - 1, "next")
            if kc == 0:
                a.stamp()
            compute(kc, kind, None, prev)
        a.stamp()
        if not defer:
            epilogue(kind)
        a.stamp()
        for i in range(3):
            a("s_mov_b32 s%d, s%d" % (12 + i, 48 + i))
        a("s_mov_b32 s52, s54")
        a("s_mov_b32 s53, s55")
        a("v_mov_b32 v%d, v%d" % (V_OFFC, V_OFFN))

    a("s_lshl_b32 s61, s4, 8")
    a("s_add_u32 s62, s61, 4096")
    a("s_lshl_b32 s63, s4, 19")
    a("s_lshl_b32 s64, s59, 13")
    a("s_add_u32 s63, s63, s64")
    a("v_and_b32 v24, 31, v1")
    a("v_lshrrev_b32 v25, 5, v1")
    a("v_xor_b32 v26, v24, v25")
    a("v_lshlrev_b32 v26, 4, v26")
    a("v_lshl_add_u32 v26, v25, 10, v26")
    a("s_lshl_b32 s60, s59, 15")
    a("v_add_u32 v28, s60, v26")
    a("s_lshl_b32 s66, s6, 14")
    a("s_add_u32 s66, s66, 32768")
    a("v_lshlrev_b32 v26, 4, v24")
    a("v_lshlrev_b32 v27, 5, v25")
    a("v_xor_b32 v26, v26, v27")
    a("v_lshl_add_u32 v26, v24, 9, v26")
    a("v_add_u32 v29, s66, v26")

    def a_dma(half):
        for i in range(16):
            a("v_xor_b32 v%d, %d, v28" % (30 + (i & 3), 32 * i))
            a("s_add_u32 m0, s66, %d" % (1024 * i))
            a("s_movk_i32 s67, %d" % (2048 * i + 512 * half))
            a("buffer_load_dwordx4 v%d, s[8:11], s67 offen lds" % (30 + (i & 3)))

    def a_read(half):
        for s_ in range(16):
            ks = (4 * (s_ >> 1) + (s_ & 1)) * 16
            a("v_xor_b32 v%d, %d, v29" % (30 + (s_ & 3), ks))
            a("ds_read_b128 %s, v%d" % (vr(V_A + 4 * (16 * half + s_), 4), 30 + (s_ & 3)))

    def stats(q):
        for i in range(32 * q, 32 * q + 32):
            r = V_A + i
            t = 20 + 2 * (i & 3)
            a("v_lshlrev_b32 v%d, 16, v%d" % (t, r))
            a("v_and_b32 v%d, 0xffff0000, v%d" % (t + 1, r))
            a("v_pk_add_f32 v[16:17], v[16:17], %s" % vr(t, 2))
            a("v_pk_fma_f32 v[18:19], %s, %s, v[18:19]" % (vr(t, 2), vr(t, 2)))

    NPF = 0 if "nopf" in EXPF else 4

    def prefetch():
        if not NPF:
            return
        a("s_lshl_b32 s88, s2, 3")
        a("s_add_u32 s88, s88, s6")
        a("v_lshlrev_b32 v250, 7, v1")
        a("s_lshr_b32 s89, s88, 9")
        a("s_mov_b32 s84, s28")
        a("s_mov_b32 s85, s29")
        for m in range(1, 4):
            a("s_cmp_eq_u32 s89, %d" % m)
            a("s_cselect_b32 s84, s%d, s84" % (28 + 2 * m))
            a("s_cselect_b32 s85, s%d, s85" % (29 + 2 * m))
        a("s_mov_b32 s86, 0x400000")
        a("s_mov_b32 s87, 0x20000")
        a("s_and_b32 s89, s88, 511")
        a("s_lshl_b32 s89, s89, 13")
        a("buffer_load_dword v252, v250, s[84:87], s89 offen")
        a("buffer_load_dword v253, v250, s[84:87], s89 offen offset:64")
        a("s_cmp_lt_u32 s88, 224")
        a("s_cselect_b32 s84, s38, s42")
        a("s_cselect_b32 s85, s39, s43")
        a("s_cselect_b32 s89, 0, 224")
        a("s_sub_u32 s89, s88, s89")
        a("s_lshl_b32 s89, s89, 13")
        a("s_cmp_lt_u32 s88, 448")
        a("s_cselect_b32 s86, 0x1c0000, 0")
        a("buffer_load_dword v254, v250, s[84:87], s89 offen")
        a("buffer_load_dword v255, v250, s[84:87], s89 offen offset:64")

    a_dma(0)
    a("s_cmp_eq_u32 s5, 1")
    a("s_cbranch_scc1 proj_ckv")
    a("s_mov_b32 s46, 0x3f803f80")
    a("s_mov_b32 s47, 0x00003f80")
    a("s_mov_b32 s7, 0x3f800000")
    set_params("cur", 28, 29, 0x400000, 8192, "s61")
    dma(0, "cur")
    a("v_mov_b32 v16, 0")
    a("v_mov_b32 v17, 0")
    a("v_mov_b32 v18, 0")
    a("v_mov_b32 v19, 0")
    a("s_waitcnt vmcnt(4)")
    a_read(0)
    a("s_waitcnt lgkmcnt(0)")
    a_dma(1)
    stats(0)
    stats(1)
    a("s_waitcnt vmcnt(0)")
    a_read(1)
    a("s_waitcnt lgkmcnt(0)")
    a("s_barrier")
    dma(1, "cur")
    dma(2, "cur")
    prefetch()
    stats(2)
    stats(3)
    a.stamp()
    a("v_add_f32 v16, v16, v17")
    a("v_add_f32 v18, v18, v19")
    a("v_mov_b32 v17, v16")
    a("v_mov_b32 v19, v18")
    a.nop(2)
    a("v_permlane32_swap_b32 v16, v17")
    a("v_permlane32_swap_b32 v18, v19")
    a.nop(2)
    a("v_add_f32 v16, v16, v17")
    a("v_add_f32 v18, v18, v19")
    a("v_mul_f32 v16, 0x3b000000, v16")
    a("v_mul_f32 v18, 0x3b000000, v18")
    a("v_fma_f32 v18, -v16, v16, v18")
    a("v_max_f32 v18, 0, v18")
    a("v_cvt_pk_bf16_f32 v16, v16, v18")
    a("v_and_b32 v18, 0xffff0000, v16")
    a("v_lshlrev_b32 v16, 16, v16")
    a("v_add_f32 v18, 0x3727c5ac, v18")
    a("v_cvt_pk_bf16_f32 v18, v18, v18")
    a("v_lshlrev_b32 v18, 16, v18")
    a("v_sqrt_f32 v18, v18")
    a("s_nop 0")
    a("v_cvt_pk_bf16_f32 v18, v18, v18")
    a("v_lshlrev_b32 v18, 16, v18")
    a("v_rcp_f32 v18, v18")
    a("v_mov_b32 v%d, v16" % V_LNM)
    a("v_mov_b32 v%d, v16" % (V_LNM + 1))
    a("v_mov_b32 v%d, v18" % V_LNR)
    a("v_mul_f32 v%d, 0x%08x, v18" % (V_LNR + 1, QSC))
    for q in range(4):
        for x in norm_ops(q):
            a(x)
    reads(0, 0, 0)
    a.stamp()

    def out_q0():
        a("s_add_u32 s56, s63, 0x%x" % QF)

    def out_q1():
        a("s_add_u32 s56, s63, 0x%x" % (QF + 16 * 512 * 1024))

    def next_q1():
        set_params("next", 28, 29, 0x400000, 8192, "s62")

    def next_h():
        a("s_cmp_lt_u32 s4, 14")
        a("s_cselect_b32 s66, 0x1c0000, 0")
        set_params("next", 38, 39, "s66", 3584, "s61")

    def next_none():
        a("s_mov_b32 s66, 0")
        set_params("next", 38, 39, "s66", 3584, "s61")

    def out_h():
        a("s_mul_i32 s56, s59, %d" % AF_BLK)
        a("s_lshl_b32 s66, s4, 13")
        a("s_add_u32 s56, s56, s66")
        a("s_add_u32 s56, s56, 0x%x" % (AF + 256 * 1024))

    chunk("Q", next_q1, out_q0, None, True)
    chunk("Q", next_h, out_q1, "Q", True)
    a("s_cmp_lt_u32 s4, 14")
    a("s_cbranch_scc1 proj_h")
    epilogue("Q")
    a("s_branch proj_end")
    a.label("proj_h")
    chunk("H", next_none, out_h, "Q", False)
    a.stamp_flush(0)
    a("s_branch proj_end")
    a.nst = 2

    a.label("proj_ckv")
    set_params("cur", 30, 31, 0x400000, 8192, "s61")
    dma(0, "cur")
    a("s_waitcnt vmcnt(4)")
    a_read(0)
    a("s_waitcnt lgkmcnt(0)")
    a_dma(1)
    a("s_waitcnt vmcnt(0)")
    a_read(1)
    a("s_waitcnt lgkmcnt(0)")
    a("s_barrier")
    dma(1, "cur")
    dma(2, "cur")
    prefetch()
    reads(0, 0, 0)

    def out_k0():
        a("s_add_u32 s56, s63, 0x%x" % KF)

    def out_k1():
        a("s_add_u32 s56, s63, 0x%x" % (KF + 16 * 512 * 1024))

    def out_v0():
        a("s_add_u32 s56, s63, 0x%x" % VF)

    def out_v1():
        a("s_add_u32 s56, s63, 0x%x" % (VF + 16 * 512 * 1024))

    chunk("QK", lambda: set_params("next", 30, 31, 0x400000, 8192, "s62"), out_k0, None, True)
    chunk("QK", lambda: set_params("next", 32, 33, 0x400000, 8192, "s61"), out_k1, "QK", True)
    chunk("V", lambda: set_params("next", 32, 33, 0x400000, 8192, "s62"), out_v0, "QK", True)
    chunk("V", next_none, out_v1, "V", False)
    a.stamp_flush(int(STAMP) if STAMP else 0)
    a.label("proj_end")
    a.ostamp()
    a.gridbar(0)
    a.ostamp()


def descriptor(a, name, vgpr, sgpr, accum):
    a.raw(".p2align 6")
    a.raw(".amdhsa_kernel %s" % name)
    a.raw("  .amdhsa_next_free_vgpr %d" % vgpr)
    a.raw("  .amdhsa_next_free_sgpr %d" % sgpr)
    a.raw("  .amdhsa_accum_offset %d" % accum)
    a.raw("  .amdhsa_group_segment_fixed_size 0")
    a.raw("  .amdhsa_kernarg_size 112")
    a.raw("  .amdhsa_user_sgpr_count 2")
    a.raw("  .amdhsa_user_sgpr_kernarg_segment_ptr 1")
    a.raw("  .amdhsa_system_sgpr_workgroup_id_x 1")
    a.raw(".end_amdhsa_kernel")


def main():
    from gen_rest import gen_attn, gen_ogemm, gen_reduce
    a = Asm()
    hdr = open("cdna_kernels/%s.s.ref" % NAME).read().split("\n")
    for l in hdr:
        if l.startswith(";") and "@launch" not in l:
            a.raw(l)
        elif not l.startswith(";"):
            break
    a.raw("; @launch kernel=mega_kernel grid=(256,1,1) block=(512,1,1) lds=163840")
    a.raw('.amdgcn_target "amdgcn-amd-amdhsa--gfx950"')
    a.raw(".text")
    a.raw(".globl mega_kernel")
    a.raw(".p2align 8")
    a.raw(".type mega_kernel,@function")
    gen_proj(a)
    gen_attn(a)
    gen_ogemm(a)
    gen_reduce(a)
    a.raw('.section .rodata,"a"')
    descriptor(a, "mega_kernel", 256, 102, 256)
    out = sys.argv[1] if len(sys.argv) > 1 else "cdna_kernels/%s.s" % NAME
    open(out, "w").write("\n".join(a.lines) + "\n")


if __name__ == "__main__":
    main()
```

```python
from gen import vr, sr, QF, KF, VF, AF, AF_BLK, PART, CTR
import math
import os
EXP = os.environ.get("EXP", "")
SENT = "nosent" not in EXP

SCALE_LOG2E = (128 ** -0.5) * math.log2(math.e)


def f32hex(x):
    import struct
    return "0x%08x" % struct.unpack("<I", struct.pack("<f", x))[0]


def interleave(a, mf, fl):
    n = len(mf)
    pos = 0
    for i in range(n):
        a(mf[i])
        end = (len(fl) * (i + 1)) // n
        while pos < end:
            a(fl[pos])
            pos += 1


def gen_attn(a):
    V_LDS = 2
    V_DMA = 3
    V_LG = 4
    V_NEG = 5
    V_RDV = 6
    V_RDK = 7
    V_M = 8
    V_L = 9
    V_T = 10
    V_Q = 16
    V_O = 48
    V_S = 112
    V_P = 144
    V_K = 152
    V_V = 184
    S_MASK = 36
    S_LB = 35
    S_THR = 34
    V_C = 216
    V_E = 232
    NBUF = 5
    LDSZ = NBUF * 32768

    a.label("attn_kernel")
    a.stamp()
    a("s_load_dwordx2 s[8:9], s[0:1], 104")
    a("v_lshrrev_b32 v1, 6, v0")
    a("s_nop 0")
    a("v_readfirstlane_b32 s6, v1")
    a("v_and_b32 v1, 63, v0")
    a("s_lshr_b32 s22, s6, 2")
    a("s_and_b32 s23, s6, 3")
    a("s_and_b32 s3, s2, 7")
    a("s_lshl_b32 s3, s3, 2")
    a("s_lshr_b32 s4, s2, 3")
    a("s_and_b32 s4, s4, 3")
    a("s_add_u32 s3, s3, s4")
    a("s_lshr_b32 s4, s2, 5")
    a("s_sub_u32 s5, 15, s4")
    a("s_mov_b32 s24, 0")
    a("s_mov_b32 s77, 1000000")
    a("s_mov_b32 s10, 0x10000000")
    a("s_mov_b32 s11, 0x20000")
    a("s_lshl_b32 s12, s3, 19")
    a("v_lshlrev_b32 v%d, 4, v1" % V_LDS)
    a("s_lshl_b32 s13, s23, 11")
    a("s_lshl_b32 s25, s22, 13")
    a("s_add_u32 s25, s25, s13")
    a("v_add_u32 v%d, s25, v%d" % (V_DMA, V_LDS))
    a("s_lshl_b32 s26, s22, 14")
    a("v_add_u32 v%d, s26, v%d" % (V_LG, V_LDS))
    a("s_add_u32 s27, s26, s13")
    a("v_and_b32 v12, 31, v1")
    a("v_lshrrev_b32 v13, 5, v1")
    a("v_lshlrev_b32 v13, 2, v13")
    a("v_sub_u32 v12, v12, v13")
    for r in range(16):
        kl = 8 * (r >> 2) + (r & 3)
        a("v_cmp_le_i32 %s, %d, v12" % (sr(S_MASK + 2 * r, 2), kl))
    a("v_mov_b32 v%d, 0xf149f2ca" % V_NEG)
    a("s_waitcnt lgkmcnt(0)")

    def bump(sreg):
        return ["s_add_u32 s%d, s%d, 32768" % (sreg, sreg),
                "s_cmp_ge_u32 s%d, %d" % (sreg, LDSZ),
                "s_cselect_b32 s%d, 0, s%d" % (sreg, sreg)]

    def dma_ops():
        ops = []
        ops.append("s_add_u32 m0, s27, s28")
        ops.append("s_nop 0")
        for i in range(2):
            ops.append("buffer_load_dwordx4 v%d, s[8:11], s16 offen offset:%d lds" % (V_DMA, i * 1024))
        ops.append("s_add_u32 m0, m0, 8192")
        ops.append("s_add_u32 s16, s16, 16384")
        for i in range(2):
            ops.append("buffer_load_dwordx4 v%d, s[8:11], s17 offen offset:%d lds" % (V_DMA, i * 1024))
        ops.append("s_add_u32 s17, s17, 16384")
        ops += bump(28)
        return ops

    def dma():
        for x in dma_ops():
            a(x)

    def tstamp(k):
        if not os.environ.get("STAMP"):
            return
        a("s_memtime s[98:99]")
        a("s_waitcnt lgkmcnt(0)")
        a("s_cmp_eq_u32 s24, 0")
        a("s_cselect_b32 s%d, s98, s%d" % (69 + k, 69 + k))
        a("s_cselect_b32 s%d, s%d, s98" % (73 + k, 73 + k))

    def kread_ops():
        return ["ds_read_b128 %s, v%d offset:%d" % (vr(V_K + 4 * s, 4), V_RDK, s * 1024) for s in range(8)] + \
            bump(33) + ["v_add_u32 v%d, s33, v%d" % (V_RDK, V_LG)]

    def vread_ops():
        return ["ds_read_b128 %s, v%d offset:%d" % (vr(V_V + 4 * i, 4), V_RDV, 8192 + i * 1024) for i in range(8)] + \
            bump(32) + ["v_add_u32 v%d, s32, v%d" % (V_RDV, V_LG)]

    def qk_ops(sp):
        ops = []
        S = V_S + 16 * sp
        for s in range(8):
            c = vr(V_C, 16) if s == 0 else vr(S, 16)
            ops.append("v_mfma_f32_32x32x16_bf16 %s, %s, %s, %s" % (vr(S, 16), vr(V_K + 4 * s, 4), vr(V_Q + 4 * s, 4), c))
        return ops

    def pv_ops():
        ops = []
        for t in range(2):
            for dt in range(4):
                o = vr(V_O + 16 * dt, 16)
                ops.append("v_mfma_f32_32x32x16_bf16 %s, %s, %s, %s" % (o, vr(V_V + 4 * (dt * 2 + t), 4), vr(V_P + 4 * t, 4), o))
        return ops

    def max_ops(S, t0, t1):
        return ["v_max3_f32 v%d, v%d, v%d, v%d" % (t0, S, S + 1, S + 2),
                "v_max3_f32 v%d, v%d, v%d, v%d" % (t1, S + 3, S + 4, S + 5),
                "v_max3_f32 v%d, v%d, v%d, v%d" % (t0, t0, S + 6, S + 7),
                "v_max3_f32 v%d, v%d, v%d, v%d" % (t1, t1, S + 8, S + 9),
                "v_max3_f32 v%d, v%d, v%d, v%d" % (t0, t0, S + 10, S + 11),
                "v_max3_f32 v%d, v%d, v%d, v%d" % (t1, t1, S + 12, S + 13),
                "v_max3_f32 v%d, v%d, v%d, v%d" % (t0, t0, S + 14, S + 15),
                "v_max_f32 v%d, v%d, v%d" % (t0, t0, t1),
                "v_mov_b32 v%d, v%d" % (t1, t0)]

    def soft_ops(S, t2, t3):
        P = V_P
        E = V_E
        vb = []
        for r in range(16):
            vb.append("v_exp_f32 v%d, v%d" % (E + r, S + r))
            if r >= 3 and r % 2 == 1:
                q = r - 3
                vb.append("v_cvt_pk_bf16_f32 v%d, v%d, v%d" % (P + q // 2, E + q, E + q + 1))
                if q == 0:
                    vb.append("v_add_f32 v%d, v%d, v%d" % (t2, E, E + 1))
                elif q == 2:
                    vb.append("v_add_f32 v%d, v%d, v%d" % (t3, E + 2, E + 3))
                else:
                    vb.append("v_add_f32 v%d, v%d, v%d" % (t2, t2, E + q))
                    vb.append("v_add_f32 v%d, v%d, v%d" % (t3, t3, E + q + 1))
        vb.append("v_add_f32 v%d, v%d, v%d" % (t2, t2, t3))
        vb.append("v_cvt_pk_bf16_f32 v%d, v%d, v%d" % (P + 7, E + 14, E + 15))
        vb.append("v_add_f32 v%d, v%d, v%d" % (t3, E + 14, E + 15))
        vb.append("v_add_f32 v%d, v%d, v%d" % (t2, t2, t3))
        return vb

    cnt = [0]
    rare = []

    def phaseA(sp, diag):
        cnt[0] += 1
        L = "attn_it%d" % cnt[0]
        S = V_S + 16 * sp
        T = V_T
        if diag:
            a("s_lshl_b32 s29, s18, 1")
            a("s_add_u32 s29, s29, s22")
            a("s_cmp_lt_u32 s29, s30")
            a("s_cbranch_scc1 %s_nomask" % L)
            a("s_cmp_eq_u32 s29, s30")
            a("s_cbranch_scc1 %s_tri" % L)
            for r in range(16):
                a("v_mov_b32 v%d, v%d" % (S + r, V_NEG))
            a("s_branch %s_nomask" % L)
            a.label("%s_tri" % L)
            for r in range(16):
                a("v_cndmask_b32 v%d, v%d, v%d, %s" % (S + r, V_NEG, S + r, sr(S_MASK + 2 * r, 2)))
            a.label("%s_nomask" % L)
        qk = qk_ops(sp ^ 1)
        S2 = V_S + 16 * (sp ^ 1)
        so = soft_ops(S, T + 3, T + 4)
        vrd = vread_ops()
        mix = []
        step = len(so) // len(vrd)
        k = 0
        for i, x in enumerate(so):
            mix.append(x)
            if i % step == step - 1 and k < len(vrd):
                mix.append(vrd[k])
                k += 1
        mix += vrd[k:]
        interleave(a, qk, mix)
        a("v_cmp_lt_f32 vcc, s%d, v%d" % (S_THR, T + 3))
        a("s_nop 1")
        a("s_cbranch_vccnz %s_rs" % L)
        a.label("%s_nors" % L)
        a("v_add_f32 v%d, v%d, v%d" % (V_L, V_L, T + 3))
        blk = ["%s_rs:" % L]
        if os.environ.get("STAMP"):
            blk.append("s_add_u32 s77, s77, 1")
        blk += max_ops(S, T, T + 1)
        blk += ["s_nop 1",
                "v_permlane32_swap_b32 v%d, v%d" % (T, T + 1),
                "s_nop 0",
                "v_max3_f32 v%d, v%d, v%d, s%d" % (T, T, T + 1, S_LB),
                "v_exp_f32 v%d, -v%d" % (T + 1, T),
                "v_add_f32 v%d, v%d, v%d" % (V_M, V_M, T),
                "v_min_f32 v%d, 0x7149f2ca, v%d" % (T + 1, T + 1),
                "s_mov_b32 s%d, 0x53800000" % S_THR,
                "s_mov_b32 s%d, 0" % S_LB,
                "v_mul_f32 v%d, v%d, v%d" % (V_L, V_L, T + 1)]
        for i in range(64):
            blk.append("v_mul_f32 v%d, v%d, v%d" % (V_O + i, V_O + i, T + 1))
        for r in range(16):
            blk.append("v_sub_f32 v%d, v%d, v%d" % (S + r, S + r, T))
        blk += so
        for r in range(16):
            blk.append("v_sub_f32 v%d, v%d, v%d" % (V_C + r, V_C + r, T))
        for r in range(16):
            blk.append("v_sub_f32 v%d, v%d, v%d" % (S2 + r, S2 + r, T))
        blk.append("s_branch %s_nors" % L)
        rare.append(blk)
        a("s_add_u32 s18, s18, 1")

    def phaseC(last=False):
        a("s_waitcnt lgkmcnt(0)")
        a("s_nop 0")
        f = [] if last else kread_ops() + dma_ops()
        interleave(a, pv_ops(), f)

    def bar():
        a("s_waitcnt vmcnt(4) lgkmcnt(0)")
        a("s_barrier")

    def tile_front(qt):
        a("s_lshl_b32 s15, s%d, 2" % qt)
        a("s_add_u32 s15, s15, s23")
        a("s_lshl_b32 s15, s15, 13")
        a("s_add_u32 s15, s15, s12")
        for k in range(2):
            for s in range(4):
                a("buffer_load_dwordx4 %s, v%d, s[8:11], s15 offen offset:%d" % (vr(V_Q + 16 * k + 4 * s, 4), V_LDS, s * 1024))
            a("s_add_u32 s15, s15, 4096")
        a("s_add_u32 s16, s12, 0x%x" % KF)
        a("s_add_u32 s17, s12, 0x%x" % VF)
        a("s_mov_b32 s28, 98304")
        dma()
        dma()

    tile_front(5)
    a.label("attn_tile")
    a("s_lshl_b32 s14, s5, 2")
    a("s_add_u32 s14, s14, s23")
    a("s_mov_b32 s30, s14")
    dma()
    dma()
    a("s_mov_b32 s32, 98304")
    a("s_mov_b32 s33, 98304")
    a("v_add_u32 v%d, s32, v%d" % (V_RDV, V_LG))
    a("v_add_u32 v%d, s32, v%d" % (V_RDK, V_LG))
    a("v_mov_b32 v%d, 0" % V_M)
    a("s_mov_b32 s%d, 0xbf800000" % S_THR)
    a("s_mov_b32 s%d, 0xff7fffff" % S_LB)
    for i in range(16):
        a("v_mov_b32 v%d, 0" % (V_C + i))
    a("v_mov_b32 v%d, 0" % V_L)
    for i in range(64):
        a("v_mov_b32 v%d, 0" % (V_O + i))
    a("s_lshl_b32 s19, s5, 1")
    a("s_mov_b32 s18, 0")
    a("s_waitcnt vmcnt(%d)" % (20 if SENT else 12))
    a("s_cmp_eq_u32 s24, 1")
    a("s_cbranch_scc1 attn_w2")
    a("s_waitcnt vmcnt(8)")
    a.label("attn_w2")
    a("s_barrier")
    tstamp(0)
    for x in kread_ops():
        a(x)
    a("s_waitcnt lgkmcnt(0)")
    for x in qk_ops(0):
        a(x)
    for x in kread_ops():
        a(x)
    a("s_cmp_eq_u32 s22, 1")
    a("s_cbranch_scc1 attn_g1")
    a("s_cmp_eq_u32 s5, 0")
    a("s_cbranch_scc1 attn_diag0")
    a.label("attn_loop0")
    a.inloop = "og" not in EXP
    for sp in range(2):
        bar()
        a("s_waitcnt lgkmcnt(0)")
        phaseA(sp, False)
        phaseC()
    a.inloop = False
    a("s_cmp_lt_u32 s18, s19")
    a("s_cbranch_scc1 attn_loop0")
    a.label("attn_diag0")
    tstamp(1)
    for sp in range(2):
        bar()
        a("s_waitcnt lgkmcnt(0)")
        phaseA(sp, True)
        phaseC()
    tstamp(2)
    a("s_branch attn_merge")
    a.label("attn_g1")
    bar()
    dma()
    a("s_waitcnt lgkmcnt(0)")
    a("s_cmp_eq_u32 s5, 0")
    a("s_cbranch_scc1 attn_diag1a")
    phaseA(0, False)
    a.label("attn_loop1")
    a.inloop = "og" not in EXP
    bar()
    phaseC()
    a("s_waitcnt lgkmcnt(0)")
    phaseA(1, False)
    a.inloop = False
    a("s_cmp_ge_u32 s18, s19")
    a("s_cbranch_scc1 attn_diag1")
    a.inloop = "og" not in EXP
    bar()
    phaseC()
    a("s_waitcnt lgkmcnt(0)")
    phaseA(0, False)
    a.inloop = False
    a("s_branch attn_loop1")
    a.label("attn_diag1")
    bar()
    phaseC()
    a("s_waitcnt lgkmcnt(0)")
    a.label("attn_diag1a")
    phaseA(0, True)
    bar()
    phaseC()
    a("s_waitcnt lgkmcnt(0)")
    phaseA(1, True)
    phaseC(last=True)
    a.label("attn_merge")
    a("s_waitcnt vmcnt(0) lgkmcnt(0)")
    a("s_barrier")
    a("s_cmp_eq_u32 s24, 1")
    a("s_cbranch_scc1 attn_nofront")
    tile_front(4)
    a.label("attn_nofront")
    a.nop(12)
    a("s_mul_i32 s29, s6, 9216")
    a("v_add_u32 v12, s29, v%d" % V_LDS)
    a("s_xor_b32 s31, s6, 4")
    a("s_mul_i32 s29, s31, 9216")
    a("v_add_u32 v13, s29, v%d" % V_LDS)
    for g in range(2):
        if g == 0:
            a("s_cmp_eq_u32 s22, 1")
            a("s_cbranch_scc1 attn_mg1")
        else:
            a.label("attn_mg1")
        keep, send = V_O + 32 * g, V_O + 32 * (1 - g)
        for i in range(8):
            a("ds_write_b128 v12, %s offset:%d" % (vr(send + 4 * i, 4), i * 1024))
        a("ds_write_b64 v12, v[%d:%d] offset:8192" % (V_M, V_L))
        a("s_waitcnt lgkmcnt(0)")
        a("s_barrier")
        a("ds_read_b64 v[14:15], v13 offset:8192")
        for i in range(8):
            a("ds_read_b128 %s, v13 offset:%d" % (vr(V_K + 4 * i, 4), i * 1024))
        a("s_waitcnt lgkmcnt(8)")
        a("v_max_f32 v10, v%d, v14" % V_M)
        a("v_sub_f32 v11, v%d, v10" % V_M)
        a("v_sub_f32 v10, v14, v10")
        a("v_exp_f32 v11, v11")
        a("v_exp_f32 v10, v10")
        a.nop(1)
        a("v_mul_f32 v%d, v%d, v11" % (V_L, V_L))
        a("v_fma_f32 v%d, v15, v10, v%d" % (V_L, V_L))
        a("v_mov_b32 v14, v%d" % V_L)
        a.nop(2)
        a("v_permlane32_swap_b32 v%d, v14" % V_L)
        a.nop(1)
        a("v_add_f32 v14, v14, v%d" % V_L)
        a("v_rcp_f32 v14, v14")
        a.nop(1)
        a("v_mul_f32 v11, v11, v14")
        a("v_mul_f32 v10, v10, v14")
        a("s_mul_i32 s20, s14, %d" % AF_BLK)
        a("s_lshl_b32 s21, s3, 13")
        a("s_add_u32 s20, s20, s21")
        a("s_add_u32 s20, s20, 0x%x" % (AF + 4096 * g))
        a("s_waitcnt lgkmcnt(0)")
        for i in range(32):
            a("v_mul_f32 v%d, v%d, v10" % (V_K + i, V_K + i))
            a("v_fma_f32 v%d, v%d, v11, v%d" % (V_K + i, keep + i, V_K + i))
        for k in range(4):
            d = V_V + k * 4
            for p in range(4):
                x0 = V_K + 8 * k + 2 * p
                a("v_cvt_pk_bf16_f32 v%d, v%d, v%d" % (d + p, x0, x0 + 1))
            a("buffer_store_dwordx4 %s, v%d, s[8:11], s20 offen offset:%d sc1" % (vr(d, 4), V_LDS, k * 1024))
        if g == 0:
            a("s_branch attn_mgdone")
    a.label("attn_mgdone")
    if SENT:
        a("s_cmp_eq_u32 s24, 1")
        a("s_cbranch_scc1 attn_noclr")
        a("s_lshl_b32 s20, s2, 16")
        a("s_lshl_b32 s21, s6, 13")
        a("s_add_u32 s20, s20, s21")
        a("s_add_u32 s20, s20, 0x%x" % PART)
        a("s_add_u32 s21, s20, 4096")
        for k in range(4):
            a("v_mov_b32 v%d, -1" % (V_K + k))
        for k in range(8):
            a("buffer_store_dwordx4 %s, v%d, s[8:11], s%d offen offset:%d sc1" % (vr(V_K, 4), V_LDS, 20 if k < 4 else 21, (k & 3) * 1024))
        a.label("attn_noclr")
    tstamp(3)
    a.nst = 10
    a("s_cmp_eq_u32 s24, 1")
    a("s_cbranch_scc1 attn_fin")
    a("s_mov_b32 s24, 1")
    a("s_mov_b32 s5, s4")
    a("s_barrier")
    a("s_branch attn_tile")
    a.label("attn_fin")
    a.stamp_flush(0)
    a.label("attn_end")
    a("s_branch attn_after")
    for blk in rare:
        a.label(blk[0][:-1])
        for x in blk[1:]:
            a(x)
    a.label("attn_after")
    a.ostamp()
    a("s_waitcnt vmcnt(0) lgkmcnt(0)")
    a("s_barrier")
    a.phase = 2


def gen_ogemm(a):
    V_AL = 2
    V_TR = 4
    V_DA = 8
    V_DB = 9
    V_ST = 11
    V_F = 16
    V_ACC = 48
    NST = 23
    a.label("ogemm_kernel")
    a.stamp()
    a("s_load_dwordx2 s[8:9], s[0:1], 104")
    a("s_load_dwordx2 s[24:25], s[0:1], 40")
    a("s_load_dwordx2 s[26:27], s[0:1], 72")
    a("v_lshrrev_b32 v1, 6, v0")
    a("s_nop 0")
    a("v_readfirstlane_b32 s6, v1")
    a("v_and_b32 v1, 63, v0")
    a("s_lshr_b32 s3, s2, 4")
    a("s_and_b32 s4, s2, 1")
    a("s_lshl_b32 s4, s4, 1")
    a("s_bfe_u32 s5, s2, 0x10003")
    a("s_or_b32 s4, s4, s5")
    a("s_bfe_u32 s5, s2, 0x20001")
    if "same" in EXP:
        a("s_mov_b32 s3, 0")
        a("s_mov_b32 s4, 0")
        a("s_mov_b32 s5, 0")
    if "map1" not in EXP:
        a("s_and_b32 s3, s2, 1")
        a("s_lshl_b32 s3, s3, 3")
        a("s_bfe_u32 s4, s2, 0x30003")
        a("s_or_b32 s3, s3, s4")
        a("s_lshr_b32 s4, s2, 6")
    a("s_mov_b32 s10, 0x10000000")
    a("s_mov_b32 s11, 0x20000")
    a("s_mov_b32 s15, 0x20000")
    a("s_lshr_b32 s30, s6, 2")
    a("s_lshr_b32 s31, s6, 1")
    a("s_and_b32 s31, s31, 1")
    a("s_and_b32 s32, s6, 1")
    a("v_lshlrev_b32 v%d, 4, v1" % V_ST)
    a("s_lshl_b32 s33, s31, 13")
    a("s_lshl_b32 s34, s30, 11")
    a("s_add_u32 s33, s33, s34")
    a("v_add_u32 v%d, s33, v%d" % (V_AL, V_ST))
    a("v_add_u32 v%d, 0x10000, v%d" % (V_AL + 1, V_AL))
    a("v_bfe_u32 v12, v1, 2, 2")
    a("v_lshrrev_b32 v13, 5, v1")
    a("v_lshl_add_u32 v13, v13, 2, v12")
    a("v_lshlrev_b32 v13, 8, v13")
    a("v_bfe_u32 v14, v1, 4, 1")
    a("v_lshl_add_u32 v13, v14, 5, v13")
    a("v_and_b32 v14, 3, v1")
    a("v_lshl_add_u32 v13, v14, 3, v13")
    a("s_lshl_b32 s33, s30, 13")
    a("s_add_u32 s33, s33, 16384")
    a("v_add_u32 v13, s33, v13")
    a("v_lshlrev_b32 v12, 6, v12")
    a("s_lshl_b32 s34, s32, 7")
    for ntl in range(2):
        a("s_add_u32 s35, s34, %d" % (ntl << 6))
        a("v_xor_b32 v14, s35, v12")
        a("v_add_u32 v%d, v13, v14" % (V_TR + ntl))
        a("v_add_u32 v%d, 0x10000, v%d" % (V_TR + 2 + ntl, V_TR + ntl))
    a("s_lshr_b32 s33, s6, 1")
    a("s_lshl_b32 s34, s3, 2")
    a("s_add_u32 s34, s34, s33")
    a("s_mul_i32 s34, s34, %d" % AF_BLK)
    a("s_lshl_b32 s35, s32, 11")
    a("s_add_u32 s34, s34, s35")
    a("s_add_u32 s34, s34, 0x%x" % AF)
    a("v_add_u32 v%d, s34, v%d" % (V_DA, V_ST))
    a("s_lshl_b32 s36, s6, 11")
    a("v_lshrrev_b32 v12, 4, v1")
    a("v_bfe_u32 v13, v1, 2, 2")
    a("v_xor_b32 v13, v13, v12")
    a("v_lshlrev_b32 v13, 6, v13")
    a("v_and_b32 v14, 3, v1")
    a("v_lshl_add_u32 v13, v14, 4, v13")
    a("s_lshl_b32 s33, s6, 3")
    a("v_add_u32 v12, s33, v12")
    a("v_lshlrev_b32 v12, 10, v12")
    a("v_add_u32 v12, v12, v13")
    a("s_lshl_b32 s33, s4, 8")
    a("v_add_u32 v%d, s33, v12" % V_DB)
    a("v_add_u32 v%d, 3072, v%d" % (V_DB + 1, V_DB))
    a("s_mov_b32 s42, 0x1c0000")
    a("s_mul_i32 s37, s5, 7")
    a("s_add_u32 s37, s37, 64")
    a("s_lshl_b32 s44, s5, 4")
    a("s_mov_b32 s43, 0")
    a("s_waitcnt lgkmcnt(0)")

    def dma(buf):
        a("s_cmp_lt_u32 s37, 64")
        a("s_cselect_b32 s12, s24, s26")
        a("s_cselect_b32 s13, s25, s27")
        a("s_cselect_b32 s14, 0x400000, s42")
        a("s_cselect_b32 s39, 0, 64")
        a("s_sub_u32 s39, s37, s39")
        a("s_lshl_b32 s39, s39, 16")
        a("s_lshl_b32 s40, s37, 12")
        a("s_cmp_lt_u32 s43, %d" % NST)
        a("s_cselect_b32 s14, s14, 0")
        a("s_cselect_b32 s40, s40, 0x10000000")
        a("s_add_u32 s37, s37, 1")
        a("s_add_u32 s43, s43, 1")
        a("s_cmp_eq_u32 s43, 7")
        a("s_cselect_b32 s37, s44, s37")
        a("s_add_u32 m0, s36, %d" % (buf * 32768))
        a("s_nop 0")
        for i in range(2):
            a("buffer_load_dwordx4 v%d, s[8:11], s40 offen offset:%d lds" % (V_DA, i * 1024))
        a("s_add_u32 m0, s36, %d" % (buf * 32768 + 16384))
        a("s_nop 0")
        for i in range(2):
            a("buffer_load_dwordx4 v%d, s[12:15], s39 offen offset:%d lds" % (V_DB + i, i * 1024))

    def reads(buf, sl, st):
        hi = 1 if buf >= 2 else 0
        bo = (buf & 1) * 32768
        f = V_F + st * 16
        for mbl in range(2):
            a("ds_read_b128 %s, v%d offset:%d" % (vr(f + 4 * mbl, 4), V_AL + hi, bo + mbl * 4096 + sl * 1024))
        for ntl in range(2):
            for ird in range(2):
                a("ds_read_b64_tr_b16 %s, v%d offset:%d" % (
                    vr(f + 8 + 4 * ntl + 2 * ird, 2), V_TR + 2 * hi + ntl, bo + sl * 4096 + ird * 2048))

    def mfmas(st, first):
        f = V_F + st * 16
        for mbl in range(2):
            for ntl in range(2):
                acc = vr(V_ACC + 16 * (mbl * 2 + ntl), 16)
                c = "0" if first else acc
                a("v_mfma_f32_32x32x16_bf16 %s, %s, %s, %s" % (acc, vr(f + 8 + 4 * ntl, 4), vr(f + 4 * mbl, 4), c))

    dma(0)
    dma(1)
    dma(2)
    for i in range(64):
        a("v_mov_b32 v%d, 0" % (V_ACC + i))
    a("s_cmp_lg_u32 s6, 0")
    a("s_cbranch_scc1 ogemm_nosig")
    a.gb_signal(1)
    a.label("ogemm_nosig")
    a("s_mov_b32 s41, 0")
    a("s_waitcnt vmcnt(8)")
    a("s_barrier")
    a.stamp()
    reads(0, 0, 0)

    def body(buf, hook=None, check=True):
        a("s_waitcnt vmcnt(4)")
        a("s_barrier")
        reads(buf, 1, 1)
        a("s_waitcnt lgkmcnt(6)")
        mfmas(0, False)
        reads((buf + 1) & 3, 0, 0)
        if hook:
            hook()
        dma((buf + 3) & 3)
        a("s_waitcnt lgkmcnt(6)")
        mfmas(1, False)
        a("s_add_u32 s41, s41, 1")
        if check:
            a("s_cmp_ge_u32 s41, %d" % NST)
            a("s_cbranch_scc1 ogemm_done")

    def pollhook():
        a("s_cmp_lg_u32 s6, 0")
        a("s_cbranch_scc1 ogemm_nopoll")
        a.gb_poll(1)
        a.label("ogemm_nopoll")
        a("s_barrier")
        a.stamp()

    for it in range(8):
        body(it & 3, pollhook if it == 4 else None, False)
    a.label("ogemm_loop")
    a.inloop = "og" in EXP
    for buf in range(4):
        body(buf)
    a("s_branch ogemm_loop")
    a.inloop = False
    a.label("ogemm_done")
    a.ostamp()
    a.stamp()
    a("s_waitcnt vmcnt(0) lgkmcnt(0)")
    a("s_barrier")
    a.nop(12)
    a("s_and_b32 s33, s6, 3")
    a("s_lshl_b32 s33, s33, 14")
    a("s_lshl_b32 s34, s6, 13")
    a("v_add_u32 v12, s34, v%d" % V_ST)
    a("s_xor_b32 s34, s34, 0x8000")
    a("v_add_u32 v13, s34, v%d" % V_ST)
    a("s_lshl_b32 s34, s3, 2")
    a("s_add_u32 s34, s34, s4")
    a("s_lshl_b32 s34, s34, 16")
    a("s_add_u32 s34, s34, s33")
    a("s_lshl_b32 s35, s5, 22")
    a("s_add_u32 s34, s34, s35")
    a("s_add_u32 s34, s34, 0x%x" % PART)
    a("s_cmp_eq_u32 s30, 0")
    a("s_cbranch_scc1 ogemm_g0")
    for g in (1, 0):
        if g == 0:
            a.label("ogemm_g0")
        keep, send = V_ACC + 32 * g, V_ACC + 32 * (1 - g)
        for i in range(8):
            a("ds_write_b128 v12, %s offset:%d" % (vr(send + 4 * i, 4), i * 1024))
        a("s_waitcnt lgkmcnt(0)")
        a("s_barrier")
        for i in range(8):
            a("ds_read_b128 %s, v13 offset:%d" % (vr(112 + 4 * i, 4), i * 1024))
        a("s_add_u32 s34, s34, %d" % (8192 * g))
        for i in range(8):
            a("s_waitcnt lgkmcnt(%d)" % (7 - i))
            for k in range(4):
                a("v_add_f32 v%d, v%d, v%d" % (keep + 4 * i + k, keep + 4 * i + k, 112 + 4 * i + k))
            if i == 4:
                a("s_add_u32 s34, s34, 4096")
            a("buffer_store_dwordx4 %s, v%d, s[8:11], s34 offen offset:%d sc1" % (vr(keep + 4 * i, 4), V_ST, (i & 3) * 1024))
        if g == 1:
            a("s_branch ogemm_end")
    a.stamp()
    a.stamp_flush(0)
    a.label("ogemm_end")
    a("s_lshl_b32 s49, s3, 2")
    a("s_add_u32 s49, s49, s4")
    a("s_lshl_b32 s45, s49, 4")
    a("s_lshl_b32 s46, s5, 2")
    a("s_add_u32 s45, s45, s46")
    reduce_pre(a)
    if SENT:
        a.phase = 3
        return
    a("s_waitcnt vmcnt(0) lgkmcnt(0)")
    a("s_barrier")
    a("s_cmp_lg_u32 s6, 0")
    a("s_cbranch_scc1 tb_wait")
    a("s_add_u32 s46, s49, 32")
    a("s_lshl_b32 s46, s46, 12")
    a("s_add_u32 s46, s46, 0x%x" % CTR)
    a("s_mov_b64 exec, 1")
    a("v_mov_b32 v12, 1")
    a("v_mov_b32 v13, 0")
    a("buffer_atomic_add v12, v13, s[8:11], s46 offen sc1")
    a("s_mov_b32 s47, 0")
    a.label("tb_loop")
    a("buffer_load_dword v14, v13, s[8:11], s46 offen sc1")
    a("s_waitcnt vmcnt(0)")
    a("v_readfirstlane_b32 s48, v14")
    a("s_cmp_ge_u32 s48, 4")
    a("s_cbranch_scc1 tb_done")
    a("s_add_u32 s47, s47, 1")
    a("s_cmp_gt_u32 s47, 40000")
    a("s_cbranch_scc1 tb_done")
    a("s_sleep 4")
    a("s_branch tb_loop")
    a.label("tb_done")
    a("s_mov_b64 exec, -1")
    a.label("tb_wait")
    a("s_barrier")
    a.phase = 3


RB = 176


def reduce_pre(a):
    a("s_load_dwordx2 s[52:53], s[0:1], 0")
    a("s_load_dwordx2 s[56:57], s[0:1], 80")
    a("s_load_dwordx2 s[60:61], s[0:1], 88")
    a("s_mov_b32 s54, 0x200000")
    a("s_mov_b32 s55, 0x20000")
    a("s_mov_b32 s58, 1024")
    a("s_mov_b32 s59, 0x20000")
    a("s_mov_b32 s62, 0x200000")
    a("s_mov_b32 s63, 0x20000")
    T = RB + 70
    a("s_lshr_b32 s40, s6, 2")
    a("v_and_b32 v%d, 255, v0" % T)
    a("s_add_u32 s41, s45, s40")
    a("v_lshlrev_b32 v%d, 4, v%d" % (RB + 1, T))
    a("s_waitcnt lgkmcnt(0)")
    for j in range(2):
        B = RB + 4 + 32 * j
        v2, v3 = RB + 2, RB + 3
        a("s_add_u32 s42, s41, %d" % (2 * j))
        a("s_lshr_b32 s64, s42, 4")
        a("s_lshr_b32 s65, s42, 2")
        a("s_and_b32 s65, s65, 3")
        a("s_and_b32 s66, s42, 3")
        a("s_lshr_b32 s24, s64, 2")
        a("s_and_b32 s25, s64, 3")
        a("s_lshr_b32 s26, s65, 1")
        a("s_and_b32 s27, s65, 1")
        a("s_lshr_b32 s28, s66, 1")
        a("s_and_b32 s29, s66, 1")
        a("s_lshl_b32 s30, s24, 2")
        a("s_lshl_b32 s31, s26, 1")
        a("s_add_u32 s30, s30, s31")
        a("s_add_u32 s30, s30, s28")
        a("s_lshl_b32 s30, s30, 15")
        a("s_lshl_b32 s31, s25, 2")
        a("s_lshl_b32 s32, s27, 1")
        a("s_add_u32 s31, s31, s32")
        a("s_add_u32 s31, s31, s29")
        a("s_lshl_b32 s31, s31, 6")
        a("v_and_b32 v%d, 31, v%d" % (v2, T))
        a("v_lshlrev_b32 v%d, 10, v%d" % (v2, v2))
        a("v_lshrrev_b32 v%d, 6, v%d" % (v3, T))
        a("v_lshlrev_b32 v%d, 4, v%d" % (v3, v3))
        a("v_bfe_u32 v%d, v%d, 5, 1" % (B + 16, T))
        a("v_lshl_add_u32 v%d, v%d, 3, v%d" % (v3, B + 16, v3))
        a("v_add_u32 v%d, s31, v%d" % (v3, v3))
        a("v_add_u32 v%d, v%d, v%d" % (v2, v2, v3))
        a("v_add_u32 v%d, s30, v%d" % (B + 26, v2))
        a("buffer_load_dwordx2 %s, v%d, s[52:55], 0 offen" % (vr(B + 16, 2), B + 26))
        a("buffer_load_dwordx2 %s, v%d, s[56:59], 0 offen" % (vr(B + 18, 2), v3))


def gen_reduce(a):
    a.label("reduce_kernel")
    a.ostamp()
    a.stamp()
    if SENT:
        a("s_mov_b32 s47, 0")
        a.label("red_poll")
    for j in range(2):
        B = RB + 4 + 32 * j
        a("s_lshl_b32 s42, s41, 12")
        a("s_add_u32 s42, s42, 0x%x" % (PART + j * 8192))
        for p in range(4):
            a("buffer_load_dwordx4 %s, v%d, s[8:11], s42 offen%s" % (vr(B + 4 * p, 4), RB + 1, " sc1" if SENT else ""))
            if p < 3:
                a("s_add_u32 s42, s42, 0x400000")
    if SENT:
        for j in range(2):
            B = RB + 4 + 32 * j
            a("s_waitcnt vmcnt(%d)" % (4 - 4 * j))
            a("v_max3_u32 v%d, v%d, v%d, v%d" % (248 + j, B, B + 1, B + 2))
            for i in range(6):
                a("v_max3_u32 v%d, v%d, v%d, v%d" % (248 + j, 248 + j, B + 3 + 2 * i, B + 4 + 2 * i))
            a("v_max_u32 v%d, v%d, v%d" % (248 + j, 248 + j, B + 15))
        a("v_max_u32 v248, v248, v249")
        a("v_cmp_eq_u32 vcc, -1, v248")
        a("s_nop 1")
        a("s_cbranch_vccz red_ok")
        a("s_add_u32 s47, s47, 1")
        a("s_cmp_gt_u32 s47, 20000")
        a("s_cbranch_scc1 red_ok")
        a("s_sleep %s" % os.environ.get("RSL", "4"))
        a("s_branch red_poll")
        a.label("red_ok")
    for j in range(2):
        B = RB + 4 + 32 * j
        for p in range(2):
            a("v_lshlrev_b32 v%d, 16, v%d" % (B + 20, B + 16 + p))
            a("v_and_b32 v%d, 0xffff0000, v%d" % (B + 21, B + 16 + p))
            a("v_lshlrev_b32 v%d, 16, v%d" % (B + 22, B + 18 + p))
            a("v_and_b32 v%d, 0xffff0000, v%d" % (B + 23, B + 18 + p))
            a("v_add_f32 v%d, v%d, v%d" % (B + 28 + 2 * p, B + 20, B + 22))
            a("v_add_f32 v%d, v%d, v%d" % (B + 29 + 2 * p, B + 21, B + 23))
    for j in range(2):
        B = RB + 4 + 32 * j
        a("s_waitcnt vmcnt(%d)" % (4 - 4 * j))
        for i in range(4):
            a("v_add_f32 v%d, v%d, v%d" % (B + i, B + i, B + 4 + i))
            a("v_add_f32 v%d, v%d, v%d" % (B + 8 + i, B + 8 + i, B + 12 + i))
        for i in range(4):
            a("v_add_f32 v%d, v%d, v%d" % (B + i, B + i, B + 8 + i))
        for i in range(4):
            a("v_add_f32 v%d, v%d, v%d" % (B + i, B + i, B + 28 + i))
        for p in range(2):
            a("v_cvt_pk_bf16_f32 v%d, v%d, v%d" % (B + 24 + p, B + 2 * p, B + 1 + 2 * p))
        a("buffer_store_dwordx2 %s, v%d, s[60:63], 0 offen" % (vr(B + 24, 2), B + 26))
    a.stamp()
    a.stamp_flush(0)
    if os.environ.get("STAMP"):
        a("s_waitcnt vmcnt(0)")
        a("s_memrealtime s[18:19]")
        a("s_load_dwordx2 s[8:9], s[0:1], 96")
        a("s_mov_b32 s10, 65536")
        a("s_mov_b32 s11, 0x20000")
        a("s_lshl_b32 s20, s2, 4")
        a("s_add_u32 s20, s20, %d" % (4096 + 4096 * 3))
        a("s_waitcnt lgkmcnt(0)")
        a("s_mov_b64 exec, 1")
        a("v_mov_b32 v4, s18")
        a("v_mov_b32 v5, s93")
        a("v_mov_b32 v6, s18")
        a("v_mov_b32 v7, s92")
        a("v_mov_b32 v2, 0")
        a("buffer_store_dwordx4 v[4:7], v2, s[8:11], s20 offen")
    if os.environ.get("OST"):
        a("s_waitcnt vmcnt(0)")
    a.ostamp(True)
    a("s_endpgm")
```

```python
from gen import vr, sr, QF, KF, VF, AF, AF_BLK, PART, CTR
import math
import os
EXP = os.environ.get("EXP", "")
SENT = "sent" in EXP
MST = os.environ.get("MST")

SCALE_LOG2E = (128 ** -0.5) * math.log2(math.e)


def f32hex(x):
    import struct
    return "0x%08x" % struct.unpack("<I", struct.pack("<f", x))[0]


def interleave(a, mf, fl):
    n = len(mf)
    pos = 0
    for i in range(n):
        a(mf[i])
        end = (len(fl) * (i + 1)) // n
        while pos < end:
            a(fl[pos])
            pos += 1


def gen_attn(a):
    V_LDS = 2
    V_DMA = 3
    V_LG = 4
    V_NEG = 5
    V_RDV = 6
    V_RDK = 7
    V_M = 8
    V_L = 9
    V_T = 10
    V_Q = 16
    V_O = 48
    V_S = 112
    V_P = 144
    V_K = 152
    V_V = 184
    S_MASK = 36
    S_LB = 35
    S_THR = 34
    V_C = 216
    V_E = 232
    NBUF = 5
    LDSZ = NBUF * 32768

    a.label("attn_kernel")
    a.stamp()
    a("s_load_dwordx2 s[8:9], s[0:1], 104")
    a("v_lshrrev_b32 v1, 6, v0")
    a("s_nop 0")
    a("v_readfirstlane_b32 s6, v1")
    a("v_and_b32 v1, 63, v0")
    a("s_lshr_b32 s22, s6, 2")
    a("s_and_b32 s23, s6, 3")
    a("s_and_b32 s3, s2, 7")
    a("s_lshl_b32 s3, s3, 2")
    a("s_lshr_b32 s4, s2, 3")
    a("s_and_b32 s4, s4, 3")
    a("s_add_u32 s3, s3, s4")
    a("s_lshr_b32 s4, s2, 5")
    a("s_sub_u32 s5, 15, s4")
    a("s_mov_b32 s24, 0")
    a("s_mov_b32 s77, 1000000")
    a("s_mov_b32 s10, 0x10000000")
    a("s_mov_b32 s11, 0x20000")
    a("s_lshl_b32 s12, s3, 19")
    a("v_lshlrev_b32 v%d, 4, v1" % V_LDS)
    a("s_lshl_b32 s13, s23, 11")
    a("s_lshl_b32 s25, s22, 13")
    a("s_add_u32 s25, s25, s13")
    a("v_add_u32 v%d, s25, v%d" % (V_DMA, V_LDS))
    a("s_lshl_b32 s26, s22, 14")
    a("v_add_u32 v%d, s26, v%d" % (V_LG, V_LDS))
    a("s_add_u32 s27, s26, s13")
    a("v_and_b32 v12, 31, v1")
    a("v_lshrrev_b32 v13, 5, v1")
    a("v_lshlrev_b32 v13, 2, v13")
    a("v_sub_u32 v12, v12, v13")
    for r in range(16):
        kl = 8 * (r >> 2) + (r & 3)
        a("v_cmp_le_i32 %s, %d, v12" % (sr(S_MASK + 2 * r, 2), kl))
    a("v_mov_b32 v%d, 0xf149f2ca" % V_NEG)
    a("s_waitcnt lgkmcnt(0)")

    def bump(sreg):
        return ["s_add_u32 s%d, s%d, 32768" % (sreg, sreg),
                "s_cmp_ge_u32 s%d, %d" % (sreg, LDSZ),
                "s_cselect_b32 s%d, 0, s%d" % (sreg, sreg)]

    def dma_ops():
        ops = []
        ops.append("s_add_u32 m0, s27, s28")
        ops.append("s_cmp_eq_u32 s78, s79")
        ops.append("s_cselect_b32 s16, s80, s16")
        ops.append("s_cselect_b32 s17, s81, s17")
        ops.append("s_add_u32 s78, s78, 1")
        for i in range(2):
            ops.append("buffer_load_dwordx4 v%d, s[8:11], s16 offen offset:%d lds" % (V_DMA, i * 1024))
        ops.append("s_add_u32 m0, m0, 8192")
        ops.append("s_add_u32 s16, s16, 16384")
        for i in range(2):
            ops.append("buffer_load_dwordx4 v%d, s[8:11], s17 offen offset:%d lds" % (V_DMA, i * 1024))
        ops.append("s_add_u32 s17, s17, 16384")
        ops += bump(28)
        return ops

    def dma():
        for x in dma_ops():
            a(x)

    def tstamp(k):
        if not os.environ.get("STAMP"):
            return
        a("s_memtime s[98:99]")
        a("s_waitcnt lgkmcnt(0)")
        a("s_cmp_eq_u32 s24, 0")
        a("s_cselect_b32 s%d, s98, s%d" % (69 + k, 69 + k))
        a("s_cselect_b32 s%d, s%d, s98" % (73 + k, 73 + k))

    def kread_ops():
        return ["ds_read_b128 %s, v%d offset:%d" % (vr(V_K + 4 * s, 4), V_RDK, s * 1024) for s in range(8)] + \
            bump(33) + ["v_add_u32 v%d, s33, v%d" % (V_RDK, V_LG)]

    def vread_ops():
        return ["ds_read_b128 %s, v%d offset:%d" % (vr(V_V + 4 * i, 4), V_RDV, 8192 + i * 1024) for i in range(8)] + \
            bump(32) + ["v_add_u32 v%d, s32, v%d" % (V_RDV, V_LG)]

    def qk_ops(sp):
        ops = []
        S = V_S + 16 * sp
        for s in range(8):
            c = vr(V_C, 16) if s == 0 else vr(S, 16)
            ops.append("v_mfma_f32_32x32x16_bf16 %s, %s, %s, %s" % (vr(S, 16), vr(V_K + 4 * s, 4), vr(V_Q + 4 * s, 4), c))
        return ops

    def pv_ops():
        ops = []
        for t in range(2):
            for dt in range(4):
                o = vr(V_O + 16 * dt, 16)
                ops.append("v_mfma_f32_32x32x16_bf16 %s, %s, %s, %s" % (o, vr(V_V + 4 * (dt * 2 + t), 4), vr(V_P + 4 * t, 4), o))
        return ops

    def max_ops(S, t0, t1):
        return ["v_max3_f32 v%d, v%d, v%d, v%d" % (t0, S, S + 1, S + 2),
                "v_max3_f32 v%d, v%d, v%d, v%d" % (t1, S + 3, S + 4, S + 5),
                "v_max3_f32 v%d, v%d, v%d, v%d" % (t0, t0, S + 6, S + 7),
                "v_max3_f32 v%d, v%d, v%d, v%d" % (t1, t1, S + 8, S + 9),
                "v_max3_f32 v%d, v%d, v%d, v%d" % (t0, t0, S + 10, S + 11),
                "v_max3_f32 v%d, v%d, v%d, v%d" % (t1, t1, S + 12, S + 13),
                "v_max3_f32 v%d, v%d, v%d, v%d" % (t0, t0, S + 14, S + 15),
                "v_max_f32 v%d, v%d, v%d" % (t0, t0, t1),
                "v_mov_b32 v%d, v%d" % (t1, t0)]

    def soft_ops(S, t2, t3):
        P = V_P
        E = V_E
        vb = []
        for r in range(16):
            vb.append("v_exp_f32 v%d, v%d" % (E + r, S + r))
            if r >= 3 and r % 2 == 1:
                q = r - 3
                vb.append("v_cvt_pk_bf16_f32 v%d, v%d, v%d" % (P + q // 2, E + q, E + q + 1))
                if q == 0:
                    vb.append("v_add_f32 v%d, v%d, v%d" % (t2, E, E + 1))
                elif q == 2:
                    vb.append("v_add_f32 v%d, v%d, v%d" % (t3, E + 2, E + 3))
                else:
                    vb.append("v_add_f32 v%d, v%d, v%d" % (t2, t2, E + q))
                    vb.append("v_add_f32 v%d, v%d, v%d" % (t3, t3, E + q + 1))
        vb.append("v_add_f32 v%d, v%d, v%d" % (t2, t2, t3))
        vb.append("v_cvt_pk_bf16_f32 v%d, v%d, v%d" % (P + 7, E + 14, E + 15))
        vb.append("v_add_f32 v%d, v%d, v%d" % (t3, E + 14, E + 15))
        vb.append("v_add_f32 v%d, v%d, v%d" % (t2, t2, t3))
        return vb

    cnt = [0]
    rare = []

    def mask(L, S):
        a("s_lshl_b32 s29, s18, 1")
        a("s_add_u32 s29, s29, s22")
        a("s_cmp_lt_u32 s29, s30")
        a("s_cbranch_scc1 %s_nomask" % L)
        a("s_cmp_eq_u32 s29, s30")
        a("s_cbranch_scc1 %s_tri" % L)
        for r in range(16):
            a("v_mov_b32 v%d, v%d" % (S + r, V_NEG))
        a("s_branch %s_nomask" % L)
        a.label("%s_tri" % L)
        for r in range(16):
            a("v_cndmask_b32 v%d, v%d, v%d, %s" % (S + r, V_NEG, S + r, sr(S_MASK + 2 * r, 2)))
        a.label("%s_nomask" % L)

    def phaseA(sp, diag, last=False):
        cnt[0] += 1
        L = "attn_it%d" % cnt[0]
        S = V_S + 16 * sp
        T = V_T
        if diag:
            mask(L, S)
        qk = qk_ops(sp ^ 1)
        S2 = V_S + 16 * (sp ^ 1)
        so = soft_ops(S, T + 3, T + 4)
        vrd = vread_ops()
        mix = []
        step = len(so) // len(vrd)
        k = 0
        for i, x in enumerate(so):
            mix.append(x)
            if i % step == step - 1 and k < len(vrd):
                mix.append(vrd[k])
                k += 1
        mix += vrd[k:]
        if last:
            for x in mix:
                a(x)
        else:
            interleave(a, qk, mix)
        a("v_cmp_lt_f32 vcc, s%d, v%d" % (S_THR, T + 3))
        a("s_nop 1")
        a("s_cbranch_vccnz %s_rs" % L)
        a.label("%s_nors" % L)
        a("v_add_f32 v%d, v%d, v%d" % (V_L, V_L, T + 3))
        blk = ["%s_rs:" % L]
        if os.environ.get("STAMP"):
            blk.append("s_add_u32 s77, s77, 1")
        blk += max_ops(S, T, T + 1)
        blk += ["s_nop 1",
                "v_permlane32_swap_b32 v%d, v%d" % (T, T + 1),
                "s_nop 0",
                "v_max3_f32 v%d, v%d, v%d, s%d" % (T, T, T + 1, S_LB),
                "v_exp_f32 v%d, -v%d" % (T + 1, T),
                "v_add_f32 v%d, v%d, v%d" % (V_M, V_M, T),
                "v_min_f32 v%d, 0x7149f2ca, v%d" % (T + 1, T + 1),
                "s_mov_b32 s%d, 0x53800000" % S_THR,
                "s_mov_b32 s%d, 0" % S_LB,
                "v_mul_f32 v%d, v%d, v%d" % (V_L, V_L, T + 1)]
        for i in range(64):
            blk.append("v_mul_f32 v%d, v%d, v%d" % (V_O + i, V_O + i, T + 1))
        for r in range(16):
            blk.append("v_sub_f32 v%d, v%d, v%d" % (S + r, S + r, T))
        blk += so
        for r in range(16):
            blk.append("v_sub_f32 v%d, v%d, v%d" % (V_C + r, V_C + r, T))
        for r in range(16 if not last else 0):
            blk.append("v_sub_f32 v%d, v%d, v%d" % (S2 + r, S2 + r, T))
        blk.append("s_branch %s_nors" % L)
        rare.append(blk)
        a("s_add_u32 s18, s18, 1")

    def phaseC(mode="n"):
        a("s_waitcnt lgkmcnt(0)")
        a("s_nop 0")
        if mode == "n":
            f = kread_ops() + dma_ops()
        elif mode == "k":
            f = kread_ops()
        else:
            k = int(mode[1])
            f = ["buffer_load_dwordx4 %s, v%d, s[8:11], s%d offen offset:%d" % (
                vr(V_Q + 16 * k + 4 * s_, 4), V_LDS, 82 + k, s_ * 1024) for s_ in range(4)]
        interleave(a, pv_ops(), f)

    def bar():
        a("s_waitcnt vmcnt(4) lgkmcnt(0)")
        a("s_barrier")

    def tile_front(qt):
        a("s_lshl_b32 s15, s%d, 2" % qt)
        a("s_add_u32 s15, s15, s23")
        a("s_lshl_b32 s15, s15, 13")
        a("s_add_u32 s15, s15, s12")
        for k in range(2):
            for s in range(4):
                a("buffer_load_dwordx4 %s, v%d, s[8:11], s15 offen offset:%d" % (vr(V_Q + 16 * k + 4 * s, 4), V_LDS, s * 1024))
            a("s_add_u32 s15, s15, 4096")
        a("s_add_u32 s16, s12, 0x%x" % KF)
        a("s_add_u32 s17, s12, 0x%x" % VF)
        a("s_mov_b32 s28, 98304")
        a("s_mov_b32 s78, 0")
        a("s_mov_b32 s79, -1")
        dma()
        dma()
        dma()
        dma()

    tile_front(5)
    a("s_mov_b32 s32, 98304")
    a("s_add_u32 s80, s12, 0x%x" % KF)
    a("s_add_u32 s81, s12, 0x%x" % VF)
    a("s_lshl_b32 s82, s4, 2")
    a("s_add_u32 s82, s82, s23")
    a("s_lshl_b32 s82, s82, 13")
    a("s_add_u32 s82, s82, s12")
    a("s_add_u32 s83, s82, 4096")
    a.label("attn_tile")
    a("s_lshl_b32 s14, s5, 2")
    a("s_add_u32 s14, s14, s23")
    a("s_mov_b32 s30, s14")
    a("s_lshl_b32 s79, s5, 1")
    a("s_add_u32 s79, s79, 2")
    a("s_mov_b32 s33, s32")
    a("v_add_u32 v%d, s32, v%d" % (V_RDV, V_LG))
    a("v_add_u32 v%d, s32, v%d" % (V_RDK, V_LG))
    a("v_mov_b32 v%d, 0" % V_M)
    a("s_mov_b32 s%d, 0xbf800000" % S_THR)
    a("s_mov_b32 s%d, 0xff7fffff" % S_LB)
    for i in range(16):
        a("v_mov_b32 v%d, 0" % (V_C + i))
    a("v_mov_b32 v%d, 0" % V_L)
    for i in range(64):
        a("v_mov_b32 v%d, 0" % (V_O + i))
    a("s_lshl_b32 s19, s5, 1")
    a("s_mov_b32 s18, 0")
    a("s_waitcnt vmcnt(8)")
    a("s_cmp_eq_u32 s24, 0")
    a("s_cbranch_scc1 attn_w2")
    a("s_waitcnt vmcnt(%d)" % (12 if SENT else 4))
    a.label("attn_w2")
    a("s_barrier")
    if not MST:
        tstamp(0)
    for x in kread_ops():
        a(x)
    a("s_cmp_eq_u32 s24, 0")
    a("s_cbranch_scc1 attn_w3")
    a("s_mov_b32 s78, 2")
    dma()
    dma()
    a.label("attn_w3")
    a("s_waitcnt lgkmcnt(0)")
    for x in qk_ops(0):
        a(x)
    for x in kread_ops():
        a(x)
    if "noinit" not in EXP:
        a.nop(8)
        S, T = V_S, V_T
        a("s_cmp_lg_u32 s5, 0")
        a("s_cbranch_scc1 attn_im_nomask")
        mask("attn_im", S)
        for x in max_ops(S, T, T + 1):
            a(x)
        a("s_nop 1")
        a("v_permlane32_swap_b32 v%d, v%d" % (T, T + 1))
        a("s_nop 0")
        a("v_max_f32 v%d, v%d, v%d" % (T, T, T + 1))
        a("s_mov_b32 s%d, 0x53800000" % S_THR)
        a("s_mov_b32 s%d, 0" % S_LB)
        a("v_mov_b32 v%d, v%d" % (V_M, T))
        for r in range(16):
            a("v_sub_f32 v%d, v%d, v%d" % (S + r, S + r, T))
        for r in range(16):
            a("v_sub_f32 v%d, 0, v%d" % (V_C + r, T))
    a("s_cmp_eq_u32 s22, 1")
    a("s_cbranch_scc1 attn_g1")
    a("s_cmp_eq_u32 s5, 0")
    a("s_cbranch_scc1 attn_diag0")
    a.label("attn_loop0")
    a.inloop = "og" not in EXP
    for sp in range(2):
        bar()
        a("s_waitcnt lgkmcnt(0)")
        phaseA(sp, False)
        phaseC()
    a.inloop = False
    a("s_cmp_lt_u32 s18, s19")
    a("s_cbranch_scc1 attn_loop0")
    a.label("attn_diag0")
    if not MST:
        tstamp(1)
    for sp in range(2):
        bar()
        a("s_waitcnt lgkmcnt(0)")
        phaseA(sp, True, sp == 1)
        phaseC("q%d" % sp)
    tstamp(2)
    a("s_branch attn_merge")
    a.label("attn_g1")
    bar()
    a("s_waitcnt lgkmcnt(0)")
    a("s_cmp_eq_u32 s5, 0")
    a("s_cbranch_scc1 attn_diag1a")
    dma()
    phaseA(0, False)
    a.label("attn_loop1")
    a.inloop = "og" not in EXP
    bar()
    phaseC()
    a("s_waitcnt lgkmcnt(0)")
    phaseA(1, False)
    a.inloop = False
    a("s_cmp_ge_u32 s18, s19")
    a("s_cbranch_scc1 attn_diag1")
    a.inloop = "og" not in EXP
    bar()
    phaseC()
    a("s_waitcnt lgkmcnt(0)")
    phaseA(0, False)
    a.inloop = False
    a("s_branch attn_loop1")
    a.label("attn_diag1")
    bar()
    phaseC("k")
    a("s_waitcnt lgkmcnt(0)")
    a.label("attn_diag1a")
    phaseA(0, True)
    bar()
    phaseC("q0")
    phaseA(1, True, True)
    phaseC("q1")
    a.label("attn_merge")

    def slot(wreg, vdst):
        a("s_mul_i32 s29, s%d, 11" % wreg)
        a("s_lshr_b32 s29, s29, 5")
        a("s_mul_i32 s84, s29, 3")
        a("s_sub_u32 s84, s%d, s84" % wreg)
        a("s_lshl_b32 s29, s29, 15")
        a("s_add_u32 s29, s29, s28")
        a("s_sub_u32 s85, s29, %d" % LDSZ)
        a("s_cmp_ge_u32 s29, %d" % LDSZ)
        a("s_cselect_b32 s29, s85, s29")
        a("s_mul_i32 s84, s84, 9216")
        a("s_add_u32 s29, s29, s84")
        a("v_add_u32 v%d, s29, v%d" % (vdst, V_LDS))
    slot(6, 12)
    a("s_xor_b32 s31, s6, 4")
    slot(31, 13)
    a("s_waitcnt lgkmcnt(0)")
    a("s_barrier")
    if MST:
        tstamp(0)
    a.nop(4)
    for g in range(2):
        if g == 0:
            a("s_cmp_eq_u32 s22, 1")
            a("s_cbranch_scc1 attn_mg1")
        else:
            a.label("attn_mg1")
        keep, send = V_O + 32 * g, V_O + 32 * (1 - g)
        for i in range(8):
            a("ds_write_b128 v12, %s offset:%d" % (vr(send + 4 * i, 4), i * 1024))
        a("ds_write_b64 v12, v[%d:%d] offset:8192" % (V_M, V_L))
        a("s_waitcnt lgkmcnt(0)")
        a("s_barrier")
        if MST and g == 0:
            tstamp(1)
        a("ds_read_b64 v[14:15], v13 offset:8192")
        for i in range(8):
            a("ds_read_b128 %s, v13 offset:%d" % (vr(V_K + 4 * i, 4), i * 1024))
        a("s_waitcnt lgkmcnt(8)")
        a("v_max_f32 v10, v%d, v14" % V_M)
        a("v_sub_f32 v11, v%d, v10" % V_M)
        a("v_sub_f32 v10, v14, v10")
        a("v_exp_f32 v11, v11")
        a("v_exp_f32 v10, v10")
        a.nop(1)
        a("v_mul_f32 v%d, v%d, v11" % (V_L, V_L))
        a("v_fma_f32 v%d, v15, v10, v%d" % (V_L, V_L))
        a("v_mov_b32 v14, v%d" % V_L)
        a.nop(2)
        a("v_permlane32_swap_b32 v%d, v14" % V_L)
        a.nop(1)
        a("v_add_f32 v14, v14, v%d" % V_L)
        a("v_rcp_f32 v14, v14")
        a.nop(1)
        a("v_mul_f32 v11, v11, v14")
        a("v_mul_f32 v10, v10, v14")
        a("s_mul_i32 s20, s14, %d" % AF_BLK)
        a("s_lshl_b32 s21, s3, 13")
        a("s_add_u32 s20, s20, s21")
        a("s_add_u32 s20, s20, 0x%x" % (AF + 4096 * g))
        a("s_waitcnt lgkmcnt(0)")
        for i in range(32):
            a("v_mul_f32 v%d, v%d, v10" % (V_K + i, V_K + i))
            a("v_fma_f32 v%d, v%d, v11, v%d" % (V_K + i, keep + i, V_K + i))
        for k in range(4):
            d = V_V + k * 4
            for p in range(4):
                x0 = V_K + 8 * k + 2 * p
                a("v_cvt_pk_bf16_f32 v%d, v%d, v%d" % (d + p, x0, x0 + 1))
            a("buffer_store_dwordx4 %s, v%d, s[8:11], s20 offen offset:%d sc1" % (vr(d, 4), V_LDS, k * 1024))
        if g == 0:
            a("s_branch attn_mgdone")
    a.label("attn_mgdone")
    if SENT:
        a("s_cmp_eq_u32 s24, 1")
        a("s_cbranch_scc1 attn_noclr")
        a("s_lshl_b32 s20, s2, 16")
        a("s_lshl_b32 s21, s6, 13")
        a("s_add_u32 s20, s20, s21")
        a("s_add_u32 s20, s20, 0x%x" % PART)
        a("s_add_u32 s21, s20, 4096")
        for k in range(4):
            a("v_mov_b32 v%d, -1" % (V_K + k))
        for k in range(8):
            a("buffer_store_dwordx4 %s, v%d, s[8:11], s%d offen offset:%d sc1" % (vr(V_K, 4), V_LDS, 20 if k < 4 else 21, (k & 3) * 1024))
        a.label("attn_noclr")
    tstamp(3)
    a.nst = 10
    a("s_cmp_eq_u32 s24, 1")
    a("s_cbranch_scc1 attn_fin")
    a("s_mov_b32 s24, 1")
    a("s_mov_b32 s5, s4")
    for r in (80, 81, 82, 83):
        a("s_mov_b32 s%d, 0x10000000" % r)
    a("s_branch attn_tile")
    a.label("attn_fin")
    a.stamp_flush(0)
    a.label("attn_end")
    a("s_branch attn_after")
    for blk in rare:
        a.label(blk[0][:-1])
        for x in blk[1:]:
            a(x)
    a.label("attn_after")
    a.ostamp()
    a("s_waitcnt vmcnt(0) lgkmcnt(0)")
    a("s_barrier")
    a.phase = 2


def gen_ogemm(a):
    V_AL = 2
    V_TR = 4
    V_DA = 8
    V_DB = 9
    V_ST = 11
    V_F = 16
    V_ACC = 48
    NST = 23
    a.label("ogemm_kernel")
    a.stamp()
    a("s_load_dwordx2 s[8:9], s[0:1], 104")
    a("s_load_dwordx2 s[24:25], s[0:1], 40")
    a("s_load_dwordx2 s[26:27], s[0:1], 72")
    a("v_lshrrev_b32 v1, 6, v0")
    a("s_nop 0")
    a("v_readfirstlane_b32 s6, v1")
    a("v_and_b32 v1, 63, v0")
    a("s_lshr_b32 s3, s2, 4")
    a("s_and_b32 s4, s2, 1")
    a("s_lshl_b32 s4, s4, 1")
    a("s_bfe_u32 s5, s2, 0x10003")
    a("s_or_b32 s4, s4, s5")
    a("s_bfe_u32 s5, s2, 0x20001")
    if "same" in EXP:
        a("s_mov_b32 s3, 0")
        a("s_mov_b32 s4, 0")
        a("s_mov_b32 s5, 0")
    if "map1" not in EXP:
        a("s_and_b32 s3, s2, 1")
        a("s_lshl_b32 s3, s3, 3")
        a("s_bfe_u32 s4, s2, 0x30003")
        a("s_or_b32 s3, s3, s4")
        a("s_lshr_b32 s4, s2, 6")
    a("s_mov_b32 s10, 0x10000000")
    a("s_mov_b32 s11, 0x20000")
    a("s_mov_b32 s15, 0x20000")
    a("s_lshr_b32 s30, s6, 2")
    a("s_lshr_b32 s31, s6, 1")
    a("s_and_b32 s31, s31, 1")
    a("s_and_b32 s32, s6, 1")
    a("v_lshlrev_b32 v%d, 4, v1" % V_ST)
    a("s_lshl_b32 s33, s31, 13")
    a("s_lshl_b32 s34, s30, 11")
    a("s_add_u32 s33, s33, s34")
    a("v_add_u32 v%d, s33, v%d" % (V_AL, V_ST))
    a("v_add_u32 v%d, 0x10000, v%d" % (V_AL + 1, V_AL))
    a("v_bfe_u32 v12, v1, 2, 2")
    a("v_lshrrev_b32 v13, 5, v1")
    a("v_lshl_add_u32 v13, v13, 2, v12")
    a("v_lshlrev_b32 v13, 8, v13")
    a("v_bfe_u32 v14, v1, 4, 1")
    a("v_lshl_add_u32 v13, v14, 5, v13")
    a("v_and_b32 v14, 3, v1")
    a("v_lshl_add_u32 v13, v14, 3, v13")
    a("s_lshl_b32 s33, s30, 13")
    a("s_add_u32 s33, s33, 16384")
    a("v_add_u32 v13, s33, v13")
    a("v_lshlrev_b32 v12, 6, v12")
    a("s_lshl_b32 s34, s32, 7")
    for ntl in range(2):
        a("s_add_u32 s35, s34, %d" % (ntl << 6))
        a("v_xor_b32 v14, s35, v12")
        a("v_add_u32 v%d, v13, v14" % (V_TR + ntl))
        a("v_add_u32 v%d, 0x10000, v%d" % (V_TR + 2 + ntl, V_TR + ntl))
    a("s_lshr_b32 s33, s6, 1")
    a("s_lshl_b32 s34, s3, 2")
    a("s_add_u32 s34, s34, s33")
    a("s_mul_i32 s34, s34, %d" % AF_BLK)
    a("s_lshl_b32 s35, s32, 11")
    a("s_add_u32 s34, s34, s35")
    a("s_add_u32 s34, s34, 0x%x" % AF)
    a("v_add_u32 v%d, s34, v%d" % (V_DA, V_ST))
    a("s_lshl_b32 s36, s6, 11")
    a("v_lshrrev_b32 v12, 4, v1")
    a("v_bfe_u32 v13, v1, 2, 2")
    a("v_xor_b32 v13, v13, v12")
    a("v_lshlrev_b32 v13, 6, v13")
    a("v_and_b32 v14, 3, v1")
    a("v_lshl_add_u32 v13, v14, 4, v13")
    a("s_lshl_b32 s33, s6, 3")
    a("v_add_u32 v12, s33, v12")
    a("v_lshlrev_b32 v12, 10, v12")
    a("v_add_u32 v12, v12, v13")
    a("s_lshl_b32 s33, s4, 8")
    a("v_add_u32 v%d, s33, v12" % V_DB)
    a("v_add_u32 v%d, 3072, v%d" % (V_DB + 1, V_DB))
    a("s_mov_b32 s42, 0x1c0000")
    a("s_mul_i32 s37, s5, 7")
    a("s_add_u32 s37, s37, 64")
    a("s_lshl_b32 s44, s5, 4")
    a("s_mov_b32 s43, 0")
    a("s_waitcnt lgkmcnt(0)")

    def dma(buf):
        a("s_cmp_lt_u32 s37, 64")
        a("s_cselect_b32 s12, s24, s26")
        a("s_cselect_b32 s13, s25, s27")
        a("s_cselect_b32 s14, 0x400000, s42")
        a("s_cselect_b32 s39, 0, 64")
        a("s_sub_u32 s39, s37, s39")
        a("s_lshl_b32 s39, s39, 16")
        a("s_lshl_b32 s40, s37, 12")
        a("s_cmp_lt_u32 s43, %d" % NST)
        a("s_cselect_b32 s14, s14, 0")
        a("s_cselect_b32 s40, s40, 0x10000000")
        a("s_add_u32 s37, s37, 1")
        a("s_add_u32 s43, s43, 1")
        a("s_cmp_eq_u32 s43, 7")
        a("s_cselect_b32 s37, s44, s37")
        a("s_add_u32 m0, s36, %d" % (buf * 32768))
        a("s_nop 0")
        for i in range(2):
            a("buffer_load_dwordx4 v%d, s[8:11], s40 offen offset:%d lds" % (V_DA, i * 1024))
        a("s_add_u32 m0, s36, %d" % (buf * 32768 + 16384))
        a("s_nop 0")
        for i in range(2):
            a("buffer_load_dwordx4 v%d, s[12:15], s39 offen offset:%d lds" % (V_DB + i, i * 1024))

    def reads(buf, sl, st):
        hi = 1 if buf >= 2 else 0
        bo = (buf & 1) * 32768
        f = V_F + st * 16
        for mbl in range(2):
            a("ds_read_b128 %s, v%d offset:%d" % (vr(f + 4 * mbl, 4), V_AL + hi, bo + mbl * 4096 + sl * 1024))
        for ntl in range(2):
            for ird in range(2):
                a("ds_read_b64_tr_b16 %s, v%d offset:%d" % (
                    vr(f + 8 + 4 * ntl + 2 * ird, 2), V_TR + 2 * hi + ntl, bo + sl * 4096 + ird * 2048))

    def mfmas(st, first):
        f = V_F + st * 16
        for mbl in range(2):
            for ntl in range(2):
                acc = vr(V_ACC + 16 * (mbl * 2 + ntl), 16)
                c = "0" if first else acc
                a("v_mfma_f32_32x32x16_bf16 %s, %s, %s, %s" % (acc, vr(f + 8 + 4 * ntl, 4), vr(f + 4 * mbl, 4), c))

    dma(0)
    dma(1)
    dma(2)
    for i in range(64):
        a("v_mov_b32 v%d, 0" % (V_ACC + i))
    a("s_cmp_lg_u32 s6, 0")
    a("s_cbranch_scc1 ogemm_nosig")
    a.gb_signal(1)
    a.label("ogemm_nosig")
    a("s_mov_b32 s41, 0")
    a("s_waitcnt vmcnt(8)")
    a("s_barrier")
    a.stamp()
    reads(0, 0, 0)

    def body(buf, hook=None, check=True):
        a("s_waitcnt vmcnt(4)")
        a("s_barrier")
        reads(buf, 1, 1)
        a("s_waitcnt lgkmcnt(6)")
        mfmas(0, False)
        reads((buf + 1) & 3, 0, 0)
        if hook:
            hook()
        dma((buf + 3) & 3)
        a("s_waitcnt lgkmcnt(6)")
        mfmas(1, False)
        a("s_add_u32 s41, s41, 1")
        if check:
            a("s_cmp_ge_u32 s41, %d" % NST)
            a("s_cbranch_scc1 ogemm_done")

    def pollhook():
        a("s_cmp_lg_u32 s6, 0")
        a("s_cbranch_scc1 ogemm_nopoll")
        a.gb_poll(1)
        a.label("ogemm_nopoll")
        a("s_barrier")
        a.stamp()

    for it in range(8):
        body(it & 3, pollhook if it == 4 else None, False)
    a.label("ogemm_loop")
    a.inloop = "og" in EXP
    for buf in range(4):
        body(buf)
    a("s_branch ogemm_loop")
    a.inloop = False
    a.label("ogemm_done")
    a.ostamp()
    a.stamp()
    a("s_waitcnt vmcnt(0) lgkmcnt(0)")
    a("s_barrier")
    a.nop(12)
    a("s_and_b32 s33, s6, 3")
    a("s_lshl_b32 s33, s33, 14")
    a("s_lshl_b32 s34, s6, 13")
    a("v_add_u32 v12, s34, v%d" % V_ST)
    a("s_xor_b32 s34, s34, 0x8000")
    a("v_add_u32 v13, s34, v%d" % V_ST)
    a("s_lshl_b32 s34, s3, 2")
    a("s_add_u32 s34, s34, s4")
    a("s_lshl_b32 s34, s34, 16")
    a("s_add_u32 s34, s34, s33")
    a("s_lshl_b32 s35, s5, 22")
    a("s_add_u32 s34, s34, s35")
    a("s_add_u32 s34, s34, 0x%x" % PART)
    a("s_cmp_eq_u32 s30, 0")
    a("s_cbranch_scc1 ogemm_g0")
    for g in (1, 0):
        if g == 0:
            a.label("ogemm_g0")
        keep, send = V_ACC + 32 * g, V_ACC + 32 * (1 - g)
        for i in range(8):
            a("ds_write_b128 v12, %s offset:%d" % (vr(send + 4 * i, 4), i * 1024))
        a("s_waitcnt lgkmcnt(0)")
        a("s_barrier")
        for i in range(8):
            a("ds_read_b128 %s, v13 offset:%d" % (vr(112 + 4 * i, 4), i * 1024))
        a("s_add_u32 s34, s34, %d" % (8192 * g))
        for i in range(8):
            a("s_waitcnt lgkmcnt(%d)" % (7 - i))
            for k in range(4):
                a("v_add_f32 v%d, v%d, v%d" % (keep + 4 * i + k, keep + 4 * i + k, 112 + 4 * i + k))
            if i == 4:
                a("s_add_u32 s34, s34, 4096")
            a("buffer_store_dwordx4 %s, v%d, s[8:11], s34 offen offset:%d sc1" % (vr(keep + 4 * i, 4), V_ST, (i & 3) * 1024))
        if g == 1:
            a("s_branch ogemm_end")
    a.stamp()
    a.stamp_flush(0)
    a.label("ogemm_end")
    a("s_lshl_b32 s49, s3, 2")
    a("s_add_u32 s49, s49, s4")
    a("s_lshl_b32 s45, s49, 4")
    a("s_lshl_b32 s46, s5, 2")
    a("s_add_u32 s45, s45, s46")
    reduce_pre(a)
    if SENT:
        a.phase = 3
        return
    a("s_waitcnt vmcnt(0) lgkmcnt(0)")
    a("s_barrier")
    a("s_cmp_lg_u32 s6, 0")
    a("s_cbranch_scc1 tb_wait")
    a("s_add_u32 s46, s49, 32")
    a("s_lshl_b32 s46, s46, 12")
    a("s_add_u32 s46, s46, 0x%x" % CTR)
    a("s_mov_b64 exec, 1")
    a("v_mov_b32 v12, 1")
    a("v_mov_b32 v13, 0")
    a("buffer_atomic_add v12, v13, s[8:11], s46 offen sc1")
    a("s_mov_b32 s47, 0")
    a.label("tb_loop")
    a("buffer_load_dword v14, v13, s[8:11], s46 offen sc1")
    a("s_waitcnt vmcnt(0)")
    a("v_readfirstlane_b32 s48, v14")
    a("s_cmp_ge_u32 s48, 4")
    a("s_cbranch_scc1 tb_done")
    a("s_add_u32 s47, s47, 1")
    a("s_cmp_gt_u32 s47, 40000")
    a("s_cbranch_scc1 tb_done")
    a("s_sleep 4")
    a("s_branch tb_loop")
    a.label("tb_done")
    a("s_mov_b64 exec, -1")
    a.label("tb_wait")
    a("s_barrier")
    a.phase = 3


RB = 176


def reduce_pre(a):
    a("s_load_dwordx2 s[52:53], s[0:1], 0")
    a("s_load_dwordx2 s[56:57], s[0:1], 80")
    a("s_load_dwordx2 s[60:61], s[0:1], 88")
    a("s_mov_b32 s54, 0x200000")
    a("s_mov_b32 s55, 0x20000")
    a("s_mov_b32 s58, 1024")
    a("s_mov_b32 s59, 0x20000")
    a("s_mov_b32 s62, 0x200000")
    a("s_mov_b32 s63, 0x20000")
    T = RB + 70
    a("s_lshr_b32 s40, s6, 2")
    a("v_and_b32 v%d, 255, v0" % T)
    a("s_add_u32 s41, s45, s40")
    a("v_lshlrev_b32 v%d, 4, v%d" % (RB + 1, T))
    a("s_waitcnt lgkmcnt(0)")
    for j in range(2):
        B = RB + 4 + 32 * j
        v2, v3 = RB + 2, RB + 3
        a("s_add_u32 s42, s41, %d" % (2 * j))
        a("s_lshr_b32 s64, s42, 4")
        a("s_lshr_b32 s65, s42, 2")
        a("s_and_b32 s65, s65, 3")
        a("s_and_b32 s66, s42, 3")
        a("s_lshr_b32 s24, s64, 2")
        a("s_and_b32 s25, s64, 3")
        a("s_lshr_b32 s26, s65, 1")
        a("s_and_b32 s27, s65, 1")
        a("s_lshr_b32 s28, s66, 1")
        a("s_and_b32 s29, s66, 1")
        a("s_lshl_b32 s30, s24, 2")
        a("s_lshl_b32 s31, s26, 1")
        a("s_add_u32 s30, s30, s31")
        a("s_add_u32 s30, s30, s28")
        a("s_lshl_b32 s30, s30, 15")
        a("s_lshl_b32 s31, s25, 2")
        a("s_lshl_b32 s32, s27, 1")
        a("s_add_u32 s31, s31, s32")
        a("s_add_u32 s31, s31, s29")
        a("s_lshl_b32 s31, s31, 6")
        a("v_and_b32 v%d, 31, v%d" % (v2, T))
        a("v_lshlrev_b32 v%d, 10, v%d" % (v2, v2))
        a("v_lshrrev_b32 v%d, 6, v%d" % (v3, T))
        a("v_lshlrev_b32 v%d, 4, v%d" % (v3, v3))
        a("v_bfe_u32 v%d, v%d, 5, 1" % (B + 16, T))
        a("v_lshl_add_u32 v%d, v%d, 3, v%d" % (v3, B + 16, v3))
        a("v_add_u32 v%d, s31, v%d" % (v3, v3))
        a("v_add_u32 v%d, v%d, v%d" % (v2, v2, v3))
        a("v_add_u32 v%d, s30, v%d" % (B + 26, v2))
        a("buffer_load_dwordx2 %s, v%d, s[52:55], 0 offen" % (vr(B + 16, 2), B + 26))
        a("buffer_load_dwordx2 %s, v%d, s[56:59], 0 offen" % (vr(B + 18, 2), v3))


def gen_reduce(a):
    a.label("reduce_kernel")
    a.ostamp()
    a.stamp()
    if SENT:
        a("s_mov_b32 s47, 0")
        a.label("red_poll")
    for j in range(2):
        B = RB + 4 + 32 * j
        a("s_lshl_b32 s42, s41, 12")
        a("s_add_u32 s42, s42, 0x%x" % (PART + j * 8192))
        for p in range(4):
            a("buffer_load_dwordx4 %s, v%d, s[8:11], s42 offen%s" % (vr(B + 4 * p, 4), RB + 1, " sc1" if SENT else ""))
            if p < 3:
                a("s_add_u32 s42, s42, 0x400000")
    if SENT:
        for j in range(2):
            B = RB + 4 + 32 * j
            a("s_waitcnt vmcnt(%d)" % (4 - 4 * j))
            a("v_max3_u32 v%d, v%d, v%d, v%d" % (248 + j, B, B + 1, B + 2))
            for i in range(6):
                a("v_max3_u32 v%d, v%d, v%d, v%d" % (248 + j, 248 + j, B + 3 + 2 * i, B + 4 + 2 * i))
            a("v_max_u32 v%d, v%d, v%d" % (248 + j, 248 + j, B + 15))
        a("v_max_u32 v248, v248, v249")
        a("v_cmp_eq_u32 vcc, -1, v248")
        a("s_nop 1")
        a("s_cbranch_vccz red_ok")
        a("s_add_u32 s47, s47, 1")
        a("s_cmp_gt_u32 s47, 20000")
        a("s_cbranch_scc1 red_ok")
        a("s_sleep %s" % os.environ.get("RSL", "4"))
        a("s_branch red_poll")
        a.label("red_ok")
    for j in range(2):
        B = RB + 4 + 32 * j
        for p in range(2):
            a("v_lshlrev_b32 v%d, 16, v%d" % (B + 20, B + 16 + p))
            a("v_and_b32 v%d, 0xffff0000, v%d" % (B + 21, B + 16 + p))
            a("v_lshlrev_b32 v%d, 16, v%d" % (B + 22, B + 18 + p))
            a("v_and_b32 v%d, 0xffff0000, v%d" % (B + 23, B + 18 + p))
            a("v_add_f32 v%d, v%d, v%d" % (B + 28 + 2 * p, B + 20, B + 22))
            a("v_add_f32 v%d, v%d, v%d" % (B + 29 + 2 * p, B + 21, B + 23))
    for j in range(2):
        B = RB + 4 + 32 * j
        a("s_waitcnt vmcnt(%d)" % (4 - 4 * j))
        for i in range(4):
            a("v_add_f32 v%d, v%d, v%d" % (B + i, B + i, B + 4 + i))
            a("v_add_f32 v%d, v%d, v%d" % (B + 8 + i, B + 8 + i, B + 12 + i))
        for i in range(4):
            a("v_add_f32 v%d, v%d, v%d" % (B + i, B + i, B + 8 + i))
        for i in range(4):
            a("v_add_f32 v%d, v%d, v%d" % (B + i, B + i, B + 28 + i))
        for p in range(2):
            a("v_cvt_pk_bf16_f32 v%d, v%d, v%d" % (B + 24 + p, B + 2 * p, B + 1 + 2 * p))
        a("buffer_store_dwordx2 %s, v%d, s[60:63], 0 offen" % (vr(B + 24, 2), B + 26))
    a.stamp()
    a.stamp_flush(0)
    if os.environ.get("STAMP"):
        a("s_waitcnt vmcnt(0)")
        a("s_memrealtime s[18:19]")
        a("s_load_dwordx2 s[8:9], s[0:1], 96")
        a("s_mov_b32 s10, 65536")
        a("s_mov_b32 s11, 0x20000")
        a("s_lshl_b32 s20, s2, 4")
        a("s_add_u32 s20, s20, %d" % (4096 + 4096 * 3))
        a("s_waitcnt lgkmcnt(0)")
        a("s_mov_b64 exec, 1")
        a("v_mov_b32 v4, s18")
        a("v_mov_b32 v5, s93")
        a("v_mov_b32 v6, s18")
        a("v_mov_b32 v7, s92")
        a("v_mov_b32 v2, 0")
        a("buffer_store_dwordx4 v[4:7], v2, s[8:11], s20 offen")
    if os.environ.get("OST"):
        a("s_waitcnt vmcnt(0)")
    a.ostamp(True)
    a("s_endpgm")
```

```python
import sys

NAME = "parallel_sum__compressed_kv_cla__dense_activation_squared_relu__prompt"

MB = 1 << 20
QF = 0
KF = 16 * MB
VF = 32 * MB
AF = 49 * MB
AF_BLK = 368 * 1024
PART = 80 * MB
CTR = 100 * MB
import math, struct
QSC = struct.unpack("<I", struct.pack("<f", (128 ** -0.5) * math.log2(math.e)))[0]


import os
STAMP = os.environ.get("STAMP")


class Asm:
    def __init__(self):
        self.lines = []
        self.nst = 0

    def stamp(self):
        if not STAMP:
            return
        self("s_memtime s[98:99]")
        self("s_waitcnt lgkmcnt(0)")
        self("s_mov_b32 s%d, s98" % (68 + self.nst))
        self.nst += 1

    def stamp_flush(self, wgsel, dbgptr_off=96):
        if not STAMP:
            return
        L = "stf_%d" % len(self.lines)
        self("s_cmp_lg_u32 s2, %d" % wgsel)
        self("s_cbranch_scc1 %s" % L)
        self("s_load_dwordx2 s[96:97], s[0:1], %d" % dbgptr_off)
        self("s_waitcnt lgkmcnt(0)")
        self("s_mov_b32 s98, 4096")
        self("s_mov_b32 s99, 0x20000")
        self("v_cmp_eq_u32 vcc, 0, v0")
        self("s_and_saveexec_b64 s[94:95], vcc")
        self("s_cbranch_execz %s" % L)
        for i in range(self.nst):
            self("v_mov_b32 v1, s%d" % (68 + i))
            self("v_mov_b32 v2, %d" % (4 * i + 512 * (self.phase + 1)))
            self("buffer_store_dword v1, v2, s[96:99], 0 offen")
        self.label(L)
        self("s_mov_b64 exec, -1")
        self.nst = 0

    phase = 0
    on = 0

    def ostamp(self, last=False):
        OST = os.environ.get("OST")
        if not OST:
            return
        a = self
        a("s_memrealtime s[98:99]")
        a("s_waitcnt lgkmcnt(0)")
        a("s_mov_b32 s%d, s98" % (68 + self.on if self.on else 93))
        self.on += 1
        if last:
            a("s_cmp_lg_u32 s2, %s" % OST)
            a("s_cbranch_scc1 ost_skip")
            a("s_load_dwordx2 s[96:97], s[0:1], 96")
            a("s_mov_b32 s98, 256")
            a("s_mov_b32 s99, 0x20000")
            a("v_cmp_eq_u32 vcc, 0, v0")
            a("s_and_saveexec_b64 s[94:95], vcc")
            a("s_cbranch_execz ost_skip")
            a("s_waitcnt lgkmcnt(0)")
            for i in range(1, self.on):
                a("s_sub_u32 s94, s%d, s93" % (68 + i))
                a("v_mov_b32 v1, s94")
                a("v_mov_b32 v2, %d" % (28 + 4 * i))
                a("buffer_store_dword v1, v2, s[96:99], 0 offen")
            a.label("ost_skip")
            a("s_mov_b64 exec, -1")

    def gb_signal(self, k):
        a = self
        a("s_load_dwordx2 s[80:81], s[0:1], 96")
        a("s_load_dwordx2 s[84:85], s[0:1], 104")
        a("s_mov_b32 s82, 256")
        a("s_mov_b32 s83, 0x20000")
        a("s_mov_b32 s86, 0x10000000")
        a("s_mov_b32 s87, 0x20000")
        a("s_mov_b64 exec, 1")
        a("v_mov_b32 v12, 1")
        a("v_mov_b32 v13, %d" % (4 * k))
        a("v_mov_b32 v14, 1")
        a("v_mov_b32 v15, 0")
        a("s_and_b32 s88, s2, 15")
        a("s_lshl_b32 s88, s88, 12")
        a("s_add_u32 s88, s88, 0x%x" % (CTR + (k - 1) * 65536))
        a("s_waitcnt lgkmcnt(0)")
        a("buffer_atomic_add v14, v15, s[84:87], s88 offen sc0 sc1")
        a("s_waitcnt vmcnt(0)")
        a("v_readfirstlane_b32 s89, v14")
        a("s_cmp_lg_u32 s89, 15")
        a("s_cbranch_scc1 gs_nr%d" % k)
        a("buffer_atomic_add v12, v13, s[80:83], 0 offen sc1")
        a.label("gs_nr%d" % k)
        a("s_mov_b64 exec, -1")

    def gb_poll(self, k):
        a = self
        a("s_mov_b64 exec, 1")
        a("v_mov_b32 v13, %d" % (4 * k))
        a("s_mov_b32 s88, 0")
        a.label("gp_loop%d" % k)
        a("buffer_load_dword v14, v13, s[80:83], 0 offen sc1")
        a("s_waitcnt vmcnt(0)")
        a("v_readfirstlane_b32 s89, v14")
        a("s_cmp_ge_u32 s89, 16")
        a("s_cbranch_scc1 gp_done%d" % k)
        a("s_add_u32 s88, s88, 1")
        a("s_cmp_gt_u32 s88, 40000")
        a("s_cbranch_scc1 gp_done%d" % k)
        a("s_sleep 8")
        a("s_branch gp_loop%d" % k)
        a.label("gp_done%d" % k)
        a("s_mov_b64 exec, -1")

    def gridbar(self, k):
        a = self
        if STAMP:
            a("s_memrealtime s[14:15]")
        if k == 0:
            a("s_cmp_ge_u32 s2, 96")
            a("s_cbranch_scc1 gb_noinit")
            a("s_load_dwordx2 s[8:9], s[0:1], 104")
            a("s_mov_b32 s10, 0x10000000")
            a("s_mov_b32 s11, 0x20000")
            a("s_lshl_b32 s12, s2, 12")
            a("s_add_u32 s12, s12, 0x%x" % CTR)
            a("v_mov_b32 v1, 0")
            a("v_mov_b32 v2, 0")
            a("s_waitcnt lgkmcnt(0)")
            a("buffer_store_dword v1, v2, s[8:11], s12 offen sc0 sc1")
            a.label("gb_noinit")
        a("s_waitcnt vmcnt(0) lgkmcnt(0)")
        a("s_barrier")
        if STAMP:
            a("s_memrealtime s[16:17]")
        a("v_lshrrev_b32 v1, 6, v0")
        a("s_nop 0")
        a("v_readfirstlane_b32 s6, v1")
        a("s_cmp_lg_u32 s6, 0")
        a("s_cbranch_scc1 gb_wait%d" % k)
        a("s_load_dwordx2 s[8:9], s[0:1], 96")
        a("s_load_dwordx2 s[24:25], s[0:1], 104")
        a("s_mov_b32 s10, 256")
        a("s_mov_b32 s11, 0x20000")
        a("s_mov_b32 s26, 0x10000000")
        a("s_mov_b32 s27, 0x20000")
        a("s_mov_b64 exec, 1")
        a("v_mov_b32 v1, 1")
        a("v_mov_b32 v2, %d" % (4 * k))
        a("s_waitcnt lgkmcnt(0)")
        tgt = 256
        if True:
            tgt = 16
            a("s_and_b32 s12, s2, 15")
            a("v_mov_b32 v3, 1")
            a("v_mov_b32 v4, 0")
            if k > 0:
                a("s_lshl_b32 s12, s12, 12")
                a("s_add_u32 s12, s12, 0x%x" % (CTR + (k - 1) * 65536))
                a("buffer_atomic_add v3, v4, s[24:27], s12 offen sc0 sc1")
            else:
                a("s_lshl_b32 s12, s12, 2")
                a("s_add_u32 s12, s12, 128")
                a("buffer_atomic_add v3, v4, s[8:11], s12 offen sc0 sc1")
            a("s_waitcnt vmcnt(0)")
            a("v_readfirstlane_b32 s13, v3")
            a("s_cmp_lg_u32 s13, 15")
            a("s_cbranch_scc1 gb_nr%d" % k)
        a("buffer_atomic_add v1, v2, s[8:11], 0 offen sc1")
        if True:
            a.label("gb_nr%d" % k)
        a("s_mov_b32 s12, 0")
        a.label("gb_loop%d" % k)
        a("buffer_load_dword v3, v2, s[8:11], 0 offen %s" % os.environ.get("PSC", "sc1"))
        a("s_waitcnt vmcnt(0)")
        a("v_readfirstlane_b32 s13, v3")
        a("s_cmp_ge_u32 s13, %d" % tgt)
        a("s_cbranch_scc1 gb_done%d" % k)
        a("s_add_u32 s12, s12, 1")
        a("s_cmp_gt_u32 s12, 40000")
        a("s_cbranch_scc1 gb_done%d" % k)
        a("s_sleep %s" % os.environ.get("SLEEP", "8"))
        a("s_branch gb_loop%d" % k)
        a.label("gb_done%d" % k)
        if STAMP:
            a("s_memrealtime s[18:19]")
            a("s_mov_b32 s10, 65536")
            a("s_lshl_b32 s20, s2, 4")
            a("s_add_u32 s20, s20, %d" % (4096 + 4096 * k))
            a("s_waitcnt lgkmcnt(0)")
            a("s_mov_b64 exec, 1")
            a("v_mov_b32 v4, s14")
            a("v_mov_b32 v5, s16")
            a("v_mov_b32 v6, s18")
            a("v_mov_b32 v7, s92")
            a("v_mov_b32 v2, 0")
            a("buffer_store_dwordx4 v[4:7], v2, s[8:11], s20 offen")
        a("s_mov_b64 exec, -1")
        a("s_waitcnt lgkmcnt(0)")
        a.label("gb_wait%d" % k)
        a("s_barrier")
        if "inv" in os.environ.get("EXP", ""):
            a("buffer_inv sc1")
        self.phase = k + 1

    inloop = False

    def __call__(self, s):
        EXP = os.environ.get("EXP", "")
        if self.inloop:
            if "nomfma" in EXP and s.startswith("v_mfma"):
                return
            if "novalu" in EXP and s.startswith("v_") and not s.startswith("v_mfma") and not s.startswith("v_cmp") and "0x1ffff" not in s and "0x8000" not in s and not s.startswith("v_mov") and not s.startswith("v_add_u32"):
                return
            if "nolds" in EXP and s.startswith("ds_read"):
                return
            if "nodma" in EXP and s.startswith("buffer_load"):
                return
            if "nobar" in EXP and s.startswith("s_barrier"):
                return
        if "nosc1" in EXP and s.startswith("buffer_store") and s.endswith(" sc1"):
            s = s[:-4]
        self.lines.append("  " + s)

    def label(self, s):
        self.lines.append(s + ":")

    def raw(self, s):
        self.lines.append(s)

    def nop(self, n):
        while n > 0:
            k = min(n, 16)
            self("s_nop %d" % (k - 1))
            n -= k


def vr(a, n):
    return "v[%d:%d]" % (a, a + n - 1)


def sr(a, n):
    return "s[%d:%d]" % (a, a + n - 1)


def gen_proj(a):
    V_LANE = 1
    V_TR = 2
    V_OFFC = 10
    V_OFFN = 11
    V_ST = 12
    V_T0 = 13
    V_B = 16
    V_ACC = 48
    V_A = 112
    V_ROWI = 13
    V_SWZ = 14
    V_T = 15
    V_AOFF = 240

    a.label("mega_kernel")
    a("s_cmp_lt_u32 s2, 256")
    a("s_cbranch_scc1 proj_start")
    a("s_endpgm")
    a.label("proj_start")
    a.ostamp()
    if STAMP:
        a("s_memrealtime s[92:93]")
    a.stamp()
    a("s_load_dwordx2 s[8:9], s[0:1], 96")
    a("s_load_dwordx16 s[24:39], s[0:1], 0")
    a("s_load_dwordx4 s[40:43], s[0:1], 64")
    a("s_load_dwordx2 s[44:45], s[0:1], 104")
    EXPF = os.environ.get("EXP", "")
    if "tick" in EXPF:
        a("v_lshrrev_b32 v1, 6, v0")
        a("v_lshlrev_b32 v4, 14, v1")
        a("v_add_u32 v4, 0x8000, v4")
        a("v_readfirstlane_b32 s6, v1")
        a("s_getreg_b32 s4, hwreg(HW_REG_XCC_ID)")
        a("s_and_b32 s4, s4, 7")
        if "tkforce" in EXPF:
            a("s_min_u32 s4, s4, 4")
        a("s_mov_b32 s10, 256")
        a("s_mov_b32 s11, 0x20000")
        a("s_lshl_b32 s5, s4, 2")
        a("s_add_u32 s5, s5, 192")
        a("v_mov_b32 v2, s5")
        a("v_mov_b32 v3, 1")
        a("s_cmp_eq_u32 s6, 0")
        a("s_cbranch_scc1 tk_w0")
        a("s_cmp_lg_u32 s6, 7")
        a("s_cbranch_scc1 tk_wait")
        a("s_mov_b64 exec, 1")
        a("s_waitcnt lgkmcnt(0)")
        a("v_subrev_u32 v2, 160, v2")
        a("buffer_atomic_add v3, v2, s[8:11], 0 offen sc1")
        a("s_mov_b64 exec, -1")
        a("s_branch tk_wait")
        a.label("tk_w0")
        a("s_mov_b64 exec, 1")
        a("s_waitcnt lgkmcnt(0)")
        a("buffer_atomic_add v3, v2, s[8:11], 0 offen sc0%s" % (" sc1" if "tkforce" in EXPF or "tkglob" in EXPF else ""))
        a("s_waitcnt vmcnt(0)")
        a("v_readfirstlane_b32 s5, v3")
        a("s_cmp_lt_u32 s5, 32")
        a("s_cbranch_scc1 tk_got")
        a("s_mov_b32 s7, 0")
        a("v_mov_b32 v2, 32")
        a.label("tk_poll")
        a("buffer_load_dwordx4 v[8:11], v2, s[8:11], 0 offen sc1")
        a("buffer_load_dwordx4 v[12:15], v2, s[8:11], 0 offen offset:16 sc1")
        a("s_waitcnt vmcnt(0)")
        a("s_mov_b32 s12, 0")
        for i in range(8):
            a("v_readfirstlane_b32 s%d, v%d" % (48 + i, 8 + i))
            a("s_add_u32 s12, s12, s%d" % (48 + i))
        a("s_cmp_ge_u32 s12, 256")
        a("s_cbranch_scc1 tk_full")
        a("s_add_u32 s7, s7, 1")
        a("s_sleep 8")
        a("s_cmp_lt_u32 s7, 40000")
        a("s_cbranch_scc1 tk_poll")
        a.label("tk_fail")
        a("s_lshr_b32 s5, s2, 3")
        a("s_and_b32 s4, s2, 7")
        a("s_branch tk_got")
        a.label("tk_full")
        a("s_sub_u32 s5, s5, 32")
        for i in range(7):
            a("s_max_u32 s12, s%d, 32" % (48 + i))
            a("s_sub_u32 s12, s12, 32")
            a("s_cmp_gt_u32 s4, %d" % i)
            a("s_cselect_b32 s12, s12, 0")
            a("s_add_u32 s5, s5, s12")
        for i in range(8):
            a("s_min_u32 s12, s%d, 32" % (48 + i))
            a("s_sub_u32 s13, 32, s12")
            a("s_mov_b32 s4, %d" % i)
            a("s_cmp_lt_u32 s5, s13")
            a("s_cbranch_scc1 tk_slot")
            a("s_sub_u32 s5, s5, s13")
        a("s_branch tk_fail")
        a.label("tk_slot")
        a("s_add_u32 s5, s5, s12")
        a.label("tk_got")
        a("s_lshl_b32 s5, s5, 3")
        a("s_add_u32 s5, s5, s4")
        a("s_mov_b64 exec, 0xff")
        a("v_lshlrev_b32 v2, 14, v0")
        a("v_add_u32 v2, 0x8000, v2")
        a("v_mov_b32 v3, s5")
        a("ds_write_b32 v2, v3")
        a("s_mov_b64 exec, -1")
        a("s_waitcnt lgkmcnt(0)")
        a.label("tk_wait")
        a("s_barrier")
        a("ds_read_b32 v3, v4")
        a("s_waitcnt lgkmcnt(0)")
        a("v_readfirstlane_b32 s2, v3")
        a("s_and_b32 s2, s2, 255")
        if STAMP:
            a("s_memrealtime s[96:97]")
            a("s_waitcnt lgkmcnt(0)")
            a("s_mov_b32 s93, s96")
    PM = os.environ.get("PM", "5")
    if PM == "0":
        a("s_lshr_b32 s3, s2, 5")
        a("s_and_b32 s4, s2, 31")
    elif PM == "1":
        a("s_and_b32 s3, s2, 7")
        a("s_lshr_b32 s4, s2, 3")
    elif PM == "2":
        a("s_and_b32 s3, s2, 3")
        a("s_bfe_u32 s4, s2, 0x10003")
        a("s_lshl_b32 s4, s4, 2")
        a("s_or_b32 s3, s3, s4")
        a("s_bfe_u32 s4, s2, 0x10002")
        a("s_lshr_b32 s5, s2, 4")
        a("s_lshl_b32 s5, s5, 1")
        a("s_or_b32 s4, s4, s5")
    elif PM == "3":
        a("s_and_b32 s3, s2, 1")
        a("s_bfe_u32 s4, s2, 0x20003")
        a("s_lshl_b32 s4, s4, 1")
        a("s_or_b32 s3, s3, s4")
        a("s_bfe_u32 s4, s2, 0x20001")
        a("s_lshr_b32 s5, s2, 5")
        a("s_lshl_b32 s5, s5, 2")
        a("s_or_b32 s4, s4, s5")
    elif PM == "4":
        a("s_lshr_b32 s3, s2, 5")
        a("s_bfe_u32 s4, s2, 0x40001")
        a("s_and_b32 s5, s2, 1")
        a("s_lshl_b32 s5, s5, 4")
        a("s_or_b32 s4, s4, s5")
    elif PM == "5":
        a("s_bfe_u32 s3, s2, 0x10001")
        a("s_bfe_u32 s4, s2, 0x20003")
        a("s_lshl_b32 s4, s4, 1")
        a("s_or_b32 s3, s3, s4")
        a("s_bfe_u32 s4, s2, 0x10002")
        a("s_lshr_b32 s5, s2, 5")
        a("s_lshl_b32 s5, s5, 1")
        a("s_or_b32 s4, s4, s5")
        a("s_and_b32 s5, s2, 1")
        a("s_lshl_b32 s5, s5, 4")
        a("s_or_b32 s4, s4, s5")
    elif PM == "6":
        a("s_bfe_u32 s3, s2, 0x30001")
        a("s_lshr_b32 s4, s2, 4")
        a("s_and_b32 s5, s2, 1")
        a("s_lshl_b32 s5, s5, 4")
        a("s_or_b32 s4, s4, s5")
    a("v_lshrrev_b32 v1, 6, v0")
    a("s_nop 0")
    a("v_readfirstlane_b32 s6, v1")
    a("v_and_b32 v1, 63, v0")
    a("s_waitcnt lgkmcnt(0)")
    a.stamp()
    a("s_cmp_lt_u32 s4, 16")
    a("s_cselect_b32 s8, s24, s26")
    a("s_cselect_b32 s9, s25, s27")
    a("s_cselect_b32 s5, 0, 1")
    a("s_and_b32 s4, s4, 15")
    a("s_mov_b32 s10, 0x200000")
    a("s_mov_b32 s11, 0x20000")
    a("s_mov_b32 s16, s44")
    a("s_mov_b32 s17, s45")
    a("s_mov_b32 s18, 0x10000000")
    a("s_mov_b32 s19, 0x20000")
    a("s_mov_b32 s20, s40")
    a("s_mov_b32 s21, s41")
    a("s_mov_b32 s22, 3584")
    a("s_mov_b32 s23, 0x20000")
    a("s_mov_b32 s15, 0x20000")
    a("s_mov_b32 s51, 0x20000")
    a("s_lshl_b32 s58, s6, 12")
    a("s_lshl_b32 s59, s3, 3")
    a("s_add_u32 s59, s59, s6")
    a("v_and_b32 v13, 15, v1")
    a("v_lshlrev_b32 v13, 10, v13")
    a("v_lshrrev_b32 v14, 4, v1")
    a("v_lshlrev_b32 v14, 4, v14")
    a("v_add_u32 v13, v13, v14")
    a("s_movk_i32 s65, 0x4000")
    a("s_lshl_b32 s60, s59, 15")
    a("v_add_u32 v13, s60, v13")
    a("v_mov_b32 v%d, v13" % V_AOFF)

    def aloads(lo, hi):
        for s in range(lo, hi):
            a("buffer_load_dwordx4 %s, v%d, s[8:11], %s offen offset:%d" % (
                vr(V_A + 4 * s, 4), V_AOFF, "s65" if s & 1 else "0", (s >> 1) * 64))

    def aswaps(lo, hi):
        for s in range(lo, hi, 2):
            for j in range(4):
                a("v_permlane16_swap_b32 v%d, v%d" % (V_A + 4 * s + j, V_A + 4 * s + 4 + j))
        a("s_nop 1")
    a("v_bfe_u32 v13, v1, 2, 2")
    a("v_lshrrev_b32 v14, 5, v1")
    a("v_lshl_add_u32 v14, v14, 4, v13")
    a("v_lshlrev_b32 v14, 8, v14")
    a("v_bfe_u32 v15, v1, 4, 1")
    a("v_lshl_add_u32 v14, v15, 5, v14")
    a("v_and_b32 v15, 3, v1")
    a("v_lshl_add_u32 v14, v15, 3, v14")
    a("v_lshlrev_b32 v13, 6, v13")
    for nt in range(4):
        a("v_xor_b32 v15, %d, v13" % (nt << 6))
        a("v_add_u32 v%d, v14, v15" % (V_TR + nt))
        a("v_add_u32 v%d, 0x10000, v%d" % (V_TR + 4 + nt, V_TR + nt))
    a("v_lshlrev_b32 v%d, 4, v1" % V_ST)
    a("v_lshrrev_b32 v13, 4, v1")
    a("v_bfe_u32 v14, v1, 2, 2")
    a("v_xor_b32 v14, v14, v13")
    a("v_lshlrev_b32 v14, 6, v14")
    a("v_and_b32 v15, 3, v1")
    a("v_lshl_add_u32 v14, v15, 4, v14")
    a("s_lshl_b32 s60, s6, 4")
    a("v_add_u32 v13, s60, v13")

    def set_params(which, wlo, whi, nrec, ldw, colexpr_reg):
        base = 12 if which == "cur" else 48
        sl, sc = (52, 53) if which == "cur" else (54, 55)
        voff = V_OFFC if which == "cur" else V_OFFN
        a("s_mov_b32 s%d, s%d" % (base, wlo))
        a("s_mov_b32 s%d, s%d" % (base + 1, whi))
        if isinstance(nrec, str):
            a("s_mov_b32 s%d, %s" % (base + 2, nrec))
        else:
            a("s_mov_b32 s%d, 0x%x" % (base + 2, nrec))
        a("s_mov_b32 s%d, %d" % (sl, ldw))
        a("s_mov_b32 s%d, %s" % (sc, colexpr_reg))
        a("v_mul_lo_u32 v%d, v%d, s%d" % (voff, V_ROWI, sl))
        a("v_add_u32 v%d, v%d, v%d" % (voff, voff, V_SWZ))

    def dma(kc, which):
        base = 12 if which == "cur" else 48
        sl, sc = (52, 53) if which == "cur" else (54, 55)
        voff = V_OFFC if which == "cur" else V_OFFN
        for i in range(4):
            a("s_add_u32 m0, s58, %d" % (kc * 32768 + i * 1024))
            a("s_mul_i32 s57, s%d, %d" % (sl, kc * 128 + 4 * i))
            a("s_add_u32 s57, s57, s%d" % sc)
            a("buffer_load_dwordx4 v%d, %s, s57 offen lds" % (voff, sr(base, 4)))

    def reads(kc, s, setidx):
        hi = 4 if kc >= 2 else 0
        off = (kc & 1) * 32768 + (s >> 1) * 8192 + (s & 1) * 2048
        for nt in range(4):
            for ird in range(2):
                a("ds_read_b64_tr_b16 %s, v%d offset:%d" % (
                    vr(V_B + setidx * 16 + nt * 4 + ird * 2, 2), V_TR + hi + nt, off + ird * 1024))

    def epi_part(kind, nt):
        if kind == "Q":
            for i in range(16):
                a("v_mul_f32 v%d, v%d, v%d" % (V_ACC + 16 * nt + i, V_LNR + 1, V_ACC + 16 * nt + i))
        for t in range(2):
            d = V_ACC + 16 * nt + 8 * t
            for p in range(4):
                x0 = V_ACC + 16 * nt + 8 * t + 2 * p
                a("v_cvt_pk_bf16_f32 v%d, v%d, v%d" % (d + p, x0, x0 + 1))
            a("buffer_store_dwordx4 %s, v%d, s[16:19], s%d offen offset:%d sc1" % (
                vr(d, 4), V_ST, 90 if nt < 2 else 91, ((nt * 2 + t) & 3) * 1024))
        a("s_nop 1")

    def compute(kc, kind, extra=None, prev=None, hooks=None):
        extra = list(extra or [])
        per = -(-len(extra) // 32)
        for s in range(8):
            if hooks and s in hooks:
                hooks[s]()
            if s < 7:
                reads(kc, s + 1, (s + 1) & 1)
            else:
                reads((kc + 1) & 3, 0, 0)
            a("s_waitcnt lgkmcnt(8)")
            ks = kc * 8 + s
            for nt in range(4):
                acc = vr(V_ACC + 16 * nt, 16)
                wf = vr(V_B + (s & 1) * 16 + nt * 4, 4)
                af = vr(V_A + 4 * ks, 4)
                c = "0" if ks == 0 else acc
                if prev and ks == 0:
                    epi_part(prev, nt)
                if kind == "V":
                    a("v_mfma_f32_32x32x16_bf16 %s, %s, %s, %s" % (acc, af, wf, c))
                else:
                    a("v_mfma_f32_32x32x16_bf16 %s, %s, %s, %s" % (acc, wf, af, c))
                for x in extra[:per]:
                    a(x)
                extra = extra[per:]
        assert not extra

    def aload_ops(lo, hi):
        ops = []
        for s in range(lo, hi):
            ops.append("buffer_load_dwordx4 %s, v%d, s[8:11], %s offen offset:%d" % (
                vr(V_A + 4 * s, 4), V_AOFF, "s65" if s & 1 else "0", (s >> 1) * 64))
            ops += ["s_nop 0"] * 3
        return ops

    V_LNM = 244
    V_LNR = 246
    V_LNT = 248

    def norm_ops(q):
        ops = []
        for i in range(32 * q, 32 * q + 32):
            r = V_A + i
            t = 248 + 2 * (i % 3)
            ops.append("v_lshlrev_b32 v%d, 16, v%d" % (t, r))
            ops.append("v_and_b32 v%d, 0xffff0000, v%d" % (t + 1, r))
            ops.append("v_pk_add_f32 %s, %s, %s neg_lo:[0,1] neg_hi:[0,1]" % (vr(t, 2), vr(t, 2), vr(V_LNM, 2)))
            ops.append("v_cvt_pk_bf16_f32 v%d, v%d, v%d" % (r, t, t + 1))
        return ops

    def epilogue(kind):
        if kind == "H":
            a("s_waitcnt lgkmcnt(0)")
            a("v_lshrrev_b32 v15, 5, v1")
            a("v_lshlrev_b32 v15, 3, v15")
            for nt in range(4):
                for q in range(4):
                    a("buffer_load_dwordx2 %s, v15, s[20:23], s53 offen offset:%d" % (
                        vr(V_B + (nt * 4 + q) * 2, 2), 64 * nt + 16 * q))
            a.nop(12)
            for i in range(64):
                a("v_mul_f32 v%d, v%d, v%d" % (V_ACC + i, V_LNR, V_ACC + i))
            a("s_waitcnt vmcnt(0)")
            for nt in range(4):
                for q in range(4):
                    r0 = V_ACC + 16 * nt + 4 * q
                    b0 = V_B + (nt * 4 + q) * 2
                    for p in range(2):
                        x0, x1 = r0 + 2 * p, r0 + 2 * p + 1
                        bb = b0 + p
                        a("v_cvt_pk_bf16_f32 v15, v%d, v%d" % (x0, x1))
                        a("v_lshlrev_b32 v%d, 16, v15" % x0)
                        a("v_and_b32 v%d, 0xffff0000, v15" % x1)
                        a("v_lshlrev_b32 v15, 16, v%d" % bb)
                        a("v_add_f32 v%d, v%d, v15" % (x0, x0))
                        a("v_and_b32 v15, 0xffff0000, v%d" % bb)
                        a("v_add_f32 v%d, v%d, v15" % (x1, x1))
                        a("v_cvt_pk_bf16_f32 v15, v%d, v%d" % (x0, x1))
                        a("v_lshlrev_b32 v%d, 16, v15" % x0)
                        a("v_and_b32 v%d, 0xffff0000, v15" % x1)
                        a("v_max_f32 v%d, 0, v%d" % (x0, x0))
                        a("v_max_f32 v%d, 0, v%d" % (x1, x1))
                        a("v_mul_f32 v%d, v%d, v%d" % (x0, x0, x0))
                        a("v_mul_f32 v%d, v%d, v%d" % (x1, x1, x1))
        else:
            a.nop(12)
        if kind == "Q":
            for i in range(64):
                a("v_mul_f32 v%d, v%d, v%d" % (V_ACC + i, V_LNR + 1, V_ACC + i))
        a("s_add_u32 s67, s56, 4096")
        for nt in range(4):
            for t in range(2):
                d = V_ACC + 16 * nt + 8 * t
                for p in range(4):
                    x0 = V_ACC + 16 * nt + 8 * t + 2 * p
                    a("v_cvt_pk_bf16_f32 v%d, v%d, v%d" % (d + p, x0, x0 + 1))
                a("buffer_store_dwordx4 %s, v%d, s[16:19], s%d offen offset:%d sc1" % (
                    vr(d, 4), V_ST, 56 if nt < 2 else 67, ((nt * 2 + t) & 3) * 1024))
        a.nop(2)

    def W(n):
        a("s_waitcnt vmcnt(%d)" % n)

    def ckv_first(kc):
        B = lambda: a("s_barrier")
        if kc == 0:
            return (lambda: None), {
                1: lambda: (W(12), a_read(2, 4)),
                2: lambda: a_dma(5, 4),
                4: lambda: (W(8), a_read(3, 2)),
                6: lambda: (B(), dma(2, "cur"))}
        if kc == 1:
            return (lambda: (B(), a_dma(6, 0))), {
                1: lambda: (W(12), a_read(4, 3)),
                3: lambda: (W(8), a_read(5, 4)),
                6: lambda: (W(4), B(), a_dma(7, 4), dma(3, "cur"))}
        if kc == 2:
            return (lambda: (B(), dma(1, "next"))), {
                1: lambda: (W(12), a_read(6, 0)),
                3: lambda: (W(8), a_read(7, 4)),
                6: lambda: (W(4), B(), dma(0, "next"))}
        return (lambda: (B(), dma(2, "next"))), {
            7: lambda: (W(4), B())}

    def chunk(kind, set_next, set_out, prev=None, defer=False, first=None, pf=False):
        waits = (4, 12, 12, 4) if prev else (8, 4, 4, 4)
        if pf:
            waits = (4, 12 + NPF, 12 + NPF, 4)
        if prev:
            a("s_mov_b32 s90, s56")
            a("s_add_u32 s91, s56, 4096")
        set_next()
        set_out()
        for kc in range(4):
            extra = hooks = None
            if first == "ckv":
                st, hooks = ckv_first(kc)
                st()
            else:
                a("s_waitcnt vmcnt(%d)" % waits[kc])
                a("s_barrier")
                if kc < 1:
                    if not first:
                        dma(kc + 3, "cur")
                    if pf:
                        prefetch()
                else:
                    dma(kc - 1, "next")
            if first == "xn" and kc < 3:
                extra = norm_ops(kc + 1)
            if kc == 0:
                a.stamp()
            compute(kc, kind, extra, prev, hooks)
        a.stamp()
        if not defer:
            epilogue(kind)
        a.stamp()
        for i in range(3):
            a("s_mov_b32 s%d, s%d" % (12 + i, 48 + i))
        a("s_mov_b32 s52, s54")
        a("s_mov_b32 s53, s55")
        a("v_mov_b32 v%d, v%d" % (V_OFFC, V_OFFN))

    a("s_lshl_b32 s61, s4, 8")
    a("s_add_u32 s62, s61, 4096")
    a("s_lshl_b32 s63, s4, 19")
    a("s_lshl_b32 s64, s59, 13")
    a("s_add_u32 s63, s63, s64")
    V_AD, V_AR = 240, 241
    a("v_and_b32 v24, 7, v1")
    a("v_lshrrev_b32 v25, 3, v1")
    a("v_lshrrev_b32 v26, 1, v25")
    a("v_xor_b32 v26, v24, v26")
    a("v_lshlrev_b32 v26, 4, v26")
    a("v_lshl_add_u32 v26, v25, 10, v26")
    a("s_lshl_b32 s60, s59, 15")
    a("v_add_u32 v%d, s60, v26" % V_AD)
    a("s_lshl_b32 s66, s6, 12")
    a("v_and_b32 v24, 31, v1")
    a("v_lshrrev_b32 v25, 5, v1")
    a("v_bfe_u32 v26, v24, 1, 3")
    a("v_lshlrev_b32 v27, 1, v25")
    a("v_xor_b32 v26, v26, v27")
    a("v_lshlrev_b32 v26, 4, v26")
    a("v_lshl_add_u32 v26, v24, 7, v26")
    a("v_add_u32 v%d, s66, v26" % V_AR)
    a("v_add_u32 v%d, 0x10000, v%d" % (V_AR + 1, V_AR))
    a("v_add_u32 v%d, 0x20000, v%d" % (V_AR + 2, V_AR))

    def a_dma(e, reg):
        for j in range(4):
            a("v_xor_b32 v%d, %d, v%d" % (248 + j, 64 * (j & 1), V_AD))
            a("s_add_u32 m0, s66, %d" % (reg * 32768 + 1024 * j))
            a("s_movk_i32 s67, %d" % (8192 * j + 128 * e))
            a("buffer_load_dwordx4 v%d, s[8:11], s67 offen lds" % (248 + j))

    def a_read(e, reg):
        for s_ in range(4):
            c0 = (4 * (s_ >> 1) + (s_ & 1)) * 16
            a("v_xor_b32 v%d, %d, v%d" % (248 + s_, c0, V_AR + (reg >> 1)))
            a("ds_read_b128 %s, v%d offset:%d" % (vr(V_A + 4 * (4 * e + s_), 4), 248 + s_, (reg & 1) * 32768))

    def L0():
        a("s_waitcnt lgkmcnt(0)")

    def stats(q):
        for i in range(32 * q, 32 * q + 32):
            r = V_A + i
            t = 20 + 2 * (i & 3)
            a("v_lshlrev_b32 v%d, 16, v%d" % (t, r))
            a("v_and_b32 v%d, 0xffff0000, v%d" % (t + 1, r))
            a("v_pk_add_f32 v[16:17], v[16:17], %s" % vr(t, 2))
            a("v_pk_fma_f32 v[18:19], %s, %s, v[18:19]" % (vr(t, 2), vr(t, 2)))

    NPF = 4 if "pfall" in EXPF else 0

    def prefetch():
        if not NPF:
            return
        a("s_lshl_b32 s88, s2, 3")
        a("s_add_u32 s88, s88, s6")
        a("v_lshlrev_b32 v255, 7, v1")
        a("s_lshr_b32 s89, s88, 9")
        a("s_mov_b32 s84, s28")
        a("s_mov_b32 s85, s29")
        for m in range(1, 4):
            a("s_cmp_eq_u32 s89, %d" % m)
            a("s_cselect_b32 s84, s%d, s84" % (28 + 2 * m))
            a("s_cselect_b32 s85, s%d, s85" % (29 + 2 * m))
        a("s_mov_b32 s86, 0x400000")
        a("s_mov_b32 s87, 0x20000")
        a("s_and_b32 s89, s88, 511")
        a("s_lshl_b32 s89, s89, 13")
        a("buffer_load_dword v254, v255, s[84:87], s89 offen")
        a("buffer_load_dword v254, v255, s[84:87], s89 offen offset:64")
        a("s_cmp_lt_u32 s88, 224")
        a("s_cselect_b32 s84, s38, s42")
        a("s_cselect_b32 s85, s39, s43")
        a("s_cselect_b32 s89, 0, 224")
        a("s_sub_u32 s89, s88, s89")
        a("s_lshl_b32 s89, s89, 13")
        a("s_cmp_lt_u32 s88, 448")
        a("s_cselect_b32 s86, 0x1c0000, 0")
        a("buffer_load_dword v254, v255, s[84:87], s89 offen")
        a("buffer_load_dword v254, v255, s[84:87], s89 offen offset:64")

    a("s_cmp_eq_u32 s5, 1")
    a("s_cbranch_scc1 proj_ckv")
    set_params("cur", 28, 29, 0x400000, 8192, "s61")
    a_dma(0, 2)
    a_dma(1, 3)
    a_dma(2, 4)
    dma(0, "cur")
    a("v_mov_b32 v16, 0")
    a("v_mov_b32 v17, 0")
    a("v_mov_b32 v18, 0")
    a("v_mov_b32 v19, 0")
    W(12); a_read(0, 2); L0(); a_dma(3, 2)
    W(12); a_read(1, 3); L0(); a_dma(4, 3)
    W(12); a_read(2, 4); L0(); a_dma(5, 4)
    dma(1, "cur")
    stats(0)
    W(12); a_read(3, 2); L0(); a_dma(6, 2)
    W(12); a_read(4, 3); L0(); a_dma(7, 3)
    stats(1)
    W(12); a_read(5, 4); L0()
    stats(2)
    W(4); a_read(6, 2)
    W(0); a_read(7, 3); L0()
    a("s_barrier")
    dma(2, "cur")
    dma(3, "cur")
    stats(3)
    a.stamp()
    a("v_add_f32 v16, v16, v17")
    a("v_add_f32 v18, v18, v19")
    a("v_mov_b32 v17, v16")
    a("v_mov_b32 v19, v18")
    a.nop(2)
    a("v_permlane32_swap_b32 v16, v17")
    a("v_permlane32_swap_b32 v18, v19")
    a.nop(2)
    a("v_add_f32 v16, v16, v17")
    a("v_add_f32 v18, v18, v19")
    a("v_mul_f32 v16, 0x3b000000, v16")
    a("v_mul_f32 v18, 0x3b000000, v18")
    a("v_fma_f32 v18, -v16, v16, v18")
    a("v_max_f32 v18, 0, v18")
    a("v_cvt_pk_bf16_f32 v16, v16, v18")
    a("v_and_b32 v18, 0xffff0000, v16")
    a("v_lshlrev_b32 v16, 16, v16")
    a("v_add_f32 v18, 0x3727c5ac, v18")
    a("v_cvt_pk_bf16_f32 v18, v18, v18")
    a("v_lshlrev_b32 v18, 16, v18")
    a("v_sqrt_f32 v18, v18")
    a("s_nop 0")
    a("v_cvt_pk_bf16_f32 v18, v18, v18")
    a("v_lshlrev_b32 v18, 16, v18")
    a("v_rcp_f32 v18, v18")
    a("v_mov_b32 v%d, v16" % V_LNM)
    a("v_mov_b32 v%d, v16" % (V_LNM + 1))
    a("v_mov_b32 v%d, v18" % V_LNR)
    a("v_mul_f32 v%d, 0x%08x, v18" % (V_LNR + 1, QSC))
    reads(0, 0, 0)
    for x in norm_ops(0):
        a(x)
    a.stamp()

    def out_q0():
        a("s_add_u32 s56, s63, 0x%x" % QF)

    def out_q1():
        a("s_add_u32 s56, s63, 0x%x" % (QF + 16 * 512 * 1024))

    def next_q1():
        set_params("next", 28, 29, 0x400000, 8192, "s62")

    def next_h():
        a("s_cmp_lt_u32 s4, 14")
        a("s_cselect_b32 s66, 0x1c0000, 0")
        set_params("next", 38, 39, "s66", 3584, "s61")

    def next_none():
        a("s_mov_b32 s66, 0")
        set_params("next", 38, 39, "s66", 3584, "s61")

    def out_h():
        a("s_mul_i32 s56, s59, %d" % AF_BLK)
        a("s_lshl_b32 s66, s4, 13")
        a("s_add_u32 s56, s56, s66")
        a("s_add_u32 s56, s56, 0x%x" % (AF + 256 * 1024))

    chunk("Q", next_q1, out_q0, None, True, "xn")
    chunk("Q", next_h, out_q1, "Q", True, None, True)
    a("s_cmp_lt_u32 s4, 14")
    a("s_cbranch_scc1 proj_h")
    epilogue("Q")
    if "nopf2" not in EXPF:
        a("s_sub_u32 s88, s4, 14")
        a("s_lshl_b32 s89, s3, 1")
        a("s_add_u32 s88, s88, s89")
        a("s_lshl_b32 s88, s88, 3")
        a("s_add_u32 s88, s88, s6")
        a("v_lshlrev_b32 v255, 7, v1")
        a("s_mov_b32 s84, s34")
        a("s_mov_b32 s85, s35")
        a("s_mov_b32 s86, 0x400000")
        a("s_mov_b32 s87, 0x20000")
        a("s_lshl_b32 s89, s88, 15")
        for i in range(4):
            a("buffer_load_dword v254, v255, s[84:87], s89 offen")
            a("buffer_load_dword v254, v255, s[84:87], s89 offen offset:64")
            a("s_add_u32 s89, s89, 8192")
        a("s_mov_b32 s84, s42")
        a("s_mov_b32 s85, s43")
        a("s_mov_b32 s86, 0x1c0000")
        a("s_lshl_b32 s89, s88, 14")
        for i in range(2):
            a("buffer_load_dword v254, v255, s[84:87], s89 offen")
            a("buffer_load_dword v254, v255, s[84:87], s89 offen offset:64")
            a("s_add_u32 s89, s89, 8192")
    a("s_branch proj_end")
    a.label("proj_h")
    chunk("H", next_none, out_h, "Q", False)
    a.stamp_flush(0)
    a("s_branch proj_end")
    a.nst = 2

    a.label("proj_ckv")
    set_params("cur", 30, 31, 0x400000, 8192, "s61")
    dma(0, "cur")
    a_dma(0, 2)
    a_dma(1, 3)
    a_dma(2, 4)
    dma(1, "cur")
    W(12); a_read(0, 2); L0(); a_dma(3, 2)
    W(12); a_read(1, 3); L0(); a_dma(4, 3)
    a("s_barrier")
    reads(0, 0, 0)

    def out_k0():
        a("s_add_u32 s56, s63, 0x%x" % KF)

    def out_k1():
        a("s_add_u32 s56, s63, 0x%x" % (KF + 16 * 512 * 1024))

    def out_v0():
        a("s_add_u32 s56, s63, 0x%x" % VF)

    def out_v1():
        a("s_add_u32 s56, s63, 0x%x" % (VF + 16 * 512 * 1024))

    chunk("QK", lambda: set_params("next", 30, 31, 0x400000, 8192, "s62"), out_k0, None, True, "ckv")
    chunk("QK", lambda: set_params("next", 32, 33, 0x400000, 8192, "s61"), out_k1, "QK", True, None, True)
    chunk("V", lambda: set_params("next", 32, 33, 0x400000, 8192, "s62"), out_v0, "QK", True)
    chunk("V", next_none, out_v1, "V", False)
    a.stamp_flush(int(STAMP) if STAMP else 0)
    a.label("proj_end")
    a.ostamp()
    a.gridbar(0)
    a.ostamp()


def descriptor(a, name, vgpr, sgpr, accum):
    a.raw(".p2align 6")
    a.raw(".amdhsa_kernel %s" % name)
    a.raw("  .amdhsa_next_free_vgpr %d" % vgpr)
    a.raw("  .amdhsa_next_free_sgpr %d" % sgpr)
    a.raw("  .amdhsa_accum_offset %d" % accum)
    a.raw("  .amdhsa_group_segment_fixed_size 0")
    a.raw("  .amdhsa_kernarg_size 112")
    a.raw("  .amdhsa_user_sgpr_count 2")
    a.raw("  .amdhsa_user_sgpr_kernarg_segment_ptr 1")
    a.raw("  .amdhsa_system_sgpr_workgroup_id_x 1")
    a.raw(".end_amdhsa_kernel")


def main():
    from gen_rest import gen_attn, gen_ogemm, gen_reduce
    a = Asm()
    hdr = open("cdna_kernels/%s.s.ref" % NAME).read().split("\n")
    for l in hdr:
        if l.startswith(";") and "@launch" not in l:
            a.raw(l)
        elif not l.startswith(";"):
            break
    a.raw("; @launch kernel=mega_kernel grid=(256,1,1) block=(512,1,1) lds=163840")
    a.raw('.amdgcn_target "amdgcn-amd-amdhsa--gfx950"')
    a.raw(".text")
    a.raw(".globl mega_kernel")
    a.raw(".p2align 8")
    a.raw(".type mega_kernel,@function")
    gen_proj(a)
    gen_attn(a)
    gen_ogemm(a)
    gen_reduce(a)
    a.raw('.section .rodata,"a"')
    descriptor(a, "mega_kernel", 256, 102, 256)
    out = sys.argv[1] if len(sys.argv) > 1 else "cdna_kernels/%s.s" % NAME
    open(out, "w").write("\n".join(a.lines) + "\n")


if __name__ == "__main__":
    main()
```

```python
import sys

NAME = "parallel_sum__compressed_kv_cla__dense_activation_squared_relu__prompt"

MB = 1 << 20
QF = 0
KF = 16 * MB
VF = 32 * MB
AF = 49 * MB
AF_BLK = 368 * 1024
PART = 80 * MB
CTR = 100 * MB
import math, struct
QSC = struct.unpack("<I", struct.pack("<f", (128 ** -0.5) * math.log2(math.e)))[0]


import os
STAMP = os.environ.get("STAMP")


class Asm:
    def __init__(self):
        self.lines = []
        self.nst = 0

    def stamp(self):
        if not STAMP:
            return
        self("s_memtime s[98:99]")
        self("s_waitcnt lgkmcnt(0)")
        self("s_mov_b32 s%d, s98" % (68 + self.nst))
        self.nst += 1

    def stamp_flush(self, wgsel, dbgptr_off=96):
        if not STAMP:
            return
        L = "stf_%d" % len(self.lines)
        self("s_cmp_lg_u32 s2, %d" % wgsel)
        self("s_cbranch_scc1 %s" % L)
        self("s_load_dwordx2 s[96:97], s[0:1], %d" % dbgptr_off)
        self("s_waitcnt lgkmcnt(0)")
        self("s_mov_b32 s98, 4096")
        self("s_mov_b32 s99, 0x20000")
        self("v_cmp_eq_u32 vcc, 0, v0")
        self("s_and_saveexec_b64 s[94:95], vcc")
        self("s_cbranch_execz %s" % L)
        for i in range(self.nst):
            self("v_mov_b32 v1, s%d" % (68 + i))
            self("v_mov_b32 v2, %d" % (4 * i + 512 * (self.phase + 1)))
            self("buffer_store_dword v1, v2, s[96:99], 0 offen")
        self.label(L)
        self("s_mov_b64 exec, -1")
        self.nst = 0

    phase = 0
    on = 0

    def ostamp(self, last=False):
        OST = os.environ.get("OST")
        if not OST:
            return
        a = self
        a("s_memrealtime s[98:99]")
        a("s_waitcnt lgkmcnt(0)")
        a("s_mov_b32 s%d, s98" % (68 + self.on if self.on else 93))
        self.on += 1
        if last:
            a("s_cmp_lg_u32 s2, %s" % OST)
            a("s_cbranch_scc1 ost_skip")
            a("s_load_dwordx2 s[96:97], s[0:1], 96")
            a("s_mov_b32 s98, 256")
            a("s_mov_b32 s99, 0x20000")
            a("v_cmp_eq_u32 vcc, 0, v0")
            a("s_and_saveexec_b64 s[94:95], vcc")
            a("s_cbranch_execz ost_skip")
            a("s_waitcnt lgkmcnt(0)")
            for i in range(1, self.on):
                a("s_sub_u32 s94, s%d, s93" % (68 + i))
                a("v_mov_b32 v1, s94")
                a("v_mov_b32 v2, %d" % (28 + 4 * i))
                a("buffer_store_dword v1, v2, s[96:99], 0 offen")
            a.label("ost_skip")
            a("s_mov_b64 exec, -1")

    def gb_signal(self, k):
        a = self
        a("s_load_dwordx2 s[80:81], s[0:1], 96")
        a("s_load_dwordx2 s[84:85], s[0:1], 104")
        a("s_mov_b32 s82, 256")
        a("s_mov_b32 s83, 0x20000")
        a("s_mov_b32 s86, 0x10000000")
        a("s_mov_b32 s87, 0x20000")
        a("s_mov_b64 exec, 1")
        a("v_mov_b32 v12, 1")
        a("v_mov_b32 v13, %d" % (4 * k))
        a("v_mov_b32 v14, 1")
        a("v_mov_b32 v15, 0")
        a("s_and_b32 s88, s2, 15")
        a("s_lshl_b32 s88, s88, 12")
        a("s_add_u32 s88, s88, 0x%x" % (CTR + (k - 1) * 65536))
        a("s_waitcnt lgkmcnt(0)")
        a("buffer_atomic_add v14, v15, s[84:87], s88 offen sc0 sc1")
        a("s_waitcnt vmcnt(0)")
        a("v_readfirstlane_b32 s89, v14")
        a("s_cmp_lg_u32 s89, 15")
        a("s_cbranch_scc1 gs_nr%d" % k)
        a("buffer_atomic_add v12, v13, s[80:83], 0 offen sc1")
        a.label("gs_nr%d" % k)
        a("s_mov_b64 exec, -1")

    def gb_poll(self, k):
        a = self
        a("s_mov_b64 exec, 1")
        a("v_mov_b32 v13, %d" % (4 * k))
        a("s_mov_b32 s88, 0")
        a.label("gp_loop%d" % k)
        a("buffer_load_dword v14, v13, s[80:83], 0 offen sc1")
        a("s_waitcnt vmcnt(0)")
        a("v_readfirstlane_b32 s89, v14")
        a("s_cmp_ge_u32 s89, 16")
        a("s_cbranch_scc1 gp_done%d" % k)
        a("s_add_u32 s88, s88, 1")
        a("s_cmp_gt_u32 s88, 40000")
        a("s_cbranch_scc1 gp_done%d" % k)
        a("s_sleep 8")
        a("s_branch gp_loop%d" % k)
        a.label("gp_done%d" % k)
        a("s_mov_b64 exec, -1")

    def gridbar(self, k):
        a = self
        if STAMP:
            a("s_memrealtime s[14:15]")
        if k == 0:
            a("s_cmp_ge_u32 s2, 96")
            a("s_cbranch_scc1 gb_noinit")
            a("s_load_dwordx2 s[8:9], s[0:1], 104")
            a("s_mov_b32 s10, 0x10000000")
            a("s_mov_b32 s11, 0x20000")
            a("s_lshl_b32 s12, s2, 12")
            a("s_add_u32 s12, s12, 0x%x" % CTR)
            a("v_mov_b32 v1, 0")
            a("v_mov_b32 v2, 0")
            a("s_waitcnt lgkmcnt(0)")
            a("buffer_store_dword v1, v2, s[8:11], s12 offen sc0 sc1")
            a.label("gb_noinit")
        a("s_waitcnt vmcnt(0) lgkmcnt(0)")
        a("s_barrier")
        if STAMP:
            a("s_memrealtime s[16:17]")
        a("v_lshrrev_b32 v1, 6, v0")
        a("s_nop 0")
        a("v_readfirstlane_b32 s6, v1")
        a("s_cmp_lg_u32 s6, 0")
        a("s_cbranch_scc1 gb_wait%d" % k)
        a("s_load_dwordx2 s[8:9], s[0:1], 96")
        a("s_load_dwordx2 s[24:25], s[0:1], 104")
        a("s_mov_b32 s10, 256")
        a("s_mov_b32 s11, 0x20000")
        a("s_mov_b32 s26, 0x10000000")
        a("s_mov_b32 s27, 0x20000")
        a("s_mov_b64 exec, 1")
        a("v_mov_b32 v1, 1")
        a("v_mov_b32 v2, %d" % (4 * k))
        a("s_waitcnt lgkmcnt(0)")
        tgt = 256
        if True:
            tgt = 16
            a("s_and_b32 s12, s2, 15")
            a("v_mov_b32 v3, 1")
            a("v_mov_b32 v4, 0")
            if k > 0:
                a("s_lshl_b32 s12, s12, 12")
                a("s_add_u32 s12, s12, 0x%x" % (CTR + (k - 1) * 65536))
                a("buffer_atomic_add v3, v4, s[24:27], s12 offen sc0 sc1")
            else:
                a("s_lshl_b32 s12, s12, 2")
                a("s_add_u32 s12, s12, 128")
                a("buffer_atomic_add v3, v4, s[8:11], s12 offen sc0 sc1")
            a("s_waitcnt vmcnt(0)")
            a("v_readfirstlane_b32 s13, v3")
            a("s_cmp_lg_u32 s13, 15")
            a("s_cbranch_scc1 gb_nr%d" % k)
        a("buffer_atomic_add v1, v2, s[8:11], 0 offen sc1")
        if True:
            a.label("gb_nr%d" % k)
        a("s_mov_b32 s12, 0")
        a.label("gb_loop%d" % k)
        a("buffer_load_dword v3, v2, s[8:11], 0 offen %s" % os.environ.get("PSC", "sc1"))
        a("s_waitcnt vmcnt(0)")
        a("v_readfirstlane_b32 s13, v3")
        a("s_cmp_ge_u32 s13, %d" % tgt)
        a("s_cbranch_scc1 gb_done%d" % k)
        a("s_add_u32 s12, s12, 1")
        a("s_cmp_gt_u32 s12, 40000")
        a("s_cbranch_scc1 gb_done%d" % k)
        a("s_sleep %s" % os.environ.get("SLEEP", "8"))
        a("s_branch gb_loop%d" % k)
        a.label("gb_done%d" % k)
        if STAMP:
            a("s_memrealtime s[18:19]")
            a("s_mov_b32 s10, 65536")
            a("s_lshl_b32 s20, s2, 4")
            a("s_add_u32 s20, s20, %d" % (4096 + 4096 * k))
            a("s_waitcnt lgkmcnt(0)")
            a("s_mov_b64 exec, 1")
            a("v_mov_b32 v4, s14")
            a("v_mov_b32 v5, s16")
            a("v_mov_b32 v6, s18")
            a("v_mov_b32 v7, s92")
            a("v_mov_b32 v2, 0")
            a("buffer_store_dwordx4 v[4:7], v2, s[8:11], s20 offen")
        a("s_mov_b64 exec, -1")
        a("s_waitcnt lgkmcnt(0)")
        a.label("gb_wait%d" % k)
        a("s_barrier")
        if "inv" in os.environ.get("EXP", ""):
            a("buffer_inv sc1")
        self.phase = k + 1

    inloop = False

    def __call__(self, s):
        EXP = os.environ.get("EXP", "")
        if self.inloop:
            if "nomfma" in EXP and s.startswith("v_mfma"):
                return
            if "novalu" in EXP and s.startswith("v_") and not s.startswith("v_mfma") and not s.startswith("v_cmp") and "0x1ffff" not in s and "0x8000" not in s and not s.startswith("v_mov") and not s.startswith("v_add_u32"):
                return
            if "nolds" in EXP and s.startswith("ds_read"):
                return
            if "nodma" in EXP and s.startswith("buffer_load"):
                return
            if "nobar" in EXP and s.startswith("s_barrier"):
                return
        if "nosc1" in EXP and s.startswith("buffer_store") and s.endswith(" sc1"):
            s = s[:-4]
        self.lines.append("  " + s)

    def label(self, s):
        self.lines.append(s + ":")

    def raw(self, s):
        self.lines.append(s)

    def nop(self, n):
        while n > 0:
            k = min(n, 16)
            self("s_nop %d" % (k - 1))
            n -= k


def vr(a, n):
    return "v[%d:%d]" % (a, a + n - 1)


def sr(a, n):
    return "s[%d:%d]" % (a, a + n - 1)


def gen_proj(a):
    V_LANE = 1
    V_TR = 2
    V_OFFC = 10
    V_OFFN = 11
    V_ST = 12
    V_T0 = 13
    V_B = 16
    V_ACC = 48
    V_A = 112
    V_ROWI = 13
    V_SWZ = 14
    V_T = 15
    V_AOFF = 240

    a.label("mega_kernel")
    a("s_cmp_lt_u32 s2, 256")
    a("s_cbranch_scc1 proj_start")
    a("s_endpgm")
    a.label("proj_start")
    a.ostamp()
    if STAMP:
        a("s_memrealtime s[92:93]")
    a.stamp()
    a("s_load_dwordx2 s[8:9], s[0:1], 96")
    a("s_load_dwordx16 s[24:39], s[0:1], 0")
    a("s_load_dwordx4 s[40:43], s[0:1], 64")
    a("s_load_dwordx2 s[44:45], s[0:1], 104")
    EXPF = os.environ.get("EXP", "")
    if "tick" in EXPF:
        a("v_lshrrev_b32 v1, 6, v0")
        a("v_lshlrev_b32 v4, 14, v1")
        a("v_add_u32 v4, 0x8000, v4")
        a("v_readfirstlane_b32 s6, v1")
        a("s_getreg_b32 s4, hwreg(HW_REG_XCC_ID)")
        a("s_and_b32 s4, s4, 7")
        if "tkforce" in EXPF:
            a("s_min_u32 s4, s4, 4")
        a("s_mov_b32 s10, 256")
        a("s_mov_b32 s11, 0x20000")
        a("s_lshl_b32 s5, s4, 2")
        a("s_add_u32 s5, s5, 192")
        a("v_mov_b32 v2, s5")
        a("v_mov_b32 v3, 1")
        a("s_cmp_eq_u32 s6, 0")
        a("s_cbranch_scc1 tk_w0")
        a("s_cmp_lg_u32 s6, 7")
        a("s_cbranch_scc1 tk_wait")
        a("s_mov_b64 exec, 1")
        a("s_waitcnt lgkmcnt(0)")
        a("v_subrev_u32 v2, 160, v2")
        a("buffer_atomic_add v3, v2, s[8:11], 0 offen sc1")
        a("s_mov_b64 exec, -1")
        a("s_branch tk_wait")
        a.label("tk_w0")
        a("s_mov_b64 exec, 1")
        a("s_waitcnt lgkmcnt(0)")
        a("buffer_atomic_add v3, v2, s[8:11], 0 offen sc0%s" % (" sc1" if "tkforce" in EXPF or "tkglob" in EXPF else ""))
        a("s_waitcnt vmcnt(0)")
        a("v_readfirstlane_b32 s5, v3")
        a("s_cmp_lt_u32 s5, 32")
        a("s_cbranch_scc1 tk_got")
        a("s_mov_b32 s7, 0")
        a("v_mov_b32 v2, 32")
        a.label("tk_poll")
        a("buffer_load_dwordx4 v[8:11], v2, s[8:11], 0 offen sc1")
        a("buffer_load_dwordx4 v[12:15], v2, s[8:11], 0 offen offset:16 sc1")
        a("s_waitcnt vmcnt(0)")
        a("s_mov_b32 s12, 0")
        for i in range(8):
            a("v_readfirstlane_b32 s%d, v%d" % (48 + i, 8 + i))
            a("s_add_u32 s12, s12, s%d" % (48 + i))
        a("s_cmp_ge_u32 s12, 256")
        a("s_cbranch_scc1 tk_full")
        a("s_add_u32 s7, s7, 1")
        a("s_sleep 8")
        a("s_cmp_lt_u32 s7, 40000")
        a("s_cbranch_scc1 tk_poll")
        a.label("tk_fail")
        a("s_lshr_b32 s5, s2, 3")
        a("s_and_b32 s4, s2, 7")
        a("s_branch tk_got")
        a.label("tk_full")
        a("s_sub_u32 s5, s5, 32")
        for i in range(7):
            a("s_max_u32 s12, s%d, 32" % (48 + i))
            a("s_sub_u32 s12, s12, 32")
            a("s_cmp_gt_u32 s4, %d" % i)
            a("s_cselect_b32 s12, s12, 0")
            a("s_add_u32 s5, s5, s12")
        for i in range(8):
            a("s_min_u32 s12, s%d, 32" % (48 + i))
            a("s_sub_u32 s13, 32, s12")
            a("s_mov_b32 s4, %d" % i)
            a("s_cmp_lt_u32 s5, s13")
            a("s_cbranch_scc1 tk_slot")
            a("s_sub_u32 s5, s5, s13")
        a("s_branch tk_fail")
        a.label("tk_slot")
        a("s_add_u32 s5, s5, s12")
        a.label("tk_got")
        a("s_lshl_b32 s5, s5, 3")
        a("s_add_u32 s5, s5, s4")
        a("s_mov_b64 exec, 0xff")
        a("v_lshlrev_b32 v2, 14, v0")
        a("v_add_u32 v2, 0x8000, v2")
        a("v_mov_b32 v3, s5")
        a("ds_write_b32 v2, v3")
        a("s_mov_b64 exec, -1")
        a("s_waitcnt lgkmcnt(0)")
        a.label("tk_wait")
        a("s_barrier")
        a("ds_read_b32 v3, v4")
        a("s_waitcnt lgkmcnt(0)")
        a("v_readfirstlane_b32 s2, v3")
        a("s_and_b32 s2, s2, 255")
        if STAMP:
            a("s_memrealtime s[96:97]")
            a("s_waitcnt lgkmcnt(0)")
            a("s_mov_b32 s93, s96")
    PM = os.environ.get("PM", "5")
    if PM == "0":
        a("s_lshr_b32 s3, s2, 5")
        a("s_and_b32 s4, s2, 31")
    elif PM == "1":
        a("s_and_b32 s3, s2, 7")
        a("s_lshr_b32 s4, s2, 3")
    elif PM == "2":
        a("s_and_b32 s3, s2, 3")
        a("s_bfe_u32 s4, s2, 0x10003")
        a("s_lshl_b32 s4, s4, 2")
        a("s_or_b32 s3, s3, s4")
        a("s_bfe_u32 s4, s2, 0x10002")
        a("s_lshr_b32 s5, s2, 4")
        a("s_lshl_b32 s5, s5, 1")
        a("s_or_b32 s4, s4, s5")
    elif PM == "3":
        a("s_and_b32 s3, s2, 1")
        a("s_bfe_u32 s4, s2, 0x20003")
        a("s_lshl_b32 s4, s4, 1")
        a("s_or_b32 s3, s3, s4")
        a("s_bfe_u32 s4, s2, 0x20001")
        a("s_lshr_b32 s5, s2, 5")
        a("s_lshl_b32 s5, s5, 2")
        a("s_or_b32 s4, s4, s5")
    elif PM == "4":
        a("s_lshr_b32 s3, s2, 5")
        a("s_bfe_u32 s4, s2, 0x40001")
        a("s_and_b32 s5, s2, 1")
        a("s_lshl_b32 s5, s5, 4")
        a("s_or_b32 s4, s4, s5")
    elif PM == "5":
        a("s_bfe_u32 s3, s2, 0x10001")
        a("s_bfe_u32 s4, s2, 0x20003")
        a("s_lshl_b32 s4, s4, 1")
        a("s_or_b32 s3, s3, s4")
        a("s_bfe_u32 s4, s2, 0x10002")
        a("s_lshr_b32 s5, s2, 5")
        a("s_lshl_b32 s5, s5, 1")
        a("s_or_b32 s4, s4, s5")
        a("s_and_b32 s5, s2, 1")
        a("s_lshl_b32 s5, s5, 4")
        a("s_or_b32 s4, s4, s5")
    elif PM == "6":
        a("s_bfe_u32 s3, s2, 0x30001")
        a("s_lshr_b32 s4, s2, 4")
        a("s_and_b32 s5, s2, 1")
        a("s_lshl_b32 s5, s5, 4")
        a("s_or_b32 s4, s4, s5")
    a("v_lshrrev_b32 v1, 6, v0")
    a("s_nop 0")
    a("v_readfirstlane_b32 s6, v1")
    a("v_and_b32 v1, 63, v0")
    a("s_waitcnt lgkmcnt(0)")
    a.stamp()
    a("s_cmp_lt_u32 s4, 16")
    a("s_cselect_b32 s8, s24, s26")
    a("s_cselect_b32 s9, s25, s27")
    a("s_cselect_b32 s5, 0, 1")
    a("s_and_b32 s4, s4, 15")
    a("s_mov_b32 s10, 0x200000")
    a("s_mov_b32 s11, 0x20000")
    a("s_mov_b32 s16, s44")
    a("s_mov_b32 s17, s45")
    a("s_mov_b32 s18, 0x10000000")
    a("s_mov_b32 s19, 0x20000")
    a("s_mov_b32 s20, s40")
    a("s_mov_b32 s21, s41")
    a("s_mov_b32 s22, 3584")
    a("s_mov_b32 s23, 0x20000")
    a("s_mov_b32 s15, 0x20000")
    a("s_mov_b32 s51, 0x20000")
    a("s_lshl_b32 s58, s6, 12")
    a("s_lshl_b32 s59, s3, 3")
    a("s_add_u32 s59, s59, s6")
    a("v_and_b32 v13, 15, v1")
    a("v_lshlrev_b32 v13, 10, v13")
    a("v_lshrrev_b32 v14, 4, v1")
    a("v_lshlrev_b32 v14, 4, v14")
    a("v_add_u32 v13, v13, v14")
    a("s_movk_i32 s65, 0x4000")
    a("s_lshl_b32 s60, s59, 15")
    a("v_add_u32 v13, s60, v13")
    a("v_mov_b32 v%d, v13" % V_AOFF)

    def aloads(lo, hi):
        for s in range(lo, hi):
            a("buffer_load_dwordx4 %s, v%d, s[8:11], %s offen offset:%d" % (
                vr(V_A + 4 * s, 4), V_AOFF, "s65" if s & 1 else "0", (s >> 1) * 64))

    def aswaps(lo, hi):
        for s in range(lo, hi, 2):
            for j in range(4):
                a("v_permlane16_swap_b32 v%d, v%d" % (V_A + 4 * s + j, V_A + 4 * s + 4 + j))
        a("s_nop 1")
    a("v_bfe_u32 v13, v1, 2, 2")
    a("v_lshrrev_b32 v14, 5, v1")
    a("v_lshl_add_u32 v14, v14, 4, v13")
    a("v_lshlrev_b32 v14, 8, v14")
    a("v_bfe_u32 v15, v1, 4, 1")
    a("v_lshl_add_u32 v14, v15, 5, v14")
    a("v_and_b32 v15, 3, v1")
    a("v_lshl_add_u32 v14, v15, 3, v14")
    a("v_lshlrev_b32 v13, 6, v13")
    for nt in range(4):
        a("v_xor_b32 v15, %d, v13" % (nt << 6))
        a("v_add_u32 v%d, v14, v15" % (V_TR + nt))
        a("v_add_u32 v%d, 0x10000, v%d" % (V_TR + 4 + nt, V_TR + nt))
    a("v_lshlrev_b32 v%d, 4, v1" % V_ST)
    a("v_lshrrev_b32 v13, 4, v1")
    a("v_bfe_u32 v14, v1, 2, 2")
    a("v_xor_b32 v14, v14, v13")
    a("v_lshlrev_b32 v14, 6, v14")
    a("v_and_b32 v15, 3, v1")
    a("v_lshl_add_u32 v14, v15, 4, v14")
    a("s_lshl_b32 s60, s6, 4")
    a("v_add_u32 v13, s60, v13")

    def set_params(which, wlo, whi, nrec, ldw, colexpr_reg):
        base = 12 if which == "cur" else 48
        sl, sc = (52, 53) if which == "cur" else (54, 55)
        voff = V_OFFC if which == "cur" else V_OFFN
        a("s_mov_b32 s%d, s%d" % (base, wlo))
        a("s_mov_b32 s%d, s%d" % (base + 1, whi))
        if isinstance(nrec, str):
            a("s_mov_b32 s%d, %s" % (base + 2, nrec))
        else:
            a("s_mov_b32 s%d, 0x%x" % (base + 2, nrec))
        a("s_mov_b32 s%d, %d" % (sl, ldw))
        a("s_mov_b32 s%d, %s" % (sc, colexpr_reg))
        a("v_mul_lo_u32 v%d, v%d, s%d" % (voff, V_ROWI, sl))
        a("v_add_u32 v%d, v%d, v%d" % (voff, voff, V_SWZ))

    def dma(kc, which):
        base = 12 if which == "cur" else 48
        sl, sc = (52, 53) if which == "cur" else (54, 55)
        voff = V_OFFC if which == "cur" else V_OFFN
        for i in range(4):
            a("s_add_u32 m0, s58, %d" % (kc * 32768 + i * 1024))
            a("s_mul_i32 s57, s%d, %d" % (sl, kc * 128 + 4 * i))
            a("s_add_u32 s57, s57, s%d" % sc)
            a("buffer_load_dwordx4 v%d, %s, s57 offen lds" % (voff, sr(base, 4)))

    def reads(kc, s, setidx):
        hi = 4 if kc >= 2 else 0
        off = (kc & 1) * 32768 + (s >> 1) * 8192 + (s & 1) * 2048
        for nt in range(4):
            for ird in range(2):
                a("ds_read_b64_tr_b16 %s, v%d offset:%d" % (
                    vr(V_B + setidx * 16 + nt * 4 + ird * 2, 2), V_TR + hi + nt, off + ird * 1024))

    def epi_part(kind, nt):
        if kind == "Q":
            for i in range(16):
                a("v_mul_f32 v%d, v%d, v%d" % (V_ACC + 16 * nt + i, V_LNR + 1, V_ACC + 16 * nt + i))
        for t in range(2):
            d = V_ACC + 16 * nt + 8 * t
            for p in range(4):
                x0 = V_ACC + 16 * nt + 8 * t + 2 * p
                a("v_cvt_pk_bf16_f32 v%d, v%d, v%d" % (d + p, x0, x0 + 1))
            a("buffer_store_dwordx4 %s, v%d, s[16:19], s%d offen offset:%d sc1" % (
                vr(d, 4), V_ST, 90 if nt < 2 else 91, ((nt * 2 + t) & 3) * 1024))
        a("s_nop 1")

    def compute(kc, kind, extra=None, prev=None, hooks=None):
        extra = list(extra or [])
        per = -(-len(extra) // 32)
        for s in range(8):
            if hooks and s in hooks:
                hooks[s]()
            if s < 7:
                reads(kc, s + 1, (s + 1) & 1)
            else:
                reads((kc + 1) & 3, 0, 0)
            a("s_waitcnt lgkmcnt(8)")
            ks = kc * 8 + s
            for nt in range(4):
                acc = vr(V_ACC + 16 * nt, 16)
                wf = vr(V_B + (s & 1) * 16 + nt * 4, 4)
                af = vr(V_A + 4 * ks, 4)
                c = "0" if ks == 0 else acc
                if prev and ks == 0:
                    epi_part(prev, nt)
                if kind == "V":
                    a("v_mfma_f32_32x32x16_bf16 %s, %s, %s, %s" % (acc, af, wf, c))
                else:
                    a("v_mfma_f32_32x32x16_bf16 %s, %s, %s, %s" % (acc, wf, af, c))
                for x in extra[:per]:
                    a(x)
                extra = extra[per:]
        assert not extra

    def aload_ops(lo, hi):
        ops = []
        for s in range(lo, hi):
            ops.append("buffer_load_dwordx4 %s, v%d, s[8:11], %s offen offset:%d" % (
                vr(V_A + 4 * s, 4), V_AOFF, "s65" if s & 1 else "0", (s >> 1) * 64))
            ops += ["s_nop 0"] * 3
        return ops

    V_LNM = 244
    V_LNR = 246
    V_LNT = 248

    def norm_ops(q):
        ops = []
        for i in range(32 * q, 32 * q + 32):
            r = V_A + i
            t = 248 + 2 * (i % 3)
            ops.append("v_lshlrev_b32 v%d, 16, v%d" % (t, r))
            ops.append("v_and_b32 v%d, 0xffff0000, v%d" % (t + 1, r))
            ops.append("v_pk_add_f32 %s, %s, %s neg_lo:[0,1] neg_hi:[0,1]" % (vr(t, 2), vr(t, 2), vr(V_LNM, 2)))
            ops.append("v_cvt_pk_bf16_f32 v%d, v%d, v%d" % (r, t, t + 1))
        return ops

    def epilogue(kind):
        if kind == "H":
            a("s_waitcnt lgkmcnt(0)")
            a("v_lshrrev_b32 v15, 5, v1")
            a("v_lshlrev_b32 v15, 3, v15")
            for nt in range(4):
                for q in range(4):
                    a("buffer_load_dwordx2 %s, v15, s[20:23], s53 offen offset:%d" % (
                        vr(V_B + (nt * 4 + q) * 2, 2), 64 * nt + 16 * q))
            a.nop(12)
            for i in range(64):
                a("v_mul_f32 v%d, v%d, v%d" % (V_ACC + i, V_LNR, V_ACC + i))
            a("s_waitcnt vmcnt(0)")
            for nt in range(4):
                for q in range(4):
                    r0 = V_ACC + 16 * nt + 4 * q
                    b0 = V_B + (nt * 4 + q) * 2
                    for p in range(2):
                        x0, x1 = r0 + 2 * p, r0 + 2 * p + 1
                        bb = b0 + p
                        a("v_cvt_pk_bf16_f32 v15, v%d, v%d" % (x0, x1))
                        a("v_lshlrev_b32 v%d, 16, v15" % x0)
                        a("v_and_b32 v%d, 0xffff0000, v15" % x1)
                        a("v_lshlrev_b32 v15, 16, v%d" % bb)
                        a("v_add_f32 v%d, v%d, v15" % (x0, x0))
                        a("v_and_b32 v15, 0xffff0000, v%d" % bb)
                        a("v_add_f32 v%d, v%d, v15" % (x1, x1))
                        a("v_cvt_pk_bf16_f32 v15, v%d, v%d" % (x0, x1))
                        a("v_lshlrev_b32 v%d, 16, v15" % x0)
                        a("v_and_b32 v%d, 0xffff0000, v15" % x1)
                        a("v_max_f32 v%d, 0, v%d" % (x0, x0))
                        a("v_max_f32 v%d, 0, v%d" % (x1, x1))
                        a("v_mul_f32 v%d, v%d, v%d" % (x0, x0, x0))
                        a("v_mul_f32 v%d, v%d, v%d" % (x1, x1, x1))
        else:
            a.nop(12)
        if kind == "Q":
            for i in range(64):
                a("v_mul_f32 v%d, v%d, v%d" % (V_ACC + i, V_LNR + 1, V_ACC + i))
        a("s_add_u32 s67, s56, 4096")
        for nt in range(4):
            for t in range(2):
                d = V_ACC + 16 * nt + 8 * t
                for p in range(4):
                    x0 = V_ACC + 16 * nt + 8 * t + 2 * p
                    a("v_cvt_pk_bf16_f32 v%d, v%d, v%d" % (d + p, x0, x0 + 1))
                a("buffer_store_dwordx4 %s, v%d, s[16:19], s%d offen offset:%d sc1" % (
                    vr(d, 4), V_ST, 56 if nt < 2 else 67, ((nt * 2 + t) & 3) * 1024))
        a.nop(2)

    def W(n):
        a("s_waitcnt vmcnt(%d)" % n)

    def ckv_first(kc):
        B = lambda: a("s_barrier")
        if kc == 0:
            return (lambda: None), {
                1: lambda: (W(12), a_read(2, 4)),
                2: lambda: a_dma(5, 4),
                4: lambda: (W(8), a_read(3, 2)),
                6: lambda: (B(), dma(2, "cur"))}
        if kc == 1:
            return (lambda: (B(), a_dma(6, 0))), {
                1: lambda: (W(12), a_read(4, 3)),
                3: lambda: (W(8), a_read(5, 4)),
                6: lambda: (W(4), B(), a_dma(7, 4), dma(3, "cur"))}
        if kc == 2:
            return (lambda: (B(), dma(1, "next"))), {
                1: lambda: (W(12), a_read(6, 0)),
                3: lambda: (W(8), a_read(7, 4)),
                6: lambda: (W(4), B(), dma(0, "next"))}
        return (lambda: (B(), dma(2, "next"))), {
            7: lambda: (W(4), B())}

    def chunk(kind, set_next, set_out, prev=None, defer=False, first=None, pf=False):
        waits = (4, 12, 12, 4) if prev else (8, 4, 4, 4)
        if pf:
            waits = (4, 12 + NPF, 12 + NPF, 4)
        if prev:
            a("s_mov_b32 s90, s56")
            a("s_add_u32 s91, s56, 4096")
        set_next()
        set_out()
        for kc in range(4):
            extra = hooks = None
            if first == "ckv":
                st, hooks = ckv_first(kc)
                st()
            else:
                a("s_waitcnt vmcnt(%d)" % waits[kc])
                a("s_barrier")
                if kc < 1:
                    if not first:
                        dma(kc + 3, "cur")
                    if pf:
                        prefetch()
                else:
                    dma(kc - 1, "next")
            if first == "xn" and kc < 3:
                extra = norm_ops(kc + 1)
            if kc == 0:
                a.stamp()
            compute(kc, kind, extra, prev, hooks)
        a.stamp()
        if not defer:
            epilogue(kind)
        a.stamp()
        for i in range(3):
            a("s_mov_b32 s%d, s%d" % (12 + i, 48 + i))
        a("s_mov_b32 s52, s54")
        a("s_mov_b32 s53, s55")
        a("v_mov_b32 v%d, v%d" % (V_OFFC, V_OFFN))

    a("s_lshl_b32 s61, s4, 8")
    a("s_mov_b32 s46, s61")
    if "norev" not in EXPF:
        a("s_and_b32 s47, s3, 1")
        a("s_lshl_b32 s47, s47, 12")
        a("s_xor_b32 s61, s61, s47")
    a("s_xor_b32 s62, s61, 4096")
    a("s_lshl_b32 s63, s61, 11")
    a("s_lshl_b32 s64, s59, 13")
    a("s_add_u32 s63, s63, s64")
    a("s_xor_b32 s64, s63, 0x800000")
    V_AD, V_AR = 240, 241
    a("v_and_b32 v24, 7, v1")
    a("v_lshrrev_b32 v25, 3, v1")
    a("v_lshrrev_b32 v26, 1, v25")
    a("v_xor_b32 v26, v24, v26")
    a("v_lshlrev_b32 v26, 4, v26")
    a("v_lshl_add_u32 v26, v25, 10, v26")
    a("s_lshl_b32 s60, s59, 15")
    a("v_add_u32 v%d, s60, v26" % V_AD)
    a("s_lshl_b32 s66, s6, 12")
    a("v_and_b32 v24, 31, v1")
    a("v_lshrrev_b32 v25, 5, v1")
    a("v_bfe_u32 v26, v24, 1, 3")
    a("v_lshlrev_b32 v27, 1, v25")
    a("v_xor_b32 v26, v26, v27")
    a("v_lshlrev_b32 v26, 4, v26")
    a("v_lshl_add_u32 v26, v24, 7, v26")
    a("v_add_u32 v%d, s66, v26" % V_AR)
    a("v_add_u32 v%d, 0x10000, v%d" % (V_AR + 1, V_AR))
    a("v_add_u32 v%d, 0x20000, v%d" % (V_AR + 2, V_AR))

    def a_dma(e, reg):
        for j in range(4):
            a("v_xor_b32 v%d, %d, v%d" % (248 + j, 64 * (j & 1), V_AD))
            a("s_add_u32 m0, s66, %d" % (reg * 32768 + 1024 * j))
            a("s_movk_i32 s67, %d" % (8192 * j + 128 * e))
            a("buffer_load_dwordx4 v%d, s[8:11], s67 offen lds" % (248 + j))

    def a_read(e, reg):
        for s_ in range(4):
            c0 = (4 * (s_ >> 1) + (s_ & 1)) * 16
            a("v_xor_b32 v%d, %d, v%d" % (248 + s_, c0, V_AR + (reg >> 1)))
            a("ds_read_b128 %s, v%d offset:%d" % (vr(V_A + 4 * (4 * e + s_), 4), 248 + s_, (reg & 1) * 32768))

    def L0():
        a("s_waitcnt lgkmcnt(0)")

    def stats(q):
        for i in range(32 * q, 32 * q + 32):
            r = V_A + i
            t = 20 + 2 * (i & 3)
            a("v_lshlrev_b32 v%d, 16, v%d" % (t, r))
            a("v_and_b32 v%d, 0xffff0000, v%d" % (t + 1, r))
            a("v_pk_add_f32 v[16:17], v[16:17], %s" % vr(t, 2))
            a("v_pk_fma_f32 v[18:19], %s, %s, v[18:19]" % (vr(t, 2), vr(t, 2)))

    NPF = 4 if "pfall" in EXPF else 0

    def prefetch():
        if not NPF:
            return
        a("s_lshl_b32 s88, s2, 3")
        a("s_add_u32 s88, s88, s6")
        a("v_lshlrev_b32 v255, 7, v1")
        a("s_lshr_b32 s89, s88, 9")
        a("s_mov_b32 s84, s28")
        a("s_mov_b32 s85, s29")
        for m in range(1, 4):
            a("s_cmp_eq_u32 s89, %d" % m)
            a("s_cselect_b32 s84, s%d, s84" % (28 + 2 * m))
            a("s_cselect_b32 s85, s%d, s85" % (29 + 2 * m))
        a("s_mov_b32 s86, 0x400000")
        a("s_mov_b32 s87, 0x20000")
        a("s_and_b32 s89, s88, 511")
        a("s_lshl_b32 s89, s89, 13")
        a("buffer_load_dword v254, v255, s[84:87], s89 offen")
        a("buffer_load_dword v254, v255, s[84:87], s89 offen offset:64")
        a("s_cmp_lt_u32 s88, 224")
        a("s_cselect_b32 s84, s38, s42")
        a("s_cselect_b32 s85, s39, s43")
        a("s_cselect_b32 s89, 0, 224")
        a("s_sub_u32 s89, s88, s89")
        a("s_lshl_b32 s89, s89, 13")
        a("s_cmp_lt_u32 s88, 448")
        a("s_cselect_b32 s86, 0x1c0000, 0")
        a("buffer_load_dword v254, v255, s[84:87], s89 offen")
        a("buffer_load_dword v254, v255, s[84:87], s89 offen offset:64")

    a("s_cmp_eq_u32 s5, 1")
    a("s_cbranch_scc1 proj_ckv")
    set_params("cur", 28, 29, 0x400000, 8192, "s61")
    a_dma(0, 2)
    a_dma(1, 3)
    a_dma(2, 4)
    dma(0, "cur")
    a("v_mov_b32 v16, 0")
    a("v_mov_b32 v17, 0")
    a("v_mov_b32 v18, 0")
    a("v_mov_b32 v19, 0")
    W(12); a_read(0, 2); L0(); a_dma(3, 2)
    W(12); a_read(1, 3); L0(); a_dma(4, 3)
    W(12); a_read(2, 4); L0(); a_dma(5, 4)
    dma(1, "cur")
    stats(0)
    W(12); a_read(3, 2); L0(); a_dma(6, 2)
    W(12); a_read(4, 3); L0(); a_dma(7, 3)
    stats(1)
    W(12); a_read(5, 4); L0()
    stats(2)
    W(4); a_read(6, 2)
    W(0); a_read(7, 3); L0()
    a("s_barrier")
    dma(2, "cur")
    dma(3, "cur")
    stats(3)
    a.stamp()
    a("v_add_f32 v16, v16, v17")
    a("v_add_f32 v18, v18, v19")
    a("v_mov_b32 v17, v16")
    a("v_mov_b32 v19, v18")
    a.nop(2)
    a("v_permlane32_swap_b32 v16, v17")
    a("v_permlane32_swap_b32 v18, v19")
    a.nop(2)
    a("v_add_f32 v16, v16, v17")
    a("v_add_f32 v18, v18, v19")
    a("v_mul_f32 v16, 0x3b000000, v16")
    a("v_mul_f32 v18, 0x3b000000, v18")
    a("v_fma_f32 v18, -v16, v16, v18")
    a("v_max_f32 v18, 0, v18")
    a("v_cvt_pk_bf16_f32 v16, v16, v18")
    a("v_and_b32 v18, 0xffff0000, v16")
    a("v_lshlrev_b32 v16, 16, v16")
    a("v_add_f32 v18, 0x3727c5ac, v18")
    a("v_cvt_pk_bf16_f32 v18, v18, v18")
    a("v_lshlrev_b32 v18, 16, v18")
    a("v_sqrt_f32 v18, v18")
    a("s_nop 0")
    a("v_cvt_pk_bf16_f32 v18, v18, v18")
    a("v_lshlrev_b32 v18, 16, v18")
    a("v_rcp_f32 v18, v18")
    a("v_mov_b32 v%d, v16" % V_LNM)
    a("v_mov_b32 v%d, v16" % (V_LNM + 1))
    a("v_mov_b32 v%d, v18" % V_LNR)
    a("v_mul_f32 v%d, 0x%08x, v18" % (V_LNR + 1, QSC))
    reads(0, 0, 0)
    for x in norm_ops(0):
        a(x)
    a.stamp()

    def out_q0():
        a("s_add_u32 s56, s63, 0x%x" % QF)

    def out_q1():
        a("s_add_u32 s56, s64, 0x%x" % QF)

    def next_q1():
        set_params("next", 28, 29, 0x400000, 8192, "s62")

    def next_h():
        a("s_cmp_lt_u32 s4, 14")
        a("s_cselect_b32 s66, 0x1c0000, 0")
        set_params("next", 38, 39, "s66", 3584, "s46")

    def next_none():
        a("s_mov_b32 s66, 0")
        set_params("next", 38, 39, "s66", 3584, "s46")

    def out_h():
        a("s_mul_i32 s56, s59, %d" % AF_BLK)
        a("s_lshl_b32 s66, s4, 13")
        a("s_add_u32 s56, s56, s66")
        a("s_add_u32 s56, s56, 0x%x" % (AF + 256 * 1024))

    chunk("Q", next_q1, out_q0, None, True, "xn")
    chunk("Q", next_h, out_q1, "Q", True, None, True)
    a("s_cmp_lt_u32 s4, 14")
    a("s_cbranch_scc1 proj_h")
    epilogue("Q")
    if "nopf2" not in EXPF:
        a("s_sub_u32 s88, s4, 14")
        a("s_lshl_b32 s89, s3, 1")
        a("s_add_u32 s88, s88, s89")
        a("s_lshl_b32 s88, s88, 3")
        a("s_add_u32 s88, s88, s6")
        a("v_lshlrev_b32 v255, 7, v1")
        a("s_mov_b32 s84, s34")
        a("s_mov_b32 s85, s35")
        a("s_mov_b32 s86, 0x400000")
        a("s_mov_b32 s87, 0x20000")
        a("s_lshl_b32 s89, s88, 15")
        for i in range(4):
            a("buffer_load_dword v254, v255, s[84:87], s89 offen")
            a("buffer_load_dword v254, v255, s[84:87], s89 offen offset:64")
            a("s_add_u32 s89, s89, 8192")
        a("s_mov_b32 s84, s42")
        a("s_mov_b32 s85, s43")
        a("s_mov_b32 s86, 0x1c0000")
        a("s_lshl_b32 s89, s88, 14")
        for i in range(2):
            a("buffer_load_dword v254, v255, s[84:87], s89 offen")
            a("buffer_load_dword v254, v255, s[84:87], s89 offen offset:64")
            a("s_add_u32 s89, s89, 8192")
    a("s_branch proj_end")
    a.label("proj_h")
    chunk("H", next_none, out_h, "Q", False)
    a.stamp_flush(0)
    a("s_branch proj_end")
    a.nst = 2

    a.label("proj_ckv")
    set_params("cur", 30, 31, 0x400000, 8192, "s61")
    dma(0, "cur")
    a_dma(0, 2)
    a_dma(1, 3)
    a_dma(2, 4)
    dma(1, "cur")
    W(12); a_read(0, 2); L0(); a_dma(3, 2)
    W(12); a_read(1, 3); L0(); a_dma(4, 3)
    a("s_barrier")
    reads(0, 0, 0)

    def out_k0():
        a("s_add_u32 s56, s63, 0x%x" % KF)

    def out_k1():
        a("s_add_u32 s56, s64, 0x%x" % KF)

    def out_v0():
        a("s_add_u32 s56, s63, 0x%x" % VF)

    def out_v1():
        a("s_add_u32 s56, s64, 0x%x" % VF)

    chunk("QK", lambda: set_params("next", 30, 31, 0x400000, 8192, "s62"), out_k0, None, True, "ckv")
    chunk("QK", lambda: set_params("next", 32, 33, 0x400000, 8192, "s61"), out_k1, "QK", True, None, True)
    chunk("V", lambda: set_params("next", 32, 33, 0x400000, 8192, "s62"), out_v0, "QK", True)
    chunk("V", next_none, out_v1, "V", False)
    a.stamp_flush(int(STAMP) if STAMP else 0)
    a.label("proj_end")
    a.ostamp()
    a.gridbar(0)
    a.ostamp()


def descriptor(a, name, vgpr, sgpr, accum):
    a.raw(".p2align 6")
    a.raw(".amdhsa_kernel %s" % name)
    a.raw("  .amdhsa_next_free_vgpr %d" % vgpr)
    a.raw("  .amdhsa_next_free_sgpr %d" % sgpr)
    a.raw("  .amdhsa_accum_offset %d" % accum)
    a.raw("  .amdhsa_group_segment_fixed_size 0")
    a.raw("  .amdhsa_kernarg_size 112")
    a.raw("  .amdhsa_user_sgpr_count 2")
    a.raw("  .amdhsa_user_sgpr_kernarg_segment_ptr 1")
    a.raw("  .amdhsa_system_sgpr_workgroup_id_x 1")
    a.raw(".end_amdhsa_kernel")


def main():
    from gen_rest import gen_attn, gen_ogemm, gen_reduce
    a = Asm()
    hdr = open("cdna_kernels/%s.s.ref" % NAME).read().split("\n")
    for l in hdr:
        if l.startswith(";") and "@launch" not in l:
            a.raw(l)
        elif not l.startswith(";"):
            break
    a.raw("; @launch kernel=mega_kernel grid=(256,1,1) block=(512,1,1) lds=163840")
    a.raw('.amdgcn_target "amdgcn-amd-amdhsa--gfx950"')
    a.raw(".text")
    a.raw(".globl mega_kernel")
    a.raw(".p2align 8")
    a.raw(".type mega_kernel,@function")
    gen_proj(a)
    gen_attn(a)
    gen_ogemm(a)
    gen_reduce(a)
    a.raw('.section .rodata,"a"')
    descriptor(a, "mega_kernel", 256, 102, 256)
    out = sys.argv[1] if len(sys.argv) > 1 else "cdna_kernels/%s.s" % NAME
    open(out, "w").write("\n".join(a.lines) + "\n")


if __name__ == "__main__":
    main()
```

```python
import sys

NAME = "parallel_sum__compressed_kv_cla__dense_activation_squared_relu__prompt"

MB = 1 << 20
QF = 0
KF = 16 * MB
VF = 32 * MB
AF = 49 * MB
AF_BLK = 368 * 1024
PART = 80 * MB
CTR = 100 * MB
import math, struct
QSC = struct.unpack("<I", struct.pack("<f", (128 ** -0.5) * math.log2(math.e)))[0]


import os
STAMP = os.environ.get("STAMP")


class Asm:
    def __init__(self):
        self.lines = []
        self.nst = 0

    def stamp(self):
        if not STAMP:
            return
        self("s_memtime s[98:99]")
        self("s_waitcnt lgkmcnt(0)")
        self("s_mov_b32 s%d, s98" % (68 + self.nst))
        self.nst += 1

    def stamp_flush(self, wgsel, dbgptr_off=96):
        if not STAMP:
            return
        L = "stf_%d" % len(self.lines)
        self("s_cmp_lg_u32 s2, %d" % wgsel)
        self("s_cbranch_scc1 %s" % L)
        self("s_load_dwordx2 s[96:97], s[0:1], %d" % dbgptr_off)
        self("s_waitcnt lgkmcnt(0)")
        self("s_mov_b32 s98, 4096")
        self("s_mov_b32 s99, 0x20000")
        self("v_cmp_eq_u32 vcc, 0, v0")
        self("s_and_saveexec_b64 s[94:95], vcc")
        self("s_cbranch_execz %s" % L)
        for i in range(self.nst):
            self("v_mov_b32 v1, s%d" % (68 + i))
            self("v_mov_b32 v2, %d" % (4 * i + 512 * (self.phase + 1)))
            self("buffer_store_dword v1, v2, s[96:99], 0 offen")
        self.label(L)
        self("s_mov_b64 exec, -1")
        self.nst = 0

    phase = 0
    on = 0

    def ostamp(self, last=False):
        OST = os.environ.get("OST")
        if not OST:
            return
        a = self
        a("s_memrealtime s[98:99]")
        a("s_waitcnt lgkmcnt(0)")
        a("s_mov_b32 s%d, s98" % (68 + self.on if self.on else 93))
        self.on += 1
        if last:
            a("s_cmp_lg_u32 s2, %s" % OST)
            a("s_cbranch_scc1 ost_skip")
            a("s_load_dwordx2 s[96:97], s[0:1], 96")
            a("s_mov_b32 s98, 256")
            a("s_mov_b32 s99, 0x20000")
            a("v_cmp_eq_u32 vcc, 0, v0")
            a("s_and_saveexec_b64 s[94:95], vcc")
            a("s_cbranch_execz ost_skip")
            a("s_waitcnt lgkmcnt(0)")
            for i in range(1, self.on):
                a("s_sub_u32 s94, s%d, s93" % (68 + i))
                a("v_mov_b32 v1, s94")
                a("v_mov_b32 v2, %d" % (28 + 4 * i))
                a("buffer_store_dword v1, v2, s[96:99], 0 offen")
            a.label("ost_skip")
            a("s_mov_b64 exec, -1")

    def gb_signal(self, k):
        a = self
        a("s_load_dwordx2 s[80:81], s[0:1], 96")
        a("s_load_dwordx2 s[84:85], s[0:1], 104")
        a("s_mov_b32 s82, 256")
        a("s_mov_b32 s83, 0x20000")
        a("s_mov_b32 s86, 0x10000000")
        a("s_mov_b32 s87, 0x20000")
        a("s_mov_b64 exec, 1")
        a("v_mov_b32 v12, 1")
        a("v_mov_b32 v13, %d" % (4 * k))
        a("v_mov_b32 v14, 1")
        a("v_mov_b32 v15, 0")
        a("s_and_b32 s88, s2, 15")
        a("s_lshl_b32 s88, s88, 12")
        a("s_add_u32 s88, s88, 0x%x" % (CTR + (k - 1) * 65536))
        a("s_waitcnt lgkmcnt(0)")
        a("buffer_atomic_add v14, v15, s[84:87], s88 offen sc0 sc1")
        a("s_waitcnt vmcnt(0)")
        a("v_readfirstlane_b32 s89, v14")
        a("s_cmp_lg_u32 s89, 15")
        a("s_cbranch_scc1 gs_nr%d" % k)
        a("buffer_atomic_add v12, v13, s[80:83], 0 offen sc1")
        a.label("gs_nr%d" % k)
        a("s_mov_b64 exec, -1")

    def gb_poll(self, k):
        a = self
        a("s_mov_b64 exec, 1")
        a("v_mov_b32 v13, %d" % (4 * k))
        a("s_mov_b32 s88, 0")
        a.label("gp_loop%d" % k)
        a("buffer_load_dword v14, v13, s[80:83], 0 offen sc1")
        a("s_waitcnt vmcnt(0)")
        a("v_readfirstlane_b32 s89, v14")
        a("s_cmp_ge_u32 s89, 16")
        a("s_cbranch_scc1 gp_done%d" % k)
        a("s_add_u32 s88, s88, 1")
        a("s_cmp_gt_u32 s88, 40000")
        a("s_cbranch_scc1 gp_done%d" % k)
        a("s_sleep 8")
        a("s_branch gp_loop%d" % k)
        a.label("gp_done%d" % k)
        a("s_mov_b64 exec, -1")

    def gridbar(self, k):
        a = self
        if STAMP:
            a("s_memrealtime s[14:15]")
        if k == 0:
            a("s_cmp_ge_u32 s2, 96")
            a("s_cbranch_scc1 gb_noinit")
            a("s_load_dwordx2 s[8:9], s[0:1], 104")
            a("s_mov_b32 s10, 0x10000000")
            a("s_mov_b32 s11, 0x20000")
            a("s_lshl_b32 s12, s2, 12")
            a("s_add_u32 s12, s12, 0x%x" % CTR)
            a("v_mov_b32 v1, 0")
            a("v_mov_b32 v2, 0")
            a("s_waitcnt lgkmcnt(0)")
            a("buffer_store_dword v1, v2, s[8:11], s12 offen sc0 sc1")
            a.label("gb_noinit")
        a("s_waitcnt vmcnt(0) lgkmcnt(0)")
        a("s_barrier")
        if STAMP:
            a("s_memrealtime s[16:17]")
        a("v_lshrrev_b32 v1, 6, v0")
        a("s_nop 0")
        a("v_readfirstlane_b32 s6, v1")
        a("s_cmp_lg_u32 s6, 0")
        a("s_cbranch_scc1 gb_wait%d" % k)
        a("s_load_dwordx2 s[8:9], s[0:1], 96")
        a("s_load_dwordx2 s[24:25], s[0:1], 104")
        a("s_mov_b32 s10, 256")
        a("s_mov_b32 s11, 0x20000")
        a("s_mov_b32 s26, 0x10000000")
        a("s_mov_b32 s27, 0x20000")
        a("s_mov_b64 exec, 1")
        a("v_mov_b32 v1, 1")
        a("v_mov_b32 v2, %d" % (4 * k))
        a("s_waitcnt lgkmcnt(0)")
        tgt = 256
        if True:
            tgt = 16
            a("s_and_b32 s12, s2, 15")
            a("v_mov_b32 v3, 1")
            a("v_mov_b32 v4, 0")
            if k > 0:
                a("s_lshl_b32 s12, s12, 12")
                a("s_add_u32 s12, s12, 0x%x" % (CTR + (k - 1) * 65536))
                a("buffer_atomic_add v3, v4, s[24:27], s12 offen sc0 sc1")
            else:
                a("s_lshl_b32 s12, s12, 2")
                a("s_add_u32 s12, s12, 128")
                a("buffer_atomic_add v3, v4, s[8:11], s12 offen sc0 sc1")
            a("s_waitcnt vmcnt(0)")
            a("v_readfirstlane_b32 s13, v3")
            a("s_cmp_lg_u32 s13, 15")
            a("s_cbranch_scc1 gb_nr%d" % k)
        a("buffer_atomic_add v1, v2, s[8:11], 0 offen sc1")
        if True:
            a.label("gb_nr%d" % k)
        a("s_mov_b32 s12, 0")
        a.label("gb_loop%d" % k)
        a("buffer_load_dword v3, v2, s[8:11], 0 offen %s" % os.environ.get("PSC", "sc1"))
        a("s_waitcnt vmcnt(0)")
        a("v_readfirstlane_b32 s13, v3")
        a("s_cmp_ge_u32 s13, %d" % tgt)
        a("s_cbranch_scc1 gb_done%d" % k)
        a("s_add_u32 s12, s12, 1")
        a("s_cmp_gt_u32 s12, 40000")
        a("s_cbranch_scc1 gb_done%d" % k)
        a("s_sleep %s" % os.environ.get("SLEEP", "8"))
        a("s_branch gb_loop%d" % k)
        a.label("gb_done%d" % k)
        if STAMP:
            a("s_memrealtime s[18:19]")
            a("s_mov_b32 s10, 65536")
            a("s_lshl_b32 s20, s2, 4")
            a("s_add_u32 s20, s20, %d" % (4096 + 4096 * k))
            a("s_waitcnt lgkmcnt(0)")
            a("s_mov_b64 exec, 1")
            a("v_mov_b32 v4, s14")
            a("v_mov_b32 v5, s16")
            a("v_mov_b32 v6, s18")
            a("v_mov_b32 v7, s92")
            a("v_mov_b32 v2, 0")
            a("buffer_store_dwordx4 v[4:7], v2, s[8:11], s20 offen")
        a("s_mov_b64 exec, -1")
        a("s_waitcnt lgkmcnt(0)")
        a.label("gb_wait%d" % k)
        a("s_barrier")
        if "inv" in os.environ.get("EXP", ""):
            a("buffer_inv sc1")
        self.phase = k + 1

    inloop = False

    def __call__(self, s):
        EXP = os.environ.get("EXP", "")
        if self.inloop:
            if "nomfma" in EXP and s.startswith("v_mfma"):
                return
            if "novalu" in EXP and s.startswith("v_") and not s.startswith("v_mfma") and not s.startswith("v_cmp") and "0x1ffff" not in s and "0x8000" not in s and not s.startswith("v_mov") and not s.startswith("v_add_u32"):
                return
            if "nolds" in EXP and s.startswith("ds_read"):
                return
            if "nodma" in EXP and s.startswith("buffer_load"):
                return
            if "nobar" in EXP and s.startswith("s_barrier"):
                return
        if "nosc1" in EXP and s.startswith("buffer_store") and s.endswith(" sc1"):
            s = s[:-4]
        self.lines.append("  " + s)

    def label(self, s):
        self.lines.append(s + ":")

    def raw(self, s):
        self.lines.append(s)

    def nop(self, n):
        while n > 0:
            k = min(n, 16)
            self("s_nop %d" % (k - 1))
            n -= k


def vr(a, n):
    return "v[%d:%d]" % (a, a + n - 1)


def sr(a, n):
    return "s[%d:%d]" % (a, a + n - 1)


def gen_proj(a):
    V_LANE = 1
    V_TR = 2
    V_OFFC = 10
    V_OFFN = 11
    V_ST = 12
    V_T0 = 13
    V_B = 16
    V_ACC = 48
    V_A = 112
    V_ROWI = 13
    V_SWZ = 14
    V_T = 15
    V_AOFF = 240

    a.label("mega_kernel")
    a("s_cmp_lt_u32 s2, 256")
    a("s_cbranch_scc1 proj_start")
    a("s_endpgm")
    a.label("proj_start")
    a.ostamp()
    if STAMP:
        a("s_memrealtime s[92:93]")
    a.stamp()
    a("s_load_dwordx2 s[8:9], s[0:1], 96")
    a("s_load_dwordx16 s[24:39], s[0:1], 0")
    a("s_load_dwordx4 s[40:43], s[0:1], 64")
    a("s_load_dwordx2 s[44:45], s[0:1], 104")
    EXPF = os.environ.get("EXP", "")
    if "tick" in EXPF:
        a("v_lshrrev_b32 v1, 6, v0")
        a("v_lshlrev_b32 v4, 14, v1")
        a("v_add_u32 v4, 0x8000, v4")
        a("v_readfirstlane_b32 s6, v1")
        a("s_getreg_b32 s4, hwreg(HW_REG_XCC_ID)")
        a("s_and_b32 s4, s4, 7")
        if "tkforce" in EXPF:
            a("s_min_u32 s4, s4, 4")
        a("s_mov_b32 s10, 256")
        a("s_mov_b32 s11, 0x20000")
        a("s_lshl_b32 s5, s4, 2")
        a("s_add_u32 s5, s5, 192")
        a("v_mov_b32 v2, s5")
        a("v_mov_b32 v3, 1")
        a("s_cmp_eq_u32 s6, 0")
        a("s_cbranch_scc1 tk_w0")
        a("s_cmp_lg_u32 s6, 7")
        a("s_cbranch_scc1 tk_wait")
        a("s_mov_b64 exec, 1")
        a("s_waitcnt lgkmcnt(0)")
        a("v_subrev_u32 v2, 160, v2")
        a("buffer_atomic_add v3, v2, s[8:11], 0 offen sc1")
        a("s_mov_b64 exec, -1")
        a("s_branch tk_wait")
        a.label("tk_w0")
        a("s_mov_b64 exec, 1")
        a("s_waitcnt lgkmcnt(0)")
        a("buffer_atomic_add v3, v2, s[8:11], 0 offen sc0%s" % (" sc1" if "tkforce" in EXPF or "tkglob" in EXPF else ""))
        a("s_waitcnt vmcnt(0)")
        a("v_readfirstlane_b32 s5, v3")
        a("s_cmp_lt_u32 s5, 32")
        a("s_cbranch_scc1 tk_got")
        a("s_mov_b32 s7, 0")
        a("v_mov_b32 v2, 32")
        a.label("tk_poll")
        a("buffer_load_dwordx4 v[8:11], v2, s[8:11], 0 offen sc1")
        a("buffer_load_dwordx4 v[12:15], v2, s[8:11], 0 offen offset:16 sc1")
        a("s_waitcnt vmcnt(0)")
        a("s_mov_b32 s12, 0")
        for i in range(8):
            a("v_readfirstlane_b32 s%d, v%d" % (48 + i, 8 + i))
            a("s_add_u32 s12, s12, s%d" % (48 + i))
        a("s_cmp_ge_u32 s12, 256")
        a("s_cbranch_scc1 tk_full")
        a("s_add_u32 s7, s7, 1")
        a("s_sleep 8")
        a("s_cmp_lt_u32 s7, 40000")
        a("s_cbranch_scc1 tk_poll")
        a.label("tk_fail")
        a("s_lshr_b32 s5, s2, 3")
        a("s_and_b32 s4, s2, 7")
        a("s_branch tk_got")
        a.label("tk_full")
        a("s_sub_u32 s5, s5, 32")
        for i in range(7):
            a("s_max_u32 s12, s%d, 32" % (48 + i))
            a("s_sub_u32 s12, s12, 32")
            a("s_cmp_gt_u32 s4, %d" % i)
            a("s_cselect_b32 s12, s12, 0")
            a("s_add_u32 s5, s5, s12")
        for i in range(8):
            a("s_min_u32 s12, s%d, 32" % (48 + i))
            a("s_sub_u32 s13, 32, s12")
            a("s_mov_b32 s4, %d" % i)
            a("s_cmp_lt_u32 s5, s13")
            a("s_cbranch_scc1 tk_slot")
            a("s_sub_u32 s5, s5, s13")
        a("s_branch tk_fail")
        a.label("tk_slot")
        a("s_add_u32 s5, s5, s12")
        a.label("tk_got")
        a("s_lshl_b32 s5, s5, 3")
        a("s_add_u32 s5, s5, s4")
        a("s_mov_b64 exec, 0xff")
        a("v_lshlrev_b32 v2, 14, v0")
        a("v_add_u32 v2, 0x8000, v2")
        a("v_mov_b32 v3, s5")
        a("ds_write_b32 v2, v3")
        a("s_mov_b64 exec, -1")
        a("s_waitcnt lgkmcnt(0)")
        a.label("tk_wait")
        a("s_barrier")
        a("ds_read_b32 v3, v4")
        a("s_waitcnt lgkmcnt(0)")
        a("v_readfirstlane_b32 s2, v3")
        a("s_and_b32 s2, s2, 255")
        if STAMP:
            a("s_memrealtime s[96:97]")
            a("s_waitcnt lgkmcnt(0)")
            a("s_mov_b32 s93, s96")
    PM = os.environ.get("PM", "5")
    if PM == "0":
        a("s_lshr_b32 s3, s2, 5")
        a("s_and_b32 s4, s2, 31")
    elif PM == "1":
        a("s_and_b32 s3, s2, 7")
        a("s_lshr_b32 s4, s2, 3")
    elif PM == "2":
        a("s_and_b32 s3, s2, 3")
        a("s_bfe_u32 s4, s2, 0x10003")
        a("s_lshl_b32 s4, s4, 2")
        a("s_or_b32 s3, s3, s4")
        a("s_bfe_u32 s4, s2, 0x10002")
        a("s_lshr_b32 s5, s2, 4")
        a("s_lshl_b32 s5, s5, 1")
        a("s_or_b32 s4, s4, s5")
    elif PM == "3":
        a("s_and_b32 s3, s2, 1")
        a("s_bfe_u32 s4, s2, 0x20003")
        a("s_lshl_b32 s4, s4, 1")
        a("s_or_b32 s3, s3, s4")
        a("s_bfe_u32 s4, s2, 0x20001")
        a("s_lshr_b32 s5, s2, 5")
        a("s_lshl_b32 s5, s5, 2")
        a("s_or_b32 s4, s4, s5")
    elif PM == "4":
        a("s_lshr_b32 s3, s2, 5")
        a("s_bfe_u32 s4, s2, 0x40001")
        a("s_and_b32 s5, s2, 1")
        a("s_lshl_b32 s5, s5, 4")
        a("s_or_b32 s4, s4, s5")
    elif PM == "5":
        a("s_bfe_u32 s3, s2, 0x10001")
        a("s_bfe_u32 s4, s2, 0x20003")
        a("s_lshl_b32 s4, s4, 1")
        a("s_or_b32 s3, s3, s4")
        a("s_bfe_u32 s4, s2, 0x10002")
        a("s_lshr_b32 s5, s2, 5")
        a("s_lshl_b32 s5, s5, 1")
        a("s_or_b32 s4, s4, s5")
        a("s_and_b32 s5, s2, 1")
        a("s_lshl_b32 s5, s5, 4")
        a("s_or_b32 s4, s4, s5")
    elif PM == "6":
        a("s_bfe_u32 s3, s2, 0x30001")
        a("s_lshr_b32 s4, s2, 4")
        a("s_and_b32 s5, s2, 1")
        a("s_lshl_b32 s5, s5, 4")
        a("s_or_b32 s4, s4, s5")
    a("v_lshrrev_b32 v1, 6, v0")
    a("s_nop 0")
    a("v_readfirstlane_b32 s6, v1")
    a("v_and_b32 v1, 63, v0")
    a("s_waitcnt lgkmcnt(0)")
    a.stamp()
    a("s_cmp_lt_u32 s4, 16")
    a("s_cselect_b32 s8, s24, s26")
    a("s_cselect_b32 s9, s25, s27")
    a("s_cselect_b32 s5, 0, 1")
    a("s_and_b32 s4, s4, 15")
    a("s_mov_b32 s10, 0x200000")
    a("s_mov_b32 s11, 0x20000")
    a("s_mov_b32 s16, s44")
    a("s_mov_b32 s17, s45")
    a("s_mov_b32 s18, 0x10000000")
    a("s_mov_b32 s19, 0x20000")
    a("s_mov_b32 s20, s40")
    a("s_mov_b32 s21, s41")
    a("s_mov_b32 s22, 3584")
    a("s_mov_b32 s23, 0x20000")
    a("s_mov_b32 s15, 0x20000")
    a("s_mov_b32 s51, 0x20000")
    a("s_lshl_b32 s58, s6, 12")
    a("s_lshl_b32 s59, s3, 3")
    a("s_add_u32 s59, s59, s6")
    a("v_and_b32 v13, 15, v1")
    a("v_lshlrev_b32 v13, 10, v13")
    a("v_lshrrev_b32 v14, 4, v1")
    a("v_lshlrev_b32 v14, 4, v14")
    a("v_add_u32 v13, v13, v14")
    a("s_movk_i32 s65, 0x4000")
    a("s_lshl_b32 s60, s59, 15")
    a("v_add_u32 v13, s60, v13")
    a("v_mov_b32 v%d, v13" % V_AOFF)

    def aloads(lo, hi):
        for s in range(lo, hi):
            a("buffer_load_dwordx4 %s, v%d, s[8:11], %s offen offset:%d" % (
                vr(V_A + 4 * s, 4), V_AOFF, "s65" if s & 1 else "0", (s >> 1) * 64))

    def aswaps(lo, hi):
        for s in range(lo, hi, 2):
            for j in range(4):
                a("v_permlane16_swap_b32 v%d, v%d" % (V_A + 4 * s + j, V_A + 4 * s + 4 + j))
        a("s_nop 1")
    a("v_bfe_u32 v13, v1, 2, 2")
    a("v_lshrrev_b32 v14, 5, v1")
    a("v_lshl_add_u32 v14, v14, 4, v13")
    a("v_lshlrev_b32 v14, 8, v14")
    a("v_bfe_u32 v15, v1, 4, 1")
    a("v_lshl_add_u32 v14, v15, 5, v14")
    a("v_and_b32 v15, 3, v1")
    a("v_lshl_add_u32 v14, v15, 3, v14")
    a("v_lshlrev_b32 v13, 6, v13")
    for nt in range(4):
        a("v_xor_b32 v15, %d, v13" % (nt << 6))
        a("v_add_u32 v%d, v14, v15" % (V_TR + nt))
        a("v_add_u32 v%d, 0x10000, v%d" % (V_TR + 4 + nt, V_TR + nt))
    a("v_lshlrev_b32 v%d, 4, v1" % V_ST)
    a("v_lshrrev_b32 v13, 4, v1")
    a("v_bfe_u32 v14, v1, 2, 2")
    a("v_xor_b32 v14, v14, v13")
    a("v_lshlrev_b32 v14, 6, v14")
    a("v_and_b32 v15, 3, v1")
    a("v_lshl_add_u32 v14, v15, 4, v14")
    a("s_lshl_b32 s60, s6, 4")
    a("v_add_u32 v13, s60, v13")

    def set_params(which, wlo, whi, nrec, ldw, colexpr_reg):
        base = 12 if which == "cur" else 48
        sl, sc = (52, 53) if which == "cur" else (54, 55)
        voff = V_OFFC if which == "cur" else V_OFFN
        a("s_mov_b32 s%d, s%d" % (base, wlo))
        a("s_mov_b32 s%d, s%d" % (base + 1, whi))
        if isinstance(nrec, str):
            a("s_mov_b32 s%d, %s" % (base + 2, nrec))
        else:
            a("s_mov_b32 s%d, 0x%x" % (base + 2, nrec))
        a("s_mov_b32 s%d, %d" % (sl, ldw))
        a("s_mov_b32 s%d, %s" % (sc, colexpr_reg))
        a("v_mul_lo_u32 v%d, v%d, s%d" % (voff, V_ROWI, sl))
        a("v_add_u32 v%d, v%d, v%d" % (voff, voff, V_SWZ))

    def dma(kc, which):
        base = 12 if which == "cur" else 48
        sl, sc = (52, 53) if which == "cur" else (54, 55)
        voff = V_OFFC if which == "cur" else V_OFFN
        for i in range(4):
            a("s_add_u32 m0, s58, %d" % (kc * 32768 + i * 1024))
            a("s_mul_i32 s57, s%d, %d" % (sl, kc * 128 + 4 * i))
            a("s_add_u32 s57, s57, s%d" % sc)
            a("buffer_load_dwordx4 v%d, %s, s57 offen lds" % (voff, sr(base, 4)))

    def reads(kc, s, setidx):
        hi = 4 if kc >= 2 else 0
        off = (kc & 1) * 32768 + (s >> 1) * 8192 + (s & 1) * 2048
        for nt in range(4):
            for ird in range(2):
                a("ds_read_b64_tr_b16 %s, v%d offset:%d" % (
                    vr(V_B + setidx * 16 + nt * 4 + ird * 2, 2), V_TR + hi + nt, off + ird * 1024))

    def epi_part(kind, nt):
        if kind == "Q":
            for i in range(16):
                a("v_mul_f32 v%d, v%d, v%d" % (V_ACC + 16 * nt + i, V_LNR + 1, V_ACC + 16 * nt + i))
        for t in range(2):
            d = V_ACC + 16 * nt + 8 * t
            for p in range(4):
                x0 = V_ACC + 16 * nt + 8 * t + 2 * p
                a("v_cvt_pk_bf16_f32 v%d, v%d, v%d" % (d + p, x0, x0 + 1))
            a("buffer_store_dwordx4 %s, v%d, s[16:19], s%d offen offset:%d sc1" % (
                vr(d, 4), V_ST, 90 if nt < 2 else 91, ((nt * 2 + t) & 3) * 1024))
        a("s_nop 1")

    def compute(kc, kind, extra=None, prev=None, hooks=None):
        extra = list(extra or [])
        per = -(-len(extra) // 32)
        for s in range(8):
            if hooks and s in hooks:
                hooks[s]()
            if s < 7:
                reads(kc, s + 1, (s + 1) & 1)
            else:
                reads((kc + 1) & 3, 0, 0)
            a("s_waitcnt lgkmcnt(8)")
            ks = kc * 8 + s
            for nt in range(4):
                acc = vr(V_ACC + 16 * nt, 16)
                wf = vr(V_B + (s & 1) * 16 + nt * 4, 4)
                af = vr(V_A + 4 * ks, 4)
                c = "0" if ks == 0 else acc
                if prev and ks == 0:
                    epi_part(prev, nt)
                if kind == "V":
                    a("v_mfma_f32_32x32x16_bf16 %s, %s, %s, %s" % (acc, af, wf, c))
                else:
                    a("v_mfma_f32_32x32x16_bf16 %s, %s, %s, %s" % (acc, wf, af, c))
                for x in extra[:per]:
                    a(x)
                extra = extra[per:]
        assert not extra

    def aload_ops(lo, hi):
        ops = []
        for s in range(lo, hi):
            ops.append("buffer_load_dwordx4 %s, v%d, s[8:11], %s offen offset:%d" % (
                vr(V_A + 4 * s, 4), V_AOFF, "s65" if s & 1 else "0", (s >> 1) * 64))
            ops += ["s_nop 0"] * 3
        return ops

    V_LNM = 244
    V_LNR = 246
    V_LNT = 248

    def norm_ops(q):
        ops = []
        for i in range(32 * q, 32 * q + 32):
            r = V_A + i
            t = 248 + 2 * (i % 3)
            ops.append("v_lshlrev_b32 v%d, 16, v%d" % (t, r))
            ops.append("v_and_b32 v%d, 0xffff0000, v%d" % (t + 1, r))
            ops.append("v_pk_add_f32 %s, %s, %s neg_lo:[0,1] neg_hi:[0,1]" % (vr(t, 2), vr(t, 2), vr(V_LNM, 2)))
            ops.append("v_cvt_pk_bf16_f32 v%d, v%d, v%d" % (r, t, t + 1))
        return ops

    def epilogue(kind):
        if kind == "H":
            a("s_waitcnt lgkmcnt(0)")
            a("v_lshrrev_b32 v15, 5, v1")
            a("v_lshlrev_b32 v15, 3, v15")
            for nt in range(4):
                for q in range(4):
                    a("buffer_load_dwordx2 %s, v15, s[20:23], s53 offen offset:%d" % (
                        vr(V_B + (nt * 4 + q) * 2, 2), 64 * nt + 16 * q))
            a.nop(12)
            for i in range(64):
                a("v_mul_f32 v%d, v%d, v%d" % (V_ACC + i, V_LNR, V_ACC + i))
            a("s_waitcnt vmcnt(0)")
            for nt in range(4):
                for q in range(4):
                    r0 = V_ACC + 16 * nt + 4 * q
                    b0 = V_B + (nt * 4 + q) * 2
                    for p in range(2):
                        x0, x1 = r0 + 2 * p, r0 + 2 * p + 1
                        bb = b0 + p
                        a("v_cvt_pk_bf16_f32 v15, v%d, v%d" % (x0, x1))
                        a("v_lshlrev_b32 v%d, 16, v15" % x0)
                        a("v_and_b32 v%d, 0xffff0000, v15" % x1)
                        a("v_lshlrev_b32 v15, 16, v%d" % bb)
                        a("v_add_f32 v%d, v%d, v15" % (x0, x0))
                        a("v_and_b32 v15, 0xffff0000, v%d" % bb)
                        a("v_add_f32 v%d, v%d, v15" % (x1, x1))
                        a("v_cvt_pk_bf16_f32 v15, v%d, v%d" % (x0, x1))
                        a("v_lshlrev_b32 v%d, 16, v15" % x0)
                        a("v_and_b32 v%d, 0xffff0000, v15" % x1)
                        a("v_max_f32 v%d, 0, v%d" % (x0, x0))
                        a("v_max_f32 v%d, 0, v%d" % (x1, x1))
                        a("v_mul_f32 v%d, v%d, v%d" % (x0, x0, x0))
                        a("v_mul_f32 v%d, v%d, v%d" % (x1, x1, x1))
        else:
            a.nop(12)
        if kind == "Q":
            for i in range(64):
                a("v_mul_f32 v%d, v%d, v%d" % (V_ACC + i, V_LNR + 1, V_ACC + i))
        a("s_add_u32 s67, s56, 4096")
        for nt in range(4):
            for t in range(2):
                d = V_ACC + 16 * nt + 8 * t
                for p in range(4):
                    x0 = V_ACC + 16 * nt + 8 * t + 2 * p
                    a("v_cvt_pk_bf16_f32 v%d, v%d, v%d" % (d + p, x0, x0 + 1))
                a("buffer_store_dwordx4 %s, v%d, s[16:19], s%d offen offset:%d sc1" % (
                    vr(d, 4), V_ST, 56 if nt < 2 else 67, ((nt * 2 + t) & 3) * 1024))
        a.nop(2)

    def W(n):
        a("s_waitcnt vmcnt(%d)" % n)

    def ckv_first(kc):
        B = lambda: a("s_barrier")
        if kc == 0:
            return (lambda: None), {
                1: lambda: (W(12 + NP0), a_read(2, 4)),
                2: lambda: a_dma(5, 4),
                4: lambda: (W(8), a_read(3, 2)),
                6: lambda: (B(), dma(2, "cur"))}
        if kc == 1:
            return (lambda: (B(), a_dma(6, 0))), {
                1: lambda: (W(12), a_read(4, 3)),
                3: lambda: (W(8), a_read(5, 4)),
                6: lambda: (W(4), B(), a_dma(7, 4), dma(3, "cur"))}
        if kc == 2:
            return (lambda: (B(), dma(1, "next"))), {
                1: lambda: (W(12), a_read(6, 0)),
                3: lambda: (W(8), a_read(7, 4)),
                6: lambda: (W(4), B(), dma(0, "next"))}
        return (lambda: (B(), dma(2, "next"))), {
            7: lambda: (W(4), B())}

    def chunk(kind, set_next, set_out, prev=None, defer=False, first=None, pf=False):
        waits = (4, 12, 12, 4) if prev else (8, 4, 4, 4)
        if pf:
            waits = (4, 12 + NPF, 12 + NPF, 4)
        if prev:
            a("s_mov_b32 s90, s56")
            a("s_add_u32 s91, s56, 4096")
        set_next()
        set_out()
        for kc in range(4):
            extra = hooks = None
            if first == "ckv":
                st, hooks = ckv_first(kc)
                st()
            else:
                a("s_waitcnt vmcnt(%d)" % waits[kc])
                a("s_barrier")
                if kc < 1:
                    if not first:
                        dma(kc + 3, "cur")
                    if pf:
                        prefetch()
                else:
                    dma(kc - 1, "next")
            if first == "xn" and kc < 3:
                extra = norm_ops(kc + 1)
            if kc == 0:
                a.stamp()
            compute(kc, kind, extra, prev, hooks)
        a.stamp()
        if not defer:
            epilogue(kind)
        a.stamp()
        for i in range(3):
            a("s_mov_b32 s%d, s%d" % (12 + i, 48 + i))
        a("s_mov_b32 s52, s54")
        a("s_mov_b32 s53, s55")
        a("v_mov_b32 v%d, v%d" % (V_OFFC, V_OFFN))

    a("s_lshl_b32 s61, s4, 8")
    a("s_mov_b32 s46, s61")
    if "rev" in EXPF:
        a("s_and_b32 s47, s3, 1")
        a("s_lshl_b32 s47, s47, 12")
        a("s_xor_b32 s61, s61, s47")
    a("s_xor_b32 s62, s61, 4096")
    a("s_lshl_b32 s63, s61, 11")
    a("s_lshl_b32 s64, s59, 13")
    a("s_add_u32 s63, s63, s64")
    a("s_xor_b32 s64, s63, 0x800000")
    V_AD, V_AR = 240, 241
    a("v_and_b32 v24, 7, v1")
    a("v_lshrrev_b32 v25, 3, v1")
    a("v_lshrrev_b32 v26, 1, v25")
    a("v_xor_b32 v26, v24, v26")
    a("v_lshlrev_b32 v26, 4, v26")
    a("v_lshl_add_u32 v26, v25, 10, v26")
    a("s_lshl_b32 s60, s59, 15")
    a("v_add_u32 v%d, s60, v26" % V_AD)
    a("s_lshl_b32 s66, s6, 12")
    a("v_and_b32 v24, 31, v1")
    a("v_lshrrev_b32 v25, 5, v1")
    a("v_bfe_u32 v26, v24, 1, 3")
    a("v_lshlrev_b32 v27, 1, v25")
    a("v_xor_b32 v26, v26, v27")
    a("v_lshlrev_b32 v26, 4, v26")
    a("v_lshl_add_u32 v26, v24, 7, v26")
    a("v_add_u32 v%d, s66, v26" % V_AR)
    a("v_add_u32 v%d, 0x10000, v%d" % (V_AR + 1, V_AR))
    a("v_add_u32 v%d, 0x20000, v%d" % (V_AR + 2, V_AR))

    def a_dma(e, reg):
        for j in range(4):
            a("v_xor_b32 v%d, %d, v%d" % (248 + j, 64 * (j & 1), V_AD))
            a("s_add_u32 m0, s66, %d" % (reg * 32768 + 1024 * j))
            a("s_movk_i32 s67, %d" % (8192 * j + 128 * e))
            a("buffer_load_dwordx4 v%d, s[8:11], s67 offen lds" % (248 + j))

    def a_read(e, reg):
        for s_ in range(4):
            c0 = (4 * (s_ >> 1) + (s_ & 1)) * 16
            a("v_xor_b32 v%d, %d, v%d" % (248 + s_, c0, V_AR + (reg >> 1)))
            a("ds_read_b128 %s, v%d offset:%d" % (vr(V_A + 4 * (4 * e + s_), 4), 248 + s_, (reg & 1) * 32768))

    def L0():
        a("s_waitcnt lgkmcnt(0)")

    def stats(q):
        for i in range(32 * q, 32 * q + 32):
            r = V_A + i
            t = 20 + 2 * (i & 3)
            a("v_lshlrev_b32 v%d, 16, v%d" % (t, r))
            a("v_and_b32 v%d, 0xffff0000, v%d" % (t + 1, r))
            a("v_pk_add_f32 v[16:17], v[16:17], %s" % vr(t, 2))
            a("v_pk_fma_f32 v[18:19], %s, %s, v[18:19]" % (vr(t, 2), vr(t, 2)))

    NPF = 4 if "pfall" in EXPF else (2 if "pfv2" in EXPF else 0)

    def prefetch():
        if not NPF:
            return
        if NPF == 2:
            a("s_lshl_b32 s88, s2, 3")
            a("s_add_u32 s88, s88, s6")
            a("v_lshlrev_b32 v255, 7, v1")
            a("s_lshr_b32 s89, s88, 9")
            a("s_mov_b32 s84, s32")
            a("s_mov_b32 s85, s33")
            a("s_mov_b32 s86, 0x400000")
            for m, src in ((1, 34), (2, 38), (3, 42)):
                a("s_cmp_eq_u32 s89, %d" % m)
                a("s_cselect_b32 s84, s%d, s84" % src)
                a("s_cselect_b32 s85, s%d, s85" % (src + 1))
            a("s_cmp_ge_u32 s89, 2")
            a("s_cselect_b32 s86, 0x1c0000, s86")
            a("s_mov_b32 s87, 0x20000")
            a("s_and_b32 s89, s88, 511")
            a("s_lshl_b32 s89, s89, 13")
            a("buffer_load_dword v254, v255, s[84:87], s89 offen")
            a("buffer_load_dword v254, v255, s[84:87], s89 offen offset:64")
            return
        a("s_lshl_b32 s88, s2, 3")
        a("s_add_u32 s88, s88, s6")
        a("v_lshlrev_b32 v255, 7, v1")
        a("s_lshr_b32 s89, s88, 9")
        a("s_mov_b32 s84, s28")
        a("s_mov_b32 s85, s29")
        for m in range(1, 4):
            a("s_cmp_eq_u32 s89, %d" % m)
            a("s_cselect_b32 s84, s%d, s84" % (28 + 2 * m))
            a("s_cselect_b32 s85, s%d, s85" % (29 + 2 * m))
        a("s_mov_b32 s86, 0x400000")
        a("s_mov_b32 s87, 0x20000")
        a("s_and_b32 s89, s88, 511")
        a("s_lshl_b32 s89, s89, 13")
        a("buffer_load_dword v254, v255, s[84:87], s89 offen")
        a("buffer_load_dword v254, v255, s[84:87], s89 offen offset:64")
        a("s_cmp_lt_u32 s88, 224")
        a("s_cselect_b32 s84, s38, s42")
        a("s_cselect_b32 s85, s39, s43")
        a("s_cselect_b32 s89, 0, 224")
        a("s_sub_u32 s89, s88, s89")
        a("s_lshl_b32 s89, s89, 13")
        a("s_cmp_lt_u32 s88, 448")
        a("s_cselect_b32 s86, 0x1c0000, 0")
        a("buffer_load_dword v254, v255, s[84:87], s89 offen")
        a("buffer_load_dword v254, v255, s[84:87], s89 offen offset:64")

    NP0 = int(os.environ.get("NP0", "0"))

    def prefetch0():
        if not NP0:
            return
        a("s_lshl_b32 s88, s2, 3")
        a("s_add_u32 s88, s88, s6")
        a("v_lshlrev_b32 v255, 7, v1")
        a("s_lshr_b32 s89, s88, 9")
        a("s_mov_b32 s84, s28")
        a("s_mov_b32 s85, s29")
        for m in range(1, 4):
            src = 28 + 2 * m if m < 3 else 38
            a("s_cmp_eq_u32 s89, %d" % m)
            a("s_cselect_b32 s84, s%d, s84" % src)
            a("s_cselect_b32 s85, s%d, s85" % (src + 1))
        a("s_cselect_b32 s86, 0x1c0000, s7")
        a("s_mov_b32 s87, 0x20000")
        a("s_and_b32 s89, s88, 511")
        a("s_lshl_b32 s89, s89, 13")
        for i in range(NP0):
            a("buffer_load_dword v254, v255, s[84:87], s89 offen offset:%d" % (64 * i))

    a("s_mov_b32 s7, 0x400000")
    a("s_cmp_eq_u32 s5, 1")
    a("s_cbranch_scc1 proj_ckv")
    set_params("cur", 28, 29, 0x400000, 8192, "s61")
    a_dma(0, 2)
    a_dma(1, 3)
    a_dma(2, 4)
    dma(0, "cur")
    prefetch0()
    a("v_mov_b32 v16, 0")
    a("v_mov_b32 v17, 0")
    a("v_mov_b32 v18, 0")
    a("v_mov_b32 v19, 0")
    W(12 + NP0); a_read(0, 2); L0(); a_dma(3, 2)
    W(12 + NP0); a_read(1, 3); L0(); a_dma(4, 3)
    W(12 + NP0); a_read(2, 4); L0(); a_dma(5, 4)
    dma(1, "cur")
    stats(0)
    W(12); a_read(3, 2); L0(); a_dma(6, 2)
    W(12); a_read(4, 3); L0(); a_dma(7, 3)
    stats(1)
    W(12); a_read(5, 4); L0()
    stats(2)
    W(4); a_read(6, 2)
    W(0); a_read(7, 3); L0()
    a("s_barrier")
    dma(2, "cur")
    dma(3, "cur")
    stats(3)
    a.stamp()
    a("v_add_f32 v16, v16, v17")
    a("v_add_f32 v18, v18, v19")
    a("v_mov_b32 v17, v16")
    a("v_mov_b32 v19, v18")
    a.nop(2)
    a("v_permlane32_swap_b32 v16, v17")
    a("v_permlane32_swap_b32 v18, v19")
    a.nop(2)
    a("v_add_f32 v16, v16, v17")
    a("v_add_f32 v18, v18, v19")
    a("v_mul_f32 v16, 0x3b000000, v16")
    a("v_mul_f32 v18, 0x3b000000, v18")
    a("v_fma_f32 v18, -v16, v16, v18")
    a("v_max_f32 v18, 0, v18")
    a("v_cvt_pk_bf16_f32 v16, v16, v18")
    a("v_and_b32 v18, 0xffff0000, v16")
    a("v_lshlrev_b32 v16, 16, v16")
    a("v_add_f32 v18, 0x3727c5ac, v18")
    a("v_cvt_pk_bf16_f32 v18, v18, v18")
    a("v_lshlrev_b32 v18, 16, v18")
    a("v_sqrt_f32 v18, v18")
    a("s_nop 0")
    a("v_cvt_pk_bf16_f32 v18, v18, v18")
    a("v_lshlrev_b32 v18, 16, v18")
    a("v_rcp_f32 v18, v18")
    a("v_mov_b32 v%d, v16" % V_LNM)
    a("v_mov_b32 v%d, v16" % (V_LNM + 1))
    a("v_mov_b32 v%d, v18" % V_LNR)
    a("v_mul_f32 v%d, 0x%08x, v18" % (V_LNR + 1, QSC))
    reads(0, 0, 0)
    for x in norm_ops(0):
        a(x)
    a.stamp()

    def out_q0():
        a("s_add_u32 s56, s63, 0x%x" % QF)

    def out_q1():
        a("s_add_u32 s56, s64, 0x%x" % QF)

    def next_q1():
        set_params("next", 28, 29, 0x400000, 8192, "s62")

    def next_h():
        a("s_cmp_lt_u32 s4, 14")
        a("s_cselect_b32 s66, 0x1c0000, 0")
        set_params("next", 38, 39, "s66", 3584, "s46")

    def next_none():
        a("s_mov_b32 s66, 0")
        set_params("next", 38, 39, "s66", 3584, "s46")

    def out_h():
        a("s_mul_i32 s56, s59, %d" % AF_BLK)
        a("s_lshl_b32 s66, s4, 13")
        a("s_add_u32 s56, s56, s66")
        a("s_add_u32 s56, s56, 0x%x" % (AF + 256 * 1024))

    chunk("Q", next_q1, out_q0, None, True, "xn")
    chunk("Q", next_h, out_q1, "Q", True, None, True)
    a("s_cmp_lt_u32 s4, 14")
    a("s_cbranch_scc1 proj_h")
    epilogue("Q")
    if "nopf2" not in EXPF:
        a("s_sub_u32 s88, s4, 14")
        a("s_lshl_b32 s89, s3, 1")
        a("s_add_u32 s88, s88, s89")
        a("s_lshl_b32 s88, s88, 3")
        a("s_add_u32 s88, s88, s6")
        a("v_lshlrev_b32 v255, 7, v1")
        a("s_mov_b32 s84, s34")
        a("s_mov_b32 s85, s35")
        a("s_mov_b32 s86, 0x400000")
        a("s_mov_b32 s87, 0x20000")
        a("s_lshl_b32 s89, s88, 15")
        for i in range(4):
            a("buffer_load_dword v254, v255, s[84:87], s89 offen")
            a("buffer_load_dword v254, v255, s[84:87], s89 offen offset:64")
            a("s_add_u32 s89, s89, 8192")
        a("s_mov_b32 s84, s42")
        a("s_mov_b32 s85, s43")
        a("s_mov_b32 s86, 0x1c0000")
        a("s_lshl_b32 s89, s88, 14")
        for i in range(2):
            a("buffer_load_dword v254, v255, s[84:87], s89 offen")
            a("buffer_load_dword v254, v255, s[84:87], s89 offen offset:64")
            a("s_add_u32 s89, s89, 8192")
    a("s_branch proj_end")
    a.label("proj_h")
    chunk("H", next_none, out_h, "Q", False)
    a.stamp_flush(0)
    a("s_branch proj_end")
    a.nst = 2

    a.label("proj_ckv")
    set_params("cur", 30, 31, 0x400000, 8192, "s61")
    dma(0, "cur")
    a_dma(0, 2)
    a_dma(1, 3)
    a_dma(2, 4)
    dma(1, "cur")
    prefetch0()
    W(12 + NP0); a_read(0, 2); L0(); a_dma(3, 2)
    W(12 + NP0); a_read(1, 3); L0(); a_dma(4, 3)
    a("s_barrier")
    reads(0, 0, 0)

    def out_k0():
        a("s_add_u32 s56, s63, 0x%x" % KF)

    def out_k1():
        a("s_add_u32 s56, s64, 0x%x" % KF)

    def out_v0():
        a("s_add_u32 s56, s63, 0x%x" % VF)

    def out_v1():
        a("s_add_u32 s56, s64, 0x%x" % VF)

    chunk("QK", lambda: set_params("next", 30, 31, 0x400000, 8192, "s62"), out_k0, None, True, "ckv")
    chunk("QK", lambda: set_params("next", 32, 33, 0x400000, 8192, "s61"), out_k1, "QK", True, None, True)
    chunk("V", lambda: set_params("next", 32, 33, 0x400000, 8192, "s62"), out_v0, "QK", True)
    chunk("V", next_none, out_v1, "V", False)
    a.stamp_flush(int(STAMP) if STAMP else 0)
    a.label("proj_end")
    a.ostamp()
    a.gridbar(0)
    a.ostamp()


def descriptor(a, name, vgpr, sgpr, accum):
    a.raw(".p2align 6")
    a.raw(".amdhsa_kernel %s" % name)
    a.raw("  .amdhsa_next_free_vgpr %d" % vgpr)
    a.raw("  .amdhsa_next_free_sgpr %d" % sgpr)
    a.raw("  .amdhsa_accum_offset %d" % accum)
    a.raw("  .amdhsa_group_segment_fixed_size 0")
    a.raw("  .amdhsa_kernarg_size 112")
    a.raw("  .amdhsa_user_sgpr_count 2")
    a.raw("  .amdhsa_user_sgpr_kernarg_segment_ptr 1")
    a.raw("  .amdhsa_system_sgpr_workgroup_id_x 1")
    a.raw(".end_amdhsa_kernel")


def main():
    from gen_rest import gen_attn, gen_ogemm, gen_reduce
    a = Asm()
    hdr = open("cdna_kernels/%s.s.ref" % NAME).read().split("\n")
    for l in hdr:
        if l.startswith(";") and "@launch" not in l:
            a.raw(l)
        elif not l.startswith(";"):
            break
    a.raw("; @launch kernel=mega_kernel grid=(256,1,1) block=(512,1,1) lds=163840")
    a.raw('.amdgcn_target "amdgcn-amd-amdhsa--gfx950"')
    a.raw(".text")
    a.raw(".globl mega_kernel")
    a.raw(".p2align 8")
    a.raw(".type mega_kernel,@function")
    gen_proj(a)
    gen_attn(a)
    gen_ogemm(a)
    gen_reduce(a)
    a.raw('.section .rodata,"a"')
    descriptor(a, "mega_kernel", 256, 102, 256)
    out = sys.argv[1] if len(sys.argv) > 1 else "cdna_kernels/%s.s" % NAME
    open(out, "w").write("\n".join(a.lines) + "\n")


if __name__ == "__main__":
    main()
```

```python
import sys

NAME = "parallel_sum__compressed_kv_cla__dense_activation_squared_relu__prompt"

MB = 1 << 20
QF = 0
KF = 16 * MB
VF = 32 * MB
AF = 49 * MB
AF_BLK = 368 * 1024
PART = 80 * MB
CTR = 100 * MB
import math, struct
QSC = struct.unpack("<I", struct.pack("<f", (128 ** -0.5) * math.log2(math.e)))[0]


import os
STAMP = os.environ.get("STAMP")


class Asm:
    def __init__(self):
        self.lines = []
        self.nst = 0

    def stamp(self):
        if not STAMP:
            return
        self("s_memtime s[98:99]")
        self("s_waitcnt lgkmcnt(0)")
        self("s_mov_b32 s%d, s98" % (68 + self.nst))
        self.nst += 1

    def stamp_flush(self, wgsel, dbgptr_off=96):
        if not STAMP:
            return
        L = "stf_%d" % len(self.lines)
        self("s_cmp_lg_u32 s2, %d" % wgsel)
        self("s_cbranch_scc1 %s" % L)
        self("s_load_dwordx2 s[96:97], s[0:1], %d" % dbgptr_off)
        self("s_waitcnt lgkmcnt(0)")
        self("s_mov_b32 s98, 4096")
        self("s_mov_b32 s99, 0x20000")
        self("v_cmp_eq_u32 vcc, 0, v0")
        self("s_and_saveexec_b64 s[94:95], vcc")
        self("s_cbranch_execz %s" % L)
        for i in range(self.nst):
            self("v_mov_b32 v1, s%d" % (68 + i))
            self("v_mov_b32 v2, %d" % (4 * i + 512 * (self.phase + 1)))
            self("buffer_store_dword v1, v2, s[96:99], 0 offen")
        self.label(L)
        self("s_mov_b64 exec, -1")
        self.nst = 0

    phase = 0
    on = 0

    def ostamp(self, last=False):
        OST = os.environ.get("OST")
        if not OST:
            return
        a = self
        a("s_memrealtime s[98:99]")
        a("s_waitcnt lgkmcnt(0)")
        a("s_mov_b32 s%d, s98" % (68 + self.on if self.on else 93))
        self.on += 1
        if last:
            a("s_cmp_lg_u32 s2, %s" % OST)
            a("s_cbranch_scc1 ost_skip")
            a("s_load_dwordx2 s[96:97], s[0:1], 96")
            a("s_mov_b32 s98, 256")
            a("s_mov_b32 s99, 0x20000")
            a("v_cmp_eq_u32 vcc, 0, v0")
            a("s_and_saveexec_b64 s[94:95], vcc")
            a("s_cbranch_execz ost_skip")
            a("s_waitcnt lgkmcnt(0)")
            for i in range(1, self.on):
                a("s_sub_u32 s94, s%d, s93" % (68 + i))
                a("v_mov_b32 v1, s94")
                a("v_mov_b32 v2, %d" % (28 + 4 * i))
                a("buffer_store_dword v1, v2, s[96:99], 0 offen")
            a.label("ost_skip")
            a("s_mov_b64 exec, -1")

    def gb_signal(self, k):
        a = self
        a("s_load_dwordx2 s[80:81], s[0:1], 96")
        a("s_load_dwordx2 s[84:85], s[0:1], 104")
        a("s_mov_b32 s82, 256")
        a("s_mov_b32 s83, 0x20000")
        a("s_mov_b32 s86, 0x10000000")
        a("s_mov_b32 s87, 0x20000")
        a("s_mov_b64 exec, 1")
        a("v_mov_b32 v12, 1")
        a("v_mov_b32 v13, %d" % (4 * k))
        a("v_mov_b32 v14, 1")
        a("v_mov_b32 v15, 0")
        a("s_and_b32 s88, s2, 15")
        a("s_lshl_b32 s88, s88, 12")
        a("s_add_u32 s88, s88, 0x%x" % (CTR + (k - 1) * 65536))
        a("s_waitcnt lgkmcnt(0)")
        a("buffer_atomic_add v14, v15, s[84:87], s88 offen sc0 sc1")
        a("s_waitcnt vmcnt(0)")
        a("v_readfirstlane_b32 s89, v14")
        a("s_cmp_lg_u32 s89, 15")
        a("s_cbranch_scc1 gs_nr%d" % k)
        a("buffer_atomic_add v12, v13, s[80:83], 0 offen sc1")
        a.label("gs_nr%d" % k)
        a("s_mov_b64 exec, -1")

    def gb_poll(self, k):
        a = self
        a("s_mov_b64 exec, 1")
        a("v_mov_b32 v13, %d" % (4 * k))
        a("s_mov_b32 s88, 0")
        a.label("gp_loop%d" % k)
        a("buffer_load_dword v14, v13, s[80:83], 0 offen sc1")
        a("s_waitcnt vmcnt(0)")
        a("v_readfirstlane_b32 s89, v14")
        a("s_cmp_ge_u32 s89, 16")
        a("s_cbranch_scc1 gp_done%d" % k)
        a("s_add_u32 s88, s88, 1")
        a("s_cmp_gt_u32 s88, 40000")
        a("s_cbranch_scc1 gp_done%d" % k)
        a("s_sleep 8")
        a("s_branch gp_loop%d" % k)
        a.label("gp_done%d" % k)
        a("s_mov_b64 exec, -1")

    def gridbar(self, k):
        a = self
        if STAMP:
            a("s_memrealtime s[14:15]")
        if k == 0:
            a("s_cmp_ge_u32 s2, 96")
            a("s_cbranch_scc1 gb_noinit")
            a("s_load_dwordx2 s[8:9], s[0:1], 104")
            a("s_mov_b32 s10, 0x10000000")
            a("s_mov_b32 s11, 0x20000")
            a("s_lshl_b32 s12, s2, 12")
            a("s_add_u32 s12, s12, 0x%x" % CTR)
            a("v_mov_b32 v1, 0")
            a("v_mov_b32 v2, 0")
            a("s_waitcnt lgkmcnt(0)")
            a("buffer_store_dword v1, v2, s[8:11], s12 offen sc0 sc1")
            a.label("gb_noinit")
        a("s_waitcnt vmcnt(0) lgkmcnt(0)")
        a("s_barrier")
        if STAMP:
            a("s_memrealtime s[16:17]")
        a("v_lshrrev_b32 v1, 6, v0")
        a("s_nop 0")
        a("v_readfirstlane_b32 s6, v1")
        a("s_cmp_lg_u32 s6, 0")
        a("s_cbranch_scc1 gb_wait%d" % k)
        a("s_load_dwordx2 s[8:9], s[0:1], 96")
        a("s_load_dwordx2 s[24:25], s[0:1], 104")
        a("s_mov_b32 s10, 256")
        a("s_mov_b32 s11, 0x20000")
        a("s_mov_b32 s26, 0x10000000")
        a("s_mov_b32 s27, 0x20000")
        a("s_mov_b64 exec, 1")
        a("v_mov_b32 v1, 1")
        a("v_mov_b32 v2, %d" % (4 * k))
        a("s_waitcnt lgkmcnt(0)")
        tgt = 256
        if True:
            tgt = 16
            a("s_and_b32 s12, s2, 15")
            a("v_mov_b32 v3, 1")
            a("v_mov_b32 v4, 0")
            if k > 0:
                a("s_lshl_b32 s12, s12, 12")
                a("s_add_u32 s12, s12, 0x%x" % (CTR + (k - 1) * 65536))
                a("buffer_atomic_add v3, v4, s[24:27], s12 offen sc0 sc1")
            else:
                a("s_lshl_b32 s12, s12, 2")
                a("s_add_u32 s12, s12, 128")
                a("buffer_atomic_add v3, v4, s[8:11], s12 offen sc0 sc1")
            a("s_waitcnt vmcnt(0)")
            a("v_readfirstlane_b32 s13, v3")
            a("s_cmp_lg_u32 s13, 15")
            a("s_cbranch_scc1 gb_nr%d" % k)
        a("buffer_atomic_add v1, v2, s[8:11], 0 offen sc1")
        if True:
            a.label("gb_nr%d" % k)
        a("s_mov_b32 s12, 0")
        a.label("gb_loop%d" % k)
        a("buffer_load_dword v3, v2, s[8:11], 0 offen %s" % os.environ.get("PSC", "sc1"))
        a("s_waitcnt vmcnt(0)")
        a("v_readfirstlane_b32 s13, v3")
        a("s_cmp_ge_u32 s13, %d" % tgt)
        a("s_cbranch_scc1 gb_done%d" % k)
        a("s_add_u32 s12, s12, 1")
        a("s_cmp_gt_u32 s12, 40000")
        a("s_cbranch_scc1 gb_done%d" % k)
        a("s_sleep %s" % os.environ.get("SLEEP", "8"))
        a("s_branch gb_loop%d" % k)
        a.label("gb_done%d" % k)
        if STAMP:
            a("s_memrealtime s[18:19]")
            a("s_mov_b32 s10, 65536")
            a("s_lshl_b32 s20, s2, 4")
            a("s_add_u32 s20, s20, %d" % (4096 + 4096 * k))
            a("s_waitcnt lgkmcnt(0)")
            a("s_mov_b64 exec, 1")
            a("v_mov_b32 v4, s14")
            a("v_mov_b32 v5, s16")
            a("v_mov_b32 v6, s18")
            a("v_mov_b32 v7, s92")
            a("v_mov_b32 v2, 0")
            a("buffer_store_dwordx4 v[4:7], v2, s[8:11], s20 offen")
        a("s_mov_b64 exec, -1")
        a("s_waitcnt lgkmcnt(0)")
        a.label("gb_wait%d" % k)
        a("s_barrier")
        if "inv" in os.environ.get("EXP", ""):
            a("buffer_inv sc1")
        self.phase = k + 1

    inloop = False

    def __call__(self, s):
        EXP = os.environ.get("EXP", "")
        if self.inloop:
            if "nomfma" in EXP and s.startswith("v_mfma"):
                return
            if "novalu" in EXP and s.startswith("v_") and not s.startswith("v_mfma") and not s.startswith("v_cmp") and "0x1ffff" not in s and "0x8000" not in s and not s.startswith("v_mov") and not s.startswith("v_add_u32"):
                return
            if "nolds" in EXP and s.startswith("ds_read"):
                return
            if "nodma" in EXP and s.startswith("buffer_load"):
                return
            if "nobar" in EXP and s.startswith("s_barrier"):
                return
        if "nosc1" in EXP and s.startswith("buffer_store") and s.endswith(" sc1"):
            s = s[:-4]
        self.lines.append("  " + s)

    def label(self, s):
        self.lines.append(s + ":")

    def raw(self, s):
        self.lines.append(s)

    def nop(self, n):
        while n > 0:
            k = min(n, 16)
            self("s_nop %d" % (k - 1))
            n -= k


def vr(a, n):
    return "v[%d:%d]" % (a, a + n - 1)


def sr(a, n):
    return "s[%d:%d]" % (a, a + n - 1)


def gen_proj(a):
    V_LANE = 1
    V_TR = 2
    V_OFFC = 10
    V_OFFN = 11
    V_ST = 12
    V_T0 = 13
    V_B = 16
    V_ACC = 48
    V_A = 112
    V_ROWI = 13
    V_SWZ = 14
    V_T = 15
    V_AOFF = 240

    a.label("mega_kernel")
    a("s_cmp_lt_u32 s2, 256")
    a("s_cbranch_scc1 proj_start")
    a("s_endpgm")
    a.label("proj_start")
    a.ostamp()
    if STAMP:
        a("s_memrealtime s[92:93]")
    a.stamp()
    a("s_load_dwordx2 s[8:9], s[0:1], 96")
    a("s_load_dwordx16 s[24:39], s[0:1], 0")
    a("s_load_dwordx4 s[40:43], s[0:1], 64")
    a("s_load_dwordx2 s[44:45], s[0:1], 104")
    EXPF = os.environ.get("EXP", "")
    if "tick" in EXPF:
        a("v_lshrrev_b32 v1, 6, v0")
        a("v_lshlrev_b32 v4, 14, v1")
        a("v_add_u32 v4, 0x8000, v4")
        a("v_readfirstlane_b32 s6, v1")
        a("s_getreg_b32 s4, hwreg(HW_REG_XCC_ID)")
        a("s_and_b32 s4, s4, 7")
        if "tkforce" in EXPF:
            a("s_min_u32 s4, s4, 4")
        a("s_mov_b32 s10, 256")
        a("s_mov_b32 s11, 0x20000")
        a("s_lshl_b32 s5, s4, 2")
        a("s_add_u32 s5, s5, 192")
        a("v_mov_b32 v2, s5")
        a("v_mov_b32 v3, 1")
        a("s_cmp_eq_u32 s6, 0")
        a("s_cbranch_scc1 tk_w0")
        a("s_cmp_lg_u32 s6, 7")
        a("s_cbranch_scc1 tk_wait")
        a("s_mov_b64 exec, 1")
        a("s_waitcnt lgkmcnt(0)")
        a("v_subrev_u32 v2, 160, v2")
        a("buffer_atomic_add v3, v2, s[8:11], 0 offen sc1")
        a("s_mov_b64 exec, -1")
        a("s_branch tk_wait")
        a.label("tk_w0")
        a("s_mov_b64 exec, 1")
        a("s_waitcnt lgkmcnt(0)")
        a("buffer_atomic_add v3, v2, s[8:11], 0 offen sc0%s" % (" sc1" if "tkforce" in EXPF or "tkglob" in EXPF else ""))
        a("s_waitcnt vmcnt(0)")
        a("v_readfirstlane_b32 s5, v3")
        a("s_cmp_lt_u32 s5, 32")
        a("s_cbranch_scc1 tk_got")
        a("s_mov_b32 s7, 0")
        a("v_mov_b32 v2, 32")
        a.label("tk_poll")
        a("buffer_load_dwordx4 v[8:11], v2, s[8:11], 0 offen sc1")
        a("buffer_load_dwordx4 v[12:15], v2, s[8:11], 0 offen offset:16 sc1")
        a("s_waitcnt vmcnt(0)")
        a("s_mov_b32 s12, 0")
        for i in range(8):
            a("v_readfirstlane_b32 s%d, v%d" % (48 + i, 8 + i))
            a("s_add_u32 s12, s12, s%d" % (48 + i))
        a("s_cmp_ge_u32 s12, 256")
        a("s_cbranch_scc1 tk_full")
        a("s_add_u32 s7, s7, 1")
        a("s_sleep 8")
        a("s_cmp_lt_u32 s7, 40000")
        a("s_cbranch_scc1 tk_poll")
        a.label("tk_fail")
        a("s_lshr_b32 s5, s2, 3")
        a("s_and_b32 s4, s2, 7")
        a("s_branch tk_got")
        a.label("tk_full")
        a("s_sub_u32 s5, s5, 32")
        for i in range(7):
            a("s_max_u32 s12, s%d, 32" % (48 + i))
            a("s_sub_u32 s12, s12, 32")
            a("s_cmp_gt_u32 s4, %d" % i)
            a("s_cselect_b32 s12, s12, 0")
            a("s_add_u32 s5, s5, s12")
        for i in range(8):
            a("s_min_u32 s12, s%d, 32" % (48 + i))
            a("s_sub_u32 s13, 32, s12")
            a("s_mov_b32 s4, %d" % i)
            a("s_cmp_lt_u32 s5, s13")
            a("s_cbranch_scc1 tk_slot")
            a("s_sub_u32 s5, s5, s13")
        a("s_branch tk_fail")
        a.label("tk_slot")
        a("s_add_u32 s5, s5, s12")
        a.label("tk_got")
        a("s_lshl_b32 s5, s5, 3")
        a("s_add_u32 s5, s5, s4")
        a("s_mov_b64 exec, 0xff")
        a("v_lshlrev_b32 v2, 14, v0")
        a("v_add_u32 v2, 0x8000, v2")
        a("v_mov_b32 v3, s5")
        a("ds_write_b32 v2, v3")
        a("s_mov_b64 exec, -1")
        a("s_waitcnt lgkmcnt(0)")
        a.label("tk_wait")
        a("s_barrier")
        a("ds_read_b32 v3, v4")
        a("s_waitcnt lgkmcnt(0)")
        a("v_readfirstlane_b32 s2, v3")
        a("s_and_b32 s2, s2, 255")
        if STAMP:
            a("s_memrealtime s[96:97]")
            a("s_waitcnt lgkmcnt(0)")
            a("s_mov_b32 s93, s96")
    PM = os.environ.get("PM", "5")
    if PM == "0":
        a("s_lshr_b32 s3, s2, 5")
        a("s_and_b32 s4, s2, 31")
    elif PM == "1":
        a("s_and_b32 s3, s2, 7")
        a("s_lshr_b32 s4, s2, 3")
    elif PM == "2":
        a("s_and_b32 s3, s2, 3")
        a("s_bfe_u32 s4, s2, 0x10003")
        a("s_lshl_b32 s4, s4, 2")
        a("s_or_b32 s3, s3, s4")
        a("s_bfe_u32 s4, s2, 0x10002")
        a("s_lshr_b32 s5, s2, 4")
        a("s_lshl_b32 s5, s5, 1")
        a("s_or_b32 s4, s4, s5")
    elif PM == "3":
        a("s_and_b32 s3, s2, 1")
        a("s_bfe_u32 s4, s2, 0x20003")
        a("s_lshl_b32 s4, s4, 1")
        a("s_or_b32 s3, s3, s4")
        a("s_bfe_u32 s4, s2, 0x20001")
        a("s_lshr_b32 s5, s2, 5")
        a("s_lshl_b32 s5, s5, 2")
        a("s_or_b32 s4, s4, s5")
    elif PM == "4":
        a("s_lshr_b32 s3, s2, 5")
        a("s_bfe_u32 s4, s2, 0x40001")
        a("s_and_b32 s5, s2, 1")
        a("s_lshl_b32 s5, s5, 4")
        a("s_or_b32 s4, s4, s5")
    elif PM == "5":
        a("s_bfe_u32 s3, s2, 0x10001")
        a("s_bfe_u32 s4, s2, 0x20003")
        a("s_lshl_b32 s4, s4, 1")
        a("s_or_b32 s3, s3, s4")
        a("s_bfe_u32 s4, s2, 0x10002")
        a("s_lshr_b32 s5, s2, 5")
        a("s_lshl_b32 s5, s5, 1")
        a("s_or_b32 s4, s4, s5")
        a("s_and_b32 s5, s2, 1")
        a("s_lshl_b32 s5, s5, 4")
        a("s_or_b32 s4, s4, s5")
    elif PM == "6":
        a("s_bfe_u32 s3, s2, 0x30001")
        a("s_lshr_b32 s4, s2, 4")
        a("s_and_b32 s5, s2, 1")
        a("s_lshl_b32 s5, s5, 4")
        a("s_or_b32 s4, s4, s5")
    a("v_lshrrev_b32 v1, 6, v0")
    a("s_nop 0")
    a("v_readfirstlane_b32 s6, v1")
    a("v_and_b32 v1, 63, v0")
    a("s_waitcnt lgkmcnt(0)")
    a.stamp()
    a("s_cmp_lt_u32 s4, 16")
    a("s_cselect_b32 s8, s24, s26")
    a("s_cselect_b32 s9, s25, s27")
    a("s_cselect_b32 s5, 0, 1")
    a("s_and_b32 s4, s4, 15")
    a("s_mov_b32 s10, 0x200000")
    a("s_mov_b32 s11, 0x20000")
    a("s_mov_b32 s16, s44")
    a("s_mov_b32 s17, s45")
    a("s_mov_b32 s18, 0x10000000")
    a("s_mov_b32 s19, 0x20000")
    a("s_mov_b32 s20, s40")
    a("s_mov_b32 s21, s41")
    a("s_mov_b32 s22, 3584")
    a("s_mov_b32 s23, 0x20000")
    a("s_mov_b32 s15, 0x20000")
    a("s_mov_b32 s51, 0x20000")
    a("s_lshl_b32 s58, s6, 12")
    a("s_lshl_b32 s59, s3, 3")
    a("s_add_u32 s59, s59, s6")
    a("v_and_b32 v13, 15, v1")
    a("v_lshlrev_b32 v13, 10, v13")
    a("v_lshrrev_b32 v14, 4, v1")
    a("v_lshlrev_b32 v14, 4, v14")
    a("v_add_u32 v13, v13, v14")
    a("s_movk_i32 s65, 0x4000")
    a("s_lshl_b32 s60, s59, 15")
    a("v_add_u32 v13, s60, v13")
    a("v_mov_b32 v%d, v13" % V_AOFF)

    def aloads(lo, hi):
        for s in range(lo, hi):
            a("buffer_load_dwordx4 %s, v%d, s[8:11], %s offen offset:%d" % (
                vr(V_A + 4 * s, 4), V_AOFF, "s65" if s & 1 else "0", (s >> 1) * 64))

    def aswaps(lo, hi):
        for s in range(lo, hi, 2):
            for j in range(4):
                a("v_permlane16_swap_b32 v%d, v%d" % (V_A + 4 * s + j, V_A + 4 * s + 4 + j))
        a("s_nop 1")
    a("v_bfe_u32 v13, v1, 2, 2")
    a("v_lshrrev_b32 v14, 5, v1")
    a("v_lshl_add_u32 v14, v14, 4, v13")
    a("v_lshlrev_b32 v14, 8, v14")
    a("v_bfe_u32 v15, v1, 4, 1")
    a("v_lshl_add_u32 v14, v15, 5, v14")
    a("v_and_b32 v15, 3, v1")
    a("v_lshl_add_u32 v14, v15, 3, v14")
    a("v_lshlrev_b32 v13, 6, v13")
    for nt in range(4):
        a("v_xor_b32 v15, %d, v13" % (nt << 6))
        a("v_add_u32 v%d, v14, v15" % (V_TR + nt))
        a("v_add_u32 v%d, 0x10000, v%d" % (V_TR + 4 + nt, V_TR + nt))
    a("v_lshlrev_b32 v%d, 4, v1" % V_ST)
    a("v_lshrrev_b32 v13, 4, v1")
    a("v_bfe_u32 v14, v1, 2, 2")
    a("v_xor_b32 v14, v14, v13")
    a("v_lshlrev_b32 v14, 6, v14")
    a("v_and_b32 v15, 3, v1")
    a("v_lshl_add_u32 v14, v15, 4, v14")
    a("s_lshl_b32 s60, s6, 4")
    a("v_add_u32 v13, s60, v13")

    def set_params(which, wlo, whi, nrec, ldw, colexpr_reg):
        base = 12 if which == "cur" else 48
        sl, sc = (52, 53) if which == "cur" else (54, 55)
        voff = V_OFFC if which == "cur" else V_OFFN
        a("s_mov_b32 s%d, s%d" % (base, wlo))
        a("s_mov_b32 s%d, s%d" % (base + 1, whi))
        if isinstance(nrec, str):
            a("s_mov_b32 s%d, %s" % (base + 2, nrec))
        else:
            a("s_mov_b32 s%d, 0x%x" % (base + 2, nrec))
        a("s_mov_b32 s%d, %d" % (sl, ldw))
        a("s_mov_b32 s%d, %s" % (sc, colexpr_reg))
        a("v_mul_lo_u32 v%d, v%d, s%d" % (voff, V_ROWI, sl))
        a("v_add_u32 v%d, v%d, v%d" % (voff, voff, V_SWZ))

    def dma(kc, which):
        base = 12 if which == "cur" else 48
        sl, sc = (52, 53) if which == "cur" else (54, 55)
        voff = V_OFFC if which == "cur" else V_OFFN
        for i in range(4):
            a("s_add_u32 m0, s58, %d" % (kc * 32768 + i * 1024))
            a("s_mul_i32 s57, s%d, %d" % (sl, kc * 128 + 4 * i))
            a("s_add_u32 s57, s57, s%d" % sc)
            a("buffer_load_dwordx4 v%d, %s, s57 offen lds" % (voff, sr(base, 4)))

    def reads(kc, s, setidx):
        hi = 4 if kc >= 2 else 0
        off = (kc & 1) * 32768 + (s >> 1) * 8192 + (s & 1) * 2048
        for nt in range(4):
            for ird in range(2):
                a("ds_read_b64_tr_b16 %s, v%d offset:%d" % (
                    vr(V_B + setidx * 16 + nt * 4 + ird * 2, 2), V_TR + hi + nt, off + ird * 1024))

    def epi_part(kind, nt):
        if kind == "Q":
            for i in range(16):
                a("v_mul_f32 v%d, v%d, v%d" % (V_ACC + 16 * nt + i, V_LNR + 1, V_ACC + 16 * nt + i))
        for t in range(2):
            d = V_ACC + 16 * nt + 8 * t
            for p in range(4):
                x0 = V_ACC + 16 * nt + 8 * t + 2 * p
                a("v_cvt_pk_bf16_f32 v%d, v%d, v%d" % (d + p, x0, x0 + 1))
            a("buffer_store_dwordx4 %s, v%d, s[16:19], s%d offen offset:%d sc1" % (
                vr(d, 4), V_ST, 90 if nt < 2 else 91, ((nt * 2 + t) & 3) * 1024))
        a("s_nop 1")

    def compute(kc, kind, extra=None, prev=None, hooks=None):
        extra = list(extra or [])
        per = -(-len(extra) // 32)
        for s in range(8):
            if hooks and s in hooks:
                hooks[s]()
            if s < 7:
                reads(kc, s + 1, (s + 1) & 1)
            else:
                reads((kc + 1) & 3, 0, 0)
            a("s_waitcnt lgkmcnt(8)")
            ks = kc * 8 + s
            for nt in range(4):
                acc = vr(V_ACC + 16 * nt, 16)
                wf = vr(V_B + (s & 1) * 16 + nt * 4, 4)
                af = vr(V_A + 4 * ks, 4)
                c = "0" if ks == 0 else acc
                if prev and ks == 0:
                    epi_part(prev, nt)
                if kind == "V":
                    a("v_mfma_f32_32x32x16_bf16 %s, %s, %s, %s" % (acc, af, wf, c))
                else:
                    a("v_mfma_f32_32x32x16_bf16 %s, %s, %s, %s" % (acc, wf, af, c))
                for x in extra[:per]:
                    a(x)
                extra = extra[per:]
        assert not extra

    def aload_ops(lo, hi):
        ops = []
        for s in range(lo, hi):
            ops.append("buffer_load_dwordx4 %s, v%d, s[8:11], %s offen offset:%d" % (
                vr(V_A + 4 * s, 4), V_AOFF, "s65" if s & 1 else "0", (s >> 1) * 64))
            ops += ["s_nop 0"] * 3
        return ops

    V_LNM = 244
    V_LNR = 246
    V_LNT = 248

    def norm_ops(q):
        ops = []
        for i in range(32 * q, 32 * q + 32):
            r = V_A + i
            t = 248 + 2 * (i % 3)
            ops.append("v_lshlrev_b32 v%d, 16, v%d" % (t, r))
            ops.append("v_and_b32 v%d, 0xffff0000, v%d" % (t + 1, r))
            ops.append("v_pk_add_f32 %s, %s, %s neg_lo:[0,1] neg_hi:[0,1]" % (vr(t, 2), vr(t, 2), vr(V_LNM, 2)))
            ops.append("v_cvt_pk_bf16_f32 v%d, v%d, v%d" % (r, t, t + 1))
        return ops

    def epilogue(kind):
        if kind == "H":
            a("s_waitcnt lgkmcnt(0)")
            a("v_lshrrev_b32 v15, 5, v1")
            a("v_lshlrev_b32 v15, 3, v15")
            for nt in range(4):
                for q in range(4):
                    a("buffer_load_dwordx2 %s, v15, s[20:23], s53 offen offset:%d" % (
                        vr(V_B + (nt * 4 + q) * 2, 2), 64 * nt + 16 * q))
            a.nop(12)
            for i in range(64):
                a("v_mul_f32 v%d, v%d, v%d" % (V_ACC + i, V_LNR, V_ACC + i))
            a("s_waitcnt vmcnt(0)")
            for nt in range(4):
                for q in range(4):
                    r0 = V_ACC + 16 * nt + 4 * q
                    b0 = V_B + (nt * 4 + q) * 2
                    for p in range(2):
                        x0, x1 = r0 + 2 * p, r0 + 2 * p + 1
                        bb = b0 + p
                        a("v_cvt_pk_bf16_f32 v15, v%d, v%d" % (x0, x1))
                        a("v_lshlrev_b32 v%d, 16, v15" % x0)
                        a("v_and_b32 v%d, 0xffff0000, v15" % x1)
                        a("v_lshlrev_b32 v15, 16, v%d" % bb)
                        a("v_add_f32 v%d, v%d, v15" % (x0, x0))
                        a("v_and_b32 v15, 0xffff0000, v%d" % bb)
                        a("v_add_f32 v%d, v%d, v15" % (x1, x1))
                        a("v_cvt_pk_bf16_f32 v15, v%d, v%d" % (x0, x1))
                        a("v_lshlrev_b32 v%d, 16, v15" % x0)
                        a("v_and_b32 v%d, 0xffff0000, v15" % x1)
                        a("v_max_f32 v%d, 0, v%d" % (x0, x0))
                        a("v_max_f32 v%d, 0, v%d" % (x1, x1))
                        a("v_mul_f32 v%d, v%d, v%d" % (x0, x0, x0))
                        a("v_mul_f32 v%d, v%d, v%d" % (x1, x1, x1))
        else:
            a.nop(12)
        if kind == "Q":
            for i in range(64):
                a("v_mul_f32 v%d, v%d, v%d" % (V_ACC + i, V_LNR + 1, V_ACC + i))
        a("s_add_u32 s67, s56, 4096")
        for nt in range(4):
            for t in range(2):
                d = V_ACC + 16 * nt + 8 * t
                for p in range(4):
                    x0 = V_ACC + 16 * nt + 8 * t + 2 * p
                    a("v_cvt_pk_bf16_f32 v%d, v%d, v%d" % (d + p, x0, x0 + 1))
                a("buffer_store_dwordx4 %s, v%d, s[16:19], s%d offen offset:%d sc1" % (
                    vr(d, 4), V_ST, 56 if nt < 2 else 67, ((nt * 2 + t) & 3) * 1024))
        a.nop(2)

    def W(n):
        a("s_waitcnt vmcnt(%d)" % n)

    def ckv_first(kc):
        B = lambda: a("s_barrier")
        if kc == 0:
            return (lambda: None), {
                1: lambda: (W(12 + NP0), a_read(2, 4)),
                2: lambda: a_dma(5, 4),
                4: lambda: (W(8), a_read(3, 2)),
                6: lambda: (B(), dma(2, "cur"))}
        if kc == 1:
            return (lambda: (B(), a_dma(6, 0))), {
                1: lambda: (W(12), a_read(4, 3)),
                3: lambda: (W(8), a_read(5, 4)),
                6: lambda: (W(4), B(), a_dma(7, 4), dma(3, "cur"))}
        if kc == 2:
            return (lambda: (B(), dma(1, "next"))), {
                1: lambda: (W(12), a_read(6, 0)),
                3: lambda: (W(8), a_read(7, 4)),
                6: lambda: (W(4), B(), dma(0, "next"))}
        return (lambda: (B(), dma(2, "next"))), {
            7: lambda: (W(4), B())}

    def chunk(kind, set_next, set_out, prev=None, defer=False, first=None, pf=False):
        waits = (4, 12, 12, 4) if prev else (8, 4, 4, 4)
        if pf:
            waits = (4, 12 + NPF, 12 + NPF, 4)
        if prev:
            a("s_mov_b32 s90, s56")
            a("s_add_u32 s91, s56, 4096")
        set_next()
        set_out()
        for kc in range(4):
            extra = hooks = None
            if first == "ckv":
                st, hooks = ckv_first(kc)
                st()
            else:
                a("s_waitcnt vmcnt(%d)" % waits[kc])
                a("s_barrier")
                if kc < 1:
                    if not first:
                        dma(kc + 3, "cur")
                    if pf:
                        prefetch(pf)
                else:
                    dma(kc - 1, "next")
            if first == "xn" and kc < 3:
                extra = norm_ops(kc + 1)
            if kc == 0:
                a.stamp()
            compute(kc, kind, extra, prev, hooks)
        a.stamp()
        if not defer:
            epilogue(kind)
        a.stamp()
        for i in range(3):
            a("s_mov_b32 s%d, s%d" % (12 + i, 48 + i))
        a("s_mov_b32 s52, s54")
        a("s_mov_b32 s53, s55")
        a("v_mov_b32 v%d, v%d" % (V_OFFC, V_OFFN))

    a("s_lshl_b32 s61, s4, 8")
    a("s_mov_b32 s46, s61")
    if "rev" in EXPF:
        a("s_and_b32 s47, s3, 1")
        a("s_lshl_b32 s47, s47, 12")
        a("s_xor_b32 s61, s61, s47")
    a("s_xor_b32 s62, s61, 4096")
    a("s_lshl_b32 s63, s61, 11")
    a("s_lshl_b32 s64, s59, 13")
    a("s_add_u32 s63, s63, s64")
    a("s_xor_b32 s64, s63, 0x800000")
    V_AD, V_AR = 240, 241
    a("v_and_b32 v24, 7, v1")
    a("v_lshrrev_b32 v25, 3, v1")
    a("v_lshrrev_b32 v26, 1, v25")
    a("v_xor_b32 v26, v24, v26")
    a("v_lshlrev_b32 v26, 4, v26")
    a("v_lshl_add_u32 v26, v25, 10, v26")
    a("s_lshl_b32 s60, s59, 15")
    a("v_add_u32 v%d, s60, v26" % V_AD)
    a("s_lshl_b32 s66, s6, 12")
    a("v_and_b32 v24, 31, v1")
    a("v_lshrrev_b32 v25, 5, v1")
    a("v_bfe_u32 v26, v24, 1, 3")
    a("v_lshlrev_b32 v27, 1, v25")
    a("v_xor_b32 v26, v26, v27")
    a("v_lshlrev_b32 v26, 4, v26")
    a("v_lshl_add_u32 v26, v24, 7, v26")
    a("v_add_u32 v%d, s66, v26" % V_AR)
    a("v_add_u32 v%d, 0x10000, v%d" % (V_AR + 1, V_AR))
    a("v_add_u32 v%d, 0x20000, v%d" % (V_AR + 2, V_AR))

    def a_dma(e, reg):
        for j in range(4):
            a("v_xor_b32 v%d, %d, v%d" % (248 + j, 64 * (j & 1), V_AD))
            a("s_add_u32 m0, s66, %d" % (reg * 32768 + 1024 * j))
            a("s_movk_i32 s67, %d" % (8192 * j + 128 * e))
            a("buffer_load_dwordx4 v%d, s[8:11], s67 offen lds" % (248 + j))

    def a_read(e, reg):
        for s_ in range(4):
            c0 = (4 * (s_ >> 1) + (s_ & 1)) * 16
            a("v_xor_b32 v%d, %d, v%d" % (248 + s_, c0, V_AR + (reg >> 1)))
            a("ds_read_b128 %s, v%d offset:%d" % (vr(V_A + 4 * (4 * e + s_), 4), 248 + s_, (reg & 1) * 32768))

    def L0():
        a("s_waitcnt lgkmcnt(0)")

    def stats(q):
        for i in range(32 * q, 32 * q + 32):
            r = V_A + i
            t = 20 + 2 * (i & 3)
            a("v_lshlrev_b32 v%d, 16, v%d" % (t, r))
            a("v_and_b32 v%d, 0xffff0000, v%d" % (t + 1, r))
            a("v_pk_add_f32 v[16:17], v[16:17], %s" % vr(t, 2))
            a("v_pk_fma_f32 v[18:19], %s, %s, v[18:19]" % (vr(t, 2), vr(t, 2)))

    NPF = 4 if "pfall" in EXPF else (2 if "pfv2" in EXPF else (1 if "pfv3" in EXPF else 0))

    def prefetch(stage=1):
        if not NPF:
            return
        if NPF == 1:
            big, small = (32, 38) if stage == 1 else (34, 42)
            a("s_lshl_b32 s88, s2, 3")
            a("s_add_u32 s88, s88, s6")
            a("v_lshlrev_b32 v255, 6, v1")
            a("s_cmp_lt_u32 s88, 1024")
            a("s_cselect_b32 s84, s%d, s%d" % (big, small))
            a("s_cselect_b32 s85, s%d, s%d" % (big + 1, small + 1))
            a("s_cselect_b32 s86, s7, 0x1c0000")
            a("s_mov_b32 s87, 0x20000")
            a("s_and_b32 s89, s88, 1023")
            a("s_lshl_b32 s89, s89, 12")
            a("buffer_load_dword v254, v255, s[84:87], s89 offen")
            return
        if NPF == 2:
            a("s_lshl_b32 s88, s2, 3")
            a("s_add_u32 s88, s88, s6")
            a("v_lshlrev_b32 v255, 7, v1")
            a("s_lshr_b32 s89, s88, 9")
            a("s_mov_b32 s84, s32")
            a("s_mov_b32 s85, s33")
            a("s_mov_b32 s86, 0x400000")
            for m, src in ((1, 34), (2, 38), (3, 42)):
                a("s_cmp_eq_u32 s89, %d" % m)
                a("s_cselect_b32 s84, s%d, s84" % src)
                a("s_cselect_b32 s85, s%d, s85" % (src + 1))
            a("s_cmp_ge_u32 s89, 2")
            a("s_cselect_b32 s86, 0x1c0000, s86")
            a("s_mov_b32 s87, 0x20000")
            a("s_and_b32 s89, s88, 511")
            a("s_lshl_b32 s89, s89, 13")
            a("buffer_load_dword v254, v255, s[84:87], s89 offen")
            a("buffer_load_dword v254, v255, s[84:87], s89 offen offset:64")
            return
        a("s_lshl_b32 s88, s2, 3")
        a("s_add_u32 s88, s88, s6")
        a("v_lshlrev_b32 v255, 7, v1")
        a("s_lshr_b32 s89, s88, 9")
        a("s_mov_b32 s84, s28")
        a("s_mov_b32 s85, s29")
        for m in range(1, 4):
            a("s_cmp_eq_u32 s89, %d" % m)
            a("s_cselect_b32 s84, s%d, s84" % (28 + 2 * m))
            a("s_cselect_b32 s85, s%d, s85" % (29 + 2 * m))
        a("s_mov_b32 s86, 0x400000")
        a("s_mov_b32 s87, 0x20000")
        a("s_and_b32 s89, s88, 511")
        a("s_lshl_b32 s89, s89, 13")
        a("buffer_load_dword v254, v255, s[84:87], s89 offen")
        a("buffer_load_dword v254, v255, s[84:87], s89 offen offset:64")
        a("s_cmp_lt_u32 s88, 224")
        a("s_cselect_b32 s84, s38, s42")
        a("s_cselect_b32 s85, s39, s43")
        a("s_cselect_b32 s89, 0, 224")
        a("s_sub_u32 s89, s88, s89")
        a("s_lshl_b32 s89, s89, 13")
        a("s_cmp_lt_u32 s88, 448")
        a("s_cselect_b32 s86, 0x1c0000, 0")
        a("buffer_load_dword v254, v255, s[84:87], s89 offen")
        a("buffer_load_dword v254, v255, s[84:87], s89 offen offset:64")

    NP0 = int(os.environ.get("NP0", "0"))

    def prefetch0():
        if not NP0:
            return
        a("s_lshl_b32 s88, s2, 3")
        a("s_add_u32 s88, s88, s6")
        a("v_lshlrev_b32 v255, 7, v1")
        a("s_lshr_b32 s89, s88, 9")
        a("s_mov_b32 s84, s28")
        a("s_mov_b32 s85, s29")
        for m in range(1, 4):
            src = 28 + 2 * m if m < 3 else 38
            a("s_cmp_eq_u32 s89, %d" % m)
            a("s_cselect_b32 s84, s%d, s84" % src)
            a("s_cselect_b32 s85, s%d, s85" % (src + 1))
        a("s_cselect_b32 s86, 0x1c0000, s7")
        a("s_mov_b32 s87, 0x20000")
        a("s_and_b32 s89, s88, 511")
        a("s_lshl_b32 s89, s89, 13")
        for i in range(NP0):
            a("buffer_load_dword v254, v255, s[84:87], s89 offen offset:%d" % (64 * i))

    a("s_mov_b32 s7, 0x400000")
    a("s_cmp_eq_u32 s5, 1")
    a("s_cbranch_scc1 proj_ckv")
    set_params("cur", 28, 29, 0x400000, 8192, "s61")
    a_dma(0, 2)
    a_dma(1, 3)
    a_dma(2, 4)
    dma(0, "cur")
    prefetch0()
    a("v_mov_b32 v16, 0")
    a("v_mov_b32 v17, 0")
    a("v_mov_b32 v18, 0")
    a("v_mov_b32 v19, 0")
    W(12 + NP0); a_read(0, 2); L0(); a_dma(3, 2)
    W(12 + NP0); a_read(1, 3); L0(); a_dma(4, 3)
    W(12 + NP0); a_read(2, 4); L0(); a_dma(5, 4)
    dma(1, "cur")
    stats(0)
    W(12); a_read(3, 2); L0(); a_dma(6, 2)
    W(12); a_read(4, 3); L0(); a_dma(7, 3)
    stats(1)
    W(12); a_read(5, 4); L0()
    stats(2)
    W(4); a_read(6, 2)
    W(0); a_read(7, 3); L0()
    a("s_barrier")
    dma(2, "cur")
    dma(3, "cur")
    stats(3)
    a.stamp()
    a("v_add_f32 v16, v16, v17")
    a("v_add_f32 v18, v18, v19")
    a("v_mov_b32 v17, v16")
    a("v_mov_b32 v19, v18")
    a.nop(2)
    a("v_permlane32_swap_b32 v16, v17")
    a("v_permlane32_swap_b32 v18, v19")
    a.nop(2)
    a("v_add_f32 v16, v16, v17")
    a("v_add_f32 v18, v18, v19")
    a("v_mul_f32 v16, 0x3b000000, v16")
    a("v_mul_f32 v18, 0x3b000000, v18")
    a("v_fma_f32 v18, -v16, v16, v18")
    a("v_max_f32 v18, 0, v18")
    a("v_cvt_pk_bf16_f32 v16, v16, v18")
    a("v_and_b32 v18, 0xffff0000, v16")
    a("v_lshlrev_b32 v16, 16, v16")
    a("v_add_f32 v18, 0x3727c5ac, v18")
    a("v_cvt_pk_bf16_f32 v18, v18, v18")
    a("v_lshlrev_b32 v18, 16, v18")
    a("v_sqrt_f32 v18, v18")
    a("s_nop 0")
    a("v_cvt_pk_bf16_f32 v18, v18, v18")
    a("v_lshlrev_b32 v18, 16, v18")
    a("v_rcp_f32 v18, v18")
    a("v_mov_b32 v%d, v16" % V_LNM)
    a("v_mov_b32 v%d, v16" % (V_LNM + 1))
    a("v_mov_b32 v%d, v18" % V_LNR)
    a("v_mul_f32 v%d, 0x%08x, v18" % (V_LNR + 1, QSC))
    reads(0, 0, 0)
    for x in norm_ops(0):
        a(x)
    a.stamp()

    def out_q0():
        a("s_add_u32 s56, s63, 0x%x" % QF)

    def out_q1():
        a("s_add_u32 s56, s64, 0x%x" % QF)

    def next_q1():
        set_params("next", 28, 29, 0x400000, 8192, "s62")

    def next_h():
        a("s_cmp_lt_u32 s4, 14")
        a("s_cselect_b32 s66, 0x1c0000, 0")
        set_params("next", 38, 39, "s66", 3584, "s46")

    def next_none():
        a("s_mov_b32 s66, 0")
        set_params("next", 38, 39, "s66", 3584, "s46")

    def out_h():
        a("s_mul_i32 s56, s59, %d" % AF_BLK)
        a("s_lshl_b32 s66, s4, 13")
        a("s_add_u32 s56, s56, s66")
        a("s_add_u32 s56, s56, 0x%x" % (AF + 256 * 1024))

    chunk("Q", next_q1, out_q0, None, True, "xn")
    chunk("Q", next_h, out_q1, "Q", True, None, True)
    a("s_cmp_lt_u32 s4, 14")
    a("s_cbranch_scc1 proj_h")
    epilogue("Q")
    if "pf2" in EXPF:
        a("s_sub_u32 s88, s4, 14")
        a("s_lshl_b32 s89, s3, 1")
        a("s_add_u32 s88, s88, s89")
        a("s_lshl_b32 s88, s88, 3")
        a("s_add_u32 s88, s88, s6")
        a("v_lshlrev_b32 v255, 7, v1")
        a("s_mov_b32 s84, s34")
        a("s_mov_b32 s85, s35")
        a("s_mov_b32 s86, 0x400000")
        a("s_mov_b32 s87, 0x20000")
        a("s_lshl_b32 s89, s88, 15")
        for i in range(4):
            a("buffer_load_dword v254, v255, s[84:87], s89 offen")
            a("buffer_load_dword v254, v255, s[84:87], s89 offen offset:64")
            a("s_add_u32 s89, s89, 8192")
        a("s_mov_b32 s84, s42")
        a("s_mov_b32 s85, s43")
        a("s_mov_b32 s86, 0x1c0000")
        a("s_lshl_b32 s89, s88, 14")
        for i in range(2):
            a("buffer_load_dword v254, v255, s[84:87], s89 offen")
            a("buffer_load_dword v254, v255, s[84:87], s89 offen offset:64")
            a("s_add_u32 s89, s89, 8192")
    a("s_branch proj_end")
    a.label("proj_h")
    chunk("H", next_none, out_h, "Q", False, None, 2 if NPF == 1 else 0)
    a.stamp_flush(0)
    a("s_branch proj_end")
    a.nst = 2

    a.label("proj_ckv")
    set_params("cur", 30, 31, 0x400000, 8192, "s61")
    dma(0, "cur")
    a_dma(0, 2)
    a_dma(1, 3)
    a_dma(2, 4)
    dma(1, "cur")
    prefetch0()
    W(12 + NP0); a_read(0, 2); L0(); a_dma(3, 2)
    W(12 + NP0); a_read(1, 3); L0(); a_dma(4, 3)
    a("s_barrier")
    reads(0, 0, 0)

    def out_k0():
        a("s_add_u32 s56, s63, 0x%x" % KF)

    def out_k1():
        a("s_add_u32 s56, s64, 0x%x" % KF)

    def out_v0():
        a("s_add_u32 s56, s63, 0x%x" % VF)

    def out_v1():
        a("s_add_u32 s56, s64, 0x%x" % VF)

    chunk("QK", lambda: set_params("next", 30, 31, 0x400000, 8192, "s62"), out_k0, None, True, "ckv")
    chunk("QK", lambda: set_params("next", 32, 33, 0x400000, 8192, "s61"), out_k1, "QK", True, None, True)
    chunk("V", lambda: set_params("next", 32, 33, 0x400000, 8192, "s62"), out_v0, "QK", True, None, 2 if NPF == 1 else 0)
    chunk("V", next_none, out_v1, "V", False)
    a.stamp_flush(int(STAMP) if STAMP else 0)
    a.label("proj_end")
    a.ostamp()
    a.gridbar(0)
    a.ostamp()


def descriptor(a, name, vgpr, sgpr, accum):
    a.raw(".p2align 6")
    a.raw(".amdhsa_kernel %s" % name)
    a.raw("  .amdhsa_next_free_vgpr %d" % vgpr)
    a.raw("  .amdhsa_next_free_sgpr %d" % sgpr)
    a.raw("  .amdhsa_accum_offset %d" % accum)
    a.raw("  .amdhsa_group_segment_fixed_size 0")
    a.raw("  .amdhsa_kernarg_size 112")
    a.raw("  .amdhsa_user_sgpr_count 2")
    a.raw("  .amdhsa_user_sgpr_kernarg_segment_ptr 1")
    a.raw("  .amdhsa_system_sgpr_workgroup_id_x 1")
    a.raw(".end_amdhsa_kernel")


def main():
    from gen_rest import gen_attn, gen_ogemm, gen_reduce
    a = Asm()
    hdr = open("cdna_kernels/%s.s.ref" % NAME).read().split("\n")
    for l in hdr:
        if l.startswith(";") and "@launch" not in l:
            a.raw(l)
        elif not l.startswith(";"):
            break
    a.raw("; @launch kernel=mega_kernel grid=(256,1,1) block=(512,1,1) lds=163840")
    a.raw('.amdgcn_target "amdgcn-amd-amdhsa--gfx950"')
    a.raw(".text")
    a.raw(".globl mega_kernel")
    a.raw(".p2align 8")
    a.raw(".type mega_kernel,@function")
    gen_proj(a)
    gen_attn(a)
    gen_ogemm(a)
    gen_reduce(a)
    a.raw('.section .rodata,"a"')
    descriptor(a, "mega_kernel", 256, 102, 256)
    out = sys.argv[1] if len(sys.argv) > 1 else "cdna_kernels/%s.s" % NAME
    open(out, "w").write("\n".join(a.lines) + "\n")


if __name__ == "__main__":
    main()
```

```python
from gen import vr, sr, QF, KF, VF, AF, AF_BLK, PART, CTR, EARLY
import math
import os
EXP = os.environ.get("EXP", "")
SENT = "sent" in EXP
MST = os.environ.get("MST")

SCALE_LOG2E = (128 ** -0.5) * math.log2(math.e)


def f32hex(x):
    import struct
    return "0x%08x" % struct.unpack("<I", struct.pack("<f", x))[0]


def interleave(a, mf, fl):
    n = len(mf)
    pos = 0
    for i in range(n):
        a(mf[i])
        end = (len(fl) * (i + 1)) // n
        while pos < end:
            a(fl[pos])
            pos += 1


def gen_attn(a):
    V_LDS = 2
    V_DMA = 3
    V_LG = 4
    V_NEG = 5
    V_RDV = 6
    V_RDK = 7
    V_M = 8
    V_L = 9
    V_T = 10
    V_Q = 16
    V_O = 48
    V_S = 112
    V_P = 144
    V_K = 152
    V_V = 184
    S_MASK = 36
    S_LB = 35
    S_THR = 34
    V_C = 216
    V_E = 232
    NBUF = 5
    LDSZ = NBUF * 32768

    a.label("attn_kernel")
    if not EARLY:
        a.stamp()
    a("s_load_dwordx2 s[8:9], s[0:1], 104")
    a("v_lshrrev_b32 v1, 6, v0")
    a("s_nop 0")
    a("v_readfirstlane_b32 s6, v1")
    a("v_and_b32 v1, 63, v0")
    a("s_lshr_b32 s22, s6, 2")
    a("s_and_b32 s23, s6, 3")
    a("s_and_b32 s3, s2, 7")
    a("s_lshl_b32 s3, s3, 2")
    a("s_lshr_b32 s4, s2, 3")
    a("s_and_b32 s4, s4, 3")
    a("s_add_u32 s3, s3, s4")
    a("s_lshr_b32 s4, s2, 5")
    a("s_sub_u32 s5, 15, s4")
    a("s_mov_b32 s24, 0")
    a("s_mov_b32 s77, 1000000")
    a("s_mov_b32 s10, 0x10000000")
    a("s_mov_b32 s11, 0x20000")
    a("s_lshl_b32 s12, s3, 19")
    a("v_lshlrev_b32 v%d, 4, v1" % V_LDS)
    a("s_lshl_b32 s13, s23, 11")
    a("s_lshl_b32 s25, s22, 13")
    a("s_add_u32 s25, s25, s13")
    a("v_add_u32 v%d, s25, v%d" % (V_DMA, V_LDS))
    a("s_lshl_b32 s26, s22, 14")
    a("v_add_u32 v%d, s26, v%d" % (V_LG, V_LDS))
    a("s_add_u32 s27, s26, s13")
    a("v_and_b32 v12, 31, v1")
    a("v_lshrrev_b32 v13, 5, v1")
    a("v_lshlrev_b32 v13, 2, v13")
    a("v_sub_u32 v12, v12, v13")
    for r in range(16):
        kl = 8 * (r >> 2) + (r & 3)
        a("v_cmp_le_i32 %s, %d, v12" % (sr(S_MASK + 2 * r, 2), kl))
    a("v_mov_b32 v%d, 0xf149f2ca" % V_NEG)
    a("s_waitcnt lgkmcnt(0)")

    def bump(sreg):
        return ["s_add_u32 s%d, s%d, 32768" % (sreg, sreg),
                "s_cmp_ge_u32 s%d, %d" % (sreg, LDSZ),
                "s_cselect_b32 s%d, 0, s%d" % (sreg, sreg)]

    def dma_ops():
        ops = []
        ops.append("s_add_u32 m0, s27, s28")
        ops.append("s_cmp_eq_u32 s78, s79")
        ops.append("s_cselect_b32 s16, s80, s16")
        ops.append("s_cselect_b32 s17, s81, s17")
        ops.append("s_add_u32 s78, s78, 1")
        for i in range(2):
            ops.append("buffer_load_dwordx4 v%d, s[8:11], s16 offen offset:%d lds" % (V_DMA, i * 1024))
        ops.append("s_add_u32 m0, m0, 8192")
        ops.append("s_add_u32 s16, s16, 16384")
        for i in range(2):
            ops.append("buffer_load_dwordx4 v%d, s[8:11], s17 offen offset:%d lds" % (V_DMA, i * 1024))
        ops.append("s_add_u32 s17, s17, 16384")
        ops += bump(28)
        return ops

    def dma():
        for x in dma_ops():
            a(x)

    def tstamp(k):
        if not os.environ.get("STAMP"):
            return
        a("s_memtime s[98:99]")
        a("s_waitcnt lgkmcnt(0)")
        a("s_cmp_eq_u32 s24, 0")
        a("s_cselect_b32 s%d, s98, s%d" % (69 + k, 69 + k))
        a("s_cselect_b32 s%d, s%d, s98" % (73 + k, 73 + k))

    def kread_ops():
        return ["ds_read_b128 %s, v%d offset:%d" % (vr(V_K + 4 * s, 4), V_RDK, s * 1024) for s in range(8)] + \
            bump(33) + ["v_add_u32 v%d, s33, v%d" % (V_RDK, V_LG)]

    def vread_ops():
        return ["ds_read_b128 %s, v%d offset:%d" % (vr(V_V + 4 * i, 4), V_RDV, 8192 + i * 1024) for i in range(8)] + \
            bump(32) + ["v_add_u32 v%d, s32, v%d" % (V_RDV, V_LG)]

    def qk_ops(sp):
        ops = []
        S = V_S + 16 * sp
        for s in range(8):
            c = vr(V_C, 16) if s == 0 else vr(S, 16)
            ops.append("v_mfma_f32_32x32x16_bf16 %s, %s, %s, %s" % (vr(S, 16), vr(V_K + 4 * s, 4), vr(V_Q + 4 * s, 4), c))
        return ops

    def pv_ops():
        ops = []
        for t in range(2):
            for dt in range(4):
                o = vr(V_O + 16 * dt, 16)
                ops.append("v_mfma_f32_32x32x16_bf16 %s, %s, %s, %s" % (o, vr(V_V + 4 * (dt * 2 + t), 4), vr(V_P + 4 * t, 4), o))
        return ops

    def max_ops(S, t0, t1):
        return ["v_max3_f32 v%d, v%d, v%d, v%d" % (t0, S, S + 1, S + 2),
                "v_max3_f32 v%d, v%d, v%d, v%d" % (t1, S + 3, S + 4, S + 5),
                "v_max3_f32 v%d, v%d, v%d, v%d" % (t0, t0, S + 6, S + 7),
                "v_max3_f32 v%d, v%d, v%d, v%d" % (t1, t1, S + 8, S + 9),
                "v_max3_f32 v%d, v%d, v%d, v%d" % (t0, t0, S + 10, S + 11),
                "v_max3_f32 v%d, v%d, v%d, v%d" % (t1, t1, S + 12, S + 13),
                "v_max3_f32 v%d, v%d, v%d, v%d" % (t0, t0, S + 14, S + 15),
                "v_max_f32 v%d, v%d, v%d" % (t0, t0, t1),
                "v_mov_b32 v%d, v%d" % (t1, t0)]

    def soft_ops(S, t2, t3):
        P = V_P
        E = V_E
        vb = []
        for r in range(16):
            vb.append("v_exp_f32 v%d, v%d" % (E + r, S + r))
            if r >= 3 and r % 2 == 1:
                q = r - 3
                vb.append("v_cvt_pk_bf16_f32 v%d, v%d, v%d" % (P + q // 2, E + q, E + q + 1))
                if q == 0:
                    vb.append("v_add_f32 v%d, v%d, v%d" % (t2, E, E + 1))
                elif q == 2:
                    vb.append("v_add_f32 v%d, v%d, v%d" % (t3, E + 2, E + 3))
                else:
                    vb.append("v_add_f32 v%d, v%d, v%d" % (t2, t2, E + q))
                    vb.append("v_add_f32 v%d, v%d, v%d" % (t3, t3, E + q + 1))
        vb.append("v_add_f32 v%d, v%d, v%d" % (t2, t2, t3))
        vb.append("v_cvt_pk_bf16_f32 v%d, v%d, v%d" % (P + 7, E + 14, E + 15))
        vb.append("v_add_f32 v%d, v%d, v%d" % (t3, E + 14, E + 15))
        vb.append("v_add_f32 v%d, v%d, v%d" % (t2, t2, t3))
        return vb

    cnt = [0]
    rare = []

    def mask(L, S):
        a("s_lshl_b32 s29, s18, 1")
        a("s_add_u32 s29, s29, s22")
        a("s_cmp_lt_u32 s29, s30")
        a("s_cbranch_scc1 %s_nomask" % L)
        a("s_cmp_eq_u32 s29, s30")
        a("s_cbranch_scc1 %s_tri" % L)
        for r in range(16):
            a("v_mov_b32 v%d, v%d" % (S + r, V_NEG))
        a("s_branch %s_nomask" % L)
        a.label("%s_tri" % L)
        for r in range(16):
            a("v_cndmask_b32 v%d, v%d, v%d, %s" % (S + r, V_NEG, S + r, sr(S_MASK + 2 * r, 2)))
        a.label("%s_nomask" % L)

    def phaseA(sp, diag, last=False):
        cnt[0] += 1
        L = "attn_it%d" % cnt[0]
        S = V_S + 16 * sp
        T = V_T
        if diag:
            mask(L, S)
        qk = qk_ops(sp ^ 1)
        S2 = V_S + 16 * (sp ^ 1)
        so = soft_ops(S, T + 3, T + 4)
        vrd = vread_ops()
        mix = []
        step = len(so) // len(vrd)
        k = 0
        for i, x in enumerate(so):
            mix.append(x)
            if i % step == step - 1 and k < len(vrd):
                mix.append(vrd[k])
                k += 1
        mix += vrd[k:]
        if last:
            for x in mix:
                a(x)
        else:
            interleave(a, qk, mix)
        a("v_cmp_lt_f32 vcc, s%d, v%d" % (S_THR, T + 3))
        a("s_nop 1")
        a("s_cbranch_vccnz %s_rs" % L)
        a.label("%s_nors" % L)
        a("v_add_f32 v%d, v%d, v%d" % (V_L, V_L, T + 3))
        blk = ["%s_rs:" % L]
        if os.environ.get("STAMP"):
            blk.append("s_add_u32 s77, s77, 1")
        blk += max_ops(S, T, T + 1)
        blk += ["s_nop 1",
                "v_permlane32_swap_b32 v%d, v%d" % (T, T + 1),
                "s_nop 0",
                "v_max3_f32 v%d, v%d, v%d, s%d" % (T, T, T + 1, S_LB),
                "v_exp_f32 v%d, -v%d" % (T + 1, T),
                "v_add_f32 v%d, v%d, v%d" % (V_M, V_M, T),
                "v_min_f32 v%d, 0x7149f2ca, v%d" % (T + 1, T + 1),
                "s_mov_b32 s%d, 0x53800000" % S_THR,
                "s_mov_b32 s%d, 0" % S_LB,
                "v_mul_f32 v%d, v%d, v%d" % (V_L, V_L, T + 1)]
        for i in range(64):
            blk.append("v_mul_f32 v%d, v%d, v%d" % (V_O + i, V_O + i, T + 1))
        for r in range(16):
            blk.append("v_sub_f32 v%d, v%d, v%d" % (S + r, S + r, T))
        blk += so
        for r in range(16):
            blk.append("v_sub_f32 v%d, v%d, v%d" % (V_C + r, V_C + r, T))
        for r in range(16 if not last else 0):
            blk.append("v_sub_f32 v%d, v%d, v%d" % (S2 + r, S2 + r, T))
        blk.append("s_branch %s_nors" % L)
        rare.append(blk)
        a("s_add_u32 s18, s18, 1")

    def phaseC(mode="n"):
        a("s_waitcnt lgkmcnt(0)")
        a("s_nop 0")
        if mode == "n":
            f = kread_ops() + dma_ops()
        elif mode == "k":
            f = kread_ops()
        else:
            k = int(mode[1])
            f = ["buffer_load_dwordx4 %s, v%d, s[8:11], s%d offen offset:%d" % (
                vr(V_Q + 16 * k + 4 * s_, 4), V_LDS, 82 + k, s_ * 1024) for s_ in range(4)]
        interleave(a, pv_ops(), f)

    def bar():
        a("s_waitcnt vmcnt(4) lgkmcnt(0)")
        a("s_barrier")

    def tile_front(qt):
        a("s_lshl_b32 s15, s%d, 2" % qt)
        a("s_add_u32 s15, s15, s23")
        a("s_lshl_b32 s15, s15, 13")
        a("s_add_u32 s15, s15, s12")
        for k in range(2):
            for s in range(4):
                a("buffer_load_dwordx4 %s, v%d, s[8:11], s15 offen offset:%d" % (vr(V_Q + 16 * k + 4 * s, 4), V_LDS, s * 1024))
            a("s_add_u32 s15, s15, 4096")
        a("s_add_u32 s16, s12, 0x%x" % KF)
        a("s_add_u32 s17, s12, 0x%x" % VF)
        a("s_mov_b32 s28, 98304")
        a("s_mov_b32 s78, 0")
        a("s_mov_b32 s79, -1")
        dma()
        dma()
        dma()
        dma()

    if EARLY:
        ring = [98304, 131072, 0, 32768]
        a.eb_pre()
        a("s_lshl_b32 s15, s5, 2")
        a("s_add_u32 s15, s15, s23")
        a("s_lshl_b32 s15, s15, 13")
        a("s_add_u32 s15, s15, s12")
        a("s_add_u32 s16, s12, 0x%x" % KF)
        a("s_add_u32 s17, s12, 0x%x" % VF)
        for st in range(4):
            a("s_add_u32 m0, s27, %d" % ring[st])
            a("s_nop 0")
            for i in range(2):
                a("buffer_load_dwordx4 v%d, s[8:11], s16 offen offset:%d lds" % (V_DMA, i * 1024))
            a("s_add_u32 s16, s16, 16384")
            if st == 0:
                for k in range(2):
                    for s_ in range(4):
                        a("buffer_load_dwordx4 %s, v%d, s[8:11], s15 offen offset:%d" % (vr(V_Q + 16 * k + 4 * s_, 4), V_LDS, s_ * 1024))
                    a("s_add_u32 s15, s15, 4096")
        a.eb_post()
        a.stamp()
        for st in range(4):
            a("s_add_u32 m0, s27, %d" % (ring[st] + 8192))
            a("s_nop 0")
            for i in range(2):
                a("buffer_load_dwordx4 v%d, s[8:11], s17 offen offset:%d lds" % (V_DMA, i * 1024))
            a("s_add_u32 s17, s17, 16384")
        a("s_mov_b32 s28, 65536")
        a("s_mov_b32 s78, 4")
    else:
        tile_front(5)
    a("s_mov_b32 s32, 98304")
    a("s_add_u32 s80, s12, 0x%x" % KF)
    a("s_add_u32 s81, s12, 0x%x" % VF)
    a("s_lshl_b32 s82, s4, 2")
    a("s_add_u32 s82, s82, s23")
    a("s_lshl_b32 s82, s82, 13")
    a("s_add_u32 s82, s82, s12")
    a("s_add_u32 s83, s82, 4096")
    a.label("attn_tile")
    a("s_lshl_b32 s14, s5, 2")
    a("s_add_u32 s14, s14, s23")
    a("s_mov_b32 s30, s14")
    a("s_lshl_b32 s79, s5, 1")
    a("s_add_u32 s79, s79, 2")
    a("s_mov_b32 s33, s32")
    a("v_add_u32 v%d, s32, v%d" % (V_RDV, V_LG))
    a("v_add_u32 v%d, s32, v%d" % (V_RDK, V_LG))
    a("v_mov_b32 v%d, 0" % V_M)
    a("s_mov_b32 s%d, 0xbf800000" % S_THR)
    a("s_mov_b32 s%d, 0xff7fffff" % S_LB)
    for i in range(16):
        a("v_mov_b32 v%d, 0" % (V_C + i))
    a("v_mov_b32 v%d, 0" % V_L)
    for i in range(64):
        a("v_mov_b32 v%d, 0" % (V_O + i))
    a("s_lshl_b32 s19, s5, 1")
    a("s_mov_b32 s18, 0")
    a("s_waitcnt vmcnt(8)")
    a("s_cmp_eq_u32 s24, 0")
    a("s_cbranch_scc1 attn_w2")
    a("s_waitcnt vmcnt(%d)" % (12 if SENT else 4))
    a.label("attn_w2")
    a("s_barrier")
    if not MST:
        tstamp(0)
    for x in kread_ops():
        a(x)
    a("s_cmp_eq_u32 s24, 0")
    a("s_cbranch_scc1 attn_w3")
    a("s_mov_b32 s78, 2")
    dma()
    dma()
    a.label("attn_w3")
    a("s_waitcnt lgkmcnt(0)")
    for x in qk_ops(0):
        a(x)
    for x in kread_ops():
        a(x)
    if "noinit" not in EXP:
        a.nop(8)
        S, T = V_S, V_T
        a("s_cmp_lg_u32 s5, 0")
        a("s_cbranch_scc1 attn_im_nomask")
        mask("attn_im", S)
        for x in max_ops(S, T, T + 1):
            a(x)
        a("s_nop 1")
        a("v_permlane32_swap_b32 v%d, v%d" % (T, T + 1))
        a("s_nop 0")
        a("v_max_f32 v%d, v%d, v%d" % (T, T, T + 1))
        a("s_mov_b32 s%d, 0x53800000" % S_THR)
        a("s_mov_b32 s%d, 0" % S_LB)
        a("v_mov_b32 v%d, v%d" % (V_M, T))
        for r in range(16):
            a("v_sub_f32 v%d, v%d, v%d" % (S + r, S + r, T))
        for r in range(16):
            a("v_sub_f32 v%d, 0, v%d" % (V_C + r, T))
    a("s_cmp_eq_u32 s22, 1")
    a("s_cbranch_scc1 attn_g1")
    a("s_cmp_eq_u32 s5, 0")
    a("s_cbranch_scc1 attn_diag0")
    a.label("attn_loop0")
    a.inloop = "og" not in EXP
    for sp in range(2):
        bar()
        a("s_waitcnt lgkmcnt(0)")
        phaseA(sp, False)
        phaseC()
    a.inloop = False
    a("s_cmp_lt_u32 s18, s19")
    a("s_cbranch_scc1 attn_loop0")
    a.label("attn_diag0")
    if not MST:
        tstamp(1)
    for sp in range(2):
        bar()
        a("s_waitcnt lgkmcnt(0)")
        phaseA(sp, True, sp == 1)
        phaseC("q%d" % sp)
    tstamp(2)
    a("s_branch attn_merge")
    a.label("attn_g1")
    bar()
    a("s_waitcnt lgkmcnt(0)")
    a("s_cmp_eq_u32 s5, 0")
    a("s_cbranch_scc1 attn_diag1a")
    dma()
    phaseA(0, False)
    a.label("attn_loop1")
    a.inloop = "og" not in EXP
    bar()
    phaseC()
    a("s_waitcnt lgkmcnt(0)")
    phaseA(1, False)
    a.inloop = False
    a("s_cmp_ge_u32 s18, s19")
    a("s_cbranch_scc1 attn_diag1")
    a.inloop = "og" not in EXP
    bar()
    phaseC()
    a("s_waitcnt lgkmcnt(0)")
    phaseA(0, False)
    a.inloop = False
    a("s_branch attn_loop1")
    a.label("attn_diag1")
    bar()
    phaseC("k")
    a("s_waitcnt lgkmcnt(0)")
    a.label("attn_diag1a")
    phaseA(0, True)
    bar()
    phaseC("q0")
    phaseA(1, True, True)
    phaseC("q1")
    a.label("attn_merge")

    def slot(wreg, vdst):
        a("s_mul_i32 s29, s%d, 11" % wreg)
        a("s_lshr_b32 s29, s29, 5")
        a("s_mul_i32 s84, s29, 3")
        a("s_sub_u32 s84, s%d, s84" % wreg)
        a("s_lshl_b32 s29, s29, 15")
        a("s_add_u32 s29, s29, s28")
        a("s_sub_u32 s85, s29, %d" % LDSZ)
        a("s_cmp_ge_u32 s29, %d" % LDSZ)
        a("s_cselect_b32 s29, s85, s29")
        a("s_mul_i32 s84, s84, 9216")
        a("s_add_u32 s29, s29, s84")
        a("v_add_u32 v%d, s29, v%d" % (vdst, V_LDS))
    slot(6, 12)
    a("s_xor_b32 s31, s6, 4")
    slot(31, 13)
    a("s_waitcnt lgkmcnt(0)")
    a("s_barrier")
    if MST:
        tstamp(0)
    a.nop(4)
    for g in range(2):
        if g == 0:
            a("s_cmp_eq_u32 s22, 1")
            a("s_cbranch_scc1 attn_mg1")
        else:
            a.label("attn_mg1")
        keep, send = V_O + 32 * g, V_O + 32 * (1 - g)
        for i in range(8):
            a("ds_write_b128 v12, %s offset:%d" % (vr(send + 4 * i, 4), i * 1024))
        a("ds_write_b64 v12, v[%d:%d] offset:8192" % (V_M, V_L))
        a("s_waitcnt lgkmcnt(0)")
        a("s_barrier")
        if MST and g == 0:
            tstamp(1)
        a("ds_read_b64 v[14:15], v13 offset:8192")
        for i in range(8):
            a("ds_read_b128 %s, v13 offset:%d" % (vr(V_K + 4 * i, 4), i * 1024))
        a("s_waitcnt lgkmcnt(8)")
        a("v_max_f32 v10, v%d, v14" % V_M)
        a("v_sub_f32 v11, v%d, v10" % V_M)
        a("v_sub_f32 v10, v14, v10")
        a("v_exp_f32 v11, v11")
        a("v_exp_f32 v10, v10")
        a.nop(1)
        a("v_mul_f32 v%d, v%d, v11" % (V_L, V_L))
        a("v_fma_f32 v%d, v15, v10, v%d" % (V_L, V_L))
        a("v_mov_b32 v14, v%d" % V_L)
        a.nop(2)
        a("v_permlane32_swap_b32 v%d, v14" % V_L)
        a.nop(1)
        a("v_add_f32 v14, v14, v%d" % V_L)
        a("v_rcp_f32 v14, v14")
        a.nop(1)
        a("v_mul_f32 v11, v11, v14")
        a("v_mul_f32 v10, v10, v14")
        a("s_mul_i32 s20, s14, %d" % AF_BLK)
        a("s_lshl_b32 s21, s3, 13")
        a("s_add_u32 s20, s20, s21")
        a("s_add_u32 s20, s20, 0x%x" % (AF + 4096 * g))
        a("s_waitcnt lgkmcnt(0)")
        for i in range(32):
            a("v_mul_f32 v%d, v%d, v10" % (V_K + i, V_K + i))
            a("v_fma_f32 v%d, v%d, v11, v%d" % (V_K + i, keep + i, V_K + i))
        for k in range(4):
            d = V_V + k * 4
            for p in range(4):
                x0 = V_K + 8 * k + 2 * p
                a("v_cvt_pk_bf16_f32 v%d, v%d, v%d" % (d + p, x0, x0 + 1))
            a("buffer_store_dwordx4 %s, v%d, s[8:11], s20 offen offset:%d sc1" % (vr(d, 4), V_LDS, k * 1024))
        if g == 0:
            a("s_branch attn_mgdone")
    a.label("attn_mgdone")
    if SENT:
        a("s_cmp_eq_u32 s24, 1")
        a("s_cbranch_scc1 attn_noclr")
        a("s_lshl_b32 s20, s2, 16")
        a("s_lshl_b32 s21, s6, 13")
        a("s_add_u32 s20, s20, s21")
        a("s_add_u32 s20, s20, 0x%x" % PART)
        a("s_add_u32 s21, s20, 4096")
        for k in range(4):
            a("v_mov_b32 v%d, -1" % (V_K + k))
        for k in range(8):
            a("buffer_store_dwordx4 %s, v%d, s[8:11], s%d offen offset:%d sc1" % (vr(V_K, 4), V_LDS, 20 if k < 4 else 21, (k & 3) * 1024))
        a.label("attn_noclr")
    tstamp(3)
    a.nst = 10
    a("s_cmp_eq_u32 s24, 1")
    a("s_cbranch_scc1 attn_fin")
    a("s_mov_b32 s24, 1")
    a("s_mov_b32 s5, s4")
    for r in (80, 81, 82, 83):
        a("s_mov_b32 s%d, 0x10000000" % r)
    a("s_branch attn_tile")
    a.label("attn_fin")
    a.stamp_flush(0)
    a.label("attn_end")
    a("s_branch attn_after")
    for blk in rare:
        a.label(blk[0][:-1])
        for x in blk[1:]:
            a(x)
    a.label("attn_after")
    a.ostamp()
    a("s_waitcnt vmcnt(0) lgkmcnt(0)")
    a("s_barrier")
    a.phase = 2


def gen_ogemm(a):
    V_AL = 2
    V_TR = 4
    V_DA = 8
    V_DB = 9
    V_ST = 11
    V_F = 16
    V_ACC = 48
    NST = 23
    a.label("ogemm_kernel")
    a.stamp()
    a("s_load_dwordx2 s[8:9], s[0:1], 104")
    a("s_load_dwordx2 s[24:25], s[0:1], 40")
    a("s_load_dwordx2 s[26:27], s[0:1], 72")
    a("v_lshrrev_b32 v1, 6, v0")
    a("s_nop 0")
    a("v_readfirstlane_b32 s6, v1")
    a("v_and_b32 v1, 63, v0")
    a("s_lshr_b32 s3, s2, 4")
    a("s_and_b32 s4, s2, 1")
    a("s_lshl_b32 s4, s4, 1")
    a("s_bfe_u32 s5, s2, 0x10003")
    a("s_or_b32 s4, s4, s5")
    a("s_bfe_u32 s5, s2, 0x20001")
    if "same" in EXP:
        a("s_mov_b32 s3, 0")
        a("s_mov_b32 s4, 0")
        a("s_mov_b32 s5, 0")
    if "map1" not in EXP:
        a("s_and_b32 s3, s2, 1")
        a("s_lshl_b32 s3, s3, 3")
        a("s_bfe_u32 s4, s2, 0x30003")
        a("s_or_b32 s3, s3, s4")
        a("s_lshr_b32 s4, s2, 6")
    a("s_mov_b32 s10, 0x10000000")
    a("s_mov_b32 s11, 0x20000")
    a("s_mov_b32 s15, 0x20000")
    a("s_lshr_b32 s30, s6, 2")
    a("s_lshr_b32 s31, s6, 1")
    a("s_and_b32 s31, s31, 1")
    a("s_and_b32 s32, s6, 1")
    a("v_lshlrev_b32 v%d, 4, v1" % V_ST)
    a("s_lshl_b32 s33, s31, 13")
    a("s_lshl_b32 s34, s30, 11")
    a("s_add_u32 s33, s33, s34")
    a("v_add_u32 v%d, s33, v%d" % (V_AL, V_ST))
    a("v_add_u32 v%d, 0x10000, v%d" % (V_AL + 1, V_AL))
    a("v_bfe_u32 v12, v1, 2, 2")
    a("v_lshrrev_b32 v13, 5, v1")
    a("v_lshl_add_u32 v13, v13, 2, v12")
    a("v_lshlrev_b32 v13, 8, v13")
    a("v_bfe_u32 v14, v1, 4, 1")
    a("v_lshl_add_u32 v13, v14, 5, v13")
    a("v_and_b32 v14, 3, v1")
    a("v_lshl_add_u32 v13, v14, 3, v13")
    a("s_lshl_b32 s33, s30, 13")
    a("s_add_u32 s33, s33, 16384")
    a("v_add_u32 v13, s33, v13")
    a("v_lshlrev_b32 v12, 6, v12")
    a("s_lshl_b32 s34, s32, 7")
    for ntl in range(2):
        a("s_add_u32 s35, s34, %d" % (ntl << 6))
        a("v_xor_b32 v14, s35, v12")
        a("v_add_u32 v%d, v13, v14" % (V_TR + ntl))
        a("v_add_u32 v%d, 0x10000, v%d" % (V_TR + 2 + ntl, V_TR + ntl))
    a("s_lshr_b32 s33, s6, 1")
    a("s_lshl_b32 s34, s3, 2")
    a("s_add_u32 s34, s34, s33")
    a("s_mul_i32 s34, s34, %d" % AF_BLK)
    a("s_lshl_b32 s35, s32, 11")
    a("s_add_u32 s34, s34, s35")
    a("s_add_u32 s34, s34, 0x%x" % AF)
    a("v_add_u32 v%d, s34, v%d" % (V_DA, V_ST))
    a("s_lshl_b32 s36, s6, 11")
    a("v_lshrrev_b32 v12, 4, v1")
    a("v_bfe_u32 v13, v1, 2, 2")
    a("v_xor_b32 v13, v13, v12")
    a("v_lshlrev_b32 v13, 6, v13")
    a("v_and_b32 v14, 3, v1")
    a("v_lshl_add_u32 v13, v14, 4, v13")
    a("s_lshl_b32 s33, s6, 3")
    a("v_add_u32 v12, s33, v12")
    a("v_lshlrev_b32 v12, 10, v12")
    a("v_add_u32 v12, v12, v13")
    a("s_lshl_b32 s33, s4, 8")
    a("v_add_u32 v%d, s33, v12" % V_DB)
    a("v_add_u32 v%d, 3072, v%d" % (V_DB + 1, V_DB))
    a("s_mov_b32 s42, 0x1c0000")
    a("s_mul_i32 s37, s5, 7")
    a("s_add_u32 s37, s37, 64")
    a("s_lshl_b32 s44, s5, 4")
    a("s_mov_b32 s43, 0")
    a("s_waitcnt lgkmcnt(0)")

    def dma(buf):
        a("s_cmp_lt_u32 s37, 64")
        a("s_cselect_b32 s12, s24, s26")
        a("s_cselect_b32 s13, s25, s27")
        a("s_cselect_b32 s14, 0x400000, s42")
        a("s_cselect_b32 s39, 0, 64")
        a("s_sub_u32 s39, s37, s39")
        a("s_lshl_b32 s39, s39, 16")
        a("s_lshl_b32 s40, s37, 12")
        a("s_cmp_lt_u32 s43, %d" % NST)
        a("s_cselect_b32 s14, s14, 0")
        a("s_cselect_b32 s40, s40, 0x10000000")
        a("s_add_u32 s37, s37, 1")
        a("s_add_u32 s43, s43, 1")
        a("s_cmp_eq_u32 s43, 7")
        a("s_cselect_b32 s37, s44, s37")
        a("s_add_u32 m0, s36, %d" % (buf * 32768))
        a("s_nop 0")
        for i in range(2):
            a("buffer_load_dwordx4 v%d, s[8:11], s40 offen offset:%d lds" % (V_DA, i * 1024))
        a("s_add_u32 m0, s36, %d" % (buf * 32768 + 16384))
        a("s_nop 0")
        for i in range(2):
            a("buffer_load_dwordx4 v%d, s[12:15], s39 offen offset:%d lds" % (V_DB + i, i * 1024))

    def reads(buf, sl, st):
        hi = 1 if buf >= 2 else 0
        bo = (buf & 1) * 32768
        f = V_F + st * 16
        for mbl in range(2):
            a("ds_read_b128 %s, v%d offset:%d" % (vr(f + 4 * mbl, 4), V_AL + hi, bo + mbl * 4096 + sl * 1024))
        for ntl in range(2):
            for ird in range(2):
                a("ds_read_b64_tr_b16 %s, v%d offset:%d" % (
                    vr(f + 8 + 4 * ntl + 2 * ird, 2), V_TR + 2 * hi + ntl, bo + sl * 4096 + ird * 2048))

    def mfmas(st, first):
        f = V_F + st * 16
        for mbl in range(2):
            for ntl in range(2):
                acc = vr(V_ACC + 16 * (mbl * 2 + ntl), 16)
                c = "0" if first else acc
                a("v_mfma_f32_32x32x16_bf16 %s, %s, %s, %s" % (acc, vr(f + 8 + 4 * ntl, 4), vr(f + 4 * mbl, 4), c))

    dma(0)
    dma(1)
    dma(2)
    for i in range(64):
        a("v_mov_b32 v%d, 0" % (V_ACC + i))
    a("s_cmp_lg_u32 s6, 0")
    a("s_cbranch_scc1 ogemm_nosig")
    a.gb_signal(1)
    a.label("ogemm_nosig")
    a("s_mov_b32 s41, 0")
    a("s_waitcnt vmcnt(8)")
    a("s_barrier")
    a.stamp()
    reads(0, 0, 0)

    def body(buf, hook=None, check=True):
        a("s_waitcnt vmcnt(4)")
        a("s_barrier")
        reads(buf, 1, 1)
        a("s_waitcnt lgkmcnt(6)")
        mfmas(0, False)
        reads((buf + 1) & 3, 0, 0)
        if hook:
            hook()
        dma((buf + 3) & 3)
        a("s_waitcnt lgkmcnt(6)")
        mfmas(1, False)
        a("s_add_u32 s41, s41, 1")
        if check:
            a("s_cmp_ge_u32 s41, %d" % NST)
            a("s_cbranch_scc1 ogemm_done")

    def pollhook():
        a("s_cmp_lg_u32 s6, 0")
        a("s_cbranch_scc1 ogemm_nopoll")
        a.gb_poll(1)
        a.label("ogemm_nopoll")
        a("s_barrier")
        a.stamp()

    for it in range(8):
        body(it & 3, pollhook if it == 4 else None, False)
    a.label("ogemm_loop")
    a.inloop = "og" in EXP
    for buf in range(4):
        body(buf)
    a("s_branch ogemm_loop")
    a.inloop = False
    a.label("ogemm_done")
    a.ostamp()
    a.stamp()
    a("s_waitcnt vmcnt(0) lgkmcnt(0)")
    a("s_barrier")
    a.nop(12)
    a("s_and_b32 s33, s6, 3")
    a("s_lshl_b32 s33, s33, 14")
    a("s_lshl_b32 s34, s6, 13")
    a("v_add_u32 v12, s34, v%d" % V_ST)
    a("s_xor_b32 s34, s34, 0x8000")
    a("v_add_u32 v13, s34, v%d" % V_ST)
    a("s_lshl_b32 s34, s3, 2")
    a("s_add_u32 s34, s34, s4")
    a("s_lshl_b32 s34, s34, 16")
    a("s_add_u32 s34, s34, s33")
    a("s_lshl_b32 s35, s5, 22")
    a("s_add_u32 s34, s34, s35")
    a("s_add_u32 s34, s34, 0x%x" % PART)
    a("s_cmp_eq_u32 s30, 0")
    a("s_cbranch_scc1 ogemm_g0")
    for g in (1, 0):
        if g == 0:
            a.label("ogemm_g0")
        keep, send = V_ACC + 32 * g, V_ACC + 32 * (1 - g)
        for i in range(8):
            a("ds_write_b128 v12, %s offset:%d" % (vr(send + 4 * i, 4), i * 1024))
        a("s_waitcnt lgkmcnt(0)")
        a("s_barrier")
        for i in range(8):
            a("ds_read_b128 %s, v13 offset:%d" % (vr(112 + 4 * i, 4), i * 1024))
        a("s_add_u32 s34, s34, %d" % (8192 * g))
        for i in range(8):
            a("s_waitcnt lgkmcnt(%d)" % (7 - i))
            for k in range(4):
                a("v_add_f32 v%d, v%d, v%d" % (keep + 4 * i + k, keep + 4 * i + k, 112 + 4 * i + k))
            if i == 4:
                a("s_add_u32 s34, s34, 4096")
            a("buffer_store_dwordx4 %s, v%d, s[8:11], s34 offen offset:%d sc1" % (vr(keep + 4 * i, 4), V_ST, (i & 3) * 1024))
        if g == 1:
            a("s_branch ogemm_end")
    a.stamp()
    a.stamp_flush(0)
    a.label("ogemm_end")
    a("s_lshl_b32 s49, s3, 2")
    a("s_add_u32 s49, s49, s4")
    a("s_lshl_b32 s45, s49, 4")
    a("s_lshl_b32 s46, s5, 2")
    a("s_add_u32 s45, s45, s46")
    reduce_pre(a)
    if SENT:
        a.phase = 3
        return
    a("s_waitcnt vmcnt(0) lgkmcnt(0)")
    a("s_barrier")
    a("s_cmp_lg_u32 s6, 0")
    a("s_cbranch_scc1 tb_wait")
    a("s_add_u32 s46, s49, 32")
    a("s_lshl_b32 s46, s46, 12")
    a("s_add_u32 s46, s46, 0x%x" % CTR)
    a("s_mov_b64 exec, 1")
    a("v_mov_b32 v12, 1")
    a("v_mov_b32 v13, 0")
    a("buffer_atomic_add v12, v13, s[8:11], s46 offen sc1")
    a("s_mov_b32 s47, 0")
    a.label("tb_loop")
    a("buffer_load_dword v14, v13, s[8:11], s46 offen sc1")
    a("s_waitcnt vmcnt(0)")
    a("v_readfirstlane_b32 s48, v14")
    a("s_cmp_ge_u32 s48, 4")
    a("s_cbranch_scc1 tb_done")
    a("s_add_u32 s47, s47, 1")
    a("s_cmp_gt_u32 s47, 40000")
    a("s_cbranch_scc1 tb_done")
    a("s_sleep 4")
    a("s_branch tb_loop")
    a.label("tb_done")
    a("s_mov_b64 exec, -1")
    a.label("tb_wait")
    a("s_barrier")
    a.phase = 3


RB = 176


def reduce_pre(a):
    a("s_load_dwordx2 s[52:53], s[0:1], 0")
    a("s_load_dwordx2 s[56:57], s[0:1], 80")
    a("s_load_dwordx2 s[60:61], s[0:1], 88")
    a("s_mov_b32 s54, 0x200000")
    a("s_mov_b32 s55, 0x20000")
    a("s_mov_b32 s58, 1024")
    a("s_mov_b32 s59, 0x20000")
    a("s_mov_b32 s62, 0x200000")
    a("s_mov_b32 s63, 0x20000")
    T = RB + 70
    a("s_lshr_b32 s40, s6, 2")
    a("v_and_b32 v%d, 255, v0" % T)
    a("s_add_u32 s41, s45, s40")
    a("v_lshlrev_b32 v%d, 4, v%d" % (RB + 1, T))
    a("s_waitcnt lgkmcnt(0)")
    for j in range(2):
        B = RB + 4 + 32 * j
        v2, v3 = RB + 2, RB + 3
        a("s_add_u32 s42, s41, %d" % (2 * j))
        a("s_lshr_b32 s64, s42, 4")
        a("s_lshr_b32 s65, s42, 2")
        a("s_and_b32 s65, s65, 3")
        a("s_and_b32 s66, s42, 3")
        a("s_lshr_b32 s24, s64, 2")
        a("s_and_b32 s25, s64, 3")
        a("s_lshr_b32 s26, s65, 1")
        a("s_and_b32 s27, s65, 1")
        a("s_lshr_b32 s28, s66, 1")
        a("s_and_b32 s29, s66, 1")
        a("s_lshl_b32 s30, s24, 2")
        a("s_lshl_b32 s31, s26, 1")
        a("s_add_u32 s30, s30, s31")
        a("s_add_u32 s30, s30, s28")
        a("s_lshl_b32 s30, s30, 15")
        a("s_lshl_b32 s31, s25, 2")
        a("s_lshl_b32 s32, s27, 1")
        a("s_add_u32 s31, s31, s32")
        a("s_add_u32 s31, s31, s29")
        a("s_lshl_b32 s31, s31, 6")
        a("v_and_b32 v%d, 31, v%d" % (v2, T))
        a("v_lshlrev_b32 v%d, 10, v%d" % (v2, v2))
        a("v_lshrrev_b32 v%d, 6, v%d" % (v3, T))
        a("v_lshlrev_b32 v%d, 4, v%d" % (v3, v3))
        a("v_bfe_u32 v%d, v%d, 5, 1" % (B + 16, T))
        a("v_lshl_add_u32 v%d, v%d, 3, v%d" % (v3, B + 16, v3))
        a("v_add_u32 v%d, s31, v%d" % (v3, v3))
        a("v_add_u32 v%d, v%d, v%d" % (v2, v2, v3))
        a("v_add_u32 v%d, s30, v%d" % (B + 26, v2))
        a("buffer_load_dwordx2 %s, v%d, s[52:55], 0 offen" % (vr(B + 16, 2), B + 26))
        a("buffer_load_dwordx2 %s, v%d, s[56:59], 0 offen" % (vr(B + 18, 2), v3))


def gen_reduce(a):
    a.label("reduce_kernel")
    a.ostamp()
    a.stamp()
    if SENT:
        a("s_mov_b32 s47, 0")
        a.label("red_poll")
    for j in range(2):
        B = RB + 4 + 32 * j
        a("s_lshl_b32 s42, s41, 12")
        a("s_add_u32 s42, s42, 0x%x" % (PART + j * 8192))
        for p in range(4):
            a("buffer_load_dwordx4 %s, v%d, s[8:11], s42 offen%s" % (vr(B + 4 * p, 4), RB + 1, " sc1" if SENT else ""))
            if p < 3:
                a("s_add_u32 s42, s42, 0x400000")
    if SENT:
        for j in range(2):
            B = RB + 4 + 32 * j
            a("s_waitcnt vmcnt(%d)" % (4 - 4 * j))
            a("v_max3_u32 v%d, v%d, v%d, v%d" % (248 + j, B, B + 1, B + 2))
            for i in range(6):
                a("v_max3_u32 v%d, v%d, v%d, v%d" % (248 + j, 248 + j, B + 3 + 2 * i, B + 4 + 2 * i))
            a("v_max_u32 v%d, v%d, v%d" % (248 + j, 248 + j, B + 15))
        a("v_max_u32 v248, v248, v249")
        a("v_cmp_eq_u32 vcc, -1, v248")
        a("s_nop 1")
        a("s_cbranch_vccz red_ok")
        a("s_add_u32 s47, s47, 1")
        a("s_cmp_gt_u32 s47, 20000")
        a("s_cbranch_scc1 red_ok")
        a("s_sleep %s" % os.environ.get("RSL", "4"))
        a("s_branch red_poll")
        a.label("red_ok")
    for j in range(2):
        B = RB + 4 + 32 * j
        for p in range(2):
            a("v_lshlrev_b32 v%d, 16, v%d" % (B + 20, B + 16 + p))
            a("v_and_b32 v%d, 0xffff0000, v%d" % (B + 21, B + 16 + p))
            a("v_lshlrev_b32 v%d, 16, v%d" % (B + 22, B + 18 + p))
            a("v_and_b32 v%d, 0xffff0000, v%d" % (B + 23, B + 18 + p))
            a("v_add_f32 v%d, v%d, v%d" % (B + 28 + 2 * p, B + 20, B + 22))
            a("v_add_f32 v%d, v%d, v%d" % (B + 29 + 2 * p, B + 21, B + 23))
    for j in range(2):
        B = RB + 4 + 32 * j
        a("s_waitcnt vmcnt(%d)" % (4 - 4 * j))
        for i in range(4):
            a("v_add_f32 v%d, v%d, v%d" % (B + i, B + i, B + 4 + i))
            a("v_add_f32 v%d, v%d, v%d" % (B + 8 + i, B + 8 + i, B + 12 + i))
        for i in range(4):
            a("v_add_f32 v%d, v%d, v%d" % (B + i, B + i, B + 8 + i))
        for i in range(4):
            a("v_add_f32 v%d, v%d, v%d" % (B + i, B + i, B + 28 + i))
        for p in range(2):
            a("v_cvt_pk_bf16_f32 v%d, v%d, v%d" % (B + 24 + p, B + 2 * p, B + 1 + 2 * p))
        a("buffer_store_dwordx2 %s, v%d, s[60:63], 0 offen" % (vr(B + 24, 2), B + 26))
    a.stamp()
    a.stamp_flush(0)
    if os.environ.get("STAMP"):
        a("s_waitcnt vmcnt(0)")
        a("s_memrealtime s[18:19]")
        a("s_load_dwordx2 s[8:9], s[0:1], 96")
        a("s_mov_b32 s10, 65536")
        a("s_mov_b32 s11, 0x20000")
        a("s_lshl_b32 s20, s2, 4")
        a("s_add_u32 s20, s20, %d" % (4096 + 4096 * 3))
        a("s_waitcnt lgkmcnt(0)")
        a("s_mov_b64 exec, 1")
        a("v_mov_b32 v4, s18")
        a("v_mov_b32 v5, s93")
        a("v_mov_b32 v6, s18")
        a("v_mov_b32 v7, s92")
        a("v_mov_b32 v2, 0")
        a("buffer_store_dwordx4 v[4:7], v2, s[8:11], s20 offen")
    if os.environ.get("OST"):
        a("s_waitcnt vmcnt(0)")
    a.ostamp(True)
    a("s_endpgm")
```

```python
import sys

NAME = "parallel_sum__compressed_kv_cla__dense_activation_squared_relu__prompt"

MB = 1 << 20
QF = 0
KF = 16 * MB
VF = 32 * MB
AF = 49 * MB
AF_BLK = 368 * 1024
PART = 80 * MB
CTR = 100 * MB
import math, struct
QSC = struct.unpack("<I", struct.pack("<f", (128 ** -0.5) * math.log2(math.e)))[0]


import os
STAMP = os.environ.get("STAMP")
EARLY = "early" in os.environ.get("EXP", "")


class Asm:
    def __init__(self):
        self.lines = []
        self.nst = 0

    def stamp(self):
        if not STAMP:
            return
        self("s_memtime s[98:99]")
        self("s_waitcnt lgkmcnt(0)")
        self("s_mov_b32 s%d, s98" % (68 + self.nst))
        self.nst += 1

    def stamp_flush(self, wgsel, dbgptr_off=96):
        if not STAMP:
            return
        L = "stf_%d" % len(self.lines)
        self("s_cmp_lg_u32 s2, %d" % wgsel)
        self("s_cbranch_scc1 %s" % L)
        self("s_load_dwordx2 s[96:97], s[0:1], %d" % dbgptr_off)
        self("s_waitcnt lgkmcnt(0)")
        self("s_mov_b32 s98, 4096")
        self("s_mov_b32 s99, 0x20000")
        self("v_cmp_eq_u32 vcc, 0, v0")
        self("s_and_saveexec_b64 s[94:95], vcc")
        self("s_cbranch_execz %s" % L)
        for i in range(self.nst):
            self("v_mov_b32 v1, s%d" % (68 + i))
            self("v_mov_b32 v2, %d" % (4 * i + 512 * (self.phase + 1)))
            self("buffer_store_dword v1, v2, s[96:99], 0 offen")
        self.label(L)
        self("s_mov_b64 exec, -1")
        self.nst = 0

    phase = 0
    on = 0

    def ostamp(self, last=False):
        OST = os.environ.get("OST")
        if not OST:
            return
        a = self
        a("s_memrealtime s[98:99]")
        a("s_waitcnt lgkmcnt(0)")
        a("s_mov_b32 s%d, s98" % (68 + self.on if self.on else 93))
        self.on += 1
        if last:
            a("s_cmp_lg_u32 s2, %s" % OST)
            a("s_cbranch_scc1 ost_skip")
            a("s_load_dwordx2 s[96:97], s[0:1], 96")
            a("s_mov_b32 s98, 256")
            a("s_mov_b32 s99, 0x20000")
            a("v_cmp_eq_u32 vcc, 0, v0")
            a("s_and_saveexec_b64 s[94:95], vcc")
            a("s_cbranch_execz ost_skip")
            a("s_waitcnt lgkmcnt(0)")
            for i in range(1, self.on):
                a("s_sub_u32 s94, s%d, s93" % (68 + i))
                a("v_mov_b32 v1, s94")
                a("v_mov_b32 v2, %d" % (28 + 4 * i))
                a("buffer_store_dword v1, v2, s[96:99], 0 offen")
            a.label("ost_skip")
            a("s_mov_b64 exec, -1")

    def gb_signal(self, k):
        a = self
        a("s_load_dwordx2 s[80:81], s[0:1], 96")
        a("s_load_dwordx2 s[84:85], s[0:1], 104")
        a("s_mov_b32 s82, 256")
        a("s_mov_b32 s83, 0x20000")
        a("s_mov_b32 s86, 0x10000000")
        a("s_mov_b32 s87, 0x20000")
        a("s_mov_b64 exec, 1")
        a("v_mov_b32 v12, 1")
        a("v_mov_b32 v13, %d" % (4 * k))
        a("v_mov_b32 v14, 1")
        a("v_mov_b32 v15, 0")
        a("s_and_b32 s88, s2, 15")
        a("s_lshl_b32 s88, s88, 12")
        a("s_add_u32 s88, s88, 0x%x" % (CTR + (k - 1) * 65536))
        a("s_waitcnt lgkmcnt(0)")
        a("buffer_atomic_add v14, v15, s[84:87], s88 offen sc0 sc1")
        a("s_waitcnt vmcnt(0)")
        a("v_readfirstlane_b32 s89, v14")
        a("s_cmp_lg_u32 s89, 15")
        a("s_cbranch_scc1 gs_nr%d" % k)
        a("buffer_atomic_add v12, v13, s[80:83], 0 offen sc1")
        a.label("gs_nr%d" % k)
        a("s_mov_b64 exec, -1")

    def gb_poll(self, k):
        a = self
        a("s_mov_b64 exec, 1")
        a("v_mov_b32 v13, %d" % (4 * k))
        a("s_mov_b32 s88, 0")
        a.label("gp_loop%d" % k)
        a("buffer_load_dword v14, v13, s[80:83], 0 offen sc1")
        a("s_waitcnt vmcnt(0)")
        a("v_readfirstlane_b32 s89, v14")
        a("s_cmp_ge_u32 s89, 16")
        a("s_cbranch_scc1 gp_done%d" % k)
        a("s_add_u32 s88, s88, 1")
        a("s_cmp_gt_u32 s88, 40000")
        a("s_cbranch_scc1 gp_done%d" % k)
        a("s_sleep 8")
        a("s_branch gp_loop%d" % k)
        a.label("gp_done%d" % k)
        a("s_mov_b64 exec, -1")

    def eb_pre(self):
        a = self
        if STAMP:
            a("s_memrealtime s[70:71]")
        a("s_load_dwordx2 s[84:85], s[0:1], 96")
        a("s_mov_b32 s86, 256")
        a("s_mov_b32 s87, 0x20000")
        a("v_mov_b32 v248, 0")
        a("v_mov_b32 v249, 1")
        a("v_mov_b32 v250, 8")
        a("s_cmp_ge_u32 s2, 96")
        a("s_cbranch_scc1 eb_noinit")
        a("s_lshl_b32 s88, s2, 12")
        a("s_add_u32 s88, s88, 0x%x" % CTR)
        a("buffer_store_dword v248, v248, s[8:11], s88 offen sc0 sc1")
        a.label("eb_noinit")
        a("s_waitcnt lgkmcnt(0)")
        a("s_cmp_lg_u32 s6, 0")
        a("s_cbranch_scc1 eb_kok")
        a("s_mov_b64 exec, 1")
        a("s_mov_b32 s88, 0")
        a.label("eb_kloop")
        a("buffer_load_dword v251, v250, s[84:87], 0 offen sc1")
        a("s_waitcnt vmcnt(0)")
        a("v_readfirstlane_b32 s89, v251")
        a("s_cmp_ge_u32 s89, 256")
        a("s_cbranch_scc1 eb_kok")
        a("s_add_u32 s88, s88, 1")
        a("s_cmp_gt_u32 s88, 40000")
        a("s_cbranch_scc1 eb_kok")
        a("s_sleep 8")
        a("s_branch eb_kloop")
        a.label("eb_kok")
        a("s_mov_b64 exec, -1")
        a("s_waitcnt vmcnt(0)")
        a("s_barrier")
        if STAMP:
            a("s_memrealtime s[72:73]")
        a("s_cmp_lg_u32 s6, 0")
        a("s_cbranch_scc1 eb_arr")
        a("s_mov_b64 exec, 1")
        a("s_and_b32 s88, s2, 15")
        a("s_lshl_b32 s88, s88, 2")
        a("s_add_u32 s88, s88, 128")
        a("v_mov_b32 v251, 1")
        a("buffer_atomic_add v251, v248, s[84:87], s88 offen sc0 sc1")
        a("s_waitcnt vmcnt(0)")
        a("v_readfirstlane_b32 s89, v251")
        a("s_cmp_lg_u32 s89, 15")
        a("s_cbranch_scc1 eb_arr")
        a("buffer_atomic_add v249, v248, s[84:87], 0 offen sc1")
        a.label("eb_arr")
        a("s_mov_b64 exec, -1")

    def eb_post(self):
        a = self
        a("s_cmp_lg_u32 s6, %s" % os.environ.get("PW", "1"))
        a("s_cbranch_scc1 eb_done")
        a("s_mov_b64 exec, 1")
        a("s_mov_b32 s88, 0")
        a.label("eb_loop")
        a("buffer_load_dword v251, v248, s[84:87], 0 offen sc1")
        a("s_waitcnt vmcnt(0)")
        a("v_readfirstlane_b32 s89, v251")
        a("s_cmp_ge_u32 s89, 16")
        a("s_cbranch_scc1 eb_fin")
        a("s_add_u32 s88, s88, 1")
        a("s_cmp_gt_u32 s88, 40000")
        a("s_cbranch_scc1 eb_fin")
        a("s_sleep %s" % os.environ.get("SLEEP", "8"))
        a("s_branch eb_loop")
        a.label("eb_fin")
        if STAMP:
            a("s_memrealtime s[74:75]")
            a("s_mov_b32 s86, 65536")
            a("s_lshl_b32 s88, s2, 4")
            a("s_add_u32 s88, s88, 4096")
            a("s_waitcnt lgkmcnt(0)")
            a("v_mov_b32 v252, s70")
            a("v_mov_b32 v253, s72")
            a("v_mov_b32 v254, s74")
            a("v_mov_b32 v255, s92")
            a("buffer_store_dwordx4 v[252:255], v248, s[84:87], s88 offen")
        a.label("eb_done")
        a("s_mov_b64 exec, -1")
        a("s_waitcnt vmcnt(0)")
        a("s_barrier")
        a.ostamp()
        self.phase = 1

    def gridbar(self, k):
        a = self
        if STAMP:
            a("s_memrealtime s[14:15]")
        if k == 0:
            a("s_cmp_ge_u32 s2, 96")
            a("s_cbranch_scc1 gb_noinit")
            a("s_load_dwordx2 s[8:9], s[0:1], 104")
            a("s_mov_b32 s10, 0x10000000")
            a("s_mov_b32 s11, 0x20000")
            a("s_lshl_b32 s12, s2, 12")
            a("s_add_u32 s12, s12, 0x%x" % CTR)
            a("v_mov_b32 v1, 0")
            a("v_mov_b32 v2, 0")
            a("s_waitcnt lgkmcnt(0)")
            a("buffer_store_dword v1, v2, s[8:11], s12 offen sc0 sc1")
            a.label("gb_noinit")
        a("s_waitcnt vmcnt(0) lgkmcnt(0)")
        a("s_barrier")
        if STAMP:
            a("s_memrealtime s[16:17]")
        a("v_lshrrev_b32 v1, 6, v0")
        a("s_nop 0")
        a("v_readfirstlane_b32 s6, v1")
        a("s_cmp_lg_u32 s6, 0")
        a("s_cbranch_scc1 gb_wait%d" % k)
        a("s_load_dwordx2 s[8:9], s[0:1], 96")
        a("s_load_dwordx2 s[24:25], s[0:1], 104")
        a("s_mov_b32 s10, 256")
        a("s_mov_b32 s11, 0x20000")
        a("s_mov_b32 s26, 0x10000000")
        a("s_mov_b32 s27, 0x20000")
        a("s_mov_b64 exec, 1")
        a("v_mov_b32 v1, 1")
        a("v_mov_b32 v2, %d" % (4 * k))
        a("s_waitcnt lgkmcnt(0)")
        tgt = 256
        if True:
            tgt = 16
            a("s_and_b32 s12, s2, 15")
            a("v_mov_b32 v3, 1")
            a("v_mov_b32 v4, 0")
            if k > 0:
                a("s_lshl_b32 s12, s12, 12")
                a("s_add_u32 s12, s12, 0x%x" % (CTR + (k - 1) * 65536))
                a("buffer_atomic_add v3, v4, s[24:27], s12 offen sc0 sc1")
            else:
                a("s_lshl_b32 s12, s12, 2")
                a("s_add_u32 s12, s12, 128")
                a("buffer_atomic_add v3, v4, s[8:11], s12 offen sc0 sc1")
            a("s_waitcnt vmcnt(0)")
            a("v_readfirstlane_b32 s13, v3")
            a("s_cmp_lg_u32 s13, 15")
            a("s_cbranch_scc1 gb_nr%d" % k)
        a("buffer_atomic_add v1, v2, s[8:11], 0 offen sc1")
        if True:
            a.label("gb_nr%d" % k)
        a("s_mov_b32 s12, 0")
        a.label("gb_loop%d" % k)
        a("buffer_load_dword v3, v2, s[8:11], 0 offen %s" % os.environ.get("PSC", "sc1"))
        a("s_waitcnt vmcnt(0)")
        a("v_readfirstlane_b32 s13, v3")
        a("s_cmp_ge_u32 s13, %d" % tgt)
        a("s_cbranch_scc1 gb_done%d" % k)
        a("s_add_u32 s12, s12, 1")
        a("s_cmp_gt_u32 s12, 40000")
        a("s_cbranch_scc1 gb_done%d" % k)
        a("s_sleep %s" % os.environ.get("SLEEP", "8"))
        a("s_branch gb_loop%d" % k)
        a.label("gb_done%d" % k)
        if STAMP:
            a("s_memrealtime s[18:19]")
            a("s_mov_b32 s10, 65536")
            a("s_lshl_b32 s20, s2, 4")
            a("s_add_u32 s20, s20, %d" % (4096 + 4096 * k))
            a("s_waitcnt lgkmcnt(0)")
            a("s_mov_b64 exec, 1")
            a("v_mov_b32 v4, s14")
            a("v_mov_b32 v5, s16")
            a("v_mov_b32 v6, s18")
            a("v_mov_b32 v7, s92")
            a("v_mov_b32 v2, 0")
            a("buffer_store_dwordx4 v[4:7], v2, s[8:11], s20 offen")
        a("s_mov_b64 exec, -1")
        a("s_waitcnt lgkmcnt(0)")
        a.label("gb_wait%d" % k)
        a("s_barrier")
        if "inv" in os.environ.get("EXP", ""):
            a("buffer_inv sc1")
        self.phase = k + 1

    inloop = False

    def __call__(self, s):
        EXP = os.environ.get("EXP", "")
        if self.inloop:
            if "nomfma" in EXP and s.startswith("v_mfma"):
                return
            if "novalu" in EXP and s.startswith("v_") and not s.startswith("v_mfma") and not s.startswith("v_cmp") and "0x1ffff" not in s and "0x8000" not in s and not s.startswith("v_mov") and not s.startswith("v_add_u32"):
                return
            if "nolds" in EXP and s.startswith("ds_read"):
                return
            if "nodma" in EXP and s.startswith("buffer_load"):
                return
            if "nobar" in EXP and s.startswith("s_barrier"):
                return
        if "nosc1" in EXP and s.startswith("buffer_store") and s.endswith(" sc1"):
            s = s[:-4]
        self.lines.append("  " + s)

    def label(self, s):
        self.lines.append(s + ":")

    def raw(self, s):
        self.lines.append(s)

    def nop(self, n):
        while n > 0:
            k = min(n, 16)
            self("s_nop %d" % (k - 1))
            n -= k


def vr(a, n):
    return "v[%d:%d]" % (a, a + n - 1)


def sr(a, n):
    return "s[%d:%d]" % (a, a + n - 1)


def gen_proj(a):
    V_LANE = 1
    V_TR = 2
    V_OFFC = 10
    V_OFFN = 11
    V_ST = 12
    V_T0 = 13
    V_B = 16
    V_ACC = 48
    V_A = 112
    V_ROWI = 13
    V_SWZ = 14
    V_T = 15
    V_AOFF = 240

    a.label("mega_kernel")
    a("s_cmp_lt_u32 s2, 256")
    a("s_cbranch_scc1 proj_start")
    a("s_endpgm")
    a.label("proj_start")
    a.ostamp()
    if STAMP:
        a("s_memrealtime s[92:93]")
    a.stamp()
    a("s_load_dwordx2 s[8:9], s[0:1], 96")
    a("s_load_dwordx2 s[82:83], s[0:1], 96")
    a("s_load_dwordx16 s[24:39], s[0:1], 0")
    a("s_load_dwordx4 s[40:43], s[0:1], 64")
    a("s_load_dwordx2 s[44:45], s[0:1], 104")
    EXPF = os.environ.get("EXP", "")
    if "tick" in EXPF:
        a("v_lshrrev_b32 v1, 6, v0")
        a("v_lshlrev_b32 v4, 14, v1")
        a("v_add_u32 v4, 0x8000, v4")
        a("v_readfirstlane_b32 s6, v1")
        a("s_getreg_b32 s4, hwreg(HW_REG_XCC_ID)")
        a("s_and_b32 s4, s4, 7")
        if "tkforce" in EXPF:
            a("s_min_u32 s4, s4, 4")
        a("s_mov_b32 s10, 256")
        a("s_mov_b32 s11, 0x20000")
        a("s_lshl_b32 s5, s4, 2")
        a("s_add_u32 s5, s5, 192")
        a("v_mov_b32 v2, s5")
        a("v_mov_b32 v3, 1")
        a("s_cmp_eq_u32 s6, 0")
        a("s_cbranch_scc1 tk_w0")
        a("s_cmp_lg_u32 s6, 7")
        a("s_cbranch_scc1 tk_wait")
        a("s_mov_b64 exec, 1")
        a("s_waitcnt lgkmcnt(0)")
        a("v_subrev_u32 v2, 160, v2")
        a("buffer_atomic_add v3, v2, s[8:11], 0 offen sc1")
        a("s_mov_b64 exec, -1")
        a("s_branch tk_wait")
        a.label("tk_w0")
        a("s_mov_b64 exec, 1")
        a("s_waitcnt lgkmcnt(0)")
        a("buffer_atomic_add v3, v2, s[8:11], 0 offen sc0%s" % (" sc1" if "tkforce" in EXPF or "tkglob" in EXPF else ""))
        a("s_waitcnt vmcnt(0)")
        a("v_readfirstlane_b32 s5, v3")
        a("s_cmp_lt_u32 s5, 32")
        a("s_cbranch_scc1 tk_got")
        a("s_mov_b32 s7, 0")
        a("v_mov_b32 v2, 32")
        a.label("tk_poll")
        a("buffer_load_dwordx4 v[8:11], v2, s[8:11], 0 offen sc1")
        a("buffer_load_dwordx4 v[12:15], v2, s[8:11], 0 offen offset:16 sc1")
        a("s_waitcnt vmcnt(0)")
        a("s_mov_b32 s12, 0")
        for i in range(8):
            a("v_readfirstlane_b32 s%d, v%d" % (48 + i, 8 + i))
            a("s_add_u32 s12, s12, s%d" % (48 + i))
        a("s_cmp_ge_u32 s12, 256")
        a("s_cbranch_scc1 tk_full")
        a("s_add_u32 s7, s7, 1")
        a("s_sleep 8")
        a("s_cmp_lt_u32 s7, 40000")
        a("s_cbranch_scc1 tk_poll")
        a.label("tk_fail")
        a("s_lshr_b32 s5, s2, 3")
        a("s_and_b32 s4, s2, 7")
        a("s_branch tk_got")
        a.label("tk_full")
        a("s_sub_u32 s5, s5, 32")
        for i in range(7):
            a("s_max_u32 s12, s%d, 32" % (48 + i))
            a("s_sub_u32 s12, s12, 32")
            a("s_cmp_gt_u32 s4, %d" % i)
            a("s_cselect_b32 s12, s12, 0")
            a("s_add_u32 s5, s5, s12")
        for i in range(8):
            a("s_min_u32 s12, s%d, 32" % (48 + i))
            a("s_sub_u32 s13, 32, s12")
            a("s_mov_b32 s4, %d" % i)
            a("s_cmp_lt_u32 s5, s13")
            a("s_cbranch_scc1 tk_slot")
            a("s_sub_u32 s5, s5, s13")
        a("s_branch tk_fail")
        a.label("tk_slot")
        a("s_add_u32 s5, s5, s12")
        a.label("tk_got")
        a("s_lshl_b32 s5, s5, 3")
        a("s_add_u32 s5, s5, s4")
        a("s_mov_b64 exec, 0xff")
        a("v_lshlrev_b32 v2, 14, v0")
        a("v_add_u32 v2, 0x8000, v2")
        a("v_mov_b32 v3, s5")
        a("ds_write_b32 v2, v3")
        a("s_mov_b64 exec, -1")
        a("s_waitcnt lgkmcnt(0)")
        a.label("tk_wait")
        a("s_barrier")
        a("ds_read_b32 v3, v4")
        a("s_waitcnt lgkmcnt(0)")
        a("v_readfirstlane_b32 s2, v3")
        a("s_and_b32 s2, s2, 255")
        if STAMP:
            a("s_memrealtime s[96:97]")
            a("s_waitcnt lgkmcnt(0)")
            a("s_mov_b32 s93, s96")
    PM = os.environ.get("PM", "5")
    if PM == "0":
        a("s_lshr_b32 s3, s2, 5")
        a("s_and_b32 s4, s2, 31")
    elif PM == "1":
        a("s_and_b32 s3, s2, 7")
        a("s_lshr_b32 s4, s2, 3")
    elif PM == "2":
        a("s_and_b32 s3, s2, 3")
        a("s_bfe_u32 s4, s2, 0x10003")
        a("s_lshl_b32 s4, s4, 2")
        a("s_or_b32 s3, s3, s4")
        a("s_bfe_u32 s4, s2, 0x10002")
        a("s_lshr_b32 s5, s2, 4")
        a("s_lshl_b32 s5, s5, 1")
        a("s_or_b32 s4, s4, s5")
    elif PM == "3":
        a("s_and_b32 s3, s2, 1")
        a("s_bfe_u32 s4, s2, 0x20003")
        a("s_lshl_b32 s4, s4, 1")
        a("s_or_b32 s3, s3, s4")
        a("s_bfe_u32 s4, s2, 0x20001")
        a("s_lshr_b32 s5, s2, 5")
        a("s_lshl_b32 s5, s5, 2")
        a("s_or_b32 s4, s4, s5")
    elif PM == "4":
        a("s_lshr_b32 s3, s2, 5")
        a("s_bfe_u32 s4, s2, 0x40001")
        a("s_and_b32 s5, s2, 1")
        a("s_lshl_b32 s5, s5, 4")
        a("s_or_b32 s4, s4, s5")
    elif PM == "5":
        a("s_bfe_u32 s3, s2, 0x10001")
        a("s_bfe_u32 s4, s2, 0x20003")
        a("s_lshl_b32 s4, s4, 1")
        a("s_or_b32 s3, s3, s4")
        a("s_bfe_u32 s4, s2, 0x10002")
        a("s_lshr_b32 s5, s2, 5")
        a("s_lshl_b32 s5, s5, 1")
        a("s_or_b32 s4, s4, s5")
        a("s_and_b32 s5, s2, 1")
        a("s_lshl_b32 s5, s5, 4")
        a("s_or_b32 s4, s4, s5")
    elif PM == "6":
        a("s_bfe_u32 s3, s2, 0x30001")
        a("s_lshr_b32 s4, s2, 4")
        a("s_and_b32 s5, s2, 1")
        a("s_lshl_b32 s5, s5, 4")
        a("s_or_b32 s4, s4, s5")
    a("v_lshrrev_b32 v1, 6, v0")
    a("s_nop 0")
    a("v_readfirstlane_b32 s6, v1")
    a("v_and_b32 v1, 63, v0")
    a("s_waitcnt lgkmcnt(0)")
    a.stamp()
    a("s_cmp_lt_u32 s4, 16")
    a("s_cselect_b32 s8, s24, s26")
    a("s_cselect_b32 s9, s25, s27")
    a("s_cselect_b32 s5, 0, 1")
    a("s_and_b32 s4, s4, 15")
    a("s_mov_b32 s10, 0x200000")
    a("s_mov_b32 s11, 0x20000")
    a("s_mov_b32 s16, s44")
    a("s_mov_b32 s17, s45")
    a("s_mov_b32 s18, 0x10000000")
    a("s_mov_b32 s19, 0x20000")
    a("s_mov_b32 s20, s40")
    a("s_mov_b32 s21, s41")
    a("s_mov_b32 s22, 3584")
    a("s_mov_b32 s23, 0x20000")
    a("s_mov_b32 s15, 0x20000")
    a("s_mov_b32 s51, 0x20000")
    a("s_lshl_b32 s58, s6, 12")
    a("s_lshl_b32 s59, s3, 3")
    a("s_add_u32 s59, s59, s6")
    a("v_and_b32 v13, 15, v1")
    a("v_lshlrev_b32 v13, 10, v13")
    a("v_lshrrev_b32 v14, 4, v1")
    a("v_lshlrev_b32 v14, 4, v14")
    a("v_add_u32 v13, v13, v14")
    a("s_movk_i32 s65, 0x4000")
    a("s_lshl_b32 s60, s59, 15")
    a("v_add_u32 v13, s60, v13")
    a("v_mov_b32 v%d, v13" % V_AOFF)

    def aloads(lo, hi):
        for s in range(lo, hi):
            a("buffer_load_dwordx4 %s, v%d, s[8:11], %s offen offset:%d" % (
                vr(V_A + 4 * s, 4), V_AOFF, "s65" if s & 1 else "0", (s >> 1) * 64))

    def aswaps(lo, hi):
        for s in range(lo, hi, 2):
            for j in range(4):
                a("v_permlane16_swap_b32 v%d, v%d" % (V_A + 4 * s + j, V_A + 4 * s + 4 + j))
        a("s_nop 1")
    a("v_bfe_u32 v13, v1, 2, 2")
    a("v_lshrrev_b32 v14, 5, v1")
    a("v_lshl_add_u32 v14, v14, 4, v13")
    a("v_lshlrev_b32 v14, 8, v14")
    a("v_bfe_u32 v15, v1, 4, 1")
    a("v_lshl_add_u32 v14, v15, 5, v14")
    a("v_and_b32 v15, 3, v1")
    a("v_lshl_add_u32 v14, v15, 3, v14")
    a("v_lshlrev_b32 v13, 6, v13")
    for nt in range(4):
        a("v_xor_b32 v15, %d, v13" % (nt << 6))
        a("v_add_u32 v%d, v14, v15" % (V_TR + nt))
        a("v_add_u32 v%d, 0x10000, v%d" % (V_TR + 4 + nt, V_TR + nt))
    a("v_lshlrev_b32 v%d, 4, v1" % V_ST)
    a("v_lshrrev_b32 v13, 4, v1")
    a("v_bfe_u32 v14, v1, 2, 2")
    a("v_xor_b32 v14, v14, v13")
    a("v_lshlrev_b32 v14, 6, v14")
    a("v_and_b32 v15, 3, v1")
    a("v_lshl_add_u32 v14, v15, 4, v14")
    a("s_lshl_b32 s60, s6, 4")
    a("v_add_u32 v13, s60, v13")

    def set_params(which, wlo, whi, nrec, ldw, colexpr_reg):
        base = 12 if which == "cur" else 48
        sl, sc = (52, 53) if which == "cur" else (54, 55)
        voff = V_OFFC if which == "cur" else V_OFFN
        a("s_mov_b32 s%d, s%d" % (base, wlo))
        a("s_mov_b32 s%d, s%d" % (base + 1, whi))
        if isinstance(nrec, str):
            a("s_mov_b32 s%d, %s" % (base + 2, nrec))
        else:
            a("s_mov_b32 s%d, 0x%x" % (base + 2, nrec))
        a("s_mov_b32 s%d, %d" % (sl, ldw))
        a("s_mov_b32 s%d, %s" % (sc, colexpr_reg))
        a("v_mul_lo_u32 v%d, v%d, s%d" % (voff, V_ROWI, sl))
        a("v_add_u32 v%d, v%d, v%d" % (voff, voff, V_SWZ))

    def dma(kc, which):
        base = 12 if which == "cur" else 48
        sl, sc = (52, 53) if which == "cur" else (54, 55)
        voff = V_OFFC if which == "cur" else V_OFFN
        for i in range(4):
            a("s_add_u32 m0, s58, %d" % (kc * 32768 + i * 1024))
            a("s_mul_i32 s57, s%d, %d" % (sl, kc * 128 + 4 * i))
            a("s_add_u32 s57, s57, s%d" % sc)
            a("buffer_load_dwordx4 v%d, %s, s57 offen lds" % (voff, sr(base, 4)))

    def reads(kc, s, setidx):
        hi = 4 if kc >= 2 else 0
        off = (kc & 1) * 32768 + (s >> 1) * 8192 + (s & 1) * 2048
        for nt in range(4):
            for ird in range(2):
                a("ds_read_b64_tr_b16 %s, v%d offset:%d" % (
                    vr(V_B + setidx * 16 + nt * 4 + ird * 2, 2), V_TR + hi + nt, off + ird * 1024))

    def epi_part(kind, nt):
        if kind == "Q":
            for i in range(16):
                a("v_mul_f32 v%d, v%d, v%d" % (V_ACC + 16 * nt + i, V_LNR + 1, V_ACC + 16 * nt + i))
        for t in range(2):
            d = V_ACC + 16 * nt + 8 * t
            for p in range(4):
                x0 = V_ACC + 16 * nt + 8 * t + 2 * p
                a("v_cvt_pk_bf16_f32 v%d, v%d, v%d" % (d + p, x0, x0 + 1))
            a("buffer_store_dwordx4 %s, v%d, s[16:19], s%d offen offset:%d sc1" % (
                vr(d, 4), V_ST, 90 if nt < 2 else 91, ((nt * 2 + t) & 3) * 1024))
        a("s_nop 1")

    def compute(kc, kind, extra=None, prev=None, hooks=None):
        extra = list(extra or [])
        per = -(-len(extra) // 32)
        for s in range(8):
            if hooks and s in hooks:
                hooks[s]()
            if s < 7:
                reads(kc, s + 1, (s + 1) & 1)
            else:
                reads((kc + 1) & 3, 0, 0)
            a("s_waitcnt lgkmcnt(8)")
            ks = kc * 8 + s
            for nt in range(4):
                acc = vr(V_ACC + 16 * nt, 16)
                wf = vr(V_B + (s & 1) * 16 + nt * 4, 4)
                af = vr(V_A + 4 * ks, 4)
                c = "0" if ks == 0 else acc
                if prev and ks == 0:
                    epi_part(prev, nt)
                if kind == "V":
                    a("v_mfma_f32_32x32x16_bf16 %s, %s, %s, %s" % (acc, af, wf, c))
                else:
                    a("v_mfma_f32_32x32x16_bf16 %s, %s, %s, %s" % (acc, wf, af, c))
                for x in extra[:per]:
                    a(x)
                extra = extra[per:]
        assert not extra

    def aload_ops(lo, hi):
        ops = []
        for s in range(lo, hi):
            ops.append("buffer_load_dwordx4 %s, v%d, s[8:11], %s offen offset:%d" % (
                vr(V_A + 4 * s, 4), V_AOFF, "s65" if s & 1 else "0", (s >> 1) * 64))
            ops += ["s_nop 0"] * 3
        return ops

    V_LNM = 244
    V_LNR = 246
    V_LNT = 248

    def norm_ops(q):
        ops = []
        for i in range(32 * q, 32 * q + 32):
            r = V_A + i
            t = 248 + 2 * (i % 3)
            ops.append("v_lshlrev_b32 v%d, 16, v%d" % (t, r))
            ops.append("v_and_b32 v%d, 0xffff0000, v%d" % (t + 1, r))
            ops.append("v_pk_add_f32 %s, %s, %s neg_lo:[0,1] neg_hi:[0,1]" % (vr(t, 2), vr(t, 2), vr(V_LNM, 2)))
            ops.append("v_cvt_pk_bf16_f32 v%d, v%d, v%d" % (r, t, t + 1))
        return ops

    def epilogue(kind):
        if kind == "H":
            a("s_waitcnt lgkmcnt(0)")
            a("v_lshrrev_b32 v15, 5, v1")
            a("v_lshlrev_b32 v15, 3, v15")
            for nt in range(4):
                for q in range(4):
                    a("buffer_load_dwordx2 %s, v15, s[20:23], s53 offen offset:%d" % (
                        vr(V_B + (nt * 4 + q) * 2, 2), 64 * nt + 16 * q))
            a.nop(12)
            for i in range(64):
                a("v_mul_f32 v%d, v%d, v%d" % (V_ACC + i, V_LNR, V_ACC + i))
            a("s_waitcnt vmcnt(0)")
            for nt in range(4):
                for q in range(4):
                    r0 = V_ACC + 16 * nt + 4 * q
                    b0 = V_B + (nt * 4 + q) * 2
                    for p in range(2):
                        x0, x1 = r0 + 2 * p, r0 + 2 * p + 1
                        bb = b0 + p
                        a("v_cvt_pk_bf16_f32 v15, v%d, v%d" % (x0, x1))
                        a("v_lshlrev_b32 v%d, 16, v15" % x0)
                        a("v_and_b32 v%d, 0xffff0000, v15" % x1)
                        a("v_lshlrev_b32 v15, 16, v%d" % bb)
                        a("v_add_f32 v%d, v%d, v15" % (x0, x0))
                        a("v_and_b32 v15, 0xffff0000, v%d" % bb)
                        a("v_add_f32 v%d, v%d, v15" % (x1, x1))
                        a("v_cvt_pk_bf16_f32 v15, v%d, v%d" % (x0, x1))
                        a("v_lshlrev_b32 v%d, 16, v15" % x0)
                        a("v_and_b32 v%d, 0xffff0000, v15" % x1)
                        a("v_max_f32 v%d, 0, v%d" % (x0, x0))
                        a("v_max_f32 v%d, 0, v%d" % (x1, x1))
                        a("v_mul_f32 v%d, v%d, v%d" % (x0, x0, x0))
                        a("v_mul_f32 v%d, v%d, v%d" % (x1, x1, x1))
        else:
            a.nop(12)
        if kind == "Q":
            for i in range(64):
                a("v_mul_f32 v%d, v%d, v%d" % (V_ACC + i, V_LNR + 1, V_ACC + i))
        a("s_add_u32 s67, s56, 4096")
        for nt in range(4):
            for t in range(2):
                d = V_ACC + 16 * nt + 8 * t
                for p in range(4):
                    x0 = V_ACC + 16 * nt + 8 * t + 2 * p
                    a("v_cvt_pk_bf16_f32 v%d, v%d, v%d" % (d + p, x0, x0 + 1))
                a("buffer_store_dwordx4 %s, v%d, s[16:19], s%d offen offset:%d sc1" % (
                    vr(d, 4), V_ST, 56 if nt < 2 else 67, ((nt * 2 + t) & 3) * 1024))
        a.nop(2)

    def W(n):
        a("s_waitcnt vmcnt(%d)" % n)

    sigc = [0]

    def sig_kq():
        if not EARLY:
            return
        sigc[0] += 1
        a("s_cmp_lg_u32 s6, 0")
        a("s_cbranch_scc1 sigkq%d" % sigc[0])
        a("s_mov_b32 s84, s82")
        a("s_mov_b32 s85, s83")
        a("s_mov_b32 s86, 256")
        a("s_mov_b32 s87, 0x20000")
        a("s_mov_b64 exec, 1")
        a("v_mov_b32 v252, 1")
        a("v_mov_b32 v253, 8")
        a("buffer_atomic_add v252, v253, s[84:87], 0 offen sc1")
        a("s_mov_b64 exec, -1")
        a.label("sigkq%d" % sigc[0])

    def ckv_first(kc):
        B = lambda: a("s_barrier")
        if kc == 0:
            return (lambda: None), {
                1: lambda: (W(12 + NP0), a_read(2, 4)),
                2: lambda: a_dma(5, 4),
                4: lambda: (W(8), a_read(3, 2)),
                6: lambda: (B(), dma(2, "cur"))}
        if kc == 1:
            return (lambda: (B(), a_dma(6, 0))), {
                1: lambda: (W(12), a_read(4, 3)),
                3: lambda: (W(8), a_read(5, 4)),
                6: lambda: (W(4), B(), a_dma(7, 4), dma(3, "cur"))}
        if kc == 2:
            return (lambda: (B(), dma(1, "next"))), {
                1: lambda: (W(12), a_read(6, 0)),
                3: lambda: (W(8), a_read(7, 4)),
                6: lambda: (W(4), B(), dma(0, "next"))}
        return (lambda: (B(), dma(2, "next"))), {
            7: lambda: (W(4), B())}

    def chunk(kind, set_next, set_out, prev=None, defer=False, first=None, pf=False, sig=False):
        waits = (4, 12, 12, 4) if prev else (8, 4, 4, 4)
        if pf:
            waits = (4, 12 + NPF, 12 + NPF, 4)
        if prev:
            a("s_mov_b32 s90, s56")
            a("s_add_u32 s91, s56, 4096")
        set_next()
        set_out()
        for kc in range(4):
            extra = hooks = None
            if first == "ckv":
                st, hooks = ckv_first(kc)
                st()
            else:
                a("s_waitcnt vmcnt(%d)" % waits[kc])
                a("s_barrier")
                if kc < 1:
                    if not first:
                        dma(kc + 3, "cur")
                    if pf:
                        prefetch(pf)
                else:
                    dma(kc - 1, "next")
                if sig and kc == 3:
                    sig_kq()
            if first == "xn" and kc < 3:
                extra = norm_ops(kc + 1)
            if kc == 0:
                a.stamp()
            compute(kc, kind, extra, prev, hooks)
        a.stamp()
        if not defer:
            epilogue(kind)
        a.stamp()
        for i in range(3):
            a("s_mov_b32 s%d, s%d" % (12 + i, 48 + i))
        a("s_mov_b32 s52, s54")
        a("s_mov_b32 s53, s55")
        a("v_mov_b32 v%d, v%d" % (V_OFFC, V_OFFN))

    a("s_lshl_b32 s61, s4, 8")
    a("s_mov_b32 s46, s61")
    if "rev" in EXPF:
        a("s_and_b32 s47, s3, 1")
        a("s_lshl_b32 s47, s47, 12")
        a("s_xor_b32 s61, s61, s47")
    a("s_xor_b32 s62, s61, 4096")
    a("s_lshl_b32 s63, s61, 11")
    a("s_lshl_b32 s64, s59, 13")
    a("s_add_u32 s63, s63, s64")
    a("s_xor_b32 s64, s63, 0x800000")
    V_AD, V_AR = 240, 241
    a("v_and_b32 v24, 7, v1")
    a("v_lshrrev_b32 v25, 3, v1")
    a("v_lshrrev_b32 v26, 1, v25")
    a("v_xor_b32 v26, v24, v26")
    a("v_lshlrev_b32 v26, 4, v26")
    a("v_lshl_add_u32 v26, v25, 10, v26")
    a("s_lshl_b32 s60, s59, 15")
    a("v_add_u32 v%d, s60, v26" % V_AD)
    a("s_lshl_b32 s66, s6, 12")
    a("v_and_b32 v24, 31, v1")
    a("v_lshrrev_b32 v25, 5, v1")
    a("v_bfe_u32 v26, v24, 1, 3")
    a("v_lshlrev_b32 v27, 1, v25")
    a("v_xor_b32 v26, v26, v27")
    a("v_lshlrev_b32 v26, 4, v26")
    a("v_lshl_add_u32 v26, v24, 7, v26")
    a("v_add_u32 v%d, s66, v26" % V_AR)
    a("v_add_u32 v%d, 0x10000, v%d" % (V_AR + 1, V_AR))
    a("v_add_u32 v%d, 0x20000, v%d" % (V_AR + 2, V_AR))

    def a_dma(e, reg):
        for j in range(4):
            a("v_xor_b32 v%d, %d, v%d" % (248 + j, 64 * (j & 1), V_AD))
            a("s_add_u32 m0, s66, %d" % (reg * 32768 + 1024 * j))
            a("s_movk_i32 s67, %d" % (8192 * j + 128 * e))
            a("buffer_load_dwordx4 v%d, s[8:11], s67 offen lds" % (248 + j))

    def a_read(e, reg):
        for s_ in range(4):
            c0 = (4 * (s_ >> 1) + (s_ & 1)) * 16
            a("v_xor_b32 v%d, %d, v%d" % (248 + s_, c0, V_AR + (reg >> 1)))
            a("ds_read_b128 %s, v%d offset:%d" % (vr(V_A + 4 * (4 * e + s_), 4), 248 + s_, (reg & 1) * 32768))

    def L0():
        a("s_waitcnt lgkmcnt(0)")

    def stats(q):
        for i in range(32 * q, 32 * q + 32):
            r = V_A + i
            t = 20 + 2 * (i & 3)
            a("v_lshlrev_b32 v%d, 16, v%d" % (t, r))
            a("v_and_b32 v%d, 0xffff0000, v%d" % (t + 1, r))
            a("v_pk_add_f32 v[16:17], v[16:17], %s" % vr(t, 2))
            a("v_pk_fma_f32 v[18:19], %s, %s, v[18:19]" % (vr(t, 2), vr(t, 2)))

    NPF = 4 if "pfall" in EXPF else (2 if "pfv2" in EXPF else (0 if "nopf" in EXPF else 1))

    def prefetch(stage=1):
        if not NPF:
            return
        if NPF == 1:
            big, small = (32, 38) if stage == 1 else (34, 42)
            a("s_lshl_b32 s88, s2, 3")
            a("s_add_u32 s88, s88, s6")
            a("v_lshlrev_b32 v255, 6, v1")
            a("s_cmp_lt_u32 s88, 1024")
            a("s_cselect_b32 s84, s%d, s%d" % (big, small))
            a("s_cselect_b32 s85, s%d, s%d" % (big + 1, small + 1))
            a("s_cselect_b32 s86, s7, 0x1c0000")
            a("s_mov_b32 s87, 0x20000")
            a("s_and_b32 s89, s88, 1023")
            a("s_lshl_b32 s89, s89, 12")
            a("buffer_load_dword v254, v255, s[84:87], s89 offen")
            return
        if NPF == 2:
            a("s_lshl_b32 s88, s2, 3")
            a("s_add_u32 s88, s88, s6")
            a("v_lshlrev_b32 v255, 7, v1")
            a("s_lshr_b32 s89, s88, 9")
            a("s_mov_b32 s84, s32")
            a("s_mov_b32 s85, s33")
            a("s_mov_b32 s86, 0x400000")
            for m, src in ((1, 34), (2, 38), (3, 42)):
                a("s_cmp_eq_u32 s89, %d" % m)
                a("s_cselect_b32 s84, s%d, s84" % src)
                a("s_cselect_b32 s85, s%d, s85" % (src + 1))
            a("s_cmp_ge_u32 s89, 2")
            a("s_cselect_b32 s86, 0x1c0000, s86")
            a("s_mov_b32 s87, 0x20000")
            a("s_and_b32 s89, s88, 511")
            a("s_lshl_b32 s89, s89, 13")
            a("buffer_load_dword v254, v255, s[84:87], s89 offen")
            a("buffer_load_dword v254, v255, s[84:87], s89 offen offset:64")
            return
        a("s_lshl_b32 s88, s2, 3")
        a("s_add_u32 s88, s88, s6")
        a("v_lshlrev_b32 v255, 7, v1")
        a("s_lshr_b32 s89, s88, 9")
        a("s_mov_b32 s84, s28")
        a("s_mov_b32 s85, s29")
        for m in range(1, 4):
            a("s_cmp_eq_u32 s89, %d" % m)
            a("s_cselect_b32 s84, s%d, s84" % (28 + 2 * m))
            a("s_cselect_b32 s85, s%d, s85" % (29 + 2 * m))
        a("s_mov_b32 s86, 0x400000")
        a("s_mov_b32 s87, 0x20000")
        a("s_and_b32 s89, s88, 511")
        a("s_lshl_b32 s89, s89, 13")
        a("buffer_load_dword v254, v255, s[84:87], s89 offen")
        a("buffer_load_dword v254, v255, s[84:87], s89 offen offset:64")
        a("s_cmp_lt_u32 s88, 224")
        a("s_cselect_b32 s84, s38, s42")
        a("s_cselect_b32 s85, s39, s43")
        a("s_cselect_b32 s89, 0, 224")
        a("s_sub_u32 s89, s88, s89")
        a("s_lshl_b32 s89, s89, 13")
        a("s_cmp_lt_u32 s88, 448")
        a("s_cselect_b32 s86, 0x1c0000, 0")
        a("buffer_load_dword v254, v255, s[84:87], s89 offen")
        a("buffer_load_dword v254, v255, s[84:87], s89 offen offset:64")

    NP0 = int(os.environ.get("NP0", "0"))

    def prefetch0():
        if not NP0:
            return
        a("s_lshl_b32 s88, s2, 3")
        a("s_add_u32 s88, s88, s6")
        a("v_lshlrev_b32 v255, 7, v1")
        a("s_lshr_b32 s89, s88, 9")
        a("s_mov_b32 s84, s28")
        a("s_mov_b32 s85, s29")
        for m in range(1, 4):
            src = 28 + 2 * m if m < 3 else 38
            a("s_cmp_eq_u32 s89, %d" % m)
            a("s_cselect_b32 s84, s%d, s84" % src)
            a("s_cselect_b32 s85, s%d, s85" % (src + 1))
        a("s_cselect_b32 s86, 0x1c0000, s7")
        a("s_mov_b32 s87, 0x20000")
        a("s_and_b32 s89, s88, 511")
        a("s_lshl_b32 s89, s89, 13")
        for i in range(NP0):
            a("buffer_load_dword v254, v255, s[84:87], s89 offen offset:%d" % (64 * i))

    a("s_mov_b32 s7, 0x400000")
    a("s_cmp_eq_u32 s5, 1")
    a("s_cbranch_scc1 proj_ckv")
    set_params("cur", 28, 29, 0x400000, 8192, "s61")
    a_dma(0, 2)
    a_dma(1, 3)
    a_dma(2, 4)
    dma(0, "cur")
    prefetch0()
    a("v_mov_b32 v16, 0")
    a("v_mov_b32 v17, 0")
    a("v_mov_b32 v18, 0")
    a("v_mov_b32 v19, 0")
    W(12 + NP0); a_read(0, 2); L0(); a_dma(3, 2)
    W(12 + NP0); a_read(1, 3); L0(); a_dma(4, 3)
    W(12 + NP0); a_read(2, 4); L0(); a_dma(5, 4)
    dma(1, "cur")
    stats(0)
    W(12); a_read(3, 2); L0(); a_dma(6, 2)
    W(12); a_read(4, 3); L0(); a_dma(7, 3)
    stats(1)
    W(12); a_read(5, 4); L0()
    stats(2)
    W(4); a_read(6, 2)
    W(0); a_read(7, 3); L0()
    a("s_barrier")
    dma(2, "cur")
    dma(3, "cur")
    stats(3)
    a.stamp()
    a("v_add_f32 v16, v16, v17")
    a("v_add_f32 v18, v18, v19")
    a("v_mov_b32 v17, v16")
    a("v_mov_b32 v19, v18")
    a.nop(2)
    a("v_permlane32_swap_b32 v16, v17")
    a("v_permlane32_swap_b32 v18, v19")
    a.nop(2)
    a("v_add_f32 v16, v16, v17")
    a("v_add_f32 v18, v18, v19")
    a("v_mul_f32 v16, 0x3b000000, v16")
    a("v_mul_f32 v18, 0x3b000000, v18")
    a("v_fma_f32 v18, -v16, v16, v18")
    a("v_max_f32 v18, 0, v18")
    a("v_cvt_pk_bf16_f32 v16, v16, v18")
    a("v_and_b32 v18, 0xffff0000, v16")
    a("v_lshlrev_b32 v16, 16, v16")
    a("v_add_f32 v18, 0x3727c5ac, v18")
    a("v_cvt_pk_bf16_f32 v18, v18, v18")
    a("v_lshlrev_b32 v18, 16, v18")
    a("v_sqrt_f32 v18, v18")
    a("s_nop 0")
    a("v_cvt_pk_bf16_f32 v18, v18, v18")
    a("v_lshlrev_b32 v18, 16, v18")
    a("v_rcp_f32 v18, v18")
    a("v_mov_b32 v%d, v16" % V_LNM)
    a("v_mov_b32 v%d, v16" % (V_LNM + 1))
    a("v_mov_b32 v%d, v18" % V_LNR)
    a("v_mul_f32 v%d, 0x%08x, v18" % (V_LNR + 1, QSC))
    reads(0, 0, 0)
    for x in norm_ops(0):
        a(x)
    a.stamp()

    def out_q0():
        a("s_add_u32 s56, s63, 0x%x" % QF)

    def out_q1():
        a("s_add_u32 s56, s64, 0x%x" % QF)

    def next_q1():
        set_params("next", 28, 29, 0x400000, 8192, "s62")

    def next_h():
        a("s_cmp_lt_u32 s4, 14")
        a("s_cselect_b32 s66, 0x1c0000, 0")
        set_params("next", 38, 39, "s66", 3584, "s46")

    def next_none():
        a("s_mov_b32 s66, 0")
        set_params("next", 38, 39, "s66", 3584, "s46")

    def out_h():
        a("s_mul_i32 s56, s59, %d" % AF_BLK)
        a("s_lshl_b32 s66, s4, 13")
        a("s_add_u32 s56, s56, s66")
        a("s_add_u32 s56, s56, 0x%x" % (AF + 256 * 1024))

    chunk("Q", next_q1, out_q0, None, True, "xn")
    chunk("Q", next_h, out_q1, "Q", True, None, True)
    a("s_cmp_lt_u32 s4, 14")
    a("s_cbranch_scc1 proj_h")
    epilogue("Q")
    if EARLY:
        a("s_waitcnt vmcnt(0)")
        a("s_barrier")
        sig_kq()
    if "pf2" in EXPF:
        a("s_sub_u32 s88, s4, 14")
        a("s_lshl_b32 s89, s3, 1")
        a("s_add_u32 s88, s88, s89")
        a("s_lshl_b32 s88, s88, 3")
        a("s_add_u32 s88, s88, s6")
        a("v_lshlrev_b32 v255, 7, v1")
        a("s_mov_b32 s84, s34")
        a("s_mov_b32 s85, s35")
        a("s_mov_b32 s86, 0x400000")
        a("s_mov_b32 s87, 0x20000")
        a("s_lshl_b32 s89, s88, 15")
        for i in range(4):
            a("buffer_load_dword v254, v255, s[84:87], s89 offen")
            a("buffer_load_dword v254, v255, s[84:87], s89 offen offset:64")
            a("s_add_u32 s89, s89, 8192")
        a("s_mov_b32 s84, s42")
        a("s_mov_b32 s85, s43")
        a("s_mov_b32 s86, 0x1c0000")
        a("s_lshl_b32 s89, s88, 14")
        for i in range(2):
            a("buffer_load_dword v254, v255, s[84:87], s89 offen")
            a("buffer_load_dword v254, v255, s[84:87], s89 offen offset:64")
            a("s_add_u32 s89, s89, 8192")
    a("s_branch proj_end")
    a.label("proj_h")
    chunk("H", next_none, out_h, "Q", False, None, 2 if NPF == 1 else 0, True)
    a.stamp_flush(0)
    a("s_branch proj_end")
    a.nst = 2

    a.label("proj_ckv")
    set_params("cur", 30, 31, 0x400000, 8192, "s61")
    dma(0, "cur")
    a_dma(0, 2)
    a_dma(1, 3)
    a_dma(2, 4)
    dma(1, "cur")
    prefetch0()
    W(12 + NP0); a_read(0, 2); L0(); a_dma(3, 2)
    W(12 + NP0); a_read(1, 3); L0(); a_dma(4, 3)
    a("s_barrier")
    reads(0, 0, 0)

    def out_k0():
        a("s_add_u32 s56, s63, 0x%x" % KF)

    def out_k1():
        a("s_add_u32 s56, s64, 0x%x" % KF)

    def out_v0():
        a("s_add_u32 s56, s63, 0x%x" % VF)

    def out_v1():
        a("s_add_u32 s56, s64, 0x%x" % VF)

    chunk("QK", lambda: set_params("next", 30, 31, 0x400000, 8192, "s62"), out_k0, None, True, "ckv")
    chunk("QK", lambda: set_params("next", 32, 33, 0x400000, 8192, "s61"), out_k1, "QK", True, None, True)
    chunk("V", lambda: set_params("next", 32, 33, 0x400000, 8192, "s62"), out_v0, "QK", True, None, 2 if NPF == 1 else 0, True)
    chunk("V", next_none, out_v1, "V", False)
    a.stamp_flush(int(STAMP) if STAMP else 0)
    a.label("proj_end")
    a.ostamp()
    if not EARLY:
        a.gridbar(0)
        a.ostamp()


def descriptor(a, name, vgpr, sgpr, accum):
    a.raw(".p2align 6")
    a.raw(".amdhsa_kernel %s" % name)
    a.raw("  .amdhsa_next_free_vgpr %d" % vgpr)
    a.raw("  .amdhsa_next_free_sgpr %d" % sgpr)
    a.raw("  .amdhsa_accum_offset %d" % accum)
    a.raw("  .amdhsa_group_segment_fixed_size 0")
    a.raw("  .amdhsa_kernarg_size 112")
    a.raw("  .amdhsa_user_sgpr_count 2")
    a.raw("  .amdhsa_user_sgpr_kernarg_segment_ptr 1")
    a.raw("  .amdhsa_system_sgpr_workgroup_id_x 1")
    a.raw(".end_amdhsa_kernel")


def main():
    from gen_rest import gen_attn, gen_ogemm, gen_reduce
    a = Asm()
    hdr = open("cdna_kernels/%s.s.ref" % NAME).read().split("\n")
    for l in hdr:
        if l.startswith(";") and "@launch" not in l:
            a.raw(l)
        elif not l.startswith(";"):
            break
    a.raw("; @launch kernel=mega_kernel grid=(256,1,1) block=(512,1,1) lds=163840")
    a.raw('.amdgcn_target "amdgcn-amd-amdhsa--gfx950"')
    a.raw(".text")
    a.raw(".globl mega_kernel")
    a.raw(".p2align 8")
    a.raw(".type mega_kernel,@function")
    gen_proj(a)
    gen_attn(a)
    gen_ogemm(a)
    gen_reduce(a)
    a.raw('.section .rodata,"a"')
    descriptor(a, "mega_kernel", 256, 102, 256)
    out = sys.argv[1] if len(sys.argv) > 1 else "cdna_kernels/%s.s" % NAME
    open(out, "w").write("\n".join(a.lines) + "\n")


if __name__ == "__main__":
    main()
```

```python
import sys

NAME = "parallel_sum__compressed_kv_cla__dense_activation_squared_relu__prompt"

MB = 1 << 20
QF = 0
KF = 16 * MB
VF = 32 * MB
AF = 49 * MB
AF_BLK = 368 * 1024
PART = 80 * MB
CTR = 100 * MB
import math, struct
QSC = struct.unpack("<I", struct.pack("<f", (128 ** -0.5) * math.log2(math.e)))[0]


import os
STAMP = os.environ.get("STAMP")
EARLY = "early" in os.environ.get("EXP", "")


class Asm:
    def __init__(self):
        self.lines = []
        self.nst = 0

    def stamp(self):
        if not STAMP:
            return
        self("s_memtime s[98:99]")
        self("s_waitcnt lgkmcnt(0)")
        self("s_mov_b32 s%d, s98" % (68 + self.nst))
        self.nst += 1

    def stamp_flush(self, wgsel, dbgptr_off=96):
        if not STAMP:
            return
        L = "stf_%d" % len(self.lines)
        self("s_cmp_lg_u32 s2, %d" % wgsel)
        self("s_cbranch_scc1 %s" % L)
        self("s_load_dwordx2 s[96:97], s[0:1], %d" % dbgptr_off)
        self("s_waitcnt lgkmcnt(0)")
        self("s_mov_b32 s98, 4096")
        self("s_mov_b32 s99, 0x20000")
        self("v_cmp_eq_u32 vcc, 0, v0")
        self("s_and_saveexec_b64 s[94:95], vcc")
        self("s_cbranch_execz %s" % L)
        for i in range(self.nst):
            self("v_mov_b32 v1, s%d" % (68 + i))
            self("v_mov_b32 v2, %d" % (4 * i + 512 * (self.phase + 1)))
            self("buffer_store_dword v1, v2, s[96:99], 0 offen")
        self.label(L)
        self("s_mov_b64 exec, -1")
        self.nst = 0

    phase = 0
    on = 0

    def code_touch(self, lo, hi, tag, back, n):
        a = self
        lo = "(%s)" % lo
        a("s_getpc_b64 s[88:89]")
        a.label("ct_%s" % tag)
        if back:
            a("s_sub_u32 s88, s88, ct_%s-%s" % (tag, lo))
            a("s_subb_u32 s89, s89, 0")
        else:
            a("s_add_u32 s88, s88, %s-ct_%s" % (lo, tag))
            a("s_addc_u32 s89, s89, 0")
        for k in range(n):
            a("v_lshlrev_b32 v255, 7, v0")
            if k:
                a("v_add_u32 v255, 0x%x, v255" % (k * 65536))
            a("v_min_u32 v255, %s-%s-4, v255" % (hi, lo))
            a("global_load_dword v254, v255, s[88:89]")

    def ostamp(self, last=False):
        OST = os.environ.get("OST")
        if not OST:
            return
        a = self
        a("s_memrealtime s[98:99]")
        a("s_waitcnt lgkmcnt(0)")
        a("s_mov_b32 s%d, s98" % (68 + self.on if self.on else 93))
        self.on += 1
        if last:
            a("s_cmp_lg_u32 s2, %s" % OST)
            a("s_cbranch_scc1 ost_skip")
            a("s_load_dwordx2 s[96:97], s[0:1], 96")
            a("s_mov_b32 s98, 256")
            a("s_mov_b32 s99, 0x20000")
            a("v_cmp_eq_u32 vcc, 0, v0")
            a("s_and_saveexec_b64 s[94:95], vcc")
            a("s_cbranch_execz ost_skip")
            a("s_waitcnt lgkmcnt(0)")
            for i in range(1, self.on):
                a("s_sub_u32 s94, s%d, s93" % (68 + i))
                a("v_mov_b32 v1, s94")
                a("v_mov_b32 v2, %d" % (28 + 4 * i))
                a("buffer_store_dword v1, v2, s[96:99], 0 offen")
            a.label("ost_skip")
            a("s_mov_b64 exec, -1")

    def gb_signal(self, k):
        a = self
        a("s_load_dwordx2 s[80:81], s[0:1], 96")
        a("s_load_dwordx2 s[84:85], s[0:1], 104")
        a("s_mov_b32 s82, 256")
        a("s_mov_b32 s83, 0x20000")
        a("s_mov_b32 s86, 0x10000000")
        a("s_mov_b32 s87, 0x20000")
        a("s_mov_b64 exec, 1")
        a("v_mov_b32 v12, 1")
        a("v_mov_b32 v13, %d" % (4 * k))
        a("v_mov_b32 v14, 1")
        a("v_mov_b32 v15, 0")
        a("s_and_b32 s88, s2, 15")
        a("s_lshl_b32 s88, s88, 12")
        a("s_add_u32 s88, s88, 0x%x" % (CTR + (k - 1) * 65536))
        a("s_waitcnt lgkmcnt(0)")
        a("buffer_atomic_add v14, v15, s[84:87], s88 offen sc0 sc1")
        a("s_waitcnt vmcnt(0)")
        a("v_readfirstlane_b32 s89, v14")
        a("s_cmp_lg_u32 s89, 15")
        a("s_cbranch_scc1 gs_nr%d" % k)
        a("buffer_atomic_add v12, v13, s[80:83], 0 offen sc1")
        a.label("gs_nr%d" % k)
        a("s_mov_b64 exec, -1")

    def gb_poll(self, k):
        a = self
        a("s_mov_b64 exec, 1")
        a("v_mov_b32 v13, %d" % (4 * k))
        a("s_mov_b32 s88, 0")
        a.label("gp_loop%d" % k)
        a("buffer_load_dword v14, v13, s[80:83], 0 offen sc1")
        a("s_waitcnt vmcnt(0)")
        a("v_readfirstlane_b32 s89, v14")
        a("s_cmp_ge_u32 s89, 16")
        a("s_cbranch_scc1 gp_done%d" % k)
        a("s_add_u32 s88, s88, 1")
        a("s_cmp_gt_u32 s88, 40000")
        a("s_cbranch_scc1 gp_done%d" % k)
        a("s_sleep 8")
        a("s_branch gp_loop%d" % k)
        a.label("gp_done%d" % k)
        a("s_mov_b64 exec, -1")

    def eb_pre(self):
        a = self
        if STAMP:
            a("s_memrealtime s[70:71]")
        a("s_load_dwordx2 s[84:85], s[0:1], 96")
        a("s_mov_b32 s86, 256")
        a("s_mov_b32 s87, 0x20000")
        a("v_mov_b32 v248, 0")
        a("v_mov_b32 v249, 1")
        a("v_mov_b32 v250, 8")
        a("s_cmp_ge_u32 s2, 96")
        a("s_cbranch_scc1 eb_noinit")
        a("s_lshl_b32 s88, s2, 12")
        a("s_add_u32 s88, s88, 0x%x" % CTR)
        a("buffer_store_dword v248, v248, s[8:11], s88 offen sc0 sc1")
        a.label("eb_noinit")
        a("s_waitcnt lgkmcnt(0)")
        a("s_cmp_lg_u32 s6, 0")
        a("s_cbranch_scc1 eb_kok")
        a("s_mov_b64 exec, 1")
        a("s_mov_b32 s88, 0")
        a.label("eb_kloop")
        a("buffer_load_dword v251, v250, s[84:87], 0 offen sc1")
        a("s_waitcnt vmcnt(0)")
        a("v_readfirstlane_b32 s89, v251")
        a("s_cmp_ge_u32 s89, 256")
        a("s_cbranch_scc1 eb_kok")
        a("s_add_u32 s88, s88, 1")
        a("s_cmp_gt_u32 s88, 40000")
        a("s_cbranch_scc1 eb_kok")
        a("s_sleep 8")
        a("s_branch eb_kloop")
        a.label("eb_kok")
        a("s_mov_b64 exec, -1")
        a("s_waitcnt vmcnt(0)")
        a("s_barrier")
        if STAMP:
            a("s_memrealtime s[72:73]")
        a("s_cmp_lg_u32 s6, 0")
        a("s_cbranch_scc1 eb_arr")
        a("s_mov_b64 exec, 1")
        a("s_and_b32 s88, s2, 15")
        a("s_lshl_b32 s88, s88, 2")
        a("s_add_u32 s88, s88, 128")
        a("v_mov_b32 v251, 1")
        a("buffer_atomic_add v251, v248, s[84:87], s88 offen sc0 sc1")
        a("s_waitcnt vmcnt(0)")
        a("v_readfirstlane_b32 s89, v251")
        a("s_cmp_lg_u32 s89, 15")
        a("s_cbranch_scc1 eb_arr")
        a("buffer_atomic_add v249, v248, s[84:87], 0 offen sc1")
        a.label("eb_arr")
        a("s_mov_b64 exec, -1")

    def eb_post(self):
        a = self
        a("s_cmp_lg_u32 s6, %s" % os.environ.get("PW", "1"))
        a("s_cbranch_scc1 eb_done")
        a("s_mov_b64 exec, 1")
        a("s_mov_b32 s88, 0")
        a.label("eb_loop")
        a("buffer_load_dword v251, v248, s[84:87], 0 offen sc1")
        a("s_waitcnt vmcnt(0)")
        a("v_readfirstlane_b32 s89, v251")
        a("s_cmp_ge_u32 s89, 16")
        a("s_cbranch_scc1 eb_fin")
        a("s_add_u32 s88, s88, 1")
        a("s_cmp_gt_u32 s88, 40000")
        a("s_cbranch_scc1 eb_fin")
        a("s_sleep %s" % os.environ.get("SLEEP", "8"))
        a("s_branch eb_loop")
        a.label("eb_fin")
        if STAMP:
            a("s_memrealtime s[74:75]")
            a("s_mov_b32 s86, 65536")
            a("s_lshl_b32 s88, s2, 4")
            a("s_add_u32 s88, s88, 4096")
            a("s_waitcnt lgkmcnt(0)")
            a("v_mov_b32 v252, s70")
            a("v_mov_b32 v253, s72")
            a("v_mov_b32 v254, s74")
            a("v_mov_b32 v255, s92")
            a("buffer_store_dwordx4 v[252:255], v248, s[84:87], s88 offen")
        a.label("eb_done")
        a("s_mov_b64 exec, -1")
        a("s_waitcnt vmcnt(0)")
        a("s_barrier")
        a.ostamp()
        self.phase = 1

    def gridbar(self, k):
        a = self
        if STAMP:
            a("s_memrealtime s[14:15]")
        if k == 0:
            a("s_cmp_ge_u32 s2, 96")
            a("s_cbranch_scc1 gb_noinit")
            a("s_load_dwordx2 s[8:9], s[0:1], 104")
            a("s_mov_b32 s10, 0x10000000")
            a("s_mov_b32 s11, 0x20000")
            a("s_lshl_b32 s12, s2, 12")
            a("s_add_u32 s12, s12, 0x%x" % CTR)
            a("v_mov_b32 v1, 0")
            a("v_mov_b32 v2, 0")
            a("s_waitcnt lgkmcnt(0)")
            a("buffer_store_dword v1, v2, s[8:11], s12 offen sc0 sc1")
            a.label("gb_noinit")
        a("s_waitcnt vmcnt(0) lgkmcnt(0)")
        a("s_barrier")
        if STAMP:
            a("s_memrealtime s[16:17]")
        a("v_lshrrev_b32 v1, 6, v0")
        a("s_nop 0")
        a("v_readfirstlane_b32 s6, v1")
        if "ct2" in os.environ.get("EXP", "") and k == 0:
            a("s_cmp_eq_u32 s6, 0")
            a("s_cbranch_scc1 ct2_skip")
            a("s_cmp_gt_u32 s6, 3")
            a("s_cbranch_scc1 gb_wait%d" % k)
            a.code_touch("attn_kernel-8192", "code_end", "b", True, 1)
            a("s_branch gb_wait%d" % k)
            a.label("ct2_skip")
        a("s_cmp_lg_u32 s6, 0")
        a("s_cbranch_scc1 gb_wait%d" % k)
        a("s_load_dwordx2 s[8:9], s[0:1], 96")
        a("s_load_dwordx2 s[24:25], s[0:1], 104")
        a("s_mov_b32 s10, 256")
        a("s_mov_b32 s11, 0x20000")
        a("s_mov_b32 s26, 0x10000000")
        a("s_mov_b32 s27, 0x20000")
        a("s_mov_b64 exec, 1")
        a("v_mov_b32 v1, 1")
        a("v_mov_b32 v2, %d" % (4 * k))
        a("s_waitcnt lgkmcnt(0)")
        tgt = 256
        if True:
            tgt = 16
            a("s_and_b32 s12, s2, 15")
            a("v_mov_b32 v3, 1")
            a("v_mov_b32 v4, 0")
            if k > 0:
                a("s_lshl_b32 s12, s12, 12")
                a("s_add_u32 s12, s12, 0x%x" % (CTR + (k - 1) * 65536))
                a("buffer_atomic_add v3, v4, s[24:27], s12 offen sc0 sc1")
            else:
                a("s_lshl_b32 s12, s12, 2")
                a("s_add_u32 s12, s12, 128")
                a("buffer_atomic_add v3, v4, s[8:11], s12 offen sc0 sc1")
            a("s_waitcnt vmcnt(0)")
            a("v_readfirstlane_b32 s13, v3")
            a("s_cmp_lg_u32 s13, 15")
            a("s_cbranch_scc1 gb_nr%d" % k)
        a("buffer_atomic_add v1, v2, s[8:11], 0 offen sc1")
        if True:
            a.label("gb_nr%d" % k)
        a("s_mov_b32 s12, 0")
        a.label("gb_loop%d" % k)
        a("buffer_load_dword v3, v2, s[8:11], 0 offen %s" % os.environ.get("PSC", "sc1"))
        a("s_waitcnt vmcnt(0)")
        a("v_readfirstlane_b32 s13, v3")
        a("s_cmp_ge_u32 s13, %d" % tgt)
        a("s_cbranch_scc1 gb_done%d" % k)
        a("s_add_u32 s12, s12, 1")
        a("s_cmp_gt_u32 s12, 40000")
        a("s_cbranch_scc1 gb_done%d" % k)
        a("s_sleep %s" % os.environ.get("SLEEP", "8"))
        a("s_branch gb_loop%d" % k)
        a.label("gb_done%d" % k)
        if STAMP:
            a("s_memrealtime s[18:19]")
            a("s_mov_b32 s10, 65536")
            a("s_lshl_b32 s20, s2, 4")
            a("s_add_u32 s20, s20, %d" % (4096 + 4096 * k))
            a("s_waitcnt lgkmcnt(0)")
            a("s_mov_b64 exec, 1")
            a("v_mov_b32 v4, s14")
            a("v_mov_b32 v5, s16")
            a("v_mov_b32 v6, s18")
            a("v_mov_b32 v7, s92")
            a("v_mov_b32 v2, 0")
            a("buffer_store_dwordx4 v[4:7], v2, s[8:11], s20 offen")
        a("s_mov_b64 exec, -1")
        a("s_waitcnt lgkmcnt(0)")
        a.label("gb_wait%d" % k)
        a("s_barrier")
        if "inv" in os.environ.get("EXP", ""):
            a("buffer_inv sc1")
        self.phase = k + 1

    inloop = False

    def __call__(self, s):
        EXP = os.environ.get("EXP", "")
        if self.inloop:
            if "nomfma" in EXP and s.startswith("v_mfma"):
                return
            if "novalu" in EXP and s.startswith("v_") and not s.startswith("v_mfma") and not s.startswith("v_cmp") and "0x1ffff" not in s and "0x8000" not in s and not s.startswith("v_mov") and not s.startswith("v_add_u32"):
                return
            if "nolds" in EXP and s.startswith("ds_read"):
                return
            if "nodma" in EXP and s.startswith("buffer_load"):
                return
            if "nobar" in EXP and s.startswith("s_barrier"):
                return
        if "nosc1" in EXP and s.startswith("buffer_store") and s.endswith(" sc1"):
            s = s[:-4]
        self.lines.append("  " + s)

    def label(self, s):
        self.lines.append(s + ":")

    def raw(self, s):
        self.lines.append(s)

    def nop(self, n):
        while n > 0:
            k = min(n, 16)
            self("s_nop %d" % (k - 1))
            n -= k


def vr(a, n):
    return "v[%d:%d]" % (a, a + n - 1)


def sr(a, n):
    return "s[%d:%d]" % (a, a + n - 1)


def gen_proj(a):
    V_LANE = 1
    V_TR = 2
    V_OFFC = 10
    V_OFFN = 11
    V_ST = 12
    V_T0 = 13
    V_B = 16
    V_ACC = 48
    V_A = 112
    V_ROWI = 13
    V_SWZ = 14
    V_T = 15
    V_AOFF = 240

    a.label("mega_kernel")
    a("s_cmp_lt_u32 s2, 256")
    a("s_cbranch_scc1 proj_start")
    a("s_endpgm")
    a.label("proj_start")
    a.ostamp()
    if STAMP:
        a("s_memrealtime s[92:93]")
    a.stamp()
    a("s_load_dwordx2 s[8:9], s[0:1], 96")
    a("s_load_dwordx2 s[82:83], s[0:1], 96")
    a("s_load_dwordx16 s[24:39], s[0:1], 0")
    a("s_load_dwordx4 s[40:43], s[0:1], 64")
    a("s_load_dwordx2 s[44:45], s[0:1], 104")
    EXPF = os.environ.get("EXP", "")
    if "ct1" in EXPF:
        a("s_bfe_u32 s3, s2, 0x20003")
        a("s_cmp_lg_u32 s3, 0")
        a("s_cbranch_scc1 ct1_skip")
        a.code_touch("mega_kernel", "code_end", "a", True, 2)
        a.label("ct1_skip")
    if "tick" in EXPF:
        a("v_lshrrev_b32 v1, 6, v0")
        a("v_lshlrev_b32 v4, 14, v1")
        a("v_add_u32 v4, 0x8000, v4")
        a("v_readfirstlane_b32 s6, v1")
        a("s_getreg_b32 s4, hwreg(HW_REG_XCC_ID)")
        a("s_and_b32 s4, s4, 7")
        if "tkforce" in EXPF:
            a("s_min_u32 s4, s4, 4")
        a("s_mov_b32 s10, 256")
        a("s_mov_b32 s11, 0x20000")
        a("s_lshl_b32 s5, s4, 2")
        a("s_add_u32 s5, s5, 192")
        a("v_mov_b32 v2, s5")
        a("v_mov_b32 v3, 1")
        a("s_cmp_eq_u32 s6, 0")
        a("s_cbranch_scc1 tk_w0")
        a("s_cmp_lg_u32 s6, 7")
        a("s_cbranch_scc1 tk_wait")
        a("s_mov_b64 exec, 1")
        a("s_waitcnt lgkmcnt(0)")
        a("v_subrev_u32 v2, 160, v2")
        a("buffer_atomic_add v3, v2, s[8:11], 0 offen sc1")
        a("s_mov_b64 exec, -1")
        a("s_branch tk_wait")
        a.label("tk_w0")
        a("s_mov_b64 exec, 1")
        a("s_waitcnt lgkmcnt(0)")
        a("buffer_atomic_add v3, v2, s[8:11], 0 offen sc0%s" % (" sc1" if "tkforce" in EXPF or "tkglob" in EXPF else ""))
        a("s_waitcnt vmcnt(0)")
        a("v_readfirstlane_b32 s5, v3")
        a("s_cmp_lt_u32 s5, 32")
        a("s_cbranch_scc1 tk_got")
        a("s_mov_b32 s7, 0")
        a("v_mov_b32 v2, 32")
        a.label("tk_poll")
        a("buffer_load_dwordx4 v[8:11], v2, s[8:11], 0 offen sc1")
        a("buffer_load_dwordx4 v[12:15], v2, s[8:11], 0 offen offset:16 sc1")
        a("s_waitcnt vmcnt(0)")
        a("s_mov_b32 s12, 0")
        for i in range(8):
            a("v_readfirstlane_b32 s%d, v%d" % (48 + i, 8 + i))
            a("s_add_u32 s12, s12, s%d" % (48 + i))
        a("s_cmp_ge_u32 s12, 256")
        a("s_cbranch_scc1 tk_full")
        a("s_add_u32 s7, s7, 1")
        a("s_sleep 8")
        a("s_cmp_lt_u32 s7, 40000")
        a("s_cbranch_scc1 tk_poll")
        a.label("tk_fail")
        a("s_lshr_b32 s5, s2, 3")
        a("s_and_b32 s4, s2, 7")
        a("s_branch tk_got")
        a.label("tk_full")
        a("s_sub_u32 s5, s5, 32")
        for i in range(7):
            a("s_max_u32 s12, s%d, 32" % (48 + i))
            a("s_sub_u32 s12, s12, 32")
            a("s_cmp_gt_u32 s4, %d" % i)
            a("s_cselect_b32 s12, s12, 0")
            a("s_add_u32 s5, s5, s12")
        for i in range(8):
            a("s_min_u32 s12, s%d, 32" % (48 + i))
            a("s_sub_u32 s13, 32, s12")
            a("s_mov_b32 s4, %d" % i)
            a("s_cmp_lt_u32 s5, s13")
            a("s_cbranch_scc1 tk_slot")
            a("s_sub_u32 s5, s5, s13")
        a("s_branch tk_fail")
        a.label("tk_slot")
        a("s_add_u32 s5, s5, s12")
        a.label("tk_got")
        a("s_lshl_b32 s5, s5, 3")
        a("s_add_u32 s5, s5, s4")
        a("s_mov_b64 exec, 0xff")
        a("v_lshlrev_b32 v2, 14, v0")
        a("v_add_u32 v2, 0x8000, v2")
        a("v_mov_b32 v3, s5")
        a("ds_write_b32 v2, v3")
        a("s_mov_b64 exec, -1")
        a("s_waitcnt lgkmcnt(0)")
        a.label("tk_wait")
        a("s_barrier")
        a("ds_read_b32 v3, v4")
        a("s_waitcnt lgkmcnt(0)")
        a("v_readfirstlane_b32 s2, v3")
        a("s_and_b32 s2, s2, 255")
        if STAMP:
            a("s_memrealtime s[96:97]")
            a("s_waitcnt lgkmcnt(0)")
            a("s_mov_b32 s93, s96")
    PM = os.environ.get("PM", "5")
    if PM == "0":
        a("s_lshr_b32 s3, s2, 5")
        a("s_and_b32 s4, s2, 31")
    elif PM == "1":
        a("s_and_b32 s3, s2, 7")
        a("s_lshr_b32 s4, s2, 3")
    elif PM == "2":
        a("s_and_b32 s3, s2, 3")
        a("s_bfe_u32 s4, s2, 0x10003")
        a("s_lshl_b32 s4, s4, 2")
        a("s_or_b32 s3, s3, s4")
        a("s_bfe_u32 s4, s2, 0x10002")
        a("s_lshr_b32 s5, s2, 4")
        a("s_lshl_b32 s5, s5, 1")
        a("s_or_b32 s4, s4, s5")
    elif PM == "3":
        a("s_and_b32 s3, s2, 1")
        a("s_bfe_u32 s4, s2, 0x20003")
        a("s_lshl_b32 s4, s4, 1")
        a("s_or_b32 s3, s3, s4")
        a("s_bfe_u32 s4, s2, 0x20001")
        a("s_lshr_b32 s5, s2, 5")
        a("s_lshl_b32 s5, s5, 2")
        a("s_or_b32 s4, s4, s5")
    elif PM == "4":
        a("s_lshr_b32 s3, s2, 5")
        a("s_bfe_u32 s4, s2, 0x40001")
        a("s_and_b32 s5, s2, 1")
        a("s_lshl_b32 s5, s5, 4")
        a("s_or_b32 s4, s4, s5")
    elif PM == "5":
        a("s_bfe_u32 s3, s2, 0x10001")
        a("s_bfe_u32 s4, s2, 0x20003")
        a("s_lshl_b32 s4, s4, 1")
        a("s_or_b32 s3, s3, s4")
        a("s_bfe_u32 s4, s2, 0x10002")
        a("s_lshr_b32 s5, s2, 5")
        a("s_lshl_b32 s5, s5, 1")
        a("s_or_b32 s4, s4, s5")
        a("s_and_b32 s5, s2, 1")
        a("s_lshl_b32 s5, s5, 4")
        a("s_or_b32 s4, s4, s5")
    elif PM == "6":
        a("s_bfe_u32 s3, s2, 0x30001")
        a("s_lshr_b32 s4, s2, 4")
        a("s_and_b32 s5, s2, 1")
        a("s_lshl_b32 s5, s5, 4")
        a("s_or_b32 s4, s4, s5")
    a("v_lshrrev_b32 v1, 6, v0")
    a("s_nop 0")
    a("v_readfirstlane_b32 s6, v1")
    a("v_and_b32 v1, 63, v0")
    a("s_waitcnt lgkmcnt(0)")
    a.stamp()
    a("s_cmp_lt_u32 s4, 16")
    a("s_cselect_b32 s8, s24, s26")
    a("s_cselect_b32 s9, s25, s27")
    a("s_cselect_b32 s5, 0, 1")
    a("s_and_b32 s4, s4, 15")
    a("s_mov_b32 s10, 0x200000")
    a("s_mov_b32 s11, 0x20000")
    a("s_mov_b32 s16, s44")
    a("s_mov_b32 s17, s45")
    a("s_mov_b32 s18, 0x10000000")
    a("s_mov_b32 s19, 0x20000")
    a("s_mov_b32 s20, s40")
    a("s_mov_b32 s21, s41")
    a("s_mov_b32 s22, 3584")
    a("s_mov_b32 s23, 0x20000")
    a("s_mov_b32 s15, 0x20000")
    a("s_mov_b32 s51, 0x20000")
    a("s_lshl_b32 s58, s6, 12")
    a("s_lshl_b32 s59, s3, 3")
    a("s_add_u32 s59, s59, s6")
    a("v_and_b32 v13, 15, v1")
    a("v_lshlrev_b32 v13, 10, v13")
    a("v_lshrrev_b32 v14, 4, v1")
    a("v_lshlrev_b32 v14, 4, v14")
    a("v_add_u32 v13, v13, v14")
    a("s_movk_i32 s65, 0x4000")
    a("s_lshl_b32 s60, s59, 15")
    a("v_add_u32 v13, s60, v13")
    a("v_mov_b32 v%d, v13" % V_AOFF)

    def aloads(lo, hi):
        for s in range(lo, hi):
            a("buffer_load_dwordx4 %s, v%d, s[8:11], %s offen offset:%d" % (
                vr(V_A + 4 * s, 4), V_AOFF, "s65" if s & 1 else "0", (s >> 1) * 64))

    def aswaps(lo, hi):
        for s in range(lo, hi, 2):
            for j in range(4):
                a("v_permlane16_swap_b32 v%d, v%d" % (V_A + 4 * s + j, V_A + 4 * s + 4 + j))
        a("s_nop 1")
    a("v_bfe_u32 v13, v1, 2, 2")
    a("v_lshrrev_b32 v14, 5, v1")
    a("v_lshl_add_u32 v14, v14, 4, v13")
    a("v_lshlrev_b32 v14, 8, v14")
    a("v_bfe_u32 v15, v1, 4, 1")
    a("v_lshl_add_u32 v14, v15, 5, v14")
    a("v_and_b32 v15, 3, v1")
    a("v_lshl_add_u32 v14, v15, 3, v14")
    a("v_lshlrev_b32 v13, 6, v13")
    for nt in range(4):
        a("v_xor_b32 v15, %d, v13" % (nt << 6))
        a("v_add_u32 v%d, v14, v15" % (V_TR + nt))
        a("v_add_u32 v%d, 0x10000, v%d" % (V_TR + 4 + nt, V_TR + nt))
    a("v_lshlrev_b32 v%d, 4, v1" % V_ST)
    a("v_lshrrev_b32 v13, 4, v1")
    a("v_bfe_u32 v14, v1, 2, 2")
    a("v_xor_b32 v14, v14, v13")
    a("v_lshlrev_b32 v14, 6, v14")
    a("v_and_b32 v15, 3, v1")
    a("v_lshl_add_u32 v14, v15, 4, v14")
    a("s_lshl_b32 s60, s6, 4")
    a("v_add_u32 v13, s60, v13")

    def set_params(which, wlo, whi, nrec, ldw, colexpr_reg):
        base = 12 if which == "cur" else 48
        sl, sc = (52, 53) if which == "cur" else (54, 55)
        voff = V_OFFC if which == "cur" else V_OFFN
        a("s_mov_b32 s%d, s%d" % (base, wlo))
        a("s_mov_b32 s%d, s%d" % (base + 1, whi))
        if isinstance(nrec, str):
            a("s_mov_b32 s%d, %s" % (base + 2, nrec))
        else:
            a("s_mov_b32 s%d, 0x%x" % (base + 2, nrec))
        a("s_mov_b32 s%d, %d" % (sl, ldw))
        a("s_mov_b32 s%d, %s" % (sc, colexpr_reg))
        a("v_mul_lo_u32 v%d, v%d, s%d" % (voff, V_ROWI, sl))
        a("v_add_u32 v%d, v%d, v%d" % (voff, voff, V_SWZ))

    def dma(kc, which):
        base = 12 if which == "cur" else 48
        sl, sc = (52, 53) if which == "cur" else (54, 55)
        voff = V_OFFC if which == "cur" else V_OFFN
        for i in range(4):
            a("s_add_u32 m0, s58, %d" % (kc * 32768 + i * 1024))
            a("s_mul_i32 s57, s%d, %d" % (sl, kc * 128 + 4 * i))
            a("s_add_u32 s57, s57, s%d" % sc)
            a("buffer_load_dwordx4 v%d, %s, s57 offen lds" % (voff, sr(base, 4)))

    def reads(kc, s, setidx):
        hi = 4 if kc >= 2 else 0
        off = (kc & 1) * 32768 + (s >> 1) * 8192 + (s & 1) * 2048
        for nt in range(4):
            for ird in range(2):
                a("ds_read_b64_tr_b16 %s, v%d offset:%d" % (
                    vr(V_B + setidx * 16 + nt * 4 + ird * 2, 2), V_TR + hi + nt, off + ird * 1024))

    def epi_part(kind, nt):
        if kind == "Q":
            for i in range(16):
                a("v_mul_f32 v%d, v%d, v%d" % (V_ACC + 16 * nt + i, V_LNR + 1, V_ACC + 16 * nt + i))
        for t in range(2):
            d = V_ACC + 16 * nt + 8 * t
            for p in range(4):
                x0 = V_ACC + 16 * nt + 8 * t + 2 * p
                a("v_cvt_pk_bf16_f32 v%d, v%d, v%d" % (d + p, x0, x0 + 1))
            a("buffer_store_dwordx4 %s, v%d, s[16:19], s%d offen offset:%d sc1" % (
                vr(d, 4), V_ST, 90 if nt < 2 else 91, ((nt * 2 + t) & 3) * 1024))
        a("s_nop 1")

    def compute(kc, kind, extra=None, prev=None, hooks=None):
        extra = list(extra or [])
        per = -(-len(extra) // 32)
        for s in range(8):
            if hooks and s in hooks:
                hooks[s]()
            if s < 7:
                reads(kc, s + 1, (s + 1) & 1)
            else:
                reads((kc + 1) & 3, 0, 0)
            a("s_waitcnt lgkmcnt(8)")
            ks = kc * 8 + s
            for nt in range(4):
                acc = vr(V_ACC + 16 * nt, 16)
                wf = vr(V_B + (s & 1) * 16 + nt * 4, 4)
                af = vr(V_A + 4 * ks, 4)
                c = "0" if ks == 0 else acc
                if prev and ks == 0:
                    epi_part(prev, nt)
                if kind == "V":
                    a("v_mfma_f32_32x32x16_bf16 %s, %s, %s, %s" % (acc, af, wf, c))
                else:
                    a("v_mfma_f32_32x32x16_bf16 %s, %s, %s, %s" % (acc, wf, af, c))
                for x in extra[:per]:
                    a(x)
                extra = extra[per:]
        assert not extra

    def aload_ops(lo, hi):
        ops = []
        for s in range(lo, hi):
            ops.append("buffer_load_dwordx4 %s, v%d, s[8:11], %s offen offset:%d" % (
                vr(V_A + 4 * s, 4), V_AOFF, "s65" if s & 1 else "0", (s >> 1) * 64))
            ops += ["s_nop 0"] * 3
        return ops

    V_LNM = 244
    V_LNR = 246
    V_LNT = 248

    def norm_ops(q):
        ops = []
        for i in range(32 * q, 32 * q + 32):
            r = V_A + i
            t = 248 + 2 * (i % 3)
            ops.append("v_lshlrev_b32 v%d, 16, v%d" % (t, r))
            ops.append("v_and_b32 v%d, 0xffff0000, v%d" % (t + 1, r))
            ops.append("v_pk_add_f32 %s, %s, %s neg_lo:[0,1] neg_hi:[0,1]" % (vr(t, 2), vr(t, 2), vr(V_LNM, 2)))
            ops.append("v_cvt_pk_bf16_f32 v%d, v%d, v%d" % (r, t, t + 1))
        return ops

    def epilogue(kind):
        if kind == "H":
            a("s_waitcnt lgkmcnt(0)")
            a("v_lshrrev_b32 v15, 5, v1")
            a("v_lshlrev_b32 v15, 3, v15")
            for nt in range(4):
                for q in range(4):
                    a("buffer_load_dwordx2 %s, v15, s[20:23], s53 offen offset:%d" % (
                        vr(V_B + (nt * 4 + q) * 2, 2), 64 * nt + 16 * q))
            a.nop(12)
            for i in range(64):
                a("v_mul_f32 v%d, v%d, v%d" % (V_ACC + i, V_LNR, V_ACC + i))
            a("s_waitcnt vmcnt(0)")
            for nt in range(4):
                for q in range(4):
                    r0 = V_ACC + 16 * nt + 4 * q
                    b0 = V_B + (nt * 4 + q) * 2
                    for p in range(2):
                        x0, x1 = r0 + 2 * p, r0 + 2 * p + 1
                        bb = b0 + p
                        a("v_cvt_pk_bf16_f32 v15, v%d, v%d" % (x0, x1))
                        a("v_lshlrev_b32 v%d, 16, v15" % x0)
                        a("v_and_b32 v%d, 0xffff0000, v15" % x1)
                        a("v_lshlrev_b32 v15, 16, v%d" % bb)
                        a("v_add_f32 v%d, v%d, v15" % (x0, x0))
                        a("v_and_b32 v15, 0xffff0000, v%d" % bb)
                        a("v_add_f32 v%d, v%d, v15" % (x1, x1))
                        a("v_cvt_pk_bf16_f32 v15, v%d, v%d" % (x0, x1))
                        a("v_lshlrev_b32 v%d, 16, v15" % x0)
                        a("v_and_b32 v%d, 0xffff0000, v15" % x1)
                        a("v_max_f32 v%d, 0, v%d" % (x0, x0))
                        a("v_max_f32 v%d, 0, v%d" % (x1, x1))
                        a("v_mul_f32 v%d, v%d, v%d" % (x0, x0, x0))
                        a("v_mul_f32 v%d, v%d, v%d" % (x1, x1, x1))
        else:
            a.nop(12)
        if kind == "Q":
            for i in range(64):
                a("v_mul_f32 v%d, v%d, v%d" % (V_ACC + i, V_LNR + 1, V_ACC + i))
        a("s_add_u32 s67, s56, 4096")
        for nt in range(4):
            for t in range(2):
                d = V_ACC + 16 * nt + 8 * t
                for p in range(4):
                    x0 = V_ACC + 16 * nt + 8 * t + 2 * p
                    a("v_cvt_pk_bf16_f32 v%d, v%d, v%d" % (d + p, x0, x0 + 1))
                a("buffer_store_dwordx4 %s, v%d, s[16:19], s%d offen offset:%d sc1" % (
                    vr(d, 4), V_ST, 56 if nt < 2 else 67, ((nt * 2 + t) & 3) * 1024))
        a.nop(2)

    def W(n):
        a("s_waitcnt vmcnt(%d)" % n)

    sigc = [0]

    def sig_kq():
        if not EARLY:
            return
        sigc[0] += 1
        a("s_cmp_lg_u32 s6, 0")
        a("s_cbranch_scc1 sigkq%d" % sigc[0])
        a("s_mov_b32 s84, s82")
        a("s_mov_b32 s85, s83")
        a("s_mov_b32 s86, 256")
        a("s_mov_b32 s87, 0x20000")
        a("s_mov_b64 exec, 1")
        a("v_mov_b32 v252, 1")
        a("v_mov_b32 v253, 8")
        a("buffer_atomic_add v252, v253, s[84:87], 0 offen sc1")
        a("s_mov_b64 exec, -1")
        a.label("sigkq%d" % sigc[0])

    def ckv_first(kc):
        B = lambda: a("s_barrier")
        if kc == 0:
            return (lambda: None), {
                1: lambda: (W(12 + NP0), a_read(2, 4)),
                2: lambda: a_dma(5, 4),
                4: lambda: (W(8), a_read(3, 2)),
                6: lambda: (B(), dma(2, "cur"))}
        if kc == 1:
            return (lambda: (B(), a_dma(6, 0))), {
                1: lambda: (W(12), a_read(4, 3)),
                3: lambda: (W(8), a_read(5, 4)),
                6: lambda: (W(4), B(), a_dma(7, 4), dma(3, "cur"))}
        if kc == 2:
            return (lambda: (B(), dma(1, "next"))), {
                1: lambda: (W(12), a_read(6, 0)),
                3: lambda: (W(8), a_read(7, 4)),
                6: lambda: (W(4), B(), dma(0, "next"))}
        return (lambda: (B(), dma(2, "next"))), {
            7: lambda: (W(4), B())}

    PFS = os.environ.get("PFS", "")
    pfh = [0, 0]

    def pfsched(typ, ci):
        if not PFS:
            if ci == 1:
                return True
            if ci == 2:
                return 2 if NPF == 1 else 0
            return False
        last = 2 if typ == "x" else 3
        r = [None] * 4
        if ci == 1 and PFS[0] == "x":
            if typ == "x":
                r[0] = (3, 0, 1)
                r[1] = (4, 0, 1)
        elif ci == 1:
            n = int(PFS[0])
            for p in range(n):
                r[p * (4 // n) if PFS[2] == "s" else p] = (1, p, n)
        if ci == last:
            n = int(PFS[1])
            for p in range(n):
                r[p + int(PFS[3])] = (2, p, n)
        return r if any(r) else None

    def chunk(kind, set_next, set_out, prev=None, defer=False, first=None, pf=False, sig=False):
        waits = (4, 12, 12, 4) if prev else (8, 4, 4, 4)
        if pf:
            waits = (4, 12 + NPF, 12 + NPF, 4)
        if PFS:
            pfl = pf if pf else [None] * 4
            hist = pfh + [1 if x else 0 for x in pfl]
            waits = tuple(((4, 12, 12, 4) if prev else (8, 4, 4, 4))[k] + hist[k] + hist[k + 1] for k in range(4))
            pfh[:] = hist[-2:]
        if prev:
            a("s_mov_b32 s90, s56")
            a("s_add_u32 s91, s56, 4096")
        set_next()
        set_out()
        for kc in range(4):
            extra = hooks = None
            if first == "ckv":
                st, hooks = ckv_first(kc)
                st()
            else:
                a("s_waitcnt vmcnt(%d)" % waits[kc])
                a("s_barrier")
                if kc < 1:
                    if not first:
                        dma(kc + 3, "cur")
                    if pf and not PFS:
                        prefetch(pf)
                else:
                    dma(kc - 1, "next")
                if PFS and pfl[kc]:
                    prefetch(*pfl[kc])
                if sig and kc == 3:
                    sig_kq()
            if first == "xn" and kc < 3:
                extra = norm_ops(kc + 1)
            if kc == 0:
                a.stamp()
            compute(kc, kind, extra, prev, hooks)
        a.stamp()
        if not defer:
            epilogue(kind)
        a.stamp()
        for i in range(3):
            a("s_mov_b32 s%d, s%d" % (12 + i, 48 + i))
        a("s_mov_b32 s52, s54")
        a("s_mov_b32 s53, s55")
        a("v_mov_b32 v%d, v%d" % (V_OFFC, V_OFFN))

    a("s_lshl_b32 s61, s4, 8")
    a("s_mov_b32 s46, s61")
    if "rev" in EXPF:
        a("s_and_b32 s47, s3, 1")
        a("s_lshl_b32 s47, s47, 12")
        a("s_xor_b32 s61, s61, s47")
    a("s_xor_b32 s62, s61, 4096")
    a("s_lshl_b32 s63, s61, 11")
    a("s_lshl_b32 s64, s59, 13")
    a("s_add_u32 s63, s63, s64")
    a("s_xor_b32 s64, s63, 0x800000")
    V_AD, V_AR = 240, 241
    a("v_and_b32 v24, 7, v1")
    a("v_lshrrev_b32 v25, 3, v1")
    a("v_lshrrev_b32 v26, 1, v25")
    a("v_xor_b32 v26, v24, v26")
    a("v_lshlrev_b32 v26, 4, v26")
    a("v_lshl_add_u32 v26, v25, 10, v26")
    a("s_lshl_b32 s60, s59, 15")
    a("v_add_u32 v%d, s60, v26" % V_AD)
    a("s_lshl_b32 s66, s6, 12")
    a("v_and_b32 v24, 31, v1")
    a("v_lshrrev_b32 v25, 5, v1")
    a("v_bfe_u32 v26, v24, 1, 3")
    a("v_lshlrev_b32 v27, 1, v25")
    a("v_xor_b32 v26, v26, v27")
    a("v_lshlrev_b32 v26, 4, v26")
    a("v_lshl_add_u32 v26, v24, 7, v26")
    a("v_add_u32 v%d, s66, v26" % V_AR)
    a("v_add_u32 v%d, 0x10000, v%d" % (V_AR + 1, V_AR))
    a("v_add_u32 v%d, 0x20000, v%d" % (V_AR + 2, V_AR))

    def a_dma(e, reg):
        for j in range(4):
            a("v_xor_b32 v%d, %d, v%d" % (248 + j, 64 * (j & 1), V_AD))
            a("s_add_u32 m0, s66, %d" % (reg * 32768 + 1024 * j))
            a("s_movk_i32 s67, %d" % (8192 * j + 128 * e))
            a("buffer_load_dwordx4 v%d, s[8:11], s67 offen lds" % (248 + j))

    def a_read(e, reg):
        for s_ in range(4):
            c0 = (4 * (s_ >> 1) + (s_ & 1)) * 16
            a("v_xor_b32 v%d, %d, v%d" % (248 + s_, c0, V_AR + (reg >> 1)))
            a("ds_read_b128 %s, v%d offset:%d" % (vr(V_A + 4 * (4 * e + s_), 4), 248 + s_, (reg & 1) * 32768))

    def L0():
        a("s_waitcnt lgkmcnt(0)")

    def stats(q):
        for i in range(32 * q, 32 * q + 32):
            r = V_A + i
            t = 20 + 2 * (i & 3)
            a("v_lshlrev_b32 v%d, 16, v%d" % (t, r))
            a("v_and_b32 v%d, 0xffff0000, v%d" % (t + 1, r))
            a("v_pk_add_f32 v[16:17], v[16:17], %s" % vr(t, 2))
            a("v_pk_fma_f32 v[18:19], %s, %s, v[18:19]" % (vr(t, 2), vr(t, 2)))

    NPF = 4 if "pfall" in EXPF else (2 if "pfv2" in EXPF else (0 if "nopf" in EXPF else 1))

    def prefetch(stage=1, part=0, nparts=1):
        if not NPF:
            return
        if stage >= 3:
            a("s_lshr_b32 s88, s2, 1")
            a("s_lshl_b32 s88, s88, 3")
            a("s_add_u32 s88, s88, s6")
            if stage == 4:
                a("s_sub_u32 s88, 1023, s88")
            a("v_lshlrev_b32 v255, 6, v1")
            src = 32 if stage == 3 else 38
            a("s_mov_b32 s84, s%d" % src)
            a("s_mov_b32 s85, s%d" % (src + 1))
            a("s_mov_b32 s86, 0x%x" % (0x400000 if stage == 3 else 0x1c0000))
            a("s_mov_b32 s87, 0x20000")
            a("s_lshl_b32 s89, s88, 12")
            a("buffer_load_dword v254, v255, s[84:87], s89 offen")
            return
        if NPF == 1:
            big, small = (32, 38) if stage == 1 else (34, 42)
            a("s_lshl_b32 s88, s2, 3")
            a("s_add_u32 s88, s88, s6")
            a("v_lshlrev_b32 v255, 6, v1")
            a("s_cmp_lt_u32 s88, 1024")
            a("s_cselect_b32 s84, s%d, s%d" % (big, small))
            a("s_cselect_b32 s85, s%d, s%d" % (big + 1, small + 1))
            a("s_cselect_b32 s86, s7, 0x1c0000")
            a("s_mov_b32 s87, 0x20000")
            a("s_and_b32 s89, s88, 1023")
            a("s_lshl_b32 s89, s89, 12")
            if nparts > 1:
                w = 64 // nparts
                m = ((1 << w) - 1) << (w * part)
                a("s_mov_b32 exec_lo, 0x%x" % (m & 0xffffffff))
                a("s_mov_b32 exec_hi, 0x%x" % (m >> 32))
            a("buffer_load_dword v254, v255, s[84:87], s89 offen")
            if nparts > 1:
                a("s_mov_b64 exec, -1")
            return
        if NPF == 2:
            a("s_lshl_b32 s88, s2, 3")
            a("s_add_u32 s88, s88, s6")
            a("v_lshlrev_b32 v255, 7, v1")
            a("s_lshr_b32 s89, s88, 9")
            a("s_mov_b32 s84, s32")
            a("s_mov_b32 s85, s33")
            a("s_mov_b32 s86, 0x400000")
            for m, src in ((1, 34), (2, 38), (3, 42)):
                a("s_cmp_eq_u32 s89, %d" % m)
                a("s_cselect_b32 s84, s%d, s84" % src)
                a("s_cselect_b32 s85, s%d, s85" % (src + 1))
            a("s_cmp_ge_u32 s89, 2")
            a("s_cselect_b32 s86, 0x1c0000, s86")
            a("s_mov_b32 s87, 0x20000")
            a("s_and_b32 s89, s88, 511")
            a("s_lshl_b32 s89, s89, 13")
            a("buffer_load_dword v254, v255, s[84:87], s89 offen")
            a("buffer_load_dword v254, v255, s[84:87], s89 offen offset:64")
            return
        a("s_lshl_b32 s88, s2, 3")
        a("s_add_u32 s88, s88, s6")
        a("v_lshlrev_b32 v255, 7, v1")
        a("s_lshr_b32 s89, s88, 9")
        a("s_mov_b32 s84, s28")
        a("s_mov_b32 s85, s29")
        for m in range(1, 4):
            a("s_cmp_eq_u32 s89, %d" % m)
            a("s_cselect_b32 s84, s%d, s84" % (28 + 2 * m))
            a("s_cselect_b32 s85, s%d, s85" % (29 + 2 * m))
        a("s_mov_b32 s86, 0x400000")
        a("s_mov_b32 s87, 0x20000")
        a("s_and_b32 s89, s88, 511")
        a("s_lshl_b32 s89, s89, 13")
        a("buffer_load_dword v254, v255, s[84:87], s89 offen")
        a("buffer_load_dword v254, v255, s[84:87], s89 offen offset:64")
        a("s_cmp_lt_u32 s88, 224")
        a("s_cselect_b32 s84, s38, s42")
        a("s_cselect_b32 s85, s39, s43")
        a("s_cselect_b32 s89, 0, 224")
        a("s_sub_u32 s89, s88, s89")
        a("s_lshl_b32 s89, s89, 13")
        a("s_cmp_lt_u32 s88, 448")
        a("s_cselect_b32 s86, 0x1c0000, 0")
        a("buffer_load_dword v254, v255, s[84:87], s89 offen")
        a("buffer_load_dword v254, v255, s[84:87], s89 offen offset:64")

    NP0 = int(os.environ.get("NP0", "0"))

    def prefetch0():
        if not NP0:
            return
        a("s_lshl_b32 s88, s2, 3")
        a("s_add_u32 s88, s88, s6")
        a("v_lshlrev_b32 v255, 7, v1")
        a("s_lshr_b32 s89, s88, 9")
        a("s_mov_b32 s84, s28")
        a("s_mov_b32 s85, s29")
        for m in range(1, 4):
            src = 28 + 2 * m if m < 3 else 38
            a("s_cmp_eq_u32 s89, %d" % m)
            a("s_cselect_b32 s84, s%d, s84" % src)
            a("s_cselect_b32 s85, s%d, s85" % (src + 1))
        a("s_cselect_b32 s86, 0x1c0000, s7")
        a("s_mov_b32 s87, 0x20000")
        a("s_and_b32 s89, s88, 511")
        a("s_lshl_b32 s89, s89, 13")
        for i in range(NP0):
            a("buffer_load_dword v254, v255, s[84:87], s89 offen offset:%d" % (64 * i))

    a("s_mov_b32 s7, 0x400000")
    a("s_cmp_eq_u32 s5, 1")
    a("s_cbranch_scc1 proj_ckv")
    set_params("cur", 28, 29, 0x400000, 8192, "s61")
    a_dma(0, 2)
    a_dma(1, 3)
    a_dma(2, 4)
    dma(0, "cur")
    prefetch0()
    a("v_mov_b32 v16, 0")
    a("v_mov_b32 v17, 0")
    a("v_mov_b32 v18, 0")
    a("v_mov_b32 v19, 0")
    W(12 + NP0); a_read(0, 2); L0(); a_dma(3, 2)
    W(12 + NP0); a_read(1, 3); L0(); a_dma(4, 3)
    W(12 + NP0); a_read(2, 4); L0(); a_dma(5, 4)
    dma(1, "cur")
    stats(0)
    W(12); a_read(3, 2); L0(); a_dma(6, 2)
    W(12); a_read(4, 3); L0(); a_dma(7, 3)
    stats(1)
    W(12); a_read(5, 4); L0()
    stats(2)
    W(4); a_read(6, 2)
    W(0); a_read(7, 3); L0()
    a("s_barrier")
    dma(2, "cur")
    dma(3, "cur")
    stats(3)
    a.stamp()
    a("v_add_f32 v16, v16, v17")
    a("v_add_f32 v18, v18, v19")
    a("v_mov_b32 v17, v16")
    a("v_mov_b32 v19, v18")
    a.nop(2)
    a("v_permlane32_swap_b32 v16, v17")
    a("v_permlane32_swap_b32 v18, v19")
    a.nop(2)
    a("v_add_f32 v16, v16, v17")
    a("v_add_f32 v18, v18, v19")
    a("v_mul_f32 v16, 0x3b000000, v16")
    a("v_mul_f32 v18, 0x3b000000, v18")
    a("v_fma_f32 v18, -v16, v16, v18")
    a("v_max_f32 v18, 0, v18")
    a("v_cvt_pk_bf16_f32 v16, v16, v18")
    a("v_and_b32 v18, 0xffff0000, v16")
    a("v_lshlrev_b32 v16, 16, v16")
    a("v_add_f32 v18, 0x3727c5ac, v18")
    a("v_cvt_pk_bf16_f32 v18, v18, v18")
    a("v_lshlrev_b32 v18, 16, v18")
    a("v_sqrt_f32 v18, v18")
    a("s_nop 0")
    a("v_cvt_pk_bf16_f32 v18, v18, v18")
    a("v_lshlrev_b32 v18, 16, v18")
    a("v_rcp_f32 v18, v18")
    a("v_mov_b32 v%d, v16" % V_LNM)
    a("v_mov_b32 v%d, v16" % (V_LNM + 1))
    a("v_mov_b32 v%d, v18" % V_LNR)
    a("v_mul_f32 v%d, 0x%08x, v18" % (V_LNR + 1, QSC))
    reads(0, 0, 0)
    for x in norm_ops(0):
        a(x)
    a.stamp()

    def out_q0():
        a("s_add_u32 s56, s63, 0x%x" % QF)

    def out_q1():
        a("s_add_u32 s56, s64, 0x%x" % QF)

    def next_q1():
        set_params("next", 28, 29, 0x400000, 8192, "s62")

    def next_h():
        a("s_cmp_lt_u32 s4, 14")
        a("s_cselect_b32 s66, 0x1c0000, 0")
        set_params("next", 38, 39, "s66", 3584, "s46")

    def next_none():
        a("s_mov_b32 s66, 0")
        set_params("next", 38, 39, "s66", 3584, "s46")

    def out_h():
        a("s_mul_i32 s56, s59, %d" % AF_BLK)
        a("s_lshl_b32 s66, s4, 13")
        a("s_add_u32 s56, s56, s66")
        a("s_add_u32 s56, s56, 0x%x" % (AF + 256 * 1024))

    chunk("Q", next_q1, out_q0, None, True, "xn")
    chunk("Q", next_h, out_q1, "Q", True, None, pfsched("x", 1))
    a("s_cmp_lt_u32 s4, 14")
    a("s_cbranch_scc1 proj_h")
    epilogue("Q")
    if EARLY:
        a("s_waitcnt vmcnt(0)")
        a("s_barrier")
        sig_kq()
    if "pf2" in EXPF:
        a("s_sub_u32 s88, s4, 14")
        a("s_lshl_b32 s89, s3, 1")
        a("s_add_u32 s88, s88, s89")
        a("s_lshl_b32 s88, s88, 3")
        a("s_add_u32 s88, s88, s6")
        a("v_lshlrev_b32 v255, 7, v1")
        a("s_mov_b32 s84, s34")
        a("s_mov_b32 s85, s35")
        a("s_mov_b32 s86, 0x400000")
        a("s_mov_b32 s87, 0x20000")
        a("s_lshl_b32 s89, s88, 15")
        for i in range(4):
            a("buffer_load_dword v254, v255, s[84:87], s89 offen")
            a("buffer_load_dword v254, v255, s[84:87], s89 offen offset:64")
            a("s_add_u32 s89, s89, 8192")
        a("s_mov_b32 s84, s42")
        a("s_mov_b32 s85, s43")
        a("s_mov_b32 s86, 0x1c0000")
        a("s_lshl_b32 s89, s88, 14")
        for i in range(2):
            a("buffer_load_dword v254, v255, s[84:87], s89 offen")
            a("buffer_load_dword v254, v255, s[84:87], s89 offen offset:64")
            a("s_add_u32 s89, s89, 8192")
    a("s_branch proj_end")
    a.label("proj_h")
    chunk("H", next_none, out_h, "Q", False, None, pfsched("x", 2), True)
    pfh[:] = [0, 0]
    a.stamp_flush(0)
    a("s_branch proj_end")
    a.nst = 2

    a.label("proj_ckv")
    set_params("cur", 30, 31, 0x400000, 8192, "s61")
    dma(0, "cur")
    a_dma(0, 2)
    a_dma(1, 3)
    a_dma(2, 4)
    dma(1, "cur")
    prefetch0()
    W(12 + NP0); a_read(0, 2); L0(); a_dma(3, 2)
    W(12 + NP0); a_read(1, 3); L0(); a_dma(4, 3)
    a("s_barrier")
    reads(0, 0, 0)

    def out_k0():
        a("s_add_u32 s56, s63, 0x%x" % KF)

    def out_k1():
        a("s_add_u32 s56, s64, 0x%x" % KF)

    def out_v0():
        a("s_add_u32 s56, s63, 0x%x" % VF)

    def out_v1():
        a("s_add_u32 s56, s64, 0x%x" % VF)

    chunk("QK", lambda: set_params("next", 30, 31, 0x400000, 8192, "s62"), out_k0, None, True, "ckv")
    chunk("QK", lambda: set_params("next", 32, 33, 0x400000, 8192, "s61"), out_k1, "QK", True, None, pfsched("c", 1))
    chunk("V", lambda: set_params("next", 32, 33, 0x400000, 8192, "s62"), out_v0, "QK", True, None, pfsched("c", 2), True)
    chunk("V", next_none, out_v1, "V", False, None, pfsched("c", 3))
    a.stamp_flush(int(STAMP) if STAMP else 0)
    a.label("proj_end")
    a.ostamp()
    if not EARLY:
        a.gridbar(0)
        a.ostamp()


def descriptor(a, name, vgpr, sgpr, accum):
    a.raw(".p2align 6")
    a.raw(".amdhsa_kernel %s" % name)
    a.raw("  .amdhsa_next_free_vgpr %d" % vgpr)
    a.raw("  .amdhsa_next_free_sgpr %d" % sgpr)
    a.raw("  .amdhsa_accum_offset %d" % accum)
    a.raw("  .amdhsa_group_segment_fixed_size 0")
    a.raw("  .amdhsa_kernarg_size 112")
    a.raw("  .amdhsa_user_sgpr_count 2")
    a.raw("  .amdhsa_user_sgpr_kernarg_segment_ptr 1")
    a.raw("  .amdhsa_system_sgpr_workgroup_id_x 1")
    a.raw(".end_amdhsa_kernel")


def main():
    from gen_rest import gen_attn, gen_ogemm, gen_reduce
    a = Asm()
    hdr = open("cdna_kernels/%s.s.ref" % NAME).read().split("\n")
    for l in hdr:
        if l.startswith(";") and "@launch" not in l:
            a.raw(l)
        elif not l.startswith(";"):
            break
    a.raw("; @launch kernel=mega_kernel grid=(256,1,1) block=(512,1,1) lds=163840")
    a.raw('.amdgcn_target "amdgcn-amd-amdhsa--gfx950"')
    a.raw(".text")
    a.raw(".globl mega_kernel")
    a.raw(".p2align 8")
    a.raw(".type mega_kernel,@function")
    gen_proj(a)
    gen_attn(a)
    gen_ogemm(a)
    gen_reduce(a)
    a.label("code_end")
    a.raw('.section .rodata,"a"')
    descriptor(a, "mega_kernel", 256, 102, 256)
    out = sys.argv[1] if len(sys.argv) > 1 else "cdna_kernels/%s.s" % NAME
    open(out, "w").write("\n".join(a.lines) + "\n")


if __name__ == "__main__":
    main()
```

```python
from gen import vr, sr, QF, KF, VF, AF, AF_BLK, PART, CTR, EARLY
import math
import os
EXP = os.environ.get("EXP", "")
SENT = "sent" in EXP
MST = os.environ.get("MST")

SCALE_LOG2E = (128 ** -0.5) * math.log2(math.e)


def f32hex(x):
    import struct
    return "0x%08x" % struct.unpack("<I", struct.pack("<f", x))[0]


def interleave(a, mf, fl):
    n = len(mf)
    pos = 0
    for i in range(n):
        a(mf[i])
        end = (len(fl) * (i + 1)) // n
        while pos < end:
            a(fl[pos])
            pos += 1


def gen_attn(a):
    V_LDS = 2
    V_DMA = 3
    V_LG = 4
    V_NEG = 5
    V_RDV = 6
    V_RDK = 7
    V_M = 8
    V_L = 9
    V_T = 10
    V_Q = 16
    V_O = 48
    V_S = 112
    V_P = 144
    V_K = 152
    V_V = 184
    S_MASK = 36
    S_LB = 35
    S_THR = 34
    V_C = 216
    V_E = 232
    NBUF = 5
    LDSZ = NBUF * 32768

    a.label("attn_kernel")
    if not EARLY:
        a.stamp()
    a("s_load_dwordx2 s[8:9], s[0:1], 104")
    if "df" in EXP:
        a("s_load_dwordx2 s[86:87], s[0:1], 96")
        a("v_mov_b32 v255, 0")
    a("v_lshrrev_b32 v1, 6, v0")
    a("s_nop 0")
    a("v_readfirstlane_b32 s6, v1")
    a("v_and_b32 v1, 63, v0")
    a("s_lshr_b32 s22, s6, 2")
    a("s_and_b32 s23, s6, 3")
    a("s_and_b32 s3, s2, 7")
    a("s_lshl_b32 s3, s3, 2")
    a("s_lshr_b32 s4, s2, 3")
    a("s_and_b32 s4, s4, 3")
    a("s_add_u32 s3, s3, s4")
    a("s_lshr_b32 s4, s2, 5")
    a("s_sub_u32 s5, 15, s4")
    a("s_mov_b32 s24, 0")
    a("s_mov_b32 s77, 1000000")
    a("s_mov_b32 s10, 0x10000000")
    a("s_mov_b32 s11, 0x20000")
    a("s_lshl_b32 s12, s3, 19")
    a("v_lshlrev_b32 v%d, 4, v1" % V_LDS)
    a("s_lshl_b32 s13, s23, 11")
    a("s_lshl_b32 s25, s22, 13")
    a("s_add_u32 s25, s25, s13")
    a("v_add_u32 v%d, s25, v%d" % (V_DMA, V_LDS))
    a("s_lshl_b32 s26, s22, 14")
    a("v_add_u32 v%d, s26, v%d" % (V_LG, V_LDS))
    a("s_add_u32 s27, s26, s13")
    a("v_and_b32 v12, 31, v1")
    a("v_lshrrev_b32 v13, 5, v1")
    a("v_lshlrev_b32 v13, 2, v13")
    a("v_sub_u32 v12, v12, v13")
    for r in range(16):
        kl = 8 * (r >> 2) + (r & 3)
        a("v_cmp_le_i32 %s, %d, v12" % (sr(S_MASK + 2 * r, 2), kl))
    a("v_mov_b32 v%d, 0xf149f2ca" % V_NEG)
    a("s_waitcnt lgkmcnt(0)")

    def bump(sreg):
        return ["s_add_u32 s%d, s%d, 32768" % (sreg, sreg),
                "s_cmp_ge_u32 s%d, %d" % (sreg, LDSZ),
                "s_cselect_b32 s%d, 0, s%d" % (sreg, sreg)]

    def dma_ops():
        ops = []
        ops.append("s_add_u32 m0, s27, s28")
        ops.append("s_cmp_eq_u32 s78, s79")
        ops.append("s_cselect_b32 s16, s80, s16")
        ops.append("s_cselect_b32 s17, s81, s17")
        ops.append("s_add_u32 s78, s78, 1")
        for i in range(2):
            ops.append("buffer_load_dwordx4 v%d, s[8:11], s16 offen offset:%d lds" % (V_DMA, i * 1024))
        ops.append("s_add_u32 m0, m0, 8192")
        ops.append("s_add_u32 s16, s16, 16384")
        for i in range(2):
            ops.append("buffer_load_dwordx4 v%d, s[8:11], s17 offen offset:%d lds" % (V_DMA, i * 1024))
        ops.append("s_add_u32 s17, s17, 16384")
        ops += bump(28)
        return ops

    def dma():
        for x in dma_ops():
            a(x)

    def tstamp(k):
        if not os.environ.get("STAMP"):
            return
        a("s_memtime s[98:99]")
        a("s_waitcnt lgkmcnt(0)")
        a("s_cmp_eq_u32 s24, 0")
        a("s_cselect_b32 s%d, s98, s%d" % (69 + k, 69 + k))
        a("s_cselect_b32 s%d, s%d, s98" % (73 + k, 73 + k))

    def kread_ops():
        return ["ds_read_b128 %s, v%d offset:%d" % (vr(V_K + 4 * s, 4), V_RDK, s * 1024) for s in range(8)] + \
            bump(33) + ["v_add_u32 v%d, s33, v%d" % (V_RDK, V_LG)]

    def vread_ops():
        return ["ds_read_b128 %s, v%d offset:%d" % (vr(V_V + 4 * i, 4), V_RDV, 8192 + i * 1024) for i in range(8)] + \
            bump(32) + ["v_add_u32 v%d, s32, v%d" % (V_RDV, V_LG)]

    def qk_ops(sp):
        ops = []
        S = V_S + 16 * sp
        for s in range(8):
            c = vr(V_C, 16) if s == 0 else vr(S, 16)
            ops.append("v_mfma_f32_32x32x16_bf16 %s, %s, %s, %s" % (vr(S, 16), vr(V_K + 4 * s, 4), vr(V_Q + 4 * s, 4), c))
        return ops

    def pv_ops():
        ops = []
        for t in range(2):
            for dt in range(4):
                o = vr(V_O + 16 * dt, 16)
                ops.append("v_mfma_f32_32x32x16_bf16 %s, %s, %s, %s" % (o, vr(V_V + 4 * (dt * 2 + t), 4), vr(V_P + 4 * t, 4), o))
        return ops

    def max_ops(S, t0, t1):
        return ["v_max3_f32 v%d, v%d, v%d, v%d" % (t0, S, S + 1, S + 2),
                "v_max3_f32 v%d, v%d, v%d, v%d" % (t1, S + 3, S + 4, S + 5),
                "v_max3_f32 v%d, v%d, v%d, v%d" % (t0, t0, S + 6, S + 7),
                "v_max3_f32 v%d, v%d, v%d, v%d" % (t1, t1, S + 8, S + 9),
                "v_max3_f32 v%d, v%d, v%d, v%d" % (t0, t0, S + 10, S + 11),
                "v_max3_f32 v%d, v%d, v%d, v%d" % (t1, t1, S + 12, S + 13),
                "v_max3_f32 v%d, v%d, v%d, v%d" % (t0, t0, S + 14, S + 15),
                "v_max_f32 v%d, v%d, v%d" % (t0, t0, t1),
                "v_mov_b32 v%d, v%d" % (t1, t0)]

    def soft_ops(S, t2, t3):
        P = V_P
        E = V_E
        vb = []
        for r in range(16):
            vb.append("v_exp_f32 v%d, v%d" % (E + r, S + r))
            if r >= 3 and r % 2 == 1:
                q = r - 3
                vb.append("v_cvt_pk_bf16_f32 v%d, v%d, v%d" % (P + q // 2, E + q, E + q + 1))
                if q == 0:
                    vb.append("v_add_f32 v%d, v%d, v%d" % (t2, E, E + 1))
                elif q == 2:
                    vb.append("v_add_f32 v%d, v%d, v%d" % (t3, E + 2, E + 3))
                else:
                    vb.append("v_add_f32 v%d, v%d, v%d" % (t2, t2, E + q))
                    vb.append("v_add_f32 v%d, v%d, v%d" % (t3, t3, E + q + 1))
        vb.append("v_add_f32 v%d, v%d, v%d" % (t2, t2, t3))
        vb.append("v_cvt_pk_bf16_f32 v%d, v%d, v%d" % (P + 7, E + 14, E + 15))
        vb.append("v_add_f32 v%d, v%d, v%d" % (t3, E + 14, E + 15))
        vb.append("v_add_f32 v%d, v%d, v%d" % (t2, t2, t3))
        return vb

    cnt = [0]
    rare = []

    def mask(L, S):
        a("s_lshl_b32 s29, s18, 1")
        a("s_add_u32 s29, s29, s22")
        a("s_cmp_lt_u32 s29, s30")
        a("s_cbranch_scc1 %s_nomask" % L)
        a("s_cmp_eq_u32 s29, s30")
        a("s_cbranch_scc1 %s_tri" % L)
        for r in range(16):
            a("v_mov_b32 v%d, v%d" % (S + r, V_NEG))
        a("s_branch %s_nomask" % L)
        a.label("%s_tri" % L)
        for r in range(16):
            a("v_cndmask_b32 v%d, v%d, v%d, %s" % (S + r, V_NEG, S + r, sr(S_MASK + 2 * r, 2)))
        a.label("%s_nomask" % L)

    def phaseA(sp, diag, last=False):
        cnt[0] += 1
        L = "attn_it%d" % cnt[0]
        S = V_S + 16 * sp
        T = V_T
        if diag:
            mask(L, S)
        qk = qk_ops(sp ^ 1)
        S2 = V_S + 16 * (sp ^ 1)
        so = soft_ops(S, T + 3, T + 4)
        vrd = vread_ops()
        mix = []
        step = len(so) // len(vrd)
        k = 0
        for i, x in enumerate(so):
            mix.append(x)
            if i % step == step - 1 and k < len(vrd):
                mix.append(vrd[k])
                k += 1
        mix += vrd[k:]
        if last:
            for x in mix:
                a(x)
        else:
            interleave(a, qk, mix)
        a("v_cmp_lt_f32 vcc, s%d, v%d" % (S_THR, T + 3))
        a("s_nop 1")
        a("s_cbranch_vccnz %s_rs" % L)
        a.label("%s_nors" % L)
        a("v_add_f32 v%d, v%d, v%d" % (V_L, V_L, T + 3))
        blk = ["%s_rs:" % L]
        if os.environ.get("STAMP"):
            blk.append("s_add_u32 s77, s77, 1")
        blk += max_ops(S, T, T + 1)
        blk += ["s_nop 1",
                "v_permlane32_swap_b32 v%d, v%d" % (T, T + 1),
                "s_nop 0",
                "v_max3_f32 v%d, v%d, v%d, s%d" % (T, T, T + 1, S_LB),
                "v_exp_f32 v%d, -v%d" % (T + 1, T),
                "v_add_f32 v%d, v%d, v%d" % (V_M, V_M, T),
                "v_min_f32 v%d, 0x7149f2ca, v%d" % (T + 1, T + 1),
                "s_mov_b32 s%d, 0x53800000" % S_THR,
                "s_mov_b32 s%d, 0" % S_LB,
                "v_mul_f32 v%d, v%d, v%d" % (V_L, V_L, T + 1)]
        for i in range(64):
            blk.append("v_mul_f32 v%d, v%d, v%d" % (V_O + i, V_O + i, T + 1))
        for r in range(16):
            blk.append("v_sub_f32 v%d, v%d, v%d" % (S + r, S + r, T))
        blk += so
        for r in range(16):
            blk.append("v_sub_f32 v%d, v%d, v%d" % (V_C + r, V_C + r, T))
        for r in range(16 if not last else 0):
            blk.append("v_sub_f32 v%d, v%d, v%d" % (S2 + r, S2 + r, T))
        blk.append("s_branch %s_nors" % L)
        rare.append(blk)
        a("s_add_u32 s18, s18, 1")

    def phaseC(mode="n"):
        a("s_waitcnt lgkmcnt(0)")
        a("s_nop 0")
        if mode == "n":
            f = kread_ops() + dma_ops()
        elif mode == "k":
            f = kread_ops()
        else:
            k = int(mode[1])
            f = ["buffer_load_dwordx4 %s, v%d, s[8:11], s%d offen offset:%d" % (
                vr(V_Q + 16 * k + 4 * s_, 4), V_LDS, 82 + k, s_ * 1024) for s_ in range(4)]
        interleave(a, pv_ops(), f)

    def bar():
        a("s_waitcnt vmcnt(4) lgkmcnt(0)")
        a("s_barrier")

    def tile_front(qt):
        a("s_lshl_b32 s15, s%d, 2" % qt)
        a("s_add_u32 s15, s15, s23")
        a("s_lshl_b32 s15, s15, 13")
        a("s_add_u32 s15, s15, s12")
        for k in range(2):
            for s in range(4):
                a("buffer_load_dwordx4 %s, v%d, s[8:11], s15 offen offset:%d" % (vr(V_Q + 16 * k + 4 * s, 4), V_LDS, s * 1024))
            a("s_add_u32 s15, s15, 4096")
        a("s_add_u32 s16, s12, 0x%x" % KF)
        a("s_add_u32 s17, s12, 0x%x" % VF)
        a("s_mov_b32 s28, 98304")
        a("s_mov_b32 s78, 0")
        a("s_mov_b32 s79, -1")
        dma()
        dma()
        dma()
        dma()

    if EARLY:
        ring = [98304, 131072, 0, 32768]
        a.eb_pre()
        a("s_lshl_b32 s15, s5, 2")
        a("s_add_u32 s15, s15, s23")
        a("s_lshl_b32 s15, s15, 13")
        a("s_add_u32 s15, s15, s12")
        a("s_add_u32 s16, s12, 0x%x" % KF)
        a("s_add_u32 s17, s12, 0x%x" % VF)
        for st in range(4):
            a("s_add_u32 m0, s27, %d" % ring[st])
            a("s_nop 0")
            for i in range(2):
                a("buffer_load_dwordx4 v%d, s[8:11], s16 offen offset:%d lds" % (V_DMA, i * 1024))
            a("s_add_u32 s16, s16, 16384")
            if st == 0:
                for k in range(2):
                    for s_ in range(4):
                        a("buffer_load_dwordx4 %s, v%d, s[8:11], s15 offen offset:%d" % (vr(V_Q + 16 * k + 4 * s_, 4), V_LDS, s_ * 1024))
                    a("s_add_u32 s15, s15, 4096")
        a.eb_post()
        a.stamp()
        for st in range(4):
            a("s_add_u32 m0, s27, %d" % (ring[st] + 8192))
            a("s_nop 0")
            for i in range(2):
                a("buffer_load_dwordx4 v%d, s[8:11], s17 offen offset:%d lds" % (V_DMA, i * 1024))
            a("s_add_u32 s17, s17, 16384")
        a("s_mov_b32 s28, 65536")
        a("s_mov_b32 s78, 4")
    else:
        tile_front(5)
    a("s_mov_b32 s32, 98304")
    a("s_add_u32 s80, s12, 0x%x" % KF)
    a("s_add_u32 s81, s12, 0x%x" % VF)
    a("s_lshl_b32 s82, s4, 2")
    a("s_add_u32 s82, s82, s23")
    a("s_lshl_b32 s82, s82, 13")
    a("s_add_u32 s82, s82, s12")
    a("s_add_u32 s83, s82, 4096")
    a.label("attn_tile")
    a("s_lshl_b32 s14, s5, 2")
    a("s_add_u32 s14, s14, s23")
    a("s_mov_b32 s30, s14")
    a("s_lshl_b32 s79, s5, 1")
    a("s_add_u32 s79, s79, 2")
    a("s_mov_b32 s33, s32")
    a("v_add_u32 v%d, s32, v%d" % (V_RDV, V_LG))
    a("v_add_u32 v%d, s32, v%d" % (V_RDK, V_LG))
    a("v_mov_b32 v%d, 0" % V_M)
    a("s_mov_b32 s%d, 0xbf800000" % S_THR)
    a("s_mov_b32 s%d, 0xff7fffff" % S_LB)
    for i in range(16):
        a("v_mov_b32 v%d, 0" % (V_C + i))
    a("v_mov_b32 v%d, 0" % V_L)
    for i in range(64):
        a("v_mov_b32 v%d, 0" % (V_O + i))
    a("s_lshl_b32 s19, s5, 1")
    a("s_mov_b32 s18, 0")
    a("s_waitcnt vmcnt(8)")
    a("s_cmp_eq_u32 s24, 0")
    a("s_cbranch_scc1 attn_w2")
    a("s_waitcnt vmcnt(%d)" % (12 if SENT else 4))
    a.label("attn_w2")
    a("s_barrier")
    if "df" in EXP:
        a("global_load_dword v254, v255, s[86:87] sc1")
    if not MST:
        tstamp(0)
    for x in kread_ops():
        a(x)
    a("s_cmp_eq_u32 s24, 0")
    a("s_cbranch_scc1 attn_w3")
    a("s_mov_b32 s78, 2")
    dma()
    dma()
    a.label("attn_w3")
    a("s_waitcnt lgkmcnt(0)")
    for x in qk_ops(0):
        a(x)
    for x in kread_ops():
        a(x)
    if "noinit" not in EXP:
        a.nop(8)
        S, T = V_S, V_T
        a("s_cmp_lg_u32 s5, 0")
        a("s_cbranch_scc1 attn_im_nomask")
        mask("attn_im", S)
        for x in max_ops(S, T, T + 1):
            a(x)
        a("s_nop 1")
        a("v_permlane32_swap_b32 v%d, v%d" % (T, T + 1))
        a("s_nop 0")
        a("v_max_f32 v%d, v%d, v%d" % (T, T, T + 1))
        a("s_mov_b32 s%d, 0x53800000" % S_THR)
        a("s_mov_b32 s%d, 0" % S_LB)
        a("v_mov_b32 v%d, v%d" % (V_M, T))
        for r in range(16):
            a("v_sub_f32 v%d, v%d, v%d" % (S + r, S + r, T))
        for r in range(16):
            a("v_sub_f32 v%d, 0, v%d" % (V_C + r, T))
    a("s_cmp_eq_u32 s22, 1")
    a("s_cbranch_scc1 attn_g1")
    a("s_cmp_eq_u32 s5, 0")
    a("s_cbranch_scc1 attn_diag0")
    a.label("attn_loop0")
    a.inloop = "og" not in EXP
    for sp in range(2):
        bar()
        a("s_waitcnt lgkmcnt(0)")
        phaseA(sp, False)
        phaseC()
    a.inloop = False
    a("s_cmp_lt_u32 s18, s19")
    a("s_cbranch_scc1 attn_loop0")
    a.label("attn_diag0")
    if not MST:
        tstamp(1)
    for sp in range(2):
        bar()
        a("s_waitcnt lgkmcnt(0)")
        phaseA(sp, True, sp == 1)
        phaseC("q%d" % sp)
    tstamp(2)
    a("s_branch attn_merge")
    a.label("attn_g1")
    bar()
    a("s_waitcnt lgkmcnt(0)")
    a("s_cmp_eq_u32 s5, 0")
    a("s_cbranch_scc1 attn_diag1a")
    dma()
    phaseA(0, False)
    a.label("attn_loop1")
    a.inloop = "og" not in EXP
    bar()
    phaseC()
    a("s_waitcnt lgkmcnt(0)")
    phaseA(1, False)
    a.inloop = False
    a("s_cmp_ge_u32 s18, s19")
    a("s_cbranch_scc1 attn_diag1")
    a.inloop = "og" not in EXP
    bar()
    phaseC()
    a("s_waitcnt lgkmcnt(0)")
    phaseA(0, False)
    a.inloop = False
    a("s_branch attn_loop1")
    a.label("attn_diag1")
    bar()
    phaseC("k")
    a("s_waitcnt lgkmcnt(0)")
    a.label("attn_diag1a")
    phaseA(0, True)
    bar()
    phaseC("q0")
    phaseA(1, True, True)
    phaseC("q1")
    a.label("attn_merge")

    def slot(wreg, vdst):
        a("s_mul_i32 s29, s%d, 11" % wreg)
        a("s_lshr_b32 s29, s29, 5")
        a("s_mul_i32 s84, s29, 3")
        a("s_sub_u32 s84, s%d, s84" % wreg)
        a("s_lshl_b32 s29, s29, 15")
        a("s_add_u32 s29, s29, s28")
        a("s_sub_u32 s85, s29, %d" % LDSZ)
        a("s_cmp_ge_u32 s29, %d" % LDSZ)
        a("s_cselect_b32 s29, s85, s29")
        a("s_mul_i32 s84, s84, 9216")
        a("s_add_u32 s29, s29, s84")
        a("v_add_u32 v%d, s29, v%d" % (vdst, V_LDS))
    slot(6, 12)
    a("s_xor_b32 s31, s6, 4")
    slot(31, 13)
    a("s_waitcnt lgkmcnt(0)")
    a("s_barrier")
    if MST:
        tstamp(0)
    a.nop(4)
    for g in range(2):
        if g == 0:
            a("s_cmp_eq_u32 s22, 1")
            a("s_cbranch_scc1 attn_mg1")
        else:
            a.label("attn_mg1")
        keep, send = V_O + 32 * g, V_O + 32 * (1 - g)
        for i in range(8):
            a("ds_write_b128 v12, %s offset:%d" % (vr(send + 4 * i, 4), i * 1024))
        a("ds_write_b64 v12, v[%d:%d] offset:8192" % (V_M, V_L))
        a("s_waitcnt lgkmcnt(0)")
        a("s_barrier")
        if MST and g == 0:
            tstamp(1)
        a("ds_read_b64 v[14:15], v13 offset:8192")
        for i in range(8):
            a("ds_read_b128 %s, v13 offset:%d" % (vr(V_K + 4 * i, 4), i * 1024))
        a("s_waitcnt lgkmcnt(8)")
        a("v_max_f32 v10, v%d, v14" % V_M)
        a("v_sub_f32 v11, v%d, v10" % V_M)
        a("v_sub_f32 v10, v14, v10")
        a("v_exp_f32 v11, v11")
        a("v_exp_f32 v10, v10")
        a.nop(1)
        a("v_mul_f32 v%d, v%d, v11" % (V_L, V_L))
        a("v_fma_f32 v%d, v15, v10, v%d" % (V_L, V_L))
        a("v_mov_b32 v14, v%d" % V_L)
        a.nop(2)
        a("v_permlane32_swap_b32 v%d, v14" % V_L)
        a.nop(1)
        a("v_add_f32 v14, v14, v%d" % V_L)
        a("v_rcp_f32 v14, v14")
        a.nop(1)
        a("v_mul_f32 v11, v11, v14")
        a("v_mul_f32 v10, v10, v14")
        a("s_mul_i32 s20, s14, %d" % AF_BLK)
        a("s_lshl_b32 s21, s3, 13")
        a("s_add_u32 s20, s20, s21")
        a("s_add_u32 s20, s20, 0x%x" % (AF + 4096 * g))
        a("s_waitcnt lgkmcnt(0)")
        for i in range(32):
            a("v_mul_f32 v%d, v%d, v10" % (V_K + i, V_K + i))
            a("v_fma_f32 v%d, v%d, v11, v%d" % (V_K + i, keep + i, V_K + i))
        for k in range(4):
            d = V_V + k * 4
            for p in range(4):
                x0 = V_K + 8 * k + 2 * p
                a("v_cvt_pk_bf16_f32 v%d, v%d, v%d" % (d + p, x0, x0 + 1))
            a("buffer_store_dwordx4 %s, v%d, s[8:11], s20 offen offset:%d sc1" % (vr(d, 4), V_LDS, k * 1024))
        if g == 0:
            a("s_branch attn_mgdone")
    a.label("attn_mgdone")
    if SENT:
        a("s_cmp_eq_u32 s24, 1")
        a("s_cbranch_scc1 attn_noclr")
        a("s_lshl_b32 s20, s2, 16")
        a("s_lshl_b32 s21, s6, 13")
        a("s_add_u32 s20, s20, s21")
        a("s_add_u32 s20, s20, 0x%x" % PART)
        a("s_add_u32 s21, s20, 4096")
        for k in range(4):
            a("v_mov_b32 v%d, -1" % (V_K + k))
        for k in range(8):
            a("buffer_store_dwordx4 %s, v%d, s[8:11], s%d offen offset:%d sc1" % (vr(V_K, 4), V_LDS, 20 if k < 4 else 21, (k & 3) * 1024))
        a.label("attn_noclr")
    tstamp(3)
    a.nst = 10
    a("s_cmp_eq_u32 s24, 1")
    a("s_cbranch_scc1 attn_fin")
    a("s_mov_b32 s24, 1")
    a("s_mov_b32 s5, s4")
    for r in (80, 81, 82, 83):
        a("s_mov_b32 s%d, 0x10000000" % r)
    a("s_branch attn_tile")
    a.label("attn_fin")
    a.stamp_flush(0)
    a.label("attn_end")
    a("s_branch attn_after")
    for blk in rare:
        a.label(blk[0][:-1])
        for x in blk[1:]:
            a(x)
    a.label("attn_after")
    a.ostamp()
    if "ov" in EXP:
        a("s_waitcnt vmcnt(4) lgkmcnt(0)")
    else:
        a("s_waitcnt vmcnt(0) lgkmcnt(0)")
    if "df" in EXP:
        a("s_mov_b32 s88, 0")
        a.label("df_chk")
        a("v_readfirstlane_b32 s89, v254")
        a("s_cmp_ge_u32 s89, 16")
        a("s_cbranch_scc1 df_ok")
        a("s_add_u32 s88, s88, 1")
        a("s_cmp_gt_u32 s88, 40000")
        a("s_cbranch_scc1 df_ok")
        a("s_sleep 8")
        a("global_load_dword v254, v255, s[86:87] sc1")
        a("s_waitcnt vmcnt(0)")
        a("s_branch df_chk")
        a.label("df_ok")
    a("s_barrier")
    a.phase = 2


def gen_ogemm(a):
    V_AL = 2
    V_TR = 4
    V_DA = 8
    V_DB = 9
    V_ST = 11
    V_F = 16
    V_ACC = 48
    NST = 23
    a.label("ogemm_kernel")
    a.stamp()
    a("s_load_dwordx2 s[8:9], s[0:1], 104")
    a("s_load_dwordx2 s[24:25], s[0:1], 40")
    a("s_load_dwordx2 s[26:27], s[0:1], 72")
    a("v_lshrrev_b32 v1, 6, v0")
    a("s_nop 0")
    a("v_readfirstlane_b32 s6, v1")
    a("v_and_b32 v1, 63, v0")
    a("s_lshr_b32 s3, s2, 4")
    a("s_and_b32 s4, s2, 1")
    a("s_lshl_b32 s4, s4, 1")
    a("s_bfe_u32 s5, s2, 0x10003")
    a("s_or_b32 s4, s4, s5")
    a("s_bfe_u32 s5, s2, 0x20001")
    if "same" in EXP:
        a("s_mov_b32 s3, 0")
        a("s_mov_b32 s4, 0")
        a("s_mov_b32 s5, 0")
    if "map1" not in EXP:
        a("s_and_b32 s3, s2, 1")
        a("s_lshl_b32 s3, s3, 3")
        a("s_bfe_u32 s4, s2, 0x30003")
        a("s_or_b32 s3, s3, s4")
        a("s_lshr_b32 s4, s2, 6")
    a("s_mov_b32 s10, 0x10000000")
    a("s_mov_b32 s11, 0x20000")
    a("s_mov_b32 s15, 0x20000")
    a("s_lshr_b32 s30, s6, 2")
    a("s_lshr_b32 s31, s6, 1")
    a("s_and_b32 s31, s31, 1")
    a("s_and_b32 s32, s6, 1")
    a("v_lshlrev_b32 v%d, 4, v1" % V_ST)
    a("s_lshl_b32 s33, s31, 13")
    a("s_lshl_b32 s34, s30, 11")
    a("s_add_u32 s33, s33, s34")
    a("v_add_u32 v%d, s33, v%d" % (V_AL, V_ST))
    a("v_add_u32 v%d, 0x10000, v%d" % (V_AL + 1, V_AL))
    a("v_bfe_u32 v12, v1, 2, 2")
    a("v_lshrrev_b32 v13, 5, v1")
    a("v_lshl_add_u32 v13, v13, 2, v12")
    a("v_lshlrev_b32 v13, 8, v13")
    a("v_bfe_u32 v14, v1, 4, 1")
    a("v_lshl_add_u32 v13, v14, 5, v13")
    a("v_and_b32 v14, 3, v1")
    a("v_lshl_add_u32 v13, v14, 3, v13")
    a("s_lshl_b32 s33, s30, 13")
    a("s_add_u32 s33, s33, 16384")
    a("v_add_u32 v13, s33, v13")
    a("v_lshlrev_b32 v12, 6, v12")
    a("s_lshl_b32 s34, s32, 7")
    for ntl in range(2):
        a("s_add_u32 s35, s34, %d" % (ntl << 6))
        a("v_xor_b32 v14, s35, v12")
        a("v_add_u32 v%d, v13, v14" % (V_TR + ntl))
        a("v_add_u32 v%d, 0x10000, v%d" % (V_TR + 2 + ntl, V_TR + ntl))
    a("s_lshr_b32 s33, s6, 1")
    a("s_lshl_b32 s34, s3, 2")
    a("s_add_u32 s34, s34, s33")
    a("s_mul_i32 s34, s34, %d" % AF_BLK)
    a("s_lshl_b32 s35, s32, 11")
    a("s_add_u32 s34, s34, s35")
    a("s_add_u32 s34, s34, 0x%x" % AF)
    a("v_add_u32 v%d, s34, v%d" % (V_DA, V_ST))
    a("s_lshl_b32 s36, s6, 11")
    a("v_lshrrev_b32 v12, 4, v1")
    a("v_bfe_u32 v13, v1, 2, 2")
    a("v_xor_b32 v13, v13, v12")
    a("v_lshlrev_b32 v13, 6, v13")
    a("v_and_b32 v14, 3, v1")
    a("v_lshl_add_u32 v13, v14, 4, v13")
    a("s_lshl_b32 s33, s6, 3")
    a("v_add_u32 v12, s33, v12")
    a("v_lshlrev_b32 v12, 10, v12")
    a("v_add_u32 v12, v12, v13")
    a("s_lshl_b32 s33, s4, 8")
    a("v_add_u32 v%d, s33, v12" % V_DB)
    a("v_add_u32 v%d, 3072, v%d" % (V_DB + 1, V_DB))
    a("s_mov_b32 s42, 0x1c0000")
    a("s_mul_i32 s37, s5, 7")
    a("s_add_u32 s37, s37, 64")
    a("s_lshl_b32 s44, s5, 4")
    a("s_mov_b32 s43, 0")
    a("s_waitcnt lgkmcnt(0)")

    def dma(buf):
        a("s_cmp_lt_u32 s37, 64")
        a("s_cselect_b32 s12, s24, s26")
        a("s_cselect_b32 s13, s25, s27")
        a("s_cselect_b32 s14, 0x400000, s42")
        a("s_cselect_b32 s39, 0, 64")
        a("s_sub_u32 s39, s37, s39")
        a("s_lshl_b32 s39, s39, 16")
        a("s_lshl_b32 s40, s37, 12")
        a("s_cmp_lt_u32 s43, %d" % NST)
        a("s_cselect_b32 s14, s14, 0")
        a("s_cselect_b32 s40, s40, 0x10000000")
        a("s_add_u32 s37, s37, 1")
        a("s_add_u32 s43, s43, 1")
        a("s_cmp_eq_u32 s43, 7")
        a("s_cselect_b32 s37, s44, s37")
        a("s_add_u32 m0, s36, %d" % (buf * 32768))
        a("s_nop 0")
        for i in range(2):
            a("buffer_load_dwordx4 v%d, s[8:11], s40 offen offset:%d lds" % (V_DA, i * 1024))
        a("s_add_u32 m0, s36, %d" % (buf * 32768 + 16384))
        a("s_nop 0")
        for i in range(2):
            a("buffer_load_dwordx4 v%d, s[12:15], s39 offen offset:%d lds" % (V_DB + i, i * 1024))

    def reads(buf, sl, st):
        hi = 1 if buf >= 2 else 0
        bo = (buf & 1) * 32768
        f = V_F + st * 16
        for mbl in range(2):
            a("ds_read_b128 %s, v%d offset:%d" % (vr(f + 4 * mbl, 4), V_AL + hi, bo + mbl * 4096 + sl * 1024))
        for ntl in range(2):
            for ird in range(2):
                a("ds_read_b64_tr_b16 %s, v%d offset:%d" % (
                    vr(f + 8 + 4 * ntl + 2 * ird, 2), V_TR + 2 * hi + ntl, bo + sl * 4096 + ird * 2048))

    def mfmas(st, first):
        f = V_F + st * 16
        for mbl in range(2):
            for ntl in range(2):
                acc = vr(V_ACC + 16 * (mbl * 2 + ntl), 16)
                c = "0" if first else acc
                a("v_mfma_f32_32x32x16_bf16 %s, %s, %s, %s" % (acc, vr(f + 8 + 4 * ntl, 4), vr(f + 4 * mbl, 4), c))

    dma(0)
    dma(1)
    dma(2)
    for i in range(64):
        a("v_mov_b32 v%d, 0" % (V_ACC + i))
    if "ov" in EXP:
        a("s_waitcnt vmcnt(12)")
        a("s_barrier")
    a("s_cmp_lg_u32 s6, 0")
    a("s_cbranch_scc1 ogemm_nosig")
    a.gb_signal(1, "ov" in EXP)
    a.label("ogemm_nosig")
    a("s_mov_b32 s41, 0")
    a("s_waitcnt vmcnt(8)")
    a("s_barrier")
    a.stamp()
    reads(0, 0, 0)

    def body(buf, hook=None, check=True):
        a("s_waitcnt vmcnt(4)")
        a("s_barrier")
        reads(buf, 1, 1)
        a("s_waitcnt lgkmcnt(6)")
        mfmas(0, False)
        reads((buf + 1) & 3, 0, 0)
        if hook:
            hook()
        dma((buf + 3) & 3)
        a("s_waitcnt lgkmcnt(6)")
        mfmas(1, False)
        a("s_add_u32 s41, s41, 1")
        if check:
            a("s_cmp_ge_u32 s41, %d" % NST)
            a("s_cbranch_scc1 ogemm_done")

    def pollhook():
        a("s_cmp_lg_u32 s6, 0")
        a("s_cbranch_scc1 ogemm_nopoll")
        a.gb_poll(1)
        a.label("ogemm_nopoll")
        a("s_barrier")
        a.stamp()

    def sighook():
        a("s_cmp_lg_u32 s6, 0")
        a("s_cbranch_scc1 ogemm_nosig2")
        a.gb_signal2(1)
        a.label("ogemm_nosig2")

    for it in range(8):
        body(it & 3, pollhook if it == 4 else (sighook if it == 1 and "ov" in EXP else None), False)
    a.label("ogemm_loop")
    a.inloop = "og" in EXP
    for buf in range(4):
        body(buf)
    a("s_branch ogemm_loop")
    a.inloop = False
    a.label("ogemm_done")
    a.ostamp()
    a.stamp()
    a("s_waitcnt vmcnt(0) lgkmcnt(0)")
    a("s_barrier")
    a.nop(12)
    a("s_and_b32 s33, s6, 3")
    a("s_lshl_b32 s33, s33, 14")
    a("s_lshl_b32 s34, s6, 13")
    a("v_add_u32 v12, s34, v%d" % V_ST)
    a("s_xor_b32 s34, s34, 0x8000")
    a("v_add_u32 v13, s34, v%d" % V_ST)
    a("s_lshl_b32 s34, s3, 2")
    a("s_add_u32 s34, s34, s4")
    a("s_lshl_b32 s34, s34, 16")
    a("s_add_u32 s34, s34, s33")
    a("s_lshl_b32 s35, s5, 22")
    a("s_add_u32 s34, s34, s35")
    a("s_add_u32 s34, s34, 0x%x" % PART)
    a("s_cmp_eq_u32 s30, 0")
    a("s_cbranch_scc1 ogemm_g0")
    for g in (1, 0):
        if g == 0:
            a.label("ogemm_g0")
        keep, send = V_ACC + 32 * g, V_ACC + 32 * (1 - g)
        for i in range(8):
            a("ds_write_b128 v12, %s offset:%d" % (vr(send + 4 * i, 4), i * 1024))
        a("s_waitcnt lgkmcnt(0)")
        a("s_barrier")
        for i in range(8):
            a("ds_read_b128 %s, v13 offset:%d" % (vr(112 + 4 * i, 4), i * 1024))
        a("s_add_u32 s34, s34, %d" % (8192 * g))
        for i in range(8):
            a("s_waitcnt lgkmcnt(%d)" % (7 - i))
            for k in range(4):
                a("v_add_f32 v%d, v%d, v%d" % (keep + 4 * i + k, keep + 4 * i + k, 112 + 4 * i + k))
            if i == 4:
                a("s_add_u32 s34, s34, 4096")
            a("buffer_store_dwordx4 %s, v%d, s[8:11], s34 offen offset:%d sc1" % (vr(keep + 4 * i, 4), V_ST, (i & 3) * 1024))
        if g == 1:
            a("s_branch ogemm_end")
    a.stamp()
    a.stamp_flush(0)
    a.label("ogemm_end")
    a("s_lshl_b32 s49, s3, 2")
    a("s_add_u32 s49, s49, s4")
    a("s_lshl_b32 s45, s49, 4")
    a("s_lshl_b32 s46, s5, 2")
    a("s_add_u32 s45, s45, s46")
    reduce_pre(a)
    if SENT:
        a.phase = 3
        return
    a("s_waitcnt vmcnt(0) lgkmcnt(0)")
    a("s_barrier")
    a("s_cmp_lg_u32 s6, 0")
    a("s_cbranch_scc1 tb_wait")
    a("s_add_u32 s46, s49, 32")
    a("s_lshl_b32 s46, s46, 12")
    a("s_add_u32 s46, s46, 0x%x" % CTR)
    a("s_mov_b64 exec, 1")
    a("v_mov_b32 v12, 1")
    a("v_mov_b32 v13, 0")
    a("buffer_atomic_add v12, v13, s[8:11], s46 offen sc1")
    a("s_mov_b32 s47, 0")
    a.label("tb_loop")
    a("buffer_load_dword v14, v13, s[8:11], s46 offen sc1")
    a("s_waitcnt vmcnt(0)")
    a("v_readfirstlane_b32 s48, v14")
    a("s_cmp_ge_u32 s48, 4")
    a("s_cbranch_scc1 tb_done")
    a("s_add_u32 s47, s47, 1")
    a("s_cmp_gt_u32 s47, 40000")
    a("s_cbranch_scc1 tb_done")
    a("s_sleep 4")
    a("s_branch tb_loop")
    a.label("tb_done")
    a("s_mov_b64 exec, -1")
    a.label("tb_wait")
    a("s_barrier")
    a.phase = 3


RB = 176


def reduce_pre(a):
    a("s_load_dwordx2 s[52:53], s[0:1], 0")
    a("s_load_dwordx2 s[56:57], s[0:1], 80")
    a("s_load_dwordx2 s[60:61], s[0:1], 88")
    a("s_mov_b32 s54, 0x200000")
    a("s_mov_b32 s55, 0x20000")
    a("s_mov_b32 s58, 1024")
    a("s_mov_b32 s59, 0x20000")
    a("s_mov_b32 s62, 0x200000")
    a("s_mov_b32 s63, 0x20000")
    T = RB + 70
    a("s_lshr_b32 s40, s6, 2")
    a("v_and_b32 v%d, 255, v0" % T)
    a("s_add_u32 s41, s45, s40")
    a("v_lshlrev_b32 v%d, 4, v%d" % (RB + 1, T))
    a("s_waitcnt lgkmcnt(0)")
    for j in range(2):
        B = RB + 4 + 32 * j
        v2, v3 = RB + 2, RB + 3
        a("s_add_u32 s42, s41, %d" % (2 * j))
        a("s_lshr_b32 s64, s42, 4")
        a("s_lshr_b32 s65, s42, 2")
        a("s_and_b32 s65, s65, 3")
        a("s_and_b32 s66, s42, 3")
        a("s_lshr_b32 s24, s64, 2")
        a("s_and_b32 s25, s64, 3")
        a("s_lshr_b32 s26, s65, 1")
        a("s_and_b32 s27, s65, 1")
        a("s_lshr_b32 s28, s66, 1")
        a("s_and_b32 s29, s66, 1")
        a("s_lshl_b32 s30, s24, 2")
        a("s_lshl_b32 s31, s26, 1")
        a("s_add_u32 s30, s30, s31")
        a("s_add_u32 s30, s30, s28")
        a("s_lshl_b32 s30, s30, 15")
        a("s_lshl_b32 s31, s25, 2")
        a("s_lshl_b32 s32, s27, 1")
        a("s_add_u32 s31, s31, s32")
        a("s_add_u32 s31, s31, s29")
        a("s_lshl_b32 s31, s31, 6")
        a("v_and_b32 v%d, 31, v%d" % (v2, T))
        a("v_lshlrev_b32 v%d, 10, v%d" % (v2, v2))
        a("v_lshrrev_b32 v%d, 6, v%d" % (v3, T))
        a("v_lshlrev_b32 v%d, 4, v%d" % (v3, v3))
        a("v_bfe_u32 v%d, v%d, 5, 1" % (B + 16, T))
        a("v_lshl_add_u32 v%d, v%d, 3, v%d" % (v3, B + 16, v3))
        a("v_add_u32 v%d, s31, v%d" % (v3, v3))
        a("v_add_u32 v%d, v%d, v%d" % (v2, v2, v3))
        a("v_add_u32 v%d, s30, v%d" % (B + 26, v2))
        a("buffer_load_dwordx2 %s, v%d, s[52:55], 0 offen" % (vr(B + 16, 2), B + 26))
        a("buffer_load_dwordx2 %s, v%d, s[56:59], 0 offen" % (vr(B + 18, 2), v3))


def gen_reduce(a):
    a.label("reduce_kernel")
    a.ostamp()
    a.stamp()
    if SENT:
        a("s_mov_b32 s47, 0")
        a.label("red_poll")
    for j in range(2):
        B = RB + 4 + 32 * j
        a("s_lshl_b32 s42, s41, 12")
        a("s_add_u32 s42, s42, 0x%x" % (PART + j * 8192))
        for p in range(4):
            a("buffer_load_dwordx4 %s, v%d, s[8:11], s42 offen%s" % (vr(B + 4 * p, 4), RB + 1, " sc1" if SENT else ""))
            if p < 3:
                a("s_add_u32 s42, s42, 0x400000")
    if SENT:
        for j in range(2):
            B = RB + 4 + 32 * j
            a("s_waitcnt vmcnt(%d)" % (4 - 4 * j))
            a("v_max3_u32 v%d, v%d, v%d, v%d" % (248 + j, B, B + 1, B + 2))
            for i in range(6):
                a("v_max3_u32 v%d, v%d, v%d, v%d" % (248 + j, 248 + j, B + 3 + 2 * i, B + 4 + 2 * i))
            a("v_max_u32 v%d, v%d, v%d" % (248 + j, 248 + j, B + 15))
        a("v_max_u32 v248, v248, v249")
        a("v_cmp_eq_u32 vcc, -1, v248")
        a("s_nop 1")
        a("s_cbranch_vccz red_ok")
        a("s_add_u32 s47, s47, 1")
        a("s_cmp_gt_u32 s47, 20000")
        a("s_cbranch_scc1 red_ok")
        a("s_sleep %s" % os.environ.get("RSL", "4"))
        a("s_branch red_poll")
        a.label("red_ok")
    for j in range(2):
        B = RB + 4 + 32 * j
        for p in range(2):
            a("v_lshlrev_b32 v%d, 16, v%d" % (B + 20, B + 16 + p))
            a("v_and_b32 v%d, 0xffff0000, v%d" % (B + 21, B + 16 + p))
            a("v_lshlrev_b32 v%d, 16, v%d" % (B + 22, B + 18 + p))
            a("v_and_b32 v%d, 0xffff0000, v%d" % (B + 23, B + 18 + p))
            a("v_add_f32 v%d, v%d, v%d" % (B + 28 + 2 * p, B + 20, B + 22))
            a("v_add_f32 v%d, v%d, v%d" % (B + 29 + 2 * p, B + 21, B + 23))
    for j in range(2):
        B = RB + 4 + 32 * j
        a("s_waitcnt vmcnt(%d)" % (4 - 4 * j))
        for i in range(4):
            a("v_add_f32 v%d, v%d, v%d" % (B + i, B + i, B + 4 + i))
            a("v_add_f32 v%d, v%d, v%d" % (B + 8 + i, B + 8 + i, B + 12 + i))
        for i in range(4):
            a("v_add_f32 v%d, v%d, v%d" % (B + i, B + i, B + 8 + i))
        for i in range(4):
            a("v_add_f32 v%d, v%d, v%d" % (B + i, B + i, B + 28 + i))
        for p in range(2):
            a("v_cvt_pk_bf16_f32 v%d, v%d, v%d" % (B + 24 + p, B + 2 * p, B + 1 + 2 * p))
        a("buffer_store_dwordx2 %s, v%d, s[60:63], 0 offen" % (vr(B + 24, 2), B + 26))
    a.stamp()
    a.stamp_flush(0)
    if os.environ.get("STAMP"):
        a("s_waitcnt vmcnt(0)")
        a("s_memrealtime s[18:19]")
        a("s_load_dwordx2 s[8:9], s[0:1], 96")
        a("s_mov_b32 s10, 65536")
        a("s_mov_b32 s11, 0x20000")
        a("s_lshl_b32 s20, s2, 4")
        a("s_add_u32 s20, s20, %d" % (4096 + 4096 * 3))
        a("s_waitcnt lgkmcnt(0)")
        a("s_mov_b64 exec, 1")
        a("v_mov_b32 v4, s18")
        a("v_mov_b32 v5, s93")
        a("v_mov_b32 v6, s18")
        a("v_mov_b32 v7, s92")
        a("v_mov_b32 v2, 0")
        a("buffer_store_dwordx4 v[4:7], v2, s[8:11], s20 offen")
    if os.environ.get("OST"):
        a("s_waitcnt vmcnt(0)")
    a.ostamp(True)
    a("s_endpgm")
```

```python
import sys

NAME = "parallel_sum__compressed_kv_cla__dense_activation_squared_relu__prompt"

MB = 1 << 20
QF = 0
KF = 16 * MB
VF = 32 * MB
AF = 49 * MB
AF_BLK = 368 * 1024
PART = 80 * MB
CTR = 100 * MB
import math, struct
QSC = struct.unpack("<I", struct.pack("<f", (128 ** -0.5) * math.log2(math.e)))[0]


import os
STAMP = os.environ.get("STAMP")
EARLY = "early" in os.environ.get("EXP", "")


class Asm:
    def __init__(self):
        self.lines = []
        self.nst = 0

    def stamp(self):
        if not STAMP:
            return
        self("s_memtime s[98:99]")
        self("s_waitcnt lgkmcnt(0)")
        self("s_mov_b32 s%d, s98" % (68 + self.nst))
        self.nst += 1

    def stamp_flush(self, wgsel, dbgptr_off=96):
        if not STAMP:
            return
        L = "stf_%d" % len(self.lines)
        self("s_cmp_lg_u32 s2, %d" % wgsel)
        self("s_cbranch_scc1 %s" % L)
        self("s_load_dwordx2 s[96:97], s[0:1], %d" % dbgptr_off)
        self("s_waitcnt lgkmcnt(0)")
        self("s_mov_b32 s98, 4096")
        self("s_mov_b32 s99, 0x20000")
        self("v_cmp_eq_u32 vcc, 0, v0")
        self("s_and_saveexec_b64 s[94:95], vcc")
        self("s_cbranch_execz %s" % L)
        for i in range(self.nst):
            self("v_mov_b32 v1, s%d" % (68 + i))
            self("v_mov_b32 v2, %d" % (4 * i + 512 * (self.phase + 1)))
            self("buffer_store_dword v1, v2, s[96:99], 0 offen")
        self.label(L)
        self("s_mov_b64 exec, -1")
        self.nst = 0

    phase = 0
    on = 0

    def code_touch(self, lo, hi, tag, back, n):
        a = self
        lo = "(%s)" % lo
        a("s_getpc_b64 s[88:89]")
        a.label("ct_%s" % tag)
        if back:
            a("s_sub_u32 s88, s88, ct_%s-%s" % (tag, lo))
            a("s_subb_u32 s89, s89, 0")
        else:
            a("s_add_u32 s88, s88, %s-ct_%s" % (lo, tag))
            a("s_addc_u32 s89, s89, 0")
        for k in range(n):
            a("v_lshlrev_b32 v255, 7, v0")
            if k:
                a("v_add_u32 v255, 0x%x, v255" % (k * 65536))
            a("v_min_u32 v255, %s-%s-4, v255" % (hi, lo))
            a("global_load_dword v254, v255, s[88:89]")

    def ostamp(self, last=False):
        OST = os.environ.get("OST")
        if not OST:
            return
        a = self
        a("s_memrealtime s[98:99]")
        a("s_waitcnt lgkmcnt(0)")
        a("s_mov_b32 s%d, s98" % (68 + self.on if self.on else 93))
        self.on += 1
        if last:
            a("s_cmp_lg_u32 s2, %s" % OST)
            a("s_cbranch_scc1 ost_skip")
            a("s_load_dwordx2 s[96:97], s[0:1], 96")
            a("s_mov_b32 s98, 256")
            a("s_mov_b32 s99, 0x20000")
            a("v_cmp_eq_u32 vcc, 0, v0")
            a("s_and_saveexec_b64 s[94:95], vcc")
            a("s_cbranch_execz ost_skip")
            a("s_waitcnt lgkmcnt(0)")
            for i in range(1, self.on):
                a("s_sub_u32 s94, s%d, s93" % (68 + i))
                a("v_mov_b32 v1, s94")
                a("v_mov_b32 v2, %d" % (28 + 4 * i))
                a("buffer_store_dword v1, v2, s[96:99], 0 offen")
            a.label("ost_skip")
            a("s_mov_b64 exec, -1")

    def gb_signal(self, k, split=False):
        a = self
        a("s_load_dwordx2 s[80:81], s[0:1], 96")
        a("s_load_dwordx2 s[84:85], s[0:1], 104")
        a("s_mov_b32 s82, 256")
        a("s_mov_b32 s83, 0x20000")
        a("s_mov_b32 s86, 0x10000000")
        a("s_mov_b32 s87, 0x20000")
        a("s_mov_b64 exec, 1")
        a("v_mov_b32 v12, 1")
        a("v_mov_b32 v13, %d" % (4 * k))
        a("v_mov_b32 v14, 1")
        a("v_mov_b32 v15, 0")
        a("s_and_b32 s88, s2, 15")
        a("s_lshl_b32 s88, s88, 12")
        a("s_add_u32 s88, s88, 0x%x" % (CTR + (k - 1) * 65536))
        a("s_waitcnt lgkmcnt(0)")
        a("buffer_atomic_add v14, v15, s[84:87], s88 offen sc0 sc1")
        if split:
            a("s_mov_b64 exec, -1")
            return
        a("s_waitcnt vmcnt(0)")
        self.gb_signal2(k)

    def gb_signal2(self, k):
        a = self
        a("v_readfirstlane_b32 s89, v14")
        a("s_cmp_lg_u32 s89, 15")
        a("s_cbranch_scc1 gs_nr%d" % k)
        a("s_mov_b64 exec, 1")
        a("buffer_atomic_add v12, v13, s[80:83], 0 offen sc1")
        a.label("gs_nr%d" % k)
        a("s_mov_b64 exec, -1")

    def gb_poll(self, k):
        a = self
        a("s_mov_b64 exec, 1")
        a("v_mov_b32 v13, %d" % (4 * k))
        a("s_mov_b32 s88, 0")
        a.label("gp_loop%d" % k)
        a("buffer_load_dword v14, v13, s[80:83], 0 offen sc1")
        a("s_waitcnt vmcnt(0)")
        a("v_readfirstlane_b32 s89, v14")
        a("s_cmp_ge_u32 s89, 16")
        a("s_cbranch_scc1 gp_done%d" % k)
        a("s_add_u32 s88, s88, 1")
        a("s_cmp_gt_u32 s88, 40000")
        a("s_cbranch_scc1 gp_done%d" % k)
        a("s_sleep 8")
        a("s_branch gp_loop%d" % k)
        a.label("gp_done%d" % k)
        a("s_mov_b64 exec, -1")

    def eb_pre(self):
        a = self
        if STAMP:
            a("s_memrealtime s[70:71]")
        a("s_load_dwordx2 s[84:85], s[0:1], 96")
        a("s_mov_b32 s86, 256")
        a("s_mov_b32 s87, 0x20000")
        a("v_mov_b32 v248, 0")
        a("v_mov_b32 v249, 1")
        a("v_mov_b32 v250, 8")
        a("s_cmp_ge_u32 s2, 96")
        a("s_cbranch_scc1 eb_noinit")
        a("s_lshl_b32 s88, s2, 12")
        a("s_add_u32 s88, s88, 0x%x" % CTR)
        a("buffer_store_dword v248, v248, s[8:11], s88 offen sc0 sc1")
        a.label("eb_noinit")
        a("s_waitcnt lgkmcnt(0)")
        a("s_cmp_lg_u32 s6, 0")
        a("s_cbranch_scc1 eb_kok")
        a("s_mov_b64 exec, 1")
        a("s_mov_b32 s88, 0")
        a.label("eb_kloop")
        a("buffer_load_dword v251, v250, s[84:87], 0 offen sc1")
        a("s_waitcnt vmcnt(0)")
        a("v_readfirstlane_b32 s89, v251")
        a("s_cmp_ge_u32 s89, 256")
        a("s_cbranch_scc1 eb_kok")
        a("s_add_u32 s88, s88, 1")
        a("s_cmp_gt_u32 s88, 40000")
        a("s_cbranch_scc1 eb_kok")
        a("s_sleep 8")
        a("s_branch eb_kloop")
        a.label("eb_kok")
        a("s_mov_b64 exec, -1")
        a("s_waitcnt vmcnt(0)")
        a("s_barrier")
        if STAMP:
            a("s_memrealtime s[72:73]")
        a("s_cmp_lg_u32 s6, 0")
        a("s_cbranch_scc1 eb_arr")
        a("s_mov_b64 exec, 1")
        a("s_and_b32 s88, s2, 15")
        a("s_lshl_b32 s88, s88, 2")
        a("s_add_u32 s88, s88, 128")
        a("v_mov_b32 v251, 1")
        a("buffer_atomic_add v251, v248, s[84:87], s88 offen sc0 sc1")
        a("s_waitcnt vmcnt(0)")
        a("v_readfirstlane_b32 s89, v251")
        a("s_cmp_lg_u32 s89, 15")
        a("s_cbranch_scc1 eb_arr")
        a("buffer_atomic_add v249, v248, s[84:87], 0 offen sc1")
        a.label("eb_arr")
        a("s_mov_b64 exec, -1")

    def eb_post(self):
        a = self
        a("s_cmp_lg_u32 s6, %s" % os.environ.get("PW", "1"))
        a("s_cbranch_scc1 eb_done")
        a("s_mov_b64 exec, 1")
        a("s_mov_b32 s88, 0")
        a.label("eb_loop")
        a("buffer_load_dword v251, v248, s[84:87], 0 offen sc1")
        a("s_waitcnt vmcnt(0)")
        a("v_readfirstlane_b32 s89, v251")
        a("s_cmp_ge_u32 s89, 16")
        a("s_cbranch_scc1 eb_fin")
        a("s_add_u32 s88, s88, 1")
        a("s_cmp_gt_u32 s88, 40000")
        a("s_cbranch_scc1 eb_fin")
        a("s_sleep %s" % os.environ.get("SLEEP", "8"))
        a("s_branch eb_loop")
        a.label("eb_fin")
        if STAMP:
            a("s_memrealtime s[74:75]")
            a("s_mov_b32 s86, 65536")
            a("s_lshl_b32 s88, s2, 4")
            a("s_add_u32 s88, s88, 4096")
            a("s_waitcnt lgkmcnt(0)")
            a("v_mov_b32 v252, s70")
            a("v_mov_b32 v253, s72")
            a("v_mov_b32 v254, s74")
            a("v_mov_b32 v255, s92")
            a("buffer_store_dwordx4 v[252:255], v248, s[84:87], s88 offen")
        a.label("eb_done")
        a("s_mov_b64 exec, -1")
        a("s_waitcnt vmcnt(0)")
        a("s_barrier")
        a.ostamp()
        self.phase = 1

    def gridbar(self, k):
        a = self
        if STAMP:
            a("s_memrealtime s[14:15]")
        if k == 0:
            a("s_cmp_ge_u32 s2, 96")
            a("s_cbranch_scc1 gb_noinit")
            a("s_load_dwordx2 s[8:9], s[0:1], 104")
            a("s_mov_b32 s10, 0x10000000")
            a("s_mov_b32 s11, 0x20000")
            a("s_lshl_b32 s12, s2, 12")
            a("s_add_u32 s12, s12, 0x%x" % CTR)
            a("v_mov_b32 v1, 0")
            a("v_mov_b32 v2, 0")
            a("s_waitcnt lgkmcnt(0)")
            a("buffer_store_dword v1, v2, s[8:11], s12 offen sc0 sc1")
            a.label("gb_noinit")
        a("s_waitcnt vmcnt(0) lgkmcnt(0)")
        a("s_barrier")
        if STAMP:
            a("s_memrealtime s[16:17]")
        a("v_lshrrev_b32 v1, 6, v0")
        a("s_nop 0")
        a("v_readfirstlane_b32 s6, v1")
        if "ct2" in os.environ.get("EXP", "") and k == 0:
            a("s_cmp_eq_u32 s6, 0")
            a("s_cbranch_scc1 ct2_skip")
            a("s_cmp_gt_u32 s6, 3")
            a("s_cbranch_scc1 gb_wait%d" % k)
            a.code_touch("attn_kernel-8192", "code_end", "b", True, 1)
            a("s_branch gb_wait%d" % k)
            a.label("ct2_skip")
        a("s_cmp_lg_u32 s6, 0")
        a("s_cbranch_scc1 gb_wait%d" % k)
        a("s_load_dwordx2 s[8:9], s[0:1], 96")
        a("s_load_dwordx2 s[24:25], s[0:1], 104")
        a("s_mov_b32 s10, 256")
        a("s_mov_b32 s11, 0x20000")
        a("s_mov_b32 s26, 0x10000000")
        a("s_mov_b32 s27, 0x20000")
        a("s_mov_b64 exec, 1")
        a("v_mov_b32 v1, 1")
        a("v_mov_b32 v2, %d" % (4 * k))
        a("s_waitcnt lgkmcnt(0)")
        tgt = 256
        DF = "df" in os.environ.get("EXP", "") and k == 0
        if DF:
            tgt = 16
            a("s_lshl_b32 s12, s4, 4")
            a("s_add_u32 s12, s12, 8")
            a("v_mov_b32 v3, 1")
            a("v_mov_b32 v4, 0")
            a("buffer_atomic_add v3, v4, s[8:11], s12 offen sc0 sc1")
            a("s_and_b32 s12, s2, 3")
            a("s_lshl_b32 s12, s12, 2")
            a("s_bfe_u32 s13, s2, 0x20003")
            a("s_add_u32 s12, s12, s13")
            a("s_lshl_b32 s12, s12, 4")
            a("s_add_u32 s12, s12, 8")
            a("v_mov_b32 v5, s12")
            a("s_waitcnt vmcnt(0)")
            a("v_readfirstlane_b32 s13, v3")
            a("s_cmp_lg_u32 s13, 15")
            a("s_cbranch_scc1 gb_nr%d" % k)
        elif True:
            tgt = 16
            a("s_and_b32 s12, s2, 15")
            a("v_mov_b32 v3, 1")
            a("v_mov_b32 v4, 0")
            if k > 0:
                a("s_lshl_b32 s12, s12, 12")
                a("s_add_u32 s12, s12, 0x%x" % (CTR + (k - 1) * 65536))
                a("buffer_atomic_add v3, v4, s[24:27], s12 offen sc0 sc1")
            else:
                a("s_lshl_b32 s12, s12, 2")
                a("s_add_u32 s12, s12, 128")
                a("buffer_atomic_add v3, v4, s[8:11], s12 offen sc0 sc1")
            a("s_waitcnt vmcnt(0)")
            a("v_readfirstlane_b32 s13, v3")
            a("s_cmp_lg_u32 s13, 15")
            a("s_cbranch_scc1 gb_nr%d" % k)
        a("buffer_atomic_add v1, v2, s[8:11], 0 offen sc1")
        if True:
            a.label("gb_nr%d" % k)
        a("s_mov_b32 s12, 0")
        if DF:
            a("v_mov_b32 v2, v5")
        a.label("gb_loop%d" % k)
        a("buffer_load_dword v3, v2, s[8:11], 0 offen %s" % os.environ.get("PSC", "sc1"))
        a("s_waitcnt vmcnt(0)")
        a("v_readfirstlane_b32 s13, v3")
        a("s_cmp_ge_u32 s13, %d" % tgt)
        a("s_cbranch_scc1 gb_done%d" % k)
        a("s_add_u32 s12, s12, 1")
        a("s_cmp_gt_u32 s12, 40000")
        a("s_cbranch_scc1 gb_done%d" % k)
        a("s_sleep %s" % os.environ.get("SLEEP", "8"))
        a("s_branch gb_loop%d" % k)
        a.label("gb_done%d" % k)
        if STAMP:
            a("s_memrealtime s[18:19]")
            a("s_mov_b32 s10, 65536")
            a("s_lshl_b32 s20, s2, 4")
            a("s_add_u32 s20, s20, %d" % (4096 + 4096 * k))
            a("s_waitcnt lgkmcnt(0)")
            a("s_mov_b64 exec, 1")
            a("v_mov_b32 v4, s14")
            a("v_mov_b32 v5, s16")
            a("v_mov_b32 v6, s18")
            a("v_mov_b32 v7, s92")
            a("v_mov_b32 v2, 0")
            a("buffer_store_dwordx4 v[4:7], v2, s[8:11], s20 offen")
        a("s_mov_b64 exec, -1")
        a("s_waitcnt lgkmcnt(0)")
        a.label("gb_wait%d" % k)
        a("s_barrier")
        if "inv" in os.environ.get("EXP", ""):
            a("buffer_inv sc1")
        self.phase = k + 1

    inloop = False

    def __call__(self, s):
        EXP = os.environ.get("EXP", "")
        if self.inloop:
            if "nomfma" in EXP and s.startswith("v_mfma"):
                return
            if "novalu" in EXP and s.startswith("v_") and not s.startswith("v_mfma") and not s.startswith("v_cmp") and "0x1ffff" not in s and "0x8000" not in s and not s.startswith("v_mov") and not s.startswith("v_add_u32"):
                return
            if "nolds" in EXP and s.startswith("ds_read"):
                return
            if "nodma" in EXP and s.startswith("buffer_load"):
                return
            if "nobar" in EXP and s.startswith("s_barrier"):
                return
        if "nosc1" in EXP and s.startswith("buffer_store") and s.endswith(" sc1"):
            s = s[:-4]
        self.lines.append("  " + s)

    def label(self, s):
        self.lines.append(s + ":")

    def raw(self, s):
        self.lines.append(s)

    def nop(self, n):
        while n > 0:
            k = min(n, 16)
            self("s_nop %d" % (k - 1))
            n -= k


def vr(a, n):
    return "v[%d:%d]" % (a, a + n - 1)


def sr(a, n):
    return "s[%d:%d]" % (a, a + n - 1)


def gen_proj(a):
    V_LANE = 1
    V_TR = 2
    V_OFFC = 10
    V_OFFN = 11
    V_ST = 12
    V_T0 = 13
    V_B = 16
    V_ACC = 48
    V_A = 112
    V_ROWI = 13
    V_SWZ = 14
    V_T = 15
    V_AOFF = 240

    a.label("mega_kernel")
    a("s_cmp_lt_u32 s2, 256")
    a("s_cbranch_scc1 proj_start")
    a("s_endpgm")
    a.label("proj_start")
    a.ostamp()
    if STAMP:
        a("s_memrealtime s[92:93]")
    a.stamp()
    a("s_load_dwordx2 s[8:9], s[0:1], 96")
    a("s_load_dwordx2 s[82:83], s[0:1], 96")
    a("s_load_dwordx16 s[24:39], s[0:1], 0")
    a("s_load_dwordx4 s[40:43], s[0:1], 64")
    a("s_load_dwordx2 s[44:45], s[0:1], 104")
    EXPF = os.environ.get("EXP", "")
    if "ct1" in EXPF:
        a("s_bfe_u32 s3, s2, 0x20003")
        a("s_cmp_lg_u32 s3, 0")
        a("s_cbranch_scc1 ct1_skip")
        a.code_touch("mega_kernel", "code_end", "a", True, 2)
        a.label("ct1_skip")
    if "tick" in EXPF:
        a("v_lshrrev_b32 v1, 6, v0")
        a("v_lshlrev_b32 v4, 14, v1")
        a("v_add_u32 v4, 0x8000, v4")
        a("v_readfirstlane_b32 s6, v1")
        a("s_getreg_b32 s4, hwreg(HW_REG_XCC_ID)")
        a("s_and_b32 s4, s4, 7")
        if "tkforce" in EXPF:
            a("s_min_u32 s4, s4, 4")
        a("s_mov_b32 s10, 256")
        a("s_mov_b32 s11, 0x20000")
        a("s_lshl_b32 s5, s4, 2")
        a("s_add_u32 s5, s5, 192")
        a("v_mov_b32 v2, s5")
        a("v_mov_b32 v3, 1")
        a("s_cmp_eq_u32 s6, 0")
        a("s_cbranch_scc1 tk_w0")
        a("s_cmp_lg_u32 s6, 7")
        a("s_cbranch_scc1 tk_wait")
        a("s_mov_b64 exec, 1")
        a("s_waitcnt lgkmcnt(0)")
        a("v_subrev_u32 v2, 160, v2")
        a("buffer_atomic_add v3, v2, s[8:11], 0 offen sc1")
        a("s_mov_b64 exec, -1")
        a("s_branch tk_wait")
        a.label("tk_w0")
        a("s_mov_b64 exec, 1")
        a("s_waitcnt lgkmcnt(0)")
        a("buffer_atomic_add v3, v2, s[8:11], 0 offen sc0%s" % (" sc1" if "tkforce" in EXPF or "tkglob" in EXPF else ""))
        a("s_waitcnt vmcnt(0)")
        a("v_readfirstlane_b32 s5, v3")
        a("s_cmp_lt_u32 s5, 32")
        a("s_cbranch_scc1 tk_got")
        a("s_mov_b32 s7, 0")
        a("v_mov_b32 v2, 32")
        a.label("tk_poll")
        a("buffer_load_dwordx4 v[8:11], v2, s[8:11], 0 offen sc1")
        a("buffer_load_dwordx4 v[12:15], v2, s[8:11], 0 offen offset:16 sc1")
        a("s_waitcnt vmcnt(0)")
        a("s_mov_b32 s12, 0")
        for i in range(8):
            a("v_readfirstlane_b32 s%d, v%d" % (48 + i, 8 + i))
            a("s_add_u32 s12, s12, s%d" % (48 + i))
        a("s_cmp_ge_u32 s12, 256")
        a("s_cbranch_scc1 tk_full")
        a("s_add_u32 s7, s7, 1")
        a("s_sleep 8")
        a("s_cmp_lt_u32 s7, 40000")
        a("s_cbranch_scc1 tk_poll")
        a.label("tk_fail")
        a("s_lshr_b32 s5, s2, 3")
        a("s_and_b32 s4, s2, 7")
        a("s_branch tk_got")
        a.label("tk_full")
        a("s_sub_u32 s5, s5, 32")
        for i in range(7):
            a("s_max_u32 s12, s%d, 32" % (48 + i))
            a("s_sub_u32 s12, s12, 32")
            a("s_cmp_gt_u32 s4, %d" % i)
            a("s_cselect_b32 s12, s12, 0")
            a("s_add_u32 s5, s5, s12")
        for i in range(8):
            a("s_min_u32 s12, s%d, 32" % (48 + i))
            a("s_sub_u32 s13, 32, s12")
            a("s_mov_b32 s4, %d" % i)
            a("s_cmp_lt_u32 s5, s13")
            a("s_cbranch_scc1 tk_slot")
            a("s_sub_u32 s5, s5, s13")
        a("s_branch tk_fail")
        a.label("tk_slot")
        a("s_add_u32 s5, s5, s12")
        a.label("tk_got")
        a("s_lshl_b32 s5, s5, 3")
        a("s_add_u32 s5, s5, s4")
        a("s_mov_b64 exec, 0xff")
        a("v_lshlrev_b32 v2, 14, v0")
        a("v_add_u32 v2, 0x8000, v2")
        a("v_mov_b32 v3, s5")
        a("ds_write_b32 v2, v3")
        a("s_mov_b64 exec, -1")
        a("s_waitcnt lgkmcnt(0)")
        a.label("tk_wait")
        a("s_barrier")
        a("ds_read_b32 v3, v4")
        a("s_waitcnt lgkmcnt(0)")
        a("v_readfirstlane_b32 s2, v3")
        a("s_and_b32 s2, s2, 255")
        if STAMP:
            a("s_memrealtime s[96:97]")
            a("s_waitcnt lgkmcnt(0)")
            a("s_mov_b32 s93, s96")
    PM = os.environ.get("PM", "5")
    if PM == "0":
        a("s_lshr_b32 s3, s2, 5")
        a("s_and_b32 s4, s2, 31")
    elif PM == "1":
        a("s_and_b32 s3, s2, 7")
        a("s_lshr_b32 s4, s2, 3")
    elif PM == "2":
        a("s_and_b32 s3, s2, 3")
        a("s_bfe_u32 s4, s2, 0x10003")
        a("s_lshl_b32 s4, s4, 2")
        a("s_or_b32 s3, s3, s4")
        a("s_bfe_u32 s4, s2, 0x10002")
        a("s_lshr_b32 s5, s2, 4")
        a("s_lshl_b32 s5, s5, 1")
        a("s_or_b32 s4, s4, s5")
    elif PM == "3":
        a("s_and_b32 s3, s2, 1")
        a("s_bfe_u32 s4, s2, 0x20003")
        a("s_lshl_b32 s4, s4, 1")
        a("s_or_b32 s3, s3, s4")
        a("s_bfe_u32 s4, s2, 0x20001")
        a("s_lshr_b32 s5, s2, 5")
        a("s_lshl_b32 s5, s5, 2")
        a("s_or_b32 s4, s4, s5")
    elif PM == "4":
        a("s_lshr_b32 s3, s2, 5")
        a("s_bfe_u32 s4, s2, 0x40001")
        a("s_and_b32 s5, s2, 1")
        a("s_lshl_b32 s5, s5, 4")
        a("s_or_b32 s4, s4, s5")
    elif PM == "5":
        a("s_bfe_u32 s3, s2, 0x10001")
        a("s_bfe_u32 s4, s2, 0x20003")
        a("s_lshl_b32 s4, s4, 1")
        a("s_or_b32 s3, s3, s4")
        a("s_bfe_u32 s4, s2, 0x10002")
        a("s_lshr_b32 s5, s2, 5")
        a("s_lshl_b32 s5, s5, 1")
        a("s_or_b32 s4, s4, s5")
        a("s_and_b32 s5, s2, 1")
        a("s_lshl_b32 s5, s5, 4")
        a("s_or_b32 s4, s4, s5")
    elif PM == "6":
        a("s_bfe_u32 s3, s2, 0x30001")
        a("s_lshr_b32 s4, s2, 4")
        a("s_and_b32 s5, s2, 1")
        a("s_lshl_b32 s5, s5, 4")
        a("s_or_b32 s4, s4, s5")
    a("v_lshrrev_b32 v1, 6, v0")
    a("s_nop 0")
    a("v_readfirstlane_b32 s6, v1")
    a("v_and_b32 v1, 63, v0")
    a("s_waitcnt lgkmcnt(0)")
    a.stamp()
    a("s_cmp_lt_u32 s4, 16")
    a("s_cselect_b32 s8, s24, s26")
    a("s_cselect_b32 s9, s25, s27")
    a("s_cselect_b32 s5, 0, 1")
    a("s_and_b32 s4, s4, 15")
    a("s_mov_b32 s10, 0x200000")
    a("s_mov_b32 s11, 0x20000")
    a("s_mov_b32 s16, s44")
    a("s_mov_b32 s17, s45")
    a("s_mov_b32 s18, 0x10000000")
    a("s_mov_b32 s19, 0x20000")
    a("s_mov_b32 s20, s40")
    a("s_mov_b32 s21, s41")
    a("s_mov_b32 s22, 3584")
    a("s_mov_b32 s23, 0x20000")
    a("s_mov_b32 s15, 0x20000")
    a("s_mov_b32 s51, 0x20000")
    a("s_lshl_b32 s58, s6, 12")
    a("s_lshl_b32 s59, s3, 3")
    a("s_add_u32 s59, s59, s6")
    a("v_and_b32 v13, 15, v1")
    a("v_lshlrev_b32 v13, 10, v13")
    a("v_lshrrev_b32 v14, 4, v1")
    a("v_lshlrev_b32 v14, 4, v14")
    a("v_add_u32 v13, v13, v14")
    a("s_movk_i32 s65, 0x4000")
    a("s_lshl_b32 s60, s59, 15")
    a("v_add_u32 v13, s60, v13")
    a("v_mov_b32 v%d, v13" % V_AOFF)

    def aloads(lo, hi):
        for s in range(lo, hi):
            a("buffer_load_dwordx4 %s, v%d, s[8:11], %s offen offset:%d" % (
                vr(V_A + 4 * s, 4), V_AOFF, "s65" if s & 1 else "0", (s >> 1) * 64))

    def aswaps(lo, hi):
        for s in range(lo, hi, 2):
            for j in range(4):
                a("v_permlane16_swap_b32 v%d, v%d" % (V_A + 4 * s + j, V_A + 4 * s + 4 + j))
        a("s_nop 1")
    a("v_bfe_u32 v13, v1, 2, 2")
    a("v_lshrrev_b32 v14, 5, v1")
    a("v_lshl_add_u32 v14, v14, 4, v13")
    a("v_lshlrev_b32 v14, 8, v14")
    a("v_bfe_u32 v15, v1, 4, 1")
    a("v_lshl_add_u32 v14, v15, 5, v14")
    a("v_and_b32 v15, 3, v1")
    a("v_lshl_add_u32 v14, v15, 3, v14")
    a("v_lshlrev_b32 v13, 6, v13")
    for nt in range(4):
        a("v_xor_b32 v15, %d, v13" % (nt << 6))
        a("v_add_u32 v%d, v14, v15" % (V_TR + nt))
        a("v_add_u32 v%d, 0x10000, v%d" % (V_TR + 4 + nt, V_TR + nt))
    a("v_lshlrev_b32 v%d, 4, v1" % V_ST)
    a("v_lshrrev_b32 v13, 4, v1")
    a("v_bfe_u32 v14, v1, 2, 2")
    a("v_xor_b32 v14, v14, v13")
    a("v_lshlrev_b32 v14, 6, v14")
    a("v_and_b32 v15, 3, v1")
    a("v_lshl_add_u32 v14, v15, 4, v14")
    a("s_lshl_b32 s60, s6, 4")
    a("v_add_u32 v13, s60, v13")

    def set_params(which, wlo, whi, nrec, ldw, colexpr_reg):
        base = 12 if which == "cur" else 48
        sl, sc = (52, 53) if which == "cur" else (54, 55)
        voff = V_OFFC if which == "cur" else V_OFFN
        a("s_mov_b32 s%d, s%d" % (base, wlo))
        a("s_mov_b32 s%d, s%d" % (base + 1, whi))
        if isinstance(nrec, str):
            a("s_mov_b32 s%d, %s" % (base + 2, nrec))
        else:
            a("s_mov_b32 s%d, 0x%x" % (base + 2, nrec))
        a("s_mov_b32 s%d, %d" % (sl, ldw))
        a("s_mov_b32 s%d, %s" % (sc, colexpr_reg))
        a("v_mul_lo_u32 v%d, v%d, s%d" % (voff, V_ROWI, sl))
        a("v_add_u32 v%d, v%d, v%d" % (voff, voff, V_SWZ))

    def dma(kc, which):
        base = 12 if which == "cur" else 48
        sl, sc = (52, 53) if which == "cur" else (54, 55)
        voff = V_OFFC if which == "cur" else V_OFFN
        for i in range(4):
            a("s_add_u32 m0, s58, %d" % (kc * 32768 + i * 1024))
            a("s_mul_i32 s57, s%d, %d" % (sl, kc * 128 + 4 * i))
            a("s_add_u32 s57, s57, s%d" % sc)
            a("buffer_load_dwordx4 v%d, %s, s57 offen lds" % (voff, sr(base, 4)))

    def reads(kc, s, setidx):
        hi = 4 if kc >= 2 else 0
        off = (kc & 1) * 32768 + (s >> 1) * 8192 + (s & 1) * 2048
        for nt in range(4):
            for ird in range(2):
                a("ds_read_b64_tr_b16 %s, v%d offset:%d" % (
                    vr(V_B + setidx * 16 + nt * 4 + ird * 2, 2), V_TR + hi + nt, off + ird * 1024))

    def epi_part(kind, nt):
        if kind == "Q":
            for i in range(16):
                a("v_mul_f32 v%d, v%d, v%d" % (V_ACC + 16 * nt + i, V_LNR + 1, V_ACC + 16 * nt + i))
        for t in range(2):
            d = V_ACC + 16 * nt + 8 * t
            for p in range(4):
                x0 = V_ACC + 16 * nt + 8 * t + 2 * p
                a("v_cvt_pk_bf16_f32 v%d, v%d, v%d" % (d + p, x0, x0 + 1))
            a("buffer_store_dwordx4 %s, v%d, s[16:19], s%d offen offset:%d sc1" % (
                vr(d, 4), V_ST, 90 if nt < 2 else 91, ((nt * 2 + t) & 3) * 1024))
        a("s_nop 1")

    def compute(kc, kind, extra=None, prev=None, hooks=None):
        extra = list(extra or [])
        per = -(-len(extra) // 32)
        for s in range(8):
            if hooks and s in hooks:
                hooks[s]()
            if s < 7:
                reads(kc, s + 1, (s + 1) & 1)
            else:
                reads((kc + 1) & 3, 0, 0)
            a("s_waitcnt lgkmcnt(8)")
            ks = kc * 8 + s
            for nt in range(4):
                acc = vr(V_ACC + 16 * nt, 16)
                wf = vr(V_B + (s & 1) * 16 + nt * 4, 4)
                af = vr(V_A + 4 * ks, 4)
                c = "0" if ks == 0 else acc
                if prev and ks == 0:
                    epi_part(prev, nt)
                if kind == "V":
                    a("v_mfma_f32_32x32x16_bf16 %s, %s, %s, %s" % (acc, af, wf, c))
                else:
                    a("v_mfma_f32_32x32x16_bf16 %s, %s, %s, %s" % (acc, wf, af, c))
                for x in extra[:per]:
                    a(x)
                extra = extra[per:]
        assert not extra

    def aload_ops(lo, hi):
        ops = []
        for s in range(lo, hi):
            ops.append("buffer_load_dwordx4 %s, v%d, s[8:11], %s offen offset:%d" % (
                vr(V_A + 4 * s, 4), V_AOFF, "s65" if s & 1 else "0", (s >> 1) * 64))
            ops += ["s_nop 0"] * 3
        return ops

    V_LNM = 244
    V_LNR = 246
    V_LNT = 248

    def norm_ops(q):
        ops = []
        for i in range(32 * q, 32 * q + 32):
            r = V_A + i
            t = 248 + 2 * (i % 3)
            ops.append("v_lshlrev_b32 v%d, 16, v%d" % (t, r))
            ops.append("v_and_b32 v%d, 0xffff0000, v%d" % (t + 1, r))
            ops.append("v_pk_add_f32 %s, %s, %s neg_lo:[0,1] neg_hi:[0,1]" % (vr(t, 2), vr(t, 2), vr(V_LNM, 2)))
            ops.append("v_cvt_pk_bf16_f32 v%d, v%d, v%d" % (r, t, t + 1))
        return ops

    def epilogue(kind):
        if kind == "H":
            a("s_waitcnt lgkmcnt(0)")
            a("v_lshrrev_b32 v15, 5, v1")
            a("v_lshlrev_b32 v15, 3, v15")
            for nt in range(4):
                for q in range(4):
                    a("buffer_load_dwordx2 %s, v15, s[20:23], s53 offen offset:%d" % (
                        vr(V_B + (nt * 4 + q) * 2, 2), 64 * nt + 16 * q))
            a.nop(12)
            for i in range(64):
                a("v_mul_f32 v%d, v%d, v%d" % (V_ACC + i, V_LNR, V_ACC + i))
            a("s_waitcnt vmcnt(0)")
            for nt in range(4):
                for q in range(4):
                    r0 = V_ACC + 16 * nt + 4 * q
                    b0 = V_B + (nt * 4 + q) * 2
                    for p in range(2):
                        x0, x1 = r0 + 2 * p, r0 + 2 * p + 1
                        bb = b0 + p
                        a("v_cvt_pk_bf16_f32 v15, v%d, v%d" % (x0, x1))
                        a("v_lshlrev_b32 v%d, 16, v15" % x0)
                        a("v_and_b32 v%d, 0xffff0000, v15" % x1)
                        a("v_lshlrev_b32 v15, 16, v%d" % bb)
                        a("v_add_f32 v%d, v%d, v15" % (x0, x0))
                        a("v_and_b32 v15, 0xffff0000, v%d" % bb)
                        a("v_add_f32 v%d, v%d, v15" % (x1, x1))
                        a("v_cvt_pk_bf16_f32 v15, v%d, v%d" % (x0, x1))
                        a("v_lshlrev_b32 v%d, 16, v15" % x0)
                        a("v_and_b32 v%d, 0xffff0000, v15" % x1)
                        a("v_max_f32 v%d, 0, v%d" % (x0, x0))
                        a("v_max_f32 v%d, 0, v%d" % (x1, x1))
                        a("v_mul_f32 v%d, v%d, v%d" % (x0, x0, x0))
                        a("v_mul_f32 v%d, v%d, v%d" % (x1, x1, x1))
        else:
            a.nop(12)
        if kind == "Q":
            for i in range(64):
                a("v_mul_f32 v%d, v%d, v%d" % (V_ACC + i, V_LNR + 1, V_ACC + i))
        a("s_add_u32 s67, s56, 4096")
        for nt in range(4):
            for t in range(2):
                d = V_ACC + 16 * nt + 8 * t
                for p in range(4):
                    x0 = V_ACC + 16 * nt + 8 * t + 2 * p
                    a("v_cvt_pk_bf16_f32 v%d, v%d, v%d" % (d + p, x0, x0 + 1))
                a("buffer_store_dwordx4 %s, v%d, s[16:19], s%d offen offset:%d sc1" % (
                    vr(d, 4), V_ST, 56 if nt < 2 else 67, ((nt * 2 + t) & 3) * 1024))
        a.nop(2)

    def W(n):
        a("s_waitcnt vmcnt(%d)" % n)

    sigc = [0]

    def sig_kq():
        if not EARLY:
            return
        sigc[0] += 1
        a("s_cmp_lg_u32 s6, 0")
        a("s_cbranch_scc1 sigkq%d" % sigc[0])
        a("s_mov_b32 s84, s82")
        a("s_mov_b32 s85, s83")
        a("s_mov_b32 s86, 256")
        a("s_mov_b32 s87, 0x20000")
        a("s_mov_b64 exec, 1")
        a("v_mov_b32 v252, 1")
        a("v_mov_b32 v253, 8")
        a("buffer_atomic_add v252, v253, s[84:87], 0 offen sc1")
        a("s_mov_b64 exec, -1")
        a.label("sigkq%d" % sigc[0])

    def ckv_first(kc):
        B = lambda: a("s_barrier")
        if kc == 0:
            return (lambda: None), {
                1: lambda: (W(12 + NP0), a_read(2, 4)),
                2: lambda: a_dma(5, 4),
                4: lambda: (W(8), a_read(3, 2)),
                6: lambda: (B(), dma(2, "cur"))}
        if kc == 1:
            return (lambda: (B(), a_dma(6, 0))), {
                1: lambda: (W(12), a_read(4, 3)),
                3: lambda: (W(8), a_read(5, 4)),
                6: lambda: (W(4), B(), a_dma(7, 4), dma(3, "cur"))}
        if kc == 2:
            return (lambda: (B(), dma(1, "next"))), {
                1: lambda: (W(12), a_read(6, 0)),
                3: lambda: (W(8), a_read(7, 4)),
                6: lambda: (W(4), B(), dma(0, "next"))}
        return (lambda: (B(), dma(2, "next"))), {
            7: lambda: (W(4), B())}

    PFS = os.environ.get("PFS", "")
    pfh = [0, 0]

    def pfsched(typ, ci):
        if not PFS:
            if ci == 1:
                return True
            if ci == 2:
                return 2 if NPF == 1 else 0
            return False
        last = 2 if typ == "x" else 3
        r = [None] * 4
        if ci == 1 and PFS[0] == "x":
            if typ == "x":
                r[0] = (3, 0, 1)
                r[1] = (4, 0, 1)
        elif ci == 1:
            n = int(PFS[0])
            for p in range(n):
                r[p * (4 // n) if PFS[2] == "s" else p] = (1, p, n)
        if ci == last:
            n = int(PFS[1])
            for p in range(n):
                r[p + int(PFS[3])] = (2, p, n)
        return r if any(r) else None

    def chunk(kind, set_next, set_out, prev=None, defer=False, first=None, pf=False, sig=False):
        waits = (4, 12, 12, 4) if prev else (8, 4, 4, 4)
        if pf:
            waits = (4, 12 + NPF, 12 + NPF, 4)
        if PFS:
            pfl = pf if pf else [None] * 4
            hist = pfh + [1 if x else 0 for x in pfl]
            waits = tuple(((4, 12, 12, 4) if prev else (8, 4, 4, 4))[k] + hist[k] + hist[k + 1] for k in range(4))
            pfh[:] = hist[-2:]
        if prev:
            a("s_mov_b32 s90, s56")
            a("s_add_u32 s91, s56, 4096")
        set_next()
        set_out()
        for kc in range(4):
            extra = hooks = None
            if first == "ckv":
                st, hooks = ckv_first(kc)
                st()
            else:
                a("s_waitcnt vmcnt(%d)" % waits[kc])
                a("s_barrier")
                if kc < 1:
                    if not first:
                        dma(kc + 3, "cur")
                    if pf and not PFS:
                        prefetch(pf)
                else:
                    dma(kc - 1, "next")
                if PFS and pfl[kc]:
                    prefetch(*pfl[kc])
                if sig and kc == 3:
                    sig_kq()
            if first == "xn" and kc < 3:
                extra = norm_ops(kc + 1)
            if kc == 0:
                a.stamp()
            compute(kc, kind, extra, prev, hooks)
        a.stamp()
        if not defer:
            epilogue(kind)
        a.stamp()
        for i in range(3):
            a("s_mov_b32 s%d, s%d" % (12 + i, 48 + i))
        a("s_mov_b32 s52, s54")
        a("s_mov_b32 s53, s55")
        a("v_mov_b32 v%d, v%d" % (V_OFFC, V_OFFN))

    a("s_lshl_b32 s61, s4, 8")
    a("s_mov_b32 s46, s61")
    if "rev" in EXPF:
        a("s_and_b32 s47, s3, 1")
        a("s_lshl_b32 s47, s47, 12")
        a("s_xor_b32 s61, s61, s47")
    a("s_xor_b32 s62, s61, 4096")
    a("s_lshl_b32 s63, s61, 11")
    a("s_lshl_b32 s64, s59, 13")
    a("s_add_u32 s63, s63, s64")
    a("s_xor_b32 s64, s63, 0x800000")
    V_AD, V_AR = 240, 241
    a("v_and_b32 v24, 7, v1")
    a("v_lshrrev_b32 v25, 3, v1")
    a("v_lshrrev_b32 v26, 1, v25")
    a("v_xor_b32 v26, v24, v26")
    a("v_lshlrev_b32 v26, 4, v26")
    a("v_lshl_add_u32 v26, v25, 10, v26")
    a("s_lshl_b32 s60, s59, 15")
    a("v_add_u32 v%d, s60, v26" % V_AD)
    a("s_lshl_b32 s66, s6, 12")
    a("v_and_b32 v24, 31, v1")
    a("v_lshrrev_b32 v25, 5, v1")
    a("v_bfe_u32 v26, v24, 1, 3")
    a("v_lshlrev_b32 v27, 1, v25")
    a("v_xor_b32 v26, v26, v27")
    a("v_lshlrev_b32 v26, 4, v26")
    a("v_lshl_add_u32 v26, v24, 7, v26")
    a("v_add_u32 v%d, s66, v26" % V_AR)
    a("v_add_u32 v%d, 0x10000, v%d" % (V_AR + 1, V_AR))
    a("v_add_u32 v%d, 0x20000, v%d" % (V_AR + 2, V_AR))

    def a_dma(e, reg):
        for j in range(4):
            a("v_xor_b32 v%d, %d, v%d" % (248 + j, 64 * (j & 1), V_AD))
            a("s_add_u32 m0, s66, %d" % (reg * 32768 + 1024 * j))
            a("s_movk_i32 s67, %d" % (8192 * j + 128 * e))
            a("buffer_load_dwordx4 v%d, s[8:11], s67 offen lds" % (248 + j))

    def a_read(e, reg):
        for s_ in range(4):
            c0 = (4 * (s_ >> 1) + (s_ & 1)) * 16
            a("v_xor_b32 v%d, %d, v%d" % (248 + s_, c0, V_AR + (reg >> 1)))
            a("ds_read_b128 %s, v%d offset:%d" % (vr(V_A + 4 * (4 * e + s_), 4), 248 + s_, (reg & 1) * 32768))

    def L0():
        a("s_waitcnt lgkmcnt(0)")

    def stats(q):
        for i in range(32 * q, 32 * q + 32):
            r = V_A + i
            t = 20 + 2 * (i & 3)
            a("v_lshlrev_b32 v%d, 16, v%d" % (t, r))
            a("v_and_b32 v%d, 0xffff0000, v%d" % (t + 1, r))
            a("v_pk_add_f32 v[16:17], v[16:17], %s" % vr(t, 2))
            a("v_pk_fma_f32 v[18:19], %s, %s, v[18:19]" % (vr(t, 2), vr(t, 2)))

    NPF = 4 if "pfall" in EXPF else (2 if "pfv2" in EXPF else (0 if "nopf" in EXPF else 1))

    def prefetch(stage=1, part=0, nparts=1):
        if not NPF:
            return
        if stage >= 3:
            a("s_lshr_b32 s88, s2, 1")
            a("s_lshl_b32 s88, s88, 3")
            a("s_add_u32 s88, s88, s6")
            if stage == 4:
                a("s_sub_u32 s88, 1023, s88")
            a("v_lshlrev_b32 v255, 6, v1")
            src = 32 if stage == 3 else 38
            a("s_mov_b32 s84, s%d" % src)
            a("s_mov_b32 s85, s%d" % (src + 1))
            a("s_mov_b32 s86, 0x%x" % (0x400000 if stage == 3 else 0x1c0000))
            a("s_mov_b32 s87, 0x20000")
            a("s_lshl_b32 s89, s88, 12")
            a("buffer_load_dword v254, v255, s[84:87], s89 offen")
            return
        if NPF == 1:
            big, small = (32, 38) if stage == 1 else (34, 42)
            a("s_lshl_b32 s88, s2, 3")
            a("s_add_u32 s88, s88, s6")
            a("v_lshlrev_b32 v255, 6, v1")
            a("s_cmp_lt_u32 s88, 1024")
            a("s_cselect_b32 s84, s%d, s%d" % (big, small))
            a("s_cselect_b32 s85, s%d, s%d" % (big + 1, small + 1))
            a("s_cselect_b32 s86, s7, 0x1c0000")
            a("s_mov_b32 s87, 0x20000")
            a("s_and_b32 s89, s88, 1023")
            a("s_lshl_b32 s89, s89, 12")
            if nparts > 1:
                w = 64 // nparts
                m = ((1 << w) - 1) << (w * part)
                a("s_mov_b32 exec_lo, 0x%x" % (m & 0xffffffff))
                a("s_mov_b32 exec_hi, 0x%x" % (m >> 32))
            a("buffer_load_dword v254, v255, s[84:87], s89 offen")
            if nparts > 1:
                a("s_mov_b64 exec, -1")
            return
        if NPF == 2:
            a("s_lshl_b32 s88, s2, 3")
            a("s_add_u32 s88, s88, s6")
            a("v_lshlrev_b32 v255, 7, v1")
            a("s_lshr_b32 s89, s88, 9")
            a("s_mov_b32 s84, s32")
            a("s_mov_b32 s85, s33")
            a("s_mov_b32 s86, 0x400000")
            for m, src in ((1, 34), (2, 38), (3, 42)):
                a("s_cmp_eq_u32 s89, %d" % m)
                a("s_cselect_b32 s84, s%d, s84" % src)
                a("s_cselect_b32 s85, s%d, s85" % (src + 1))
            a("s_cmp_ge_u32 s89, 2")
            a("s_cselect_b32 s86, 0x1c0000, s86")
            a("s_mov_b32 s87, 0x20000")
            a("s_and_b32 s89, s88, 511")
            a("s_lshl_b32 s89, s89, 13")
            a("buffer_load_dword v254, v255, s[84:87], s89 offen")
            a("buffer_load_dword v254, v255, s[84:87], s89 offen offset:64")
            return
        a("s_lshl_b32 s88, s2, 3")
        a("s_add_u32 s88, s88, s6")
        a("v_lshlrev_b32 v255, 7, v1")
        a("s_lshr_b32 s89, s88, 9")
        a("s_mov_b32 s84, s28")
        a("s_mov_b32 s85, s29")
        for m in range(1, 4):
            a("s_cmp_eq_u32 s89, %d" % m)
            a("s_cselect_b32 s84, s%d, s84" % (28 + 2 * m))
            a("s_cselect_b32 s85, s%d, s85" % (29 + 2 * m))
        a("s_mov_b32 s86, 0x400000")
        a("s_mov_b32 s87, 0x20000")
        a("s_and_b32 s89, s88, 511")
        a("s_lshl_b32 s89, s89, 13")
        a("buffer_load_dword v254, v255, s[84:87], s89 offen")
        a("buffer_load_dword v254, v255, s[84:87], s89 offen offset:64")
        a("s_cmp_lt_u32 s88, 224")
        a("s_cselect_b32 s84, s38, s42")
        a("s_cselect_b32 s85, s39, s43")
        a("s_cselect_b32 s89, 0, 224")
        a("s_sub_u32 s89, s88, s89")
        a("s_lshl_b32 s89, s89, 13")
        a("s_cmp_lt_u32 s88, 448")
        a("s_cselect_b32 s86, 0x1c0000, 0")
        a("buffer_load_dword v254, v255, s[84:87], s89 offen")
        a("buffer_load_dword v254, v255, s[84:87], s89 offen offset:64")

    NP0 = int(os.environ.get("NP0", "0"))

    def prefetch0():
        if not NP0:
            return
        a("s_lshl_b32 s88, s2, 3")
        a("s_add_u32 s88, s88, s6")
        a("v_lshlrev_b32 v255, 7, v1")
        a("s_lshr_b32 s89, s88, 9")
        a("s_mov_b32 s84, s28")
        a("s_mov_b32 s85, s29")
        for m in range(1, 4):
            src = 28 + 2 * m if m < 3 else 38
            a("s_cmp_eq_u32 s89, %d" % m)
            a("s_cselect_b32 s84, s%d, s84" % src)
            a("s_cselect_b32 s85, s%d, s85" % (src + 1))
        a("s_cselect_b32 s86, 0x1c0000, s7")
        a("s_mov_b32 s87, 0x20000")
        a("s_and_b32 s89, s88, 511")
        a("s_lshl_b32 s89, s89, 13")
        for i in range(NP0):
            a("buffer_load_dword v254, v255, s[84:87], s89 offen offset:%d" % (64 * i))

    a("s_mov_b32 s7, 0x400000")
    a("s_cmp_eq_u32 s5, 1")
    a("s_cbranch_scc1 proj_ckv")
    set_params("cur", 28, 29, 0x400000, 8192, "s61")
    a_dma(0, 2)
    a_dma(1, 3)
    a_dma(2, 4)
    dma(0, "cur")
    prefetch0()
    a("v_mov_b32 v16, 0")
    a("v_mov_b32 v17, 0")
    a("v_mov_b32 v18, 0")
    a("v_mov_b32 v19, 0")
    W(12 + NP0); a_read(0, 2); L0(); a_dma(3, 2)
    W(12 + NP0); a_read(1, 3); L0(); a_dma(4, 3)
    W(12 + NP0); a_read(2, 4); L0(); a_dma(5, 4)
    dma(1, "cur")
    stats(0)
    W(12); a_read(3, 2); L0(); a_dma(6, 2)
    W(12); a_read(4, 3); L0(); a_dma(7, 3)
    stats(1)
    W(12); a_read(5, 4); L0()
    stats(2)
    W(4); a_read(6, 2)
    W(0); a_read(7, 3); L0()
    a("s_barrier")
    dma(2, "cur")
    dma(3, "cur")
    stats(3)
    a.stamp()
    a("v_add_f32 v16, v16, v17")
    a("v_add_f32 v18, v18, v19")
    a("v_mov_b32 v17, v16")
    a("v_mov_b32 v19, v18")
    a.nop(2)
    a("v_permlane32_swap_b32 v16, v17")
    a("v_permlane32_swap_b32 v18, v19")
    a.nop(2)
    a("v_add_f32 v16, v16, v17")
    a("v_add_f32 v18, v18, v19")
    a("v_mul_f32 v16, 0x3b000000, v16")
    a("v_mul_f32 v18, 0x3b000000, v18")
    a("v_fma_f32 v18, -v16, v16, v18")
    a("v_max_f32 v18, 0, v18")
    a("v_cvt_pk_bf16_f32 v16, v16, v18")
    a("v_and_b32 v18, 0xffff0000, v16")
    a("v_lshlrev_b32 v16, 16, v16")
    a("v_add_f32 v18, 0x3727c5ac, v18")
    a("v_cvt_pk_bf16_f32 v18, v18, v18")
    a("v_lshlrev_b32 v18, 16, v18")
    a("v_sqrt_f32 v18, v18")
    a("s_nop 0")
    a("v_cvt_pk_bf16_f32 v18, v18, v18")
    a("v_lshlrev_b32 v18, 16, v18")
    a("v_rcp_f32 v18, v18")
    a("v_mov_b32 v%d, v16" % V_LNM)
    a("v_mov_b32 v%d, v16" % (V_LNM + 1))
    a("v_mov_b32 v%d, v18" % V_LNR)
    a("v_mul_f32 v%d, 0x%08x, v18" % (V_LNR + 1, QSC))
    reads(0, 0, 0)
    for x in norm_ops(0):
        a(x)
    a.stamp()

    def out_q0():
        a("s_add_u32 s56, s63, 0x%x" % QF)

    def out_q1():
        a("s_add_u32 s56, s64, 0x%x" % QF)

    def next_q1():
        set_params("next", 28, 29, 0x400000, 8192, "s62")

    def next_h():
        a("s_cmp_lt_u32 s4, 14")
        a("s_cselect_b32 s66, 0x1c0000, 0")
        set_params("next", 38, 39, "s66", 3584, "s46")

    def next_none():
        a("s_mov_b32 s66, 0")
        set_params("next", 38, 39, "s66", 3584, "s46")

    def out_h():
        a("s_mul_i32 s56, s59, %d" % AF_BLK)
        a("s_lshl_b32 s66, s4, 13")
        a("s_add_u32 s56, s56, s66")
        a("s_add_u32 s56, s56, 0x%x" % (AF + 256 * 1024))

    chunk("Q", next_q1, out_q0, None, True, "xn")
    chunk("Q", next_h, out_q1, "Q", True, None, pfsched("x", 1))
    a("s_cmp_lt_u32 s4, 14")
    a("s_cbranch_scc1 proj_h")
    epilogue("Q")
    if EARLY:
        a("s_waitcnt vmcnt(0)")
        a("s_barrier")
        sig_kq()
    if "pf2" in EXPF:
        a("s_sub_u32 s88, s4, 14")
        a("s_lshl_b32 s89, s3, 1")
        a("s_add_u32 s88, s88, s89")
        a("s_lshl_b32 s88, s88, 3")
        a("s_add_u32 s88, s88, s6")
        a("v_lshlrev_b32 v255, 7, v1")
        a("s_mov_b32 s84, s34")
        a("s_mov_b32 s85, s35")
        a("s_mov_b32 s86, 0x400000")
        a("s_mov_b32 s87, 0x20000")
        a("s_lshl_b32 s89, s88, 15")
        for i in range(4):
            a("buffer_load_dword v254, v255, s[84:87], s89 offen")
            a("buffer_load_dword v254, v255, s[84:87], s89 offen offset:64")
            a("s_add_u32 s89, s89, 8192")
        a("s_mov_b32 s84, s42")
        a("s_mov_b32 s85, s43")
        a("s_mov_b32 s86, 0x1c0000")
        a("s_lshl_b32 s89, s88, 14")
        for i in range(2):
            a("buffer_load_dword v254, v255, s[84:87], s89 offen")
            a("buffer_load_dword v254, v255, s[84:87], s89 offen offset:64")
            a("s_add_u32 s89, s89, 8192")
    a("s_branch proj_end")
    a.label("proj_h")
    chunk("H", next_none, out_h, "Q", False, None, pfsched("x", 2), True)
    pfh[:] = [0, 0]
    a.stamp_flush(0)
    a("s_branch proj_end")
    a.nst = 2

    a.label("proj_ckv")
    set_params("cur", 30, 31, 0x400000, 8192, "s61")
    dma(0, "cur")
    a_dma(0, 2)
    a_dma(1, 3)
    a_dma(2, 4)
    dma(1, "cur")
    prefetch0()
    W(12 + NP0); a_read(0, 2); L0(); a_dma(3, 2)
    W(12 + NP0); a_read(1, 3); L0(); a_dma(4, 3)
    a("s_barrier")
    reads(0, 0, 0)

    def out_k0():
        a("s_add_u32 s56, s63, 0x%x" % KF)

    def out_k1():
        a("s_add_u32 s56, s64, 0x%x" % KF)

    def out_v0():
        a("s_add_u32 s56, s63, 0x%x" % VF)

    def out_v1():
        a("s_add_u32 s56, s64, 0x%x" % VF)

    chunk("QK", lambda: set_params("next", 30, 31, 0x400000, 8192, "s62"), out_k0, None, True, "ckv")
    chunk("QK", lambda: set_params("next", 32, 33, 0x400000, 8192, "s61"), out_k1, "QK", True, None, pfsched("c", 1))
    chunk("V", lambda: set_params("next", 32, 33, 0x400000, 8192, "s62"), out_v0, "QK", True, None, pfsched("c", 2), True)
    chunk("V", next_none, out_v1, "V", False, None, pfsched("c", 3))
    a.stamp_flush(int(STAMP) if STAMP else 0)
    a.label("proj_end")
    a.ostamp()
    if not EARLY:
        a.gridbar(0)
        a.ostamp()


def descriptor(a, name, vgpr, sgpr, accum):
    a.raw(".p2align 6")
    a.raw(".amdhsa_kernel %s" % name)
    a.raw("  .amdhsa_next_free_vgpr %d" % vgpr)
    a.raw("  .amdhsa_next_free_sgpr %d" % sgpr)
    a.raw("  .amdhsa_accum_offset %d" % accum)
    a.raw("  .amdhsa_group_segment_fixed_size 0")
    a.raw("  .amdhsa_kernarg_size 112")
    a.raw("  .amdhsa_user_sgpr_count 2")
    a.raw("  .amdhsa_user_sgpr_kernarg_segment_ptr 1")
    a.raw("  .amdhsa_system_sgpr_workgroup_id_x 1")
    a.raw(".end_amdhsa_kernel")


def main():
    from gen_rest import gen_attn, gen_ogemm, gen_reduce
    a = Asm()
    hdr = open("cdna_kernels/%s.s.ref" % NAME).read().split("\n")
    for l in hdr:
        if l.startswith(";") and "@launch" not in l:
            a.raw(l)
        elif not l.startswith(";"):
            break
    a.raw("; @launch kernel=mega_kernel grid=(256,1,1) block=(512,1,1) lds=163840")
    a.raw('.amdgcn_target "amdgcn-amd-amdhsa--gfx950"')
    a.raw(".text")
    a.raw(".globl mega_kernel")
    a.raw(".p2align 8")
    a.raw(".type mega_kernel,@function")
    gen_proj(a)
    gen_attn(a)
    gen_ogemm(a)
    gen_reduce(a)
    a.label("code_end")
    a.raw('.section .rodata,"a"')
    descriptor(a, "mega_kernel", 256, 102, 256)
    out = sys.argv[1] if len(sys.argv) > 1 else "cdna_kernels/%s.s" % NAME
    open(out, "w").write("\n".join(a.lines) + "\n")


if __name__ == "__main__":
    main()
```

```python
from gen import vr, sr, QF, KF, VF, AF, AF_BLK, PART, CTR, EARLY
import math
import os
EXP = os.environ.get("EXP", "")
SENT = "sent" in EXP
MST = os.environ.get("MST")

SCALE_LOG2E = (128 ** -0.5) * math.log2(math.e)


def f32hex(x):
    import struct
    return "0x%08x" % struct.unpack("<I", struct.pack("<f", x))[0]


def interleave(a, mf, fl):
    n = len(mf)
    pos = 0
    for i in range(n):
        a(mf[i])
        end = (len(fl) * (i + 1)) // n
        while pos < end:
            a(fl[pos])
            pos += 1


def gen_attn(a):
    V_LDS = 2
    V_DMA = 3
    V_LG = 4
    V_NEG = 5
    V_RDV = 6
    V_RDK = 7
    V_M = 8
    V_L = 9
    V_T = 10
    V_Q = 16
    V_O = 48
    V_S = 112
    V_P = 144
    V_K = 152
    V_V = 184
    S_MASK = 36
    S_LB = 35
    S_THR = 34
    V_C = 216
    V_E = 232
    NBUF = 5
    LDSZ = NBUF * 32768

    a.label("attn_kernel")
    if not EARLY:
        a.stamp()
    a("s_load_dwordx2 s[8:9], s[0:1], 104")
    if "df" in EXP:
        a("s_load_dwordx2 s[86:87], s[0:1], 96")
        a("v_mov_b32 v255, 0")
    a("v_lshrrev_b32 v1, 6, v0")
    a("s_nop 0")
    a("v_readfirstlane_b32 s6, v1")
    a("v_and_b32 v1, 63, v0")
    a("s_lshr_b32 s22, s6, 2")
    a("s_and_b32 s23, s6, 3")
    a("s_and_b32 s3, s2, 7")
    a("s_lshl_b32 s3, s3, 2")
    a("s_lshr_b32 s4, s2, 3")
    a("s_and_b32 s4, s4, 3")
    a("s_add_u32 s3, s3, s4")
    a("s_lshr_b32 s4, s2, 5")
    a("s_sub_u32 s5, 15, s4")
    a("s_mov_b32 s24, 0")
    a("s_mov_b32 s77, 1000000")
    a("s_mov_b32 s10, 0x10000000")
    a("s_mov_b32 s11, 0x20000")
    a("s_lshl_b32 s12, s3, 19")
    a("v_lshlrev_b32 v%d, 4, v1" % V_LDS)
    a("s_lshl_b32 s13, s23, 11")
    a("s_lshl_b32 s25, s22, 13")
    a("s_add_u32 s25, s25, s13")
    a("v_add_u32 v%d, s25, v%d" % (V_DMA, V_LDS))
    a("s_lshl_b32 s26, s22, 14")
    a("v_add_u32 v%d, s26, v%d" % (V_LG, V_LDS))
    a("s_add_u32 s27, s26, s13")
    a("v_and_b32 v12, 31, v1")
    a("v_lshrrev_b32 v13, 5, v1")
    a("v_lshlrev_b32 v13, 2, v13")
    a("v_sub_u32 v12, v12, v13")
    for r in range(16):
        kl = 8 * (r >> 2) + (r & 3)
        a("v_cmp_le_i32 %s, %d, v12" % (sr(S_MASK + 2 * r, 2), kl))
    a("v_mov_b32 v%d, 0xf149f2ca" % V_NEG)
    a("s_waitcnt lgkmcnt(0)")

    def bump(sreg):
        return ["s_add_u32 s%d, s%d, 32768" % (sreg, sreg),
                "s_cmp_ge_u32 s%d, %d" % (sreg, LDSZ),
                "s_cselect_b32 s%d, 0, s%d" % (sreg, sreg)]

    def dma_ops():
        ops = []
        ops.append("s_add_u32 m0, s27, s28")
        ops.append("s_cmp_eq_u32 s78, s79")
        ops.append("s_cselect_b32 s16, s80, s16")
        ops.append("s_cselect_b32 s17, s81, s17")
        ops.append("s_add_u32 s78, s78, 1")
        for i in range(2):
            ops.append("buffer_load_dwordx4 v%d, s[8:11], s16 offen offset:%d lds" % (V_DMA, i * 1024))
        ops.append("s_add_u32 m0, m0, 8192")
        ops.append("s_add_u32 s16, s16, 16384")
        for i in range(2):
            ops.append("buffer_load_dwordx4 v%d, s[8:11], s17 offen offset:%d lds" % (V_DMA, i * 1024))
        ops.append("s_add_u32 s17, s17, 16384")
        ops += bump(28)
        return ops

    def dma():
        for x in dma_ops():
            a(x)

    def tstamp(k):
        if not os.environ.get("STAMP"):
            return
        a("s_memtime s[98:99]")
        a("s_waitcnt lgkmcnt(0)")
        a("s_cmp_eq_u32 s24, 0")
        a("s_cselect_b32 s%d, s98, s%d" % (69 + k, 69 + k))
        a("s_cselect_b32 s%d, s%d, s98" % (73 + k, 73 + k))

    def kread_ops():
        return ["ds_read_b128 %s, v%d offset:%d" % (vr(V_K + 4 * s, 4), V_RDK, s * 1024) for s in range(8)] + \
            bump(33) + ["v_add_u32 v%d, s33, v%d" % (V_RDK, V_LG)]

    def vread_ops():
        return ["ds_read_b128 %s, v%d offset:%d" % (vr(V_V + 4 * i, 4), V_RDV, 8192 + i * 1024) for i in range(8)] + \
            bump(32) + ["v_add_u32 v%d, s32, v%d" % (V_RDV, V_LG)]

    def qk_ops(sp):
        ops = []
        S = V_S + 16 * sp
        for s in range(8):
            c = vr(V_C, 16) if s == 0 else vr(S, 16)
            ops.append("v_mfma_f32_32x32x16_bf16 %s, %s, %s, %s" % (vr(S, 16), vr(V_K + 4 * s, 4), vr(V_Q + 4 * s, 4), c))
        return ops

    def pv_ops():
        ops = []
        for t in range(2):
            for dt in range(4):
                o = vr(V_O + 16 * dt, 16)
                ops.append("v_mfma_f32_32x32x16_bf16 %s, %s, %s, %s" % (o, vr(V_V + 4 * (dt * 2 + t), 4), vr(V_P + 4 * t, 4), o))
        return ops

    def max_ops(S, t0, t1):
        return ["v_max3_f32 v%d, v%d, v%d, v%d" % (t0, S, S + 1, S + 2),
                "v_max3_f32 v%d, v%d, v%d, v%d" % (t1, S + 3, S + 4, S + 5),
                "v_max3_f32 v%d, v%d, v%d, v%d" % (t0, t0, S + 6, S + 7),
                "v_max3_f32 v%d, v%d, v%d, v%d" % (t1, t1, S + 8, S + 9),
                "v_max3_f32 v%d, v%d, v%d, v%d" % (t0, t0, S + 10, S + 11),
                "v_max3_f32 v%d, v%d, v%d, v%d" % (t1, t1, S + 12, S + 13),
                "v_max3_f32 v%d, v%d, v%d, v%d" % (t0, t0, S + 14, S + 15),
                "v_max_f32 v%d, v%d, v%d" % (t0, t0, t1),
                "v_mov_b32 v%d, v%d" % (t1, t0)]

    def soft_ops(S, t2, t3):
        P = V_P
        E = V_E
        vb = []
        for r in range(16):
            vb.append("v_exp_f32 v%d, v%d" % (E + r, S + r))
            if r >= 3 and r % 2 == 1:
                q = r - 3
                vb.append("v_cvt_pk_bf16_f32 v%d, v%d, v%d" % (P + q // 2, E + q, E + q + 1))
                if q == 0:
                    vb.append("v_add_f32 v%d, v%d, v%d" % (t2, E, E + 1))
                elif q == 2:
                    vb.append("v_add_f32 v%d, v%d, v%d" % (t3, E + 2, E + 3))
                else:
                    vb.append("v_add_f32 v%d, v%d, v%d" % (t2, t2, E + q))
                    vb.append("v_add_f32 v%d, v%d, v%d" % (t3, t3, E + q + 1))
        vb.append("v_add_f32 v%d, v%d, v%d" % (t2, t2, t3))
        vb.append("v_cvt_pk_bf16_f32 v%d, v%d, v%d" % (P + 7, E + 14, E + 15))
        vb.append("v_add_f32 v%d, v%d, v%d" % (t3, E + 14, E + 15))
        vb.append("v_add_f32 v%d, v%d, v%d" % (t2, t2, t3))
        return vb

    cnt = [0]
    rare = []

    def mask(L, S):
        a("s_lshl_b32 s29, s18, 1")
        a("s_add_u32 s29, s29, s22")
        a("s_cmp_lt_u32 s29, s30")
        a("s_cbranch_scc1 %s_nomask" % L)
        a("s_cmp_eq_u32 s29, s30")
        a("s_cbranch_scc1 %s_tri" % L)
        for r in range(16):
            a("v_mov_b32 v%d, v%d" % (S + r, V_NEG))
        a("s_branch %s_nomask" % L)
        a.label("%s_tri" % L)
        for r in range(16):
            a("v_cndmask_b32 v%d, v%d, v%d, %s" % (S + r, V_NEG, S + r, sr(S_MASK + 2 * r, 2)))
        a.label("%s_nomask" % L)

    def phaseA(sp, diag, last=False):
        cnt[0] += 1
        L = "attn_it%d" % cnt[0]
        S = V_S + 16 * sp
        T = V_T
        if diag:
            mask(L, S)
        qk = qk_ops(sp ^ 1)
        S2 = V_S + 16 * (sp ^ 1)
        so = soft_ops(S, T + 3, T + 4)
        vrd = vread_ops()
        mix = []
        step = len(so) // len(vrd)
        k = 0
        for i, x in enumerate(so):
            mix.append(x)
            if i % step == step - 1 and k < len(vrd):
                mix.append(vrd[k])
                k += 1
        mix += vrd[k:]
        if last:
            for x in mix:
                a(x)
        else:
            interleave(a, qk, mix)
        a("v_cmp_lt_f32 vcc, s%d, v%d" % (S_THR, T + 3))
        a("s_nop 1")
        a("s_cbranch_vccnz %s_rs" % L)
        a.label("%s_nors" % L)
        a("v_add_f32 v%d, v%d, v%d" % (V_L, V_L, T + 3))
        blk = ["%s_rs:" % L]
        if os.environ.get("STAMP"):
            blk.append("s_add_u32 s77, s77, 1")
        blk += max_ops(S, T, T + 1)
        blk += ["s_nop 1",
                "v_permlane32_swap_b32 v%d, v%d" % (T, T + 1),
                "s_nop 0",
                "v_max3_f32 v%d, v%d, v%d, s%d" % (T, T, T + 1, S_LB),
                "v_exp_f32 v%d, -v%d" % (T + 1, T),
                "v_add_f32 v%d, v%d, v%d" % (V_M, V_M, T),
                "v_min_f32 v%d, 0x7149f2ca, v%d" % (T + 1, T + 1),
                "s_mov_b32 s%d, 0x53800000" % S_THR,
                "s_mov_b32 s%d, 0" % S_LB,
                "v_mul_f32 v%d, v%d, v%d" % (V_L, V_L, T + 1)]
        for i in range(64):
            blk.append("v_mul_f32 v%d, v%d, v%d" % (V_O + i, V_O + i, T + 1))
        for r in range(16):
            blk.append("v_sub_f32 v%d, v%d, v%d" % (S + r, S + r, T))
        blk += so
        for r in range(16):
            blk.append("v_sub_f32 v%d, v%d, v%d" % (V_C + r, V_C + r, T))
        for r in range(16 if not last else 0):
            blk.append("v_sub_f32 v%d, v%d, v%d" % (S2 + r, S2 + r, T))
        blk.append("s_branch %s_nors" % L)
        rare.append(blk)
        a("s_add_u32 s18, s18, 1")

    def phaseC(mode="n"):
        a("s_waitcnt lgkmcnt(0)")
        a("s_nop 0")
        if mode == "n":
            f = kread_ops() + dma_ops()
        elif mode == "k":
            f = kread_ops()
        else:
            k = int(mode[1])
            f = ["buffer_load_dwordx4 %s, v%d, s[8:11], s%d offen offset:%d" % (
                vr(V_Q + 16 * k + 4 * s_, 4), V_LDS, 82 + k, s_ * 1024) for s_ in range(4)]
        interleave(a, pv_ops(), f)

    def bar():
        a("s_waitcnt vmcnt(4) lgkmcnt(0)")
        a("s_barrier")

    def tile_front(qt):
        a("s_lshl_b32 s15, s%d, 2" % qt)
        a("s_add_u32 s15, s15, s23")
        a("s_lshl_b32 s15, s15, 13")
        a("s_add_u32 s15, s15, s12")
        for k in range(2):
            for s in range(4):
                a("buffer_load_dwordx4 %s, v%d, s[8:11], s15 offen offset:%d" % (vr(V_Q + 16 * k + 4 * s, 4), V_LDS, s * 1024))
            a("s_add_u32 s15, s15, 4096")
        a("s_add_u32 s16, s12, 0x%x" % KF)
        a("s_add_u32 s17, s12, 0x%x" % VF)
        a("s_mov_b32 s28, 98304")
        a("s_mov_b32 s78, 0")
        a("s_mov_b32 s79, -1")
        dma()
        dma()
        dma()
        dma()

    if EARLY:
        ring = [98304, 131072, 0, 32768]
        a.eb_pre()
        a("s_lshl_b32 s15, s5, 2")
        a("s_add_u32 s15, s15, s23")
        a("s_lshl_b32 s15, s15, 13")
        a("s_add_u32 s15, s15, s12")
        a("s_add_u32 s16, s12, 0x%x" % KF)
        a("s_add_u32 s17, s12, 0x%x" % VF)
        for st in range(4):
            a("s_add_u32 m0, s27, %d" % ring[st])
            a("s_nop 0")
            for i in range(2):
                a("buffer_load_dwordx4 v%d, s[8:11], s16 offen offset:%d lds" % (V_DMA, i * 1024))
            a("s_add_u32 s16, s16, 16384")
            if st == 0:
                for k in range(2):
                    for s_ in range(4):
                        a("buffer_load_dwordx4 %s, v%d, s[8:11], s15 offen offset:%d" % (vr(V_Q + 16 * k + 4 * s_, 4), V_LDS, s_ * 1024))
                    a("s_add_u32 s15, s15, 4096")
        a.eb_post()
        a.stamp()
        for st in range(4):
            a("s_add_u32 m0, s27, %d" % (ring[st] + 8192))
            a("s_nop 0")
            for i in range(2):
                a("buffer_load_dwordx4 v%d, s[8:11], s17 offen offset:%d lds" % (V_DMA, i * 1024))
            a("s_add_u32 s17, s17, 16384")
        a("s_mov_b32 s28, 65536")
        a("s_mov_b32 s78, 4")
    else:
        tile_front(5)
    a("s_mov_b32 s32, 98304")
    a("s_add_u32 s80, s12, 0x%x" % KF)
    a("s_add_u32 s81, s12, 0x%x" % VF)
    a("s_lshl_b32 s82, s4, 2")
    a("s_add_u32 s82, s82, s23")
    a("s_lshl_b32 s82, s82, 13")
    a("s_add_u32 s82, s82, s12")
    a("s_add_u32 s83, s82, 4096")
    a.label("attn_tile")
    a("s_lshl_b32 s14, s5, 2")
    a("s_add_u32 s14, s14, s23")
    a("s_mov_b32 s30, s14")
    a("s_lshl_b32 s79, s5, 1")
    a("s_add_u32 s79, s79, 2")
    a("s_mov_b32 s33, s32")
    a("v_add_u32 v%d, s32, v%d" % (V_RDV, V_LG))
    a("v_add_u32 v%d, s32, v%d" % (V_RDK, V_LG))
    a("v_mov_b32 v%d, 0" % V_M)
    a("s_mov_b32 s%d, 0xbf800000" % S_THR)
    a("s_mov_b32 s%d, 0xff7fffff" % S_LB)
    for i in range(16):
        a("v_mov_b32 v%d, 0" % (V_C + i))
    a("v_mov_b32 v%d, 0" % V_L)
    for i in range(64):
        a("v_mov_b32 v%d, 0" % (V_O + i))
    a("s_lshl_b32 s19, s5, 1")
    a("s_mov_b32 s18, 0")
    a("s_waitcnt vmcnt(8)")
    a("s_cmp_eq_u32 s24, 0")
    a("s_cbranch_scc1 attn_w2")
    a("s_waitcnt vmcnt(%d)" % (12 if SENT else 4))
    a.label("attn_w2")
    a("s_barrier")
    if "df" in EXP:
        a("global_load_dword v254, v255, s[86:87] sc1")
    if not MST:
        tstamp(0)
    for x in kread_ops():
        a(x)
    a("s_cmp_eq_u32 s24, 0")
    a("s_cbranch_scc1 attn_w3")
    a("s_mov_b32 s78, 2")
    dma()
    dma()
    a.label("attn_w3")
    a("s_waitcnt lgkmcnt(0)")
    for x in qk_ops(0):
        a(x)
    for x in kread_ops():
        a(x)
    if "noinit" not in EXP:
        a.nop(8)
        S, T = V_S, V_T
        a("s_cmp_lg_u32 s5, 0")
        a("s_cbranch_scc1 attn_im_nomask")
        mask("attn_im", S)
        for x in max_ops(S, T, T + 1):
            a(x)
        a("s_nop 1")
        a("v_permlane32_swap_b32 v%d, v%d" % (T, T + 1))
        a("s_nop 0")
        a("v_max_f32 v%d, v%d, v%d" % (T, T, T + 1))
        a("s_mov_b32 s%d, 0x53800000" % S_THR)
        a("s_mov_b32 s%d, 0" % S_LB)
        a("v_mov_b32 v%d, v%d" % (V_M, T))
        for r in range(16):
            a("v_sub_f32 v%d, v%d, v%d" % (S + r, S + r, T))
        for r in range(16):
            a("v_sub_f32 v%d, 0, v%d" % (V_C + r, T))
    a("s_cmp_eq_u32 s22, 1")
    a("s_cbranch_scc1 attn_g1")
    a("s_cmp_eq_u32 s5, 0")
    a("s_cbranch_scc1 attn_diag0")
    a.label("attn_loop0")
    a.inloop = "og" not in EXP
    for sp in range(2):
        bar()
        a("s_waitcnt lgkmcnt(0)")
        phaseA(sp, False)
        phaseC()
    a.inloop = False
    a("s_cmp_lt_u32 s18, s19")
    a("s_cbranch_scc1 attn_loop0")
    a.label("attn_diag0")
    if not MST:
        tstamp(1)
    for sp in range(2):
        bar()
        a("s_waitcnt lgkmcnt(0)")
        phaseA(sp, True, sp == 1)
        phaseC("q%d" % sp)
    tstamp(2)
    a("s_branch attn_merge")
    a.label("attn_g1")
    bar()
    a("s_waitcnt lgkmcnt(0)")
    a("s_cmp_eq_u32 s5, 0")
    a("s_cbranch_scc1 attn_diag1a")
    dma()
    phaseA(0, False)
    a.label("attn_loop1")
    a.inloop = "og" not in EXP
    bar()
    phaseC()
    a("s_waitcnt lgkmcnt(0)")
    phaseA(1, False)
    a.inloop = False
    a("s_cmp_ge_u32 s18, s19")
    a("s_cbranch_scc1 attn_diag1")
    a.inloop = "og" not in EXP
    bar()
    phaseC()
    a("s_waitcnt lgkmcnt(0)")
    phaseA(0, False)
    a.inloop = False
    a("s_branch attn_loop1")
    a.label("attn_diag1")
    bar()
    phaseC("k")
    a("s_waitcnt lgkmcnt(0)")
    a.label("attn_diag1a")
    phaseA(0, True)
    bar()
    phaseC("q0")
    phaseA(1, True, True)
    phaseC("q1")
    a.label("attn_merge")

    def slot(wreg, vdst):
        a("s_mul_i32 s29, s%d, 11" % wreg)
        a("s_lshr_b32 s29, s29, 5")
        a("s_mul_i32 s84, s29, 3")
        a("s_sub_u32 s84, s%d, s84" % wreg)
        a("s_lshl_b32 s29, s29, 15")
        a("s_add_u32 s29, s29, s28")
        a("s_sub_u32 s85, s29, %d" % LDSZ)
        a("s_cmp_ge_u32 s29, %d" % LDSZ)
        a("s_cselect_b32 s29, s85, s29")
        a("s_mul_i32 s84, s84, 9216")
        a("s_add_u32 s29, s29, s84")
        a("v_add_u32 v%d, s29, v%d" % (vdst, V_LDS))
    slot(6, 12)
    a("s_xor_b32 s31, s6, 4")
    slot(31, 13)
    a("s_waitcnt lgkmcnt(0)")
    a("s_barrier")
    if MST:
        tstamp(0)
    a.nop(4)
    for g in range(2):
        if g == 0:
            a("s_cmp_eq_u32 s22, 1")
            a("s_cbranch_scc1 attn_mg1")
        else:
            a.label("attn_mg1")
        keep, send = V_O + 32 * g, V_O + 32 * (1 - g)
        for i in range(8):
            a("ds_write_b128 v12, %s offset:%d" % (vr(send + 4 * i, 4), i * 1024))
        a("ds_write_b64 v12, v[%d:%d] offset:8192" % (V_M, V_L))
        a("s_waitcnt lgkmcnt(0)")
        a("s_barrier")
        if MST and g == 0:
            tstamp(1)
        a("ds_read_b64 v[14:15], v13 offset:8192")
        for i in range(8):
            a("ds_read_b128 %s, v13 offset:%d" % (vr(V_K + 4 * i, 4), i * 1024))
        a("s_waitcnt lgkmcnt(8)")
        a("v_max_f32 v10, v%d, v14" % V_M)
        a("v_sub_f32 v11, v%d, v10" % V_M)
        a("v_sub_f32 v10, v14, v10")
        a("v_exp_f32 v11, v11")
        a("v_exp_f32 v10, v10")
        a.nop(1)
        a("v_mul_f32 v%d, v%d, v11" % (V_L, V_L))
        a("v_fma_f32 v%d, v15, v10, v%d" % (V_L, V_L))
        a("v_mov_b32 v14, v%d" % V_L)
        a.nop(2)
        a("v_permlane32_swap_b32 v%d, v14" % V_L)
        a.nop(1)
        a("v_add_f32 v14, v14, v%d" % V_L)
        a("v_rcp_f32 v14, v14")
        a.nop(1)
        a("v_mul_f32 v11, v11, v14")
        a("v_mul_f32 v10, v10, v14")
        a("s_mul_i32 s20, s14, %d" % AF_BLK)
        a("s_lshl_b32 s21, s3, 13")
        a("s_add_u32 s20, s20, s21")
        a("s_add_u32 s20, s20, 0x%x" % (AF + 4096 * g))
        a("s_waitcnt lgkmcnt(0)")
        for i in range(32):
            a("v_mul_f32 v%d, v%d, v10" % (V_K + i, V_K + i))
            a("v_fma_f32 v%d, v%d, v11, v%d" % (V_K + i, keep + i, V_K + i))
        for k in range(4):
            d = V_V + k * 4
            for p in range(4):
                x0 = V_K + 8 * k + 2 * p
                a("v_cvt_pk_bf16_f32 v%d, v%d, v%d" % (d + p, x0, x0 + 1))
            a("buffer_store_dwordx4 %s, v%d, s[8:11], s20 offen offset:%d sc1" % (vr(d, 4), V_LDS, k * 1024))
        if g == 0:
            a("s_branch attn_mgdone")
    a.label("attn_mgdone")
    if SENT:
        a("s_cmp_eq_u32 s24, 1")
        a("s_cbranch_scc1 attn_noclr")
        a("s_lshl_b32 s20, s2, 16")
        a("s_lshl_b32 s21, s6, 13")
        a("s_add_u32 s20, s20, s21")
        a("s_add_u32 s20, s20, 0x%x" % PART)
        a("s_add_u32 s21, s20, 4096")
        for k in range(4):
            a("v_mov_b32 v%d, -1" % (V_K + k))
        for k in range(8):
            a("buffer_store_dwordx4 %s, v%d, s[8:11], s%d offen offset:%d sc1" % (vr(V_K, 4), V_LDS, 20 if k < 4 else 21, (k & 3) * 1024))
        a.label("attn_noclr")
    tstamp(3)
    a.nst = 10
    a("s_cmp_eq_u32 s24, 1")
    a("s_cbranch_scc1 attn_fin")
    a("s_mov_b32 s24, 1")
    a("s_mov_b32 s5, s4")
    for r in (80, 81, 82, 83):
        a("s_mov_b32 s%d, 0x10000000" % r)
    a("s_branch attn_tile")
    a.label("attn_fin")
    a.stamp_flush(0)
    a.label("attn_end")
    a("s_branch attn_after")
    for blk in rare:
        a.label(blk[0][:-1])
        for x in blk[1:]:
            a(x)
    a.label("attn_after")
    a.ostamp()
    if "ov" in EXP:
        a("s_waitcnt vmcnt(4) lgkmcnt(0)")
    else:
        a("s_waitcnt vmcnt(0) lgkmcnt(0)")
    if "df" in EXP:
        a("s_mov_b32 s88, 0")
        a.label("df_chk")
        a("v_readfirstlane_b32 s89, v254")
        a("s_cmp_ge_u32 s89, 16")
        a("s_cbranch_scc1 df_ok")
        a("s_add_u32 s88, s88, 1")
        a("s_cmp_gt_u32 s88, 40000")
        a("s_cbranch_scc1 df_ok")
        a("s_sleep 8")
        a("global_load_dword v254, v255, s[86:87] sc1")
        a("s_waitcnt vmcnt(0)")
        a("s_branch df_chk")
        a.label("df_ok")
    a("s_barrier")
    a.phase = 2


def gen_ogemm(a):
    V_AL = 2
    V_TR = 4
    V_DA = 8
    V_DB = 9
    V_ST = 11
    V_F = 16
    V_ACC = 48
    NST = 23
    a.label("ogemm_kernel")
    a.stamp()
    a("s_load_dwordx2 s[8:9], s[0:1], 104")
    a("s_load_dwordx2 s[24:25], s[0:1], 40")
    a("s_load_dwordx2 s[26:27], s[0:1], 72")
    a("v_lshrrev_b32 v1, 6, v0")
    a("s_nop 0")
    a("v_readfirstlane_b32 s6, v1")
    a("v_and_b32 v1, 63, v0")
    a("s_lshr_b32 s3, s2, 4")
    a("s_and_b32 s4, s2, 1")
    a("s_lshl_b32 s4, s4, 1")
    a("s_bfe_u32 s5, s2, 0x10003")
    a("s_or_b32 s4, s4, s5")
    a("s_bfe_u32 s5, s2, 0x20001")
    if "same" in EXP:
        a("s_mov_b32 s3, 0")
        a("s_mov_b32 s4, 0")
        a("s_mov_b32 s5, 0")
    if "map1" not in EXP:
        a("s_and_b32 s3, s2, 1")
        a("s_lshl_b32 s3, s3, 3")
        a("s_bfe_u32 s4, s2, 0x30003")
        a("s_or_b32 s3, s3, s4")
        a("s_lshr_b32 s4, s2, 6")
    a("s_mov_b32 s10, 0x10000000")
    a("s_mov_b32 s11, 0x20000")
    a("s_mov_b32 s15, 0x20000")
    a("s_lshr_b32 s30, s6, 2")
    a("s_lshr_b32 s31, s6, 1")
    a("s_and_b32 s31, s31, 1")
    a("s_and_b32 s32, s6, 1")
    a("v_lshlrev_b32 v%d, 4, v1" % V_ST)
    a("s_lshl_b32 s33, s31, 13")
    a("s_lshl_b32 s34, s30, 11")
    a("s_add_u32 s33, s33, s34")
    a("v_add_u32 v%d, s33, v%d" % (V_AL, V_ST))
    a("v_add_u32 v%d, 0x10000, v%d" % (V_AL + 1, V_AL))
    a("v_bfe_u32 v12, v1, 2, 2")
    a("v_lshrrev_b32 v13, 5, v1")
    a("v_lshl_add_u32 v13, v13, 2, v12")
    a("v_lshlrev_b32 v13, 8, v13")
    a("v_bfe_u32 v14, v1, 4, 1")
    a("v_lshl_add_u32 v13, v14, 5, v13")
    a("v_and_b32 v14, 3, v1")
    a("v_lshl_add_u32 v13, v14, 3, v13")
    a("s_lshl_b32 s33, s30, 13")
    a("s_add_u32 s33, s33, 16384")
    a("v_add_u32 v13, s33, v13")
    a("v_lshlrev_b32 v12, 6, v12")
    a("s_lshl_b32 s34, s32, 7")
    for ntl in range(2):
        a("s_add_u32 s35, s34, %d" % (ntl << 6))
        a("v_xor_b32 v14, s35, v12")
        a("v_add_u32 v%d, v13, v14" % (V_TR + ntl))
        a("v_add_u32 v%d, 0x10000, v%d" % (V_TR + 2 + ntl, V_TR + ntl))
    a("s_lshr_b32 s33, s6, 1")
    a("s_lshl_b32 s34, s3, 2")
    a("s_add_u32 s34, s34, s33")
    a("s_mul_i32 s34, s34, %d" % AF_BLK)
    a("s_lshl_b32 s35, s32, 11")
    a("s_add_u32 s34, s34, s35")
    a("s_add_u32 s34, s34, 0x%x" % AF)
    a("v_add_u32 v%d, s34, v%d" % (V_DA, V_ST))
    a("s_lshl_b32 s36, s6, 11")
    a("v_lshrrev_b32 v12, 4, v1")
    a("v_bfe_u32 v13, v1, 2, 2")
    a("v_xor_b32 v13, v13, v12")
    a("v_lshlrev_b32 v13, 6, v13")
    a("v_and_b32 v14, 3, v1")
    a("v_lshl_add_u32 v13, v14, 4, v13")
    a("s_lshl_b32 s33, s6, 3")
    a("v_add_u32 v12, s33, v12")
    a("v_lshlrev_b32 v12, 10, v12")
    a("v_add_u32 v12, v12, v13")
    a("s_lshl_b32 s33, s4, 8")
    a("v_add_u32 v%d, s33, v12" % V_DB)
    a("v_add_u32 v%d, 3072, v%d" % (V_DB + 1, V_DB))
    a("s_mov_b32 s42, 0x1c0000")
    a("s_mul_i32 s37, s5, 7")
    a("s_add_u32 s37, s37, 64")
    a("s_lshl_b32 s44, s5, 4")
    a("s_mov_b32 s43, 0")
    a("s_waitcnt lgkmcnt(0)")

    def dma(buf):
        a("s_cmp_lt_u32 s37, 64")
        a("s_cselect_b32 s12, s24, s26")
        a("s_cselect_b32 s13, s25, s27")
        a("s_cselect_b32 s14, 0x400000, s42")
        a("s_cselect_b32 s39, 0, 64")
        a("s_sub_u32 s39, s37, s39")
        a("s_lshl_b32 s39, s39, 16")
        a("s_lshl_b32 s40, s37, 12")
        a("s_cmp_lt_u32 s43, %d" % NST)
        a("s_cselect_b32 s14, s14, 0")
        a("s_cselect_b32 s40, s40, 0x10000000")
        a("s_add_u32 s37, s37, 1")
        a("s_add_u32 s43, s43, 1")
        a("s_cmp_eq_u32 s43, 7")
        a("s_cselect_b32 s37, s44, s37")
        a("s_add_u32 m0, s36, %d" % (buf * 32768))
        a("s_nop 0")
        for i in range(2):
            a("buffer_load_dwordx4 v%d, s[8:11], s40 offen offset:%d lds" % (V_DA, i * 1024))
        a("s_add_u32 m0, s36, %d" % (buf * 32768 + 16384))
        a("s_nop 0")
        for i in range(2):
            a("buffer_load_dwordx4 v%d, s[12:15], s39 offen offset:%d lds" % (V_DB + i, i * 1024))

    def reads(buf, sl, st):
        hi = 1 if buf >= 2 else 0
        bo = (buf & 1) * 32768
        f = V_F + st * 16
        for mbl in range(2):
            a("ds_read_b128 %s, v%d offset:%d" % (vr(f + 4 * mbl, 4), V_AL + hi, bo + mbl * 4096 + sl * 1024))
        for ntl in range(2):
            for ird in range(2):
                a("ds_read_b64_tr_b16 %s, v%d offset:%d" % (
                    vr(f + 8 + 4 * ntl + 2 * ird, 2), V_TR + 2 * hi + ntl, bo + sl * 4096 + ird * 2048))

    def mfmas(st, first):
        f = V_F + st * 16
        for mbl in range(2):
            for ntl in range(2):
                acc = vr(V_ACC + 16 * (mbl * 2 + ntl), 16)
                c = "0" if first else acc
                a("v_mfma_f32_32x32x16_bf16 %s, %s, %s, %s" % (acc, vr(f + 8 + 4 * ntl, 4), vr(f + 4 * mbl, 4), c))

    dma(0)
    dma(1)
    dma(2)
    for i in range(64):
        a("v_mov_b32 v%d, 0" % (V_ACC + i))
    def owg():
        a("s_lshl_b32 s49, s3, 2")
        a("s_add_u32 s49, s49, s4")
        a("s_lshl_b32 s45, s49, 4")
        a("s_lshl_b32 s46, s5, 2")
        a("s_add_u32 s45, s45, s46")

    if "xh" in EXP:
        owg()
        reduce_pre(a, 1)
        a("s_waitcnt lgkmcnt(0)")
    if "ov" in EXP:
        a("s_waitcnt vmcnt(12)")
        a("s_barrier")
    a("s_cmp_lg_u32 s6, 0")
    a("s_cbranch_scc1 ogemm_nosig")
    a.gb_signal(1, "ov" in EXP)
    a.label("ogemm_nosig")
    a("s_mov_b32 s41, 0")
    a("s_waitcnt vmcnt(8)")
    a("s_barrier")
    a.stamp()
    reads(0, 0, 0)

    def body(buf, hook=None, check=True):
        a("s_waitcnt vmcnt(4)")
        a("s_barrier")
        reads(buf, 1, 1)
        a("s_waitcnt lgkmcnt(6)")
        mfmas(0, False)
        reads((buf + 1) & 3, 0, 0)
        if hook:
            hook()
        dma((buf + 3) & 3)
        a("s_waitcnt lgkmcnt(6)")
        mfmas(1, False)
        a("s_add_u32 s41, s41, 1")
        if check:
            a("s_cmp_ge_u32 s41, %d" % NST)
            a("s_cbranch_scc1 ogemm_done")

    def pollhook():
        if "xh" in EXP:
            reduce_pre(a, 2)
        a("s_cmp_lg_u32 s6, 0")
        a("s_cbranch_scc1 ogemm_nopoll")
        a.gb_poll(1)
        a.label("ogemm_nopoll")
        a("s_barrier")
        a.stamp()

    def sighook():
        a("s_cmp_lg_u32 s6, 0")
        a("s_cbranch_scc1 ogemm_nosig2")
        a.gb_signal2(1)
        a.label("ogemm_nosig2")

    for it in range(8):
        body(it & 3, pollhook if it == 4 else (sighook if it == 1 and "ov" in EXP else None), False)
    a.label("ogemm_loop")
    a.inloop = "og" in EXP
    for buf in range(4):
        body(buf)
    a("s_branch ogemm_loop")
    a.inloop = False
    a.label("ogemm_done")
    a.ostamp()
    a.stamp()
    a("s_waitcnt vmcnt(0) lgkmcnt(0)")
    a("s_barrier")
    a.nop(12)
    a("s_and_b32 s33, s6, 3")
    a("s_lshl_b32 s33, s33, 14")
    a("s_lshl_b32 s34, s6, 13")
    a("v_add_u32 v12, s34, v%d" % V_ST)
    a("s_xor_b32 s34, s34, 0x8000")
    a("v_add_u32 v13, s34, v%d" % V_ST)
    a("s_lshl_b32 s34, s3, 2")
    a("s_add_u32 s34, s34, s4")
    a("s_lshl_b32 s34, s34, 16")
    a("s_add_u32 s34, s34, s33")
    a("s_lshl_b32 s35, s5, 22")
    a("s_add_u32 s34, s34, s35")
    a("s_add_u32 s34, s34, 0x%x" % PART)
    a("s_cmp_eq_u32 s30, 0")
    a("s_cbranch_scc1 ogemm_g0")
    for g in (1, 0):
        if g == 0:
            a.label("ogemm_g0")
        keep, send = V_ACC + 32 * g, V_ACC + 32 * (1 - g)
        for i in range(8):
            a("ds_write_b128 v12, %s offset:%d" % (vr(send + 4 * i, 4), i * 1024))
        a("s_waitcnt lgkmcnt(0)")
        a("s_barrier")
        for i in range(8):
            a("ds_read_b128 %s, v13 offset:%d" % (vr(112 + 4 * i, 4), i * 1024))
        a("s_add_u32 s34, s34, %d" % (8192 * g))
        for i in range(8):
            a("s_waitcnt lgkmcnt(%d)" % (7 - i))
            for k in range(4):
                a("v_add_f32 v%d, v%d, v%d" % (keep + 4 * i + k, keep + 4 * i + k, 112 + 4 * i + k))
            if i == 4:
                a("s_add_u32 s34, s34, 4096")
            a("buffer_store_dwordx4 %s, v%d, s[8:11], s34 offen offset:%d sc1" % (vr(keep + 4 * i, 4), V_ST, (i & 3) * 1024))
        if g == 1:
            a("s_branch ogemm_end")
    a.stamp()
    a.stamp_flush(0)
    a.label("ogemm_end")
    if "xh" not in EXP:
        owg()
        reduce_pre(a)
    if SENT:
        a.phase = 3
        return
    a("s_waitcnt vmcnt(0) lgkmcnt(0)")
    a("s_barrier")
    a("s_cmp_lg_u32 s6, 0")
    a("s_cbranch_scc1 tb_wait")
    a("s_add_u32 s46, s49, 32")
    a("s_lshl_b32 s46, s46, 12")
    a("s_add_u32 s46, s46, 0x%x" % CTR)
    a("s_mov_b64 exec, 1")
    a("v_mov_b32 v12, 1")
    a("v_mov_b32 v13, 0")
    a("buffer_atomic_add v12, v13, s[8:11], s46 offen sc1")
    a("s_mov_b32 s47, 0")
    a.label("tb_loop")
    a("buffer_load_dword v14, v13, s[8:11], s46 offen sc1")
    a("s_waitcnt vmcnt(0)")
    a("v_readfirstlane_b32 s48, v14")
    a("s_cmp_ge_u32 s48, 4")
    a("s_cbranch_scc1 tb_done")
    a("s_add_u32 s47, s47, 1")
    a("s_cmp_gt_u32 s47, 40000")
    a("s_cbranch_scc1 tb_done")
    a("s_sleep 4")
    a("s_branch tb_loop")
    a.label("tb_done")
    a("s_mov_b64 exec, -1")
    a.label("tb_wait")
    a("s_barrier")
    a.phase = 3


RB = 176


def reduce_pre(a, part=None):
    if part == 2:
        for j in range(2):
            B = RB + 4 + 32 * j
            a("buffer_load_dwordx2 %s, v%d, s[52:55], 0 offen" % (vr(B + 16, 2), B + 26))
            a("buffer_load_dwordx2 %s, v%d, s[56:59], 0 offen" % (vr(B + 18, 2), B + 27))
        return
    a("s_load_dwordx2 s[52:53], s[0:1], 0")
    a("s_load_dwordx2 s[56:57], s[0:1], 80")
    a("s_load_dwordx2 s[60:61], s[0:1], 88")
    a("s_mov_b32 s54, 0x200000")
    a("s_mov_b32 s55, 0x20000")
    a("s_mov_b32 s58, 1024")
    a("s_mov_b32 s59, 0x20000")
    a("s_mov_b32 s62, 0x200000")
    a("s_mov_b32 s63, 0x20000")
    T = RB + 70
    a("s_lshr_b32 s23, s6, 2")
    a("v_and_b32 v%d, 255, v0" % T)
    a("s_add_u32 s50, s45, s23")
    a("v_lshlrev_b32 v%d, 4, v%d" % (RB + 1, T))
    if not part:
        a("s_waitcnt lgkmcnt(0)")
    for j in range(2):
        B = RB + 4 + 32 * j
        v2, v3 = RB + 2, B + 27
        a("s_add_u32 s51, s50, %d" % (2 * j))
        a("s_lshr_b32 s64, s51, 4")
        a("s_lshr_b32 s65, s51, 2")
        a("s_and_b32 s65, s65, 3")
        a("s_and_b32 s66, s51, 3")
        a("s_lshr_b32 s16, s64, 2")
        a("s_and_b32 s17, s64, 3")
        a("s_lshr_b32 s18, s65, 1")
        a("s_and_b32 s19, s65, 1")
        a("s_lshr_b32 s28, s66, 1")
        a("s_and_b32 s29, s66, 1")
        a("s_lshl_b32 s20, s16, 2")
        a("s_lshl_b32 s21, s18, 1")
        a("s_add_u32 s20, s20, s21")
        a("s_add_u32 s20, s20, s28")
        a("s_lshl_b32 s20, s20, 15")
        a("s_lshl_b32 s21, s17, 2")
        a("s_lshl_b32 s22, s19, 1")
        a("s_add_u32 s21, s21, s22")
        a("s_add_u32 s21, s21, s29")
        a("s_lshl_b32 s21, s21, 6")
        a("v_and_b32 v%d, 31, v%d" % (v2, T))
        a("v_lshlrev_b32 v%d, 10, v%d" % (v2, v2))
        a("v_lshrrev_b32 v%d, 6, v%d" % (v3, T))
        a("v_lshlrev_b32 v%d, 4, v%d" % (v3, v3))
        a("v_bfe_u32 v%d, v%d, 5, 1" % (B + 16, T))
        a("v_lshl_add_u32 v%d, v%d, 3, v%d" % (v3, B + 16, v3))
        a("v_add_u32 v%d, s21, v%d" % (v3, v3))
        a("v_add_u32 v%d, v%d, v%d" % (v2, v2, v3))
        a("v_add_u32 v%d, s20, v%d" % (B + 26, v2))
        if not part:
            a("buffer_load_dwordx2 %s, v%d, s[52:55], 0 offen" % (vr(B + 16, 2), B + 26))
            a("buffer_load_dwordx2 %s, v%d, s[56:59], 0 offen" % (vr(B + 18, 2), v3))


def gen_reduce(a):
    a.label("reduce_kernel")
    a.ostamp()
    a.stamp()
    if SENT:
        a("s_mov_b32 s47, 0")
        a.label("red_poll")
    for j in range(2):
        B = RB + 4 + 32 * j
        a("s_lshl_b32 s51, s50, 12")
        a("s_add_u32 s51, s51, 0x%x" % (PART + j * 8192))
        for p in range(4):
            a("buffer_load_dwordx4 %s, v%d, s[8:11], s51 offen%s" % (vr(B + 4 * p, 4), RB + 1, " sc1" if SENT else ""))
            if p < 3:
                a("s_add_u32 s51, s51, 0x400000")
    if SENT:
        for j in range(2):
            B = RB + 4 + 32 * j
            a("s_waitcnt vmcnt(%d)" % (4 - 4 * j))
            a("v_max3_u32 v%d, v%d, v%d, v%d" % (248 + j, B, B + 1, B + 2))
            for i in range(6):
                a("v_max3_u32 v%d, v%d, v%d, v%d" % (248 + j, 248 + j, B + 3 + 2 * i, B + 4 + 2 * i))
            a("v_max_u32 v%d, v%d, v%d" % (248 + j, 248 + j, B + 15))
        a("v_max_u32 v248, v248, v249")
        a("v_cmp_eq_u32 vcc, -1, v248")
        a("s_nop 1")
        a("s_cbranch_vccz red_ok")
        a("s_add_u32 s47, s47, 1")
        a("s_cmp_gt_u32 s47, 20000")
        a("s_cbranch_scc1 red_ok")
        a("s_sleep %s" % os.environ.get("RSL", "4"))
        a("s_branch red_poll")
        a.label("red_ok")
    for j in range(2):
        B = RB + 4 + 32 * j
        for p in range(2):
            a("v_lshlrev_b32 v%d, 16, v%d" % (B + 20, B + 16 + p))
            a("v_and_b32 v%d, 0xffff0000, v%d" % (B + 21, B + 16 + p))
            a("v_lshlrev_b32 v%d, 16, v%d" % (B + 22, B + 18 + p))
            a("v_and_b32 v%d, 0xffff0000, v%d" % (B + 23, B + 18 + p))
            a("v_add_f32 v%d, v%d, v%d" % (B + 28 + 2 * p, B + 20, B + 22))
            a("v_add_f32 v%d, v%d, v%d" % (B + 29 + 2 * p, B + 21, B + 23))
    for j in range(2):
        B = RB + 4 + 32 * j
        a("s_waitcnt vmcnt(%d)" % (4 - 4 * j))
        for i in range(4):
            a("v_add_f32 v%d, v%d, v%d" % (B + i, B + i, B + 4 + i))
            a("v_add_f32 v%d, v%d, v%d" % (B + 8 + i, B + 8 + i, B + 12 + i))
        for i in range(4):
            a("v_add_f32 v%d, v%d, v%d" % (B + i, B + i, B + 8 + i))
        for i in range(4):
            a("v_add_f32 v%d, v%d, v%d" % (B + i, B + i, B + 28 + i))
        for p in range(2):
            a("v_cvt_pk_bf16_f32 v%d, v%d, v%d" % (B + 24 + p, B + 2 * p, B + 1 + 2 * p))
        a("buffer_store_dwordx2 %s, v%d, s[60:63], 0 offen" % (vr(B + 24, 2), B + 26))
    a.stamp()
    a.stamp_flush(0)
    if os.environ.get("STAMP"):
        a("s_waitcnt vmcnt(0)")
        a("s_memrealtime s[18:19]")
        a("s_load_dwordx2 s[8:9], s[0:1], 96")
        a("s_mov_b32 s10, 65536")
        a("s_mov_b32 s11, 0x20000")
        a("s_lshl_b32 s20, s2, 4")
        a("s_add_u32 s20, s20, %d" % (4096 + 4096 * 3))
        a("s_waitcnt lgkmcnt(0)")
        a("s_mov_b64 exec, 1")
        a("v_mov_b32 v4, s18")
        a("v_mov_b32 v5, s93")
        a("v_mov_b32 v6, s18")
        a("v_mov_b32 v7, s92")
        a("v_mov_b32 v2, 0")
        a("buffer_store_dwordx4 v[4:7], v2, s[8:11], s20 offen")
    if os.environ.get("OST"):
        a("s_waitcnt vmcnt(0)")
    a.ostamp(True)
    a("s_endpgm")
```

```python
import sys

NAME = "parallel_sum__compressed_kv_cla__dense_activation_squared_relu__prompt"

MB = 1 << 20
QF = 0
KF = 16 * MB
VF = 32 * MB
AF = 49 * MB
AF_BLK = 368 * 1024
PART = 80 * MB
CTR = 100 * MB
import math, struct
QSC = struct.unpack("<I", struct.pack("<f", (128 ** -0.5) * math.log2(math.e)))[0]


import os
STAMP = os.environ.get("STAMP")
EARLY = "early" in os.environ.get("EXP", "")


class Asm:
    def __init__(self):
        self.lines = []
        self.nst = 0

    def stamp(self):
        if not STAMP:
            return
        self("s_memtime s[98:99]")
        self("s_waitcnt lgkmcnt(0)")
        self("s_mov_b32 s%d, s98" % (68 + self.nst))
        self.nst += 1

    def stamp_flush(self, wgsel, dbgptr_off=96):
        if not STAMP:
            return
        L = "stf_%d" % len(self.lines)
        self("s_cmp_lg_u32 s2, %d" % wgsel)
        self("s_cbranch_scc1 %s" % L)
        self("s_load_dwordx2 s[96:97], s[0:1], %d" % dbgptr_off)
        self("s_waitcnt lgkmcnt(0)")
        self("s_mov_b32 s98, 4096")
        self("s_mov_b32 s99, 0x20000")
        self("v_cmp_eq_u32 vcc, 0, v0")
        self("s_and_saveexec_b64 s[94:95], vcc")
        self("s_cbranch_execz %s" % L)
        for i in range(self.nst):
            self("v_mov_b32 v1, s%d" % (68 + i))
            self("v_mov_b32 v2, %d" % (4 * i + 512 * (self.phase + 1)))
            self("buffer_store_dword v1, v2, s[96:99], 0 offen")
        self.label(L)
        self("s_mov_b64 exec, -1")
        self.nst = 0

    phase = 0
    on = 0

    def code_touch(self, lo, hi, tag, back, n):
        a = self
        lo = "(%s)" % lo
        a("s_getpc_b64 s[88:89]")
        a.label("ct_%s" % tag)
        if back:
            a("s_sub_u32 s88, s88, ct_%s-%s" % (tag, lo))
            a("s_subb_u32 s89, s89, 0")
        else:
            a("s_add_u32 s88, s88, %s-ct_%s" % (lo, tag))
            a("s_addc_u32 s89, s89, 0")
        for k in range(n):
            a("v_lshlrev_b32 v255, 7, v0")
            if k:
                a("v_add_u32 v255, 0x%x, v255" % (k * 65536))
            a("v_min_u32 v255, %s-%s-4, v255" % (hi, lo))
            a("global_load_dword v254, v255, s[88:89]")

    def ostamp(self, last=False):
        OST = os.environ.get("OST")
        if not OST:
            return
        a = self
        a("s_memrealtime s[98:99]")
        a("s_waitcnt lgkmcnt(0)")
        a("s_mov_b32 s%d, s98" % (68 + self.on if self.on else 93))
        self.on += 1
        if last:
            a("s_cmp_lg_u32 s2, %s" % OST)
            a("s_cbranch_scc1 ost_skip")
            a("s_load_dwordx2 s[96:97], s[0:1], 96")
            a("s_mov_b32 s98, 256")
            a("s_mov_b32 s99, 0x20000")
            a("v_cmp_eq_u32 vcc, 0, v0")
            a("s_and_saveexec_b64 s[94:95], vcc")
            a("s_cbranch_execz ost_skip")
            a("s_waitcnt lgkmcnt(0)")
            for i in range(1, self.on):
                a("s_sub_u32 s94, s%d, s93" % (68 + i))
                a("v_mov_b32 v1, s94")
                a("v_mov_b32 v2, %d" % (28 + 4 * i))
                a("buffer_store_dword v1, v2, s[96:99], 0 offen")
            a.label("ost_skip")
            a("s_mov_b64 exec, -1")

    def gb_signal(self, k, split=False):
        a = self
        a("s_load_dwordx2 s[80:81], s[0:1], 96")
        a("s_load_dwordx2 s[84:85], s[0:1], 104")
        a("s_mov_b32 s82, 256")
        a("s_mov_b32 s83, 0x20000")
        a("s_mov_b32 s86, 0x10000000")
        a("s_mov_b32 s87, 0x20000")
        a("s_mov_b64 exec, 1")
        a("v_mov_b32 v12, 1")
        a("v_mov_b32 v13, %d" % (4 * k))
        a("v_mov_b32 v14, 1")
        a("v_mov_b32 v15, 0")
        a("s_and_b32 s88, s2, 15")
        a("s_lshl_b32 s88, s88, 12")
        a("s_add_u32 s88, s88, 0x%x" % (CTR + (k - 1) * 65536))
        a("s_waitcnt lgkmcnt(0)")
        a("buffer_atomic_add v14, v15, s[84:87], s88 offen sc0 sc1")
        if split:
            a("s_mov_b64 exec, -1")
            return
        a("s_waitcnt vmcnt(0)")
        self.gb_signal2(k)

    def gb_signal2(self, k):
        a = self
        a("v_readfirstlane_b32 s89, v14")
        a("s_cmp_lg_u32 s89, 15")
        a("s_cbranch_scc1 gs_nr%d" % k)
        a("s_mov_b64 exec, 1")
        a("buffer_atomic_add v12, v13, s[80:83], 0 offen sc1")
        a.label("gs_nr%d" % k)
        a("s_mov_b64 exec, -1")

    def gb_poll(self, k):
        a = self
        a("s_mov_b64 exec, 1")
        a("v_mov_b32 v13, %d" % (4 * k))
        a("s_mov_b32 s88, 0")
        a.label("gp_loop%d" % k)
        a("buffer_load_dword v14, v13, s[80:83], 0 offen sc1")
        a("s_waitcnt vmcnt(0)")
        a("v_readfirstlane_b32 s89, v14")
        a("s_cmp_ge_u32 s89, 16")
        a("s_cbranch_scc1 gp_done%d" % k)
        a("s_add_u32 s88, s88, 1")
        a("s_cmp_gt_u32 s88, 40000")
        a("s_cbranch_scc1 gp_done%d" % k)
        a("s_sleep %s" % os.environ.get("PSL", "8"))
        a("s_branch gp_loop%d" % k)
        a.label("gp_done%d" % k)
        a("s_mov_b64 exec, -1")

    def eb_pre(self):
        a = self
        if STAMP:
            a("s_memrealtime s[70:71]")
        a("s_load_dwordx2 s[84:85], s[0:1], 96")
        a("s_mov_b32 s86, 256")
        a("s_mov_b32 s87, 0x20000")
        a("v_mov_b32 v248, 0")
        a("v_mov_b32 v249, 1")
        a("v_mov_b32 v250, 8")
        a("s_cmp_ge_u32 s2, 96")
        a("s_cbranch_scc1 eb_noinit")
        a("s_lshl_b32 s88, s2, 12")
        a("s_add_u32 s88, s88, 0x%x" % CTR)
        a("buffer_store_dword v248, v248, s[8:11], s88 offen sc0 sc1")
        a.label("eb_noinit")
        a("s_waitcnt lgkmcnt(0)")
        a("s_cmp_lg_u32 s6, 0")
        a("s_cbranch_scc1 eb_kok")
        a("s_mov_b64 exec, 1")
        a("s_mov_b32 s88, 0")
        a.label("eb_kloop")
        a("buffer_load_dword v251, v250, s[84:87], 0 offen sc1")
        a("s_waitcnt vmcnt(0)")
        a("v_readfirstlane_b32 s89, v251")
        a("s_cmp_ge_u32 s89, 256")
        a("s_cbranch_scc1 eb_kok")
        a("s_add_u32 s88, s88, 1")
        a("s_cmp_gt_u32 s88, 40000")
        a("s_cbranch_scc1 eb_kok")
        a("s_sleep 8")
        a("s_branch eb_kloop")
        a.label("eb_kok")
        a("s_mov_b64 exec, -1")
        a("s_waitcnt vmcnt(0)")
        a("s_barrier")
        if STAMP:
            a("s_memrealtime s[72:73]")
        a("s_cmp_lg_u32 s6, 0")
        a("s_cbranch_scc1 eb_arr")
        a("s_mov_b64 exec, 1")
        a("s_and_b32 s88, s2, 15")
        a("s_lshl_b32 s88, s88, 2")
        a("s_add_u32 s88, s88, 128")
        a("v_mov_b32 v251, 1")
        a("buffer_atomic_add v251, v248, s[84:87], s88 offen sc0 sc1")
        a("s_waitcnt vmcnt(0)")
        a("v_readfirstlane_b32 s89, v251")
        a("s_cmp_lg_u32 s89, 15")
        a("s_cbranch_scc1 eb_arr")
        a("buffer_atomic_add v249, v248, s[84:87], 0 offen sc1")
        a.label("eb_arr")
        a("s_mov_b64 exec, -1")

    def eb_post(self):
        a = self
        a("s_cmp_lg_u32 s6, %s" % os.environ.get("PW", "1"))
        a("s_cbranch_scc1 eb_done")
        a("s_mov_b64 exec, 1")
        a("s_mov_b32 s88, 0")
        a.label("eb_loop")
        a("buffer_load_dword v251, v248, s[84:87], 0 offen sc1")
        a("s_waitcnt vmcnt(0)")
        a("v_readfirstlane_b32 s89, v251")
        a("s_cmp_ge_u32 s89, 16")
        a("s_cbranch_scc1 eb_fin")
        a("s_add_u32 s88, s88, 1")
        a("s_cmp_gt_u32 s88, 40000")
        a("s_cbranch_scc1 eb_fin")
        a("s_sleep %s" % os.environ.get("SLEEP", "8"))
        a("s_branch eb_loop")
        a.label("eb_fin")
        if STAMP:
            a("s_memrealtime s[74:75]")
            a("s_mov_b32 s86, 65536")
            a("s_lshl_b32 s88, s2, 4")
            a("s_add_u32 s88, s88, 4096")
            a("s_waitcnt lgkmcnt(0)")
            a("v_mov_b32 v252, s70")
            a("v_mov_b32 v253, s72")
            a("v_mov_b32 v254, s74")
            a("v_mov_b32 v255, s92")
            a("buffer_store_dwordx4 v[252:255], v248, s[84:87], s88 offen")
        a.label("eb_done")
        a("s_mov_b64 exec, -1")
        a("s_waitcnt vmcnt(0)")
        a("s_barrier")
        a.ostamp()
        self.phase = 1

    def gridbar(self, k):
        a = self
        if STAMP:
            a("s_memrealtime s[14:15]")
        if k == 0:
            a("s_cmp_ge_u32 s2, 96")
            a("s_cbranch_scc1 gb_noinit")
            a("s_load_dwordx2 s[8:9], s[0:1], 104")
            a("s_mov_b32 s10, 0x10000000")
            a("s_mov_b32 s11, 0x20000")
            a("s_lshl_b32 s12, s2, 12")
            a("s_add_u32 s12, s12, 0x%x" % CTR)
            a("v_mov_b32 v1, 0")
            a("v_mov_b32 v2, 0")
            a("s_waitcnt lgkmcnt(0)")
            a("buffer_store_dword v1, v2, s[8:11], s12 offen sc0 sc1")
            a.label("gb_noinit")
        a("s_waitcnt vmcnt(0) lgkmcnt(0)")
        a("s_barrier")
        if STAMP:
            a("s_memrealtime s[16:17]")
        a("v_lshrrev_b32 v1, 6, v0")
        a("s_nop 0")
        a("v_readfirstlane_b32 s6, v1")
        if "ct2" in os.environ.get("EXP", "") and k == 0:
            a("s_cmp_eq_u32 s6, 0")
            a("s_cbranch_scc1 ct2_skip")
            a("s_cmp_gt_u32 s6, 3")
            a("s_cbranch_scc1 gb_wait%d" % k)
            a.code_touch("attn_kernel-8192", "code_end", "b", True, 1)
            a("s_branch gb_wait%d" % k)
            a.label("ct2_skip")
        a("s_cmp_lg_u32 s6, 0")
        a("s_cbranch_scc1 gb_wait%d" % k)
        a("s_load_dwordx2 s[8:9], s[0:1], 96")
        a("s_load_dwordx2 s[24:25], s[0:1], 104")
        a("s_mov_b32 s10, 256")
        a("s_mov_b32 s11, 0x20000")
        a("s_mov_b32 s26, 0x10000000")
        a("s_mov_b32 s27, 0x20000")
        a("s_mov_b64 exec, 1")
        a("v_mov_b32 v1, 1")
        a("v_mov_b32 v2, %d" % (4 * k))
        a("s_waitcnt lgkmcnt(0)")
        tgt = 256
        DF = "df" in os.environ.get("EXP", "") and k == 0
        if DF:
            tgt = 16
            a("s_lshl_b32 s12, s4, 4")
            a("s_add_u32 s12, s12, 8")
            a("v_mov_b32 v3, 1")
            a("v_mov_b32 v4, 0")
            a("buffer_atomic_add v3, v4, s[8:11], s12 offen sc0 sc1")
            a("s_and_b32 s12, s2, 3")
            a("s_lshl_b32 s12, s12, 2")
            a("s_bfe_u32 s13, s2, 0x20003")
            a("s_add_u32 s12, s12, s13")
            a("s_lshl_b32 s12, s12, 4")
            a("s_add_u32 s12, s12, 8")
            a("v_mov_b32 v5, s12")
            a("s_waitcnt vmcnt(0)")
            a("v_readfirstlane_b32 s13, v3")
            a("s_cmp_lg_u32 s13, 15")
            a("s_cbranch_scc1 gb_nr%d" % k)
        elif True:
            tgt = 16
            a("s_and_b32 s12, s2, 15")
            a("v_mov_b32 v3, 1")
            a("v_mov_b32 v4, 0")
            if k > 0:
                a("s_lshl_b32 s12, s12, 12")
                a("s_add_u32 s12, s12, 0x%x" % (CTR + (k - 1) * 65536))
                a("buffer_atomic_add v3, v4, s[24:27], s12 offen sc0 sc1")
            else:
                a("s_lshl_b32 s12, s12, 2")
                a("s_add_u32 s12, s12, 128")
                a("buffer_atomic_add v3, v4, s[8:11], s12 offen sc0 sc1")
            a("s_waitcnt vmcnt(0)")
            a("v_readfirstlane_b32 s13, v3")
            a("s_cmp_lg_u32 s13, 15")
            a("s_cbranch_scc1 gb_nr%d" % k)
        a("buffer_atomic_add v1, v2, s[8:11], 0 offen sc1")
        if True:
            a.label("gb_nr%d" % k)
        a("s_mov_b32 s12, 0")
        if DF:
            a("v_mov_b32 v2, v5")
        a.label("gb_loop%d" % k)
        a("buffer_load_dword v3, v2, s[8:11], 0 offen %s" % os.environ.get("PSC", "sc1"))
        a("s_waitcnt vmcnt(0)")
        a("v_readfirstlane_b32 s13, v3")
        a("s_cmp_ge_u32 s13, %d" % tgt)
        a("s_cbranch_scc1 gb_done%d" % k)
        a("s_add_u32 s12, s12, 1")
        a("s_cmp_gt_u32 s12, 40000")
        a("s_cbranch_scc1 gb_done%d" % k)
        a("s_sleep %s" % os.environ.get("SLEEP", "8"))
        a("s_branch gb_loop%d" % k)
        a.label("gb_done%d" % k)
        if STAMP:
            a("s_memrealtime s[18:19]")
            a("s_mov_b32 s10, 65536")
            a("s_lshl_b32 s20, s2, 4")
            a("s_add_u32 s20, s20, %d" % (4096 + 4096 * k))
            a("s_waitcnt lgkmcnt(0)")
            a("s_mov_b64 exec, 1")
            a("v_mov_b32 v4, s14")
            a("v_mov_b32 v5, s16")
            a("v_mov_b32 v6, s18")
            a("v_mov_b32 v7, s92")
            a("v_mov_b32 v2, 0")
            a("buffer_store_dwordx4 v[4:7], v2, s[8:11], s20 offen")
        a("s_mov_b64 exec, -1")
        a("s_waitcnt lgkmcnt(0)")
        a.label("gb_wait%d" % k)
        a("s_barrier")
        if "inv" in os.environ.get("EXP", ""):
            a("buffer_inv sc1")
        self.phase = k + 1

    inloop = False

    def __call__(self, s):
        EXP = os.environ.get("EXP", "")
        if self.inloop:
            if "nomfma" in EXP and s.startswith("v_mfma"):
                return
            if "novalu" in EXP and s.startswith("v_") and not s.startswith("v_mfma") and not s.startswith("v_cmp") and "0x1ffff" not in s and "0x8000" not in s and not s.startswith("v_mov") and not s.startswith("v_add_u32"):
                return
            if "nolds" in EXP and s.startswith("ds_read"):
                return
            if "nodma" in EXP and s.startswith("buffer_load"):
                return
            if "nobar" in EXP and s.startswith("s_barrier"):
                return
        if "nosc1" in EXP and s.startswith("buffer_store") and s.endswith(" sc1"):
            s = s[:-4]
        self.lines.append("  " + s)

    def label(self, s):
        self.lines.append(s + ":")

    def raw(self, s):
        self.lines.append(s)

    def nop(self, n):
        while n > 0:
            k = min(n, 16)
            self("s_nop %d" % (k - 1))
            n -= k


def vr(a, n):
    return "v[%d:%d]" % (a, a + n - 1)


def sr(a, n):
    return "s[%d:%d]" % (a, a + n - 1)


def gen_proj(a):
    V_LANE = 1
    V_TR = 2
    V_OFFC = 10
    V_OFFN = 11
    V_ST = 12
    V_T0 = 13
    V_B = 16
    V_ACC = 48
    V_A = 112
    V_ROWI = 13
    V_SWZ = 14
    V_T = 15
    V_AOFF = 240

    a.label("mega_kernel")
    a("s_cmp_lt_u32 s2, 256")
    a("s_cbranch_scc1 proj_start")
    a("s_endpgm")
    a.label("proj_start")
    a.ostamp()
    if STAMP:
        a("s_memrealtime s[92:93]")
    a.stamp()
    a("s_load_dwordx2 s[8:9], s[0:1], 96")
    a("s_load_dwordx2 s[82:83], s[0:1], 96")
    a("s_load_dwordx16 s[24:39], s[0:1], 0")
    a("s_load_dwordx4 s[40:43], s[0:1], 64")
    a("s_load_dwordx2 s[44:45], s[0:1], 104")
    EXPF = os.environ.get("EXP", "")
    if "ct1" in EXPF:
        a("s_bfe_u32 s3, s2, 0x20003")
        a("s_cmp_lg_u32 s3, 0")
        a("s_cbranch_scc1 ct1_skip")
        a.code_touch("mega_kernel", "code_end", "a", True, 2)
        a.label("ct1_skip")
    if "tick" in EXPF:
        a("v_lshrrev_b32 v1, 6, v0")
        a("v_lshlrev_b32 v4, 14, v1")
        a("v_add_u32 v4, 0x8000, v4")
        a("v_readfirstlane_b32 s6, v1")
        a("s_getreg_b32 s4, hwreg(HW_REG_XCC_ID)")
        a("s_and_b32 s4, s4, 7")
        if "tkforce" in EXPF:
            a("s_min_u32 s4, s4, 4")
        a("s_mov_b32 s10, 256")
        a("s_mov_b32 s11, 0x20000")
        a("s_lshl_b32 s5, s4, 2")
        a("s_add_u32 s5, s5, 192")
        a("v_mov_b32 v2, s5")
        a("v_mov_b32 v3, 1")
        a("s_cmp_eq_u32 s6, 0")
        a("s_cbranch_scc1 tk_w0")
        a("s_cmp_lg_u32 s6, 7")
        a("s_cbranch_scc1 tk_wait")
        a("s_mov_b64 exec, 1")
        a("s_waitcnt lgkmcnt(0)")
        a("v_subrev_u32 v2, 160, v2")
        a("buffer_atomic_add v3, v2, s[8:11], 0 offen sc1")
        a("s_mov_b64 exec, -1")
        a("s_branch tk_wait")
        a.label("tk_w0")
        a("s_mov_b64 exec, 1")
        a("s_waitcnt lgkmcnt(0)")
        a("buffer_atomic_add v3, v2, s[8:11], 0 offen sc0%s" % (" sc1" if "tkforce" in EXPF or "tkglob" in EXPF else ""))
        a("s_waitcnt vmcnt(0)")
        a("v_readfirstlane_b32 s5, v3")
        a("s_cmp_lt_u32 s5, 32")
        a("s_cbranch_scc1 tk_got")
        a("s_mov_b32 s7, 0")
        a("v_mov_b32 v2, 32")
        a.label("tk_poll")
        a("buffer_load_dwordx4 v[8:11], v2, s[8:11], 0 offen sc1")
        a("buffer_load_dwordx4 v[12:15], v2, s[8:11], 0 offen offset:16 sc1")
        a("s_waitcnt vmcnt(0)")
        a("s_mov_b32 s12, 0")
        for i in range(8):
            a("v_readfirstlane_b32 s%d, v%d" % (48 + i, 8 + i))
            a("s_add_u32 s12, s12, s%d" % (48 + i))
        a("s_cmp_ge_u32 s12, 256")
        a("s_cbranch_scc1 tk_full")
        a("s_add_u32 s7, s7, 1")
        a("s_sleep 8")
        a("s_cmp_lt_u32 s7, 40000")
        a("s_cbranch_scc1 tk_poll")
        a.label("tk_fail")
        a("s_lshr_b32 s5, s2, 3")
        a("s_and_b32 s4, s2, 7")
        a("s_branch tk_got")
        a.label("tk_full")
        a("s_sub_u32 s5, s5, 32")
        for i in range(7):
            a("s_max_u32 s12, s%d, 32" % (48 + i))
            a("s_sub_u32 s12, s12, 32")
            a("s_cmp_gt_u32 s4, %d" % i)
            a("s_cselect_b32 s12, s12, 0")
            a("s_add_u32 s5, s5, s12")
        for i in range(8):
            a("s_min_u32 s12, s%d, 32" % (48 + i))
            a("s_sub_u32 s13, 32, s12")
            a("s_mov_b32 s4, %d" % i)
            a("s_cmp_lt_u32 s5, s13")
            a("s_cbranch_scc1 tk_slot")
            a("s_sub_u32 s5, s5, s13")
        a("s_branch tk_fail")
        a.label("tk_slot")
        a("s_add_u32 s5, s5, s12")
        a.label("tk_got")
        a("s_lshl_b32 s5, s5, 3")
        a("s_add_u32 s5, s5, s4")
        a("s_mov_b64 exec, 0xff")
        a("v_lshlrev_b32 v2, 14, v0")
        a("v_add_u32 v2, 0x8000, v2")
        a("v_mov_b32 v3, s5")
        a("ds_write_b32 v2, v3")
        a("s_mov_b64 exec, -1")
        a("s_waitcnt lgkmcnt(0)")
        a.label("tk_wait")
        a("s_barrier")
        a("ds_read_b32 v3, v4")
        a("s_waitcnt lgkmcnt(0)")
        a("v_readfirstlane_b32 s2, v3")
        a("s_and_b32 s2, s2, 255")
        if STAMP:
            a("s_memrealtime s[96:97]")
            a("s_waitcnt lgkmcnt(0)")
            a("s_mov_b32 s93, s96")
    PM = os.environ.get("PM", "5")
    if PM == "0":
        a("s_lshr_b32 s3, s2, 5")
        a("s_and_b32 s4, s2, 31")
    elif PM == "1":
        a("s_and_b32 s3, s2, 7")
        a("s_lshr_b32 s4, s2, 3")
    elif PM == "2":
        a("s_and_b32 s3, s2, 3")
        a("s_bfe_u32 s4, s2, 0x10003")
        a("s_lshl_b32 s4, s4, 2")
        a("s_or_b32 s3, s3, s4")
        a("s_bfe_u32 s4, s2, 0x10002")
        a("s_lshr_b32 s5, s2, 4")
        a("s_lshl_b32 s5, s5, 1")
        a("s_or_b32 s4, s4, s5")
    elif PM == "3":
        a("s_and_b32 s3, s2, 1")
        a("s_bfe_u32 s4, s2, 0x20003")
        a("s_lshl_b32 s4, s4, 1")
        a("s_or_b32 s3, s3, s4")
        a("s_bfe_u32 s4, s2, 0x20001")
        a("s_lshr_b32 s5, s2, 5")
        a("s_lshl_b32 s5, s5, 2")
        a("s_or_b32 s4, s4, s5")
    elif PM == "4":
        a("s_lshr_b32 s3, s2, 5")
        a("s_bfe_u32 s4, s2, 0x40001")
        a("s_and_b32 s5, s2, 1")
        a("s_lshl_b32 s5, s5, 4")
        a("s_or_b32 s4, s4, s5")
    elif PM == "5":
        a("s_bfe_u32 s3, s2, 0x10001")
        a("s_bfe_u32 s4, s2, 0x20003")
        a("s_lshl_b32 s4, s4, 1")
        a("s_or_b32 s3, s3, s4")
        a("s_bfe_u32 s4, s2, 0x10002")
        a("s_lshr_b32 s5, s2, 5")
        a("s_lshl_b32 s5, s5, 1")
        a("s_or_b32 s4, s4, s5")
        a("s_and_b32 s5, s2, 1")
        a("s_lshl_b32 s5, s5, 4")
        a("s_or_b32 s4, s4, s5")
    elif PM == "6":
        a("s_bfe_u32 s3, s2, 0x30001")
        a("s_lshr_b32 s4, s2, 4")
        a("s_and_b32 s5, s2, 1")
        a("s_lshl_b32 s5, s5, 4")
        a("s_or_b32 s4, s4, s5")
    a("v_lshrrev_b32 v1, 6, v0")
    a("s_nop 0")
    a("v_readfirstlane_b32 s6, v1")
    a("v_and_b32 v1, 63, v0")
    a("s_waitcnt lgkmcnt(0)")
    a.stamp()
    a("s_cmp_lt_u32 s4, 16")
    a("s_cselect_b32 s8, s24, s26")
    a("s_cselect_b32 s9, s25, s27")
    a("s_cselect_b32 s5, 0, 1")
    a("s_and_b32 s4, s4, 15")
    a("s_mov_b32 s10, 0x200000")
    a("s_mov_b32 s11, 0x20000")
    a("s_mov_b32 s16, s44")
    a("s_mov_b32 s17, s45")
    a("s_mov_b32 s18, 0x10000000")
    a("s_mov_b32 s19, 0x20000")
    a("s_mov_b32 s20, s40")
    a("s_mov_b32 s21, s41")
    a("s_mov_b32 s22, 3584")
    a("s_mov_b32 s23, 0x20000")
    a("s_mov_b32 s15, 0x20000")
    a("s_mov_b32 s51, 0x20000")
    a("s_lshl_b32 s58, s6, 12")
    a("s_lshl_b32 s59, s3, 3")
    a("s_add_u32 s59, s59, s6")
    a("v_and_b32 v13, 15, v1")
    a("v_lshlrev_b32 v13, 10, v13")
    a("v_lshrrev_b32 v14, 4, v1")
    a("v_lshlrev_b32 v14, 4, v14")
    a("v_add_u32 v13, v13, v14")
    a("s_movk_i32 s65, 0x4000")
    a("s_lshl_b32 s60, s59, 15")
    a("v_add_u32 v13, s60, v13")
    a("v_mov_b32 v%d, v13" % V_AOFF)

    def aloads(lo, hi):
        for s in range(lo, hi):
            a("buffer_load_dwordx4 %s, v%d, s[8:11], %s offen offset:%d" % (
                vr(V_A + 4 * s, 4), V_AOFF, "s65" if s & 1 else "0", (s >> 1) * 64))

    def aswaps(lo, hi):
        for s in range(lo, hi, 2):
            for j in range(4):
                a("v_permlane16_swap_b32 v%d, v%d" % (V_A + 4 * s + j, V_A + 4 * s + 4 + j))
        a("s_nop 1")
    a("v_bfe_u32 v13, v1, 2, 2")
    a("v_lshrrev_b32 v14, 5, v1")
    a("v_lshl_add_u32 v14, v14, 4, v13")
    a("v_lshlrev_b32 v14, 8, v14")
    a("v_bfe_u32 v15, v1, 4, 1")
    a("v_lshl_add_u32 v14, v15, 5, v14")
    a("v_and_b32 v15, 3, v1")
    a("v_lshl_add_u32 v14, v15, 3, v14")
    a("v_lshlrev_b32 v13, 6, v13")
    for nt in range(4):
        a("v_xor_b32 v15, %d, v13" % (nt << 6))
        a("v_add_u32 v%d, v14, v15" % (V_TR + nt))
        a("v_add_u32 v%d, 0x10000, v%d" % (V_TR + 4 + nt, V_TR + nt))
    a("v_lshlrev_b32 v%d, 4, v1" % V_ST)
    a("v_lshrrev_b32 v13, 4, v1")
    a("v_bfe_u32 v14, v1, 2, 2")
    a("v_xor_b32 v14, v14, v13")
    a("v_lshlrev_b32 v14, 6, v14")
    a("v_and_b32 v15, 3, v1")
    a("v_lshl_add_u32 v14, v15, 4, v14")
    a("s_lshl_b32 s60, s6, 4")
    a("v_add_u32 v13, s60, v13")

    def set_params(which, wlo, whi, nrec, ldw, colexpr_reg):
        base = 12 if which == "cur" else 48
        sl, sc = (52, 53) if which == "cur" else (54, 55)
        voff = V_OFFC if which == "cur" else V_OFFN
        a("s_mov_b32 s%d, s%d" % (base, wlo))
        a("s_mov_b32 s%d, s%d" % (base + 1, whi))
        if isinstance(nrec, str):
            a("s_mov_b32 s%d, %s" % (base + 2, nrec))
        else:
            a("s_mov_b32 s%d, 0x%x" % (base + 2, nrec))
        a("s_mov_b32 s%d, %d" % (sl, ldw))
        a("s_mov_b32 s%d, %s" % (sc, colexpr_reg))
        a("v_mul_lo_u32 v%d, v%d, s%d" % (voff, V_ROWI, sl))
        a("v_add_u32 v%d, v%d, v%d" % (voff, voff, V_SWZ))

    def dma(kc, which, only=None):
        base = 12 if which == "cur" else 48
        sl, sc = (52, 53) if which == "cur" else (54, 55)
        voff = V_OFFC if which == "cur" else V_OFFN
        for i in range(4):
            if only is not None and i != only:
                continue
            a("s_add_u32 m0, s58, %d" % (kc * 32768 + i * 1024))
            a("s_mul_i32 s57, s%d, %d" % (sl, kc * 128 + 4 * i))
            a("s_add_u32 s57, s57, s%d" % sc)
            a("buffer_load_dwordx4 v%d, %s, s57 offen lds" % (voff, sr(base, 4)))

    def reads(kc, s, setidx, tr=False):
        hi = 4 if kc >= 2 else 0
        off = (kc & 1) * 32768 + (s >> 1) * 8192 + (s & 1) * 2048
        if tr:
            for j in range(4):
                off = (kc & 1) * 32768 + (j >> 1) * 8192 + (j & 1) * 2048
                for ird in range(2):
                    a("ds_read_b64_tr_b16 %s, v%d offset:%d" % (
                        vr(V_B + setidx * 16 + j * 4 + ird * 2, 2), V_TR + hi + s, off + ird * 1024))
            return
        for nt in range(4):
            for ird in range(2):
                a("ds_read_b64_tr_b16 %s, v%d offset:%d" % (
                    vr(V_B + setidx * 16 + nt * 4 + ird * 2, 2), V_TR + hi + nt, off + ird * 1024))

    def epi_part(kind, nt):
        if kind == "Q":
            for i in range(16):
                a("v_mul_f32 v%d, v%d, v%d" % (V_ACC + 16 * nt + i, V_LNR + 1, V_ACC + 16 * nt + i))
        for t in range(2):
            d = V_ACC + 16 * nt + 8 * t
            for p in range(4):
                x0 = V_ACC + 16 * nt + 8 * t + 2 * p
                a("v_cvt_pk_bf16_f32 v%d, v%d, v%d" % (d + p, x0, x0 + 1))
            a("buffer_store_dwordx4 %s, v%d, s[16:19], s%d offen offset:%d sc1" % (
                vr(d, 4), V_ST, 90 if nt < 2 else 91, ((nt * 2 + t) & 3) * 1024))
        a("s_nop 1")

    SPR = os.environ.get("SPR", "")
    sprc = [0]

    TRE = "tre" in os.environ.get("EXP", "")

    def compute(kc, kind, extra=None, prev=None, hooks=None, late=None, defer=False):
        extra = list(extra or [])
        per = -(-len(extra) // 32)
        slots = {}
        if late:
            if SPR == "a":
                for i, f in enumerate(late):
                    slots.setdefault((min(2 * i + 1, 7), 0 if i < 4 else 2), []).append((f, None))
            elif SPR == "e":
                for i, f in enumerate(late):
                    slots.setdefault((min(2 * i, 6), 1 if i < 4 else 3), []).append((f, None))
            elif SPR == "f":
                for i, f in enumerate(late):
                    slots.setdefault((i + 1, 0), []).append((f, None))
            elif SPR == "g":
                for i, f in enumerate(late):
                    if prev and kc == 0:
                        slots.setdefault((min(4 + i, 7), 0 if i < 4 else 2), []).append((f, None))
                    else:
                        slots.setdefault((min(2 * i + 1, 7), 0 if i < 4 else 2), []).append((f, None))
            elif SPR == "b":
                for i, f in enumerate(late):
                    slots.setdefault((min(2 * i + 1, 7), 0 if i < 4 else 2), []).append((f, 1))
                    slots.setdefault((min(2 * i, 6), 1 if i < 4 else 3), []).append((f, 0))
            elif SPR == "c":
                for i, f in enumerate(late):
                    slots.setdefault((i + 1, 0), []).append((f, 0))
                    slots.setdefault((i + 1, 2), []).append((f, 1))
        for s in range(8):
            if hooks and s in hooks:
                hooks[s]()
            tre = TRE and prev and kc == 0
            if s < 7:
                reads(kc, s + 1, (s + 1) & 1, tre and s + 1 < 4)
            else:
                reads((kc + 1) & 3, 0, 0, TRE and defer and kc == 3)
            a("s_waitcnt lgkmcnt(8)")
            ks = kc * 8 + s
            for nt in range(4):
                acc = vr(V_ACC + 16 * nt, 16)
                wf = vr(V_B + (s & 1) * 16 + nt * 4, 4)
                af = vr(V_A + 4 * ks, 4)
                c = "0" if ks == 0 else acc
                if tre and s < 4:
                    acc = vr(V_ACC + 16 * s, 16)
                    af = vr(V_A + 4 * nt, 4)
                    c = "0" if nt == 0 else acc
                    if nt == 0:
                        epi_part(prev, s)
                elif prev and ks == 0:
                    epi_part(prev, nt)
                if kind == "V":
                    a("v_mfma_f32_32x32x16_bf16 %s, %s, %s, %s" % (acc, af, wf, c))
                else:
                    a("v_mfma_f32_32x32x16_bf16 %s, %s, %s, %s" % (acc, wf, af, c))
                for f, half in slots.get((s, nt), []):
                    if half is None:
                        f()
                    else:
                        sprc[0] += 1
                        a("s_cmp_lt_u32 s6, 4")
                        a("s_cbranch_scc%d spr%d" % (half, sprc[0]))
                        f()
                        a.label("spr%d" % sprc[0])
                for x in extra[:per]:
                    a(x)
                extra = extra[per:]
        assert not extra

    def aload_ops(lo, hi):
        ops = []
        for s in range(lo, hi):
            ops.append("buffer_load_dwordx4 %s, v%d, s[8:11], %s offen offset:%d" % (
                vr(V_A + 4 * s, 4), V_AOFF, "s65" if s & 1 else "0", (s >> 1) * 64))
            ops += ["s_nop 0"] * 3
        return ops

    V_LNM = 244
    V_LNR = 246
    V_LNT = 248

    def norm_ops(q):
        ops = []
        for i in range(32 * q, 32 * q + 32):
            r = V_A + i
            t = 248 + 2 * (i % 3)
            ops.append("v_lshlrev_b32 v%d, 16, v%d" % (t, r))
            ops.append("v_and_b32 v%d, 0xffff0000, v%d" % (t + 1, r))
            ops.append("v_pk_add_f32 %s, %s, %s neg_lo:[0,1] neg_hi:[0,1]" % (vr(t, 2), vr(t, 2), vr(V_LNM, 2)))
            ops.append("v_cvt_pk_bf16_f32 v%d, v%d, v%d" % (r, t, t + 1))
        return ops

    def epilogue(kind):
        if kind == "H":
            a("s_waitcnt lgkmcnt(0)")
            a("v_lshrrev_b32 v15, 5, v1")
            a("v_lshlrev_b32 v15, 3, v15")
            for nt in range(4):
                for q in range(4):
                    a("buffer_load_dwordx2 %s, v15, s[20:23], s53 offen offset:%d" % (
                        vr(V_B + (nt * 4 + q) * 2, 2), 64 * nt + 16 * q))
            a.nop(12)
            for i in range(64):
                a("v_mul_f32 v%d, v%d, v%d" % (V_ACC + i, V_LNR, V_ACC + i))
            a("s_waitcnt vmcnt(0)")
            for nt in range(4):
                for q in range(4):
                    r0 = V_ACC + 16 * nt + 4 * q
                    b0 = V_B + (nt * 4 + q) * 2
                    for p in range(2):
                        x0, x1 = r0 + 2 * p, r0 + 2 * p + 1
                        bb = b0 + p
                        a("v_cvt_pk_bf16_f32 v15, v%d, v%d" % (x0, x1))
                        a("v_lshlrev_b32 v%d, 16, v15" % x0)
                        a("v_and_b32 v%d, 0xffff0000, v15" % x1)
                        a("v_lshlrev_b32 v15, 16, v%d" % bb)
                        a("v_add_f32 v%d, v%d, v15" % (x0, x0))
                        a("v_and_b32 v15, 0xffff0000, v%d" % bb)
                        a("v_add_f32 v%d, v%d, v15" % (x1, x1))
                        a("v_cvt_pk_bf16_f32 v15, v%d, v%d" % (x0, x1))
                        a("v_lshlrev_b32 v%d, 16, v15" % x0)
                        a("v_and_b32 v%d, 0xffff0000, v15" % x1)
                        a("v_max_f32 v%d, 0, v%d" % (x0, x0))
                        a("v_max_f32 v%d, 0, v%d" % (x1, x1))
                        a("v_mul_f32 v%d, v%d, v%d" % (x0, x0, x0))
                        a("v_mul_f32 v%d, v%d, v%d" % (x1, x1, x1))
        else:
            a.nop(12)
        if kind == "Q":
            for i in range(64):
                a("v_mul_f32 v%d, v%d, v%d" % (V_ACC + i, V_LNR + 1, V_ACC + i))
        a("s_add_u32 s67, s56, 4096")
        for nt in range(4):
            for t in range(2):
                d = V_ACC + 16 * nt + 8 * t
                for p in range(4):
                    x0 = V_ACC + 16 * nt + 8 * t + 2 * p
                    a("v_cvt_pk_bf16_f32 v%d, v%d, v%d" % (d + p, x0, x0 + 1))
                a("buffer_store_dwordx4 %s, v%d, s[16:19], s%d offen offset:%d sc1" % (
                    vr(d, 4), V_ST, 56 if nt < 2 else 67, ((nt * 2 + t) & 3) * 1024))
        a.nop(2)

    def W(n):
        a("s_waitcnt vmcnt(%d)" % n)

    sigc = [0]

    def sig_kq():
        if not EARLY:
            return
        sigc[0] += 1
        a("s_cmp_lg_u32 s6, 0")
        a("s_cbranch_scc1 sigkq%d" % sigc[0])
        a("s_mov_b32 s84, s82")
        a("s_mov_b32 s85, s83")
        a("s_mov_b32 s86, 256")
        a("s_mov_b32 s87, 0x20000")
        a("s_mov_b64 exec, 1")
        a("v_mov_b32 v252, 1")
        a("v_mov_b32 v253, 8")
        a("buffer_atomic_add v252, v253, s[84:87], 0 offen sc1")
        a("s_mov_b64 exec, -1")
        a.label("sigkq%d" % sigc[0])

    def ckv_first(kc):
        B = lambda: a("s_barrier")
        if kc == 0:
            return (lambda: None), {
                1: lambda: (W(12 + NP0), a_read(2, 4)),
                2: lambda: a_dma(5, 4),
                4: lambda: (W(8), a_read(3, 2)),
                6: lambda: (B(), dma(2, "cur"))}
        if kc == 1:
            return (lambda: (B(), a_dma(6, 0))), {
                1: lambda: (W(12), a_read(4, 3)),
                3: lambda: (W(8), a_read(5, 4)),
                6: lambda: (W(4), B(), a_dma(7, 4), dma(3, "cur"))}
        if kc == 2:
            return (lambda: (B(), dma(1, "next"))), {
                1: lambda: (W(12), a_read(6, 0)),
                3: lambda: (W(8), a_read(7, 4)),
                6: lambda: (W(4), B(), dma(0, "next"))}
        return (lambda: (B(), dma(2, "next"))), {
            7: lambda: (W(4), B())}

    PFS = os.environ.get("PFS", "")
    pfh = [0, 0]

    def pfsched(typ, ci):
        if not PFS:
            if ci == 1:
                return True
            if ci == 2:
                return 2 if NPF == 1 else 0
            return False
        last = 2 if typ == "x" else 3
        r = [None] * 4
        if ci == 1 and PFS[0] == "x":
            if typ == "x":
                r[0] = (3, 0, 1)
                r[1] = (4, 0, 1)
        elif ci == 1:
            n = int(PFS[0])
            for p in range(n):
                r[p * (4 // n) if PFS[2] == "s" else p] = (1, p, n)
        if ci == last:
            n = int(PFS[1])
            for p in range(n):
                r[p + int(PFS[3])] = (2, p, n)
        return r if any(r) else None

    def chunk(kind, set_next, set_out, prev=None, defer=False, first=None, pf=False, sig=False):
        waits = (4, 12, 12, 4) if prev else (8, 4, 4, 4)
        if pf:
            waits = (4, 12 + NPF, 12 + NPF, 4)
        if PFS:
            pfl = pf if pf else [None] * 4
            hist = pfh + [1 if x else 0 for x in pfl]
            waits = tuple(((4, 12, 4 if SPR else 12, 4) if prev else (8, 4, 4, 4))[k] + hist[k] + hist[k + 1] for k in range(4))
            pfh[:] = hist[-2:]
        if prev:
            a("s_mov_b32 s90, s56")
            a("s_add_u32 s91, s56, 4096")
        set_next()
        set_out()
        for kc in range(4):
            extra = hooks = late = None
            if first == "ckv":
                st, hooks = ckv_first(kc)
                st()
            else:
                a("s_waitcnt vmcnt(%d)" % waits[kc])
                a("s_barrier")
                if SPR:
                    assert PFS
                    late = []
                    if kc >= 1 or not first:
                        for i in range(4):
                            late.append(lambda i=i: dma(3, "cur", i) if kc < 1 else dma(kc - 1, "next", i))
                    if pfl[kc]:
                        late.append(lambda: prefetch(*pfl[kc]))
                elif kc < 1:
                    if not first:
                        dma(kc + 3, "cur")
                    if pf and not PFS:
                        prefetch(pf)
                else:
                    dma(kc - 1, "next")
                if PFS and pfl[kc] and not SPR:
                    prefetch(*pfl[kc])
                if sig and kc == 3:
                    sig_kq()
            if first == "xn" and kc < 3:
                extra = norm_ops(kc + 1)
            if kc == 0:
                a.stamp()
            compute(kc, kind, extra, prev, hooks, late, defer)
        a.stamp()
        if not defer:
            epilogue(kind)
        a.stamp()
        for i in range(3):
            a("s_mov_b32 s%d, s%d" % (12 + i, 48 + i))
        a("s_mov_b32 s52, s54")
        a("s_mov_b32 s53, s55")
        a("v_mov_b32 v%d, v%d" % (V_OFFC, V_OFFN))

    a("s_lshl_b32 s61, s4, 8")
    a("s_mov_b32 s46, s61")
    if "rev" in EXPF:
        a("s_and_b32 s47, s3, 1")
        a("s_lshl_b32 s47, s47, 12")
        a("s_xor_b32 s61, s61, s47")
    a("s_xor_b32 s62, s61, 4096")
    a("s_lshl_b32 s63, s61, 11")
    a("s_lshl_b32 s64, s59, 13")
    a("s_add_u32 s63, s63, s64")
    a("s_xor_b32 s64, s63, 0x800000")
    V_AD, V_AR = 240, 241
    a("v_and_b32 v24, 7, v1")
    a("v_lshrrev_b32 v25, 3, v1")
    a("v_lshrrev_b32 v26, 1, v25")
    a("v_xor_b32 v26, v24, v26")
    a("v_lshlrev_b32 v26, 4, v26")
    a("v_lshl_add_u32 v26, v25, 10, v26")
    a("s_lshl_b32 s60, s59, 15")
    a("v_add_u32 v%d, s60, v26" % V_AD)
    a("s_lshl_b32 s66, s6, 12")
    a("v_and_b32 v24, 31, v1")
    a("v_lshrrev_b32 v25, 5, v1")
    a("v_bfe_u32 v26, v24, 1, 3")
    a("v_lshlrev_b32 v27, 1, v25")
    a("v_xor_b32 v26, v26, v27")
    a("v_lshlrev_b32 v26, 4, v26")
    a("v_lshl_add_u32 v26, v24, 7, v26")
    a("v_add_u32 v%d, s66, v26" % V_AR)
    a("v_add_u32 v%d, 0x10000, v%d" % (V_AR + 1, V_AR))
    a("v_add_u32 v%d, 0x20000, v%d" % (V_AR + 2, V_AR))

    def a_dma(e, reg):
        for j in range(4):
            a("v_xor_b32 v%d, %d, v%d" % (248 + j, 64 * (j & 1), V_AD))
            a("s_add_u32 m0, s66, %d" % (reg * 32768 + 1024 * j))
            a("s_movk_i32 s67, %d" % (8192 * j + 128 * e))
            a("buffer_load_dwordx4 v%d, s[8:11], s67 offen lds" % (248 + j))

    def a_read(e, reg):
        for s_ in range(4):
            c0 = (4 * (s_ >> 1) + (s_ & 1)) * 16
            a("v_xor_b32 v%d, %d, v%d" % (248 + s_, c0, V_AR + (reg >> 1)))
            a("ds_read_b128 %s, v%d offset:%d" % (vr(V_A + 4 * (4 * e + s_), 4), 248 + s_, (reg & 1) * 32768))

    def L0():
        a("s_waitcnt lgkmcnt(0)")

    def stats(q):
        for i in range(32 * q, 32 * q + 32):
            r = V_A + i
            t = 20 + 2 * (i & 3)
            a("v_lshlrev_b32 v%d, 16, v%d" % (t, r))
            a("v_and_b32 v%d, 0xffff0000, v%d" % (t + 1, r))
            a("v_pk_add_f32 v[16:17], v[16:17], %s" % vr(t, 2))
            a("v_pk_fma_f32 v[18:19], %s, %s, v[18:19]" % (vr(t, 2), vr(t, 2)))

    NPF = 4 if "pfall" in EXPF else (2 if "pfv2" in EXPF else (0 if "nopf" in EXPF else 1))

    def prefetch(stage=1, part=0, nparts=1):
        if not NPF:
            return
        if stage >= 3:
            a("s_lshr_b32 s88, s2, 1")
            a("s_lshl_b32 s88, s88, 3")
            a("s_add_u32 s88, s88, s6")
            if stage == 4:
                a("s_sub_u32 s88, 1023, s88")
            a("v_lshlrev_b32 v255, 6, v1")
            src = 32 if stage == 3 else 38
            a("s_mov_b32 s84, s%d" % src)
            a("s_mov_b32 s85, s%d" % (src + 1))
            a("s_mov_b32 s86, 0x%x" % (0x400000 if stage == 3 else 0x1c0000))
            a("s_mov_b32 s87, 0x20000")
            a("s_lshl_b32 s89, s88, 12")
            a("buffer_load_dword v254, v255, s[84:87], s89 offen")
            return
        if NPF == 1:
            big, small = (32, 38) if stage == 1 else (34, 42)
            a("s_lshl_b32 s88, s2, 3")
            a("s_add_u32 s88, s88, s6")
            a("v_lshlrev_b32 v255, 6, v1")
            a("s_cmp_lt_u32 s88, 1024")
            a("s_cselect_b32 s84, s%d, s%d" % (big, small))
            a("s_cselect_b32 s85, s%d, s%d" % (big + 1, small + 1))
            a("s_cselect_b32 s86, s7, 0x1c0000")
            a("s_mov_b32 s87, 0x20000")
            a("s_and_b32 s89, s88, 1023")
            a("s_lshl_b32 s89, s89, 12")
            if nparts > 1:
                w = 64 // nparts
                m = ((1 << w) - 1) << (w * part)
                a("s_mov_b32 exec_lo, 0x%x" % (m & 0xffffffff))
                a("s_mov_b32 exec_hi, 0x%x" % (m >> 32))
            a("buffer_load_dword v254, v255, s[84:87], s89 offen")
            if nparts > 1:
                a("s_mov_b64 exec, -1")
            return
        if NPF == 2:
            a("s_lshl_b32 s88, s2, 3")
            a("s_add_u32 s88, s88, s6")
            a("v_lshlrev_b32 v255, 7, v1")
            a("s_lshr_b32 s89, s88, 9")
            a("s_mov_b32 s84, s32")
            a("s_mov_b32 s85, s33")
            a("s_mov_b32 s86, 0x400000")
            for m, src in ((1, 34), (2, 38), (3, 42)):
                a("s_cmp_eq_u32 s89, %d" % m)
                a("s_cselect_b32 s84, s%d, s84" % src)
                a("s_cselect_b32 s85, s%d, s85" % (src + 1))
            a("s_cmp_ge_u32 s89, 2")
            a("s_cselect_b32 s86, 0x1c0000, s86")
            a("s_mov_b32 s87, 0x20000")
            a("s_and_b32 s89, s88, 511")
            a("s_lshl_b32 s89, s89, 13")
            a("buffer_load_dword v254, v255, s[84:87], s89 offen")
            a("buffer_load_dword v254, v255, s[84:87], s89 offen offset:64")
            return
        a("s_lshl_b32 s88, s2, 3")
        a("s_add_u32 s88, s88, s6")
        a("v_lshlrev_b32 v255, 7, v1")
        a("s_lshr_b32 s89, s88, 9")
        a("s_mov_b32 s84, s28")
        a("s_mov_b32 s85, s29")
        for m in range(1, 4):
            a("s_cmp_eq_u32 s89, %d" % m)
            a("s_cselect_b32 s84, s%d, s84" % (28 + 2 * m))
            a("s_cselect_b32 s85, s%d, s85" % (29 + 2 * m))
        a("s_mov_b32 s86, 0x400000")
        a("s_mov_b32 s87, 0x20000")
        a("s_and_b32 s89, s88, 511")
        a("s_lshl_b32 s89, s89, 13")
        a("buffer_load_dword v254, v255, s[84:87], s89 offen")
        a("buffer_load_dword v254, v255, s[84:87], s89 offen offset:64")
        a("s_cmp_lt_u32 s88, 224")
        a("s_cselect_b32 s84, s38, s42")
        a("s_cselect_b32 s85, s39, s43")
        a("s_cselect_b32 s89, 0, 224")
        a("s_sub_u32 s89, s88, s89")
        a("s_lshl_b32 s89, s89, 13")
        a("s_cmp_lt_u32 s88, 448")
        a("s_cselect_b32 s86, 0x1c0000, 0")
        a("buffer_load_dword v254, v255, s[84:87], s89 offen")
        a("buffer_load_dword v254, v255, s[84:87], s89 offen offset:64")

    NP0 = int(os.environ.get("NP0", "0"))

    def prefetch0():
        if not NP0:
            return
        a("s_lshl_b32 s88, s2, 3")
        a("s_add_u32 s88, s88, s6")
        a("v_lshlrev_b32 v255, 7, v1")
        a("s_lshr_b32 s89, s88, 9")
        a("s_mov_b32 s84, s28")
        a("s_mov_b32 s85, s29")
        for m in range(1, 4):
            src = 28 + 2 * m if m < 3 else 38
            a("s_cmp_eq_u32 s89, %d" % m)
            a("s_cselect_b32 s84, s%d, s84" % src)
            a("s_cselect_b32 s85, s%d, s85" % (src + 1))
        a("s_cselect_b32 s86, 0x1c0000, s7")
        a("s_mov_b32 s87, 0x20000")
        a("s_and_b32 s89, s88, 511")
        a("s_lshl_b32 s89, s89, 13")
        for i in range(NP0):
            a("buffer_load_dword v254, v255, s[84:87], s89 offen offset:%d" % (64 * i))

    a("s_mov_b32 s7, 0x400000")
    a("s_cmp_eq_u32 s5, 1")
    a("s_cbranch_scc1 proj_ckv")
    set_params("cur", 28, 29, 0x400000, 8192, "s61")
    a_dma(0, 2)
    a_dma(1, 3)
    a_dma(2, 4)
    dma(0, "cur")
    prefetch0()
    a("v_mov_b32 v16, 0")
    a("v_mov_b32 v17, 0")
    a("v_mov_b32 v18, 0")
    a("v_mov_b32 v19, 0")
    W(12 + NP0); a_read(0, 2); L0(); a_dma(3, 2)
    W(12 + NP0); a_read(1, 3); L0(); a_dma(4, 3)
    W(12 + NP0); a_read(2, 4); L0(); a_dma(5, 4)
    dma(1, "cur")
    stats(0)
    W(12); a_read(3, 2); L0(); a_dma(6, 2)
    W(12); a_read(4, 3); L0(); a_dma(7, 3)
    stats(1)
    W(12); a_read(5, 4); L0()
    stats(2)
    W(4); a_read(6, 2)
    W(0); a_read(7, 3); L0()
    a("s_barrier")
    dma(2, "cur")
    dma(3, "cur")
    stats(3)
    a.stamp()
    a("v_add_f32 v16, v16, v17")
    a("v_add_f32 v18, v18, v19")
    a("v_mov_b32 v17, v16")
    a("v_mov_b32 v19, v18")
    a.nop(2)
    a("v_permlane32_swap_b32 v16, v17")
    a("v_permlane32_swap_b32 v18, v19")
    a.nop(2)
    a("v_add_f32 v16, v16, v17")
    a("v_add_f32 v18, v18, v19")
    a("v_mul_f32 v16, 0x3b000000, v16")
    a("v_mul_f32 v18, 0x3b000000, v18")
    a("v_fma_f32 v18, -v16, v16, v18")
    a("v_max_f32 v18, 0, v18")
    a("v_cvt_pk_bf16_f32 v16, v16, v18")
    a("v_and_b32 v18, 0xffff0000, v16")
    a("v_lshlrev_b32 v16, 16, v16")
    a("v_add_f32 v18, 0x3727c5ac, v18")
    a("v_cvt_pk_bf16_f32 v18, v18, v18")
    a("v_lshlrev_b32 v18, 16, v18")
    a("v_sqrt_f32 v18, v18")
    a("s_nop 0")
    a("v_cvt_pk_bf16_f32 v18, v18, v18")
    a("v_lshlrev_b32 v18, 16, v18")
    a("v_rcp_f32 v18, v18")
    a("v_mov_b32 v%d, v16" % V_LNM)
    a("v_mov_b32 v%d, v16" % (V_LNM + 1))
    a("v_mov_b32 v%d, v18" % V_LNR)
    a("v_mul_f32 v%d, 0x%08x, v18" % (V_LNR + 1, QSC))
    reads(0, 0, 0)
    for x in norm_ops(0):
        a(x)
    a.stamp()

    def out_q0():
        a("s_add_u32 s56, s63, 0x%x" % QF)

    def out_q1():
        a("s_add_u32 s56, s64, 0x%x" % QF)

    def next_q1():
        set_params("next", 28, 29, 0x400000, 8192, "s62")

    def next_h():
        a("s_cmp_lt_u32 s4, 14")
        a("s_cselect_b32 s66, 0x1c0000, 0")
        set_params("next", 38, 39, "s66", 3584, "s46")

    def next_none():
        a("s_mov_b32 s66, 0")
        set_params("next", 38, 39, "s66", 3584, "s46")

    def out_h():
        a("s_mul_i32 s56, s59, %d" % AF_BLK)
        a("s_lshl_b32 s66, s4, 13")
        a("s_add_u32 s56, s56, s66")
        a("s_add_u32 s56, s56, 0x%x" % (AF + 256 * 1024))

    chunk("Q", next_q1, out_q0, None, True, "xn")
    chunk("Q", next_h, out_q1, "Q", True, None, pfsched("x", 1))
    a("s_cmp_lt_u32 s4, 14")
    a("s_cbranch_scc1 proj_h")
    epilogue("Q")
    if EARLY:
        a("s_waitcnt vmcnt(0)")
        a("s_barrier")
        sig_kq()
    if "pf2" in EXPF:
        a("s_sub_u32 s88, s4, 14")
        a("s_lshl_b32 s89, s3, 1")
        a("s_add_u32 s88, s88, s89")
        a("s_lshl_b32 s88, s88, 3")
        a("s_add_u32 s88, s88, s6")
        a("v_lshlrev_b32 v255, 7, v1")
        a("s_mov_b32 s84, s34")
        a("s_mov_b32 s85, s35")
        a("s_mov_b32 s86, 0x400000")
        a("s_mov_b32 s87, 0x20000")
        a("s_lshl_b32 s89, s88, 15")
        for i in range(4):
            a("buffer_load_dword v254, v255, s[84:87], s89 offen")
            a("buffer_load_dword v254, v255, s[84:87], s89 offen offset:64")
            a("s_add_u32 s89, s89, 8192")
        a("s_mov_b32 s84, s42")
        a("s_mov_b32 s85, s43")
        a("s_mov_b32 s86, 0x1c0000")
        a("s_lshl_b32 s89, s88, 14")
        for i in range(2):
            a("buffer_load_dword v254, v255, s[84:87], s89 offen")
            a("buffer_load_dword v254, v255, s[84:87], s89 offen offset:64")
            a("s_add_u32 s89, s89, 8192")
    a("s_branch proj_end")
    a.label("proj_h")
    chunk("H", next_none, out_h, "Q", False, None, pfsched("x", 2), True)
    pfh[:] = [0, 0]
    a.stamp_flush(0)
    a("s_branch proj_end")
    a.nst = 2

    a.label("proj_ckv")
    set_params("cur", 30, 31, 0x400000, 8192, "s61")
    dma(0, "cur")
    a_dma(0, 2)
    a_dma(1, 3)
    a_dma(2, 4)
    dma(1, "cur")
    prefetch0()
    W(12 + NP0); a_read(0, 2); L0(); a_dma(3, 2)
    W(12 + NP0); a_read(1, 3); L0(); a_dma(4, 3)
    a("s_barrier")
    reads(0, 0, 0)

    def out_k0():
        a("s_add_u32 s56, s63, 0x%x" % KF)

    def out_k1():
        a("s_add_u32 s56, s64, 0x%x" % KF)

    def out_v0():
        a("s_add_u32 s56, s63, 0x%x" % VF)

    def out_v1():
        a("s_add_u32 s56, s64, 0x%x" % VF)

    chunk("QK", lambda: set_params("next", 30, 31, 0x400000, 8192, "s62"), out_k0, None, True, "ckv")
    chunk("QK", lambda: set_params("next", 32, 33, 0x400000, 8192, "s61"), out_k1, "QK", True, None, pfsched("c", 1))
    chunk("V", lambda: set_params("next", 32, 33, 0x400000, 8192, "s62"), out_v0, "QK", True, None, pfsched("c", 2), True)
    chunk("V", next_none, out_v1, "V", False, None, pfsched("c", 3))
    a.stamp_flush(int(STAMP) if STAMP else 0)
    a.label("proj_end")
    a.ostamp()
    if not EARLY:
        a.gridbar(0)
        a.ostamp()


def descriptor(a, name, vgpr, sgpr, accum):
    a.raw(".p2align 6")
    a.raw(".amdhsa_kernel %s" % name)
    a.raw("  .amdhsa_next_free_vgpr %d" % vgpr)
    a.raw("  .amdhsa_next_free_sgpr %d" % sgpr)
    a.raw("  .amdhsa_accum_offset %d" % accum)
    a.raw("  .amdhsa_group_segment_fixed_size 0")
    a.raw("  .amdhsa_kernarg_size 112")
    a.raw("  .amdhsa_user_sgpr_count 2")
    a.raw("  .amdhsa_user_sgpr_kernarg_segment_ptr 1")
    a.raw("  .amdhsa_system_sgpr_workgroup_id_x 1")
    a.raw(".end_amdhsa_kernel")


def main():
    from gen_rest import gen_attn, gen_ogemm, gen_reduce
    a = Asm()
    hdr = open("cdna_kernels/%s.s.ref" % NAME).read().split("\n")
    for l in hdr:
        if l.startswith(";") and "@launch" not in l:
            a.raw(l)
        elif not l.startswith(";"):
            break
    a.raw("; @launch kernel=mega_kernel grid=(256,1,1) block=(512,1,1) lds=163840")
    a.raw('.amdgcn_target "amdgcn-amd-amdhsa--gfx950"')
    a.raw(".text")
    a.raw(".globl mega_kernel")
    a.raw(".p2align 8")
    a.raw(".type mega_kernel,@function")
    gen_proj(a)
    gen_attn(a)
    gen_ogemm(a)
    gen_reduce(a)
    a.label("code_end")
    a.raw('.section .rodata,"a"')
    descriptor(a, "mega_kernel", 256, 102, 256)
    out = sys.argv[1] if len(sys.argv) > 1 else "cdna_kernels/%s.s" % NAME
    open(out, "w").write("\n".join(a.lines) + "\n")


if __name__ == "__main__":
    main()
```

```python
from gen import vr, sr, QF, KF, VF, AF, AF_BLK, PART, CTR, EARLY
import math
import os
EXP = os.environ.get("EXP", "")
SENT = "sent" in EXP
MST = os.environ.get("MST")

SCALE_LOG2E = (128 ** -0.5) * math.log2(math.e)


def f32hex(x):
    import struct
    return "0x%08x" % struct.unpack("<I", struct.pack("<f", x))[0]


def interleave(a, mf, fl):
    n = len(mf)
    pos = 0
    for i in range(n):
        a(mf[i])
        end = (len(fl) * (i + 1)) // n
        while pos < end:
            a(fl[pos])
            pos += 1


def gen_attn(a):
    V_LDS = 2
    V_DMA = 3
    V_LG = 4
    V_NEG = 5
    V_RDV = 6
    V_RDK = 7
    V_M = 8
    V_L = 9
    V_T = 10
    V_Q = 16
    V_O = 48
    V_S = 112
    V_P = 144
    V_K = 152
    V_V = 184
    S_MASK = 36
    S_LB = 35
    S_THR = 34
    V_C = 216
    V_E = 232
    NBUF = 5
    LDSZ = NBUF * 32768

    a.label("attn_kernel")
    if not EARLY:
        a.stamp()
    a("s_load_dwordx2 s[8:9], s[0:1], 104")
    if "df" in EXP:
        a("s_load_dwordx2 s[86:87], s[0:1], 96")
        a("v_mov_b32 v255, 0")
    a("v_lshrrev_b32 v1, 6, v0")
    a("s_nop 0")
    a("v_readfirstlane_b32 s6, v1")
    a("v_and_b32 v1, 63, v0")
    a("s_lshr_b32 s22, s6, 2")
    a("s_and_b32 s23, s6, 3")
    a("s_and_b32 s3, s2, 7")
    a("s_lshl_b32 s3, s3, 2")
    a("s_lshr_b32 s4, s2, 3")
    a("s_and_b32 s4, s4, 3")
    a("s_add_u32 s3, s3, s4")
    a("s_lshr_b32 s4, s2, 5")
    a("s_sub_u32 s5, 15, s4")
    a("s_mov_b32 s24, 0")
    a("s_mov_b32 s77, 1000000")
    a("s_mov_b32 s10, 0x10000000")
    a("s_mov_b32 s11, 0x20000")
    a("s_lshl_b32 s12, s3, 19")
    a("v_lshlrev_b32 v%d, 4, v1" % V_LDS)
    a("s_lshl_b32 s13, s23, 11")
    a("s_lshl_b32 s25, s22, 13")
    a("s_add_u32 s25, s25, s13")
    a("v_add_u32 v%d, s25, v%d" % (V_DMA, V_LDS))
    a("s_lshl_b32 s26, s22, 14")
    a("v_add_u32 v%d, s26, v%d" % (V_LG, V_LDS))
    a("s_add_u32 s27, s26, s13")
    a("v_and_b32 v12, 31, v1")
    a("v_lshrrev_b32 v13, 5, v1")
    a("v_lshlrev_b32 v13, 2, v13")
    a("v_sub_u32 v12, v12, v13")
    for r in range(16):
        kl = 8 * (r >> 2) + (r & 3)
        a("v_cmp_le_i32 %s, %d, v12" % (sr(S_MASK + 2 * r, 2), kl))
    a("v_mov_b32 v%d, 0xf149f2ca" % V_NEG)
    a("s_waitcnt lgkmcnt(0)")

    def bump(sreg):
        return ["s_add_u32 s%d, s%d, 32768" % (sreg, sreg),
                "s_cmp_ge_u32 s%d, %d" % (sreg, LDSZ),
                "s_cselect_b32 s%d, 0, s%d" % (sreg, sreg)]

    def dma_ops():
        ops = []
        ops.append("s_add_u32 m0, s27, s28")
        ops.append("s_cmp_eq_u32 s78, s79")
        ops.append("s_cselect_b32 s16, s80, s16")
        ops.append("s_cselect_b32 s17, s81, s17")
        ops.append("s_add_u32 s78, s78, 1")
        for i in range(2):
            ops.append("buffer_load_dwordx4 v%d, s[8:11], s16 offen offset:%d lds" % (V_DMA, i * 1024))
        ops.append("s_add_u32 m0, m0, 8192")
        ops.append("s_add_u32 s16, s16, 16384")
        for i in range(2):
            ops.append("buffer_load_dwordx4 v%d, s[8:11], s17 offen offset:%d lds" % (V_DMA, i * 1024))
        ops.append("s_add_u32 s17, s17, 16384")
        ops += bump(28)
        return ops

    def dma():
        for x in dma_ops():
            a(x)

    def tstamp(k):
        if not os.environ.get("STAMP"):
            return
        a("s_memtime s[98:99]")
        a("s_waitcnt lgkmcnt(0)")
        a("s_cmp_eq_u32 s24, 0")
        a("s_cselect_b32 s%d, s98, s%d" % (69 + k, 69 + k))
        a("s_cselect_b32 s%d, s%d, s98" % (73 + k, 73 + k))

    def kread_ops():
        return ["ds_read_b128 %s, v%d offset:%d" % (vr(V_K + 4 * s, 4), V_RDK, s * 1024) for s in range(8)] + \
            bump(33) + ["v_add_u32 v%d, s33, v%d" % (V_RDK, V_LG)]

    def vread_ops():
        return ["ds_read_b128 %s, v%d offset:%d" % (vr(V_V + 4 * i, 4), V_RDV, 8192 + i * 1024) for i in range(8)] + \
            bump(32) + ["v_add_u32 v%d, s32, v%d" % (V_RDV, V_LG)]

    def qk_ops(sp):
        ops = []
        S = V_S + 16 * sp
        for s in range(8):
            c = vr(V_C, 16) if s == 0 else vr(S, 16)
            ops.append("v_mfma_f32_32x32x16_bf16 %s, %s, %s, %s" % (vr(S, 16), vr(V_K + 4 * s, 4), vr(V_Q + 4 * s, 4), c))
        return ops

    def pv_ops():
        ops = []
        for t in range(2):
            for dt in range(4):
                o = vr(V_O + 16 * dt, 16)
                ops.append("v_mfma_f32_32x32x16_bf16 %s, %s, %s, %s" % (o, vr(V_V + 4 * (dt * 2 + t), 4), vr(V_P + 4 * t, 4), o))
        return ops

    def max_ops(S, t0, t1):
        return ["v_max3_f32 v%d, v%d, v%d, v%d" % (t0, S, S + 1, S + 2),
                "v_max3_f32 v%d, v%d, v%d, v%d" % (t1, S + 3, S + 4, S + 5),
                "v_max3_f32 v%d, v%d, v%d, v%d" % (t0, t0, S + 6, S + 7),
                "v_max3_f32 v%d, v%d, v%d, v%d" % (t1, t1, S + 8, S + 9),
                "v_max3_f32 v%d, v%d, v%d, v%d" % (t0, t0, S + 10, S + 11),
                "v_max3_f32 v%d, v%d, v%d, v%d" % (t1, t1, S + 12, S + 13),
                "v_max3_f32 v%d, v%d, v%d, v%d" % (t0, t0, S + 14, S + 15),
                "v_max_f32 v%d, v%d, v%d" % (t0, t0, t1),
                "v_mov_b32 v%d, v%d" % (t1, t0)]

    def soft_ops(S, t2, t3):
        P = V_P
        E = V_E
        vb = []
        for r in range(16):
            vb.append("v_exp_f32 v%d, v%d" % (E + r, S + r))
            if r >= 3 and r % 2 == 1:
                q = r - 3
                vb.append("v_cvt_pk_bf16_f32 v%d, v%d, v%d" % (P + q // 2, E + q, E + q + 1))
                if q == 0:
                    vb.append("v_add_f32 v%d, v%d, v%d" % (t2, E, E + 1))
                elif q == 2:
                    vb.append("v_add_f32 v%d, v%d, v%d" % (t3, E + 2, E + 3))
                else:
                    vb.append("v_add_f32 v%d, v%d, v%d" % (t2, t2, E + q))
                    vb.append("v_add_f32 v%d, v%d, v%d" % (t3, t3, E + q + 1))
        vb.append("v_add_f32 v%d, v%d, v%d" % (t2, t2, t3))
        vb.append("v_cvt_pk_bf16_f32 v%d, v%d, v%d" % (P + 7, E + 14, E + 15))
        vb.append("v_add_f32 v%d, v%d, v%d" % (t3, E + 14, E + 15))
        vb.append("v_add_f32 v%d, v%d, v%d" % (t2, t2, t3))
        return vb

    cnt = [0]
    rare = []

    def mask(L, S):
        a("s_lshl_b32 s29, s18, 1")
        a("s_add_u32 s29, s29, s22")
        a("s_cmp_lt_u32 s29, s30")
        a("s_cbranch_scc1 %s_nomask" % L)
        a("s_cmp_eq_u32 s29, s30")
        a("s_cbranch_scc1 %s_tri" % L)
        for r in range(16):
            a("v_mov_b32 v%d, v%d" % (S + r, V_NEG))
        a("s_branch %s_nomask" % L)
        a.label("%s_tri" % L)
        for r in range(16):
            a("v_cndmask_b32 v%d, v%d, v%d, %s" % (S + r, V_NEG, S + r, sr(S_MASK + 2 * r, 2)))
        a.label("%s_nomask" % L)

    def phaseA(sp, diag, last=False):
        cnt[0] += 1
        L = "attn_it%d" % cnt[0]
        S = V_S + 16 * sp
        T = V_T
        if diag:
            mask(L, S)
        qk = qk_ops(sp ^ 1)
        S2 = V_S + 16 * (sp ^ 1)
        so = soft_ops(S, T + 3, T + 4)
        vrd = vread_ops()
        mix = []
        step = len(so) // len(vrd)
        k = 0
        for i, x in enumerate(so):
            mix.append(x)
            if i % step == step - 1 and k < len(vrd):
                mix.append(vrd[k])
                k += 1
        mix += vrd[k:]
        if last:
            for x in mix:
                a(x)
        else:
            interleave(a, qk, mix)
        a("v_cmp_lt_f32 vcc, s%d, v%d" % (S_THR, T + 3))
        a("s_nop 1")
        a("s_cbranch_vccnz %s_rs" % L)
        a.label("%s_nors" % L)
        a("v_add_f32 v%d, v%d, v%d" % (V_L, V_L, T + 3))
        blk = ["%s_rs:" % L]
        if os.environ.get("STAMP"):
            blk.append("s_add_u32 s77, s77, 1")
        blk += max_ops(S, T, T + 1)
        blk += ["s_nop 1",
                "v_permlane32_swap_b32 v%d, v%d" % (T, T + 1),
                "s_nop 0",
                "v_max3_f32 v%d, v%d, v%d, s%d" % (T, T, T + 1, S_LB),
                "v_exp_f32 v%d, -v%d" % (T + 1, T),
                "v_add_f32 v%d, v%d, v%d" % (V_M, V_M, T),
                "v_min_f32 v%d, 0x7149f2ca, v%d" % (T + 1, T + 1),
                "s_mov_b32 s%d, 0x53800000" % S_THR,
                "s_mov_b32 s%d, 0" % S_LB,
                "v_mul_f32 v%d, v%d, v%d" % (V_L, V_L, T + 1)]
        for i in range(64):
            blk.append("v_mul_f32 v%d, v%d, v%d" % (V_O + i, V_O + i, T + 1))
        for r in range(16):
            blk.append("v_sub_f32 v%d, v%d, v%d" % (S + r, S + r, T))
        blk += so
        for r in range(16):
            blk.append("v_sub_f32 v%d, v%d, v%d" % (V_C + r, V_C + r, T))
        for r in range(16 if not last else 0):
            blk.append("v_sub_f32 v%d, v%d, v%d" % (S2 + r, S2 + r, T))
        blk.append("s_branch %s_nors" % L)
        rare.append(blk)
        a("s_add_u32 s18, s18, 1")

    def phaseC(mode="n"):
        a("s_waitcnt lgkmcnt(0)")
        a("s_nop 0")
        if mode == "n":
            f = kread_ops() + dma_ops()
        elif mode == "k":
            f = kread_ops()
        else:
            k = int(mode[1])
            f = ["buffer_load_dwordx4 %s, v%d, s[8:11], s%d offen offset:%d" % (
                vr(V_Q + 16 * k + 4 * s_, 4), V_LDS, 82 + k, s_ * 1024) for s_ in range(4)]
        interleave(a, pv_ops(), f)

    def bar():
        a("s_waitcnt vmcnt(4) lgkmcnt(0)")
        a("s_barrier")

    def tile_front(qt):
        a("s_lshl_b32 s15, s%d, 2" % qt)
        a("s_add_u32 s15, s15, s23")
        a("s_lshl_b32 s15, s15, 13")
        a("s_add_u32 s15, s15, s12")
        for k in range(2):
            for s in range(4):
                a("buffer_load_dwordx4 %s, v%d, s[8:11], s15 offen offset:%d" % (vr(V_Q + 16 * k + 4 * s, 4), V_LDS, s * 1024))
            a("s_add_u32 s15, s15, 4096")
        a("s_add_u32 s16, s12, 0x%x" % KF)
        a("s_add_u32 s17, s12, 0x%x" % VF)
        a("s_mov_b32 s28, 98304")
        a("s_mov_b32 s78, 0")
        a("s_mov_b32 s79, -1")
        dma()
        dma()
        dma()
        dma()

    if EARLY:
        ring = [98304, 131072, 0, 32768]
        a.eb_pre()
        a("s_lshl_b32 s15, s5, 2")
        a("s_add_u32 s15, s15, s23")
        a("s_lshl_b32 s15, s15, 13")
        a("s_add_u32 s15, s15, s12")
        a("s_add_u32 s16, s12, 0x%x" % KF)
        a("s_add_u32 s17, s12, 0x%x" % VF)
        for st in range(4):
            a("s_add_u32 m0, s27, %d" % ring[st])
            a("s_nop 0")
            for i in range(2):
                a("buffer_load_dwordx4 v%d, s[8:11], s16 offen offset:%d lds" % (V_DMA, i * 1024))
            a("s_add_u32 s16, s16, 16384")
            if st == 0:
                for k in range(2):
                    for s_ in range(4):
                        a("buffer_load_dwordx4 %s, v%d, s[8:11], s15 offen offset:%d" % (vr(V_Q + 16 * k + 4 * s_, 4), V_LDS, s_ * 1024))
                    a("s_add_u32 s15, s15, 4096")
        a.eb_post()
        a.stamp()
        for st in range(4):
            a("s_add_u32 m0, s27, %d" % (ring[st] + 8192))
            a("s_nop 0")
            for i in range(2):
                a("buffer_load_dwordx4 v%d, s[8:11], s17 offen offset:%d lds" % (V_DMA, i * 1024))
            a("s_add_u32 s17, s17, 16384")
        a("s_mov_b32 s28, 65536")
        a("s_mov_b32 s78, 4")
    else:
        tile_front(5)
    a("s_mov_b32 s32, 98304")
    a("s_add_u32 s80, s12, 0x%x" % KF)
    a("s_add_u32 s81, s12, 0x%x" % VF)
    a("s_lshl_b32 s82, s4, 2")
    a("s_add_u32 s82, s82, s23")
    a("s_lshl_b32 s82, s82, 13")
    a("s_add_u32 s82, s82, s12")
    a("s_add_u32 s83, s82, 4096")
    a.label("attn_tile")
    a("s_lshl_b32 s14, s5, 2")
    a("s_add_u32 s14, s14, s23")
    a("s_mov_b32 s30, s14")
    a("s_lshl_b32 s79, s5, 1")
    a("s_add_u32 s79, s79, 2")
    a("s_mov_b32 s33, s32")
    a("v_add_u32 v%d, s32, v%d" % (V_RDV, V_LG))
    a("v_add_u32 v%d, s32, v%d" % (V_RDK, V_LG))
    a("v_mov_b32 v%d, 0" % V_M)
    a("s_mov_b32 s%d, 0xbf800000" % S_THR)
    a("s_mov_b32 s%d, 0xff7fffff" % S_LB)
    for i in range(16):
        a("v_mov_b32 v%d, 0" % (V_C + i))
    a("v_mov_b32 v%d, 0" % V_L)
    for i in range(64):
        a("v_mov_b32 v%d, 0" % (V_O + i))
    a("s_lshl_b32 s19, s5, 1")
    a("s_mov_b32 s18, 0")
    a("s_waitcnt vmcnt(8)")
    a("s_cmp_eq_u32 s24, 0")
    a("s_cbranch_scc1 attn_w2")
    a("s_waitcnt vmcnt(%d)" % (12 if SENT else 4))
    a.label("attn_w2")
    a("s_barrier")
    if "df" in EXP:
        a("global_load_dword v254, v255, s[86:87] sc1")
    if not MST:
        tstamp(0)
    for x in kread_ops():
        a(x)
    a("s_cmp_eq_u32 s24, 0")
    a("s_cbranch_scc1 attn_w3")
    a("s_mov_b32 s78, 2")
    dma()
    dma()
    a.label("attn_w3")
    a("s_waitcnt lgkmcnt(0)")
    for x in qk_ops(0):
        a(x)
    for x in kread_ops():
        a(x)
    if "noinit" not in EXP:
        a.nop(8)
        S, T = V_S, V_T
        a("s_cmp_lg_u32 s5, 0")
        a("s_cbranch_scc1 attn_im_nomask")
        mask("attn_im", S)
        for x in max_ops(S, T, T + 1):
            a(x)
        a("s_nop 1")
        a("v_permlane32_swap_b32 v%d, v%d" % (T, T + 1))
        a("s_nop 0")
        a("v_max_f32 v%d, v%d, v%d" % (T, T, T + 1))
        a("s_mov_b32 s%d, 0x53800000" % S_THR)
        a("s_mov_b32 s%d, 0" % S_LB)
        a("v_mov_b32 v%d, v%d" % (V_M, T))
        for r in range(16):
            a("v_sub_f32 v%d, v%d, v%d" % (S + r, S + r, T))
        for r in range(16):
            a("v_sub_f32 v%d, 0, v%d" % (V_C + r, T))
    a("s_cmp_eq_u32 s22, 1")
    a("s_cbranch_scc1 attn_g1")
    a("s_cmp_eq_u32 s5, 0")
    a("s_cbranch_scc1 attn_diag0")
    a.label("attn_loop0")
    a.inloop = "og" not in EXP
    for sp in range(2):
        bar()
        a("s_waitcnt lgkmcnt(0)")
        phaseA(sp, False)
        phaseC()
    a.inloop = False
    a("s_cmp_lt_u32 s18, s19")
    a("s_cbranch_scc1 attn_loop0")
    a.label("attn_diag0")
    if not MST:
        tstamp(1)
    for sp in range(2):
        bar()
        a("s_waitcnt lgkmcnt(0)")
        phaseA(sp, True, sp == 1)
        phaseC("q%d" % sp)
    tstamp(2)
    a("s_branch attn_merge")
    a.label("attn_g1")
    bar()
    a("s_waitcnt lgkmcnt(0)")
    a("s_cmp_eq_u32 s5, 0")
    a("s_cbranch_scc1 attn_diag1a")
    dma()
    phaseA(0, False)
    a.label("attn_loop1")
    a.inloop = "og" not in EXP
    bar()
    phaseC()
    a("s_waitcnt lgkmcnt(0)")
    phaseA(1, False)
    a.inloop = False
    a("s_cmp_ge_u32 s18, s19")
    a("s_cbranch_scc1 attn_diag1")
    a.inloop = "og" not in EXP
    bar()
    phaseC()
    a("s_waitcnt lgkmcnt(0)")
    phaseA(0, False)
    a.inloop = False
    a("s_branch attn_loop1")
    a.label("attn_diag1")
    bar()
    phaseC("k")
    a("s_waitcnt lgkmcnt(0)")
    a.label("attn_diag1a")
    phaseA(0, True)
    bar()
    phaseC("q0")
    phaseA(1, True, True)
    phaseC("q1")
    a.label("attn_merge")

    def slot(wreg, vdst):
        a("s_mul_i32 s29, s%d, 11" % wreg)
        a("s_lshr_b32 s29, s29, 5")
        a("s_mul_i32 s84, s29, 3")
        a("s_sub_u32 s84, s%d, s84" % wreg)
        a("s_lshl_b32 s29, s29, 15")
        a("s_add_u32 s29, s29, s28")
        a("s_sub_u32 s85, s29, %d" % LDSZ)
        a("s_cmp_ge_u32 s29, %d" % LDSZ)
        a("s_cselect_b32 s29, s85, s29")
        a("s_mul_i32 s84, s84, 9216")
        a("s_add_u32 s29, s29, s84")
        a("v_add_u32 v%d, s29, v%d" % (vdst, V_LDS))
    slot(6, 12)
    a("s_xor_b32 s31, s6, 4")
    slot(31, 13)
    a("s_waitcnt lgkmcnt(0)")
    a("s_barrier")
    if MST:
        tstamp(0)
    a.nop(4)
    for g in range(2):
        if g == 0:
            a("s_cmp_eq_u32 s22, 1")
            a("s_cbranch_scc1 attn_mg1")
        else:
            a.label("attn_mg1")
        keep, send = V_O + 32 * g, V_O + 32 * (1 - g)
        for i in range(8):
            a("ds_write_b128 v12, %s offset:%d" % (vr(send + 4 * i, 4), i * 1024))
        a("ds_write_b64 v12, v[%d:%d] offset:8192" % (V_M, V_L))
        a("s_waitcnt lgkmcnt(0)")
        a("s_barrier")
        if MST and g == 0:
            tstamp(1)
        a("ds_read_b64 v[14:15], v13 offset:8192")
        for i in range(8):
            a("ds_read_b128 %s, v13 offset:%d" % (vr(V_K + 4 * i, 4), i * 1024))
        a("s_waitcnt lgkmcnt(8)")
        a("v_max_f32 v10, v%d, v14" % V_M)
        a("v_sub_f32 v11, v%d, v10" % V_M)
        a("v_sub_f32 v10, v14, v10")
        a("v_exp_f32 v11, v11")
        a("v_exp_f32 v10, v10")
        a.nop(1)
        a("v_mul_f32 v%d, v%d, v11" % (V_L, V_L))
        a("v_fma_f32 v%d, v15, v10, v%d" % (V_L, V_L))
        a("v_mov_b32 v14, v%d" % V_L)
        a.nop(2)
        a("v_permlane32_swap_b32 v%d, v14" % V_L)
        a.nop(1)
        a("v_add_f32 v14, v14, v%d" % V_L)
        a("v_rcp_f32 v14, v14")
        a.nop(1)
        a("v_mul_f32 v11, v11, v14")
        a("v_mul_f32 v10, v10, v14")
        a("s_mul_i32 s20, s14, %d" % AF_BLK)
        a("s_lshl_b32 s21, s3, 13")
        a("s_add_u32 s20, s20, s21")
        a("s_add_u32 s20, s20, 0x%x" % (AF + 4096 * g))
        a("s_waitcnt lgkmcnt(0)")
        for i in range(32):
            a("v_mul_f32 v%d, v%d, v10" % (V_K + i, V_K + i))
            a("v_fma_f32 v%d, v%d, v11, v%d" % (V_K + i, keep + i, V_K + i))
        for k in range(4):
            d = V_V + k * 4
            for p in range(4):
                x0 = V_K + 8 * k + 2 * p
                a("v_cvt_pk_bf16_f32 v%d, v%d, v%d" % (d + p, x0, x0 + 1))
            a("buffer_store_dwordx4 %s, v%d, s[8:11], s20 offen offset:%d sc1" % (vr(d, 4), V_LDS, k * 1024))
        if g == 0:
            a("s_branch attn_mgdone")
    a.label("attn_mgdone")
    if SENT:
        a("s_cmp_eq_u32 s24, 1")
        a("s_cbranch_scc1 attn_noclr")
        a("s_lshl_b32 s20, s2, 16")
        a("s_lshl_b32 s21, s6, 13")
        a("s_add_u32 s20, s20, s21")
        a("s_add_u32 s20, s20, 0x%x" % PART)
        a("s_add_u32 s21, s20, 4096")
        for k in range(4):
            a("v_mov_b32 v%d, -1" % (V_K + k))
        for k in range(8):
            a("buffer_store_dwordx4 %s, v%d, s[8:11], s%d offen offset:%d sc1" % (vr(V_K, 4), V_LDS, 20 if k < 4 else 21, (k & 3) * 1024))
        a.label("attn_noclr")
    tstamp(3)
    a.nst = 10
    a("s_cmp_eq_u32 s24, 1")
    a("s_cbranch_scc1 attn_fin")
    a("s_mov_b32 s24, 1")
    a("s_mov_b32 s5, s4")
    for r in (80, 81, 82, 83):
        a("s_mov_b32 s%d, 0x10000000" % r)
    a("s_branch attn_tile")
    a.label("attn_fin")
    a.stamp_flush(0)
    a.label("attn_end")
    a("s_branch attn_after")
    for blk in rare:
        a.label(blk[0][:-1])
        for x in blk[1:]:
            a(x)
    a.label("attn_after")
    a.ostamp()
    if "ov" in EXP:
        a("s_waitcnt vmcnt(4) lgkmcnt(0)")
    else:
        a("s_waitcnt vmcnt(0) lgkmcnt(0)")
    if "df" in EXP:
        a("s_mov_b32 s88, 0")
        a.label("df_chk")
        a("v_readfirstlane_b32 s89, v254")
        a("s_cmp_ge_u32 s89, 16")
        a("s_cbranch_scc1 df_ok")
        a("s_add_u32 s88, s88, 1")
        a("s_cmp_gt_u32 s88, 40000")
        a("s_cbranch_scc1 df_ok")
        a("s_sleep 8")
        a("global_load_dword v254, v255, s[86:87] sc1")
        a("s_waitcnt vmcnt(0)")
        a("s_branch df_chk")
        a.label("df_ok")
    a("s_barrier")
    a.phase = 2


def gen_ogemm(a):
    V_AL = 2
    V_TR = 4
    V_DA = 8
    V_DB = 9
    V_ST = 11
    V_F = 16
    V_ACC = 48
    NST = 23
    a.label("ogemm_kernel")
    a.stamp()
    a("s_load_dwordx2 s[8:9], s[0:1], 104")
    a("s_load_dwordx2 s[24:25], s[0:1], 40")
    a("s_load_dwordx2 s[26:27], s[0:1], 72")
    a("v_lshrrev_b32 v1, 6, v0")
    a("s_nop 0")
    a("v_readfirstlane_b32 s6, v1")
    a("v_and_b32 v1, 63, v0")
    a("s_lshr_b32 s3, s2, 4")
    a("s_and_b32 s4, s2, 1")
    a("s_lshl_b32 s4, s4, 1")
    a("s_bfe_u32 s5, s2, 0x10003")
    a("s_or_b32 s4, s4, s5")
    a("s_bfe_u32 s5, s2, 0x20001")
    if "same" in EXP:
        a("s_mov_b32 s3, 0")
        a("s_mov_b32 s4, 0")
        a("s_mov_b32 s5, 0")
    if "map1" not in EXP:
        a("s_and_b32 s3, s2, 1")
        a("s_lshl_b32 s3, s3, 3")
        a("s_bfe_u32 s4, s2, 0x30003")
        a("s_or_b32 s3, s3, s4")
        a("s_lshr_b32 s4, s2, 6")
    a("s_mov_b32 s10, 0x10000000")
    a("s_mov_b32 s11, 0x20000")
    a("s_mov_b32 s15, 0x20000")
    a("s_lshr_b32 s30, s6, 2")
    a("s_lshr_b32 s31, s6, 1")
    a("s_and_b32 s31, s31, 1")
    a("s_and_b32 s32, s6, 1")
    a("v_lshlrev_b32 v%d, 4, v1" % V_ST)
    a("s_lshl_b32 s33, s31, 13")
    a("s_lshl_b32 s34, s30, 11")
    a("s_add_u32 s33, s33, s34")
    a("v_add_u32 v%d, s33, v%d" % (V_AL, V_ST))
    a("v_add_u32 v%d, 0x10000, v%d" % (V_AL + 1, V_AL))
    a("v_bfe_u32 v12, v1, 2, 2")
    a("v_lshrrev_b32 v13, 5, v1")
    a("v_lshl_add_u32 v13, v13, 2, v12")
    a("v_lshlrev_b32 v13, 8, v13")
    a("v_bfe_u32 v14, v1, 4, 1")
    a("v_lshl_add_u32 v13, v14, 5, v13")
    a("v_and_b32 v14, 3, v1")
    a("v_lshl_add_u32 v13, v14, 3, v13")
    a("s_lshl_b32 s33, s30, 13")
    a("s_add_u32 s33, s33, 16384")
    a("v_add_u32 v13, s33, v13")
    a("v_lshlrev_b32 v12, 6, v12")
    a("s_lshl_b32 s34, s32, 7")
    for ntl in range(2):
        a("s_add_u32 s35, s34, %d" % (ntl << 6))
        a("v_xor_b32 v14, s35, v12")
        a("v_add_u32 v%d, v13, v14" % (V_TR + ntl))
        a("v_add_u32 v%d, 0x10000, v%d" % (V_TR + 2 + ntl, V_TR + ntl))
    a("s_lshr_b32 s33, s6, 1")
    a("s_lshl_b32 s34, s3, 2")
    a("s_add_u32 s34, s34, s33")
    a("s_mul_i32 s34, s34, %d" % AF_BLK)
    a("s_lshl_b32 s35, s32, 11")
    a("s_add_u32 s34, s34, s35")
    a("s_add_u32 s34, s34, 0x%x" % AF)
    a("v_add_u32 v%d, s34, v%d" % (V_DA, V_ST))
    a("s_lshl_b32 s36, s6, 11")
    a("v_lshrrev_b32 v12, 4, v1")
    a("v_bfe_u32 v13, v1, 2, 2")
    a("v_xor_b32 v13, v13, v12")
    a("v_lshlrev_b32 v13, 6, v13")
    a("v_and_b32 v14, 3, v1")
    a("v_lshl_add_u32 v13, v14, 4, v13")
    a("s_lshl_b32 s33, s6, 3")
    a("v_add_u32 v12, s33, v12")
    a("v_lshlrev_b32 v12, 10, v12")
    a("v_add_u32 v12, v12, v13")
    a("s_lshl_b32 s33, s4, 8")
    a("v_add_u32 v%d, s33, v12" % V_DB)
    a("v_add_u32 v%d, 3072, v%d" % (V_DB + 1, V_DB))
    a("s_mov_b32 s42, 0x1c0000")
    a("s_mul_i32 s37, s5, 7")
    a("s_add_u32 s37, s37, 64")
    a("s_lshl_b32 s44, s5, 4")
    a("s_mov_b32 s43, 0")
    a("s_waitcnt lgkmcnt(0)")

    def dma_parts(buf):
        p0 = ["s_cmp_lt_u32 s37, 64",
              "s_cselect_b32 s12, s24, s26",
              "s_cselect_b32 s13, s25, s27",
              "s_cselect_b32 s14, 0x400000, s42",
              "s_cselect_b32 s39, 0, 64",
              "s_sub_u32 s39, s37, s39",
              "s_lshl_b32 s39, s39, 16",
              "s_lshl_b32 s40, s37, 12",
              "s_cmp_lt_u32 s43, %d" % NST,
              "s_cselect_b32 s14, s14, 0",
              "s_cselect_b32 s40, s40, 0x10000000",
              "s_add_u32 s37, s37, 1",
              "s_add_u32 s43, s43, 1",
              "s_cmp_eq_u32 s43, 7",
              "s_cselect_b32 s37, s44, s37",
              "s_add_u32 m0, s36, %d" % (buf * 32768),
              "s_nop 0",
              "buffer_load_dwordx4 v%d, s[8:11], s40 offen offset:0 lds" % V_DA]
        p1 = ["buffer_load_dwordx4 v%d, s[8:11], s40 offen offset:1024 lds" % V_DA]
        p2 = ["s_add_u32 m0, s36, %d" % (buf * 32768 + 16384),
              "s_nop 0",
              "buffer_load_dwordx4 v%d, s[12:15], s39 offen offset:0 lds" % V_DB]
        p3 = ["buffer_load_dwordx4 v%d, s[12:15], s39 offen offset:1024 lds" % (V_DB + 1)]
        return [p0, p1, p2, p3]

    def dma(buf):
        for p in dma_parts(buf):
            for x in p:
                a(x)

    def reads(buf, sl, st):
        hi = 1 if buf >= 2 else 0
        bo = (buf & 1) * 32768
        f = V_F + st * 16
        for mbl in range(2):
            a("ds_read_b128 %s, v%d offset:%d" % (vr(f + 4 * mbl, 4), V_AL + hi, bo + mbl * 4096 + sl * 1024))
        for ntl in range(2):
            for ird in range(2):
                a("ds_read_b64_tr_b16 %s, v%d offset:%d" % (
                    vr(f + 8 + 4 * ntl + 2 * ird, 2), V_TR + 2 * hi + ntl, bo + sl * 4096 + ird * 2048))

    def mfmas(st, first, ins=None):
        f = V_F + st * 16
        for mbl in range(2):
            for ntl in range(2):
                acc = vr(V_ACC + 16 * (mbl * 2 + ntl), 16)
                c = "0" if first else acc
                a("v_mfma_f32_32x32x16_bf16 %s, %s, %s, %s" % (acc, vr(f + 8 + 4 * ntl, 4), vr(f + 4 * mbl, 4), c))
                for x in (ins or {}).get(mbl * 2 + ntl, []):
                    a(x)

    dma(0)
    dma(1)
    dma(2)
    for i in range(64):
        a("v_mov_b32 v%d, 0" % (V_ACC + i))
    def owg():
        a("s_lshl_b32 s49, s3, 2")
        a("s_add_u32 s49, s49, s4")
        a("s_lshl_b32 s45, s49, 4")
        a("s_lshl_b32 s46, s5, 2")
        a("s_add_u32 s45, s45, s46")

    if "xh" in EXP:
        owg()
        reduce_pre(a, 1)
        a("s_waitcnt lgkmcnt(0)")
    if "ov" in EXP:
        a("s_waitcnt vmcnt(12)")
        a("s_barrier")
    a("s_cmp_lg_u32 s6, 0")
    a("s_cbranch_scc1 ogemm_nosig")
    a.gb_signal(1, "ov" in EXP)
    a.label("ogemm_nosig")
    a("s_mov_b32 s41, 0")
    a("s_waitcnt vmcnt(8)")
    a("s_barrier")
    a.stamp()
    reads(0, 0, 0)

    def body(buf, hook=None, check=True):
        a("s_waitcnt vmcnt(4)")
        a("s_barrier")
        reads(buf, 1, 1)
        a("s_waitcnt lgkmcnt(6)")
        OSP = os.environ.get("OSP", "")
        P = dma_parts((buf + 3) & 3)
        if OSP == "a" and not hook:
            mfmas(0, False, {0: P[0], 2: P[1]})
            reads((buf + 1) & 3, 0, 0)
            a("s_waitcnt lgkmcnt(6)")
            mfmas(1, False, {0: P[2], 2: P[3]})
        elif OSP == "b" and not hook:
            mfmas(0, False, {0: P[0], 1: P[1], 2: P[2], 3: P[3]})
            reads((buf + 1) & 3, 0, 0)
            a("s_waitcnt lgkmcnt(6)")
            mfmas(1, False)
        elif OSP:
            mfmas(0, False)
            reads((buf + 1) & 3, 0, 0)
            if hook:
                hook()
            a("s_waitcnt lgkmcnt(6)")
            mfmas(1, False, {0: P[0], 1: P[1], 2: P[2], 3: P[3]})
        else:
            mfmas(0, False)
            reads((buf + 1) & 3, 0, 0)
            if hook:
                hook()
            dma((buf + 3) & 3)
            a("s_waitcnt lgkmcnt(6)")
            mfmas(1, False)
        a("s_add_u32 s41, s41, 1")
        if check:
            a("s_cmp_ge_u32 s41, %d" % NST)
            a("s_cbranch_scc1 ogemm_done")

    def pollhook():
        if "xh" in EXP:
            reduce_pre(a, 2)
        a("s_cmp_lg_u32 s6, 0")
        a("s_cbranch_scc1 ogemm_nopoll")
        a.gb_poll(1)
        a.label("ogemm_nopoll")
        a("s_barrier")
        a.stamp()

    def sighook():
        a("s_cmp_lg_u32 s6, 0")
        a("s_cbranch_scc1 ogemm_nosig2")
        a.gb_signal2(1)
        a.label("ogemm_nosig2")

    for it in range(8):
        body(it & 3, pollhook if it == 4 else (sighook if it == 1 and "ov" in EXP else None), False)
    a.label("ogemm_loop")
    a.inloop = "og" in EXP
    for buf in range(4):
        body(buf)
    a("s_branch ogemm_loop")
    a.inloop = False
    a.label("ogemm_done")
    a.ostamp()
    a.stamp()
    a("s_waitcnt vmcnt(0) lgkmcnt(0)")
    a("s_barrier")
    a.nop(12)
    a("s_and_b32 s33, s6, 3")
    a("s_lshl_b32 s33, s33, 14")
    a("s_lshl_b32 s34, s6, 13")
    a("v_add_u32 v12, s34, v%d" % V_ST)
    a("s_xor_b32 s34, s34, 0x8000")
    a("v_add_u32 v13, s34, v%d" % V_ST)
    a("s_lshl_b32 s34, s3, 2")
    a("s_add_u32 s34, s34, s4")
    a("s_lshl_b32 s34, s34, 16")
    a("s_add_u32 s34, s34, s33")
    a("s_lshl_b32 s35, s5, 22")
    a("s_add_u32 s34, s34, s35")
    a("s_add_u32 s34, s34, 0x%x" % PART)
    a("s_cmp_eq_u32 s30, 0")
    a("s_cbranch_scc1 ogemm_g0")
    for g in (1, 0):
        if g == 0:
            a.label("ogemm_g0")
        keep, send = V_ACC + 32 * g, V_ACC + 32 * (1 - g)
        for i in range(8):
            a("ds_write_b128 v12, %s offset:%d" % (vr(send + 4 * i, 4), i * 1024))
        a("s_waitcnt lgkmcnt(0)")
        a("s_barrier")
        for i in range(8):
            a("ds_read_b128 %s, v13 offset:%d" % (vr(112 + 4 * i, 4), i * 1024))
        a("s_add_u32 s34, s34, %d" % (8192 * g))
        for i in range(8):
            a("s_waitcnt lgkmcnt(%d)" % (7 - i))
            for k in range(4):
                a("v_add_f32 v%d, v%d, v%d" % (keep + 4 * i + k, keep + 4 * i + k, 112 + 4 * i + k))
            if i == 4:
                a("s_add_u32 s34, s34, 4096")
            a("buffer_store_dwordx4 %s, v%d, s[8:11], s34 offen offset:%d sc1" % (vr(keep + 4 * i, 4), V_ST, (i & 3) * 1024))
        if g == 1:
            a("s_branch ogemm_end")
    a.stamp()
    a.stamp_flush(0)
    a.label("ogemm_end")
    if "xh" not in EXP:
        owg()
        reduce_pre(a)
    if SENT:
        a.phase = 3
        return
    a("s_waitcnt vmcnt(0) lgkmcnt(0)")
    a("s_barrier")
    a("s_cmp_lg_u32 s6, 0")
    a("s_cbranch_scc1 tb_wait")
    a("s_add_u32 s46, s49, 32")
    a("s_lshl_b32 s46, s46, 12")
    a("s_add_u32 s46, s46, 0x%x" % CTR)
    a("s_mov_b64 exec, 1")
    a("v_mov_b32 v12, 1")
    a("v_mov_b32 v13, 0")
    a("buffer_atomic_add v12, v13, s[8:11], s46 offen sc1")
    a("s_mov_b32 s47, 0")
    a.label("tb_loop")
    a("buffer_load_dword v14, v13, s[8:11], s46 offen sc1")
    a("s_waitcnt vmcnt(0)")
    a("v_readfirstlane_b32 s48, v14")
    a("s_cmp_ge_u32 s48, 4")
    a("s_cbranch_scc1 tb_done")
    a("s_add_u32 s47, s47, 1")
    a("s_cmp_gt_u32 s47, 40000")
    a("s_cbranch_scc1 tb_done")
    a("s_sleep 4")
    a("s_branch tb_loop")
    a.label("tb_done")
    a("s_mov_b64 exec, -1")
    a.label("tb_wait")
    a("s_barrier")
    a.phase = 3


RB = 176


def reduce_pre(a, part=None):
    if part == 2:
        for j in range(2):
            B = RB + 4 + 32 * j
            a("buffer_load_dwordx2 %s, v%d, s[52:55], 0 offen" % (vr(B + 16, 2), B + 26))
            a("buffer_load_dwordx2 %s, v%d, s[56:59], 0 offen" % (vr(B + 18, 2), B + 27))
        return
    a("s_load_dwordx2 s[52:53], s[0:1], 0")
    a("s_load_dwordx2 s[56:57], s[0:1], 80")
    a("s_load_dwordx2 s[60:61], s[0:1], 88")
    a("s_mov_b32 s54, 0x200000")
    a("s_mov_b32 s55, 0x20000")
    a("s_mov_b32 s58, 1024")
    a("s_mov_b32 s59, 0x20000")
    a("s_mov_b32 s62, 0x200000")
    a("s_mov_b32 s63, 0x20000")
    T = RB + 70
    a("s_lshr_b32 s23, s6, 2")
    a("v_and_b32 v%d, 255, v0" % T)
    a("s_add_u32 s50, s45, s23")
    a("v_lshlrev_b32 v%d, 4, v%d" % (RB + 1, T))
    if not part:
        a("s_waitcnt lgkmcnt(0)")
    for j in range(2):
        B = RB + 4 + 32 * j
        v2, v3 = RB + 2, B + 27
        a("s_add_u32 s51, s50, %d" % (2 * j))
        a("s_lshr_b32 s64, s51, 4")
        a("s_lshr_b32 s65, s51, 2")
        a("s_and_b32 s65, s65, 3")
        a("s_and_b32 s66, s51, 3")
        a("s_lshr_b32 s16, s64, 2")
        a("s_and_b32 s17, s64, 3")
        a("s_lshr_b32 s18, s65, 1")
        a("s_and_b32 s19, s65, 1")
        a("s_lshr_b32 s28, s66, 1")
        a("s_and_b32 s29, s66, 1")
        a("s_lshl_b32 s20, s16, 2")
        a("s_lshl_b32 s21, s18, 1")
        a("s_add_u32 s20, s20, s21")
        a("s_add_u32 s20, s20, s28")
        a("s_lshl_b32 s20, s20, 15")
        a("s_lshl_b32 s21, s17, 2")
        a("s_lshl_b32 s22, s19, 1")
        a("s_add_u32 s21, s21, s22")
        a("s_add_u32 s21, s21, s29")
        a("s_lshl_b32 s21, s21, 6")
        a("v_and_b32 v%d, 31, v%d" % (v2, T))
        a("v_lshlrev_b32 v%d, 10, v%d" % (v2, v2))
        a("v_lshrrev_b32 v%d, 6, v%d" % (v3, T))
        a("v_lshlrev_b32 v%d, 4, v%d" % (v3, v3))
        a("v_bfe_u32 v%d, v%d, 5, 1" % (B + 16, T))
        a("v_lshl_add_u32 v%d, v%d, 3, v%d" % (v3, B + 16, v3))
        a("v_add_u32 v%d, s21, v%d" % (v3, v3))
        a("v_add_u32 v%d, v%d, v%d" % (v2, v2, v3))
        a("v_add_u32 v%d, s20, v%d" % (B + 26, v2))
        if not part:
            a("buffer_load_dwordx2 %s, v%d, s[52:55], 0 offen" % (vr(B + 16, 2), B + 26))
            a("buffer_load_dwordx2 %s, v%d, s[56:59], 0 offen" % (vr(B + 18, 2), v3))


def gen_reduce(a):
    a.label("reduce_kernel")
    a.ostamp()
    a.stamp()
    if SENT:
        a("s_mov_b32 s47, 0")
        a.label("red_poll")
    for j in range(2):
        B = RB + 4 + 32 * j
        a("s_lshl_b32 s51, s50, 12")
        a("s_add_u32 s51, s51, 0x%x" % (PART + j * 8192))
        for p in range(4):
            a("buffer_load_dwordx4 %s, v%d, s[8:11], s51 offen%s" % (vr(B + 4 * p, 4), RB + 1, " sc1" if SENT else ""))
            if p < 3:
                a("s_add_u32 s51, s51, 0x400000")
    if SENT:
        for j in range(2):
            B = RB + 4 + 32 * j
            a("s_waitcnt vmcnt(%d)" % (4 - 4 * j))
            a("v_max3_u32 v%d, v%d, v%d, v%d" % (248 + j, B, B + 1, B + 2))
            for i in range(6):
                a("v_max3_u32 v%d, v%d, v%d, v%d" % (248 + j, 248 + j, B + 3 + 2 * i, B + 4 + 2 * i))
            a("v_max_u32 v%d, v%d, v%d" % (248 + j, 248 + j, B + 15))
        a("v_max_u32 v248, v248, v249")
        a("v_cmp_eq_u32 vcc, -1, v248")
        a("s_nop 1")
        a("s_cbranch_vccz red_ok")
        a("s_add_u32 s47, s47, 1")
        a("s_cmp_gt_u32 s47, 20000")
        a("s_cbranch_scc1 red_ok")
        a("s_sleep %s" % os.environ.get("RSL", "4"))
        a("s_branch red_poll")
        a.label("red_ok")
    for j in range(2):
        B = RB + 4 + 32 * j
        for p in range(2):
            a("v_lshlrev_b32 v%d, 16, v%d" % (B + 20, B + 16 + p))
            a("v_and_b32 v%d, 0xffff0000, v%d" % (B + 21, B + 16 + p))
            a("v_lshlrev_b32 v%d, 16, v%d" % (B + 22, B + 18 + p))
            a("v_and_b32 v%d, 0xffff0000, v%d" % (B + 23, B + 18 + p))
            a("v_add_f32 v%d, v%d, v%d" % (B + 28 + 2 * p, B + 20, B + 22))
            a("v_add_f32 v%d, v%d, v%d" % (B + 29 + 2 * p, B + 21, B + 23))
    for j in range(2):
        B = RB + 4 + 32 * j
        a("s_waitcnt vmcnt(%d)" % (4 - 4 * j))
        for i in range(4):
            a("v_add_f32 v%d, v%d, v%d" % (B + i, B + i, B + 4 + i))
            a("v_add_f32 v%d, v%d, v%d" % (B + 8 + i, B + 8 + i, B + 12 + i))
        for i in range(4):
            a("v_add_f32 v%d, v%d, v%d" % (B + i, B + i, B + 8 + i))
        for i in range(4):
            a("v_add_f32 v%d, v%d, v%d" % (B + i, B + i, B + 28 + i))
        for p in range(2):
            a("v_cvt_pk_bf16_f32 v%d, v%d, v%d" % (B + 24 + p, B + 2 * p, B + 1 + 2 * p))
        a("buffer_store_dwordx2 %s, v%d, s[60:63], 0 offen" % (vr(B + 24, 2), B + 26))
    a.stamp()
    a.stamp_flush(0)
    if os.environ.get("STAMP"):
        a("s_waitcnt vmcnt(0)")
        a("s_memrealtime s[18:19]")
        a("s_load_dwordx2 s[8:9], s[0:1], 96")
        a("s_mov_b32 s10, 65536")
        a("s_mov_b32 s11, 0x20000")
        a("s_lshl_b32 s20, s2, 4")
        a("s_add_u32 s20, s20, %d" % (4096 + 4096 * 3))
        a("s_waitcnt lgkmcnt(0)")
        a("s_mov_b64 exec, 1")
        a("v_mov_b32 v4, s18")
        a("v_mov_b32 v5, s93")
        a("v_mov_b32 v6, s18")
        a("v_mov_b32 v7, s92")
        a("v_mov_b32 v2, 0")
        a("buffer_store_dwordx4 v[4:7], v2, s[8:11], s20 offen")
    if os.environ.get("OST"):
        a("s_waitcnt vmcnt(0)")
    a.ostamp(True)
    a("s_endpgm")
```

```python
from gen import vr, sr, QF, KF, VF, AF, AF_BLK, PART, CTR, EARLY
import math
import os
EXP = os.environ.get("EXP", "")
SENT = "sent" in EXP
MST = os.environ.get("MST")

SCALE_LOG2E = (128 ** -0.5) * math.log2(math.e)


def f32hex(x):
    import struct
    return "0x%08x" % struct.unpack("<I", struct.pack("<f", x))[0]


def interleave(a, mf, fl):
    n = len(mf)
    pos = 0
    for i in range(n):
        a(mf[i])
        end = (len(fl) * (i + 1)) // n
        while pos < end:
            a(fl[pos])
            pos += 1


def gen_attn(a):
    V_LDS = 2
    V_DMA = 3
    V_LG = 4
    V_NEG = 5
    V_RDV = 6
    V_RDK = 7
    V_M = 8
    V_L = 9
    V_T = 10
    V_Q = 16
    V_O = 48
    V_S = 112
    V_P = 144
    V_K = 152
    V_V = 184
    S_MASK = 36
    S_LB = 35
    S_THR = 34
    V_C = 216
    V_E = 232
    NBUF = 5
    LDSZ = NBUF * 32768

    a.label("attn_kernel")
    if not EARLY:
        a.stamp()
    a("s_load_dwordx2 s[8:9], s[0:1], 104")
    if "df" in EXP:
        a("s_load_dwordx2 s[86:87], s[0:1], 96")
        a("v_mov_b32 v255, 0")
    a("v_lshrrev_b32 v1, 6, v0")
    a("s_nop 0")
    a("v_readfirstlane_b32 s6, v1")
    a("v_and_b32 v1, 63, v0")
    a("s_lshr_b32 s22, s6, 2")
    a("s_and_b32 s23, s6, 3")
    a("s_and_b32 s3, s2, 7")
    a("s_lshl_b32 s3, s3, 2")
    a("s_lshr_b32 s4, s2, 3")
    a("s_and_b32 s4, s4, 3")
    a("s_add_u32 s3, s3, s4")
    a("s_lshr_b32 s4, s2, 5")
    a("s_sub_u32 s5, 15, s4")
    a("s_mov_b32 s24, 0")
    a("s_mov_b32 s77, 1000000")
    a("s_mov_b32 s10, 0x10000000")
    a("s_mov_b32 s11, 0x20000")
    a("s_lshl_b32 s12, s3, 19")
    a("v_lshlrev_b32 v%d, 4, v1" % V_LDS)
    a("s_lshl_b32 s13, s23, 11")
    a("s_lshl_b32 s25, s22, 13")
    a("s_add_u32 s25, s25, s13")
    a("v_add_u32 v%d, s25, v%d" % (V_DMA, V_LDS))
    a("s_lshl_b32 s26, s22, 14")
    a("v_add_u32 v%d, s26, v%d" % (V_LG, V_LDS))
    a("s_add_u32 s27, s26, s13")
    a("v_and_b32 v12, 31, v1")
    a("v_lshrrev_b32 v13, 5, v1")
    a("v_lshlrev_b32 v13, 2, v13")
    a("v_sub_u32 v12, v12, v13")
    for r in range(16):
        kl = 8 * (r >> 2) + (r & 3)
        a("v_cmp_le_i32 %s, %d, v12" % (sr(S_MASK + 2 * r, 2), kl))
    a("v_mov_b32 v%d, 0xf149f2ca" % V_NEG)
    a("s_waitcnt lgkmcnt(0)")

    def bump(sreg):
        return ["s_add_u32 s%d, s%d, 32768" % (sreg, sreg),
                "s_cmp_ge_u32 s%d, %d" % (sreg, LDSZ),
                "s_cselect_b32 s%d, 0, s%d" % (sreg, sreg)]

    def dma_ops():
        ops = []
        ops.append("s_add_u32 m0, s27, s28")
        ops.append("s_cmp_eq_u32 s78, s79")
        ops.append("s_cselect_b32 s16, s80, s16")
        ops.append("s_cselect_b32 s17, s81, s17")
        ops.append("s_add_u32 s78, s78, 1")
        for i in range(2):
            ops.append("buffer_load_dwordx4 v%d, s[8:11], s16 offen offset:%d lds" % (V_DMA, i * 1024))
        ops.append("s_add_u32 m0, m0, 8192")
        ops.append("s_add_u32 s16, s16, 16384")
        for i in range(2):
            ops.append("buffer_load_dwordx4 v%d, s[8:11], s17 offen offset:%d lds" % (V_DMA, i * 1024))
        ops.append("s_add_u32 s17, s17, 16384")
        ops += bump(28)
        return ops

    def dma():
        for x in dma_ops():
            a(x)

    def tstamp(k):
        if not os.environ.get("STAMP"):
            return
        a("s_memtime s[98:99]")
        a("s_waitcnt lgkmcnt(0)")
        a("s_cmp_eq_u32 s24, 0")
        a("s_cselect_b32 s%d, s98, s%d" % (69 + k, 69 + k))
        a("s_cselect_b32 s%d, s%d, s98" % (73 + k, 73 + k))

    def kread_ops():
        return ["ds_read_b128 %s, v%d offset:%d" % (vr(V_K + 4 * s, 4), V_RDK, s * 1024) for s in range(8)] + \
            bump(33) + ["v_add_u32 v%d, s33, v%d" % (V_RDK, V_LG)]

    def vread_ops():
        return ["ds_read_b128 %s, v%d offset:%d" % (vr(V_V + 4 * i, 4), V_RDV, 8192 + i * 1024) for i in range(8)] + \
            bump(32) + ["v_add_u32 v%d, s32, v%d" % (V_RDV, V_LG)]

    def qk_ops(sp):
        ops = []
        S = V_S + 16 * sp
        for s in range(8):
            c = vr(V_C, 16) if s == 0 else vr(S, 16)
            ops.append("v_mfma_f32_32x32x16_bf16 %s, %s, %s, %s" % (vr(S, 16), vr(V_K + 4 * s, 4), vr(V_Q + 4 * s, 4), c))
        return ops

    def pv_ops():
        ops = []
        for t in range(2):
            for dt in range(4):
                o = vr(V_O + 16 * dt, 16)
                ops.append("v_mfma_f32_32x32x16_bf16 %s, %s, %s, %s" % (o, vr(V_V + 4 * (dt * 2 + t), 4), vr(V_P + 4 * t, 4), o))
        return ops

    def max_ops(S, t0, t1):
        return ["v_max3_f32 v%d, v%d, v%d, v%d" % (t0, S, S + 1, S + 2),
                "v_max3_f32 v%d, v%d, v%d, v%d" % (t1, S + 3, S + 4, S + 5),
                "v_max3_f32 v%d, v%d, v%d, v%d" % (t0, t0, S + 6, S + 7),
                "v_max3_f32 v%d, v%d, v%d, v%d" % (t1, t1, S + 8, S + 9),
                "v_max3_f32 v%d, v%d, v%d, v%d" % (t0, t0, S + 10, S + 11),
                "v_max3_f32 v%d, v%d, v%d, v%d" % (t1, t1, S + 12, S + 13),
                "v_max3_f32 v%d, v%d, v%d, v%d" % (t0, t0, S + 14, S + 15),
                "v_max_f32 v%d, v%d, v%d" % (t0, t0, t1),
                "v_mov_b32 v%d, v%d" % (t1, t0)]

    def soft_ops(S, t2, t3):
        P = V_P
        E = V_E
        vb = []
        for r in range(16):
            vb.append("v_exp_f32 v%d, v%d" % (E + r, S + r))
            if r >= 3 and r % 2 == 1:
                q = r - 3
                vb.append("v_cvt_pk_bf16_f32 v%d, v%d, v%d" % (P + q // 2, E + q, E + q + 1))
                if q == 0:
                    vb.append("v_add_f32 v%d, v%d, v%d" % (t2, E, E + 1))
                elif q == 2:
                    vb.append("v_add_f32 v%d, v%d, v%d" % (t3, E + 2, E + 3))
                else:
                    vb.append("v_add_f32 v%d, v%d, v%d" % (t2, t2, E + q))
                    vb.append("v_add_f32 v%d, v%d, v%d" % (t3, t3, E + q + 1))
        vb.append("v_add_f32 v%d, v%d, v%d" % (t2, t2, t3))
        vb.append("v_cvt_pk_bf16_f32 v%d, v%d, v%d" % (P + 7, E + 14, E + 15))
        vb.append("v_add_f32 v%d, v%d, v%d" % (t3, E + 14, E + 15))
        vb.append("v_add_f32 v%d, v%d, v%d" % (t2, t2, t3))
        return vb

    cnt = [0]
    rare = []

    def mask(L, S):
        a("s_lshl_b32 s29, s18, 1")
        a("s_add_u32 s29, s29, s22")
        a("s_cmp_lt_u32 s29, s30")
        a("s_cbranch_scc1 %s_nomask" % L)
        a("s_cmp_eq_u32 s29, s30")
        a("s_cbranch_scc1 %s_tri" % L)
        for r in range(16):
            a("v_mov_b32 v%d, v%d" % (S + r, V_NEG))
        a("s_branch %s_nomask" % L)
        a.label("%s_tri" % L)
        for r in range(16):
            a("v_cndmask_b32 v%d, v%d, v%d, %s" % (S + r, V_NEG, S + r, sr(S_MASK + 2 * r, 2)))
        a.label("%s_nomask" % L)

    def phaseA(sp, diag, last=False):
        cnt[0] += 1
        L = "attn_it%d" % cnt[0]
        S = V_S + 16 * sp
        T = V_T
        if diag:
            mask(L, S)
        qk = qk_ops(sp ^ 1)
        S2 = V_S + 16 * (sp ^ 1)
        so = soft_ops(S, T + 3, T + 4)
        vrd = vread_ops()
        mix = []
        step = len(so) // len(vrd)
        k = 0
        for i, x in enumerate(so):
            mix.append(x)
            if i % step == step - 1 and k < len(vrd):
                mix.append(vrd[k])
                k += 1
        mix += vrd[k:]
        if last:
            for x in mix:
                a(x)
        else:
            interleave(a, qk, mix)
        a("v_cmp_lt_f32 vcc, s%d, v%d" % (S_THR, T + 3))
        a("s_nop 1")
        a("s_cbranch_vccnz %s_rs" % L)
        a.label("%s_nors" % L)
        a("v_add_f32 v%d, v%d, v%d" % (V_L, V_L, T + 3))
        blk = ["%s_rs:" % L]
        if os.environ.get("STAMP"):
            blk.append("s_add_u32 s77, s77, 1")
        blk += max_ops(S, T, T + 1)
        blk += ["s_nop 1",
                "v_permlane32_swap_b32 v%d, v%d" % (T, T + 1),
                "s_nop 0",
                "v_max3_f32 v%d, v%d, v%d, s%d" % (T, T, T + 1, S_LB),
                "v_exp_f32 v%d, -v%d" % (T + 1, T),
                "v_add_f32 v%d, v%d, v%d" % (V_M, V_M, T),
                "v_min_f32 v%d, 0x7149f2ca, v%d" % (T + 1, T + 1),
                "s_mov_b32 s%d, 0x53800000" % S_THR,
                "s_mov_b32 s%d, 0" % S_LB,
                "v_mul_f32 v%d, v%d, v%d" % (V_L, V_L, T + 1)]
        for i in range(64):
            blk.append("v_mul_f32 v%d, v%d, v%d" % (V_O + i, V_O + i, T + 1))
        for r in range(16):
            blk.append("v_sub_f32 v%d, v%d, v%d" % (S + r, S + r, T))
        blk += so
        for r in range(16):
            blk.append("v_sub_f32 v%d, v%d, v%d" % (V_C + r, V_C + r, T))
        for r in range(16 if not last else 0):
            blk.append("v_sub_f32 v%d, v%d, v%d" % (S2 + r, S2 + r, T))
        blk.append("s_branch %s_nors" % L)
        rare.append(blk)
        a("s_add_u32 s18, s18, 1")

    def phaseC(mode="n"):
        a("s_waitcnt lgkmcnt(0)")
        a("s_nop 0")
        ASP = os.environ.get("ASP", "")
        if mode == "n" and ASP:
            k, d = kread_ops(), dma_ops()
            if ASP == "a":
                per = [k[0:3], k[3:5] + d[0:6], k[5:8], k[8:12] + d[6:7], d[7:9], d[9:10], d[10:11], d[11:]]
            elif ASP == "b":
                per = [k[0:2] + d[0:6], k[2:5], k[5:7] + d[6:9], k[7:12], d[9:10], [], d[10:11], d[11:]]
            else:
                per = [k[0:4], k[4:8], k[8:12] + d[0:6], [], d[6:9], d[9:10], [], d[10:]]
            for m, p in zip(pv_ops(), per):
                a(m)
                for x in p:
                    a(x)
            return
        if mode == "n":
            f = kread_ops() + dma_ops()
        elif mode == "k":
            f = kread_ops()
        else:
            k = int(mode[1])
            f = ["buffer_load_dwordx4 %s, v%d, s[8:11], s%d offen offset:%d" % (
                vr(V_Q + 16 * k + 4 * s_, 4), V_LDS, 82 + k, s_ * 1024) for s_ in range(4)]
        interleave(a, pv_ops(), f)

    def bar():
        a("s_waitcnt vmcnt(4) lgkmcnt(0)")
        a("s_barrier")

    def tile_front(qt):
        a("s_lshl_b32 s15, s%d, 2" % qt)
        a("s_add_u32 s15, s15, s23")
        a("s_lshl_b32 s15, s15, 13")
        a("s_add_u32 s15, s15, s12")
        for k in range(2):
            for s in range(4):
                a("buffer_load_dwordx4 %s, v%d, s[8:11], s15 offen offset:%d" % (vr(V_Q + 16 * k + 4 * s, 4), V_LDS, s * 1024))
            a("s_add_u32 s15, s15, 4096")
        a("s_add_u32 s16, s12, 0x%x" % KF)
        a("s_add_u32 s17, s12, 0x%x" % VF)
        a("s_mov_b32 s28, 98304")
        a("s_mov_b32 s78, 0")
        a("s_mov_b32 s79, -1")
        dma()
        dma()
        dma()
        dma()

    if EARLY:
        ring = [98304, 131072, 0, 32768]
        a.eb_pre()
        a("s_lshl_b32 s15, s5, 2")
        a("s_add_u32 s15, s15, s23")
        a("s_lshl_b32 s15, s15, 13")
        a("s_add_u32 s15, s15, s12")
        a("s_add_u32 s16, s12, 0x%x" % KF)
        a("s_add_u32 s17, s12, 0x%x" % VF)
        for st in range(4):
            a("s_add_u32 m0, s27, %d" % ring[st])
            a("s_nop 0")
            for i in range(2):
                a("buffer_load_dwordx4 v%d, s[8:11], s16 offen offset:%d lds" % (V_DMA, i * 1024))
            a("s_add_u32 s16, s16, 16384")
            if st == 0:
                for k in range(2):
                    for s_ in range(4):
                        a("buffer_load_dwordx4 %s, v%d, s[8:11], s15 offen offset:%d" % (vr(V_Q + 16 * k + 4 * s_, 4), V_LDS, s_ * 1024))
                    a("s_add_u32 s15, s15, 4096")
        a.eb_post()
        a.stamp()
        for st in range(4):
            a("s_add_u32 m0, s27, %d" % (ring[st] + 8192))
            a("s_nop 0")
            for i in range(2):
                a("buffer_load_dwordx4 v%d, s[8:11], s17 offen offset:%d lds" % (V_DMA, i * 1024))
            a("s_add_u32 s17, s17, 16384")
        a("s_mov_b32 s28, 65536")
        a("s_mov_b32 s78, 4")
    else:
        tile_front(5)
    a("s_mov_b32 s32, 98304")
    a("s_add_u32 s80, s12, 0x%x" % KF)
    a("s_add_u32 s81, s12, 0x%x" % VF)
    a("s_lshl_b32 s82, s4, 2")
    a("s_add_u32 s82, s82, s23")
    a("s_lshl_b32 s82, s82, 13")
    a("s_add_u32 s82, s82, s12")
    a("s_add_u32 s83, s82, 4096")
    a.label("attn_tile")
    a("s_lshl_b32 s14, s5, 2")
    a("s_add_u32 s14, s14, s23")
    a("s_mov_b32 s30, s14")
    a("s_lshl_b32 s79, s5, 1")
    a("s_add_u32 s79, s79, 2")
    a("s_mov_b32 s33, s32")
    a("v_add_u32 v%d, s32, v%d" % (V_RDV, V_LG))
    a("v_add_u32 v%d, s32, v%d" % (V_RDK, V_LG))
    a("v_mov_b32 v%d, 0" % V_M)
    a("s_mov_b32 s%d, 0xbf800000" % S_THR)
    a("s_mov_b32 s%d, 0xff7fffff" % S_LB)
    for i in range(16):
        a("v_mov_b32 v%d, 0" % (V_C + i))
    a("v_mov_b32 v%d, 0" % V_L)
    for i in range(64):
        a("v_mov_b32 v%d, 0" % (V_O + i))
    a("s_lshl_b32 s19, s5, 1")
    a("s_mov_b32 s18, 0")
    a("s_waitcnt vmcnt(8)")
    a("s_cmp_eq_u32 s24, 0")
    a("s_cbranch_scc1 attn_w2")
    a("s_waitcnt vmcnt(%d)" % (12 if SENT else 4))
    a.label("attn_w2")
    a("s_barrier")
    if "df" in EXP:
        a("global_load_dword v254, v255, s[86:87] sc1")
    if not MST:
        tstamp(0)
    for x in kread_ops():
        a(x)
    a("s_cmp_eq_u32 s24, 0")
    a("s_cbranch_scc1 attn_w3")
    a("s_mov_b32 s78, 2")
    dma()
    dma()
    a.label("attn_w3")
    a("s_waitcnt lgkmcnt(0)")
    for x in qk_ops(0):
        a(x)
    for x in kread_ops():
        a(x)
    if "noinit" not in EXP:
        a.nop(8)
        S, T = V_S, V_T
        a("s_cmp_lg_u32 s5, 0")
        a("s_cbranch_scc1 attn_im_nomask")
        mask("attn_im", S)
        for x in max_ops(S, T, T + 1):
            a(x)
        a("s_nop 1")
        a("v_permlane32_swap_b32 v%d, v%d" % (T, T + 1))
        a("s_nop 0")
        a("v_max_f32 v%d, v%d, v%d" % (T, T, T + 1))
        a("s_mov_b32 s%d, 0x53800000" % S_THR)
        a("s_mov_b32 s%d, 0" % S_LB)
        a("v_mov_b32 v%d, v%d" % (V_M, T))
        for r in range(16):
            a("v_sub_f32 v%d, v%d, v%d" % (S + r, S + r, T))
        for r in range(16):
            a("v_sub_f32 v%d, 0, v%d" % (V_C + r, T))
    a("s_cmp_eq_u32 s22, 1")
    a("s_cbranch_scc1 attn_g1")
    a("s_cmp_eq_u32 s5, 0")
    a("s_cbranch_scc1 attn_diag0")
    a.label("attn_loop0")
    a.inloop = "og" not in EXP
    for sp in range(2):
        bar()
        a("s_waitcnt lgkmcnt(0)")
        phaseA(sp, False)
        phaseC()
    a.inloop = False
    a("s_cmp_lt_u32 s18, s19")
    a("s_cbranch_scc1 attn_loop0")
    a.label("attn_diag0")
    if not MST:
        tstamp(1)
    for sp in range(2):
        bar()
        a("s_waitcnt lgkmcnt(0)")
        phaseA(sp, True, sp == 1)
        phaseC("q%d" % sp)
    tstamp(2)
    a("s_branch attn_merge")
    a.label("attn_g1")
    bar()
    a("s_waitcnt lgkmcnt(0)")
    a("s_cmp_eq_u32 s5, 0")
    a("s_cbranch_scc1 attn_diag1a")
    dma()
    phaseA(0, False)
    a.label("attn_loop1")
    a.inloop = "og" not in EXP
    bar()
    phaseC()
    a("s_waitcnt lgkmcnt(0)")
    phaseA(1, False)
    a.inloop = False
    a("s_cmp_ge_u32 s18, s19")
    a("s_cbranch_scc1 attn_diag1")
    a.inloop = "og" not in EXP
    bar()
    phaseC()
    a("s_waitcnt lgkmcnt(0)")
    phaseA(0, False)
    a.inloop = False
    a("s_branch attn_loop1")
    a.label("attn_diag1")
    bar()
    phaseC("k")
    a("s_waitcnt lgkmcnt(0)")
    a.label("attn_diag1a")
    phaseA(0, True)
    bar()
    phaseC("q0")
    phaseA(1, True, True)
    phaseC("q1")
    a.label("attn_merge")

    def slot(wreg, vdst):
        a("s_mul_i32 s29, s%d, 11" % wreg)
        a("s_lshr_b32 s29, s29, 5")
        a("s_mul_i32 s84, s29, 3")
        a("s_sub_u32 s84, s%d, s84" % wreg)
        a("s_lshl_b32 s29, s29, 15")
        a("s_add_u32 s29, s29, s28")
        a("s_sub_u32 s85, s29, %d" % LDSZ)
        a("s_cmp_ge_u32 s29, %d" % LDSZ)
        a("s_cselect_b32 s29, s85, s29")
        a("s_mul_i32 s84, s84, 9216")
        a("s_add_u32 s29, s29, s84")
        a("v_add_u32 v%d, s29, v%d" % (vdst, V_LDS))
    slot(6, 12)
    a("s_xor_b32 s31, s6, 4")
    slot(31, 13)
    a("s_waitcnt lgkmcnt(0)")
    a("s_barrier")
    if MST:
        tstamp(0)
    a.nop(4)
    for g in range(2):
        if g == 0:
            a("s_cmp_eq_u32 s22, 1")
            a("s_cbranch_scc1 attn_mg1")
        else:
            a.label("attn_mg1")
        keep, send = V_O + 32 * g, V_O + 32 * (1 - g)
        for i in range(8):
            a("ds_write_b128 v12, %s offset:%d" % (vr(send + 4 * i, 4), i * 1024))
        a("ds_write_b64 v12, v[%d:%d] offset:8192" % (V_M, V_L))
        a("s_waitcnt lgkmcnt(0)")
        a("s_barrier")
        if MST and g == 0:
            tstamp(1)
        a("ds_read_b64 v[14:15], v13 offset:8192")
        for i in range(8):
            a("ds_read_b128 %s, v13 offset:%d" % (vr(V_K + 4 * i, 4), i * 1024))
        a("s_waitcnt lgkmcnt(8)")
        a("v_max_f32 v10, v%d, v14" % V_M)
        a("v_sub_f32 v11, v%d, v10" % V_M)
        a("v_sub_f32 v10, v14, v10")
        a("v_exp_f32 v11, v11")
        a("v_exp_f32 v10, v10")
        a.nop(1)
        a("v_mul_f32 v%d, v%d, v11" % (V_L, V_L))
        a("v_fma_f32 v%d, v15, v10, v%d" % (V_L, V_L))
        a("v_mov_b32 v14, v%d" % V_L)
        a.nop(2)
        a("v_permlane32_swap_b32 v%d, v14" % V_L)
        a.nop(1)
        a("v_add_f32 v14, v14, v%d" % V_L)
        a("v_rcp_f32 v14, v14")
        a.nop(1)
        a("v_mul_f32 v11, v11, v14")
        a("v_mul_f32 v10, v10, v14")
        a("s_mul_i32 s20, s14, %d" % AF_BLK)
        a("s_lshl_b32 s21, s3, 13")
        a("s_add_u32 s20, s20, s21")
        a("s_add_u32 s20, s20, 0x%x" % (AF + 4096 * g))
        a("s_waitcnt lgkmcnt(0)")
        for i in range(32):
            a("v_mul_f32 v%d, v%d, v10" % (V_K + i, V_K + i))
            a("v_fma_f32 v%d, v%d, v11, v%d" % (V_K + i, keep + i, V_K + i))
        for k in range(4):
            d = V_V + k * 4
            for p in range(4):
                x0 = V_K + 8 * k + 2 * p
                a("v_cvt_pk_bf16_f32 v%d, v%d, v%d" % (d + p, x0, x0 + 1))
            a("buffer_store_dwordx4 %s, v%d, s[8:11], s20 offen offset:%d sc1" % (vr(d, 4), V_LDS, k * 1024))
        if g == 0:
            a("s_branch attn_mgdone")
    a.label("attn_mgdone")
    if SENT:
        a("s_cmp_eq_u32 s24, 1")
        a("s_cbranch_scc1 attn_noclr")
        a("s_lshl_b32 s20, s2, 16")
        a("s_lshl_b32 s21, s6, 13")
        a("s_add_u32 s20, s20, s21")
        a("s_add_u32 s20, s20, 0x%x" % PART)
        a("s_add_u32 s21, s20, 4096")
        for k in range(4):
            a("v_mov_b32 v%d, -1" % (V_K + k))
        for k in range(8):
            a("buffer_store_dwordx4 %s, v%d, s[8:11], s%d offen offset:%d sc1" % (vr(V_K, 4), V_LDS, 20 if k < 4 else 21, (k & 3) * 1024))
        a.label("attn_noclr")
    tstamp(3)
    a.nst = 10
    a("s_cmp_eq_u32 s24, 1")
    a("s_cbranch_scc1 attn_fin")
    a("s_mov_b32 s24, 1")
    a("s_mov_b32 s5, s4")
    for r in (80, 81, 82, 83):
        a("s_mov_b32 s%d, 0x10000000" % r)
    a("s_branch attn_tile")
    a.label("attn_fin")
    a.stamp_flush(0)
    a.label("attn_end")
    a("s_branch attn_after")
    for blk in rare:
        a.label(blk[0][:-1])
        for x in blk[1:]:
            a(x)
    a.label("attn_after")
    a.ostamp()
    if "ov" in EXP:
        a("s_waitcnt vmcnt(4) lgkmcnt(0)")
    else:
        a("s_waitcnt vmcnt(0) lgkmcnt(0)")
    if "df" in EXP:
        a("s_mov_b32 s88, 0")
        a.label("df_chk")
        a("v_readfirstlane_b32 s89, v254")
        a("s_cmp_ge_u32 s89, 16")
        a("s_cbranch_scc1 df_ok")
        a("s_add_u32 s88, s88, 1")
        a("s_cmp_gt_u32 s88, 40000")
        a("s_cbranch_scc1 df_ok")
        a("s_sleep 8")
        a("global_load_dword v254, v255, s[86:87] sc1")
        a("s_waitcnt vmcnt(0)")
        a("s_branch df_chk")
        a.label("df_ok")
    a("s_barrier")
    a.phase = 2


def gen_ogemm(a):
    V_AL = 2
    V_TR = 4
    V_DA = 8
    V_DB = 9
    V_ST = 11
    V_F = 16
    V_ACC = 48
    NST = 23
    a.label("ogemm_kernel")
    a.stamp()
    a("s_load_dwordx2 s[8:9], s[0:1], 104")
    a("s_load_dwordx2 s[24:25], s[0:1], 40")
    a("s_load_dwordx2 s[26:27], s[0:1], 72")
    a("v_lshrrev_b32 v1, 6, v0")
    a("s_nop 0")
    a("v_readfirstlane_b32 s6, v1")
    a("v_and_b32 v1, 63, v0")
    a("s_lshr_b32 s3, s2, 4")
    a("s_and_b32 s4, s2, 1")
    a("s_lshl_b32 s4, s4, 1")
    a("s_bfe_u32 s5, s2, 0x10003")
    a("s_or_b32 s4, s4, s5")
    a("s_bfe_u32 s5, s2, 0x20001")
    if "same" in EXP:
        a("s_mov_b32 s3, 0")
        a("s_mov_b32 s4, 0")
        a("s_mov_b32 s5, 0")
    if "map1" not in EXP:
        a("s_and_b32 s3, s2, 1")
        a("s_lshl_b32 s3, s3, 3")
        a("s_bfe_u32 s4, s2, 0x30003")
        a("s_or_b32 s3, s3, s4")
        a("s_lshr_b32 s4, s2, 6")
    a("s_mov_b32 s10, 0x10000000")
    a("s_mov_b32 s11, 0x20000")
    a("s_mov_b32 s15, 0x20000")
    a("s_lshr_b32 s30, s6, 2")
    a("s_lshr_b32 s31, s6, 1")
    a("s_and_b32 s31, s31, 1")
    a("s_and_b32 s32, s6, 1")
    a("v_lshlrev_b32 v%d, 4, v1" % V_ST)
    a("s_lshl_b32 s33, s31, 13")
    a("s_lshl_b32 s34, s30, 11")
    a("s_add_u32 s33, s33, s34")
    a("v_add_u32 v%d, s33, v%d" % (V_AL, V_ST))
    a("v_add_u32 v%d, 0x10000, v%d" % (V_AL + 1, V_AL))
    a("v_bfe_u32 v12, v1, 2, 2")
    a("v_lshrrev_b32 v13, 5, v1")
    a("v_lshl_add_u32 v13, v13, 2, v12")
    a("v_lshlrev_b32 v13, 8, v13")
    a("v_bfe_u32 v14, v1, 4, 1")
    a("v_lshl_add_u32 v13, v14, 5, v13")
    a("v_and_b32 v14, 3, v1")
    a("v_lshl_add_u32 v13, v14, 3, v13")
    a("s_lshl_b32 s33, s30, 13")
    a("s_add_u32 s33, s33, 16384")
    a("v_add_u32 v13, s33, v13")
    a("v_lshlrev_b32 v12, 6, v12")
    a("s_lshl_b32 s34, s32, 7")
    for ntl in range(2):
        a("s_add_u32 s35, s34, %d" % (ntl << 6))
        a("v_xor_b32 v14, s35, v12")
        a("v_add_u32 v%d, v13, v14" % (V_TR + ntl))
        a("v_add_u32 v%d, 0x10000, v%d" % (V_TR + 2 + ntl, V_TR + ntl))
    a("s_lshr_b32 s33, s6, 1")
    a("s_lshl_b32 s34, s3, 2")
    a("s_add_u32 s34, s34, s33")
    a("s_mul_i32 s34, s34, %d" % AF_BLK)
    a("s_lshl_b32 s35, s32, 11")
    a("s_add_u32 s34, s34, s35")
    a("s_add_u32 s34, s34, 0x%x" % AF)
    a("v_add_u32 v%d, s34, v%d" % (V_DA, V_ST))
    a("s_lshl_b32 s36, s6, 11")
    a("v_lshrrev_b32 v12, 4, v1")
    a("v_bfe_u32 v13, v1, 2, 2")
    a("v_xor_b32 v13, v13, v12")
    a("v_lshlrev_b32 v13, 6, v13")
    a("v_and_b32 v14, 3, v1")
    a("v_lshl_add_u32 v13, v14, 4, v13")
    a("s_lshl_b32 s33, s6, 3")
    a("v_add_u32 v12, s33, v12")
    a("v_lshlrev_b32 v12, 10, v12")
    a("v_add_u32 v12, v12, v13")
    a("s_lshl_b32 s33, s4, 8")
    a("v_add_u32 v%d, s33, v12" % V_DB)
    a("v_add_u32 v%d, 3072, v%d" % (V_DB + 1, V_DB))
    a("s_mov_b32 s42, 0x1c0000")
    a("s_mul_i32 s37, s5, 7")
    a("s_add_u32 s37, s37, 64")
    a("s_lshl_b32 s44, s5, 4")
    a("s_mov_b32 s43, 0")
    a("s_waitcnt lgkmcnt(0)")

    def dma_parts(buf):
        p0 = ["s_cmp_lt_u32 s37, 64",
              "s_cselect_b32 s12, s24, s26",
              "s_cselect_b32 s13, s25, s27",
              "s_cselect_b32 s14, 0x400000, s42",
              "s_cselect_b32 s39, 0, 64",
              "s_sub_u32 s39, s37, s39",
              "s_lshl_b32 s39, s39, 16",
              "s_lshl_b32 s40, s37, 12",
              "s_cmp_lt_u32 s43, %d" % NST,
              "s_cselect_b32 s14, s14, 0",
              "s_cselect_b32 s40, s40, 0x10000000",
              "s_add_u32 s37, s37, 1",
              "s_add_u32 s43, s43, 1",
              "s_cmp_eq_u32 s43, 7",
              "s_cselect_b32 s37, s44, s37",
              "s_add_u32 m0, s36, %d" % (buf * 32768),
              "s_nop 0",
              "buffer_load_dwordx4 v%d, s[8:11], s40 offen offset:0 lds" % V_DA]
        p1 = ["buffer_load_dwordx4 v%d, s[8:11], s40 offen offset:1024 lds" % V_DA]
        p2 = ["s_add_u32 m0, s36, %d" % (buf * 32768 + 16384),
              "s_nop 0",
              "buffer_load_dwordx4 v%d, s[12:15], s39 offen offset:0 lds" % V_DB]
        p3 = ["buffer_load_dwordx4 v%d, s[12:15], s39 offen offset:1024 lds" % (V_DB + 1)]
        return [p0, p1, p2, p3]

    def dma(buf):
        for p in dma_parts(buf):
            for x in p:
                a(x)

    def reads(buf, sl, st):
        hi = 1 if buf >= 2 else 0
        bo = (buf & 1) * 32768
        f = V_F + st * 16
        for mbl in range(2):
            a("ds_read_b128 %s, v%d offset:%d" % (vr(f + 4 * mbl, 4), V_AL + hi, bo + mbl * 4096 + sl * 1024))
        for ntl in range(2):
            for ird in range(2):
                a("ds_read_b64_tr_b16 %s, v%d offset:%d" % (
                    vr(f + 8 + 4 * ntl + 2 * ird, 2), V_TR + 2 * hi + ntl, bo + sl * 4096 + ird * 2048))

    def mfmas(st, first, ins=None):
        f = V_F + st * 16
        for mbl in range(2):
            for ntl in range(2):
                acc = vr(V_ACC + 16 * (mbl * 2 + ntl), 16)
                c = "0" if first else acc
                a("v_mfma_f32_32x32x16_bf16 %s, %s, %s, %s" % (acc, vr(f + 8 + 4 * ntl, 4), vr(f + 4 * mbl, 4), c))
                for x in (ins or {}).get(mbl * 2 + ntl, []):
                    a(x)

    dma(0)
    dma(1)
    dma(2)
    for i in range(64):
        a("v_mov_b32 v%d, 0" % (V_ACC + i))
    def owg():
        a("s_lshl_b32 s49, s3, 2")
        a("s_add_u32 s49, s49, s4")
        a("s_lshl_b32 s45, s49, 4")
        a("s_lshl_b32 s46, s5, 2")
        a("s_add_u32 s45, s45, s46")

    if "xh" in EXP:
        owg()
        reduce_pre(a, 1)
        a("s_waitcnt lgkmcnt(0)")
    if "ov" in EXP:
        a("s_waitcnt vmcnt(12)")
        a("s_barrier")
    a("s_cmp_lg_u32 s6, 0")
    a("s_cbranch_scc1 ogemm_nosig")
    a.gb_signal(1, "ov" in EXP)
    a.label("ogemm_nosig")
    a("s_mov_b32 s41, 0")
    a("s_waitcnt vmcnt(8)")
    a("s_barrier")
    a.stamp()
    reads(0, 0, 0)

    def body(buf, hook=None, check=True):
        a("s_waitcnt vmcnt(4)")
        a("s_barrier")
        reads(buf, 1, 1)
        a("s_waitcnt lgkmcnt(6)")
        OSP = os.environ.get("OSP", "")
        P = dma_parts((buf + 3) & 3)
        if OSP == "a" and not hook:
            mfmas(0, False, {0: P[0], 2: P[1]})
            reads((buf + 1) & 3, 0, 0)
            a("s_waitcnt lgkmcnt(6)")
            mfmas(1, False, {0: P[2], 2: P[3]})
        elif OSP == "b" and not hook:
            mfmas(0, False, {0: P[0], 1: P[1], 2: P[2], 3: P[3]})
            reads((buf + 1) & 3, 0, 0)
            a("s_waitcnt lgkmcnt(6)")
            mfmas(1, False)
        elif OSP:
            mfmas(0, False)
            reads((buf + 1) & 3, 0, 0)
            if hook:
                hook()
            a("s_waitcnt lgkmcnt(6)")
            mfmas(1, False, {0: P[0], 1: P[1], 2: P[2], 3: P[3]})
        else:
            mfmas(0, False)
            reads((buf + 1) & 3, 0, 0)
            if hook:
                hook()
            dma((buf + 3) & 3)
            a("s_waitcnt lgkmcnt(6)")
            mfmas(1, False)
        a("s_add_u32 s41, s41, 1")
        if check:
            a("s_cmp_ge_u32 s41, %d" % NST)
            a("s_cbranch_scc1 ogemm_done")

    def pollhook():
        if "xh" in EXP:
            reduce_pre(a, 2)
        a("s_cmp_lg_u32 s6, 0")
        a("s_cbranch_scc1 ogemm_nopoll")
        a.gb_poll(1)
        a.label("ogemm_nopoll")
        a("s_barrier")
        a.stamp()

    def sighook():
        a("s_cmp_lg_u32 s6, 0")
        a("s_cbranch_scc1 ogemm_nosig2")
        a.gb_signal2(1)
        a.label("ogemm_nosig2")

    for it in range(8):
        body(it & 3, pollhook if it == 4 else (sighook if it == 1 and "ov" in EXP else None), False)
    a.label("ogemm_loop")
    a.inloop = "og" in EXP
    for buf in range(4):
        body(buf)
    a("s_branch ogemm_loop")
    a.inloop = False
    a.label("ogemm_done")
    a.ostamp()
    a.stamp()
    a("s_waitcnt vmcnt(0) lgkmcnt(0)")
    a("s_barrier")
    a.nop(12)
    a("s_and_b32 s33, s6, 3")
    a("s_lshl_b32 s33, s33, 14")
    a("s_lshl_b32 s34, s6, 13")
    a("v_add_u32 v12, s34, v%d" % V_ST)
    a("s_xor_b32 s34, s34, 0x8000")
    a("v_add_u32 v13, s34, v%d" % V_ST)
    a("s_lshl_b32 s34, s3, 2")
    a("s_add_u32 s34, s34, s4")
    a("s_lshl_b32 s34, s34, 16")
    a("s_add_u32 s34, s34, s33")
    a("s_lshl_b32 s35, s5, 22")
    a("s_add_u32 s34, s34, s35")
    a("s_add_u32 s34, s34, 0x%x" % PART)
    a("s_cmp_eq_u32 s30, 0")
    a("s_cbranch_scc1 ogemm_g0")
    for g in (1, 0):
        if g == 0:
            a.label("ogemm_g0")
        keep, send = V_ACC + 32 * g, V_ACC + 32 * (1 - g)
        for i in range(8):
            a("ds_write_b128 v12, %s offset:%d" % (vr(send + 4 * i, 4), i * 1024))
        a("s_waitcnt lgkmcnt(0)")
        a("s_barrier")
        for i in range(8):
            a("ds_read_b128 %s, v13 offset:%d" % (vr(112 + 4 * i, 4), i * 1024))
        a("s_add_u32 s34, s34, %d" % (8192 * g))
        for i in range(8):
            a("s_waitcnt lgkmcnt(%d)" % (7 - i))
            for k in range(4):
                a("v_add_f32 v%d, v%d, v%d" % (keep + 4 * i + k, keep + 4 * i + k, 112 + 4 * i + k))
            if i == 4:
                a("s_add_u32 s34, s34, 4096")
            a("buffer_store_dwordx4 %s, v%d, s[8:11], s34 offen offset:%d sc1" % (vr(keep + 4 * i, 4), V_ST, (i & 3) * 1024))
        if g == 1:
            a("s_branch ogemm_end")
    a.stamp()
    a.stamp_flush(0)
    a.label("ogemm_end")
    if "xh" not in EXP:
        owg()
        reduce_pre(a)
    if SENT:
        a.phase = 3
        return
    a("s_waitcnt vmcnt(0) lgkmcnt(0)")
    a("s_barrier")
    a("s_cmp_lg_u32 s6, 0")
    a("s_cbranch_scc1 tb_wait")
    a("s_add_u32 s46, s49, 32")
    a("s_lshl_b32 s46, s46, 12")
    a("s_add_u32 s46, s46, 0x%x" % CTR)
    a("s_mov_b64 exec, 1")
    a("v_mov_b32 v12, 1")
    a("v_mov_b32 v13, 0")
    a("buffer_atomic_add v12, v13, s[8:11], s46 offen sc1")
    a("s_mov_b32 s47, 0")
    a.label("tb_loop")
    a("buffer_load_dword v14, v13, s[8:11], s46 offen sc1")
    a("s_waitcnt vmcnt(0)")
    a("v_readfirstlane_b32 s48, v14")
    a("s_cmp_ge_u32 s48, 4")
    a("s_cbranch_scc1 tb_done")
    a("s_add_u32 s47, s47, 1")
    a("s_cmp_gt_u32 s47, 40000")
    a("s_cbranch_scc1 tb_done")
    a("s_sleep 4")
    a("s_branch tb_loop")
    a.label("tb_done")
    a("s_mov_b64 exec, -1")
    a.label("tb_wait")
    a("s_barrier")
    a.phase = 3


RB = 176


def reduce_pre(a, part=None):
    if part == 2:
        for j in range(2):
            B = RB + 4 + 32 * j
            a("buffer_load_dwordx2 %s, v%d, s[52:55], 0 offen" % (vr(B + 16, 2), B + 26))
            a("buffer_load_dwordx2 %s, v%d, s[56:59], 0 offen" % (vr(B + 18, 2), B + 27))
        return
    a("s_load_dwordx2 s[52:53], s[0:1], 0")
    a("s_load_dwordx2 s[56:57], s[0:1], 80")
    a("s_load_dwordx2 s[60:61], s[0:1], 88")
    a("s_mov_b32 s54, 0x200000")
    a("s_mov_b32 s55, 0x20000")
    a("s_mov_b32 s58, 1024")
    a("s_mov_b32 s59, 0x20000")
    a("s_mov_b32 s62, 0x200000")
    a("s_mov_b32 s63, 0x20000")
    T = RB + 70
    a("s_lshr_b32 s23, s6, 2")
    a("v_and_b32 v%d, 255, v0" % T)
    a("s_add_u32 s50, s45, s23")
    a("v_lshlrev_b32 v%d, 4, v%d" % (RB + 1, T))
    if not part:
        a("s_waitcnt lgkmcnt(0)")
    for j in range(2):
        B = RB + 4 + 32 * j
        v2, v3 = RB + 2, B + 27
        a("s_add_u32 s51, s50, %d" % (2 * j))
        a("s_lshr_b32 s64, s51, 4")
        a("s_lshr_b32 s65, s51, 2")
        a("s_and_b32 s65, s65, 3")
        a("s_and_b32 s66, s51, 3")
        a("s_lshr_b32 s16, s64, 2")
        a("s_and_b32 s17, s64, 3")
        a("s_lshr_b32 s18, s65, 1")
        a("s_and_b32 s19, s65, 1")
        a("s_lshr_b32 s28, s66, 1")
        a("s_and_b32 s29, s66, 1")
        a("s_lshl_b32 s20, s16, 2")
        a("s_lshl_b32 s21, s18, 1")
        a("s_add_u32 s20, s20, s21")
        a("s_add_u32 s20, s20, s28")
        a("s_lshl_b32 s20, s20, 15")
        a("s_lshl_b32 s21, s17, 2")
        a("s_lshl_b32 s22, s19, 1")
        a("s_add_u32 s21, s21, s22")
        a("s_add_u32 s21, s21, s29")
        a("s_lshl_b32 s21, s21, 6")
        a("v_and_b32 v%d, 31, v%d" % (v2, T))
        a("v_lshlrev_b32 v%d, 10, v%d" % (v2, v2))
        a("v_lshrrev_b32 v%d, 6, v%d" % (v3, T))
        a("v_lshlrev_b32 v%d, 4, v%d" % (v3, v3))
        a("v_bfe_u32 v%d, v%d, 5, 1" % (B + 16, T))
        a("v_lshl_add_u32 v%d, v%d, 3, v%d" % (v3, B + 16, v3))
        a("v_add_u32 v%d, s21, v%d" % (v3, v3))
        a("v_add_u32 v%d, v%d, v%d" % (v2, v2, v3))
        a("v_add_u32 v%d, s20, v%d" % (B + 26, v2))
        if not part:
            a("buffer_load_dwordx2 %s, v%d, s[52:55], 0 offen" % (vr(B + 16, 2), B + 26))
            a("buffer_load_dwordx2 %s, v%d, s[56:59], 0 offen" % (vr(B + 18, 2), v3))


def gen_reduce(a):
    a.label("reduce_kernel")
    a.ostamp()
    a.stamp()
    if SENT:
        a("s_mov_b32 s47, 0")
        a.label("red_poll")
    for j in range(2):
        B = RB + 4 + 32 * j
        a("s_lshl_b32 s51, s50, 12")
        a("s_add_u32 s51, s51, 0x%x" % (PART + j * 8192))
        for p in range(4):
            a("buffer_load_dwordx4 %s, v%d, s[8:11], s51 offen%s" % (vr(B + 4 * p, 4), RB + 1, " sc1" if SENT else ""))
            if p < 3:
                a("s_add_u32 s51, s51, 0x400000")
    if SENT:
        for j in range(2):
            B = RB + 4 + 32 * j
            a("s_waitcnt vmcnt(%d)" % (4 - 4 * j))
            a("v_max3_u32 v%d, v%d, v%d, v%d" % (248 + j, B, B + 1, B + 2))
            for i in range(6):
                a("v_max3_u32 v%d, v%d, v%d, v%d" % (248 + j, 248 + j, B + 3 + 2 * i, B + 4 + 2 * i))
            a("v_max_u32 v%d, v%d, v%d" % (248 + j, 248 + j, B + 15))
        a("v_max_u32 v248, v248, v249")
        a("v_cmp_eq_u32 vcc, -1, v248")
        a("s_nop 1")
        a("s_cbranch_vccz red_ok")
        a("s_add_u32 s47, s47, 1")
        a("s_cmp_gt_u32 s47, 20000")
        a("s_cbranch_scc1 red_ok")
        a("s_sleep %s" % os.environ.get("RSL", "4"))
        a("s_branch red_poll")
        a.label("red_ok")
    for j in range(2):
        B = RB + 4 + 32 * j
        for p in range(2):
            a("v_lshlrev_b32 v%d, 16, v%d" % (B + 20, B + 16 + p))
            a("v_and_b32 v%d, 0xffff0000, v%d" % (B + 21, B + 16 + p))
            a("v_lshlrev_b32 v%d, 16, v%d" % (B + 22, B + 18 + p))
            a("v_and_b32 v%d, 0xffff0000, v%d" % (B + 23, B + 18 + p))
            a("v_add_f32 v%d, v%d, v%d" % (B + 28 + 2 * p, B + 20, B + 22))
            a("v_add_f32 v%d, v%d, v%d" % (B + 29 + 2 * p, B + 21, B + 23))
    for j in range(2):
        B = RB + 4 + 32 * j
        a("s_waitcnt vmcnt(%d)" % (4 - 4 * j))
        for i in range(4):
            a("v_add_f32 v%d, v%d, v%d" % (B + i, B + i, B + 4 + i))
            a("v_add_f32 v%d, v%d, v%d" % (B + 8 + i, B + 8 + i, B + 12 + i))
        for i in range(4):
            a("v_add_f32 v%d, v%d, v%d" % (B + i, B + i, B + 8 + i))
        for i in range(4):
            a("v_add_f32 v%d, v%d, v%d" % (B + i, B + i, B + 28 + i))
        for p in range(2):
            a("v_cvt_pk_bf16_f32 v%d, v%d, v%d" % (B + 24 + p, B + 2 * p, B + 1 + 2 * p))
        a("buffer_store_dwordx2 %s, v%d, s[60:63], 0 offen" % (vr(B + 24, 2), B + 26))
    a.stamp()
    a.stamp_flush(0)
    if os.environ.get("STAMP"):
        a("s_waitcnt vmcnt(0)")
        a("s_memrealtime s[18:19]")
        a("s_load_dwordx2 s[8:9], s[0:1], 96")
        a("s_mov_b32 s10, 65536")
        a("s_mov_b32 s11, 0x20000")
        a("s_lshl_b32 s20, s2, 4")
        a("s_add_u32 s20, s20, %d" % (4096 + 4096 * 3))
        a("s_waitcnt lgkmcnt(0)")
        a("s_mov_b64 exec, 1")
        a("v_mov_b32 v4, s18")
        a("v_mov_b32 v5, s93")
        a("v_mov_b32 v6, s18")
        a("v_mov_b32 v7, s92")
        a("v_mov_b32 v2, 0")
        a("buffer_store_dwordx4 v[4:7], v2, s[8:11], s20 offen")
    if os.environ.get("OST"):
        a("s_waitcnt vmcnt(0)")
    a.ostamp(True)
    a("s_endpgm")
```

```python
from gen import vr, sr, QF, KF, VF, AF, AF_BLK, PART, CTR, EARLY
import math
import os
EXP = os.environ.get("EXP", "")
SENT = "sent" in EXP
MST = os.environ.get("MST")
AVW = os.environ.get("AVW")
OIL = os.environ.get("OIL")

SCALE_LOG2E = (128 ** -0.5) * math.log2(math.e)


def f32hex(x):
    import struct
    return "0x%08x" % struct.unpack("<I", struct.pack("<f", x))[0]


def interleave(a, mf, fl):
    n = len(mf)
    pos = 0
    for i in range(n):
        a(mf[i])
        end = (len(fl) * (i + 1)) // n
        while pos < end:
            a(fl[pos])
            pos += 1


def gen_attn(a):
    V_LDS = 2
    V_DMA = 3
    V_LG = 4
    V_NEG = 5
    V_RDV = 6
    V_RDK = 7
    V_M = 8
    V_L = 9
    V_T = 10
    V_Q = 16
    V_O = 48
    V_S = 112
    V_P = 144
    V_K = 152
    V_V = 184
    S_MASK = 36
    S_LB = 35
    S_THR = 34
    V_C = 216
    V_E = 232
    NBUF = 5
    LDSZ = NBUF * 32768

    a.label("attn_kernel")
    if not EARLY:
        a.stamp()
    a("s_load_dwordx2 s[8:9], s[0:1], 104")
    if "df" in EXP:
        a("s_load_dwordx2 s[86:87], s[0:1], 96")
        a("v_mov_b32 v255, 0")
    a("v_lshrrev_b32 v1, 6, v0")
    a("s_nop 0")
    a("v_readfirstlane_b32 s6, v1")
    a("v_and_b32 v1, 63, v0")
    a("s_lshr_b32 s22, s6, 2")
    a("s_and_b32 s23, s6, 3")
    a("s_and_b32 s3, s2, 7")
    a("s_lshl_b32 s3, s3, 2")
    a("s_lshr_b32 s4, s2, 3")
    a("s_and_b32 s4, s4, 3")
    a("s_add_u32 s3, s3, s4")
    a("s_lshr_b32 s4, s2, 5")
    a("s_sub_u32 s5, 15, s4")
    a("s_mov_b32 s24, 0")
    a("s_mov_b32 s77, 1000000")
    a("s_mov_b32 s10, 0x10000000")
    a("s_mov_b32 s11, 0x20000")
    a("s_lshl_b32 s12, s3, 19")
    a("v_lshlrev_b32 v%d, 4, v1" % V_LDS)
    a("s_lshl_b32 s13, s23, 11")
    a("s_lshl_b32 s25, s22, 13")
    a("s_add_u32 s25, s25, s13")
    a("v_add_u32 v%d, s25, v%d" % (V_DMA, V_LDS))
    a("s_lshl_b32 s26, s22, 14")
    a("v_add_u32 v%d, s26, v%d" % (V_LG, V_LDS))
    a("s_add_u32 s27, s26, s13")
    a("v_and_b32 v12, 31, v1")
    a("v_lshrrev_b32 v13, 5, v1")
    a("v_lshlrev_b32 v13, 2, v13")
    a("v_sub_u32 v12, v12, v13")
    for r in range(16):
        kl = 8 * (r >> 2) + (r & 3)
        a("v_cmp_le_i32 %s, %d, v12" % (sr(S_MASK + 2 * r, 2), kl))
    a("v_mov_b32 v%d, 0xf149f2ca" % V_NEG)
    a("s_waitcnt lgkmcnt(0)")

    def bump(sreg):
        return ["s_add_u32 s%d, s%d, 32768" % (sreg, sreg),
                "s_cmp_ge_u32 s%d, %d" % (sreg, LDSZ),
                "s_cselect_b32 s%d, 0, s%d" % (sreg, sreg)]

    def dma_ops():
        ops = []
        ops.append("s_add_u32 m0, s27, s28")
        ops.append("s_cmp_eq_u32 s78, s79")
        ops.append("s_cselect_b32 s16, s80, s16")
        ops.append("s_cselect_b32 s17, s81, s17")
        ops.append("s_add_u32 s78, s78, 1")
        for i in range(2):
            ops.append("buffer_load_dwordx4 v%d, s[8:11], s16 offen offset:%d lds" % (V_DMA, i * 1024))
        ops.append("s_add_u32 m0, m0, 8192")
        ops.append("s_add_u32 s16, s16, 16384")
        for i in range(2):
            ops.append("buffer_load_dwordx4 v%d, s[8:11], s17 offen offset:%d lds" % (V_DMA, i * 1024))
        ops.append("s_add_u32 s17, s17, 16384")
        ops += bump(28)
        return ops

    def dma():
        for x in dma_ops():
            a(x)

    def tstamp(k):
        if not os.environ.get("STAMP"):
            return
        a("s_memtime s[98:99]")
        a("s_waitcnt lgkmcnt(0)")
        a("s_cmp_eq_u32 s24, 0")
        a("s_cselect_b32 s%d, s98, s%d" % (69 + k, 69 + k))
        a("s_cselect_b32 s%d, s%d, s98" % (73 + k, 73 + k))

    def kread_ops():
        return ["ds_read_b128 %s, v%d offset:%d" % (vr(V_K + 4 * s, 4), V_RDK, s * 1024) for s in range(8)] + \
            bump(33) + ["v_add_u32 v%d, s33, v%d" % (V_RDK, V_LG)]

    def vread_ops():
        order = (0, 2, 4, 6, 1, 3, 5, 7) if AVW else range(8)
        return ["ds_read_b128 %s, v%d offset:%d" % (vr(V_V + 4 * i, 4), V_RDV, 8192 + i * 1024) for i in order] + \
            bump(32) + ["v_add_u32 v%d, s32, v%d" % (V_RDV, V_LG)]

    def qk_ops(sp):
        ops = []
        S = V_S + 16 * sp
        for s in range(8):
            c = vr(V_C, 16) if s == 0 else vr(S, 16)
            ops.append("v_mfma_f32_32x32x16_bf16 %s, %s, %s, %s" % (vr(S, 16), vr(V_K + 4 * s, 4), vr(V_Q + 4 * s, 4), c))
        return ops

    def pv_ops():
        ops = []
        for t in range(2):
            for dt in range(4):
                o = vr(V_O + 16 * dt, 16)
                ops.append("v_mfma_f32_32x32x16_bf16 %s, %s, %s, %s" % (o, vr(V_V + 4 * (dt * 2 + t), 4), vr(V_P + 4 * t, 4), o))
        return ops

    def max_ops(S, t0, t1):
        return ["v_max3_f32 v%d, v%d, v%d, v%d" % (t0, S, S + 1, S + 2),
                "v_max3_f32 v%d, v%d, v%d, v%d" % (t1, S + 3, S + 4, S + 5),
                "v_max3_f32 v%d, v%d, v%d, v%d" % (t0, t0, S + 6, S + 7),
                "v_max3_f32 v%d, v%d, v%d, v%d" % (t1, t1, S + 8, S + 9),
                "v_max3_f32 v%d, v%d, v%d, v%d" % (t0, t0, S + 10, S + 11),
                "v_max3_f32 v%d, v%d, v%d, v%d" % (t1, t1, S + 12, S + 13),
                "v_max3_f32 v%d, v%d, v%d, v%d" % (t0, t0, S + 14, S + 15),
                "v_max_f32 v%d, v%d, v%d" % (t0, t0, t1),
                "v_mov_b32 v%d, v%d" % (t1, t0)]

    def soft_ops(S, t2, t3):
        P = V_P
        E = V_E
        vb = []
        for r in range(16):
            vb.append("v_exp_f32 v%d, v%d" % (E + r, S + r))
            if r >= 3 and r % 2 == 1:
                q = r - 3
                vb.append("v_cvt_pk_bf16_f32 v%d, v%d, v%d" % (P + q // 2, E + q, E + q + 1))
                if q == 0:
                    vb.append("v_add_f32 v%d, v%d, v%d" % (t2, E, E + 1))
                elif q == 2:
                    vb.append("v_add_f32 v%d, v%d, v%d" % (t3, E + 2, E + 3))
                else:
                    vb.append("v_add_f32 v%d, v%d, v%d" % (t2, t2, E + q))
                    vb.append("v_add_f32 v%d, v%d, v%d" % (t3, t3, E + q + 1))
        vb.append("v_add_f32 v%d, v%d, v%d" % (t2, t2, t3))
        vb.append("v_cvt_pk_bf16_f32 v%d, v%d, v%d" % (P + 7, E + 14, E + 15))
        vb.append("v_add_f32 v%d, v%d, v%d" % (t3, E + 14, E + 15))
        vb.append("v_add_f32 v%d, v%d, v%d" % (t2, t2, t3))
        return vb

    cnt = [0]
    rare = []

    def mask(L, S):
        a("s_lshl_b32 s29, s18, 1")
        a("s_add_u32 s29, s29, s22")
        a("s_cmp_lt_u32 s29, s30")
        a("s_cbranch_scc1 %s_nomask" % L)
        a("s_cmp_eq_u32 s29, s30")
        a("s_cbranch_scc1 %s_tri" % L)
        for r in range(16):
            a("v_mov_b32 v%d, v%d" % (S + r, V_NEG))
        a("s_branch %s_nomask" % L)
        a.label("%s_tri" % L)
        for r in range(16):
            a("v_cndmask_b32 v%d, v%d, v%d, %s" % (S + r, V_NEG, S + r, sr(S_MASK + 2 * r, 2)))
        a.label("%s_nomask" % L)

    def phaseA(sp, diag, last=False):
        cnt[0] += 1
        L = "attn_it%d" % cnt[0]
        S = V_S + 16 * sp
        T = V_T
        if diag:
            mask(L, S)
        qk = qk_ops(sp ^ 1)
        S2 = V_S + 16 * (sp ^ 1)
        so = soft_ops(S, T + 3, T + 4)
        vrd = vread_ops()
        mix = []
        step = len(so) // len(vrd)
        k = 0
        for i, x in enumerate(so):
            mix.append(x)
            if i % step == step - 1 and k < len(vrd):
                mix.append(vrd[k])
                k += 1
        mix += vrd[k:]
        if last:
            for x in mix:
                a(x)
        else:
            interleave(a, qk, mix)
        a("v_cmp_lt_f32 vcc, s%d, v%d" % (S_THR, T + 3))
        a("s_nop 1")
        a("s_cbranch_vccnz %s_rs" % L)
        a.label("%s_nors" % L)
        a("v_add_f32 v%d, v%d, v%d" % (V_L, V_L, T + 3))
        blk = ["%s_rs:" % L]
        if os.environ.get("STAMP"):
            blk.append("s_add_u32 s77, s77, 1")
        blk += max_ops(S, T, T + 1)
        blk += ["s_nop 1",
                "v_permlane32_swap_b32 v%d, v%d" % (T, T + 1),
                "s_nop 0",
                "v_max3_f32 v%d, v%d, v%d, s%d" % (T, T, T + 1, S_LB),
                "v_exp_f32 v%d, -v%d" % (T + 1, T),
                "v_add_f32 v%d, v%d, v%d" % (V_M, V_M, T),
                "v_min_f32 v%d, 0x7149f2ca, v%d" % (T + 1, T + 1),
                "s_mov_b32 s%d, 0x53800000" % S_THR,
                "s_mov_b32 s%d, 0" % S_LB,
                "v_mul_f32 v%d, v%d, v%d" % (V_L, V_L, T + 1)]
        for i in range(64):
            blk.append("v_mul_f32 v%d, v%d, v%d" % (V_O + i, V_O + i, T + 1))
        for r in range(16):
            blk.append("v_sub_f32 v%d, v%d, v%d" % (S + r, S + r, T))
        blk += so
        for r in range(16):
            blk.append("v_sub_f32 v%d, v%d, v%d" % (V_C + r, V_C + r, T))
        for r in range(16 if not last else 0):
            blk.append("v_sub_f32 v%d, v%d, v%d" % (S2 + r, S2 + r, T))
        blk.append("s_branch %s_nors" % L)
        rare.append(blk)
        a("s_add_u32 s18, s18, 1")

    def phaseC(mode="n"):
        ASP = os.environ.get("ASP", "")
        avw = AVW and mode == "n" and ASP == "a"
        a("s_waitcnt lgkmcnt(%d)" % (4 if avw else 0))
        a("s_nop 0")
        if mode == "n" and ASP:
            k, d = kread_ops(), dma_ops()
            if ASP == "a":
                per = [k[0:3], k[3:5] + d[0:6], k[5:8], k[8:12] + d[6:7], d[7:9], d[9:10], d[10:11], d[11:]]
            elif ASP == "b":
                per = [k[0:2] + d[0:6], k[2:5], k[5:7] + d[6:9], k[7:12], d[9:10], [], d[10:11], d[11:]]
            elif ASP == "d":
                per = [k[0:2] + d[0:6], k[2:4], k[4:5] + d[6:9], k[5:7], k[7:8] + d[9:10], k[8:12], d[10:11], d[11:]]
            elif ASP == "e":
                per = [k[0:3], k[3:5] + d[0:6], k[5:8] + d[6:7], k[8:12] + d[7:9], d[9:10], d[10:11], d[11:], []]
            else:
                per = [k[0:4], k[4:8], k[8:12] + d[0:6], [], d[6:9], d[9:10], [], d[10:]]
            for i, (m, p) in enumerate(zip(pv_ops(), per)):
                if avw and i == 4:
                    a("s_waitcnt lgkmcnt(8)")
                a(m)
                for x in p:
                    a(x)
            return
        if mode == "n":
            f = kread_ops() + dma_ops()
        elif mode == "k":
            f = kread_ops()
        else:
            k = int(mode[1])
            f = ["buffer_load_dwordx4 %s, v%d, s[8:11], s%d offen offset:%d" % (
                vr(V_Q + 16 * k + 4 * s_, 4), V_LDS, 82 + k, s_ * 1024) for s_ in range(4)]
        interleave(a, pv_ops(), f)

    def bar():
        a("s_waitcnt vmcnt(4) lgkmcnt(0)")
        a("s_barrier")

    def tile_front(qt):
        a("s_lshl_b32 s15, s%d, 2" % qt)
        a("s_add_u32 s15, s15, s23")
        a("s_lshl_b32 s15, s15, 13")
        a("s_add_u32 s15, s15, s12")
        for k in range(2):
            for s in range(4):
                a("buffer_load_dwordx4 %s, v%d, s[8:11], s15 offen offset:%d" % (vr(V_Q + 16 * k + 4 * s, 4), V_LDS, s * 1024))
            a("s_add_u32 s15, s15, 4096")
        a("s_add_u32 s16, s12, 0x%x" % KF)
        a("s_add_u32 s17, s12, 0x%x" % VF)
        a("s_mov_b32 s28, 98304")
        a("s_mov_b32 s78, 0")
        a("s_mov_b32 s79, -1")
        dma()
        dma()
        dma()
        dma()

    if EARLY:
        ring = [98304, 131072, 0, 32768]
        a.eb_pre()
        a("s_lshl_b32 s15, s5, 2")
        a("s_add_u32 s15, s15, s23")
        a("s_lshl_b32 s15, s15, 13")
        a("s_add_u32 s15, s15, s12")
        a("s_add_u32 s16, s12, 0x%x" % KF)
        a("s_add_u32 s17, s12, 0x%x" % VF)
        for st in range(4):
            a("s_add_u32 m0, s27, %d" % ring[st])
            a("s_nop 0")
            for i in range(2):
                a("buffer_load_dwordx4 v%d, s[8:11], s16 offen offset:%d lds" % (V_DMA, i * 1024))
            a("s_add_u32 s16, s16, 16384")
            if st == 0:
                for k in range(2):
                    for s_ in range(4):
                        a("buffer_load_dwordx4 %s, v%d, s[8:11], s15 offen offset:%d" % (vr(V_Q + 16 * k + 4 * s_, 4), V_LDS, s_ * 1024))
                    a("s_add_u32 s15, s15, 4096")
        a.eb_post()
        a.stamp()
        for st in range(4):
            a("s_add_u32 m0, s27, %d" % (ring[st] + 8192))
            a("s_nop 0")
            for i in range(2):
                a("buffer_load_dwordx4 v%d, s[8:11], s17 offen offset:%d lds" % (V_DMA, i * 1024))
            a("s_add_u32 s17, s17, 16384")
        a("s_mov_b32 s28, 65536")
        a("s_mov_b32 s78, 4")
    else:
        tile_front(5)
    a("s_mov_b32 s32, 98304")
    a("s_add_u32 s80, s12, 0x%x" % KF)
    a("s_add_u32 s81, s12, 0x%x" % VF)
    a("s_lshl_b32 s82, s4, 2")
    a("s_add_u32 s82, s82, s23")
    a("s_lshl_b32 s82, s82, 13")
    a("s_add_u32 s82, s82, s12")
    a("s_add_u32 s83, s82, 4096")
    a.label("attn_tile")
    a("s_lshl_b32 s14, s5, 2")
    a("s_add_u32 s14, s14, s23")
    a("s_mov_b32 s30, s14")
    a("s_lshl_b32 s79, s5, 1")
    a("s_add_u32 s79, s79, 2")
    a("s_mov_b32 s33, s32")
    a("v_add_u32 v%d, s32, v%d" % (V_RDV, V_LG))
    a("v_add_u32 v%d, s32, v%d" % (V_RDK, V_LG))
    a("v_mov_b32 v%d, 0" % V_M)
    a("s_mov_b32 s%d, 0xbf800000" % S_THR)
    a("s_mov_b32 s%d, 0xff7fffff" % S_LB)
    for i in range(16):
        a("v_mov_b32 v%d, 0" % (V_C + i))
    a("v_mov_b32 v%d, 0" % V_L)
    for i in range(64):
        a("v_mov_b32 v%d, 0" % (V_O + i))
    a("s_lshl_b32 s19, s5, 1")
    a("s_mov_b32 s18, 0")
    a("s_waitcnt vmcnt(8)")
    a("s_cmp_eq_u32 s24, 0")
    a("s_cbranch_scc1 attn_w2")
    a("s_waitcnt vmcnt(%d)" % (12 if SENT else 4))
    a.label("attn_w2")
    a("s_barrier")
    if "df" in EXP:
        a("global_load_dword v254, v255, s[86:87] sc1")
    if not MST:
        tstamp(0)
    for x in kread_ops():
        a(x)
    a("s_cmp_eq_u32 s24, 0")
    a("s_cbranch_scc1 attn_w3")
    a("s_mov_b32 s78, 2")
    dma()
    dma()
    a.label("attn_w3")
    a("s_waitcnt lgkmcnt(0)")
    for x in qk_ops(0):
        a(x)
    for x in kread_ops():
        a(x)
    if "noinit" not in EXP:
        a.nop(8)
        S, T = V_S, V_T
        a("s_cmp_lg_u32 s5, 0")
        a("s_cbranch_scc1 attn_im_nomask")
        mask("attn_im", S)
        for x in max_ops(S, T, T + 1):
            a(x)
        a("s_nop 1")
        a("v_permlane32_swap_b32 v%d, v%d" % (T, T + 1))
        a("s_nop 0")
        a("v_max_f32 v%d, v%d, v%d" % (T, T, T + 1))
        a("s_mov_b32 s%d, 0x53800000" % S_THR)
        a("s_mov_b32 s%d, 0" % S_LB)
        a("v_mov_b32 v%d, v%d" % (V_M, T))
        for r in range(16):
            a("v_sub_f32 v%d, v%d, v%d" % (S + r, S + r, T))
        for r in range(16):
            a("v_sub_f32 v%d, 0, v%d" % (V_C + r, T))
    a("s_cmp_eq_u32 s22, 1")
    a("s_cbranch_scc1 attn_g1")
    a("s_cmp_eq_u32 s5, 0")
    a("s_cbranch_scc1 attn_diag0")
    a.label("attn_loop0")
    a.inloop = "og" not in EXP
    for sp in range(2):
        bar()
        a("s_waitcnt lgkmcnt(0)")
        phaseA(sp, False)
        phaseC()
    a.inloop = False
    a("s_cmp_lt_u32 s18, s19")
    a("s_cbranch_scc1 attn_loop0")
    a.label("attn_diag0")
    if not MST:
        tstamp(1)
    for sp in range(2):
        bar()
        a("s_waitcnt lgkmcnt(0)")
        phaseA(sp, True, sp == 1)
        phaseC("q%d" % sp)
    tstamp(2)
    a("s_branch attn_merge")
    a.label("attn_g1")
    bar()
    a("s_waitcnt lgkmcnt(0)")
    a("s_cmp_eq_u32 s5, 0")
    a("s_cbranch_scc1 attn_diag1a")
    dma()
    phaseA(0, False)
    a.label("attn_loop1")
    a.inloop = "og" not in EXP
    bar()
    phaseC()
    a("s_waitcnt lgkmcnt(0)")
    phaseA(1, False)
    a.inloop = False
    a("s_cmp_ge_u32 s18, s19")
    a("s_cbranch_scc1 attn_diag1")
    a.inloop = "og" not in EXP
    bar()
    phaseC()
    a("s_waitcnt lgkmcnt(0)")
    phaseA(0, False)
    a.inloop = False
    a("s_branch attn_loop1")
    a.label("attn_diag1")
    bar()
    phaseC("k")
    a("s_waitcnt lgkmcnt(0)")
    a.label("attn_diag1a")
    phaseA(0, True)
    bar()
    phaseC("q0")
    phaseA(1, True, True)
    phaseC("q1")
    a.label("attn_merge")

    def slot(wreg, vdst):
        a("s_mul_i32 s29, s%d, 11" % wreg)
        a("s_lshr_b32 s29, s29, 5")
        a("s_mul_i32 s84, s29, 3")
        a("s_sub_u32 s84, s%d, s84" % wreg)
        a("s_lshl_b32 s29, s29, 15")
        a("s_add_u32 s29, s29, s28")
        a("s_sub_u32 s85, s29, %d" % LDSZ)
        a("s_cmp_ge_u32 s29, %d" % LDSZ)
        a("s_cselect_b32 s29, s85, s29")
        a("s_mul_i32 s84, s84, 9216")
        a("s_add_u32 s29, s29, s84")
        a("v_add_u32 v%d, s29, v%d" % (vdst, V_LDS))
    slot(6, 12)
    a("s_xor_b32 s31, s6, 4")
    slot(31, 13)
    a("s_waitcnt lgkmcnt(0)")
    a("s_barrier")
    if MST:
        tstamp(0)
    a.nop(4)
    for g in range(2):
        if g == 0:
            a("s_cmp_eq_u32 s22, 1")
            a("s_cbranch_scc1 attn_mg1")
        else:
            a.label("attn_mg1")
        keep, send = V_O + 32 * g, V_O + 32 * (1 - g)
        for i in range(8):
            a("ds_write_b128 v12, %s offset:%d" % (vr(send + 4 * i, 4), i * 1024))
        a("ds_write_b64 v12, v[%d:%d] offset:8192" % (V_M, V_L))
        a("s_waitcnt lgkmcnt(0)")
        a("s_barrier")
        if MST and g == 0:
            tstamp(1)
        a("ds_read_b64 v[14:15], v13 offset:8192")
        for i in range(8):
            a("ds_read_b128 %s, v13 offset:%d" % (vr(V_K + 4 * i, 4), i * 1024))
        a("s_waitcnt lgkmcnt(8)")
        a("v_max_f32 v10, v%d, v14" % V_M)
        a("v_sub_f32 v11, v%d, v10" % V_M)
        a("v_sub_f32 v10, v14, v10")
        a("v_exp_f32 v11, v11")
        a("v_exp_f32 v10, v10")
        a.nop(1)
        a("v_mul_f32 v%d, v%d, v11" % (V_L, V_L))
        a("v_fma_f32 v%d, v15, v10, v%d" % (V_L, V_L))
        a("v_mov_b32 v14, v%d" % V_L)
        a.nop(2)
        a("v_permlane32_swap_b32 v%d, v14" % V_L)
        a.nop(1)
        a("v_add_f32 v14, v14, v%d" % V_L)
        a("v_rcp_f32 v14, v14")
        a.nop(1)
        a("v_mul_f32 v11, v11, v14")
        a("v_mul_f32 v10, v10, v14")
        a("s_mul_i32 s20, s14, %d" % AF_BLK)
        a("s_lshl_b32 s21, s3, 13")
        a("s_add_u32 s20, s20, s21")
        a("s_add_u32 s20, s20, 0x%x" % (AF + 4096 * g))
        a("s_waitcnt lgkmcnt(0)")
        for i in range(32):
            a("v_mul_f32 v%d, v%d, v10" % (V_K + i, V_K + i))
            a("v_fma_f32 v%d, v%d, v11, v%d" % (V_K + i, keep + i, V_K + i))
        for k in range(4):
            d = V_V + k * 4
            for p in range(4):
                x0 = V_K + 8 * k + 2 * p
                a("v_cvt_pk_bf16_f32 v%d, v%d, v%d" % (d + p, x0, x0 + 1))
            a("buffer_store_dwordx4 %s, v%d, s[8:11], s20 offen offset:%d sc1" % (vr(d, 4), V_LDS, k * 1024))
        if g == 0:
            a("s_branch attn_mgdone")
    a.label("attn_mgdone")
    if SENT:
        a("s_cmp_eq_u32 s24, 1")
        a("s_cbranch_scc1 attn_noclr")
        a("s_lshl_b32 s20, s2, 16")
        a("s_lshl_b32 s21, s6, 13")
        a("s_add_u32 s20, s20, s21")
        a("s_add_u32 s20, s20, 0x%x" % PART)
        a("s_add_u32 s21, s20, 4096")
        for k in range(4):
            a("v_mov_b32 v%d, -1" % (V_K + k))
        for k in range(8):
            a("buffer_store_dwordx4 %s, v%d, s[8:11], s%d offen offset:%d sc1" % (vr(V_K, 4), V_LDS, 20 if k < 4 else 21, (k & 3) * 1024))
        a.label("attn_noclr")
    tstamp(3)
    a.nst = 10
    a("s_cmp_eq_u32 s24, 1")
    a("s_cbranch_scc1 attn_fin")
    a("s_mov_b32 s24, 1")
    a("s_mov_b32 s5, s4")
    for r in (80, 81, 82, 83):
        a("s_mov_b32 s%d, 0x10000000" % r)
    a("s_branch attn_tile")
    a.label("attn_fin")
    a.stamp_flush(0)
    a.label("attn_end")
    a("s_branch attn_after")
    for blk in rare:
        a.label(blk[0][:-1])
        for x in blk[1:]:
            a(x)
    a.label("attn_after")
    a.ostamp()
    if "ov" in EXP:
        a("s_waitcnt vmcnt(4) lgkmcnt(0)")
    else:
        a("s_waitcnt vmcnt(0) lgkmcnt(0)")
    if "df" in EXP:
        a("s_mov_b32 s88, 0")
        a.label("df_chk")
        a("v_readfirstlane_b32 s89, v254")
        a("s_cmp_ge_u32 s89, 16")
        a("s_cbranch_scc1 df_ok")
        a("s_add_u32 s88, s88, 1")
        a("s_cmp_gt_u32 s88, 40000")
        a("s_cbranch_scc1 df_ok")
        a("s_sleep 8")
        a("global_load_dword v254, v255, s[86:87] sc1")
        a("s_waitcnt vmcnt(0)")
        a("s_branch df_chk")
        a.label("df_ok")
    a("s_barrier")
    a.phase = 2


def gen_ogemm(a):
    V_AL = 2
    V_TR = 4
    V_DA = 8
    V_DB = 9
    V_ST = 11
    V_F = 16
    V_ACC = 48
    NST = 23
    a.label("ogemm_kernel")
    a.stamp()
    a("s_load_dwordx2 s[8:9], s[0:1], 104")
    a("s_load_dwordx2 s[24:25], s[0:1], 40")
    a("s_load_dwordx2 s[26:27], s[0:1], 72")
    a("v_lshrrev_b32 v1, 6, v0")
    a("s_nop 0")
    a("v_readfirstlane_b32 s6, v1")
    a("v_and_b32 v1, 63, v0")
    a("s_lshr_b32 s3, s2, 4")
    a("s_and_b32 s4, s2, 1")
    a("s_lshl_b32 s4, s4, 1")
    a("s_bfe_u32 s5, s2, 0x10003")
    a("s_or_b32 s4, s4, s5")
    a("s_bfe_u32 s5, s2, 0x20001")
    if "same" in EXP:
        a("s_mov_b32 s3, 0")
        a("s_mov_b32 s4, 0")
        a("s_mov_b32 s5, 0")
    if "map1" not in EXP:
        a("s_and_b32 s3, s2, 1")
        a("s_lshl_b32 s3, s3, 3")
        a("s_bfe_u32 s4, s2, 0x30003")
        a("s_or_b32 s3, s3, s4")
        a("s_lshr_b32 s4, s2, 6")
    a("s_mov_b32 s10, 0x10000000")
    a("s_mov_b32 s11, 0x20000")
    a("s_mov_b32 s15, 0x20000")
    a("s_lshr_b32 s30, s6, 2")
    a("s_lshr_b32 s31, s6, 1")
    a("s_and_b32 s31, s31, 1")
    a("s_and_b32 s32, s6, 1")
    a("v_lshlrev_b32 v%d, 4, v1" % V_ST)
    a("s_lshl_b32 s33, s31, 13")
    a("s_lshl_b32 s34, s30, 11")
    a("s_add_u32 s33, s33, s34")
    a("v_add_u32 v%d, s33, v%d" % (V_AL, V_ST))
    a("v_add_u32 v%d, 0x10000, v%d" % (V_AL + 1, V_AL))
    a("v_bfe_u32 v12, v1, 2, 2")
    a("v_lshrrev_b32 v13, 5, v1")
    a("v_lshl_add_u32 v13, v13, 2, v12")
    a("v_lshlrev_b32 v13, 8, v13")
    a("v_bfe_u32 v14, v1, 4, 1")
    a("v_lshl_add_u32 v13, v14, 5, v13")
    a("v_and_b32 v14, 3, v1")
    a("v_lshl_add_u32 v13, v14, 3, v13")
    a("s_lshl_b32 s33, s30, 13")
    a("s_add_u32 s33, s33, 16384")
    a("v_add_u32 v13, s33, v13")
    a("v_lshlrev_b32 v12, 6, v12")
    a("s_lshl_b32 s34, s32, 7")
    for ntl in range(2):
        a("s_add_u32 s35, s34, %d" % (ntl << 6))
        a("v_xor_b32 v14, s35, v12")
        a("v_add_u32 v%d, v13, v14" % (V_TR + ntl))
        a("v_add_u32 v%d, 0x10000, v%d" % (V_TR + 2 + ntl, V_TR + ntl))
    a("s_lshr_b32 s33, s6, 1")
    a("s_lshl_b32 s34, s3, 2")
    a("s_add_u32 s34, s34, s33")
    a("s_mul_i32 s34, s34, %d" % AF_BLK)
    a("s_lshl_b32 s35, s32, 11")
    a("s_add_u32 s34, s34, s35")
    a("s_add_u32 s34, s34, 0x%x" % AF)
    a("v_add_u32 v%d, s34, v%d" % (V_DA, V_ST))
    a("s_lshl_b32 s36, s6, 11")
    a("v_lshrrev_b32 v12, 4, v1")
    a("v_bfe_u32 v13, v1, 2, 2")
    a("v_xor_b32 v13, v13, v12")
    a("v_lshlrev_b32 v13, 6, v13")
    a("v_and_b32 v14, 3, v1")
    a("v_lshl_add_u32 v13, v14, 4, v13")
    a("s_lshl_b32 s33, s6, 3")
    a("v_add_u32 v12, s33, v12")
    a("v_lshlrev_b32 v12, 10, v12")
    a("v_add_u32 v12, v12, v13")
    a("s_lshl_b32 s33, s4, 8")
    a("v_add_u32 v%d, s33, v12" % V_DB)
    a("v_add_u32 v%d, 3072, v%d" % (V_DB + 1, V_DB))
    a("s_mov_b32 s42, 0x1c0000")
    a("s_mul_i32 s37, s5, 7")
    a("s_add_u32 s37, s37, 64")
    a("s_lshl_b32 s44, s5, 4")
    a("s_mov_b32 s43, 0")
    a("s_waitcnt lgkmcnt(0)")

    def dma_parts(buf):
        p0 = ["s_cmp_lt_u32 s37, 64",
              "s_cselect_b32 s12, s24, s26",
              "s_cselect_b32 s13, s25, s27",
              "s_cselect_b32 s14, 0x400000, s42",
              "s_cselect_b32 s39, 0, 64",
              "s_sub_u32 s39, s37, s39",
              "s_lshl_b32 s39, s39, 16",
              "s_lshl_b32 s40, s37, 12",
              "s_cmp_lt_u32 s43, %d" % NST,
              "s_cselect_b32 s14, s14, 0",
              "s_cselect_b32 s40, s40, 0x10000000",
              "s_add_u32 s37, s37, 1",
              "s_add_u32 s43, s43, 1",
              "s_cmp_eq_u32 s43, 7",
              "s_cselect_b32 s37, s44, s37",
              "s_add_u32 m0, s36, %d" % (buf * 32768),
              "s_nop 0",
              "buffer_load_dwordx4 v%d, s[8:11], s40 offen offset:0 lds" % V_DA]
        p1 = ["buffer_load_dwordx4 v%d, s[8:11], s40 offen offset:1024 lds" % V_DA]
        p2 = ["s_add_u32 m0, s36, %d" % (buf * 32768 + 16384),
              "s_nop 0",
              "buffer_load_dwordx4 v%d, s[12:15], s39 offen offset:0 lds" % V_DB]
        p3 = ["buffer_load_dwordx4 v%d, s[12:15], s39 offen offset:1024 lds" % (V_DB + 1)]
        return [p0, p1, p2, p3]

    def dma(buf):
        for p in dma_parts(buf):
            for x in p:
                a(x)

    def reads(buf, sl, st):
        hi = 1 if buf >= 2 else 0
        bo = (buf & 1) * 32768
        f = V_F + st * 16
        for mbl in range(2):
            a("ds_read_b128 %s, v%d offset:%d" % (vr(f + 4 * mbl, 4), V_AL + hi, bo + mbl * 4096 + sl * 1024))
        for ntl in range(2):
            for ird in range(2):
                a("ds_read_b64_tr_b16 %s, v%d offset:%d" % (
                    vr(f + 8 + 4 * ntl + 2 * ird, 2), V_TR + 2 * hi + ntl, bo + sl * 4096 + ird * 2048))

    def mfmas(st, first, ins=None):
        f = V_F + st * 16
        for mbl in range(2):
            for ntl in range(2):
                acc = vr(V_ACC + 16 * (mbl * 2 + ntl), 16)
                c = "0" if first else acc
                a("v_mfma_f32_32x32x16_bf16 %s, %s, %s, %s" % (acc, vr(f + 8 + 4 * ntl, 4), vr(f + 4 * mbl, 4), c))
                for x in (ins or {}).get(mbl * 2 + ntl, []):
                    a(x)

    dma(0)
    dma(1)
    dma(2)
    for i in range(64):
        a("v_mov_b32 v%d, 0" % (V_ACC + i))
    def owg():
        a("s_lshl_b32 s49, s3, 2")
        a("s_add_u32 s49, s49, s4")
        a("s_lshl_b32 s45, s49, 4")
        a("s_lshl_b32 s46, s5, 2")
        a("s_add_u32 s45, s45, s46")

    if "xh" in EXP:
        owg()
        reduce_pre(a, 1)
        a("s_waitcnt lgkmcnt(0)")
    if "ov" in EXP:
        a("s_waitcnt vmcnt(12)")
        a("s_barrier")
    a("s_cmp_lg_u32 s6, 0")
    a("s_cbranch_scc1 ogemm_nosig")
    a.gb_signal(1, "ov" in EXP)
    a.label("ogemm_nosig")
    a("s_mov_b32 s41, 0")
    a("s_waitcnt vmcnt(8)")
    a("s_barrier")
    a.stamp()
    if OIL:
        pass
    else:
        reads(0, 0, 0)

    def rd_ops(buf, sl, st):
        hi = 1 if buf >= 2 else 0
        bo = (buf & 1) * 32768
        f = V_F + st * 16
        A = ["ds_read_b128 %s, v%d offset:%d" % (vr(f + 4 * mbl, 4), V_AL + hi, bo + mbl * 4096 + sl * 1024) for mbl in range(2)]
        B = [["ds_read_b64_tr_b16 %s, v%d offset:%d" % (
            vr(f + 8 + 4 * ntl + 2 * ird, 2), V_TR + 2 * hi + ntl, bo + sl * 4096 + ird * 2048) for ird in range(2)] for ntl in range(2)]
        return [[A[0]] + B[0], B[1], [A[1]], []]

    def body_il(buf, hook, check):
        a("s_waitcnt vmcnt(4)")
        a("s_barrier")
        P = dma_parts((buf + 3) & 3)
        W = ["s_waitcnt lgkmcnt(4)", "s_waitcnt lgkmcnt(5)"]
        R = rd_ops(buf, 1, 1)
        D = [[], [], [], []] if hook else [P[0], [], P[1], []]
        a("s_waitcnt lgkmcnt(3)")
        mfmas(0, False, {0: R[0] + D[0] + W[0:1], 1: R[1] + W[1:2], 2: R[2] + D[2]})
        if hook:
            hook()
        R = rd_ops((buf + 1) & 3, 0, 0)
        D = P if hook else [P[2], [], P[3], []]
        a("s_waitcnt lgkmcnt(3)")
        mfmas(1, False, {0: R[0] + D[0] + W[0:1], 1: R[1] + D[1] + W[1:2], 2: R[2] + D[2], 3: D[3]})
        a("s_add_u32 s41, s41, 1")
        if check:
            a("s_cmp_ge_u32 s41, %d" % NST)
            a("s_cbranch_scc1 ogemm_done")

    def body(buf, hook=None, check=True):
        if OIL:
            return body_il(buf, hook, check)
        a("s_waitcnt vmcnt(4)")
        a("s_barrier")
        reads(buf, 1, 1)
        a("s_waitcnt lgkmcnt(6)")
        OSP = os.environ.get("OSP", "")
        P = dma_parts((buf + 3) & 3)
        if OSP == "a" and not hook:
            mfmas(0, False, {0: P[0], 2: P[1]})
            reads((buf + 1) & 3, 0, 0)
            a("s_waitcnt lgkmcnt(6)")
            mfmas(1, False, {0: P[2], 2: P[3]})
        elif OSP == "d" and not hook:
            mfmas(0, False, {1: P[0], 3: P[1]})
            reads((buf + 1) & 3, 0, 0)
            a("s_waitcnt lgkmcnt(6)")
            mfmas(1, False, {1: P[2], 3: P[3]})
        elif OSP == "b" and not hook:
            mfmas(0, False, {0: P[0], 1: P[1], 2: P[2], 3: P[3]})
            reads((buf + 1) & 3, 0, 0)
            a("s_waitcnt lgkmcnt(6)")
            mfmas(1, False)
        elif OSP:
            mfmas(0, False)
            reads((buf + 1) & 3, 0, 0)
            if hook:
                hook()
            a("s_waitcnt lgkmcnt(6)")
            mfmas(1, False, {0: P[0], 1: P[1], 2: P[2], 3: P[3]})
        else:
            mfmas(0, False)
            reads((buf + 1) & 3, 0, 0)
            if hook:
                hook()
            dma((buf + 3) & 3)
            a("s_waitcnt lgkmcnt(6)")
            mfmas(1, False)
        a("s_add_u32 s41, s41, 1")
        if check:
            a("s_cmp_ge_u32 s41, %d" % NST)
            a("s_cbranch_scc1 ogemm_done")

    def pollhook():
        if "xh" in EXP:
            reduce_pre(a, 2)
        a("s_cmp_lg_u32 s6, 0")
        a("s_cbranch_scc1 ogemm_nopoll")
        a.gb_poll(1)
        a.label("ogemm_nopoll")
        a("s_barrier")
        a.stamp()

    if OIL:
        for x in sum(rd_ops(0, 0, 0), []):
            a(x)

    def sighook():
        a("s_cmp_lg_u32 s6, 0")
        a("s_cbranch_scc1 ogemm_nosig2")
        a.gb_signal2(1)
        a.label("ogemm_nosig2")

    for it in range(8):
        body(it & 3, pollhook if it == 4 else (sighook if it == 1 and "ov" in EXP else None), False)
    a.label("ogemm_loop")
    a.inloop = "og" in EXP
    for buf in range(4):
        body(buf)
    a("s_branch ogemm_loop")
    a.inloop = False
    a.label("ogemm_done")
    a.ostamp()
    a.stamp()
    a("s_waitcnt vmcnt(0) lgkmcnt(0)")
    a("s_barrier")
    a.nop(12)
    a("s_and_b32 s33, s6, 3")
    a("s_lshl_b32 s33, s33, 14")
    a("s_lshl_b32 s34, s6, 13")
    a("v_add_u32 v12, s34, v%d" % V_ST)
    a("s_xor_b32 s34, s34, 0x8000")
    a("v_add_u32 v13, s34, v%d" % V_ST)
    a("s_lshl_b32 s34, s3, 2")
    a("s_add_u32 s34, s34, s4")
    a("s_lshl_b32 s34, s34, 16")
    a("s_add_u32 s34, s34, s33")
    a("s_lshl_b32 s35, s5, 22")
    a("s_add_u32 s34, s34, s35")
    a("s_add_u32 s34, s34, 0x%x" % PART)
    a("s_cmp_eq_u32 s30, 0")
    a("s_cbranch_scc1 ogemm_g0")
    for g in (1, 0):
        if g == 0:
            a.label("ogemm_g0")
        keep, send = V_ACC + 32 * g, V_ACC + 32 * (1 - g)
        for i in range(8):
            a("ds_write_b128 v12, %s offset:%d" % (vr(send + 4 * i, 4), i * 1024))
        a("s_waitcnt lgkmcnt(0)")
        a("s_barrier")
        for i in range(8):
            a("ds_read_b128 %s, v13 offset:%d" % (vr(112 + 4 * i, 4), i * 1024))
        a("s_add_u32 s34, s34, %d" % (8192 * g))
        for i in range(8):
            a("s_waitcnt lgkmcnt(%d)" % (7 - i))
            for k in range(4):
                a("v_add_f32 v%d, v%d, v%d" % (keep + 4 * i + k, keep + 4 * i + k, 112 + 4 * i + k))
            if i == 4:
                a("s_add_u32 s34, s34, 4096")
            a("buffer_store_dwordx4 %s, v%d, s[8:11], s34 offen offset:%d sc1" % (vr(keep + 4 * i, 4), V_ST, (i & 3) * 1024))
        if g == 1:
            a("s_branch ogemm_end")
    a.stamp()
    a.stamp_flush(0)
    a.label("ogemm_end")
    if "xh" not in EXP:
        owg()
        reduce_pre(a)
    if SENT:
        a.phase = 3
        return
    a("s_waitcnt vmcnt(0) lgkmcnt(0)")
    a("s_barrier")
    a("s_cmp_lg_u32 s6, 0")
    a("s_cbranch_scc1 tb_wait")
    a("s_add_u32 s46, s49, 32")
    a("s_lshl_b32 s46, s46, 12")
    a("s_add_u32 s46, s46, 0x%x" % CTR)
    a("s_mov_b64 exec, 1")
    a("v_mov_b32 v12, 1")
    a("v_mov_b32 v13, 0")
    a("buffer_atomic_add v12, v13, s[8:11], s46 offen sc1")
    a("s_mov_b32 s47, 0")
    a.label("tb_loop")
    a("buffer_load_dword v14, v13, s[8:11], s46 offen sc1")
    a("s_waitcnt vmcnt(0)")
    a("v_readfirstlane_b32 s48, v14")
    a("s_cmp_ge_u32 s48, 4")
    a("s_cbranch_scc1 tb_done")
    a("s_add_u32 s47, s47, 1")
    a("s_cmp_gt_u32 s47, 40000")
    a("s_cbranch_scc1 tb_done")
    a("s_sleep 4")
    a("s_branch tb_loop")
    a.label("tb_done")
    a("s_mov_b64 exec, -1")
    a.label("tb_wait")
    a("s_barrier")
    a.phase = 3


RB = 176


def reduce_pre(a, part=None):
    if part == 2:
        for j in range(2):
            B = RB + 4 + 32 * j
            a("buffer_load_dwordx2 %s, v%d, s[52:55], 0 offen" % (vr(B + 16, 2), B + 26))
            a("buffer_load_dwordx2 %s, v%d, s[56:59], 0 offen" % (vr(B + 18, 2), B + 27))
        return
    a("s_load_dwordx2 s[52:53], s[0:1], 0")
    a("s_load_dwordx2 s[56:57], s[0:1], 80")
    a("s_load_dwordx2 s[60:61], s[0:1], 88")
    a("s_mov_b32 s54, 0x200000")
    a("s_mov_b32 s55, 0x20000")
    a("s_mov_b32 s58, 1024")
    a("s_mov_b32 s59, 0x20000")
    a("s_mov_b32 s62, 0x200000")
    a("s_mov_b32 s63, 0x20000")
    T = RB + 70
    a("s_lshr_b32 s23, s6, 2")
    a("v_and_b32 v%d, 255, v0" % T)
    a("s_add_u32 s50, s45, s23")
    a("v_lshlrev_b32 v%d, 4, v%d" % (RB + 1, T))
    if not part:
        a("s_waitcnt lgkmcnt(0)")
    for j in range(2):
        B = RB + 4 + 32 * j
        v2, v3 = RB + 2, B + 27
        a("s_add_u32 s51, s50, %d" % (2 * j))
        a("s_lshr_b32 s64, s51, 4")
        a("s_lshr_b32 s65, s51, 2")
        a("s_and_b32 s65, s65, 3")
        a("s_and_b32 s66, s51, 3")
        a("s_lshr_b32 s16, s64, 2")
        a("s_and_b32 s17, s64, 3")
        a("s_lshr_b32 s18, s65, 1")
        a("s_and_b32 s19, s65, 1")
        a("s_lshr_b32 s28, s66, 1")
        a("s_and_b32 s29, s66, 1")
        a("s_lshl_b32 s20, s16, 2")
        a("s_lshl_b32 s21, s18, 1")
        a("s_add_u32 s20, s20, s21")
        a("s_add_u32 s20, s20, s28")
        a("s_lshl_b32 s20, s20, 15")
        a("s_lshl_b32 s21, s17, 2")
        a("s_lshl_b32 s22, s19, 1")
        a("s_add_u32 s21, s21, s22")
        a("s_add_u32 s21, s21, s29")
        a("s_lshl_b32 s21, s21, 6")
        a("v_and_b32 v%d, 31, v%d" % (v2, T))
        a("v_lshlrev_b32 v%d, 10, v%d" % (v2, v2))
        a("v_lshrrev_b32 v%d, 6, v%d" % (v3, T))
        a("v_lshlrev_b32 v%d, 4, v%d" % (v3, v3))
        a("v_bfe_u32 v%d, v%d, 5, 1" % (B + 16, T))
        a("v_lshl_add_u32 v%d, v%d, 3, v%d" % (v3, B + 16, v3))
        a("v_add_u32 v%d, s21, v%d" % (v3, v3))
        a("v_add_u32 v%d, v%d, v%d" % (v2, v2, v3))
        a("v_add_u32 v%d, s20, v%d" % (B + 26, v2))
        if not part:
            a("buffer_load_dwordx2 %s, v%d, s[52:55], 0 offen" % (vr(B + 16, 2), B + 26))
            a("buffer_load_dwordx2 %s, v%d, s[56:59], 0 offen" % (vr(B + 18, 2), v3))


def gen_reduce(a):
    a.label("reduce_kernel")
    a.ostamp()
    a.stamp()
    if SENT:
        a("s_mov_b32 s47, 0")
        a.label("red_poll")
    for j in range(2):
        B = RB + 4 + 32 * j
        a("s_lshl_b32 s51, s50, 12")
        a("s_add_u32 s51, s51, 0x%x" % (PART + j * 8192))
        for p in range(4):
            a("buffer_load_dwordx4 %s, v%d, s[8:11], s51 offen%s" % (vr(B + 4 * p, 4), RB + 1, " sc1" if SENT else ""))
            if p < 3:
                a("s_add_u32 s51, s51, 0x400000")
    if SENT:
        for j in range(2):
            B = RB + 4 + 32 * j
            a("s_waitcnt vmcnt(%d)" % (4 - 4 * j))
            a("v_max3_u32 v%d, v%d, v%d, v%d" % (248 + j, B, B + 1, B + 2))
            for i in range(6):
                a("v_max3_u32 v%d, v%d, v%d, v%d" % (248 + j, 248 + j, B + 3 + 2 * i, B + 4 + 2 * i))
            a("v_max_u32 v%d, v%d, v%d" % (248 + j, 248 + j, B + 15))
        a("v_max_u32 v248, v248, v249")
        a("v_cmp_eq_u32 vcc, -1, v248")
        a("s_nop 1")
        a("s_cbranch_vccz red_ok")
        a("s_add_u32 s47, s47, 1")
        a("s_cmp_gt_u32 s47, 20000")
        a("s_cbranch_scc1 red_ok")
        a("s_sleep %s" % os.environ.get("RSL", "4"))
        a("s_branch red_poll")
        a.label("red_ok")
    for j in range(2):
        B = RB + 4 + 32 * j
        for p in range(2):
            a("v_lshlrev_b32 v%d, 16, v%d" % (B + 20, B + 16 + p))
            a("v_and_b32 v%d, 0xffff0000, v%d" % (B + 21, B + 16 + p))
            a("v_lshlrev_b32 v%d, 16, v%d" % (B + 22, B + 18 + p))
            a("v_and_b32 v%d, 0xffff0000, v%d" % (B + 23, B + 18 + p))
            a("v_add_f32 v%d, v%d, v%d" % (B + 28 + 2 * p, B + 20, B + 22))
            a("v_add_f32 v%d, v%d, v%d" % (B + 29 + 2 * p, B + 21, B + 23))
    for j in range(2):
        B = RB + 4 + 32 * j
        a("s_waitcnt vmcnt(%d)" % (4 - 4 * j))
        for i in range(4):
            a("v_add_f32 v%d, v%d, v%d" % (B + i, B + i, B + 4 + i))
            a("v_add_f32 v%d, v%d, v%d" % (B + 8 + i, B + 8 + i, B + 12 + i))
        for i in range(4):
            a("v_add_f32 v%d, v%d, v%d" % (B + i, B + i, B + 8 + i))
        for i in range(4):
            a("v_add_f32 v%d, v%d, v%d" % (B + i, B + i, B + 28 + i))
        for p in range(2):
            a("v_cvt_pk_bf16_f32 v%d, v%d, v%d" % (B + 24 + p, B + 2 * p, B + 1 + 2 * p))
        a("buffer_store_dwordx2 %s, v%d, s[60:63], 0 offen" % (vr(B + 24, 2), B + 26))
    a.stamp()
    a.stamp_flush(0)
    if os.environ.get("STAMP"):
        a("s_waitcnt vmcnt(0)")
        a("s_memrealtime s[18:19]")
        a("s_load_dwordx2 s[8:9], s[0:1], 96")
        a("s_mov_b32 s10, 65536")
        a("s_mov_b32 s11, 0x20000")
        a("s_lshl_b32 s20, s2, 4")
        a("s_add_u32 s20, s20, %d" % (4096 + 4096 * 3))
        a("s_waitcnt lgkmcnt(0)")
        a("s_mov_b64 exec, 1")
        a("v_mov_b32 v4, s18")
        a("v_mov_b32 v5, s93")
        a("v_mov_b32 v6, s18")
        a("v_mov_b32 v7, s92")
        a("v_mov_b32 v2, 0")
        a("buffer_store_dwordx4 v[4:7], v2, s[8:11], s20 offen")
    if os.environ.get("OST"):
        a("s_waitcnt vmcnt(0)")
    a.ostamp(True)
    a("s_endpgm")
```

```python
import sys

NAME = "parallel_sum__compressed_kv_cla__dense_activation_squared_relu__prompt"

MB = 1 << 20
QF = 0
KF = 16 * MB
VF = 32 * MB
AF = 49 * MB
AF_BLK = 368 * 1024
PART = 80 * MB
CTR = 100 * MB
import math, struct
QSC = struct.unpack("<I", struct.pack("<f", (128 ** -0.5) * math.log2(math.e)))[0]


import os
STAMP = os.environ.get("STAMP")
EARLY = "early" in os.environ.get("EXP", "")


class Asm:
    def __init__(self):
        self.lines = []
        self.nst = 0

    def stamp(self):
        if not STAMP:
            return
        self("s_memtime s[98:99]")
        self("s_waitcnt lgkmcnt(0)")
        self("s_mov_b32 s%d, s98" % (68 + self.nst))
        self.nst += 1

    def stamp_flush(self, wgsel, dbgptr_off=96):
        if not STAMP:
            return
        L = "stf_%d" % len(self.lines)
        self("s_cmp_lg_u32 s2, %d" % wgsel)
        self("s_cbranch_scc1 %s" % L)
        self("s_load_dwordx2 s[96:97], s[0:1], %d" % dbgptr_off)
        self("s_waitcnt lgkmcnt(0)")
        self("s_mov_b32 s98, 4096")
        self("s_mov_b32 s99, 0x20000")
        self("v_cmp_eq_u32 vcc, 0, v0")
        self("s_and_saveexec_b64 s[94:95], vcc")
        self("s_cbranch_execz %s" % L)
        for i in range(self.nst):
            self("v_mov_b32 v1, s%d" % (68 + i))
            self("v_mov_b32 v2, %d" % (4 * i + 512 * (self.phase + 1)))
            self("buffer_store_dword v1, v2, s[96:99], 0 offen")
        self.label(L)
        self("s_mov_b64 exec, -1")
        self.nst = 0

    phase = 0
    on = 0

    def code_touch(self, lo, hi, tag, back, n):
        a = self
        lo = "(%s)" % lo
        a("s_getpc_b64 s[88:89]")
        a.label("ct_%s" % tag)
        if back:
            a("s_sub_u32 s88, s88, ct_%s-%s" % (tag, lo))
            a("s_subb_u32 s89, s89, 0")
        else:
            a("s_add_u32 s88, s88, %s-ct_%s" % (lo, tag))
            a("s_addc_u32 s89, s89, 0")
        for k in range(n):
            a("v_lshlrev_b32 v255, 7, v0")
            if k:
                a("v_add_u32 v255, 0x%x, v255" % (k * 65536))
            a("v_min_u32 v255, %s-%s-4, v255" % (hi, lo))
            a("global_load_dword v254, v255, s[88:89]")

    def ostamp(self, last=False):
        OST = os.environ.get("OST")
        if not OST:
            return
        a = self
        a("s_memrealtime s[98:99]")
        a("s_waitcnt lgkmcnt(0)")
        a("s_mov_b32 s%d, s98" % (68 + self.on if self.on else 93))
        self.on += 1
        if last:
            a("s_cmp_lg_u32 s2, %s" % OST)
            a("s_cbranch_scc1 ost_skip")
            a("s_load_dwordx2 s[96:97], s[0:1], 96")
            a("s_mov_b32 s98, 256")
            a("s_mov_b32 s99, 0x20000")
            a("v_cmp_eq_u32 vcc, 0, v0")
            a("s_and_saveexec_b64 s[94:95], vcc")
            a("s_cbranch_execz ost_skip")
            a("s_waitcnt lgkmcnt(0)")
            for i in range(1, self.on):
                a("s_sub_u32 s94, s%d, s93" % (68 + i))
                a("v_mov_b32 v1, s94")
                a("v_mov_b32 v2, %d" % (28 + 4 * i))
                a("buffer_store_dword v1, v2, s[96:99], 0 offen")
            a.label("ost_skip")
            a("s_mov_b64 exec, -1")

    def gb_signal(self, k, split=False):
        a = self
        a("s_load_dwordx2 s[80:81], s[0:1], 96")
        a("s_load_dwordx2 s[84:85], s[0:1], 104")
        a("s_mov_b32 s82, 256")
        a("s_mov_b32 s83, 0x20000")
        a("s_mov_b32 s86, 0x10000000")
        a("s_mov_b32 s87, 0x20000")
        a("s_mov_b64 exec, 1")
        a("v_mov_b32 v12, 1")
        a("v_mov_b32 v13, %d" % (4 * k))
        a("v_mov_b32 v14, 1")
        a("v_mov_b32 v15, 0")
        a("s_and_b32 s88, s2, 15")
        a("s_lshl_b32 s88, s88, 12")
        a("s_add_u32 s88, s88, 0x%x" % (CTR + (k - 1) * 65536))
        a("s_waitcnt lgkmcnt(0)")
        a("buffer_atomic_add v14, v15, s[84:87], s88 offen sc0 sc1")
        if split:
            a("s_mov_b64 exec, -1")
            return
        a("s_waitcnt vmcnt(0)")
        self.gb_signal2(k)

    def gb_signal2(self, k):
        a = self
        a("v_readfirstlane_b32 s89, v14")
        a("s_cmp_lg_u32 s89, 15")
        a("s_cbranch_scc1 gs_nr%d" % k)
        a("s_mov_b64 exec, 1")
        a("buffer_atomic_add v12, v13, s[80:83], 0 offen sc1")
        a.label("gs_nr%d" % k)
        a("s_mov_b64 exec, -1")

    def gb_poll(self, k):
        a = self
        a("s_mov_b64 exec, 1")
        a("v_mov_b32 v13, %d" % (4 * k))
        a("s_mov_b32 s88, 0")
        a.label("gp_loop%d" % k)
        a("buffer_load_dword v14, v13, s[80:83], 0 offen sc1")
        a("s_waitcnt vmcnt(0)")
        a("v_readfirstlane_b32 s89, v14")
        a("s_cmp_ge_u32 s89, 16")
        a("s_cbranch_scc1 gp_done%d" % k)
        a("s_add_u32 s88, s88, 1")
        a("s_cmp_gt_u32 s88, 40000")
        a("s_cbranch_scc1 gp_done%d" % k)
        a("s_sleep %s" % os.environ.get("PSL", "8"))
        a("s_branch gp_loop%d" % k)
        a.label("gp_done%d" % k)
        a("s_mov_b64 exec, -1")

    def eb_pre(self):
        a = self
        if STAMP:
            a("s_memrealtime s[70:71]")
        a("s_load_dwordx2 s[84:85], s[0:1], 96")
        a("s_mov_b32 s86, 256")
        a("s_mov_b32 s87, 0x20000")
        a("v_mov_b32 v248, 0")
        a("v_mov_b32 v249, 1")
        a("v_mov_b32 v250, 8")
        a("s_cmp_ge_u32 s2, 96")
        a("s_cbranch_scc1 eb_noinit")
        a("s_lshl_b32 s88, s2, 12")
        a("s_add_u32 s88, s88, 0x%x" % CTR)
        a("buffer_store_dword v248, v248, s[8:11], s88 offen sc0 sc1")
        a.label("eb_noinit")
        a("s_waitcnt lgkmcnt(0)")
        a("s_cmp_lg_u32 s6, 0")
        a("s_cbranch_scc1 eb_kok")
        a("s_mov_b64 exec, 1")
        a("s_mov_b32 s88, 0")
        a.label("eb_kloop")
        a("buffer_load_dword v251, v250, s[84:87], 0 offen sc1")
        a("s_waitcnt vmcnt(0)")
        a("v_readfirstlane_b32 s89, v251")
        a("s_cmp_ge_u32 s89, 256")
        a("s_cbranch_scc1 eb_kok")
        a("s_add_u32 s88, s88, 1")
        a("s_cmp_gt_u32 s88, 40000")
        a("s_cbranch_scc1 eb_kok")
        a("s_sleep 8")
        a("s_branch eb_kloop")
        a.label("eb_kok")
        a("s_mov_b64 exec, -1")
        a("s_waitcnt vmcnt(0)")
        a("s_barrier")
        if STAMP:
            a("s_memrealtime s[72:73]")
        a("s_cmp_lg_u32 s6, 0")
        a("s_cbranch_scc1 eb_arr")
        a("s_mov_b64 exec, 1")
        a("s_and_b32 s88, s2, 15")
        a("s_lshl_b32 s88, s88, 2")
        a("s_add_u32 s88, s88, 128")
        a("v_mov_b32 v251, 1")
        a("buffer_atomic_add v251, v248, s[84:87], s88 offen sc0 sc1")
        a("s_waitcnt vmcnt(0)")
        a("v_readfirstlane_b32 s89, v251")
        a("s_cmp_lg_u32 s89, 15")
        a("s_cbranch_scc1 eb_arr")
        a("buffer_atomic_add v249, v248, s[84:87], 0 offen sc1")
        a.label("eb_arr")
        a("s_mov_b64 exec, -1")

    def eb_post(self):
        a = self
        a("s_cmp_lg_u32 s6, %s" % os.environ.get("PW", "1"))
        a("s_cbranch_scc1 eb_done")
        a("s_mov_b64 exec, 1")
        a("s_mov_b32 s88, 0")
        a.label("eb_loop")
        a("buffer_load_dword v251, v248, s[84:87], 0 offen sc1")
        a("s_waitcnt vmcnt(0)")
        a("v_readfirstlane_b32 s89, v251")
        a("s_cmp_ge_u32 s89, 16")
        a("s_cbranch_scc1 eb_fin")
        a("s_add_u32 s88, s88, 1")
        a("s_cmp_gt_u32 s88, 40000")
        a("s_cbranch_scc1 eb_fin")
        a("s_sleep %s" % os.environ.get("SLEEP", "8"))
        a("s_branch eb_loop")
        a.label("eb_fin")
        if STAMP:
            a("s_memrealtime s[74:75]")
            a("s_mov_b32 s86, 65536")
            a("s_lshl_b32 s88, s2, 4")
            a("s_add_u32 s88, s88, 4096")
            a("s_waitcnt lgkmcnt(0)")
            a("v_mov_b32 v252, s70")
            a("v_mov_b32 v253, s72")
            a("v_mov_b32 v254, s74")
            a("v_mov_b32 v255, s92")
            a("buffer_store_dwordx4 v[252:255], v248, s[84:87], s88 offen")
        a.label("eb_done")
        a("s_mov_b64 exec, -1")
        a("s_waitcnt vmcnt(0)")
        a("s_barrier")
        a.ostamp()
        self.phase = 1

    def gridbar(self, k):
        a = self
        if STAMP:
            a("s_memrealtime s[14:15]")
        if k == 0:
            a("s_cmp_ge_u32 s2, 96")
            a("s_cbranch_scc1 gb_noinit")
            a("s_load_dwordx2 s[8:9], s[0:1], 104")
            a("s_mov_b32 s10, 0x10000000")
            a("s_mov_b32 s11, 0x20000")
            a("s_lshl_b32 s12, s2, 12")
            a("s_add_u32 s12, s12, 0x%x" % CTR)
            a("v_mov_b32 v1, 0")
            a("v_mov_b32 v2, 0")
            a("s_waitcnt lgkmcnt(0)")
            a("buffer_store_dword v1, v2, s[8:11], s12 offen sc0 sc1")
            a.label("gb_noinit")
        a("s_waitcnt vmcnt(0) lgkmcnt(0)")
        a("s_barrier")
        if STAMP:
            a("s_memrealtime s[16:17]")
        a("v_lshrrev_b32 v1, 6, v0")
        a("s_nop 0")
        a("v_readfirstlane_b32 s6, v1")
        if "ct2" in os.environ.get("EXP", "") and k == 0:
            a("s_cmp_eq_u32 s6, 0")
            a("s_cbranch_scc1 ct2_skip")
            a("s_cmp_gt_u32 s6, 3")
            a("s_cbranch_scc1 gb_wait%d" % k)
            a.code_touch("attn_kernel-8192", "code_end", "b", True, 1)
            a("s_branch gb_wait%d" % k)
            a.label("ct2_skip")
        a("s_cmp_lg_u32 s6, 0")
        a("s_cbranch_scc1 gb_wait%d" % k)
        a("s_load_dwordx2 s[8:9], s[0:1], 96")
        a("s_load_dwordx2 s[24:25], s[0:1], 104")
        a("s_mov_b32 s10, 256")
        a("s_mov_b32 s11, 0x20000")
        a("s_mov_b32 s26, 0x10000000")
        a("s_mov_b32 s27, 0x20000")
        a("s_mov_b64 exec, 1")
        a("v_mov_b32 v1, 1")
        a("v_mov_b32 v2, %d" % (4 * k))
        a("s_waitcnt lgkmcnt(0)")
        tgt = 256
        DF = "df" in os.environ.get("EXP", "") and k == 0
        if DF:
            tgt = 16
            a("s_lshl_b32 s12, s4, 4")
            a("s_add_u32 s12, s12, 8")
            a("v_mov_b32 v3, 1")
            a("v_mov_b32 v4, 0")
            a("buffer_atomic_add v3, v4, s[8:11], s12 offen sc0 sc1")
            a("s_and_b32 s12, s2, 3")
            a("s_lshl_b32 s12, s12, 2")
            a("s_bfe_u32 s13, s2, 0x20003")
            a("s_add_u32 s12, s12, s13")
            a("s_lshl_b32 s12, s12, 4")
            a("s_add_u32 s12, s12, 8")
            a("v_mov_b32 v5, s12")
            a("s_waitcnt vmcnt(0)")
            a("v_readfirstlane_b32 s13, v3")
            a("s_cmp_lg_u32 s13, 15")
            a("s_cbranch_scc1 gb_nr%d" % k)
        elif True:
            tgt = 16
            a("s_and_b32 s12, s2, 15")
            a("v_mov_b32 v3, 1")
            a("v_mov_b32 v4, 0")
            if k > 0:
                a("s_lshl_b32 s12, s12, 12")
                a("s_add_u32 s12, s12, 0x%x" % (CTR + (k - 1) * 65536))
                a("buffer_atomic_add v3, v4, s[24:27], s12 offen sc0 sc1")
            else:
                a("s_lshl_b32 s12, s12, 2")
                a("s_add_u32 s12, s12, 128")
                a("buffer_atomic_add v3, v4, s[8:11], s12 offen sc0 sc1")
            a("s_waitcnt vmcnt(0)")
            a("v_readfirstlane_b32 s13, v3")
            a("s_cmp_lg_u32 s13, 15")
            a("s_cbranch_scc1 gb_nr%d" % k)
        a("buffer_atomic_add v1, v2, s[8:11], 0 offen sc1")
        if True:
            a.label("gb_nr%d" % k)
        a("s_mov_b32 s12, 0")
        if DF:
            a("v_mov_b32 v2, v5")
        a.label("gb_loop%d" % k)
        a("buffer_load_dword v3, v2, s[8:11], 0 offen %s" % os.environ.get("PSC", "sc1"))
        a("s_waitcnt vmcnt(0)")
        a("v_readfirstlane_b32 s13, v3")
        a("s_cmp_ge_u32 s13, %d" % tgt)
        a("s_cbranch_scc1 gb_done%d" % k)
        a("s_add_u32 s12, s12, 1")
        a("s_cmp_gt_u32 s12, 40000")
        a("s_cbranch_scc1 gb_done%d" % k)
        a("s_sleep %s" % os.environ.get("SLEEP", "8"))
        a("s_branch gb_loop%d" % k)
        a.label("gb_done%d" % k)
        if STAMP:
            a("s_memrealtime s[18:19]")
            a("s_mov_b32 s10, 65536")
            a("s_lshl_b32 s20, s2, 4")
            a("s_add_u32 s20, s20, %d" % (4096 + 4096 * k))
            a("s_waitcnt lgkmcnt(0)")
            a("s_mov_b64 exec, 1")
            a("v_mov_b32 v4, s14")
            a("v_mov_b32 v5, s16")
            a("v_mov_b32 v6, s18")
            a("v_mov_b32 v7, s92")
            a("v_mov_b32 v2, 0")
            a("buffer_store_dwordx4 v[4:7], v2, s[8:11], s20 offen")
        a("s_mov_b64 exec, -1")
        a("s_waitcnt lgkmcnt(0)")
        a.label("gb_wait%d" % k)
        a("s_barrier")
        if "inv" in os.environ.get("EXP", ""):
            a("buffer_inv sc1")
        self.phase = k + 1

    inloop = False

    def __call__(self, s):
        EXP = os.environ.get("EXP", "")
        if self.inloop:
            if "nomfma" in EXP and s.startswith("v_mfma"):
                return
            if "novalu" in EXP and s.startswith("v_") and not s.startswith("v_mfma") and not s.startswith("v_cmp") and "0x1ffff" not in s and "0x8000" not in s and not s.startswith("v_mov") and not s.startswith("v_add_u32"):
                return
            if "nolds" in EXP and s.startswith("ds_read"):
                return
            if "nodma" in EXP and s.startswith("buffer_load"):
                return
            if "nobar" in EXP and s.startswith("s_barrier"):
                return
        if "nosc1" in EXP and s.startswith("buffer_store") and s.endswith(" sc1"):
            s = s[:-4]
        self.lines.append("  " + s)

    def label(self, s):
        self.lines.append(s + ":")

    def raw(self, s):
        self.lines.append(s)

    def nop(self, n):
        while n > 0:
            k = min(n, 16)
            self("s_nop %d" % (k - 1))
            n -= k


def vr(a, n):
    return "v[%d:%d]" % (a, a + n - 1)


def sr(a, n):
    return "s[%d:%d]" % (a, a + n - 1)


def gen_proj(a):
    V_LANE = 1
    V_TR = 2
    V_OFFC = 10
    V_OFFN = 11
    V_ST = 12
    V_T0 = 13
    V_B = 16
    V_ACC = 48
    V_A = 112
    V_ROWI = 13
    V_SWZ = 14
    V_T = 15
    V_AOFF = 240

    a.label("mega_kernel")
    a("s_cmp_lt_u32 s2, 256")
    a("s_cbranch_scc1 proj_start")
    a("s_endpgm")
    a.label("proj_start")
    a.ostamp()
    if STAMP:
        a("s_memrealtime s[92:93]")
    a.stamp()
    a("s_load_dwordx2 s[8:9], s[0:1], 96")
    a("s_load_dwordx2 s[82:83], s[0:1], 96")
    a("s_load_dwordx16 s[24:39], s[0:1], 0")
    a("s_load_dwordx4 s[40:43], s[0:1], 64")
    a("s_load_dwordx2 s[44:45], s[0:1], 104")
    EXPF = os.environ.get("EXP", "")
    if "ct1" in EXPF:
        a("s_bfe_u32 s3, s2, 0x20003")
        a("s_cmp_lg_u32 s3, 0")
        a("s_cbranch_scc1 ct1_skip")
        a.code_touch("mega_kernel", "code_end", "a", True, 2)
        a.label("ct1_skip")
    if "tick" in EXPF:
        a("v_lshrrev_b32 v1, 6, v0")
        a("v_lshlrev_b32 v4, 14, v1")
        a("v_add_u32 v4, 0x8000, v4")
        a("v_readfirstlane_b32 s6, v1")
        a("s_getreg_b32 s4, hwreg(HW_REG_XCC_ID)")
        a("s_and_b32 s4, s4, 7")
        if "tkforce" in EXPF:
            a("s_min_u32 s4, s4, 4")
        a("s_mov_b32 s10, 256")
        a("s_mov_b32 s11, 0x20000")
        a("s_lshl_b32 s5, s4, 2")
        a("s_add_u32 s5, s5, 192")
        a("v_mov_b32 v2, s5")
        a("v_mov_b32 v3, 1")
        a("s_cmp_eq_u32 s6, 0")
        a("s_cbranch_scc1 tk_w0")
        a("s_cmp_lg_u32 s6, 7")
        a("s_cbranch_scc1 tk_wait")
        a("s_mov_b64 exec, 1")
        a("s_waitcnt lgkmcnt(0)")
        a("v_subrev_u32 v2, 160, v2")
        a("buffer_atomic_add v3, v2, s[8:11], 0 offen sc1")
        a("s_mov_b64 exec, -1")
        a("s_branch tk_wait")
        a.label("tk_w0")
        a("s_mov_b64 exec, 1")
        a("s_waitcnt lgkmcnt(0)")
        a("buffer_atomic_add v3, v2, s[8:11], 0 offen sc0%s" % (" sc1" if "tkforce" in EXPF or "tkglob" in EXPF else ""))
        a("s_waitcnt vmcnt(0)")
        a("v_readfirstlane_b32 s5, v3")
        a("s_cmp_lt_u32 s5, 32")
        a("s_cbranch_scc1 tk_got")
        a("s_mov_b32 s7, 0")
        a("v_mov_b32 v2, 32")
        a.label("tk_poll")
        a("buffer_load_dwordx4 v[8:11], v2, s[8:11], 0 offen sc1")
        a("buffer_load_dwordx4 v[12:15], v2, s[8:11], 0 offen offset:16 sc1")
        a("s_waitcnt vmcnt(0)")
        a("s_mov_b32 s12, 0")
        for i in range(8):
            a("v_readfirstlane_b32 s%d, v%d" % (48 + i, 8 + i))
            a("s_add_u32 s12, s12, s%d" % (48 + i))
        a("s_cmp_ge_u32 s12, 256")
        a("s_cbranch_scc1 tk_full")
        a("s_add_u32 s7, s7, 1")
        a("s_sleep 8")
        a("s_cmp_lt_u32 s7, 40000")
        a("s_cbranch_scc1 tk_poll")
        a.label("tk_fail")
        a("s_lshr_b32 s5, s2, 3")
        a("s_and_b32 s4, s2, 7")
        a("s_branch tk_got")
        a.label("tk_full")
        a("s_sub_u32 s5, s5, 32")
        for i in range(7):
            a("s_max_u32 s12, s%d, 32" % (48 + i))
            a("s_sub_u32 s12, s12, 32")
            a("s_cmp_gt_u32 s4, %d" % i)
            a("s_cselect_b32 s12, s12, 0")
            a("s_add_u32 s5, s5, s12")
        for i in range(8):
            a("s_min_u32 s12, s%d, 32" % (48 + i))
            a("s_sub_u32 s13, 32, s12")
            a("s_mov_b32 s4, %d" % i)
            a("s_cmp_lt_u32 s5, s13")
            a("s_cbranch_scc1 tk_slot")
            a("s_sub_u32 s5, s5, s13")
        a("s_branch tk_fail")
        a.label("tk_slot")
        a("s_add_u32 s5, s5, s12")
        a.label("tk_got")
        a("s_lshl_b32 s5, s5, 3")
        a("s_add_u32 s5, s5, s4")
        a("s_mov_b64 exec, 0xff")
        a("v_lshlrev_b32 v2, 14, v0")
        a("v_add_u32 v2, 0x8000, v2")
        a("v_mov_b32 v3, s5")
        a("ds_write_b32 v2, v3")
        a("s_mov_b64 exec, -1")
        a("s_waitcnt lgkmcnt(0)")
        a.label("tk_wait")
        a("s_barrier")
        a("ds_read_b32 v3, v4")
        a("s_waitcnt lgkmcnt(0)")
        a("v_readfirstlane_b32 s2, v3")
        a("s_and_b32 s2, s2, 255")
        if STAMP:
            a("s_memrealtime s[96:97]")
            a("s_waitcnt lgkmcnt(0)")
            a("s_mov_b32 s93, s96")
    PM = os.environ.get("PM", "5")
    if PM == "0":
        a("s_lshr_b32 s3, s2, 5")
        a("s_and_b32 s4, s2, 31")
    elif PM == "1":
        a("s_and_b32 s3, s2, 7")
        a("s_lshr_b32 s4, s2, 3")
    elif PM == "2":
        a("s_and_b32 s3, s2, 3")
        a("s_bfe_u32 s4, s2, 0x10003")
        a("s_lshl_b32 s4, s4, 2")
        a("s_or_b32 s3, s3, s4")
        a("s_bfe_u32 s4, s2, 0x10002")
        a("s_lshr_b32 s5, s2, 4")
        a("s_lshl_b32 s5, s5, 1")
        a("s_or_b32 s4, s4, s5")
    elif PM == "3":
        a("s_and_b32 s3, s2, 1")
        a("s_bfe_u32 s4, s2, 0x20003")
        a("s_lshl_b32 s4, s4, 1")
        a("s_or_b32 s3, s3, s4")
        a("s_bfe_u32 s4, s2, 0x20001")
        a("s_lshr_b32 s5, s2, 5")
        a("s_lshl_b32 s5, s5, 2")
        a("s_or_b32 s4, s4, s5")
    elif PM == "4":
        a("s_lshr_b32 s3, s2, 5")
        a("s_bfe_u32 s4, s2, 0x40001")
        a("s_and_b32 s5, s2, 1")
        a("s_lshl_b32 s5, s5, 4")
        a("s_or_b32 s4, s4, s5")
    elif PM == "5":
        a("s_bfe_u32 s3, s2, 0x10001")
        a("s_bfe_u32 s4, s2, 0x20003")
        a("s_lshl_b32 s4, s4, 1")
        a("s_or_b32 s3, s3, s4")
        a("s_bfe_u32 s4, s2, 0x10002")
        a("s_lshr_b32 s5, s2, 5")
        a("s_lshl_b32 s5, s5, 1")
        a("s_or_b32 s4, s4, s5")
        a("s_and_b32 s5, s2, 1")
        a("s_lshl_b32 s5, s5, 4")
        a("s_or_b32 s4, s4, s5")
    elif PM == "6":
        a("s_bfe_u32 s3, s2, 0x30001")
        a("s_lshr_b32 s4, s2, 4")
        a("s_and_b32 s5, s2, 1")
        a("s_lshl_b32 s5, s5, 4")
        a("s_or_b32 s4, s4, s5")
    a("v_lshrrev_b32 v1, 6, v0")
    a("s_nop 0")
    a("v_readfirstlane_b32 s6, v1")
    a("v_and_b32 v1, 63, v0")
    a("s_waitcnt lgkmcnt(0)")
    a.stamp()
    a("s_cmp_lt_u32 s4, 16")
    a("s_cselect_b32 s8, s24, s26")
    a("s_cselect_b32 s9, s25, s27")
    a("s_cselect_b32 s5, 0, 1")
    a("s_and_b32 s4, s4, 15")
    a("s_mov_b32 s10, 0x200000")
    a("s_mov_b32 s11, 0x20000")
    a("s_mov_b32 s16, s44")
    a("s_mov_b32 s17, s45")
    a("s_mov_b32 s18, 0x10000000")
    a("s_mov_b32 s19, 0x20000")
    a("s_mov_b32 s20, s40")
    a("s_mov_b32 s21, s41")
    a("s_mov_b32 s22, 3584")
    a("s_mov_b32 s23, 0x20000")
    a("s_mov_b32 s15, 0x20000")
    a("s_mov_b32 s51, 0x20000")
    a("s_lshl_b32 s58, s6, 12")
    a("s_lshl_b32 s59, s3, 3")
    a("s_add_u32 s59, s59, s6")
    a("v_and_b32 v13, 15, v1")
    a("v_lshlrev_b32 v13, 10, v13")
    a("v_lshrrev_b32 v14, 4, v1")
    a("v_lshlrev_b32 v14, 4, v14")
    a("v_add_u32 v13, v13, v14")
    a("s_movk_i32 s65, 0x4000")
    a("s_lshl_b32 s60, s59, 15")
    a("v_add_u32 v13, s60, v13")
    a("v_mov_b32 v%d, v13" % V_AOFF)

    def aloads(lo, hi):
        for s in range(lo, hi):
            a("buffer_load_dwordx4 %s, v%d, s[8:11], %s offen offset:%d" % (
                vr(V_A + 4 * s, 4), V_AOFF, "s65" if s & 1 else "0", (s >> 1) * 64))

    def aswaps(lo, hi):
        for s in range(lo, hi, 2):
            for j in range(4):
                a("v_permlane16_swap_b32 v%d, v%d" % (V_A + 4 * s + j, V_A + 4 * s + 4 + j))
        a("s_nop 1")
    a("v_bfe_u32 v13, v1, 2, 2")
    a("v_lshrrev_b32 v14, 5, v1")
    a("v_lshl_add_u32 v14, v14, 4, v13")
    a("v_lshlrev_b32 v14, 8, v14")
    a("v_bfe_u32 v15, v1, 4, 1")
    a("v_lshl_add_u32 v14, v15, 5, v14")
    a("v_and_b32 v15, 3, v1")
    a("v_lshl_add_u32 v14, v15, 3, v14")
    a("v_lshlrev_b32 v13, 6, v13")
    for nt in range(4):
        a("v_xor_b32 v15, %d, v13" % (nt << 6))
        a("v_add_u32 v%d, v14, v15" % (V_TR + nt))
        a("v_add_u32 v%d, 0x10000, v%d" % (V_TR + 4 + nt, V_TR + nt))
    a("v_lshlrev_b32 v%d, 4, v1" % V_ST)
    a("v_lshrrev_b32 v13, 4, v1")
    a("v_bfe_u32 v14, v1, 2, 2")
    a("v_xor_b32 v14, v14, v13")
    a("v_lshlrev_b32 v14, 6, v14")
    a("v_and_b32 v15, 3, v1")
    a("v_lshl_add_u32 v14, v15, 4, v14")
    a("s_lshl_b32 s60, s6, 4")
    a("v_add_u32 v13, s60, v13")

    def set_params(which, wlo, whi, nrec, ldw, colexpr_reg):
        base = 12 if which == "cur" else 48
        sl, sc = (52, 53) if which == "cur" else (54, 55)
        voff = V_OFFC if which == "cur" else V_OFFN
        a("s_mov_b32 s%d, s%d" % (base, wlo))
        a("s_mov_b32 s%d, s%d" % (base + 1, whi))
        if isinstance(nrec, str):
            a("s_mov_b32 s%d, %s" % (base + 2, nrec))
        else:
            a("s_mov_b32 s%d, 0x%x" % (base + 2, nrec))
        a("s_mov_b32 s%d, %d" % (sl, ldw))
        a("s_mov_b32 s%d, %s" % (sc, colexpr_reg))
        a("v_mul_lo_u32 v%d, v%d, s%d" % (voff, V_ROWI, sl))
        a("v_add_u32 v%d, v%d, v%d" % (voff, voff, V_SWZ))

    def dma(kc, which, only=None):
        base = 12 if which == "cur" else 48
        sl, sc = (52, 53) if which == "cur" else (54, 55)
        voff = V_OFFC if which == "cur" else V_OFFN
        for i in range(4):
            if only is not None and i != only:
                continue
            a("s_add_u32 m0, s58, %d" % (kc * 32768 + i * 1024))
            a("s_mul_i32 s57, s%d, %d" % (sl, kc * 128 + 4 * i))
            a("s_add_u32 s57, s57, s%d" % sc)
            a("buffer_load_dwordx4 v%d, %s, s57 offen lds" % (voff, sr(base, 4)))

    def reads(kc, s, setidx, tr=False, only=None):
        hi = 4 if kc >= 2 else 0
        off = (kc & 1) * 32768 + (s >> 1) * 8192 + (s & 1) * 2048
        if tr:
            for j in range(4):
                if only is not None and j != only:
                    continue
                off = (kc & 1) * 32768 + (j >> 1) * 8192 + (j & 1) * 2048
                for ird in range(2):
                    a("ds_read_b64_tr_b16 %s, v%d offset:%d" % (
                        vr(V_B + setidx * 16 + j * 4 + ird * 2, 2), V_TR + hi + s, off + ird * 1024))
            return
        for nt in range(4):
            if only is not None and nt != only:
                continue
            for ird in range(2):
                a("ds_read_b64_tr_b16 %s, v%d offset:%d" % (
                    vr(V_B + setidx * 16 + nt * 4 + ird * 2, 2), V_TR + hi + nt, off + ird * 1024))

    def epi_part(kind, nt):
        if kind == "Q":
            for i in range(16):
                a("v_mul_f32 v%d, v%d, v%d" % (V_ACC + 16 * nt + i, V_LNR + 1, V_ACC + 16 * nt + i))
        for t in range(2):
            d = V_ACC + 16 * nt + 8 * t
            for p in range(4):
                x0 = V_ACC + 16 * nt + 8 * t + 2 * p
                a("v_cvt_pk_bf16_f32 v%d, v%d, v%d" % (d + p, x0, x0 + 1))
            a("buffer_store_dwordx4 %s, v%d, s[16:19], s%d offen offset:%d sc1" % (
                vr(d, 4), V_ST, 90 if nt < 2 else 91, ((nt * 2 + t) & 3) * 1024))
        a("s_nop 1")

    SPR = os.environ.get("SPR", "")
    sprc = [0]

    TRE = "tre" in os.environ.get("EXP", "")
    ILV = int(os.environ.get("ILV", "0"))

    def compute(kc, kind, extra=None, prev=None, hooks=None, late=None, defer=False):
        extra = list(extra or [])
        per = -(-len(extra) // 32)
        slots = {}
        if late:
            if SPR == "a":
                for i, f in enumerate(late):
                    slots.setdefault((min(2 * i + 1, 7), 0 if i < 4 else 2), []).append((f, None))
            elif SPR == "e":
                for i, f in enumerate(late):
                    slots.setdefault((min(2 * i, 6), 1 if i < 4 else 3), []).append((f, None))
            elif SPR == "f":
                for i, f in enumerate(late):
                    slots.setdefault((i + 1, 0), []).append((f, None))
            elif SPR == "g":
                for i, f in enumerate(late):
                    if prev and kc == 0:
                        slots.setdefault((min(4 + i, 7), 0 if i < 4 else 2), []).append((f, None))
                    else:
                        slots.setdefault((min(2 * i + 1, 7), 0 if i < 4 else 2), []).append((f, None))
            elif SPR == "b":
                for i, f in enumerate(late):
                    slots.setdefault((min(2 * i + 1, 7), 0 if i < 4 else 2), []).append((f, 1))
                    slots.setdefault((min(2 * i, 6), 1 if i < 4 else 3), []).append((f, 0))
            elif SPR == "c":
                for i, f in enumerate(late):
                    slots.setdefault((i + 1, 0), []).append((f, 0))
                    slots.setdefault((i + 1, 2), []).append((f, 1))
        for s in range(8):
            if hooks and s in hooks:
                hooks[s]()
            tre = TRE and prev and kc == 0
            ilv = ILV and not hooks
            if s < 7:
                rd = lambda only=None: reads(kc, s + 1, (s + 1) & 1, tre and s + 1 < 4, only)
            else:
                rd = lambda only=None: reads((kc + 1) & 3, 0, 0, TRE and defer and kc == 3, only)
            if not ilv:
                rd()
                a("s_waitcnt lgkmcnt(8)")
            ks = kc * 8 + s
            for nt in range(4):
                acc = vr(V_ACC + 16 * nt, 16)
                wf = vr(V_B + (s & 1) * 16 + nt * 4, 4)
                af = vr(V_A + 4 * ks, 4)
                c = "0" if ks == 0 else acc
                if tre and s < 4:
                    acc = vr(V_ACC + 16 * s, 16)
                    af = vr(V_A + 4 * nt, 4)
                    c = "0" if nt == 0 else acc
                    if nt == 0:
                        epi_part(prev, s)
                elif prev and ks == 0:
                    epi_part(prev, nt)
                if ilv:
                    if ILV == 2:
                        rd(nt)
                    a("s_waitcnt lgkmcnt(%d)" % (6 if ILV == 1 else 8))
                if kind == "V":
                    a("v_mfma_f32_32x32x16_bf16 %s, %s, %s, %s" % (acc, af, wf, c))
                else:
                    a("v_mfma_f32_32x32x16_bf16 %s, %s, %s, %s" % (acc, wf, af, c))
                if ilv and ILV == 1:
                    rd(nt)
                for f, half in slots.get((s, nt), []):
                    if half is None:
                        f()
                    else:
                        sprc[0] += 1
                        a("s_cmp_lt_u32 s6, 4")
                        a("s_cbranch_scc%d spr%d" % (half, sprc[0]))
                        f()
                        a.label("spr%d" % sprc[0])
                for x in extra[:per]:
                    a(x)
                extra = extra[per:]
        assert not extra

    def aload_ops(lo, hi):
        ops = []
        for s in range(lo, hi):
            ops.append("buffer_load_dwordx4 %s, v%d, s[8:11], %s offen offset:%d" % (
                vr(V_A + 4 * s, 4), V_AOFF, "s65" if s & 1 else "0", (s >> 1) * 64))
            ops += ["s_nop 0"] * 3
        return ops

    V_LNM = 244
    V_LNR = 246
    V_LNT = 248

    def norm_ops(q):
        ops = []
        for i in range(32 * q, 32 * q + 32):
            r = V_A + i
            t = 248 + 2 * (i % 3)
            ops.append("v_lshlrev_b32 v%d, 16, v%d" % (t, r))
            ops.append("v_and_b32 v%d, 0xffff0000, v%d" % (t + 1, r))
            ops.append("v_pk_add_f32 %s, %s, %s neg_lo:[0,1] neg_hi:[0,1]" % (vr(t, 2), vr(t, 2), vr(V_LNM, 2)))
            ops.append("v_cvt_pk_bf16_f32 v%d, v%d, v%d" % (r, t, t + 1))
        return ops

    def epilogue(kind):
        if kind == "H":
            a("s_waitcnt lgkmcnt(0)")
            a("v_lshrrev_b32 v15, 5, v1")
            a("v_lshlrev_b32 v15, 3, v15")
            for nt in range(4):
                for q in range(4):
                    a("buffer_load_dwordx2 %s, v15, s[20:23], s53 offen offset:%d" % (
                        vr(V_B + (nt * 4 + q) * 2, 2), 64 * nt + 16 * q))
            a.nop(12)
            for i in range(64):
                a("v_mul_f32 v%d, v%d, v%d" % (V_ACC + i, V_LNR, V_ACC + i))
            a("s_waitcnt vmcnt(0)")
            for nt in range(4):
                for q in range(4):
                    r0 = V_ACC + 16 * nt + 4 * q
                    b0 = V_B + (nt * 4 + q) * 2
                    for p in range(2):
                        x0, x1 = r0 + 2 * p, r0 + 2 * p + 1
                        bb = b0 + p
                        a("v_cvt_pk_bf16_f32 v15, v%d, v%d" % (x0, x1))
                        a("v_lshlrev_b32 v%d, 16, v15" % x0)
                        a("v_and_b32 v%d, 0xffff0000, v15" % x1)
                        a("v_lshlrev_b32 v15, 16, v%d" % bb)
                        a("v_add_f32 v%d, v%d, v15" % (x0, x0))
                        a("v_and_b32 v15, 0xffff0000, v%d" % bb)
                        a("v_add_f32 v%d, v%d, v15" % (x1, x1))
                        a("v_cvt_pk_bf16_f32 v15, v%d, v%d" % (x0, x1))
                        a("v_lshlrev_b32 v%d, 16, v15" % x0)
                        a("v_and_b32 v%d, 0xffff0000, v15" % x1)
                        a("v_max_f32 v%d, 0, v%d" % (x0, x0))
                        a("v_max_f32 v%d, 0, v%d" % (x1, x1))
                        a("v_mul_f32 v%d, v%d, v%d" % (x0, x0, x0))
                        a("v_mul_f32 v%d, v%d, v%d" % (x1, x1, x1))
        else:
            a.nop(12)
        if kind == "Q":
            for i in range(64):
                a("v_mul_f32 v%d, v%d, v%d" % (V_ACC + i, V_LNR + 1, V_ACC + i))
        a("s_add_u32 s67, s56, 4096")
        for nt in range(4):
            for t in range(2):
                d = V_ACC + 16 * nt + 8 * t
                for p in range(4):
                    x0 = V_ACC + 16 * nt + 8 * t + 2 * p
                    a("v_cvt_pk_bf16_f32 v%d, v%d, v%d" % (d + p, x0, x0 + 1))
                a("buffer_store_dwordx4 %s, v%d, s[16:19], s%d offen offset:%d sc1" % (
                    vr(d, 4), V_ST, 56 if nt < 2 else 67, ((nt * 2 + t) & 3) * 1024))
        a.nop(2)

    def W(n):
        a("s_waitcnt vmcnt(%d)" % n)

    sigc = [0]

    def sig_kq():
        if not EARLY:
            return
        sigc[0] += 1
        a("s_cmp_lg_u32 s6, 0")
        a("s_cbranch_scc1 sigkq%d" % sigc[0])
        a("s_mov_b32 s84, s82")
        a("s_mov_b32 s85, s83")
        a("s_mov_b32 s86, 256")
        a("s_mov_b32 s87, 0x20000")
        a("s_mov_b64 exec, 1")
        a("v_mov_b32 v252, 1")
        a("v_mov_b32 v253, 8")
        a("buffer_atomic_add v252, v253, s[84:87], 0 offen sc1")
        a("s_mov_b64 exec, -1")
        a.label("sigkq%d" % sigc[0])

    def ckv_first(kc):
        B = lambda: a("s_barrier")
        if kc == 0:
            return (lambda: None), {
                1: lambda: (W(12 + NP0), a_read(2, 4)),
                2: lambda: a_dma(5, 4),
                4: lambda: (W(8), a_read(3, 2)),
                6: lambda: (B(), dma(2, "cur"))}
        if kc == 1:
            return (lambda: (B(), a_dma(6, 0))), {
                1: lambda: (W(12), a_read(4, 3)),
                3: lambda: (W(8), a_read(5, 4)),
                6: lambda: (W(4), B(), a_dma(7, 4), dma(3, "cur"))}
        if kc == 2:
            return (lambda: (B(), dma(1, "next"))), {
                1: lambda: (W(12), a_read(6, 0)),
                3: lambda: (W(8), a_read(7, 4)),
                6: lambda: (W(4), B(), dma(0, "next"))}
        return (lambda: (B(), dma(2, "next"))), {
            7: lambda: (W(4), B())}

    PFS = os.environ.get("PFS", "")
    pfh = [0, 0]

    def pfsched(typ, ci):
        if not PFS:
            if ci == 1:
                return True
            if ci == 2:
                return 2 if NPF == 1 else 0
            return False
        last = 2 if typ == "x" else 3
        r = [None] * 4
        if ci == 1 and PFS[0] == "x":
            if typ == "x":
                r[0] = (3, 0, 1)
                r[1] = (4, 0, 1)
        elif ci == 1:
            n = int(PFS[0])
            for p in range(n):
                r[p * (4 // n) if PFS[2] == "s" else p] = (1, p, n)
        if ci == last:
            n = int(PFS[1])
            for p in range(n):
                r[p + int(PFS[3])] = (2, p, n)
        return r if any(r) else None

    def chunk(kind, set_next, set_out, prev=None, defer=False, first=None, pf=False, sig=False):
        waits = (4, 12, 12, 4) if prev else (8, 4, 4, 4)
        if pf:
            waits = (4, 12 + NPF, 12 + NPF, 4)
        if PFS:
            pfl = pf if pf else [None] * 4
            hist = pfh + [1 if x else 0 for x in pfl]
            waits = tuple(((4, 12, 4 if SPR else 12, 4) if prev else (8, 4, 4, 4))[k] + hist[k] + hist[k + 1] for k in range(4))
            pfh[:] = hist[-2:]
        if prev:
            a("s_mov_b32 s90, s56")
            a("s_add_u32 s91, s56, 4096")
        set_next()
        set_out()
        for kc in range(4):
            extra = hooks = late = None
            if first == "ckv":
                st, hooks = ckv_first(kc)
                st()
            else:
                a("s_waitcnt vmcnt(%d)" % waits[kc])
                a("s_barrier")
                if SPR:
                    assert PFS
                    late = []
                    if kc >= 1 or not first:
                        for i in range(4):
                            late.append(lambda i=i: dma(3, "cur", i) if kc < 1 else dma(kc - 1, "next", i))
                    if pfl[kc]:
                        late.append(lambda: prefetch(*pfl[kc]))
                elif kc < 1:
                    if not first:
                        dma(kc + 3, "cur")
                    if pf and not PFS:
                        prefetch(pf)
                else:
                    dma(kc - 1, "next")
                if PFS and pfl[kc] and not SPR:
                    prefetch(*pfl[kc])
                if sig and kc == 3:
                    sig_kq()
            if first == "xn" and kc < 3:
                extra = norm_ops(kc + 1)
            if kc == 0:
                a.stamp()
            compute(kc, kind, extra, prev, hooks, late, defer)
        a.stamp()
        if not defer:
            epilogue(kind)
        a.stamp()
        for i in range(3):
            a("s_mov_b32 s%d, s%d" % (12 + i, 48 + i))
        a("s_mov_b32 s52, s54")
        a("s_mov_b32 s53, s55")
        a("v_mov_b32 v%d, v%d" % (V_OFFC, V_OFFN))

    a("s_lshl_b32 s61, s4, 8")
    a("s_mov_b32 s46, s61")
    if "rev" in EXPF:
        a("s_and_b32 s47, s3, 1")
        a("s_lshl_b32 s47, s47, 12")
        a("s_xor_b32 s61, s61, s47")
    a("s_xor_b32 s62, s61, 4096")
    a("s_lshl_b32 s63, s61, 11")
    a("s_lshl_b32 s64, s59, 13")
    a("s_add_u32 s63, s63, s64")
    a("s_xor_b32 s64, s63, 0x800000")
    V_AD, V_AR = 240, 241
    a("v_and_b32 v24, 7, v1")
    a("v_lshrrev_b32 v25, 3, v1")
    a("v_lshrrev_b32 v26, 1, v25")
    a("v_xor_b32 v26, v24, v26")
    a("v_lshlrev_b32 v26, 4, v26")
    a("v_lshl_add_u32 v26, v25, 10, v26")
    a("s_lshl_b32 s60, s59, 15")
    a("v_add_u32 v%d, s60, v26" % V_AD)
    a("s_lshl_b32 s66, s6, 12")
    a("v_and_b32 v24, 31, v1")
    a("v_lshrrev_b32 v25, 5, v1")
    a("v_bfe_u32 v26, v24, 1, 3")
    a("v_lshlrev_b32 v27, 1, v25")
    a("v_xor_b32 v26, v26, v27")
    a("v_lshlrev_b32 v26, 4, v26")
    a("v_lshl_add_u32 v26, v24, 7, v26")
    a("v_add_u32 v%d, s66, v26" % V_AR)
    a("v_add_u32 v%d, 0x10000, v%d" % (V_AR + 1, V_AR))
    a("v_add_u32 v%d, 0x20000, v%d" % (V_AR + 2, V_AR))

    def a_dma(e, reg):
        for j in range(4):
            a("v_xor_b32 v%d, %d, v%d" % (248 + j, 64 * (j & 1), V_AD))
            a("s_add_u32 m0, s66, %d" % (reg * 32768 + 1024 * j))
            a("s_movk_i32 s67, %d" % (8192 * j + 128 * e))
            a("buffer_load_dwordx4 v%d, s[8:11], s67 offen lds" % (248 + j))

    def a_read(e, reg):
        for s_ in range(4):
            c0 = (4 * (s_ >> 1) + (s_ & 1)) * 16
            a("v_xor_b32 v%d, %d, v%d" % (248 + s_, c0, V_AR + (reg >> 1)))
            a("ds_read_b128 %s, v%d offset:%d" % (vr(V_A + 4 * (4 * e + s_), 4), 248 + s_, (reg & 1) * 32768))

    def L0():
        a("s_waitcnt lgkmcnt(0)")

    def stats(q):
        for i in range(32 * q, 32 * q + 32):
            r = V_A + i
            t = 20 + 2 * (i & 3)
            a("v_lshlrev_b32 v%d, 16, v%d" % (t, r))
            a("v_and_b32 v%d, 0xffff0000, v%d" % (t + 1, r))
            a("v_pk_add_f32 v[16:17], v[16:17], %s" % vr(t, 2))
            a("v_pk_fma_f32 v[18:19], %s, %s, v[18:19]" % (vr(t, 2), vr(t, 2)))

    NPF = 4 if "pfall" in EXPF else (2 if "pfv2" in EXPF else (0 if "nopf" in EXPF else 1))

    def prefetch(stage=1, part=0, nparts=1):
        if not NPF:
            return
        if stage >= 3:
            a("s_lshr_b32 s88, s2, 1")
            a("s_lshl_b32 s88, s88, 3")
            a("s_add_u32 s88, s88, s6")
            if stage == 4:
                a("s_sub_u32 s88, 1023, s88")
            a("v_lshlrev_b32 v255, 6, v1")
            src = 32 if stage == 3 else 38
            a("s_mov_b32 s84, s%d" % src)
            a("s_mov_b32 s85, s%d" % (src + 1))
            a("s_mov_b32 s86, 0x%x" % (0x400000 if stage == 3 else 0x1c0000))
            a("s_mov_b32 s87, 0x20000")
            a("s_lshl_b32 s89, s88, 12")
            a("buffer_load_dword v254, v255, s[84:87], s89 offen")
            return
        if NPF == 1:
            big, small = (32, 38) if stage == 1 else (34, 42)
            a("s_lshl_b32 s88, s2, 3")
            a("s_add_u32 s88, s88, s6")
            a("v_lshlrev_b32 v255, 6, v1")
            a("s_cmp_lt_u32 s88, 1024")
            a("s_cselect_b32 s84, s%d, s%d" % (big, small))
            a("s_cselect_b32 s85, s%d, s%d" % (big + 1, small + 1))
            a("s_cselect_b32 s86, s7, 0x1c0000")
            a("s_mov_b32 s87, 0x20000")
            a("s_and_b32 s89, s88, 1023")
            a("s_lshl_b32 s89, s89, 12")
            if nparts > 1:
                w = 64 // nparts
                m = ((1 << w) - 1) << (w * part)
                a("s_mov_b32 exec_lo, 0x%x" % (m & 0xffffffff))
                a("s_mov_b32 exec_hi, 0x%x" % (m >> 32))
            a("buffer_load_dword v254, v255, s[84:87], s89 offen")
            if nparts > 1:
                a("s_mov_b64 exec, -1")
            return
        if NPF == 2:
            a("s_lshl_b32 s88, s2, 3")
            a("s_add_u32 s88, s88, s6")
            a("v_lshlrev_b32 v255, 7, v1")
            a("s_lshr_b32 s89, s88, 9")
            a("s_mov_b32 s84, s32")
            a("s_mov_b32 s85, s33")
            a("s_mov_b32 s86, 0x400000")
            for m, src in ((1, 34), (2, 38), (3, 42)):
                a("s_cmp_eq_u32 s89, %d" % m)
                a("s_cselect_b32 s84, s%d, s84" % src)
                a("s_cselect_b32 s85, s%d, s85" % (src + 1))
            a("s_cmp_ge_u32 s89, 2")
            a("s_cselect_b32 s86, 0x1c0000, s86")
            a("s_mov_b32 s87, 0x20000")
            a("s_and_b32 s89, s88, 511")
            a("s_lshl_b32 s89, s89, 13")
            a("buffer_load_dword v254, v255, s[84:87], s89 offen")
            a("buffer_load_dword v254, v255, s[84:87], s89 offen offset:64")
            return
        a("s_lshl_b32 s88, s2, 3")
        a("s_add_u32 s88, s88, s6")
        a("v_lshlrev_b32 v255, 7, v1")
        a("s_lshr_b32 s89, s88, 9")
        a("s_mov_b32 s84, s28")
        a("s_mov_b32 s85, s29")
        for m in range(1, 4):
            a("s_cmp_eq_u32 s89, %d" % m)
            a("s_cselect_b32 s84, s%d, s84" % (28 + 2 * m))
            a("s_cselect_b32 s85, s%d, s85" % (29 + 2 * m))
        a("s_mov_b32 s86, 0x400000")
        a("s_mov_b32 s87, 0x20000")
        a("s_and_b32 s89, s88, 511")
        a("s_lshl_b32 s89, s89, 13")
        a("buffer_load_dword v254, v255, s[84:87], s89 offen")
        a("buffer_load_dword v254, v255, s[84:87], s89 offen offset:64")
        a("s_cmp_lt_u32 s88, 224")
        a("s_cselect_b32 s84, s38, s42")
        a("s_cselect_b32 s85, s39, s43")
        a("s_cselect_b32 s89, 0, 224")
        a("s_sub_u32 s89, s88, s89")
        a("s_lshl_b32 s89, s89, 13")
        a("s_cmp_lt_u32 s88, 448")
        a("s_cselect_b32 s86, 0x1c0000, 0")
        a("buffer_load_dword v254, v255, s[84:87], s89 offen")
        a("buffer_load_dword v254, v255, s[84:87], s89 offen offset:64")

    NP0 = int(os.environ.get("NP0", "0"))

    def prefetch0():
        if not NP0:
            return
        a("s_lshl_b32 s88, s2, 3")
        a("s_add_u32 s88, s88, s6")
        a("v_lshlrev_b32 v255, 7, v1")
        a("s_lshr_b32 s89, s88, 9")
        a("s_mov_b32 s84, s28")
        a("s_mov_b32 s85, s29")
        for m in range(1, 4):
            src = 28 + 2 * m if m < 3 else 38
            a("s_cmp_eq_u32 s89, %d" % m)
            a("s_cselect_b32 s84, s%d, s84" % src)
            a("s_cselect_b32 s85, s%d, s85" % (src + 1))
        a("s_cselect_b32 s86, 0x1c0000, s7")
        a("s_mov_b32 s87, 0x20000")
        a("s_and_b32 s89, s88, 511")
        a("s_lshl_b32 s89, s89, 13")
        for i in range(NP0):
            a("buffer_load_dword v254, v255, s[84:87], s89 offen offset:%d" % (64 * i))

    a("s_mov_b32 s7, 0x400000")
    a("s_cmp_eq_u32 s5, 1")
    a("s_cbranch_scc1 proj_ckv")
    set_params("cur", 28, 29, 0x400000, 8192, "s61")
    a_dma(0, 2)
    a_dma(1, 3)
    a_dma(2, 4)
    dma(0, "cur")
    prefetch0()
    a("v_mov_b32 v16, 0")
    a("v_mov_b32 v17, 0")
    a("v_mov_b32 v18, 0")
    a("v_mov_b32 v19, 0")
    W(12 + NP0); a_read(0, 2); L0(); a_dma(3, 2)
    W(12 + NP0); a_read(1, 3); L0(); a_dma(4, 3)
    W(12 + NP0); a_read(2, 4); L0(); a_dma(5, 4)
    dma(1, "cur")
    stats(0)
    W(12); a_read(3, 2); L0(); a_dma(6, 2)
    W(12); a_read(4, 3); L0(); a_dma(7, 3)
    stats(1)
    W(12); a_read(5, 4); L0()
    stats(2)
    W(4); a_read(6, 2)
    W(0); a_read(7, 3); L0()
    a("s_barrier")
    dma(2, "cur")
    dma(3, "cur")
    stats(3)
    a.stamp()
    a("v_add_f32 v16, v16, v17")
    a("v_add_f32 v18, v18, v19")
    a("v_mov_b32 v17, v16")
    a("v_mov_b32 v19, v18")
    a.nop(2)
    a("v_permlane32_swap_b32 v16, v17")
    a("v_permlane32_swap_b32 v18, v19")
    a.nop(2)
    a("v_add_f32 v16, v16, v17")
    a("v_add_f32 v18, v18, v19")
    a("v_mul_f32 v16, 0x3b000000, v16")
    a("v_mul_f32 v18, 0x3b000000, v18")
    a("v_fma_f32 v18, -v16, v16, v18")
    a("v_max_f32 v18, 0, v18")
    a("v_cvt_pk_bf16_f32 v16, v16, v18")
    a("v_and_b32 v18, 0xffff0000, v16")
    a("v_lshlrev_b32 v16, 16, v16")
    a("v_add_f32 v18, 0x3727c5ac, v18")
    a("v_cvt_pk_bf16_f32 v18, v18, v18")
    a("v_lshlrev_b32 v18, 16, v18")
    a("v_sqrt_f32 v18, v18")
    a("s_nop 0")
    a("v_cvt_pk_bf16_f32 v18, v18, v18")
    a("v_lshlrev_b32 v18, 16, v18")
    a("v_rcp_f32 v18, v18")
    a("v_mov_b32 v%d, v16" % V_LNM)
    a("v_mov_b32 v%d, v16" % (V_LNM + 1))
    a("v_mov_b32 v%d, v18" % V_LNR)
    a("v_mul_f32 v%d, 0x%08x, v18" % (V_LNR + 1, QSC))
    reads(0, 0, 0)
    for x in norm_ops(0):
        a(x)
    a.stamp()

    def out_q0():
        a("s_add_u32 s56, s63, 0x%x" % QF)

    def out_q1():
        a("s_add_u32 s56, s64, 0x%x" % QF)

    def next_q1():
        set_params("next", 28, 29, 0x400000, 8192, "s62")

    def next_h():
        a("s_cmp_lt_u32 s4, 14")
        a("s_cselect_b32 s66, 0x1c0000, 0")
        set_params("next", 38, 39, "s66", 3584, "s46")

    def next_none():
        a("s_mov_b32 s66, 0")
        set_params("next", 38, 39, "s66", 3584, "s46")

    def out_h():
        a("s_mul_i32 s56, s59, %d" % AF_BLK)
        a("s_lshl_b32 s66, s4, 13")
        a("s_add_u32 s56, s56, s66")
        a("s_add_u32 s56, s56, 0x%x" % (AF + 256 * 1024))

    chunk("Q", next_q1, out_q0, None, True, "xn")
    chunk("Q", next_h, out_q1, "Q", True, None, pfsched("x", 1))
    a("s_cmp_lt_u32 s4, 14")
    a("s_cbranch_scc1 proj_h")
    epilogue("Q")
    if EARLY:
        a("s_waitcnt vmcnt(0)")
        a("s_barrier")
        sig_kq()
    if "pf2" in EXPF:
        a("s_sub_u32 s88, s4, 14")
        a("s_lshl_b32 s89, s3, 1")
        a("s_add_u32 s88, s88, s89")
        a("s_lshl_b32 s88, s88, 3")
        a("s_add_u32 s88, s88, s6")
        a("v_lshlrev_b32 v255, 7, v1")
        a("s_mov_b32 s84, s34")
        a("s_mov_b32 s85, s35")
        a("s_mov_b32 s86, 0x400000")
        a("s_mov_b32 s87, 0x20000")
        a("s_lshl_b32 s89, s88, 15")
        for i in range(4):
            a("buffer_load_dword v254, v255, s[84:87], s89 offen")
            a("buffer_load_dword v254, v255, s[84:87], s89 offen offset:64")
            a("s_add_u32 s89, s89, 8192")
        a("s_mov_b32 s84, s42")
        a("s_mov_b32 s85, s43")
        a("s_mov_b32 s86, 0x1c0000")
        a("s_lshl_b32 s89, s88, 14")
        for i in range(2):
            a("buffer_load_dword v254, v255, s[84:87], s89 offen")
            a("buffer_load_dword v254, v255, s[84:87], s89 offen offset:64")
            a("s_add_u32 s89, s89, 8192")
    a("s_branch proj_end")
    a.label("proj_h")
    chunk("H", next_none, out_h, "Q", False, None, pfsched("x", 2), True)
    pfh[:] = [0, 0]
    a.stamp_flush(0)
    a("s_branch proj_end")
    a.nst = 2

    a.label("proj_ckv")
    set_params("cur", 30, 31, 0x400000, 8192, "s61")
    dma(0, "cur")
    a_dma(0, 2)
    a_dma(1, 3)
    a_dma(2, 4)
    dma(1, "cur")
    prefetch0()
    W(12 + NP0); a_read(0, 2); L0(); a_dma(3, 2)
    W(12 + NP0); a_read(1, 3); L0(); a_dma(4, 3)
    a("s_barrier")
    reads(0, 0, 0)

    def out_k0():
        a("s_add_u32 s56, s63, 0x%x" % KF)

    def out_k1():
        a("s_add_u32 s56, s64, 0x%x" % KF)

    def out_v0():
        a("s_add_u32 s56, s63, 0x%x" % VF)

    def out_v1():
        a("s_add_u32 s56, s64, 0x%x" % VF)

    chunk("QK", lambda: set_params("next", 30, 31, 0x400000, 8192, "s62"), out_k0, None, True, "ckv")
    chunk("QK", lambda: set_params("next", 32, 33, 0x400000, 8192, "s61"), out_k1, "QK", True, None, pfsched("c", 1))
    chunk("V", lambda: set_params("next", 32, 33, 0x400000, 8192, "s62"), out_v0, "QK", True, None, pfsched("c", 2), True)
    chunk("V", next_none, out_v1, "V", False, None, pfsched("c", 3))
    a.stamp_flush(int(STAMP) if STAMP else 0)
    a.label("proj_end")
    a.ostamp()
    if not EARLY:
        a.gridbar(0)
        a.ostamp()


def descriptor(a, name, vgpr, sgpr, accum):
    a.raw(".p2align 6")
    a.raw(".amdhsa_kernel %s" % name)
    a.raw("  .amdhsa_next_free_vgpr %d" % vgpr)
    a.raw("  .amdhsa_next_free_sgpr %d" % sgpr)
    a.raw("  .amdhsa_accum_offset %d" % accum)
    a.raw("  .amdhsa_group_segment_fixed_size 0")
    a.raw("  .amdhsa_kernarg_size 112")
    a.raw("  .amdhsa_user_sgpr_count 2")
    a.raw("  .amdhsa_user_sgpr_kernarg_segment_ptr 1")
    a.raw("  .amdhsa_system_sgpr_workgroup_id_x 1")
    a.raw(".end_amdhsa_kernel")


def main():
    from gen_rest import gen_attn, gen_ogemm, gen_reduce
    a = Asm()
    hdr = open("cdna_kernels/%s.s.ref" % NAME).read().split("\n")
    for l in hdr:
        if l.startswith(";") and "@launch" not in l:
            a.raw(l)
        elif not l.startswith(";"):
            break
    a.raw("; @launch kernel=mega_kernel grid=(256,1,1) block=(512,1,1) lds=163840")
    a.raw('.amdgcn_target "amdgcn-amd-amdhsa--gfx950"')
    a.raw(".text")
    a.raw(".globl mega_kernel")
    a.raw(".p2align 8")
    a.raw(".type mega_kernel,@function")
    gen_proj(a)
    gen_attn(a)
    gen_ogemm(a)
    gen_reduce(a)
    a.label("code_end")
    a.raw('.section .rodata,"a"')
    descriptor(a, "mega_kernel", 256, 102, 256)
    out = sys.argv[1] if len(sys.argv) > 1 else "cdna_kernels/%s.s" % NAME
    open(out, "w").write("\n".join(a.lines) + "\n")


if __name__ == "__main__":
    main()
```

```python
from gen import vr, sr, QF, KF, VF, AF, AF_BLK, PART, CTR, EARLY
import math
import os
EXP = os.environ.get("EXP", "")
SENT = "sent" in EXP
MST = os.environ.get("MST")
AVW = os.environ.get("AVW")
OIL = os.environ.get("OIL")

SCALE_LOG2E = (128 ** -0.5) * math.log2(math.e)


def f32hex(x):
    import struct
    return "0x%08x" % struct.unpack("<I", struct.pack("<f", x))[0]


def interleave(a, mf, fl):
    n = len(mf)
    pos = 0
    for i in range(n):
        a(mf[i])
        end = (len(fl) * (i + 1)) // n
        while pos < end:
            a(fl[pos])
            pos += 1


def gen_attn(a):
    V_LDS = 2
    V_DMA = 3
    V_LG = 4
    V_NEG = 5
    V_RDV = 6
    V_RDK = 7
    V_M = 8
    V_L = 9
    V_T = 10
    V_Q = 16
    V_O = 48
    V_S = 112
    V_P = 144
    V_K = 152
    V_V = 184
    S_MASK = 36
    S_LB = 35
    S_THR = 34
    V_C = 216
    V_E = 232
    NBUF = 5
    LDSZ = NBUF * 32768

    a.label("attn_kernel")
    if not EARLY:
        a.stamp()
    a("s_load_dwordx2 s[8:9], s[0:1], 104")
    if "df" in EXP:
        a("s_load_dwordx2 s[86:87], s[0:1], 96")
        a("v_mov_b32 v255, 0")
    a("v_lshrrev_b32 v1, 6, v0")
    a("s_nop 0")
    a("v_readfirstlane_b32 s6, v1")
    a("v_and_b32 v1, 63, v0")
    a("s_lshr_b32 s22, s6, 2")
    a("s_and_b32 s23, s6, 3")
    a("s_and_b32 s3, s2, 7")
    a("s_lshl_b32 s3, s3, 2")
    a("s_lshr_b32 s4, s2, 3")
    a("s_and_b32 s4, s4, 3")
    a("s_add_u32 s3, s3, s4")
    a("s_lshr_b32 s4, s2, 5")
    a("s_sub_u32 s5, 15, s4")
    a("s_mov_b32 s24, 0")
    a("s_mov_b32 s77, 1000000")
    a("s_mov_b32 s10, 0x10000000")
    a("s_mov_b32 s11, 0x20000")
    a("s_lshl_b32 s12, s3, 19")
    a("v_lshlrev_b32 v%d, 4, v1" % V_LDS)
    a("s_lshl_b32 s13, s23, 11")
    a("s_lshl_b32 s25, s22, 13")
    a("s_add_u32 s25, s25, s13")
    a("v_add_u32 v%d, s25, v%d" % (V_DMA, V_LDS))
    a("s_lshl_b32 s26, s22, 14")
    a("v_add_u32 v%d, s26, v%d" % (V_LG, V_LDS))
    a("s_add_u32 s27, s26, s13")
    a("v_and_b32 v12, 31, v1")
    a("v_lshrrev_b32 v13, 5, v1")
    a("v_lshlrev_b32 v13, 2, v13")
    a("v_sub_u32 v12, v12, v13")
    for r in range(16):
        kl = 8 * (r >> 2) + (r & 3)
        a("v_cmp_le_i32 %s, %d, v12" % (sr(S_MASK + 2 * r, 2), kl))
    a("v_mov_b32 v%d, 0xf149f2ca" % V_NEG)
    a("s_waitcnt lgkmcnt(0)")

    def bump(sreg):
        return ["s_add_u32 s%d, s%d, 32768" % (sreg, sreg),
                "s_cmp_ge_u32 s%d, %d" % (sreg, LDSZ),
                "s_cselect_b32 s%d, 0, s%d" % (sreg, sreg)]

    def dma_ops():
        ops = []
        ops.append("s_add_u32 m0, s27, s28")
        ops.append("s_cmp_eq_u32 s78, s79")
        ops.append("s_cselect_b32 s16, s80, s16")
        ops.append("s_cselect_b32 s17, s81, s17")
        ops.append("s_add_u32 s78, s78, 1")
        for i in range(2):
            ops.append("buffer_load_dwordx4 v%d, s[8:11], s16 offen offset:%d lds" % (V_DMA, i * 1024))
        ops.append("s_add_u32 m0, m0, 8192")
        ops.append("s_add_u32 s16, s16, 16384")
        for i in range(2):
            ops.append("buffer_load_dwordx4 v%d, s[8:11], s17 offen offset:%d lds" % (V_DMA, i * 1024))
        ops.append("s_add_u32 s17, s17, 16384")
        ops += bump(28)
        return ops

    def dma():
        for x in dma_ops():
            a(x)

    def tstamp(k):
        if not os.environ.get("STAMP"):
            return
        a("s_memtime s[98:99]")
        a("s_waitcnt lgkmcnt(0)")
        a("s_cmp_eq_u32 s24, 0")
        a("s_cselect_b32 s%d, s98, s%d" % (69 + k, 69 + k))
        a("s_cselect_b32 s%d, s%d, s98" % (73 + k, 73 + k))

    def kread_ops():
        return ["ds_read_b128 %s, v%d offset:%d" % (vr(V_K + 4 * s, 4), V_RDK, s * 1024) for s in range(8)] + \
            bump(33) + ["v_add_u32 v%d, s33, v%d" % (V_RDK, V_LG)]

    def vread_ops():
        order = (0, 2, 4, 6, 1, 3, 5, 7) if AVW else range(8)
        return ["ds_read_b128 %s, v%d offset:%d" % (vr(V_V + 4 * i, 4), V_RDV, 8192 + i * 1024) for i in order] + \
            bump(32) + ["v_add_u32 v%d, s32, v%d" % (V_RDV, V_LG)]

    def qk_ops(sp):
        ops = []
        S = V_S + 16 * sp
        for s in range(8):
            c = vr(V_C, 16) if s == 0 else vr(S, 16)
            ops.append("v_mfma_f32_32x32x16_bf16 %s, %s, %s, %s" % (vr(S, 16), vr(V_K + 4 * s, 4), vr(V_Q + 4 * s, 4), c))
        return ops

    def pv_ops():
        ops = []
        for t in range(2):
            for dt in range(4):
                o = vr(V_O + 16 * dt, 16)
                ops.append("v_mfma_f32_32x32x16_bf16 %s, %s, %s, %s" % (o, vr(V_V + 4 * (dt * 2 + t), 4), vr(V_P + 4 * t, 4), o))
        return ops

    def max_ops(S, t0, t1):
        return ["v_max3_f32 v%d, v%d, v%d, v%d" % (t0, S, S + 1, S + 2),
                "v_max3_f32 v%d, v%d, v%d, v%d" % (t1, S + 3, S + 4, S + 5),
                "v_max3_f32 v%d, v%d, v%d, v%d" % (t0, t0, S + 6, S + 7),
                "v_max3_f32 v%d, v%d, v%d, v%d" % (t1, t1, S + 8, S + 9),
                "v_max3_f32 v%d, v%d, v%d, v%d" % (t0, t0, S + 10, S + 11),
                "v_max3_f32 v%d, v%d, v%d, v%d" % (t1, t1, S + 12, S + 13),
                "v_max3_f32 v%d, v%d, v%d, v%d" % (t0, t0, S + 14, S + 15),
                "v_max_f32 v%d, v%d, v%d" % (t0, t0, t1),
                "v_mov_b32 v%d, v%d" % (t1, t0)]

    def soft_ops(S, t2, t3):
        P = V_P
        E = V_E
        vb = []
        for r in range(16):
            vb.append("v_exp_f32 v%d, v%d" % (E + r, S + r))
            if r >= 3 and r % 2 == 1:
                q = r - 3
                vb.append("v_cvt_pk_bf16_f32 v%d, v%d, v%d" % (P + q // 2, E + q, E + q + 1))
                if q == 0:
                    vb.append("v_add_f32 v%d, v%d, v%d" % (t2, E, E + 1))
                elif q == 2:
                    vb.append("v_add_f32 v%d, v%d, v%d" % (t3, E + 2, E + 3))
                else:
                    vb.append("v_add_f32 v%d, v%d, v%d" % (t2, t2, E + q))
                    vb.append("v_add_f32 v%d, v%d, v%d" % (t3, t3, E + q + 1))
        vb.append("v_add_f32 v%d, v%d, v%d" % (t2, t2, t3))
        vb.append("v_cvt_pk_bf16_f32 v%d, v%d, v%d" % (P + 7, E + 14, E + 15))
        vb.append("v_add_f32 v%d, v%d, v%d" % (t3, E + 14, E + 15))
        vb.append("v_add_f32 v%d, v%d, v%d" % (t2, t2, t3))
        return vb

    cnt = [0]
    rare = []

    def mask(L, S):
        a("s_lshl_b32 s29, s18, 1")
        a("s_add_u32 s29, s29, s22")
        a("s_cmp_lt_u32 s29, s30")
        a("s_cbranch_scc1 %s_nomask" % L)
        a("s_cmp_eq_u32 s29, s30")
        a("s_cbranch_scc1 %s_tri" % L)
        for r in range(16):
            a("v_mov_b32 v%d, v%d" % (S + r, V_NEG))
        a("s_branch %s_nomask" % L)
        a.label("%s_tri" % L)
        for r in range(16):
            a("v_cndmask_b32 v%d, v%d, v%d, %s" % (S + r, V_NEG, S + r, sr(S_MASK + 2 * r, 2)))
        a.label("%s_nomask" % L)

    def phaseA(sp, diag, last=False):
        cnt[0] += 1
        L = "attn_it%d" % cnt[0]
        S = V_S + 16 * sp
        T = V_T
        if diag:
            mask(L, S)
        qk = qk_ops(sp ^ 1)
        S2 = V_S + 16 * (sp ^ 1)
        so = soft_ops(S, T + 3, T + 4)
        vrd = vread_ops()
        mix = []
        step = len(so) // len(vrd)
        k = 0
        for i, x in enumerate(so):
            mix.append(x)
            if i % step == step - 1 and k < len(vrd):
                mix.append(vrd[k])
                k += 1
        mix += vrd[k:]
        if last:
            for x in mix:
                a(x)
        else:
            interleave(a, qk, mix)
        a("v_cmp_lt_f32 vcc, s%d, v%d" % (S_THR, T + 3))
        a("s_nop 1")
        a("s_cbranch_vccnz %s_rs" % L)
        a.label("%s_nors" % L)
        a("v_add_f32 v%d, v%d, v%d" % (V_L, V_L, T + 3))
        blk = ["%s_rs:" % L]
        if os.environ.get("STAMP"):
            blk.append("s_add_u32 s77, s77, 1")
        blk += max_ops(S, T, T + 1)
        blk += ["s_nop 1",
                "v_permlane32_swap_b32 v%d, v%d" % (T, T + 1),
                "s_nop 0",
                "v_max3_f32 v%d, v%d, v%d, s%d" % (T, T, T + 1, S_LB),
                "v_exp_f32 v%d, -v%d" % (T + 1, T),
                "v_add_f32 v%d, v%d, v%d" % (V_M, V_M, T),
                "v_min_f32 v%d, 0x7149f2ca, v%d" % (T + 1, T + 1),
                "s_mov_b32 s%d, 0x53800000" % S_THR,
                "s_mov_b32 s%d, 0" % S_LB,
                "v_mul_f32 v%d, v%d, v%d" % (V_L, V_L, T + 1)]
        for i in range(64):
            blk.append("v_mul_f32 v%d, v%d, v%d" % (V_O + i, V_O + i, T + 1))
        for r in range(16):
            blk.append("v_sub_f32 v%d, v%d, v%d" % (S + r, S + r, T))
        blk += so
        for r in range(16):
            blk.append("v_sub_f32 v%d, v%d, v%d" % (V_C + r, V_C + r, T))
        for r in range(16 if not last else 0):
            blk.append("v_sub_f32 v%d, v%d, v%d" % (S2 + r, S2 + r, T))
        blk.append("s_branch %s_nors" % L)
        rare.append(blk)
        a("s_add_u32 s18, s18, 1")

    def phaseC(mode="n"):
        ASP = os.environ.get("ASP", "")
        avw = AVW and mode == "n" and ASP == "a"
        a("s_waitcnt lgkmcnt(%d)" % (4 if avw else 0))
        a("s_nop 0")
        if mode == "n" and ASP:
            k, d = kread_ops(), dma_ops()
            if ASP == "a":
                per = [k[0:3], k[3:5] + d[0:6], k[5:8], k[8:12] + d[6:7], d[7:9], d[9:10], d[10:11], d[11:]]
            elif ASP == "b":
                per = [k[0:2] + d[0:6], k[2:5], k[5:7] + d[6:9], k[7:12], d[9:10], [], d[10:11], d[11:]]
            elif ASP == "d":
                per = [k[0:2] + d[0:6], k[2:4], k[4:5] + d[6:9], k[5:7], k[7:8] + d[9:10], k[8:12], d[10:11], d[11:]]
            elif ASP == "e":
                per = [k[0:3], k[3:5] + d[0:6], k[5:8] + d[6:7], k[8:12] + d[7:9], d[9:10], d[10:11], d[11:], []]
            else:
                per = [k[0:4], k[4:8], k[8:12] + d[0:6], [], d[6:9], d[9:10], [], d[10:]]
            for i, (m, p) in enumerate(zip(pv_ops(), per)):
                if avw and i == 4:
                    a("s_waitcnt lgkmcnt(8)")
                a(m)
                for x in p:
                    a(x)
            return
        if mode == "n":
            f = kread_ops() + dma_ops()
        elif mode == "k":
            f = kread_ops()
        else:
            k = int(mode[1])
            f = ["buffer_load_dwordx4 %s, v%d, s[8:11], s%d offen offset:%d" % (
                vr(V_Q + 16 * k + 4 * s_, 4), V_LDS, 82 + k, s_ * 1024) for s_ in range(4)]
        interleave(a, pv_ops(), f)

    def bar():
        a("s_waitcnt vmcnt(4) lgkmcnt(0)")
        a("s_barrier")

    def tile_front(qt):
        a("s_lshl_b32 s15, s%d, 2" % qt)
        a("s_add_u32 s15, s15, s23")
        a("s_lshl_b32 s15, s15, 13")
        a("s_add_u32 s15, s15, s12")
        for k in range(2):
            for s in range(4):
                a("buffer_load_dwordx4 %s, v%d, s[8:11], s15 offen offset:%d" % (vr(V_Q + 16 * k + 4 * s, 4), V_LDS, s * 1024))
            a("s_add_u32 s15, s15, 4096")
        a("s_add_u32 s16, s12, 0x%x" % KF)
        a("s_add_u32 s17, s12, 0x%x" % VF)
        a("s_mov_b32 s28, 98304")
        a("s_mov_b32 s78, 0")
        a("s_mov_b32 s79, -1")
        dma()
        dma()
        dma()
        dma()

    if EARLY:
        ring = [98304, 131072, 0, 32768]
        a.eb_pre()
        a("s_lshl_b32 s15, s5, 2")
        a("s_add_u32 s15, s15, s23")
        a("s_lshl_b32 s15, s15, 13")
        a("s_add_u32 s15, s15, s12")
        a("s_add_u32 s16, s12, 0x%x" % KF)
        a("s_add_u32 s17, s12, 0x%x" % VF)
        for st in range(4):
            a("s_add_u32 m0, s27, %d" % ring[st])
            a("s_nop 0")
            for i in range(2):
                a("buffer_load_dwordx4 v%d, s[8:11], s16 offen offset:%d lds" % (V_DMA, i * 1024))
            a("s_add_u32 s16, s16, 16384")
            if st == 0:
                for k in range(2):
                    for s_ in range(4):
                        a("buffer_load_dwordx4 %s, v%d, s[8:11], s15 offen offset:%d" % (vr(V_Q + 16 * k + 4 * s_, 4), V_LDS, s_ * 1024))
                    a("s_add_u32 s15, s15, 4096")
        a.eb_post()
        a.stamp()
        for st in range(4):
            a("s_add_u32 m0, s27, %d" % (ring[st] + 8192))
            a("s_nop 0")
            for i in range(2):
                a("buffer_load_dwordx4 v%d, s[8:11], s17 offen offset:%d lds" % (V_DMA, i * 1024))
            a("s_add_u32 s17, s17, 16384")
        a("s_mov_b32 s28, 65536")
        a("s_mov_b32 s78, 4")
    else:
        tile_front(5)
    a("s_mov_b32 s32, 98304")
    a("s_add_u32 s80, s12, 0x%x" % KF)
    a("s_add_u32 s81, s12, 0x%x" % VF)
    a("s_lshl_b32 s82, s4, 2")
    a("s_add_u32 s82, s82, s23")
    a("s_lshl_b32 s82, s82, 13")
    a("s_add_u32 s82, s82, s12")
    a("s_add_u32 s83, s82, 4096")
    a.label("attn_tile")
    a("s_lshl_b32 s14, s5, 2")
    a("s_add_u32 s14, s14, s23")
    a("s_mov_b32 s30, s14")
    a("s_lshl_b32 s79, s5, 1")
    a("s_add_u32 s79, s79, 2")
    a("s_mov_b32 s33, s32")
    a("v_add_u32 v%d, s32, v%d" % (V_RDV, V_LG))
    a("v_add_u32 v%d, s32, v%d" % (V_RDK, V_LG))
    a("v_mov_b32 v%d, 0" % V_M)
    a("s_mov_b32 s%d, 0xbf800000" % S_THR)
    a("s_mov_b32 s%d, 0xff7fffff" % S_LB)
    for i in range(16):
        a("v_mov_b32 v%d, 0" % (V_C + i))
    a("v_mov_b32 v%d, 0" % V_L)
    for i in range(64):
        a("v_mov_b32 v%d, 0" % (V_O + i))
    a("s_lshl_b32 s19, s5, 1")
    a("s_mov_b32 s18, 0")
    a("s_waitcnt vmcnt(%d)" % (12 if "aps" in EXP else 8))
    a("s_cmp_eq_u32 s24, 0")
    a("s_cbranch_scc1 attn_w2")
    a("s_waitcnt vmcnt(%d)" % (12 if SENT else 4))
    a.label("attn_w2")
    a("s_barrier")
    if "df" in EXP:
        a("global_load_dword v254, v255, s[86:87] sc1")
    if not MST:
        tstamp(0)
    for x in kread_ops():
        a(x)
    a("s_cmp_eq_u32 s24, 0")
    a("s_cbranch_scc1 attn_w3")
    a("s_mov_b32 s78, 2")
    dma()
    dma()
    a.label("attn_w3")
    a("s_waitcnt lgkmcnt(0)")
    for x in qk_ops(0):
        a(x)
    if "aps" in EXP:
        a("s_cmp_lg_u32 s24, 0")
        a("s_cbranch_scc1 attn_w4")
        a("s_waitcnt vmcnt(8)")
        a("s_barrier")
        a.label("attn_w4")
    for x in kread_ops():
        a(x)
    if "noinit" not in EXP:
        a.nop(8)
        S, T = V_S, V_T
        a("s_cmp_lg_u32 s5, 0")
        a("s_cbranch_scc1 attn_im_nomask")
        mask("attn_im", S)
        for x in max_ops(S, T, T + 1):
            a(x)
        a("s_nop 1")
        a("v_permlane32_swap_b32 v%d, v%d" % (T, T + 1))
        a("s_nop 0")
        a("v_max_f32 v%d, v%d, v%d" % (T, T, T + 1))
        a("s_mov_b32 s%d, 0x53800000" % S_THR)
        a("s_mov_b32 s%d, 0" % S_LB)
        a("v_mov_b32 v%d, v%d" % (V_M, T))
        for r in range(16):
            a("v_sub_f32 v%d, v%d, v%d" % (S + r, S + r, T))
        for r in range(16):
            a("v_sub_f32 v%d, 0, v%d" % (V_C + r, T))
    a("s_cmp_eq_u32 s22, 1")
    a("s_cbranch_scc1 attn_g1")
    a("s_cmp_eq_u32 s5, 0")
    a("s_cbranch_scc1 attn_diag0")
    a.label("attn_loop0")
    a.inloop = "og" not in EXP
    for sp in range(2):
        bar()
        a("s_waitcnt lgkmcnt(0)")
        phaseA(sp, False)
        phaseC()
    a.inloop = False
    a("s_cmp_lt_u32 s18, s19")
    a("s_cbranch_scc1 attn_loop0")
    a.label("attn_diag0")
    if not MST:
        tstamp(1)
    for sp in range(2):
        bar()
        a("s_waitcnt lgkmcnt(0)")
        phaseA(sp, True, sp == 1)
        phaseC("q%d" % sp)
    tstamp(2)
    a("s_branch attn_merge")
    a.label("attn_g1")
    bar()
    a("s_waitcnt lgkmcnt(0)")
    a("s_cmp_eq_u32 s5, 0")
    a("s_cbranch_scc1 attn_diag1a")
    dma()
    phaseA(0, False)
    a.label("attn_loop1")
    a.inloop = "og" not in EXP
    bar()
    phaseC()
    a("s_waitcnt lgkmcnt(0)")
    phaseA(1, False)
    a.inloop = False
    a("s_cmp_ge_u32 s18, s19")
    a("s_cbranch_scc1 attn_diag1")
    a.inloop = "og" not in EXP
    bar()
    phaseC()
    a("s_waitcnt lgkmcnt(0)")
    phaseA(0, False)
    a.inloop = False
    a("s_branch attn_loop1")
    a.label("attn_diag1")
    bar()
    phaseC("k")
    a("s_waitcnt lgkmcnt(0)")
    a.label("attn_diag1a")
    phaseA(0, True)
    bar()
    phaseC("q0")
    phaseA(1, True, True)
    phaseC("q1")
    a.label("attn_merge")

    def slot(wreg, vdst):
        a("s_mul_i32 s29, s%d, 11" % wreg)
        a("s_lshr_b32 s29, s29, 5")
        a("s_mul_i32 s84, s29, 3")
        a("s_sub_u32 s84, s%d, s84" % wreg)
        a("s_lshl_b32 s29, s29, 15")
        a("s_add_u32 s29, s29, s28")
        a("s_sub_u32 s85, s29, %d" % LDSZ)
        a("s_cmp_ge_u32 s29, %d" % LDSZ)
        a("s_cselect_b32 s29, s85, s29")
        a("s_mul_i32 s84, s84, 9216")
        a("s_add_u32 s29, s29, s84")
        a("v_add_u32 v%d, s29, v%d" % (vdst, V_LDS))
    slot(6, 12)
    a("s_xor_b32 s31, s6, 4")
    slot(31, 13)
    a("s_waitcnt lgkmcnt(0)")
    a("s_barrier")
    if MST:
        tstamp(0)
    a.nop(4)
    for g in range(2):
        if g == 0:
            a("s_cmp_eq_u32 s22, 1")
            a("s_cbranch_scc1 attn_mg1")
        else:
            a.label("attn_mg1")
        keep, send = V_O + 32 * g, V_O + 32 * (1 - g)
        for i in range(8):
            a("ds_write_b128 v12, %s offset:%d" % (vr(send + 4 * i, 4), i * 1024))
        a("ds_write_b64 v12, v[%d:%d] offset:8192" % (V_M, V_L))
        a("s_waitcnt lgkmcnt(0)")
        a("s_barrier")
        if MST and g == 0:
            tstamp(1)
        a("ds_read_b64 v[14:15], v13 offset:8192")
        for i in range(8):
            a("ds_read_b128 %s, v13 offset:%d" % (vr(V_K + 4 * i, 4), i * 1024))
        a("s_waitcnt lgkmcnt(8)")
        a("v_max_f32 v10, v%d, v14" % V_M)
        a("v_sub_f32 v11, v%d, v10" % V_M)
        a("v_sub_f32 v10, v14, v10")
        a("v_exp_f32 v11, v11")
        a("v_exp_f32 v10, v10")
        a.nop(1)
        a("v_mul_f32 v%d, v%d, v11" % (V_L, V_L))
        a("v_fma_f32 v%d, v15, v10, v%d" % (V_L, V_L))
        a("v_mov_b32 v14, v%d" % V_L)
        a.nop(2)
        a("v_permlane32_swap_b32 v%d, v14" % V_L)
        a.nop(1)
        a("v_add_f32 v14, v14, v%d" % V_L)
        a("v_rcp_f32 v14, v14")
        a.nop(1)
        a("v_mul_f32 v11, v11, v14")
        a("v_mul_f32 v10, v10, v14")
        a("s_mul_i32 s20, s14, %d" % AF_BLK)
        a("s_lshl_b32 s21, s3, 13")
        a("s_add_u32 s20, s20, s21")
        a("s_add_u32 s20, s20, 0x%x" % (AF + 4096 * g))
        a("s_waitcnt lgkmcnt(0)")
        for i in range(32):
            a("v_mul_f32 v%d, v%d, v10" % (V_K + i, V_K + i))
            a("v_fma_f32 v%d, v%d, v11, v%d" % (V_K + i, keep + i, V_K + i))
        for k in range(4):
            d = V_V + k * 4
            for p in range(4):
                x0 = V_K + 8 * k + 2 * p
                a("v_cvt_pk_bf16_f32 v%d, v%d, v%d" % (d + p, x0, x0 + 1))
            a("buffer_store_dwordx4 %s, v%d, s[8:11], s20 offen offset:%d sc1" % (vr(d, 4), V_LDS, k * 1024))
        if g == 0:
            a("s_branch attn_mgdone")
    a.label("attn_mgdone")
    if SENT:
        a("s_cmp_eq_u32 s24, 1")
        a("s_cbranch_scc1 attn_noclr")
        a("s_lshl_b32 s20, s2, 16")
        a("s_lshl_b32 s21, s6, 13")
        a("s_add_u32 s20, s20, s21")
        a("s_add_u32 s20, s20, 0x%x" % PART)
        a("s_add_u32 s21, s20, 4096")
        for k in range(4):
            a("v_mov_b32 v%d, -1" % (V_K + k))
        for k in range(8):
            a("buffer_store_dwordx4 %s, v%d, s[8:11], s%d offen offset:%d sc1" % (vr(V_K, 4), V_LDS, 20 if k < 4 else 21, (k & 3) * 1024))
        a.label("attn_noclr")
    tstamp(3)
    a.nst = 10
    a("s_cmp_eq_u32 s24, 1")
    a("s_cbranch_scc1 attn_fin")
    a("s_mov_b32 s24, 1")
    a("s_mov_b32 s5, s4")
    for r in (80, 81, 82, 83):
        a("s_mov_b32 s%d, 0x10000000" % r)
    a("s_branch attn_tile")
    a.label("attn_fin")
    a.stamp_flush(0)
    a.label("attn_end")
    a("s_branch attn_after")
    for blk in rare:
        a.label(blk[0][:-1])
        for x in blk[1:]:
            a(x)
    a.label("attn_after")
    a.ostamp()
    if "ov" in EXP:
        a("s_waitcnt vmcnt(4) lgkmcnt(0)")
    else:
        a("s_waitcnt vmcnt(0) lgkmcnt(0)")
    if "df" in EXP:
        a("s_mov_b32 s88, 0")
        a.label("df_chk")
        a("v_readfirstlane_b32 s89, v254")
        a("s_cmp_ge_u32 s89, 16")
        a("s_cbranch_scc1 df_ok")
        a("s_add_u32 s88, s88, 1")
        a("s_cmp_gt_u32 s88, 40000")
        a("s_cbranch_scc1 df_ok")
        a("s_sleep 8")
        a("global_load_dword v254, v255, s[86:87] sc1")
        a("s_waitcnt vmcnt(0)")
        a("s_branch df_chk")
        a.label("df_ok")
    a("s_barrier")
    a.phase = 2


def gen_ogemm(a):
    V_AL = 2
    V_TR = 4
    V_DA = 8
    V_DB = 9
    V_ST = 11
    V_F = 16
    V_ACC = 48
    NST = 23
    a.label("ogemm_kernel")
    a.stamp()
    a("s_load_dwordx2 s[8:9], s[0:1], 104")
    a("s_load_dwordx2 s[24:25], s[0:1], 40")
    a("s_load_dwordx2 s[26:27], s[0:1], 72")
    a("v_lshrrev_b32 v1, 6, v0")
    a("s_nop 0")
    a("v_readfirstlane_b32 s6, v1")
    a("v_and_b32 v1, 63, v0")
    a("s_lshr_b32 s3, s2, 4")
    a("s_and_b32 s4, s2, 1")
    a("s_lshl_b32 s4, s4, 1")
    a("s_bfe_u32 s5, s2, 0x10003")
    a("s_or_b32 s4, s4, s5")
    a("s_bfe_u32 s5, s2, 0x20001")
    if "same" in EXP:
        a("s_mov_b32 s3, 0")
        a("s_mov_b32 s4, 0")
        a("s_mov_b32 s5, 0")
    if "map1" not in EXP:
        a("s_and_b32 s3, s2, 1")
        a("s_lshl_b32 s3, s3, 3")
        a("s_bfe_u32 s4, s2, 0x30003")
        a("s_or_b32 s3, s3, s4")
        a("s_lshr_b32 s4, s2, 6")
    a("s_mov_b32 s10, 0x10000000")
    a("s_mov_b32 s11, 0x20000")
    a("s_mov_b32 s15, 0x20000")
    a("s_lshr_b32 s30, s6, 2")
    a("s_lshr_b32 s31, s6, 1")
    a("s_and_b32 s31, s31, 1")
    a("s_and_b32 s32, s6, 1")
    a("v_lshlrev_b32 v%d, 4, v1" % V_ST)
    a("s_lshl_b32 s33, s31, 13")
    a("s_lshl_b32 s34, s30, 11")
    a("s_add_u32 s33, s33, s34")
    a("v_add_u32 v%d, s33, v%d" % (V_AL, V_ST))
    a("v_add_u32 v%d, 0x10000, v%d" % (V_AL + 1, V_AL))
    a("v_bfe_u32 v12, v1, 2, 2")
    a("v_lshrrev_b32 v13, 5, v1")
    a("v_lshl_add_u32 v13, v13, 2, v12")
    a("v_lshlrev_b32 v13, 8, v13")
    a("v_bfe_u32 v14, v1, 4, 1")
    a("v_lshl_add_u32 v13, v14, 5, v13")
    a("v_and_b32 v14, 3, v1")
    a("v_lshl_add_u32 v13, v14, 3, v13")
    a("s_lshl_b32 s33, s30, 13")
    a("s_add_u32 s33, s33, 16384")
    a("v_add_u32 v13, s33, v13")
    a("v_lshlrev_b32 v12, 6, v12")
    a("s_lshl_b32 s34, s32, 7")
    for ntl in range(2):
        a("s_add_u32 s35, s34, %d" % (ntl << 6))
        a("v_xor_b32 v14, s35, v12")
        a("v_add_u32 v%d, v13, v14" % (V_TR + ntl))
        a("v_add_u32 v%d, 0x10000, v%d" % (V_TR + 2 + ntl, V_TR + ntl))
    a("s_lshr_b32 s33, s6, 1")
    a("s_lshl_b32 s34, s3, 2")
    a("s_add_u32 s34, s34, s33")
    a("s_mul_i32 s34, s34, %d" % AF_BLK)
    a("s_lshl_b32 s35, s32, 11")
    a("s_add_u32 s34, s34, s35")
    a("s_add_u32 s34, s34, 0x%x" % AF)
    a("v_add_u32 v%d, s34, v%d" % (V_DA, V_ST))
    a("s_lshl_b32 s36, s6, 11")
    a("v_lshrrev_b32 v12, 4, v1")
    a("v_bfe_u32 v13, v1, 2, 2")
    a("v_xor_b32 v13, v13, v12")
    a("v_lshlrev_b32 v13, 6, v13")
    a("v_and_b32 v14, 3, v1")
    a("v_lshl_add_u32 v13, v14, 4, v13")
    a("s_lshl_b32 s33, s6, 3")
    a("v_add_u32 v12, s33, v12")
    a("v_lshlrev_b32 v12, 10, v12")
    a("v_add_u32 v12, v12, v13")
    a("s_lshl_b32 s33, s4, 8")
    a("v_add_u32 v%d, s33, v12" % V_DB)
    a("v_add_u32 v%d, 3072, v%d" % (V_DB + 1, V_DB))
    a("s_mov_b32 s42, 0x1c0000")
    a("s_mul_i32 s37, s5, 7")
    a("s_add_u32 s37, s37, 64")
    a("s_lshl_b32 s44, s5, 4")
    a("s_mov_b32 s43, 0")
    a("s_waitcnt lgkmcnt(0)")

    def dma_parts(buf):
        p0 = ["s_cmp_lt_u32 s37, 64",
              "s_cselect_b32 s12, s24, s26",
              "s_cselect_b32 s13, s25, s27",
              "s_cselect_b32 s14, 0x400000, s42",
              "s_cselect_b32 s39, 0, 64",
              "s_sub_u32 s39, s37, s39",
              "s_lshl_b32 s39, s39, 16",
              "s_lshl_b32 s40, s37, 12",
              "s_cmp_lt_u32 s43, %d" % NST,
              "s_cselect_b32 s14, s14, 0",
              "s_cselect_b32 s40, s40, 0x10000000",
              "s_add_u32 s37, s37, 1",
              "s_add_u32 s43, s43, 1",
              "s_cmp_eq_u32 s43, 7",
              "s_cselect_b32 s37, s44, s37",
              "s_add_u32 m0, s36, %d" % (buf * 32768),
              "s_nop 0",
              "buffer_load_dwordx4 v%d, s[8:11], s40 offen offset:0 lds" % V_DA]
        p1 = ["buffer_load_dwordx4 v%d, s[8:11], s40 offen offset:1024 lds" % V_DA]
        p2 = ["s_add_u32 m0, s36, %d" % (buf * 32768 + 16384),
              "s_nop 0",
              "buffer_load_dwordx4 v%d, s[12:15], s39 offen offset:0 lds" % V_DB]
        p3 = ["buffer_load_dwordx4 v%d, s[12:15], s39 offen offset:1024 lds" % (V_DB + 1)]
        return [p0, p1, p2, p3]

    def dma(buf):
        for p in dma_parts(buf):
            for x in p:
                a(x)

    def reads(buf, sl, st):
        hi = 1 if buf >= 2 else 0
        bo = (buf & 1) * 32768
        f = V_F + st * 16
        for mbl in range(2):
            a("ds_read_b128 %s, v%d offset:%d" % (vr(f + 4 * mbl, 4), V_AL + hi, bo + mbl * 4096 + sl * 1024))
        for ntl in range(2):
            for ird in range(2):
                a("ds_read_b64_tr_b16 %s, v%d offset:%d" % (
                    vr(f + 8 + 4 * ntl + 2 * ird, 2), V_TR + 2 * hi + ntl, bo + sl * 4096 + ird * 2048))

    def mfmas(st, first, ins=None):
        f = V_F + st * 16
        for mbl in range(2):
            for ntl in range(2):
                acc = vr(V_ACC + 16 * (mbl * 2 + ntl), 16)
                c = "0" if first else acc
                a("v_mfma_f32_32x32x16_bf16 %s, %s, %s, %s" % (acc, vr(f + 8 + 4 * ntl, 4), vr(f + 4 * mbl, 4), c))
                for x in (ins or {}).get(mbl * 2 + ntl, []):
                    a(x)

    dma(0)
    dma(1)
    dma(2)
    for i in range(64):
        a("v_mov_b32 v%d, 0" % (V_ACC + i))
    def owg():
        a("s_lshl_b32 s49, s3, 2")
        a("s_add_u32 s49, s49, s4")
        a("s_lshl_b32 s45, s49, 4")
        a("s_lshl_b32 s46, s5, 2")
        a("s_add_u32 s45, s45, s46")

    if "xh" in EXP:
        owg()
        reduce_pre(a, 1)
        a("s_waitcnt lgkmcnt(0)")
    if "ov" in EXP:
        a("s_waitcnt vmcnt(12)")
        a("s_barrier")
    a("s_cmp_lg_u32 s6, 0")
    a("s_cbranch_scc1 ogemm_nosig")
    a.gb_signal(1, "ov" in EXP)
    a.label("ogemm_nosig")
    a("s_mov_b32 s41, 0")
    a("s_waitcnt vmcnt(8)")
    a("s_barrier")
    a.stamp()
    if OIL:
        pass
    else:
        reads(0, 0, 0)

    def rd_ops(buf, sl, st):
        hi = 1 if buf >= 2 else 0
        bo = (buf & 1) * 32768
        f = V_F + st * 16
        A = ["ds_read_b128 %s, v%d offset:%d" % (vr(f + 4 * mbl, 4), V_AL + hi, bo + mbl * 4096 + sl * 1024) for mbl in range(2)]
        B = [["ds_read_b64_tr_b16 %s, v%d offset:%d" % (
            vr(f + 8 + 4 * ntl + 2 * ird, 2), V_TR + 2 * hi + ntl, bo + sl * 4096 + ird * 2048) for ird in range(2)] for ntl in range(2)]
        return [[A[0]] + B[0], B[1], [A[1]], []]

    def body_il(buf, hook, check):
        a("s_waitcnt vmcnt(4)")
        a("s_barrier")
        P = dma_parts((buf + 3) & 3)
        W = ["s_waitcnt lgkmcnt(4)", "s_waitcnt lgkmcnt(5)"]
        R = rd_ops(buf, 1, 1)
        D = [[], [], [], []] if hook else [P[0], [], P[1], []]
        a("s_waitcnt lgkmcnt(3)")
        mfmas(0, False, {0: R[0] + D[0] + W[0:1], 1: R[1] + W[1:2], 2: R[2] + D[2]})
        if hook:
            hook()
        R = rd_ops((buf + 1) & 3, 0, 0)
        D = P if hook else [P[2], [], P[3], []]
        a("s_waitcnt lgkmcnt(3)")
        mfmas(1, False, {0: R[0] + D[0] + W[0:1], 1: R[1] + D[1] + W[1:2], 2: R[2] + D[2], 3: D[3]})
        a("s_add_u32 s41, s41, 1")
        if check:
            a("s_cmp_ge_u32 s41, %d" % NST)
            a("s_cbranch_scc1 ogemm_done")

    def body(buf, hook=None, check=True):
        if OIL:
            return body_il(buf, hook, check)
        a("s_waitcnt vmcnt(4)")
        a("s_barrier")
        reads(buf, 1, 1)
        a("s_waitcnt lgkmcnt(6)")
        OSP = os.environ.get("OSP", "")
        P = dma_parts((buf + 3) & 3)
        if OSP == "a" and not hook:
            mfmas(0, False, {0: P[0], 2: P[1]})
            reads((buf + 1) & 3, 0, 0)
            a("s_waitcnt lgkmcnt(6)")
            mfmas(1, False, {0: P[2], 2: P[3]})
        elif OSP == "d" and not hook:
            mfmas(0, False, {1: P[0], 3: P[1]})
            reads((buf + 1) & 3, 0, 0)
            a("s_waitcnt lgkmcnt(6)")
            mfmas(1, False, {1: P[2], 3: P[3]})
        elif OSP == "b" and not hook:
            mfmas(0, False, {0: P[0], 1: P[1], 2: P[2], 3: P[3]})
            reads((buf + 1) & 3, 0, 0)
            a("s_waitcnt lgkmcnt(6)")
            mfmas(1, False)
        elif OSP:
            mfmas(0, False)
            reads((buf + 1) & 3, 0, 0)
            if hook:
                hook()
            a("s_waitcnt lgkmcnt(6)")
            mfmas(1, False, {0: P[0], 1: P[1], 2: P[2], 3: P[3]})
        else:
            mfmas(0, False)
            reads((buf + 1) & 3, 0, 0)
            if hook:
                hook()
            dma((buf + 3) & 3)
            a("s_waitcnt lgkmcnt(6)")
            mfmas(1, False)
        a("s_add_u32 s41, s41, 1")
        if check:
            a("s_cmp_ge_u32 s41, %d" % NST)
            a("s_cbranch_scc1 ogemm_done")

    def pollhook():
        if "xh" in EXP:
            reduce_pre(a, 2)
        a("s_cmp_lg_u32 s6, 0")
        a("s_cbranch_scc1 ogemm_nopoll")
        a.gb_poll(1)
        a.label("ogemm_nopoll")
        a("s_barrier")
        a.stamp()

    if OIL:
        for x in sum(rd_ops(0, 0, 0), []):
            a(x)

    def sighook():
        a("s_cmp_lg_u32 s6, 0")
        a("s_cbranch_scc1 ogemm_nosig2")
        a.gb_signal2(1)
        a.label("ogemm_nosig2")

    for it in range(8):
        body(it & 3, pollhook if it == 4 else (sighook if it == 1 and "ov" in EXP else None), False)
    a.label("ogemm_loop")
    a.inloop = "og" in EXP
    for buf in range(4):
        body(buf)
    a("s_branch ogemm_loop")
    a.inloop = False
    a.label("ogemm_done")
    a.ostamp()
    a.stamp()
    a("s_waitcnt vmcnt(0) lgkmcnt(0)")
    a("s_barrier")
    a.nop(12)
    a("s_and_b32 s33, s6, 3")
    a("s_lshl_b32 s33, s33, 14")
    a("s_lshl_b32 s34, s6, 13")
    a("v_add_u32 v12, s34, v%d" % V_ST)
    a("s_xor_b32 s34, s34, 0x8000")
    a("v_add_u32 v13, s34, v%d" % V_ST)
    a("s_lshl_b32 s34, s3, 2")
    a("s_add_u32 s34, s34, s4")
    a("s_lshl_b32 s34, s34, 16")
    a("s_add_u32 s34, s34, s33")
    a("s_lshl_b32 s35, s5, 22")
    a("s_add_u32 s34, s34, s35")
    a("s_add_u32 s34, s34, 0x%x" % PART)
    a("s_cmp_eq_u32 s30, 0")
    a("s_cbranch_scc1 ogemm_g0")
    for g in (1, 0):
        if g == 0:
            a.label("ogemm_g0")
        keep, send = V_ACC + 32 * g, V_ACC + 32 * (1 - g)
        for i in range(8):
            a("ds_write_b128 v12, %s offset:%d" % (vr(send + 4 * i, 4), i * 1024))
        a("s_waitcnt lgkmcnt(0)")
        a("s_barrier")
        for i in range(8):
            a("ds_read_b128 %s, v13 offset:%d" % (vr(112 + 4 * i, 4), i * 1024))
        a("s_add_u32 s34, s34, %d" % (8192 * g))
        for i in range(8):
            a("s_waitcnt lgkmcnt(%d)" % (7 - i))
            for k in range(4):
                a("v_add_f32 v%d, v%d, v%d" % (keep + 4 * i + k, keep + 4 * i + k, 112 + 4 * i + k))
            if i == 4:
                a("s_add_u32 s34, s34, 4096")
            a("buffer_store_dwordx4 %s, v%d, s[8:11], s34 offen offset:%d sc1" % (vr(keep + 4 * i, 4), V_ST, (i & 3) * 1024))
        if g == 1:
            a("s_branch ogemm_end")
    a.stamp()
    a.stamp_flush(0)
    a.label("ogemm_end")
    if "xh" not in EXP:
        owg()
        reduce_pre(a)
    if SENT:
        a.phase = 3
        return
    a("s_waitcnt vmcnt(0) lgkmcnt(0)")
    a("s_barrier")
    a("s_cmp_lg_u32 s6, 0")
    a("s_cbranch_scc1 tb_wait")
    a("s_add_u32 s46, s49, 32")
    a("s_lshl_b32 s46, s46, 12")
    a("s_add_u32 s46, s46, 0x%x" % CTR)
    a("s_mov_b64 exec, 1")
    a("v_mov_b32 v12, 1")
    a("v_mov_b32 v13, 0")
    a("buffer_atomic_add v12, v13, s[8:11], s46 offen sc1")
    a("s_mov_b32 s47, 0")
    a.label("tb_loop")
    a("buffer_load_dword v14, v13, s[8:11], s46 offen sc1")
    a("s_waitcnt vmcnt(0)")
    a("v_readfirstlane_b32 s48, v14")
    a("s_cmp_ge_u32 s48, 4")
    a("s_cbranch_scc1 tb_done")
    a("s_add_u32 s47, s47, 1")
    a("s_cmp_gt_u32 s47, 40000")
    a("s_cbranch_scc1 tb_done")
    a("s_sleep 4")
    a("s_branch tb_loop")
    a.label("tb_done")
    a("s_mov_b64 exec, -1")
    a.label("tb_wait")
    a("s_barrier")
    a.phase = 3


RB = 176


def reduce_pre(a, part=None):
    if part == 2:
        for j in range(2):
            B = RB + 4 + 32 * j
            a("buffer_load_dwordx2 %s, v%d, s[52:55], 0 offen" % (vr(B + 16, 2), B + 26))
            a("buffer_load_dwordx2 %s, v%d, s[56:59], 0 offen" % (vr(B + 18, 2), B + 27))
        if "tw" in EXP:
            a("buffer_load_dword v254, v%d, s[60:63], 0 offen" % (RB + 4 + 26))
            a("s_lshl_b32 s46, s49, 16")
            a("s_lshl_b32 s47, s5, 22")
            a("s_add_u32 s46, s46, s47")
            a("s_add_u32 s46, s46, 0x%x" % PART)
            a("buffer_load_dword v254, v11, s[8:11], s46 offen")
        return
    a("s_load_dwordx2 s[52:53], s[0:1], 0")
    a("s_load_dwordx2 s[56:57], s[0:1], 80")
    a("s_load_dwordx2 s[60:61], s[0:1], 88")
    a("s_mov_b32 s54, 0x200000")
    a("s_mov_b32 s55, 0x20000")
    a("s_mov_b32 s58, 1024")
    a("s_mov_b32 s59, 0x20000")
    a("s_mov_b32 s62, 0x200000")
    a("s_mov_b32 s63, 0x20000")
    T = RB + 70
    a("s_lshr_b32 s23, s6, 2")
    a("v_and_b32 v%d, 255, v0" % T)
    a("s_add_u32 s50, s45, s23")
    a("v_lshlrev_b32 v%d, 4, v%d" % (RB + 1, T))
    if not part:
        a("s_waitcnt lgkmcnt(0)")
    for j in range(2):
        B = RB + 4 + 32 * j
        v2, v3 = RB + 2, B + 27
        a("s_add_u32 s51, s50, %d" % (2 * j))
        a("s_lshr_b32 s64, s51, 4")
        a("s_lshr_b32 s65, s51, 2")
        a("s_and_b32 s65, s65, 3")
        a("s_and_b32 s66, s51, 3")
        a("s_lshr_b32 s16, s64, 2")
        a("s_and_b32 s17, s64, 3")
        a("s_lshr_b32 s18, s65, 1")
        a("s_and_b32 s19, s65, 1")
        a("s_lshr_b32 s28, s66, 1")
        a("s_and_b32 s29, s66, 1")
        a("s_lshl_b32 s20, s16, 2")
        a("s_lshl_b32 s21, s18, 1")
        a("s_add_u32 s20, s20, s21")
        a("s_add_u32 s20, s20, s28")
        a("s_lshl_b32 s20, s20, 15")
        a("s_lshl_b32 s21, s17, 2")
        a("s_lshl_b32 s22, s19, 1")
        a("s_add_u32 s21, s21, s22")
        a("s_add_u32 s21, s21, s29")
        a("s_lshl_b32 s21, s21, 6")
        a("v_and_b32 v%d, 31, v%d" % (v2, T))
        a("v_lshlrev_b32 v%d, 10, v%d" % (v2, v2))
        a("v_lshrrev_b32 v%d, 6, v%d" % (v3, T))
        a("v_lshlrev_b32 v%d, 4, v%d" % (v3, v3))
        a("v_bfe_u32 v%d, v%d, 5, 1" % (B + 16, T))
        a("v_lshl_add_u32 v%d, v%d, 3, v%d" % (v3, B + 16, v3))
        a("v_add_u32 v%d, s21, v%d" % (v3, v3))
        a("v_add_u32 v%d, v%d, v%d" % (v2, v2, v3))
        a("v_add_u32 v%d, s20, v%d" % (B + 26, v2))
        if not part:
            a("buffer_load_dwordx2 %s, v%d, s[52:55], 0 offen" % (vr(B + 16, 2), B + 26))
            a("buffer_load_dwordx2 %s, v%d, s[56:59], 0 offen" % (vr(B + 18, 2), v3))


def gen_reduce(a):
    a.label("reduce_kernel")
    a.ostamp()
    a.stamp()
    if SENT:
        a("s_mov_b32 s47, 0")
        a.label("red_poll")
    for j in range(2):
        B = RB + 4 + 32 * j
        a("s_lshl_b32 s51, s50, 12")
        a("s_add_u32 s51, s51, 0x%x" % (PART + j * 8192))
        for p in range(4):
            a("buffer_load_dwordx4 %s, v%d, s[8:11], s51 offen%s" % (vr(B + 4 * p, 4), RB + 1, " sc1" if SENT else ""))
            if p < 3:
                a("s_add_u32 s51, s51, 0x400000")
    if SENT:
        for j in range(2):
            B = RB + 4 + 32 * j
            a("s_waitcnt vmcnt(%d)" % (4 - 4 * j))
            a("v_max3_u32 v%d, v%d, v%d, v%d" % (248 + j, B, B + 1, B + 2))
            for i in range(6):
                a("v_max3_u32 v%d, v%d, v%d, v%d" % (248 + j, 248 + j, B + 3 + 2 * i, B + 4 + 2 * i))
            a("v_max_u32 v%d, v%d, v%d" % (248 + j, 248 + j, B + 15))
        a("v_max_u32 v248, v248, v249")
        a("v_cmp_eq_u32 vcc, -1, v248")
        a("s_nop 1")
        a("s_cbranch_vccz red_ok")
        a("s_add_u32 s47, s47, 1")
        a("s_cmp_gt_u32 s47, 20000")
        a("s_cbranch_scc1 red_ok")
        a("s_sleep %s" % os.environ.get("RSL", "4"))
        a("s_branch red_poll")
        a.label("red_ok")
    for j in range(2):
        B = RB + 4 + 32 * j
        for p in range(2):
            a("v_lshlrev_b32 v%d, 16, v%d" % (B + 20, B + 16 + p))
            a("v_and_b32 v%d, 0xffff0000, v%d" % (B + 21, B + 16 + p))
            a("v_lshlrev_b32 v%d, 16, v%d" % (B + 22, B + 18 + p))
            a("v_and_b32 v%d, 0xffff0000, v%d" % (B + 23, B + 18 + p))
            a("v_add_f32 v%d, v%d, v%d" % (B + 28 + 2 * p, B + 20, B + 22))
            a("v_add_f32 v%d, v%d, v%d" % (B + 29 + 2 * p, B + 21, B + 23))
    for j in range(2):
        B = RB + 4 + 32 * j
        a("s_waitcnt vmcnt(%d)" % (4 - 4 * j))
        for i in range(4):
            a("v_add_f32 v%d, v%d, v%d" % (B + i, B + i, B + 4 + i))
            a("v_add_f32 v%d, v%d, v%d" % (B + 8 + i, B + 8 + i, B + 12 + i))
        for i in range(4):
            a("v_add_f32 v%d, v%d, v%d" % (B + i, B + i, B + 8 + i))
        for i in range(4):
            a("v_add_f32 v%d, v%d, v%d" % (B + i, B + i, B + 28 + i))
        for p in range(2):
            a("v_cvt_pk_bf16_f32 v%d, v%d, v%d" % (B + 24 + p, B + 2 * p, B + 1 + 2 * p))
        a("buffer_store_dwordx2 %s, v%d, s[60:63], 0 offen" % (vr(B + 24, 2), B + 26))
    a.stamp()
    a.stamp_flush(0)
    if os.environ.get("STAMP"):
        a("s_waitcnt vmcnt(0)")
        a("s_memrealtime s[18:19]")
        a("s_load_dwordx2 s[8:9], s[0:1], 96")
        a("s_mov_b32 s10, 65536")
        a("s_mov_b32 s11, 0x20000")
        a("s_lshl_b32 s20, s2, 4")
        a("s_add_u32 s20, s20, %d" % (4096 + 4096 * 3))
        a("s_waitcnt lgkmcnt(0)")
        a("s_mov_b64 exec, 1")
        a("v_mov_b32 v4, s18")
        a("v_mov_b32 v5, s93")
        a("v_mov_b32 v6, s18")
        a("v_mov_b32 v7, s92")
        a("v_mov_b32 v2, 0")
        a("buffer_store_dwordx4 v[4:7], v2, s[8:11], s20 offen")
    if os.environ.get("OST"):
        a("s_waitcnt vmcnt(0)")
    a.ostamp(True)
    a("s_endpgm")
```

```python
import sys

NAME = "parallel_sum__compressed_kv_cla__dense_activation_squared_relu__prompt"

MB = 1 << 20
QF = 0
KF = 16 * MB
VF = 32 * MB
AF = 49 * MB
AF_BLK = 368 * 1024
PART = 80 * MB
CTR = 100 * MB
import math, struct
QSC = struct.unpack("<I", struct.pack("<f", (128 ** -0.5) * math.log2(math.e)))[0]


import os
STAMP = os.environ.get("STAMP")
EARLY = "early" in os.environ.get("EXP", "")


class Asm:
    def __init__(self):
        self.lines = []
        self.nst = 0

    def stamp(self):
        if not STAMP:
            return
        self("s_memtime s[98:99]")
        self("s_waitcnt lgkmcnt(0)")
        self("s_mov_b32 s%d, s98" % (68 + self.nst))
        self.nst += 1

    def stamp_flush(self, wgsel, dbgptr_off=96):
        if not STAMP:
            return
        L = "stf_%d" % len(self.lines)
        self("s_cmp_lg_u32 s2, %d" % wgsel)
        self("s_cbranch_scc1 %s" % L)
        self("s_load_dwordx2 s[96:97], s[0:1], %d" % dbgptr_off)
        self("s_waitcnt lgkmcnt(0)")
        self("s_mov_b32 s98, 4096")
        self("s_mov_b32 s99, 0x20000")
        self("v_cmp_eq_u32 vcc, 0, v0")
        self("s_and_saveexec_b64 s[94:95], vcc")
        self("s_cbranch_execz %s" % L)
        for i in range(self.nst):
            self("v_mov_b32 v1, s%d" % (68 + i))
            self("v_mov_b32 v2, %d" % (4 * i + 512 * (self.phase + 1)))
            self("buffer_store_dword v1, v2, s[96:99], 0 offen")
        self.label(L)
        self("s_mov_b64 exec, -1")
        self.nst = 0

    phase = 0
    on = 0

    def code_touch(self, lo, hi, tag, back, n):
        a = self
        lo = "(%s)" % lo
        a("s_getpc_b64 s[88:89]")
        a.label("ct_%s" % tag)
        if back:
            a("s_sub_u32 s88, s88, ct_%s-%s" % (tag, lo))
            a("s_subb_u32 s89, s89, 0")
        else:
            a("s_add_u32 s88, s88, %s-ct_%s" % (lo, tag))
            a("s_addc_u32 s89, s89, 0")
        for k in range(n):
            a("v_lshlrev_b32 v255, 7, v0")
            if k:
                a("v_add_u32 v255, 0x%x, v255" % (k * 65536))
            a("v_min_u32 v255, %s-%s-4, v255" % (hi, lo))
            a("global_load_dword v254, v255, s[88:89]")

    def ostamp(self, last=False):
        OST = os.environ.get("OST")
        if not OST:
            return
        a = self
        a("s_memrealtime s[98:99]")
        a("s_waitcnt lgkmcnt(0)")
        a("s_mov_b32 s%d, s98" % (68 + self.on if self.on else 93))
        self.on += 1
        if last:
            a("s_cmp_lg_u32 s2, %s" % OST)
            a("s_cbranch_scc1 ost_skip")
            a("s_load_dwordx2 s[96:97], s[0:1], 96")
            a("s_mov_b32 s98, 256")
            a("s_mov_b32 s99, 0x20000")
            a("v_cmp_eq_u32 vcc, 0, v0")
            a("s_and_saveexec_b64 s[94:95], vcc")
            a("s_cbranch_execz ost_skip")
            a("s_waitcnt lgkmcnt(0)")
            for i in range(1, self.on):
                a("s_sub_u32 s94, s%d, s93" % (68 + i))
                a("v_mov_b32 v1, s94")
                a("v_mov_b32 v2, %d" % (28 + 4 * i))
                a("buffer_store_dword v1, v2, s[96:99], 0 offen")
            a.label("ost_skip")
            a("s_mov_b64 exec, -1")

    def gb_signal(self, k, split=False):
        a = self
        a("s_load_dwordx2 s[80:81], s[0:1], 96")
        a("s_load_dwordx2 s[84:85], s[0:1], 104")
        a("s_mov_b32 s82, 256")
        a("s_mov_b32 s83, 0x20000")
        a("s_mov_b32 s86, 0x10000000")
        a("s_mov_b32 s87, 0x20000")
        a("s_mov_b64 exec, 1")
        a("v_mov_b32 v12, 1")
        a("v_mov_b32 v13, %d" % (4 * k))
        a("v_mov_b32 v14, 1")
        a("v_mov_b32 v15, 0")
        a("s_and_b32 s88, s2, 15")
        a("s_lshl_b32 s88, s88, 12")
        a("s_add_u32 s88, s88, 0x%x" % (CTR + (k - 1) * 65536))
        a("s_waitcnt lgkmcnt(0)")
        a("buffer_atomic_add v14, v15, s[84:87], s88 offen sc0 sc1")
        if split:
            a("s_mov_b64 exec, -1")
            return
        a("s_waitcnt vmcnt(0)")
        self.gb_signal2(k)

    def gb_signal2(self, k):
        a = self
        a("v_readfirstlane_b32 s89, v14")
        a("s_cmp_lg_u32 s89, 15")
        a("s_cbranch_scc1 gs_nr%d" % k)
        a("s_mov_b64 exec, 1")
        a("buffer_atomic_add v12, v13, s[80:83], 0 offen sc1")
        a.label("gs_nr%d" % k)
        a("s_mov_b64 exec, -1")

    def gb_poll(self, k):
        a = self
        a("s_mov_b64 exec, 1")
        a("v_mov_b32 v13, %d" % (4 * k))
        a("s_mov_b32 s88, 0")
        a.label("gp_loop%d" % k)
        a("buffer_load_dword v14, v13, s[80:83], 0 offen sc1")
        a("s_waitcnt vmcnt(0)")
        a("v_readfirstlane_b32 s89, v14")
        a("s_cmp_ge_u32 s89, 16")
        a("s_cbranch_scc1 gp_done%d" % k)
        a("s_add_u32 s88, s88, 1")
        a("s_cmp_gt_u32 s88, 40000")
        a("s_cbranch_scc1 gp_done%d" % k)
        a("s_sleep %s" % os.environ.get("PSL", "8"))
        a("s_branch gp_loop%d" % k)
        a.label("gp_done%d" % k)
        a("s_mov_b64 exec, -1")

    def eb_pre(self):
        a = self
        if STAMP:
            a("s_memrealtime s[70:71]")
        a("s_load_dwordx2 s[84:85], s[0:1], 96")
        a("s_mov_b32 s86, 256")
        a("s_mov_b32 s87, 0x20000")
        a("v_mov_b32 v248, 0")
        a("v_mov_b32 v249, 1")
        a("v_mov_b32 v250, 8")
        a("s_cmp_ge_u32 s2, 96")
        a("s_cbranch_scc1 eb_noinit")
        a("s_lshl_b32 s88, s2, 12")
        a("s_add_u32 s88, s88, 0x%x" % CTR)
        a("buffer_store_dword v248, v248, s[8:11], s88 offen sc0 sc1")
        a.label("eb_noinit")
        a("s_waitcnt lgkmcnt(0)")
        a("s_cmp_lg_u32 s6, 0")
        a("s_cbranch_scc1 eb_kok")
        a("s_mov_b64 exec, 1")
        a("s_mov_b32 s88, 0")
        a.label("eb_kloop")
        a("buffer_load_dword v251, v250, s[84:87], 0 offen sc1")
        a("s_waitcnt vmcnt(0)")
        a("v_readfirstlane_b32 s89, v251")
        a("s_cmp_ge_u32 s89, 256")
        a("s_cbranch_scc1 eb_kok")
        a("s_add_u32 s88, s88, 1")
        a("s_cmp_gt_u32 s88, 40000")
        a("s_cbranch_scc1 eb_kok")
        a("s_sleep 8")
        a("s_branch eb_kloop")
        a.label("eb_kok")
        a("s_mov_b64 exec, -1")
        a("s_waitcnt vmcnt(0)")
        a("s_barrier")
        if STAMP:
            a("s_memrealtime s[72:73]")
        a("s_cmp_lg_u32 s6, 0")
        a("s_cbranch_scc1 eb_arr")
        a("s_mov_b64 exec, 1")
        a("s_and_b32 s88, s2, 15")
        a("s_lshl_b32 s88, s88, 2")
        a("s_add_u32 s88, s88, 128")
        a("v_mov_b32 v251, 1")
        a("buffer_atomic_add v251, v248, s[84:87], s88 offen sc0 sc1")
        a("s_waitcnt vmcnt(0)")
        a("v_readfirstlane_b32 s89, v251")
        a("s_cmp_lg_u32 s89, 15")
        a("s_cbranch_scc1 eb_arr")
        a("buffer_atomic_add v249, v248, s[84:87], 0 offen sc1")
        a.label("eb_arr")
        a("s_mov_b64 exec, -1")

    def eb_post(self):
        a = self
        a("s_cmp_lg_u32 s6, %s" % os.environ.get("PW", "1"))
        a("s_cbranch_scc1 eb_done")
        a("s_mov_b64 exec, 1")
        a("s_mov_b32 s88, 0")
        a.label("eb_loop")
        a("buffer_load_dword v251, v248, s[84:87], 0 offen sc1")
        a("s_waitcnt vmcnt(0)")
        a("v_readfirstlane_b32 s89, v251")
        a("s_cmp_ge_u32 s89, 16")
        a("s_cbranch_scc1 eb_fin")
        a("s_add_u32 s88, s88, 1")
        a("s_cmp_gt_u32 s88, 40000")
        a("s_cbranch_scc1 eb_fin")
        a("s_sleep %s" % os.environ.get("SLEEP", "8"))
        a("s_branch eb_loop")
        a.label("eb_fin")
        if STAMP:
            a("s_memrealtime s[74:75]")
            a("s_mov_b32 s86, 65536")
            a("s_lshl_b32 s88, s2, 4")
            a("s_add_u32 s88, s88, 4096")
            a("s_waitcnt lgkmcnt(0)")
            a("v_mov_b32 v252, s70")
            a("v_mov_b32 v253, s72")
            a("v_mov_b32 v254, s74")
            a("v_mov_b32 v255, s92")
            a("buffer_store_dwordx4 v[252:255], v248, s[84:87], s88 offen")
        a.label("eb_done")
        a("s_mov_b64 exec, -1")
        a("s_waitcnt vmcnt(0)")
        a("s_barrier")
        a.ostamp()
        self.phase = 1

    def gridbar(self, k):
        a = self
        if STAMP:
            a("s_memrealtime s[14:15]")
        if k == 0:
            a("s_cmp_ge_u32 s2, 96")
            a("s_cbranch_scc1 gb_noinit")
            a("s_load_dwordx2 s[8:9], s[0:1], 104")
            a("s_mov_b32 s10, 0x10000000")
            a("s_mov_b32 s11, 0x20000")
            a("s_lshl_b32 s12, s2, 12")
            a("s_add_u32 s12, s12, 0x%x" % CTR)
            a("v_mov_b32 v1, 0")
            a("v_mov_b32 v2, 0")
            a("s_waitcnt lgkmcnt(0)")
            a("buffer_store_dword v1, v2, s[8:11], s12 offen sc0 sc1")
            a.label("gb_noinit")
        a("s_waitcnt vmcnt(0) lgkmcnt(0)")
        a("s_barrier")
        if STAMP:
            a("s_memrealtime s[16:17]")
        a("v_lshrrev_b32 v1, 6, v0")
        a("s_nop 0")
        a("v_readfirstlane_b32 s6, v1")
        if "ct2" in os.environ.get("EXP", "") and k == 0:
            a("s_cmp_eq_u32 s6, 0")
            a("s_cbranch_scc1 ct2_skip")
            a("s_cmp_gt_u32 s6, 3")
            a("s_cbranch_scc1 gb_wait%d" % k)
            a.code_touch("attn_kernel-8192", "code_end", "b", True, 1)
            a("s_branch gb_wait%d" % k)
            a.label("ct2_skip")
        a("s_cmp_lg_u32 s6, 0")
        a("s_cbranch_scc1 gb_wait%d" % k)
        a("s_load_dwordx2 s[8:9], s[0:1], 96")
        a("s_load_dwordx2 s[24:25], s[0:1], 104")
        a("s_mov_b32 s10, 256")
        a("s_mov_b32 s11, 0x20000")
        a("s_mov_b32 s26, 0x10000000")
        a("s_mov_b32 s27, 0x20000")
        a("s_mov_b64 exec, 1")
        a("v_mov_b32 v1, 1")
        a("v_mov_b32 v2, %d" % (4 * k))
        a("s_waitcnt lgkmcnt(0)")
        tgt = 256
        DF = "df" in os.environ.get("EXP", "") and k == 0
        if DF:
            tgt = 16
            a("s_lshl_b32 s12, s4, 4")
            a("s_add_u32 s12, s12, 8")
            a("v_mov_b32 v3, 1")
            a("v_mov_b32 v4, 0")
            a("buffer_atomic_add v3, v4, s[8:11], s12 offen sc0 sc1")
            a("s_and_b32 s12, s2, 3")
            a("s_lshl_b32 s12, s12, 2")
            a("s_bfe_u32 s13, s2, 0x20003")
            a("s_add_u32 s12, s12, s13")
            a("s_lshl_b32 s12, s12, 4")
            a("s_add_u32 s12, s12, 8")
            a("v_mov_b32 v5, s12")
            a("s_waitcnt vmcnt(0)")
            a("v_readfirstlane_b32 s13, v3")
            a("s_cmp_lg_u32 s13, 15")
            a("s_cbranch_scc1 gb_nr%d" % k)
        elif True:
            tgt = 16
            a("s_and_b32 s12, s2, 15")
            a("v_mov_b32 v3, 1")
            a("v_mov_b32 v4, 0")
            if k > 0:
                a("s_lshl_b32 s12, s12, 12")
                a("s_add_u32 s12, s12, 0x%x" % (CTR + (k - 1) * 65536))
                a("buffer_atomic_add v3, v4, s[24:27], s12 offen sc0 sc1")
            else:
                a("s_lshl_b32 s12, s12, 2")
                a("s_add_u32 s12, s12, 128")
                a("buffer_atomic_add v3, v4, s[8:11], s12 offen sc0 sc1")
            a("s_waitcnt vmcnt(0)")
            a("v_readfirstlane_b32 s13, v3")
            a("s_cmp_lg_u32 s13, 15")
            a("s_cbranch_scc1 gb_nr%d" % k)
        a("buffer_atomic_add v1, v2, s[8:11], 0 offen sc1")
        if True:
            a.label("gb_nr%d" % k)
        a("s_mov_b32 s12, 0")
        if DF:
            a("v_mov_b32 v2, v5")
        a.label("gb_loop%d" % k)
        a("buffer_load_dword v3, v2, s[8:11], 0 offen %s" % os.environ.get("PSC", "sc1"))
        a("s_waitcnt vmcnt(0)")
        a("v_readfirstlane_b32 s13, v3")
        a("s_cmp_ge_u32 s13, %d" % tgt)
        a("s_cbranch_scc1 gb_done%d" % k)
        a("s_add_u32 s12, s12, 1")
        a("s_cmp_gt_u32 s12, 40000")
        a("s_cbranch_scc1 gb_done%d" % k)
        a("s_sleep %s" % os.environ.get("SLEEP", "8"))
        a("s_branch gb_loop%d" % k)
        a.label("gb_done%d" % k)
        if STAMP:
            a("s_memrealtime s[18:19]")
            a("s_mov_b32 s10, 65536")
            a("s_lshl_b32 s20, s2, 4")
            a("s_add_u32 s20, s20, %d" % (4096 + 4096 * k))
            a("s_waitcnt lgkmcnt(0)")
            a("s_mov_b64 exec, 1")
            a("v_mov_b32 v4, s14")
            a("v_mov_b32 v5, s16")
            a("v_mov_b32 v6, s18")
            a("v_mov_b32 v7, s92")
            a("v_mov_b32 v2, 0")
            a("buffer_store_dwordx4 v[4:7], v2, s[8:11], s20 offen")
        a("s_mov_b64 exec, -1")
        a("s_waitcnt lgkmcnt(0)")
        a.label("gb_wait%d" % k)
        a("s_barrier")
        if "inv" in os.environ.get("EXP", ""):
            a("buffer_inv sc1")
        self.phase = k + 1

    inloop = False

    def __call__(self, s):
        EXP = os.environ.get("EXP", "")
        if self.inloop:
            if "nomfma" in EXP and s.startswith("v_mfma"):
                return
            if "novalu" in EXP and s.startswith("v_") and not s.startswith("v_mfma") and not s.startswith("v_cmp") and "0x1ffff" not in s and "0x8000" not in s and not s.startswith("v_mov") and not s.startswith("v_add_u32"):
                return
            if "nolds" in EXP and s.startswith("ds_read"):
                return
            if "nodma" in EXP and s.startswith("buffer_load"):
                return
            if "nobar" in EXP and s.startswith("s_barrier"):
                return
        if "nosc1" in EXP and s.startswith("buffer_store") and s.endswith(" sc1"):
            s = s[:-4]
        self.lines.append("  " + s)

    def label(self, s):
        self.lines.append(s + ":")

    def raw(self, s):
        self.lines.append(s)

    def nop(self, n):
        while n > 0:
            k = min(n, 16)
            self("s_nop %d" % (k - 1))
            n -= k


def vr(a, n):
    return "v[%d:%d]" % (a, a + n - 1)


def sr(a, n):
    return "s[%d:%d]" % (a, a + n - 1)


def gen_proj(a):
    V_LANE = 1
    V_TR = 2
    V_OFFC = 10
    V_OFFN = 11
    V_ST = 12
    V_T0 = 13
    V_B = 16
    V_ACC = 48
    V_A = 112
    V_ROWI = 13
    V_SWZ = 14
    V_T = 15
    V_AOFF = 240

    a.label("mega_kernel")
    a("s_cmp_lt_u32 s2, 256")
    a("s_cbranch_scc1 proj_start")
    a("s_endpgm")
    a.label("proj_start")
    a.ostamp()
    if STAMP:
        a("s_memrealtime s[92:93]")
    a.stamp()
    a("s_load_dwordx2 s[8:9], s[0:1], 96")
    a("s_load_dwordx2 s[82:83], s[0:1], 96")
    a("s_load_dwordx16 s[24:39], s[0:1], 0")
    a("s_load_dwordx4 s[40:43], s[0:1], 64")
    a("s_load_dwordx2 s[44:45], s[0:1], 104")
    EXPF = os.environ.get("EXP", "")
    if "ct1" in EXPF:
        a("s_bfe_u32 s3, s2, 0x20003")
        a("s_cmp_lg_u32 s3, 0")
        a("s_cbranch_scc1 ct1_skip")
        a.code_touch("mega_kernel", "code_end", "a", True, 2)
        a.label("ct1_skip")
    if "tick" in EXPF:
        a("v_lshrrev_b32 v1, 6, v0")
        a("v_lshlrev_b32 v4, 14, v1")
        a("v_add_u32 v4, 0x8000, v4")
        a("v_readfirstlane_b32 s6, v1")
        a("s_getreg_b32 s4, hwreg(HW_REG_XCC_ID)")
        a("s_and_b32 s4, s4, 7")
        if "tkforce" in EXPF:
            a("s_min_u32 s4, s4, 4")
        a("s_mov_b32 s10, 256")
        a("s_mov_b32 s11, 0x20000")
        a("s_lshl_b32 s5, s4, 2")
        a("s_add_u32 s5, s5, 192")
        a("v_mov_b32 v2, s5")
        a("v_mov_b32 v3, 1")
        a("s_cmp_eq_u32 s6, 0")
        a("s_cbranch_scc1 tk_w0")
        a("s_cmp_lg_u32 s6, 7")
        a("s_cbranch_scc1 tk_wait")
        a("s_mov_b64 exec, 1")
        a("s_waitcnt lgkmcnt(0)")
        a("v_subrev_u32 v2, 160, v2")
        a("buffer_atomic_add v3, v2, s[8:11], 0 offen sc1")
        a("s_mov_b64 exec, -1")
        a("s_branch tk_wait")
        a.label("tk_w0")
        a("s_mov_b64 exec, 1")
        a("s_waitcnt lgkmcnt(0)")
        a("buffer_atomic_add v3, v2, s[8:11], 0 offen sc0%s" % (" sc1" if "tkforce" in EXPF or "tkglob" in EXPF else ""))
        a("s_waitcnt vmcnt(0)")
        a("v_readfirstlane_b32 s5, v3")
        a("s_cmp_lt_u32 s5, 32")
        a("s_cbranch_scc1 tk_got")
        a("s_mov_b32 s7, 0")
        a("v_mov_b32 v2, 32")
        a.label("tk_poll")
        a("buffer_load_dwordx4 v[8:11], v2, s[8:11], 0 offen sc1")
        a("buffer_load_dwordx4 v[12:15], v2, s[8:11], 0 offen offset:16 sc1")
        a("s_waitcnt vmcnt(0)")
        a("s_mov_b32 s12, 0")
        for i in range(8):
            a("v_readfirstlane_b32 s%d, v%d" % (48 + i, 8 + i))
            a("s_add_u32 s12, s12, s%d" % (48 + i))
        a("s_cmp_ge_u32 s12, 256")
        a("s_cbranch_scc1 tk_full")
        a("s_add_u32 s7, s7, 1")
        a("s_sleep 8")
        a("s_cmp_lt_u32 s7, 40000")
        a("s_cbranch_scc1 tk_poll")
        a.label("tk_fail")
        a("s_lshr_b32 s5, s2, 3")
        a("s_and_b32 s4, s2, 7")
        a("s_branch tk_got")
        a.label("tk_full")
        a("s_sub_u32 s5, s5, 32")
        for i in range(7):
            a("s_max_u32 s12, s%d, 32" % (48 + i))
            a("s_sub_u32 s12, s12, 32")
            a("s_cmp_gt_u32 s4, %d" % i)
            a("s_cselect_b32 s12, s12, 0")
            a("s_add_u32 s5, s5, s12")
        for i in range(8):
            a("s_min_u32 s12, s%d, 32" % (48 + i))
            a("s_sub_u32 s13, 32, s12")
            a("s_mov_b32 s4, %d" % i)
            a("s_cmp_lt_u32 s5, s13")
            a("s_cbranch_scc1 tk_slot")
            a("s_sub_u32 s5, s5, s13")
        a("s_branch tk_fail")
        a.label("tk_slot")
        a("s_add_u32 s5, s5, s12")
        a.label("tk_got")
        a("s_lshl_b32 s5, s5, 3")
        a("s_add_u32 s5, s5, s4")
        a("s_mov_b64 exec, 0xff")
        a("v_lshlrev_b32 v2, 14, v0")
        a("v_add_u32 v2, 0x8000, v2")
        a("v_mov_b32 v3, s5")
        a("ds_write_b32 v2, v3")
        a("s_mov_b64 exec, -1")
        a("s_waitcnt lgkmcnt(0)")
        a.label("tk_wait")
        a("s_barrier")
        a("ds_read_b32 v3, v4")
        a("s_waitcnt lgkmcnt(0)")
        a("v_readfirstlane_b32 s2, v3")
        a("s_and_b32 s2, s2, 255")
        if STAMP:
            a("s_memrealtime s[96:97]")
            a("s_waitcnt lgkmcnt(0)")
            a("s_mov_b32 s93, s96")
    PM = os.environ.get("PM", "5")
    if PM == "0":
        a("s_lshr_b32 s3, s2, 5")
        a("s_and_b32 s4, s2, 31")
    elif PM == "1":
        a("s_and_b32 s3, s2, 7")
        a("s_lshr_b32 s4, s2, 3")
    elif PM == "2":
        a("s_and_b32 s3, s2, 3")
        a("s_bfe_u32 s4, s2, 0x10003")
        a("s_lshl_b32 s4, s4, 2")
        a("s_or_b32 s3, s3, s4")
        a("s_bfe_u32 s4, s2, 0x10002")
        a("s_lshr_b32 s5, s2, 4")
        a("s_lshl_b32 s5, s5, 1")
        a("s_or_b32 s4, s4, s5")
    elif PM == "3":
        a("s_and_b32 s3, s2, 1")
        a("s_bfe_u32 s4, s2, 0x20003")
        a("s_lshl_b32 s4, s4, 1")
        a("s_or_b32 s3, s3, s4")
        a("s_bfe_u32 s4, s2, 0x20001")
        a("s_lshr_b32 s5, s2, 5")
        a("s_lshl_b32 s5, s5, 2")
        a("s_or_b32 s4, s4, s5")
    elif PM == "4":
        a("s_lshr_b32 s3, s2, 5")
        a("s_bfe_u32 s4, s2, 0x40001")
        a("s_and_b32 s5, s2, 1")
        a("s_lshl_b32 s5, s5, 4")
        a("s_or_b32 s4, s4, s5")
    elif PM == "5":
        a("s_bfe_u32 s3, s2, 0x10001")
        a("s_bfe_u32 s4, s2, 0x20003")
        a("s_lshl_b32 s4, s4, 1")
        a("s_or_b32 s3, s3, s4")
        a("s_bfe_u32 s4, s2, 0x10002")
        a("s_lshr_b32 s5, s2, 5")
        a("s_lshl_b32 s5, s5, 1")
        a("s_or_b32 s4, s4, s5")
        a("s_and_b32 s5, s2, 1")
        a("s_lshl_b32 s5, s5, 4")
        a("s_or_b32 s4, s4, s5")
    elif PM == "7":
        a("s_bfe_u32 s3, s2, 0x10001")
        a("s_bfe_u32 s4, s2, 0x20003")
        a("s_lshl_b32 s4, s4, 1")
        a("s_or_b32 s3, s3, s4")
        a("s_bfe_u32 s4, s2, 0x10002")
        a("s_lshl_b32 s4, s4, 3")
        a("s_lshr_b32 s5, s2, 5")
        a("s_or_b32 s4, s4, s5")
        a("s_and_b32 s5, s2, 1")
        a("s_lshl_b32 s5, s5, 4")
        a("s_or_b32 s4, s4, s5")
    elif PM == "8":
        a("s_bfe_u32 s3, s2, 0x10001")
        a("s_bfe_u32 s4, s2, 0x20003")
        a("s_lshl_b32 s4, s4, 1")
        a("s_or_b32 s3, s3, s4")
        a("s_bfe_u32 s4, s2, 0x10002")
        a("s_lshl_b32 s4, s4, 1")
        a("s_bfe_u32 s5, s2, 0x10005")
        a("s_or_b32 s4, s4, s5")
        a("s_lshr_b32 s5, s2, 6")
        a("s_lshl_b32 s5, s5, 2")
        a("s_or_b32 s4, s4, s5")
        a("s_and_b32 s5, s2, 1")
        a("s_lshl_b32 s5, s5, 4")
        a("s_or_b32 s4, s4, s5")
    elif PM == "6":
        a("s_bfe_u32 s3, s2, 0x30001")
        a("s_lshr_b32 s4, s2, 4")
        a("s_and_b32 s5, s2, 1")
        a("s_lshl_b32 s5, s5, 4")
        a("s_or_b32 s4, s4, s5")
    a("v_lshrrev_b32 v1, 6, v0")
    a("s_nop 0")
    a("v_readfirstlane_b32 s6, v1")
    a("v_and_b32 v1, 63, v0")
    a("s_waitcnt lgkmcnt(0)")
    a.stamp()
    a("s_cmp_lt_u32 s4, 16")
    a("s_cselect_b32 s8, s24, s26")
    a("s_cselect_b32 s9, s25, s27")
    a("s_cselect_b32 s5, 0, 1")
    a("s_and_b32 s4, s4, 15")
    a("s_mov_b32 s10, 0x200000")
    a("s_mov_b32 s11, 0x20000")
    a("s_mov_b32 s16, s44")
    a("s_mov_b32 s17, s45")
    a("s_mov_b32 s18, 0x10000000")
    a("s_mov_b32 s19, 0x20000")
    a("s_mov_b32 s20, s40")
    a("s_mov_b32 s21, s41")
    a("s_mov_b32 s22, 3584")
    a("s_mov_b32 s23, 0x20000")
    a("s_mov_b32 s15, 0x20000")
    a("s_mov_b32 s51, 0x20000")
    a("s_lshl_b32 s58, s6, 12")
    a("s_lshl_b32 s59, s3, 3")
    a("s_add_u32 s59, s59, s6")
    a("v_and_b32 v13, 15, v1")
    a("v_lshlrev_b32 v13, 10, v13")
    a("v_lshrrev_b32 v14, 4, v1")
    a("v_lshlrev_b32 v14, 4, v14")
    a("v_add_u32 v13, v13, v14")
    a("s_movk_i32 s65, 0x4000")
    a("s_lshl_b32 s60, s59, 15")
    a("v_add_u32 v13, s60, v13")
    a("v_mov_b32 v%d, v13" % V_AOFF)

    def aloads(lo, hi):
        for s in range(lo, hi):
            a("buffer_load_dwordx4 %s, v%d, s[8:11], %s offen offset:%d" % (
                vr(V_A + 4 * s, 4), V_AOFF, "s65" if s & 1 else "0", (s >> 1) * 64))

    def aswaps(lo, hi):
        for s in range(lo, hi, 2):
            for j in range(4):
                a("v_permlane16_swap_b32 v%d, v%d" % (V_A + 4 * s + j, V_A + 4 * s + 4 + j))
        a("s_nop 1")
    a("v_bfe_u32 v13, v1, 2, 2")
    a("v_lshrrev_b32 v14, 5, v1")
    a("v_lshl_add_u32 v14, v14, 4, v13")
    a("v_lshlrev_b32 v14, 8, v14")
    a("v_bfe_u32 v15, v1, 4, 1")
    a("v_lshl_add_u32 v14, v15, 5, v14")
    a("v_and_b32 v15, 3, v1")
    a("v_lshl_add_u32 v14, v15, 3, v14")
    a("v_lshlrev_b32 v13, 6, v13")
    for nt in range(4):
        a("v_xor_b32 v15, %d, v13" % (nt << 6))
        a("v_add_u32 v%d, v14, v15" % (V_TR + nt))
        a("v_add_u32 v%d, 0x10000, v%d" % (V_TR + 4 + nt, V_TR + nt))
    a("v_lshlrev_b32 v%d, 4, v1" % V_ST)
    a("v_lshrrev_b32 v13, 4, v1")
    a("v_bfe_u32 v14, v1, 2, 2")
    a("v_xor_b32 v14, v14, v13")
    a("v_lshlrev_b32 v14, 6, v14")
    a("v_and_b32 v15, 3, v1")
    a("v_lshl_add_u32 v14, v15, 4, v14")
    a("s_lshl_b32 s60, s6, 4")
    a("v_add_u32 v13, s60, v13")

    def set_params(which, wlo, whi, nrec, ldw, colexpr_reg):
        base = 12 if which == "cur" else 48
        sl, sc = (52, 53) if which == "cur" else (54, 55)
        voff = V_OFFC if which == "cur" else V_OFFN
        a("s_mov_b32 s%d, s%d" % (base, wlo))
        a("s_mov_b32 s%d, s%d" % (base + 1, whi))
        if isinstance(nrec, str):
            a("s_mov_b32 s%d, %s" % (base + 2, nrec))
        else:
            a("s_mov_b32 s%d, 0x%x" % (base + 2, nrec))
        a("s_mov_b32 s%d, %d" % (sl, ldw))
        a("s_mov_b32 s%d, %s" % (sc, colexpr_reg))
        a("v_mul_lo_u32 v%d, v%d, s%d" % (voff, V_ROWI, sl))
        a("v_add_u32 v%d, v%d, v%d" % (voff, voff, V_SWZ))

    def dma(kc, which, only=None):
        base = 12 if which == "cur" else 48
        sl, sc = (52, 53) if which == "cur" else (54, 55)
        voff = V_OFFC if which == "cur" else V_OFFN
        for i in range(4):
            if only is not None and i != only:
                continue
            a("s_add_u32 m0, s58, %d" % (kc * 32768 + i * 1024))
            a("s_mul_i32 s57, s%d, %d" % (sl, kc * 128 + 4 * i))
            a("s_add_u32 s57, s57, s%d" % sc)
            a("buffer_load_dwordx4 v%d, %s, s57 offen lds" % (voff, sr(base, 4)))

    def reads(kc, s, setidx, tr=False, only=None):
        hi = 4 if kc >= 2 else 0
        off = (kc & 1) * 32768 + (s >> 1) * 8192 + (s & 1) * 2048
        if tr:
            for j in range(4):
                if only is not None and j != only:
                    continue
                off = (kc & 1) * 32768 + (j >> 1) * 8192 + (j & 1) * 2048
                for ird in range(2):
                    a("ds_read_b64_tr_b16 %s, v%d offset:%d" % (
                        vr(V_B + setidx * 16 + j * 4 + ird * 2, 2), V_TR + hi + s, off + ird * 1024))
            return
        for nt in range(4):
            if only is not None and nt != only:
                continue
            for ird in range(2):
                a("ds_read_b64_tr_b16 %s, v%d offset:%d" % (
                    vr(V_B + setidx * 16 + nt * 4 + ird * 2, 2), V_TR + hi + nt, off + ird * 1024))

    def epi_part(kind, nt):
        if kind == "Q":
            for i in range(16):
                a("v_mul_f32 v%d, v%d, v%d" % (V_ACC + 16 * nt + i, V_LNR + 1, V_ACC + 16 * nt + i))
        for t in range(2):
            d = V_ACC + 16 * nt + 8 * t
            for p in range(4):
                x0 = V_ACC + 16 * nt + 8 * t + 2 * p
                a("v_cvt_pk_bf16_f32 v%d, v%d, v%d" % (d + p, x0, x0 + 1))
            a("buffer_store_dwordx4 %s, v%d, s[16:19], s%d offen offset:%d sc1" % (
                vr(d, 4), V_ST, 90 if nt < 2 else 91, ((nt * 2 + t) & 3) * 1024))
        a("s_nop 1")

    SPR = os.environ.get("SPR", "")
    sprc = [0]

    TRE = "tre" in os.environ.get("EXP", "")
    ILV = int(os.environ.get("ILV", "0"))

    def compute(kc, kind, extra=None, prev=None, hooks=None, late=None, defer=False):
        extra = list(extra or [])
        per = -(-len(extra) // 32)
        slots = {}
        if isinstance(late, dict):
            for s0, fl in late.items():
                for j, f in enumerate(fl):
                    slots.setdefault((s0 + j // 4, j % 4), []).append((f, None))
        elif late:
            if SPR == "a":
                for i, f in enumerate(late):
                    slots.setdefault((min(2 * i + 1, 7), 0 if i < 4 else 2), []).append((f, None))
            elif SPR == "e":
                for i, f in enumerate(late):
                    slots.setdefault((min(2 * i, 6), 1 if i < 4 else 3), []).append((f, None))
            elif SPR == "f":
                for i, f in enumerate(late):
                    slots.setdefault((i + 1, 0), []).append((f, None))
            elif SPR == "g":
                for i, f in enumerate(late):
                    if prev and kc == 0:
                        slots.setdefault((min(4 + i, 7), 0 if i < 4 else 2), []).append((f, None))
                    else:
                        slots.setdefault((min(2 * i + 1, 7), 0 if i < 4 else 2), []).append((f, None))
            elif SPR == "b":
                for i, f in enumerate(late):
                    slots.setdefault((min(2 * i + 1, 7), 0 if i < 4 else 2), []).append((f, 1))
                    slots.setdefault((min(2 * i, 6), 1 if i < 4 else 3), []).append((f, 0))
            elif SPR == "c":
                for i, f in enumerate(late):
                    slots.setdefault((i + 1, 0), []).append((f, 0))
                    slots.setdefault((i + 1, 2), []).append((f, 1))
        for s in range(8):
            if hooks and s in hooks:
                hooks[s]()
            tre = TRE and prev and kc == 0
            ilv = ILV and (not hooks or "ilh" in EXPF)
            if s < 7:
                rd = lambda only=None: reads(kc, s + 1, (s + 1) & 1, tre and s + 1 < 4, only)
            else:
                rd = lambda only=None: reads((kc + 1) & 3, 0, 0, TRE and defer and kc == 3, only)
            if not ilv:
                rd()
                a("s_waitcnt lgkmcnt(8)")
            ks = kc * 8 + s
            for nt in range(4):
                acc = vr(V_ACC + 16 * nt, 16)
                wf = vr(V_B + (s & 1) * 16 + nt * 4, 4)
                af = vr(V_A + 4 * ks, 4)
                c = "0" if ks == 0 else acc
                if tre and s < 4:
                    acc = vr(V_ACC + 16 * s, 16)
                    af = vr(V_A + 4 * nt, 4)
                    c = "0" if nt == 0 else acc
                    if nt == 0:
                        epi_part(prev, s)
                elif prev and ks == 0:
                    epi_part(prev, nt)
                if ilv:
                    if ILV == 2:
                        rd(nt)
                    a("s_waitcnt lgkmcnt(%d)" % (6 if ILV == 1 else 8))
                if kind == "V":
                    a("v_mfma_f32_32x32x16_bf16 %s, %s, %s, %s" % (acc, af, wf, c))
                else:
                    a("v_mfma_f32_32x32x16_bf16 %s, %s, %s, %s" % (acc, wf, af, c))
                if ilv and ILV == 1:
                    rd(nt)
                for f, half in slots.get((s, nt), []):
                    if half is None:
                        f()
                    else:
                        sprc[0] += 1
                        a("s_cmp_lt_u32 s6, 4")
                        a("s_cbranch_scc%d spr%d" % (half, sprc[0]))
                        f()
                        a.label("spr%d" % sprc[0])
                for x in extra[:per]:
                    a(x)
                extra = extra[per:]
        assert not extra

    def aload_ops(lo, hi):
        ops = []
        for s in range(lo, hi):
            ops.append("buffer_load_dwordx4 %s, v%d, s[8:11], %s offen offset:%d" % (
                vr(V_A + 4 * s, 4), V_AOFF, "s65" if s & 1 else "0", (s >> 1) * 64))
            ops += ["s_nop 0"] * 3
        return ops

    V_LNM = 244
    V_LNR = 246
    V_LNT = 248

    def norm_ops(q):
        ops = []
        for i in range(32 * q, 32 * q + 32):
            r = V_A + i
            t = 248 + 2 * (i % 3)
            ops.append("v_lshlrev_b32 v%d, 16, v%d" % (t, r))
            ops.append("v_and_b32 v%d, 0xffff0000, v%d" % (t + 1, r))
            ops.append("v_pk_add_f32 %s, %s, %s neg_lo:[0,1] neg_hi:[0,1]" % (vr(t, 2), vr(t, 2), vr(V_LNM, 2)))
            ops.append("v_cvt_pk_bf16_f32 v%d, v%d, v%d" % (r, t, t + 1))
        return ops

    def epilogue(kind):
        if kind == "H":
            a("s_waitcnt lgkmcnt(0)")
            a("v_lshrrev_b32 v15, 5, v1")
            a("v_lshlrev_b32 v15, 3, v15")
            for nt in range(4):
                for q in range(4):
                    a("buffer_load_dwordx2 %s, v15, s[20:23], s53 offen offset:%d" % (
                        vr(V_B + (nt * 4 + q) * 2, 2), 64 * nt + 16 * q))
            a.nop(12)
            for i in range(64):
                a("v_mul_f32 v%d, v%d, v%d" % (V_ACC + i, V_LNR, V_ACC + i))
            a("s_waitcnt vmcnt(0)")
            for nt in range(4):
                for q in range(4):
                    r0 = V_ACC + 16 * nt + 4 * q
                    b0 = V_B + (nt * 4 + q) * 2
                    for p in range(2):
                        x0, x1 = r0 + 2 * p, r0 + 2 * p + 1
                        bb = b0 + p
                        a("v_cvt_pk_bf16_f32 v15, v%d, v%d" % (x0, x1))
                        a("v_lshlrev_b32 v%d, 16, v15" % x0)
                        a("v_and_b32 v%d, 0xffff0000, v15" % x1)
                        a("v_lshlrev_b32 v15, 16, v%d" % bb)
                        a("v_add_f32 v%d, v%d, v15" % (x0, x0))
                        a("v_and_b32 v15, 0xffff0000, v%d" % bb)
                        a("v_add_f32 v%d, v%d, v15" % (x1, x1))
                        a("v_cvt_pk_bf16_f32 v15, v%d, v%d" % (x0, x1))
                        a("v_lshlrev_b32 v%d, 16, v15" % x0)
                        a("v_and_b32 v%d, 0xffff0000, v15" % x1)
                        a("v_max_f32 v%d, 0, v%d" % (x0, x0))
                        a("v_max_f32 v%d, 0, v%d" % (x1, x1))
                        a("v_mul_f32 v%d, v%d, v%d" % (x0, x0, x0))
                        a("v_mul_f32 v%d, v%d, v%d" % (x1, x1, x1))
        else:
            a.nop(12)
        if kind == "Q":
            for i in range(64):
                a("v_mul_f32 v%d, v%d, v%d" % (V_ACC + i, V_LNR + 1, V_ACC + i))
        a("s_add_u32 s67, s56, 4096")
        for nt in range(4):
            for t in range(2):
                d = V_ACC + 16 * nt + 8 * t
                for p in range(4):
                    x0 = V_ACC + 16 * nt + 8 * t + 2 * p
                    a("v_cvt_pk_bf16_f32 v%d, v%d, v%d" % (d + p, x0, x0 + 1))
                a("buffer_store_dwordx4 %s, v%d, s[16:19], s%d offen offset:%d sc1" % (
                    vr(d, 4), V_ST, 56 if nt < 2 else 67, ((nt * 2 + t) & 3) * 1024))
        a.nop(2)

    def W(n):
        a("s_waitcnt vmcnt(%d)" % n)

    sigc = [0]

    def sig_kq():
        if not EARLY:
            return
        sigc[0] += 1
        a("s_cmp_lg_u32 s6, 0")
        a("s_cbranch_scc1 sigkq%d" % sigc[0])
        a("s_mov_b32 s84, s82")
        a("s_mov_b32 s85, s83")
        a("s_mov_b32 s86, 256")
        a("s_mov_b32 s87, 0x20000")
        a("s_mov_b64 exec, 1")
        a("v_mov_b32 v252, 1")
        a("v_mov_b32 v253, 8")
        a("buffer_atomic_add v252, v253, s[84:87], 0 offen sc1")
        a("s_mov_b64 exec, -1")
        a.label("sigkq%d" % sigc[0])

    def ckv_first(kc):
        B = lambda: a("s_barrier")
        if kc == 0:
            return (lambda: None), {
                1: lambda: (W(12 + NP0), a_read(2, 4)),
                2: lambda: a_dma(5, 4),
                4: lambda: (W(8), a_read(3, 2)),
                6: lambda: (B(), dma(2, "cur"))}
        if kc == 1:
            return (lambda: (B(), a_dma(6, 0))), {
                1: lambda: (W(12), a_read(4, 3)),
                3: lambda: (W(8), a_read(5, 4)),
                6: lambda: (W(4), B(), a_dma(7, 4), dma(3, "cur"))}
        if kc == 2:
            return (lambda: (B(), dma(1, "next"))), {
                1: lambda: (W(12), a_read(6, 0)),
                3: lambda: (W(8), a_read(7, 4)),
                6: lambda: (W(4), B(), dma(0, "next"))}
        return (lambda: (B(), dma(2, "next"))), {
            7: lambda: (W(4), B())}

    def ckv_first_spread(kc):
        B = lambda: a("s_barrier")
        AD = lambda e, r: [lambda j=j: a_dma(e, r, j) for j in range(4)]
        D = lambda k, w: [lambda j=j: dma(k, w, j) for j in range(4)]
        if kc == 0:
            return (lambda: None), {
                1: lambda: (W(12 + NP0), a_read(2, 4)),
                4: lambda: (W(8), a_read(3, 2)),
                6: B}, {2: AD(5, 4), 6: D(2, "cur")}
        if kc == 1:
            return B, {
                1: lambda: (W(12), a_read(4, 3)),
                3: lambda: (W(8), a_read(5, 4)),
                6: lambda: (W(4), B())}, {0: AD(6, 0), 6: AD(7, 4) + D(3, "cur")}
        if kc == 2:
            return B, {
                1: lambda: (W(12), a_read(6, 0)),
                3: lambda: (W(8), a_read(7, 4)),
                6: lambda: (W(4), B())}, {0: D(1, "next"), 6: D(0, "next")}
        return B, {7: lambda: (W(4), B())}, {0: D(2, "next")}

    PFS = os.environ.get("PFS", "")
    pfh = [0, 0]

    def pfsched(typ, ci):
        if not PFS:
            if ci == 1:
                return True
            if ci == 2:
                return 2 if NPF == 1 else 0
            return False
        last = 2 if typ == "x" else 3
        r = [None] * 4
        if ci == 1 and PFS[0] == "x":
            if typ == "x":
                r[0] = (3, 0, 1)
                r[1] = (4, 0, 1)
        elif ci == 1:
            n = int(PFS[0])
            for p in range(n):
                r[p * (4 // n) if PFS[2] == "s" else p] = (1, p, n)
        if ci == last:
            n = int(PFS[1])
            for p in range(n):
                r[p + int(PFS[3])] = (2, p, n)
        return r if any(r) else None

    def chunk(kind, set_next, set_out, prev=None, defer=False, first=None, pf=False, sig=False):
        waits = (4, 12, 12, 4) if prev else (8, 4, 4, 4)
        if pf:
            waits = (4, 12 + NPF, 12 + NPF, 4)
        if PFS:
            pfl = pf if pf else [None] * 4
            hist = pfh + [1 if x else 0 for x in pfl]
            waits = tuple(((4, 12, 4 if SPR else 12, 4) if prev else (8, 4, 4, 4))[k] + hist[k] + hist[k + 1] for k in range(4))
            pfh[:] = hist[-2:]
        if prev:
            a("s_mov_b32 s90, s56")
            a("s_add_u32 s91, s56, 4096")
        set_next()
        set_out()
        for kc in range(4):
            extra = hooks = late = None
            if first == "ckv":
                if "fsp" in EXPF:
                    st, hooks, late = ckv_first_spread(kc)
                else:
                    st, hooks = ckv_first(kc)
                st()
            else:
                a("s_waitcnt vmcnt(%d)" % waits[kc])
                a("s_barrier")
                if SPR:
                    assert PFS
                    late = []
                    if kc >= 1 or not first:
                        for i in range(4):
                            late.append(lambda i=i: dma(3, "cur", i) if kc < 1 else dma(kc - 1, "next", i))
                    if pfl[kc]:
                        late.append(lambda: prefetch(*pfl[kc]))
                elif kc < 1:
                    if not first:
                        dma(kc + 3, "cur")
                    if pf and not PFS:
                        prefetch(pf)
                else:
                    dma(kc - 1, "next")
                if PFS and pfl[kc] and not SPR:
                    prefetch(*pfl[kc])
                if sig and kc == 3:
                    sig_kq()
            if first == "xn" and kc < 3:
                extra = norm_ops(kc + 1)
            if kc == 0:
                a.stamp()
            compute(kc, kind, extra, prev, hooks, late, defer)
        a.stamp()
        if not defer:
            epilogue(kind)
        a.stamp()
        for i in range(3):
            a("s_mov_b32 s%d, s%d" % (12 + i, 48 + i))
        a("s_mov_b32 s52, s54")
        a("s_mov_b32 s53, s55")
        a("v_mov_b32 v%d, v%d" % (V_OFFC, V_OFFN))

    a("s_lshl_b32 s61, s4, 8")
    a("s_mov_b32 s46, s61")
    if "rev" in EXPF:
        a("s_and_b32 s47, s3, 1")
        a("s_lshl_b32 s47, s47, 12")
        a("s_xor_b32 s61, s61, s47")
    a("s_xor_b32 s62, s61, 4096")
    a("s_lshl_b32 s63, s61, 11")
    a("s_lshl_b32 s64, s59, 13")
    a("s_add_u32 s63, s63, s64")
    a("s_xor_b32 s64, s63, 0x800000")
    V_AD, V_AR = 240, 241
    a("v_and_b32 v24, 7, v1")
    a("v_lshrrev_b32 v25, 3, v1")
    a("v_lshrrev_b32 v26, 1, v25")
    a("v_xor_b32 v26, v24, v26")
    a("v_lshlrev_b32 v26, 4, v26")
    a("v_lshl_add_u32 v26, v25, 10, v26")
    a("s_lshl_b32 s60, s59, 15")
    a("v_add_u32 v%d, s60, v26" % V_AD)
    a("s_lshl_b32 s66, s6, 12")
    a("v_and_b32 v24, 31, v1")
    a("v_lshrrev_b32 v25, 5, v1")
    a("v_bfe_u32 v26, v24, 1, 3")
    a("v_lshlrev_b32 v27, 1, v25")
    a("v_xor_b32 v26, v26, v27")
    a("v_lshlrev_b32 v26, 4, v26")
    a("v_lshl_add_u32 v26, v24, 7, v26")
    a("v_add_u32 v%d, s66, v26" % V_AR)
    a("v_add_u32 v%d, 0x10000, v%d" % (V_AR + 1, V_AR))
    a("v_add_u32 v%d, 0x20000, v%d" % (V_AR + 2, V_AR))

    def a_dma(e, reg, only=None):
        for j in range(4):
            if only is not None and j != only:
                continue
            a("v_xor_b32 v%d, %d, v%d" % (248 + j, 64 * (j & 1), V_AD))
            a("s_add_u32 m0, s66, %d" % (reg * 32768 + 1024 * j))
            a("s_movk_i32 s67, %d" % (8192 * j + 128 * e))
            a("buffer_load_dwordx4 v%d, s[8:11], s67 offen lds" % (248 + j))

    def a_read(e, reg):
        for s_ in range(4):
            c0 = (4 * (s_ >> 1) + (s_ & 1)) * 16
            a("v_xor_b32 v%d, %d, v%d" % (248 + s_, c0, V_AR + (reg >> 1)))
            a("ds_read_b128 %s, v%d offset:%d" % (vr(V_A + 4 * (4 * e + s_), 4), 248 + s_, (reg & 1) * 32768))

    def L0():
        a("s_waitcnt lgkmcnt(0)")

    def stats(q):
        for i in range(32 * q, 32 * q + 32):
            r = V_A + i
            t = 20 + 2 * (i & 3)
            a("v_lshlrev_b32 v%d, 16, v%d" % (t, r))
            a("v_and_b32 v%d, 0xffff0000, v%d" % (t + 1, r))
            a("v_pk_add_f32 v[16:17], v[16:17], %s" % vr(t, 2))
            a("v_pk_fma_f32 v[18:19], %s, %s, v[18:19]" % (vr(t, 2), vr(t, 2)))

    NPF = 4 if "pfall" in EXPF else (2 if "pfv2" in EXPF else (0 if "nopf" in EXPF else 1))

    def prefetch(stage=1, part=0, nparts=1):
        if not NPF:
            return
        if stage >= 3:
            a("s_lshr_b32 s88, s2, 1")
            a("s_lshl_b32 s88, s88, 3")
            a("s_add_u32 s88, s88, s6")
            if stage == 4:
                a("s_sub_u32 s88, 1023, s88")
            a("v_lshlrev_b32 v255, 6, v1")
            src = 32 if stage == 3 else 38
            a("s_mov_b32 s84, s%d" % src)
            a("s_mov_b32 s85, s%d" % (src + 1))
            a("s_mov_b32 s86, 0x%x" % (0x400000 if stage == 3 else 0x1c0000))
            a("s_mov_b32 s87, 0x20000")
            a("s_lshl_b32 s89, s88, 12")
            a("buffer_load_dword v254, v255, s[84:87], s89 offen")
            return
        if NPF == 1:
            big, small = (32, 38) if stage == 1 else (34, 42)
            a("s_lshl_b32 s88, s2, 3")
            a("s_add_u32 s88, s88, s6")
            a("v_lshlrev_b32 v255, 6, v1")
            a("s_cmp_lt_u32 s88, 1024")
            a("s_cselect_b32 s84, s%d, s%d" % (big, small))
            a("s_cselect_b32 s85, s%d, s%d" % (big + 1, small + 1))
            a("s_cselect_b32 s86, s7, 0x1c0000")
            a("s_mov_b32 s87, 0x20000")
            a("s_and_b32 s89, s88, 1023")
            a("s_lshl_b32 s89, s89, 12")
            if nparts > 1:
                w = 64 // nparts
                m = ((1 << w) - 1) << (w * part)
                a("s_mov_b32 exec_lo, 0x%x" % (m & 0xffffffff))
                a("s_mov_b32 exec_hi, 0x%x" % (m >> 32))
            a("buffer_load_dword v254, v255, s[84:87], s89 offen")
            if nparts > 1:
                a("s_mov_b64 exec, -1")
            return
        if NPF == 2:
            a("s_lshl_b32 s88, s2, 3")
            a("s_add_u32 s88, s88, s6")
            a("v_lshlrev_b32 v255, 7, v1")
            a("s_lshr_b32 s89, s88, 9")
            a("s_mov_b32 s84, s32")
            a("s_mov_b32 s85, s33")
            a("s_mov_b32 s86, 0x400000")
            for m, src in ((1, 34), (2, 38), (3, 42)):
                a("s_cmp_eq_u32 s89, %d" % m)
                a("s_cselect_b32 s84, s%d, s84" % src)
                a("s_cselect_b32 s85, s%d, s85" % (src + 1))
            a("s_cmp_ge_u32 s89, 2")
            a("s_cselect_b32 s86, 0x1c0000, s86")
            a("s_mov_b32 s87, 0x20000")
            a("s_and_b32 s89, s88, 511")
            a("s_lshl_b32 s89, s89, 13")
            a("buffer_load_dword v254, v255, s[84:87], s89 offen")
            a("buffer_load_dword v254, v255, s[84:87], s89 offen offset:64")
            return
        a("s_lshl_b32 s88, s2, 3")
        a("s_add_u32 s88, s88, s6")
        a("v_lshlrev_b32 v255, 7, v1")
        a("s_lshr_b32 s89, s88, 9")
        a("s_mov_b32 s84, s28")
        a("s_mov_b32 s85, s29")
        for m in range(1, 4):
            a("s_cmp_eq_u32 s89, %d" % m)
            a("s_cselect_b32 s84, s%d, s84" % (28 + 2 * m))
            a("s_cselect_b32 s85, s%d, s85" % (29 + 2 * m))
        a("s_mov_b32 s86, 0x400000")
        a("s_mov_b32 s87, 0x20000")
        a("s_and_b32 s89, s88, 511")
        a("s_lshl_b32 s89, s89, 13")
        a("buffer_load_dword v254, v255, s[84:87], s89 offen")
        a("buffer_load_dword v254, v255, s[84:87], s89 offen offset:64")
        a("s_cmp_lt_u32 s88, 224")
        a("s_cselect_b32 s84, s38, s42")
        a("s_cselect_b32 s85, s39, s43")
        a("s_cselect_b32 s89, 0, 224")
        a("s_sub_u32 s89, s88, s89")
        a("s_lshl_b32 s89, s89, 13")
        a("s_cmp_lt_u32 s88, 448")
        a("s_cselect_b32 s86, 0x1c0000, 0")
        a("buffer_load_dword v254, v255, s[84:87], s89 offen")
        a("buffer_load_dword v254, v255, s[84:87], s89 offen offset:64")

    NP0 = int(os.environ.get("NP0", "0"))

    def prefetch0():
        if not NP0:
            return
        a("s_lshl_b32 s88, s2, 3")
        a("s_add_u32 s88, s88, s6")
        a("v_lshlrev_b32 v255, 7, v1")
        a("s_lshr_b32 s89, s88, 9")
        a("s_mov_b32 s84, s28")
        a("s_mov_b32 s85, s29")
        for m in range(1, 4):
            src = 28 + 2 * m if m < 3 else 38
            a("s_cmp_eq_u32 s89, %d" % m)
            a("s_cselect_b32 s84, s%d, s84" % src)
            a("s_cselect_b32 s85, s%d, s85" % (src + 1))
        a("s_cselect_b32 s86, 0x1c0000, s7")
        a("s_mov_b32 s87, 0x20000")
        a("s_and_b32 s89, s88, 511")
        a("s_lshl_b32 s89, s89, 13")
        for i in range(NP0):
            a("buffer_load_dword v254, v255, s[84:87], s89 offen offset:%d" % (64 * i))

    a("s_mov_b32 s7, 0x400000")
    a("s_cmp_eq_u32 s5, 1")
    a("s_cbranch_scc1 proj_ckv")
    set_params("cur", 28, 29, 0x400000, 8192, "s61")
    a_dma(0, 2)
    a_dma(1, 3)
    a_dma(2, 4)
    dma(0, "cur")
    prefetch0()
    a("v_mov_b32 v16, 0")
    a("v_mov_b32 v17, 0")
    a("v_mov_b32 v18, 0")
    a("v_mov_b32 v19, 0")
    W(12 + NP0); a_read(0, 2); L0(); a_dma(3, 2)
    W(12 + NP0); a_read(1, 3); L0(); a_dma(4, 3)
    W(12 + NP0); a_read(2, 4); L0(); a_dma(5, 4)
    dma(1, "cur")
    stats(0)
    W(12); a_read(3, 2); L0(); a_dma(6, 2)
    W(12); a_read(4, 3); L0(); a_dma(7, 3)
    stats(1)
    W(12); a_read(5, 4); L0()
    stats(2)
    W(4); a_read(6, 2)
    W(0); a_read(7, 3); L0()
    a("s_barrier")
    dma(2, "cur")
    dma(3, "cur")
    stats(3)
    a.stamp()
    a("v_add_f32 v16, v16, v17")
    a("v_add_f32 v18, v18, v19")
    a("v_mov_b32 v17, v16")
    a("v_mov_b32 v19, v18")
    a.nop(2)
    a("v_permlane32_swap_b32 v16, v17")
    a("v_permlane32_swap_b32 v18, v19")
    a.nop(2)
    a("v_add_f32 v16, v16, v17")
    a("v_add_f32 v18, v18, v19")
    a("v_mul_f32 v16, 0x3b000000, v16")
    a("v_mul_f32 v18, 0x3b000000, v18")
    a("v_fma_f32 v18, -v16, v16, v18")
    a("v_max_f32 v18, 0, v18")
    a("v_cvt_pk_bf16_f32 v16, v16, v18")
    a("v_and_b32 v18, 0xffff0000, v16")
    a("v_lshlrev_b32 v16, 16, v16")
    a("v_add_f32 v18, 0x3727c5ac, v18")
    a("v_cvt_pk_bf16_f32 v18, v18, v18")
    a("v_lshlrev_b32 v18, 16, v18")
    a("v_sqrt_f32 v18, v18")
    a("s_nop 0")
    a("v_cvt_pk_bf16_f32 v18, v18, v18")
    a("v_lshlrev_b32 v18, 16, v18")
    a("v_rcp_f32 v18, v18")
    a("v_mov_b32 v%d, v16" % V_LNM)
    a("v_mov_b32 v%d, v16" % (V_LNM + 1))
    a("v_mov_b32 v%d, v18" % V_LNR)
    a("v_mul_f32 v%d, 0x%08x, v18" % (V_LNR + 1, QSC))
    reads(0, 0, 0)
    for x in norm_ops(0):
        a(x)
    a.stamp()

    def out_q0():
        a("s_add_u32 s56, s63, 0x%x" % QF)

    def out_q1():
        a("s_add_u32 s56, s64, 0x%x" % QF)

    def next_q1():
        set_params("next", 28, 29, 0x400000, 8192, "s62")

    def next_h():
        a("s_cmp_lt_u32 s4, 14")
        a("s_cselect_b32 s66, 0x1c0000, 0")
        set_params("next", 38, 39, "s66", 3584, "s46")

    def next_none():
        a("s_mov_b32 s66, 0")
        set_params("next", 38, 39, "s66", 3584, "s46")

    def out_h():
        a("s_mul_i32 s56, s59, %d" % AF_BLK)
        a("s_lshl_b32 s66, s4, 13")
        a("s_add_u32 s56, s56, s66")
        a("s_add_u32 s56, s56, 0x%x" % (AF + 256 * 1024))

    chunk("Q", next_q1, out_q0, None, True, "xn")
    chunk("Q", next_h, out_q1, "Q", True, None, pfsched("x", 1))
    a("s_cmp_lt_u32 s4, 14")
    a("s_cbranch_scc1 proj_h")
    epilogue("Q")
    if EARLY:
        a("s_waitcnt vmcnt(0)")
        a("s_barrier")
        sig_kq()
    if "pf2" in EXPF:
        a("s_sub_u32 s88, s4, 14")
        a("s_lshl_b32 s89, s3, 1")
        a("s_add_u32 s88, s88, s89")
        a("s_lshl_b32 s88, s88, 3")
        a("s_add_u32 s88, s88, s6")
        a("v_lshlrev_b32 v255, 7, v1")
        a("s_mov_b32 s84, s34")
        a("s_mov_b32 s85, s35")
        a("s_mov_b32 s86, 0x400000")
        a("s_mov_b32 s87, 0x20000")
        a("s_lshl_b32 s89, s88, 15")
        for i in range(4):
            a("buffer_load_dword v254, v255, s[84:87], s89 offen")
            a("buffer_load_dword v254, v255, s[84:87], s89 offen offset:64")
            a("s_add_u32 s89, s89, 8192")
        a("s_mov_b32 s84, s42")
        a("s_mov_b32 s85, s43")
        a("s_mov_b32 s86, 0x1c0000")
        a("s_lshl_b32 s89, s88, 14")
        for i in range(2):
            a("buffer_load_dword v254, v255, s[84:87], s89 offen")
            a("buffer_load_dword v254, v255, s[84:87], s89 offen offset:64")
            a("s_add_u32 s89, s89, 8192")
    a("s_branch proj_end")
    a.label("proj_h")
    chunk("H", next_none, out_h, "Q", False, None, pfsched("x", 2), True)
    pfh[:] = [0, 0]
    a.stamp_flush(0)
    a("s_branch proj_end")
    a.nst = 2

    a.label("proj_ckv")
    set_params("cur", 30, 31, 0x400000, 8192, "s61")
    dma(0, "cur")
    a_dma(0, 2)
    a_dma(1, 3)
    a_dma(2, 4)
    dma(1, "cur")
    prefetch0()
    W(12 + NP0); a_read(0, 2); L0(); a_dma(3, 2)
    W(12 + NP0); a_read(1, 3); L0(); a_dma(4, 3)
    a("s_barrier")
    reads(0, 0, 0)

    def out_k0():
        a("s_add_u32 s56, s63, 0x%x" % KF)

    def out_k1():
        a("s_add_u32 s56, s64, 0x%x" % KF)

    def out_v0():
        a("s_add_u32 s56, s63, 0x%x" % VF)

    def out_v1():
        a("s_add_u32 s56, s64, 0x%x" % VF)

    chunk("QK", lambda: set_params("next", 30, 31, 0x400000, 8192, "s62"), out_k0, None, True, "ckv")
    chunk("QK", lambda: set_params("next", 32, 33, 0x400000, 8192, "s61"), out_k1, "QK", True, None, pfsched("c", 1))
    chunk("V", lambda: set_params("next", 32, 33, 0x400000, 8192, "s62"), out_v0, "QK", True, None, pfsched("c", 2), True)
    chunk("V", next_none, out_v1, "V", False, None, pfsched("c", 3))
    a.stamp_flush(int(STAMP) if STAMP else 0)
    a.label("proj_end")
    a.ostamp()
    if not EARLY:
        a.gridbar(0)
        a.ostamp()


def descriptor(a, name, vgpr, sgpr, accum):
    a.raw(".p2align 6")
    a.raw(".amdhsa_kernel %s" % name)
    a.raw("  .amdhsa_next_free_vgpr %d" % vgpr)
    a.raw("  .amdhsa_next_free_sgpr %d" % sgpr)
    a.raw("  .amdhsa_accum_offset %d" % accum)
    a.raw("  .amdhsa_group_segment_fixed_size 0")
    a.raw("  .amdhsa_kernarg_size 112")
    a.raw("  .amdhsa_user_sgpr_count 2")
    a.raw("  .amdhsa_user_sgpr_kernarg_segment_ptr 1")
    a.raw("  .amdhsa_system_sgpr_workgroup_id_x 1")
    a.raw(".end_amdhsa_kernel")


def main():
    from gen_rest import gen_attn, gen_ogemm, gen_reduce
    a = Asm()
    hdr = open("cdna_kernels/%s.s.ref" % NAME).read().split("\n")
    for l in hdr:
        if l.startswith(";") and "@launch" not in l:
            a.raw(l)
        elif not l.startswith(";"):
            break
    a.raw("; @launch kernel=mega_kernel grid=(256,1,1) block=(512,1,1) lds=163840")
    a.raw('.amdgcn_target "amdgcn-amd-amdhsa--gfx950"')
    a.raw(".text")
    a.raw(".globl mega_kernel")
    a.raw(".p2align 8")
    a.raw(".type mega_kernel,@function")
    gen_proj(a)
    gen_attn(a)
    gen_ogemm(a)
    gen_reduce(a)
    a.label("code_end")
    a.raw('.section .rodata,"a"')
    descriptor(a, "mega_kernel", 256, 102, 256)
    out = sys.argv[1] if len(sys.argv) > 1 else "cdna_kernels/%s.s" % NAME
    open(out, "w").write("\n".join(a.lines) + "\n")


if __name__ == "__main__":
    main()
```

```python
from gen import vr, sr, QF, KF, VF, AF, AF_BLK, PART, CTR, EARLY
import math
import os
EXP = os.environ.get("EXP", "")
SENT = "sent" in EXP
MST = os.environ.get("MST")
AVW = os.environ.get("AVW")
OIL = os.environ.get("OIL")
OFK = os.environ.get("OFK")
PB = "pb" in EXP

SCALE_LOG2E = (128 ** -0.5) * math.log2(math.e)


def f32hex(x):
    import struct
    return "0x%08x" % struct.unpack("<I", struct.pack("<f", x))[0]


def interleave(a, mf, fl):
    n = len(mf)
    pos = 0
    for i in range(n):
        a(mf[i])
        end = (len(fl) * (i + 1)) // n
        while pos < end:
            a(fl[pos])
            pos += 1


def gen_attn(a):
    V_LDS = 2
    V_DMA = 3
    V_LG = 4
    V_NEG = 5
    V_RDV = 6
    V_RDK = 7
    V_M = 8
    V_L = 9
    V_T = 10
    V_Q = 16
    V_O = 48
    V_S = 112
    V_P = 144
    V_K = 152
    V_V = 184
    S_MASK = 36
    S_LB = 35
    S_THR = 34
    V_C = 216
    V_E = 232
    NBUF = 5
    LDSZ = NBUF * 32768

    a.label("attn_kernel")
    if not EARLY:
        a.stamp()
    a("s_load_dwordx2 s[8:9], s[0:1], 104")
    if "df" in EXP:
        a("s_load_dwordx2 s[86:87], s[0:1], 96")
        a("v_mov_b32 v255, 0")
    a("v_lshrrev_b32 v1, 6, v0")
    a("s_nop 0")
    a("v_readfirstlane_b32 s6, v1")
    a("v_and_b32 v1, 63, v0")
    a("s_lshr_b32 s22, s6, 2")
    a("s_and_b32 s23, s6, 3")
    a("s_and_b32 s3, s2, 7")
    a("s_lshl_b32 s3, s3, 2")
    a("s_lshr_b32 s4, s2, 3")
    a("s_and_b32 s4, s4, 3")
    a("s_add_u32 s3, s3, s4")
    a("s_lshr_b32 s4, s2, 5")
    a("s_sub_u32 s5, 15, s4")
    a("s_mov_b32 s24, 0")
    a("s_mov_b32 s77, 1000000")
    a("s_mov_b32 s10, 0x10000000")
    a("s_mov_b32 s11, 0x20000")
    a("s_lshl_b32 s12, s3, 19")
    a("v_lshlrev_b32 v%d, 4, v1" % V_LDS)
    a("s_lshl_b32 s13, s23, 11")
    a("s_lshl_b32 s25, s22, 13")
    a("s_add_u32 s25, s25, s13")
    a("v_add_u32 v%d, s25, v%d" % (V_DMA, V_LDS))
    a("s_lshl_b32 s26, s22, 14")
    a("v_add_u32 v%d, s26, v%d" % (V_LG, V_LDS))
    a("s_add_u32 s27, s26, s13")
    a("v_and_b32 v12, 31, v1")
    a("v_lshrrev_b32 v13, 5, v1")
    a("v_lshlrev_b32 v13, 2, v13")
    a("v_sub_u32 v12, v12, v13")
    for r in range(16):
        kl = 8 * (r >> 2) + (r & 3)
        a("v_cmp_le_i32 %s, %d, v12" % (sr(S_MASK + 2 * r, 2), kl))
    a("v_mov_b32 v%d, 0xf149f2ca" % V_NEG)
    a("s_waitcnt lgkmcnt(0)")

    def bump(sreg):
        return ["s_add_u32 s%d, s%d, 32768" % (sreg, sreg),
                "s_cmp_ge_u32 s%d, %d" % (sreg, LDSZ),
                "s_cselect_b32 s%d, 0, s%d" % (sreg, sreg)]

    def dma_ops():
        ops = []
        ops.append("s_add_u32 m0, s27, s28")
        ops.append("s_cmp_eq_u32 s78, s79")
        ops.append("s_cselect_b32 s16, s80, s16")
        ops.append("s_cselect_b32 s17, s81, s17")
        ops.append("s_add_u32 s78, s78, 1")
        for i in range(2):
            ops.append("buffer_load_dwordx4 v%d, s[8:11], s16 offen offset:%d lds" % (V_DMA, i * 1024))
        ops.append("s_add_u32 m0, m0, 8192")
        ops.append("s_add_u32 s16, s16, 16384")
        for i in range(2):
            ops.append("buffer_load_dwordx4 v%d, s[8:11], s17 offen offset:%d lds" % (V_DMA, i * 1024))
        ops.append("s_add_u32 s17, s17, 16384")
        ops += bump(28)
        return ops

    def dma():
        for x in dma_ops():
            a(x)

    def tstamp(k):
        if not os.environ.get("STAMP"):
            return
        a("s_memtime s[98:99]")
        a("s_waitcnt lgkmcnt(0)")
        a("s_cmp_eq_u32 s24, 0")
        a("s_cselect_b32 s%d, s98, s%d" % (69 + k, 69 + k))
        a("s_cselect_b32 s%d, s%d, s98" % (73 + k, 73 + k))

    def kread_ops():
        return ["ds_read_b128 %s, v%d offset:%d" % (vr(V_K + 4 * s, 4), V_RDK, s * 1024) for s in range(8)] + \
            bump(33) + ["v_add_u32 v%d, s33, v%d" % (V_RDK, V_LG)]

    def vread_ops():
        order = (0, 2, 4, 6, 1, 3, 5, 7) if AVW else range(8)
        return ["ds_read_b128 %s, v%d offset:%d" % (vr(V_V + 4 * i, 4), V_RDV, 8192 + i * 1024) for i in order] + \
            bump(32) + ["v_add_u32 v%d, s32, v%d" % (V_RDV, V_LG)]

    def qk_ops(sp):
        ops = []
        S = V_S + 16 * sp
        for s in range(8):
            c = vr(V_C, 16) if s == 0 else vr(S, 16)
            ops.append("v_mfma_f32_32x32x16_bf16 %s, %s, %s, %s" % (vr(S, 16), vr(V_K + 4 * s, 4), vr(V_Q + 4 * s, 4), c))
        return ops

    def pv_ops():
        ops = []
        for t in range(2):
            for dt in range(4):
                o = vr(V_O + 16 * dt, 16)
                ops.append("v_mfma_f32_32x32x16_bf16 %s, %s, %s, %s" % (o, vr(V_V + 4 * (dt * 2 + t), 4), vr(V_P + 4 * t, 4), o))
        return ops

    def max_ops(S, t0, t1):
        return ["v_max3_f32 v%d, v%d, v%d, v%d" % (t0, S, S + 1, S + 2),
                "v_max3_f32 v%d, v%d, v%d, v%d" % (t1, S + 3, S + 4, S + 5),
                "v_max3_f32 v%d, v%d, v%d, v%d" % (t0, t0, S + 6, S + 7),
                "v_max3_f32 v%d, v%d, v%d, v%d" % (t1, t1, S + 8, S + 9),
                "v_max3_f32 v%d, v%d, v%d, v%d" % (t0, t0, S + 10, S + 11),
                "v_max3_f32 v%d, v%d, v%d, v%d" % (t1, t1, S + 12, S + 13),
                "v_max3_f32 v%d, v%d, v%d, v%d" % (t0, t0, S + 14, S + 15),
                "v_max_f32 v%d, v%d, v%d" % (t0, t0, t1),
                "v_mov_b32 v%d, v%d" % (t1, t0)]

    def soft_ops(S, t2, t3):
        P = V_P
        E = V_E
        vb = []
        for r in range(16):
            vb.append("v_exp_f32 v%d, v%d" % (E + r, S + r))
            if r >= 3 and r % 2 == 1:
                q = r - 3
                vb.append("v_cvt_pk_bf16_f32 v%d, v%d, v%d" % (P + q // 2, E + q, E + q + 1))
                if q == 0:
                    vb.append("v_add_f32 v%d, v%d, v%d" % (t2, E, E + 1))
                elif q == 2:
                    vb.append("v_add_f32 v%d, v%d, v%d" % (t3, E + 2, E + 3))
                else:
                    vb.append("v_add_f32 v%d, v%d, v%d" % (t2, t2, E + q))
                    vb.append("v_add_f32 v%d, v%d, v%d" % (t3, t3, E + q + 1))
        vb.append("v_add_f32 v%d, v%d, v%d" % (t2, t2, t3))
        vb.append("v_cvt_pk_bf16_f32 v%d, v%d, v%d" % (P + 7, E + 14, E + 15))
        vb.append("v_add_f32 v%d, v%d, v%d" % (t3, E + 14, E + 15))
        vb.append("v_add_f32 v%d, v%d, v%d" % (t2, t2, t3))
        return vb

    cnt = [0]
    rare = []

    def mask(L, S):
        a("s_lshl_b32 s29, s18, 1")
        a("s_add_u32 s29, s29, s22")
        a("s_cmp_lt_u32 s29, s30")
        a("s_cbranch_scc1 %s_nomask" % L)
        a("s_cmp_eq_u32 s29, s30")
        a("s_cbranch_scc1 %s_tri" % L)
        for r in range(16):
            a("v_mov_b32 v%d, v%d" % (S + r, V_NEG))
        a("s_branch %s_nomask" % L)
        a.label("%s_tri" % L)
        for r in range(16):
            a("v_cndmask_b32 v%d, v%d, v%d, %s" % (S + r, V_NEG, S + r, sr(S_MASK + 2 * r, 2)))
        a.label("%s_nomask" % L)

    def phaseA(sp, diag, last=False):
        cnt[0] += 1
        L = "attn_it%d" % cnt[0]
        S = V_S + 16 * sp
        T = V_T
        if diag:
            mask(L, S)
        qk = qk_ops(sp ^ 1)
        S2 = V_S + 16 * (sp ^ 1)
        so = soft_ops(S, T + 3, T + 4)
        vrd = vread_ops()
        mix = []
        step = len(so) // len(vrd)
        k = 0
        for i, x in enumerate(so):
            mix.append(x)
            if i % step == step - 1 and k < len(vrd):
                mix.append(vrd[k])
                k += 1
        mix += vrd[k:]
        if last:
            for x in mix:
                a(x)
        else:
            interleave(a, qk, mix)
        a("v_cmp_lt_f32 vcc, s%d, v%d" % (S_THR, T + 3))
        a("s_nop 1")
        a("s_cbranch_vccnz %s_rs" % L)
        a.label("%s_nors" % L)
        a("v_add_f32 v%d, v%d, v%d" % (V_L, V_L, T + 3))
        blk = ["%s_rs:" % L]
        if os.environ.get("STAMP"):
            blk.append("s_add_u32 s77, s77, 1")
        blk += max_ops(S, T, T + 1)
        blk += ["s_nop 1",
                "v_permlane32_swap_b32 v%d, v%d" % (T, T + 1),
                "s_nop 0",
                "v_max3_f32 v%d, v%d, v%d, s%d" % (T, T, T + 1, S_LB),
                "v_exp_f32 v%d, -v%d" % (T + 1, T),
                "v_add_f32 v%d, v%d, v%d" % (V_M, V_M, T),
                "v_min_f32 v%d, 0x7149f2ca, v%d" % (T + 1, T + 1),
                "s_mov_b32 s%d, 0x53800000" % S_THR,
                "s_mov_b32 s%d, 0" % S_LB,
                "v_mul_f32 v%d, v%d, v%d" % (V_L, V_L, T + 1)]
        for i in range(64):
            blk.append("v_mul_f32 v%d, v%d, v%d" % (V_O + i, V_O + i, T + 1))
        for r in range(16):
            blk.append("v_sub_f32 v%d, v%d, v%d" % (S + r, S + r, T))
        blk += so
        for r in range(16):
            blk.append("v_sub_f32 v%d, v%d, v%d" % (V_C + r, V_C + r, T))
        for r in range(16 if not last else 0):
            blk.append("v_sub_f32 v%d, v%d, v%d" % (S2 + r, S2 + r, T))
        blk.append("s_branch %s_nors" % L)
        rare.append(blk)
        a("s_add_u32 s18, s18, 1")

    def phaseC(mode="n"):
        ASP = os.environ.get("ASP", "")
        avw = AVW and mode == "n" and ASP == "a"
        a("s_waitcnt lgkmcnt(%d)" % (4 if avw else 0))
        a("s_nop 0")
        if mode == "n" and ASP:
            k, d = kread_ops(), dma_ops()
            if ASP == "a":
                per = [k[0:3], k[3:5] + d[0:6], k[5:8], k[8:12] + d[6:7], d[7:9], d[9:10], d[10:11], d[11:]]
            elif ASP == "b":
                per = [k[0:2] + d[0:6], k[2:5], k[5:7] + d[6:9], k[7:12], d[9:10], [], d[10:11], d[11:]]
            elif ASP == "d":
                per = [k[0:2] + d[0:6], k[2:4], k[4:5] + d[6:9], k[5:7], k[7:8] + d[9:10], k[8:12], d[10:11], d[11:]]
            elif ASP == "e":
                per = [k[0:3], k[3:5] + d[0:6], k[5:8] + d[6:7], k[8:12] + d[7:9], d[9:10], d[10:11], d[11:], []]
            else:
                per = [k[0:4], k[4:8], k[8:12] + d[0:6], [], d[6:9], d[9:10], [], d[10:]]
            for i, (m, p) in enumerate(zip(pv_ops(), per)):
                if avw and i == 4:
                    a("s_waitcnt lgkmcnt(8)")
                a(m)
                for x in p:
                    a(x)
            return
        if mode == "n":
            f = kread_ops() + dma_ops()
        elif mode == "k":
            f = kread_ops()
        else:
            k = int(mode[1])
            f = ["buffer_load_dwordx4 %s, v%d, s[8:11], s%d offen offset:%d" % (
                vr(V_Q + 16 * k + 4 * s_, 4), V_LDS, 82 + k, s_ * 1024) for s_ in range(4)]
        interleave(a, pv_ops(), f)

    def bar():
        a("s_waitcnt vmcnt(4) lgkmcnt(0)")
        a("s_barrier")

    def tile_front(qt):
        a("s_lshl_b32 s15, s%d, 2" % qt)
        a("s_add_u32 s15, s15, s23")
        a("s_lshl_b32 s15, s15, 13")
        a("s_add_u32 s15, s15, s12")
        for k in range(2):
            for s in range(4):
                a("buffer_load_dwordx4 %s, v%d, s[8:11], s15 offen offset:%d" % (vr(V_Q + 16 * k + 4 * s, 4), V_LDS, s * 1024))
            a("s_add_u32 s15, s15, 4096")
        a("s_add_u32 s16, s12, 0x%x" % KF)
        a("s_add_u32 s17, s12, 0x%x" % VF)
        a("s_mov_b32 s28, 98304")
        a("s_mov_b32 s78, 0")
        a("s_mov_b32 s79, -1")
        dma()
        dma()
        dma()
        dma()

    if EARLY:
        ring = [98304, 131072, 0, 32768]
        a.eb_pre()
        a("s_lshl_b32 s15, s5, 2")
        a("s_add_u32 s15, s15, s23")
        a("s_lshl_b32 s15, s15, 13")
        a("s_add_u32 s15, s15, s12")
        a("s_add_u32 s16, s12, 0x%x" % KF)
        a("s_add_u32 s17, s12, 0x%x" % VF)
        for st in range(4):
            a("s_add_u32 m0, s27, %d" % ring[st])
            a("s_nop 0")
            for i in range(2):
                a("buffer_load_dwordx4 v%d, s[8:11], s16 offen offset:%d lds" % (V_DMA, i * 1024))
            a("s_add_u32 s16, s16, 16384")
            if st == 0:
                for k in range(2):
                    for s_ in range(4):
                        a("buffer_load_dwordx4 %s, v%d, s[8:11], s15 offen offset:%d" % (vr(V_Q + 16 * k + 4 * s_, 4), V_LDS, s_ * 1024))
                    a("s_add_u32 s15, s15, 4096")
        a.eb_post()
        a.stamp()
        for st in range(4):
            a("s_add_u32 m0, s27, %d" % (ring[st] + 8192))
            a("s_nop 0")
            for i in range(2):
                a("buffer_load_dwordx4 v%d, s[8:11], s17 offen offset:%d lds" % (V_DMA, i * 1024))
            a("s_add_u32 s17, s17, 16384")
        a("s_mov_b32 s28, 65536")
        a("s_mov_b32 s78, 4")
    else:
        tile_front(5)
    a("s_mov_b32 s32, 98304")
    a("s_add_u32 s80, s12, 0x%x" % KF)
    a("s_add_u32 s81, s12, 0x%x" % VF)
    a("s_lshl_b32 s82, s4, 2")
    a("s_add_u32 s82, s82, s23")
    a("s_lshl_b32 s82, s82, 13")
    a("s_add_u32 s82, s82, s12")
    a("s_add_u32 s83, s82, 4096")
    a.label("attn_tile")
    a("s_lshl_b32 s14, s5, 2")
    a("s_add_u32 s14, s14, s23")
    a("s_mov_b32 s30, s14")
    a("s_lshl_b32 s79, s5, 1")
    a("s_add_u32 s79, s79, 2")
    a("s_mov_b32 s33, s32")
    a("v_add_u32 v%d, s32, v%d" % (V_RDV, V_LG))
    a("v_add_u32 v%d, s32, v%d" % (V_RDK, V_LG))
    a("v_mov_b32 v%d, 0" % V_M)
    a("s_mov_b32 s%d, 0xbf800000" % S_THR)
    a("s_mov_b32 s%d, 0xff7fffff" % S_LB)
    for i in range(16):
        a("v_mov_b32 v%d, 0" % (V_C + i))
    a("v_mov_b32 v%d, 0" % V_L)
    for i in range(64):
        a("v_mov_b32 v%d, 0" % (V_O + i))
    a("s_lshl_b32 s19, s5, 1")
    a("s_mov_b32 s18, 0")
    a("s_waitcnt vmcnt(%d)" % (12 if "aps" in EXP else 8))
    a("s_cmp_eq_u32 s24, 0")
    a("s_cbranch_scc1 attn_w2")
    a("s_waitcnt vmcnt(%d)" % (12 if SENT else 4))
    a.label("attn_w2")
    a("s_barrier")
    if "df" in EXP:
        a("global_load_dword v254, v255, s[86:87] sc1")
    if not MST:
        tstamp(0)
    for x in kread_ops():
        a(x)
    a("s_cmp_eq_u32 s24, 0")
    a("s_cbranch_scc1 attn_w3")
    a("s_mov_b32 s78, 2")
    dma()
    dma()
    a.label("attn_w3")
    a("s_waitcnt lgkmcnt(0)")
    for x in qk_ops(0):
        a(x)
    if "aps" in EXP:
        a("s_cmp_lg_u32 s24, 0")
        a("s_cbranch_scc1 attn_w4")
        a("s_waitcnt vmcnt(8)")
        a("s_barrier")
        a.label("attn_w4")
    for x in kread_ops():
        a(x)
    if "noinit" not in EXP:
        a.nop(8)
        S, T = V_S, V_T
        a("s_cmp_lg_u32 s5, 0")
        a("s_cbranch_scc1 attn_im_nomask")
        mask("attn_im", S)
        for x in max_ops(S, T, T + 1):
            a(x)
        a("s_nop 1")
        a("v_permlane32_swap_b32 v%d, v%d" % (T, T + 1))
        a("s_nop 0")
        a("v_max_f32 v%d, v%d, v%d" % (T, T, T + 1))
        a("s_mov_b32 s%d, 0x53800000" % S_THR)
        a("s_mov_b32 s%d, 0" % S_LB)
        a("v_mov_b32 v%d, v%d" % (V_M, T))
        for r in range(16):
            a("v_sub_f32 v%d, v%d, v%d" % (S + r, S + r, T))
        for r in range(16):
            a("v_sub_f32 v%d, 0, v%d" % (V_C + r, T))
    a("s_cmp_eq_u32 s22, 1")
    a("s_cbranch_scc1 attn_g1")
    a("s_cmp_eq_u32 s5, 0")
    a("s_cbranch_scc1 attn_diag0")
    a.label("attn_loop0")
    a.inloop = "og" not in EXP
    for sp in range(2):
        bar()
        a("s_waitcnt lgkmcnt(0)")
        phaseA(sp, False)
        phaseC()
    a.inloop = False
    a("s_cmp_lt_u32 s18, s19")
    a("s_cbranch_scc1 attn_loop0")
    a.label("attn_diag0")
    if not MST:
        tstamp(1)
    for sp in range(2):
        bar()
        a("s_waitcnt lgkmcnt(0)")
        phaseA(sp, True, sp == 1)
        phaseC("q%d" % sp)
    tstamp(2)
    a("s_branch attn_merge")
    a.label("attn_g1")
    bar()
    a("s_waitcnt lgkmcnt(0)")
    a("s_cmp_eq_u32 s5, 0")
    a("s_cbranch_scc1 attn_diag1a")
    dma()
    phaseA(0, False)
    a.label("attn_loop1")
    a.inloop = "og" not in EXP
    bar()
    phaseC()
    a("s_waitcnt lgkmcnt(0)")
    phaseA(1, False)
    a.inloop = False
    a("s_cmp_ge_u32 s18, s19")
    a("s_cbranch_scc1 attn_diag1")
    a.inloop = "og" not in EXP
    bar()
    phaseC()
    a("s_waitcnt lgkmcnt(0)")
    phaseA(0, False)
    a.inloop = False
    a("s_branch attn_loop1")
    a.label("attn_diag1")
    bar()
    phaseC("k")
    a("s_waitcnt lgkmcnt(0)")
    a.label("attn_diag1a")
    phaseA(0, True)
    bar()
    phaseC("q0")
    phaseA(1, True, True)
    phaseC("q1")
    a.label("attn_merge")

    def slot(wreg, vdst):
        a("s_mul_i32 s29, s%d, 11" % wreg)
        a("s_lshr_b32 s29, s29, 5")
        a("s_mul_i32 s84, s29, 3")
        a("s_sub_u32 s84, s%d, s84" % wreg)
        a("s_lshl_b32 s29, s29, 15")
        a("s_add_u32 s29, s29, s28")
        a("s_sub_u32 s85, s29, %d" % LDSZ)
        a("s_cmp_ge_u32 s29, %d" % LDSZ)
        a("s_cselect_b32 s29, s85, s29")
        a("s_mul_i32 s84, s84, 9216")
        a("s_add_u32 s29, s29, s84")
        a("v_add_u32 v%d, s29, v%d" % (vdst, V_LDS))
    slot(6, 12)
    a("s_xor_b32 s31, s6, 4")
    slot(31, 13)
    a("s_waitcnt lgkmcnt(0)")
    a("s_barrier")
    if MST:
        tstamp(0)
    a.nop(4)
    for g in range(2):
        if g == 0:
            a("s_cmp_eq_u32 s22, 1")
            a("s_cbranch_scc1 attn_mg1")
        else:
            a.label("attn_mg1")
        keep, send = V_O + 32 * g, V_O + 32 * (1 - g)
        for i in range(8):
            a("ds_write_b128 v12, %s offset:%d" % (vr(send + 4 * i, 4), i * 1024))
        a("ds_write_b64 v12, v[%d:%d] offset:8192" % (V_M, V_L))
        a("s_waitcnt lgkmcnt(0)")
        a("s_barrier")
        if MST and g == 0:
            tstamp(1)
        a("ds_read_b64 v[14:15], v13 offset:8192")
        for i in range(8):
            a("ds_read_b128 %s, v13 offset:%d" % (vr(V_K + 4 * i, 4), i * 1024))
        a("s_waitcnt lgkmcnt(8)")
        a("v_max_f32 v10, v%d, v14" % V_M)
        a("v_sub_f32 v11, v%d, v10" % V_M)
        a("v_sub_f32 v10, v14, v10")
        a("v_exp_f32 v11, v11")
        a("v_exp_f32 v10, v10")
        a.nop(1)
        a("v_mul_f32 v%d, v%d, v11" % (V_L, V_L))
        a("v_fma_f32 v%d, v15, v10, v%d" % (V_L, V_L))
        a("v_mov_b32 v14, v%d" % V_L)
        a.nop(2)
        a("v_permlane32_swap_b32 v%d, v14" % V_L)
        a.nop(1)
        a("v_add_f32 v14, v14, v%d" % V_L)
        a("v_rcp_f32 v14, v14")
        a.nop(1)
        a("v_mul_f32 v11, v11, v14")
        a("v_mul_f32 v10, v10, v14")
        a("s_mul_i32 s20, s14, %d" % AF_BLK)
        a("s_lshl_b32 s21, s3, 13")
        a("s_add_u32 s20, s20, s21")
        a("s_add_u32 s20, s20, 0x%x" % (AF + 4096 * g))
        a("s_waitcnt lgkmcnt(0)")
        for i in range(32):
            a("v_mul_f32 v%d, v%d, v10" % (V_K + i, V_K + i))
            a("v_fma_f32 v%d, v%d, v11, v%d" % (V_K + i, keep + i, V_K + i))
        for k in range(4):
            d = V_V + k * 4
            for p in range(4):
                x0 = V_K + 8 * k + 2 * p
                a("v_cvt_pk_bf16_f32 v%d, v%d, v%d" % (d + p, x0, x0 + 1))
            a("buffer_store_dwordx4 %s, v%d, s[8:11], s20 offen offset:%d sc1" % (vr(d, 4), V_LDS, k * 1024))
        if g == 0:
            a("s_branch attn_mgdone")
    a.label("attn_mgdone")
    if SENT:
        a("s_cmp_eq_u32 s24, 1")
        a("s_cbranch_scc1 attn_noclr")
        a("s_lshl_b32 s20, s2, 16")
        a("s_lshl_b32 s21, s6, 13")
        a("s_add_u32 s20, s20, s21")
        a("s_add_u32 s20, s20, 0x%x" % PART)
        a("s_add_u32 s21, s20, 4096")
        for k in range(4):
            a("v_mov_b32 v%d, -1" % (V_K + k))
        for k in range(8):
            a("buffer_store_dwordx4 %s, v%d, s[8:11], s%d offen offset:%d sc1" % (vr(V_K, 4), V_LDS, 20 if k < 4 else 21, (k & 3) * 1024))
        a.label("attn_noclr")
    tstamp(3)
    a.nst = 10
    a("s_cmp_eq_u32 s24, 1")
    a("s_cbranch_scc1 attn_fin")
    a("s_mov_b32 s24, 1")
    a("s_mov_b32 s5, s4")
    for r in (80, 81, 82, 83):
        a("s_mov_b32 s%d, 0x10000000" % r)
    a("s_branch attn_tile")
    a.label("attn_fin")
    a.stamp_flush(0)
    a.label("attn_end")
    a("s_branch attn_after")
    for blk in rare:
        a.label(blk[0][:-1])
        for x in blk[1:]:
            a(x)
    a.label("attn_after")
    a.ostamp()
    if "ov" in EXP:
        a("s_waitcnt vmcnt(4) lgkmcnt(0)")
    else:
        a("s_waitcnt vmcnt(0) lgkmcnt(0)")
    if "df" in EXP:
        a("s_mov_b32 s88, 0")
        a.label("df_chk")
        a("v_readfirstlane_b32 s89, v254")
        a("s_cmp_ge_u32 s89, 16")
        a("s_cbranch_scc1 df_ok")
        a("s_add_u32 s88, s88, 1")
        a("s_cmp_gt_u32 s88, 40000")
        a("s_cbranch_scc1 df_ok")
        a("s_sleep 8")
        a("global_load_dword v254, v255, s[86:87] sc1")
        a("s_waitcnt vmcnt(0)")
        a("s_branch df_chk")
        a.label("df_ok")
    a("s_barrier")
    a.phase = 2


def gen_ogemm(a):
    V_AL = 2
    V_TR = 4
    V_DA = 8
    V_DB = 9
    V_ST = 11
    V_F = 16
    V_ACC = 48
    if OFK:
        V_ACC = 64
    NST = 23
    a.label("ogemm_kernel")
    a.stamp()
    a("s_load_dwordx2 s[8:9], s[0:1], 104")
    a("s_load_dwordx2 s[24:25], s[0:1], 40")
    a("s_load_dwordx2 s[26:27], s[0:1], 72")
    a("v_lshrrev_b32 v1, 6, v0")
    a("s_nop 0")
    a("v_readfirstlane_b32 s6, v1")
    a("v_and_b32 v1, 63, v0")
    a("s_lshr_b32 s3, s2, 4")
    a("s_and_b32 s4, s2, 1")
    a("s_lshl_b32 s4, s4, 1")
    a("s_bfe_u32 s5, s2, 0x10003")
    a("s_or_b32 s4, s4, s5")
    a("s_bfe_u32 s5, s2, 0x20001")
    if "same" in EXP:
        a("s_mov_b32 s3, 0")
        a("s_mov_b32 s4, 0")
        a("s_mov_b32 s5, 0")
    if "map1" not in EXP:
        a("s_and_b32 s3, s2, 1")
        a("s_lshl_b32 s3, s3, 3")
        a("s_bfe_u32 s4, s2, 0x30003")
        a("s_or_b32 s3, s3, s4")
        a("s_lshr_b32 s4, s2, 6")
    a("s_mov_b32 s10, 0x10000000")
    a("s_mov_b32 s11, 0x20000")
    a("s_mov_b32 s15, 0x20000")
    a("s_lshr_b32 s30, s6, 2")
    a("s_lshr_b32 s31, s6, 1")
    a("s_and_b32 s31, s31, 1")
    a("s_and_b32 s32, s6, 1")
    a("v_lshlrev_b32 v%d, 4, v1" % V_ST)
    a("s_lshl_b32 s33, s31, 13")
    a("s_lshl_b32 s34, s30, %d" % (12 if OFK else 11))
    a("s_add_u32 s33, s33, s34")
    a("v_add_u32 v%d, s33, v%d" % (V_AL, V_ST))
    a("v_add_u32 v%d, 0x10000, v%d" % (V_AL + 1, V_AL))
    a("v_bfe_u32 v12, v1, 2, 2")
    a("v_lshrrev_b32 v13, 5, v1")
    a("v_lshl_add_u32 v13, v13, 2, v12")
    a("v_lshlrev_b32 v13, 8, v13")
    a("v_bfe_u32 v14, v1, 4, 1")
    a("v_lshl_add_u32 v13, v14, 5, v13")
    a("v_and_b32 v14, 3, v1")
    a("v_lshl_add_u32 v13, v14, 3, v13")
    if OFK:
        a("s_movk_i32 s33, 0x4000")
    else:
        a("s_lshl_b32 s33, s30, 13")
        a("s_add_u32 s33, s33, 16384")
    a("v_add_u32 v13, s33, v13")
    a("v_lshlrev_b32 v12, 6, v12")
    a("s_lshl_b32 s34, s32, 7")
    for ntl in range(2):
        a("s_add_u32 s35, s34, %d" % (ntl << 6))
        a("v_xor_b32 v14, s35, v12")
        a("v_add_u32 v%d, v13, v14" % (V_TR + ntl))
        a("v_add_u32 v%d, 0x10000, v%d" % (V_TR + 2 + ntl, V_TR + ntl))
    a("s_lshr_b32 s33, s6, 1")
    a("s_lshl_b32 s34, s3, 2")
    a("s_add_u32 s34, s34, s33")
    a("s_mul_i32 s34, s34, %d" % AF_BLK)
    a("s_lshl_b32 s35, s32, 11")
    a("s_add_u32 s34, s34, s35")
    a("s_add_u32 s34, s34, 0x%x" % AF)
    a("v_add_u32 v%d, s34, v%d" % (V_DA, V_ST))
    a("s_lshl_b32 s36, s6, 11")
    a("v_lshrrev_b32 v12, 4, v1")
    a("v_bfe_u32 v13, v1, 2, 2")
    a("v_xor_b32 v13, v13, v12")
    a("v_lshlrev_b32 v13, 6, v13")
    a("v_and_b32 v14, 3, v1")
    a("v_lshl_add_u32 v13, v14, 4, v13")
    a("s_lshl_b32 s33, s6, 3")
    a("v_add_u32 v12, s33, v12")
    a("v_lshlrev_b32 v12, 10, v12")
    a("v_add_u32 v12, v12, v13")
    a("s_lshl_b32 s33, s4, 8")
    a("v_add_u32 v%d, s33, v12" % V_DB)
    a("v_add_u32 v%d, 3072, v%d" % (V_DB + 1, V_DB))
    a("s_mov_b32 s42, 0x1c0000")
    a("s_mul_i32 s37, s5, 7")
    a("s_add_u32 s37, s37, 64")
    a("s_lshl_b32 s44, s5, 4")
    a("s_mov_b32 s43, 0")
    a("s_waitcnt lgkmcnt(0)")

    def dma_parts(buf):
        p0 = ["s_cmp_lt_u32 s37, 64",
              "s_cselect_b32 s12, s24, s26",
              "s_cselect_b32 s13, s25, s27",
              "s_cselect_b32 s14, 0x400000, s42",
              "s_cselect_b32 s39, 0, 64",
              "s_sub_u32 s39, s37, s39",
              "s_lshl_b32 s39, s39, 16",
              "s_lshl_b32 s40, s37, 12",
              "s_cmp_lt_u32 s43, %d" % NST,
              "s_cselect_b32 s14, s14, 0",
              "s_cselect_b32 s40, s40, 0x10000000",
              "s_add_u32 s37, s37, 1",
              "s_add_u32 s43, s43, 1",
              "s_cmp_eq_u32 s43, 7",
              "s_cselect_b32 s37, s44, s37",
              "s_add_u32 m0, s36, %d" % (buf * 32768),
              "s_nop 0",
              "buffer_load_dwordx4 v%d, s[8:11], s40 offen offset:0 lds" % V_DA]
        p1 = ["buffer_load_dwordx4 v%d, s[8:11], s40 offen offset:1024 lds" % V_DA]
        p2 = ["s_add_u32 m0, s36, %d" % (buf * 32768 + 16384),
              "s_nop 0",
              "buffer_load_dwordx4 v%d, s[12:15], s39 offen offset:0 lds" % V_DB]
        p3 = ["buffer_load_dwordx4 v%d, s[12:15], s39 offen offset:1024 lds" % (V_DB + 1)]
        return [p0, p1, p2, p3]

    def dma(buf):
        for p in dma_parts(buf):
            for x in p:
                a(x)

    def reads(buf, sl, st):
        hi = 1 if buf >= 2 else 0
        bo = (buf & 1) * 32768
        f = V_F + st * 16
        for mbl in range(2):
            a("ds_read_b128 %s, v%d offset:%d" % (vr(f + 4 * mbl, 4), V_AL + hi, bo + mbl * 4096 + sl * 1024))
        for ntl in range(2):
            for ird in range(2):
                a("ds_read_b64_tr_b16 %s, v%d offset:%d" % (
                    vr(f + 8 + 4 * ntl + 2 * ird, 2), V_TR + 2 * hi + ntl, bo + sl * 4096 + ird * 2048))

    def mfmas(st, first, ins=None):
        f = V_F + st * 16
        for mbl in range(2):
            for ntl in range(2):
                acc = vr(V_ACC + 16 * (mbl * 2 + ntl), 16)
                c = "0" if first else acc
                a("v_mfma_f32_32x32x16_bf16 %s, %s, %s, %s" % (acc, vr(f + 8 + 4 * ntl, 4), vr(f + 4 * mbl, 4), c))
                for x in (ins or {}).get(mbl * 2 + ntl, []):
                    a(x)

    dma(0)
    dma(1)
    dma(2)
    for i in range(32 if OFK else 64):
        a("v_mov_b32 v%d, 0" % (V_ACC + i))
    def owg():
        a("s_lshl_b32 s49, s3, 2")
        a("s_add_u32 s49, s49, s4")
        a("s_lshl_b32 s45, s49, 4")
        a("s_lshl_b32 s46, s5, 2")
        a("s_add_u32 s45, s45, s46")

    if "xh" in EXP:
        owg()
        reduce_pre(a, 1)
        a("s_waitcnt lgkmcnt(0)")
    if "ov" in EXP:
        a("s_waitcnt vmcnt(12)")
        a("s_barrier")
    a("s_cmp_lg_u32 s6, 0")
    a("s_cbranch_scc1 ogemm_nosig")
    a.gb_signal(1, "ov" in EXP)
    a.label("ogemm_nosig")
    a("s_mov_b32 s41, 0")
    a("s_waitcnt vmcnt(8)")
    a("s_barrier")
    a.stamp()
    if OIL:
        pass
    else:
        reads(0, 0, 0)

    def rd_ops(buf, sl, st):
        hi = 1 if buf >= 2 else 0
        bo = (buf & 1) * 32768
        f = V_F + st * 16
        A = ["ds_read_b128 %s, v%d offset:%d" % (vr(f + 4 * mbl, 4), V_AL + hi, bo + mbl * 4096 + sl * 1024) for mbl in range(2)]
        B = [["ds_read_b64_tr_b16 %s, v%d offset:%d" % (
            vr(f + 8 + 4 * ntl + 2 * ird, 2), V_TR + 2 * hi + ntl, bo + sl * 4096 + ird * 2048) for ird in range(2)] for ntl in range(2)]
        return [[A[0]] + B[0], B[1], [A[1]], []]

    def body_il(buf, hook, check):
        a("s_waitcnt vmcnt(4)")
        a("s_barrier")
        P = dma_parts((buf + 3) & 3)
        W = ["s_waitcnt lgkmcnt(4)", "s_waitcnt lgkmcnt(5)"]
        R = rd_ops(buf, 1, 1)
        D = [[], [], [], []] if hook else [P[0], [], P[1], []]
        a("s_waitcnt lgkmcnt(3)")
        mfmas(0, False, {0: R[0] + D[0] + W[0:1], 1: R[1] + W[1:2], 2: R[2] + D[2]})
        if hook:
            hook()
        R = rd_ops((buf + 1) & 3, 0, 0)
        D = P if hook else [P[2], [], P[3], []]
        a("s_waitcnt lgkmcnt(3)")
        mfmas(1, False, {0: R[0] + D[0] + W[0:1], 1: R[1] + D[1] + W[1:2], 2: R[2] + D[2], 3: D[3]})
        a("s_add_u32 s41, s41, 1")
        if check:
            a("s_cmp_ge_u32 s41, %d" % NST)
            a("s_cbranch_scc1 ogemm_done")

    def rd_fk(buf, s):
        hi = 1 if buf >= 2 else 0
        bo = (buf & 1) * 32768
        f = V_F + s * 12
        A = "ds_read_b128 %s, v%d offset:%d" % (vr(f, 4), V_AL + hi, bo + s * 1024)
        B = [["ds_read_b64_tr_b16 %s, v%d offset:%d" % (
            vr(f + 4 + 4 * ntl + 2 * ird, 2), V_TR + 2 * hi + ntl, bo + s * 4096 + ird * 2048) for ird in range(2)] for ntl in range(2)]
        return [[A] + B[0], B[1]]

    def body_fk(buf, hook, check):
        a("s_waitcnt vmcnt(4)")
        a("s_barrier")
        P = dma_parts((buf + 3) & 3)
        for s in range(4):
            if hook and s == 2:
                hook()
            R = rd_fk(buf, s + 2) if s < 2 else rd_fk((buf + 1) & 3, s - 2)
            f = V_F + s * 12
            for ntl in range(2):
                a("s_waitcnt lgkmcnt(%d)" % (7 + ntl))
                acc = vr(V_ACC + 16 * ntl, 16)
                a("v_mfma_f32_32x32x16_bf16 %s, %s, %s, %s" % (acc, vr(f + 4 + 4 * ntl, 4), vr(f, 4), acc))
                for x in R[ntl]:
                    a(x)
                if hook:
                    D = P[2 * (s - 2) + ntl] if s >= 2 else []
                else:
                    D = P[s] if ntl == 0 else []
                for x in D:
                    a(x)
        a("s_add_u32 s41, s41, 1")
        if check:
            a("s_cmp_ge_u32 s41, %d" % NST)
            a("s_cbranch_scc1 ogemm_done")

    def body(buf, hook=None, check=True):
        if OFK:
            return body_fk(buf, hook, check)
        if OIL:
            return body_il(buf, hook, check)
        a("s_waitcnt vmcnt(4)")
        a("s_barrier")
        reads(buf, 1, 1)
        a("s_waitcnt lgkmcnt(6)")
        OSP = os.environ.get("OSP", "")
        P = dma_parts((buf + 3) & 3)
        if OSP == "a" and not hook:
            mfmas(0, False, {0: P[0], 2: P[1]})
            reads((buf + 1) & 3, 0, 0)
            a("s_waitcnt lgkmcnt(6)")
            mfmas(1, False, {0: P[2], 2: P[3]})
        elif OSP == "d" and not hook:
            mfmas(0, False, {1: P[0], 3: P[1]})
            reads((buf + 1) & 3, 0, 0)
            a("s_waitcnt lgkmcnt(6)")
            mfmas(1, False, {1: P[2], 3: P[3]})
        elif OSP == "b" and not hook:
            mfmas(0, False, {0: P[0], 1: P[1], 2: P[2], 3: P[3]})
            reads((buf + 1) & 3, 0, 0)
            a("s_waitcnt lgkmcnt(6)")
            mfmas(1, False)
        elif OSP:
            mfmas(0, False)
            reads((buf + 1) & 3, 0, 0)
            if hook:
                hook()
            a("s_waitcnt lgkmcnt(6)")
            mfmas(1, False, {0: P[0], 1: P[1], 2: P[2], 3: P[3]})
        else:
            mfmas(0, False)
            reads((buf + 1) & 3, 0, 0)
            if hook:
                hook()
            dma((buf + 3) & 3)
            a("s_waitcnt lgkmcnt(6)")
            mfmas(1, False)
        a("s_add_u32 s41, s41, 1")
        if check:
            a("s_cmp_ge_u32 s41, %d" % NST)
            a("s_cbranch_scc1 ogemm_done")

    def pollhook():
        if "xh" in EXP:
            reduce_pre(a, 2)
        a("s_cmp_lg_u32 s6, 0")
        a("s_cbranch_scc1 ogemm_nopoll")
        a.gb_poll(1)
        a.label("ogemm_nopoll")
        a("s_barrier")
        a.stamp()

    if OFK:
        for x in sum(rd_fk(0, 0) + rd_fk(0, 1), []):
            a(x)
    elif OIL:
        for x in sum(rd_ops(0, 0, 0), []):
            a(x)

    def sighook():
        a("s_cmp_lg_u32 s6, 0")
        a("s_cbranch_scc1 ogemm_nosig2")
        a.gb_signal2(1)
        a.label("ogemm_nosig2")

    for it in range(8):
        body(it & 3, pollhook if it == 4 else (sighook if it == 1 and "ov" in EXP else None), False)
    a.label("ogemm_loop")
    a.inloop = "og" in EXP
    for buf in range(4):
        body(buf)
    a("s_branch ogemm_loop")
    a.inloop = False
    a.label("ogemm_done")
    a.ostamp()
    a.stamp()
    if not OFK:
        a("s_waitcnt vmcnt(0) lgkmcnt(0)")
        a("s_barrier")
    a.nop(12)
    a("s_and_b32 s33, s6, 3")
    a("s_lshl_b32 s33, s33, 14")
    a("s_lshl_b32 s34, s6, 13")
    a("v_add_u32 v12, s34, v%d" % V_ST)
    a("s_xor_b32 s34, s34, 0x8000")
    a("v_add_u32 v13, s34, v%d" % V_ST)
    a("s_lshl_b32 s34, s3, 2")
    a("s_add_u32 s34, s34, s4")
    a("s_lshl_b32 s34, s34, 16")
    a("s_add_u32 s34, s34, s33")
    a("s_lshl_b32 s35, s5, 22")
    a("s_add_u32 s34, s34, s35")
    a("s_add_u32 s34, s34, 0x%x" % PART)
    if OFK:
        a("s_lshl_b32 s35, s30, %d" % (12 if PB else 13))
        a("s_add_u32 s34, s34, s35")
        a("s_add_u32 s35, s34, 4096")
        a.nop(4)
        if "own" in EXP:
            a("s_and_b32 s46, s6, 3")
            a("s_cmp_eq_u32 s46, s5")
            a("s_cbranch_scc1 own_lds")
            if PB:
                a("s_waitcnt lgkmcnt(0)")
        for i in range(4 if PB else 0):
            for k in range(4):
                a("v_cvt_pk_bf16_f32 v%d, v%d, v%d" % (V_F + 4 * i + k, V_ACC + 8 * i + 2 * k, V_ACC + 8 * i + 2 * k + 1))
            a("buffer_store_dwordx4 %s, v%d, s[8:11], s34 offen offset:%d sc1" % (vr(V_F + 4 * i, 4), V_ST, i * 1024))
        for i in range(0 if PB else 8):
            a("buffer_store_dwordx4 %s, v%d, s[8:11], s%d offen offset:%d sc1" % (vr(V_ACC + 4 * i, 4), V_ST, 34 if i < 4 else 35, (i & 3) * 1024))
        if "own" in EXP:
            a("s_branch ogemm_end")
            a.label("own_lds")
            a("s_lshl_b32 s46, s30, 13")
            a("s_add_u32 s46, s46, 0x20000")
            a("v_add_u32 v12, s46, v%d" % V_ST)
            for i in range(8):
                a("ds_write_b128 v12, %s offset:%d" % (vr(V_ACC + 4 * i, 4), i * 1024))
    else:
        a("s_cmp_eq_u32 s30, 0")
        a("s_cbranch_scc1 ogemm_g0")
    for g in (() if OFK else (1, 0)):
        if g == 0:
            a.label("ogemm_g0")
        keep, send = V_ACC + 32 * g, V_ACC + 32 * (1 - g)
        for i in range(8):
            a("ds_write_b128 v12, %s offset:%d" % (vr(send + 4 * i, 4), i * 1024))
        a("s_waitcnt lgkmcnt(0)")
        a("s_barrier")
        for i in range(8):
            a("ds_read_b128 %s, v13 offset:%d" % (vr(112 + 4 * i, 4), i * 1024))
        a("s_add_u32 s34, s34, %d" % (8192 * g))
        for i in range(8):
            a("s_waitcnt lgkmcnt(%d)" % (7 - i))
            for k in range(4):
                a("v_add_f32 v%d, v%d, v%d" % (keep + 4 * i + k, keep + 4 * i + k, 112 + 4 * i + k))
            if i == 4:
                a("s_add_u32 s34, s34, 4096")
            a("buffer_store_dwordx4 %s, v%d, s[8:11], s34 offen offset:%d sc1" % (vr(keep + 4 * i, 4), V_ST, (i & 3) * 1024))
        if g == 1:
            a("s_branch ogemm_end")
    a.stamp()
    a.stamp_flush(0)
    a.label("ogemm_end")
    if "xh" not in EXP:
        owg()
        reduce_pre(a)
    if SENT:
        a.phase = 3
        return
    a("s_waitcnt vmcnt(0) lgkmcnt(0)")
    a("s_barrier")
    a("s_cmp_lg_u32 s6, 0")
    a("s_cbranch_scc1 tb_wait")
    a("s_add_u32 s46, s49, 32")
    a("s_lshl_b32 s46, s46, 12")
    a("s_add_u32 s46, s46, 0x%x" % CTR)
    a("s_mov_b64 exec, 1")
    a("v_mov_b32 v12, 1")
    a("v_mov_b32 v13, 0")
    a("buffer_atomic_add v12, v13, s[8:11], s46 offen sc1")
    a("s_mov_b32 s47, 0")
    a.label("tb_loop")
    a("buffer_load_dword v14, v13, s[8:11], s46 offen sc1")
    a("s_waitcnt vmcnt(0)")
    a("v_readfirstlane_b32 s48, v14")
    a("s_cmp_ge_u32 s48, 4")
    a("s_cbranch_scc1 tb_done")
    a("s_add_u32 s47, s47, 1")
    a("s_cmp_gt_u32 s47, 40000")
    a("s_cbranch_scc1 tb_done")
    a("s_sleep 4")
    a("s_branch tb_loop")
    a.label("tb_done")
    a("s_mov_b64 exec, -1")
    a.label("tb_wait")
    a("s_barrier")
    a.phase = 3


RB = 176


def reduce_pre(a, part=None):
    if part == 2:
        for j in range(2):
            B = RB + 4 + 32 * j
            a("buffer_load_dwordx2 %s, v%d, s[52:55], 0 offen" % (vr(B + 16, 2), B + 26))
            a("buffer_load_dwordx2 %s, v%d, s[56:59], 0 offen" % (vr(B + 18, 2), B + 27))
        if "tw" in EXP:
            a("buffer_load_dword v254, v%d, s[60:63], 0 offen" % (RB + 4 + 26))
            a("s_lshl_b32 s46, s49, 16")
            a("s_lshl_b32 s47, s5, 22")
            a("s_add_u32 s46, s46, s47")
            a("s_add_u32 s46, s46, 0x%x" % PART)
            a("buffer_load_dword v254, v11, s[8:11], s46 offen")
        return
    a("s_load_dwordx2 s[52:53], s[0:1], 0")
    a("s_load_dwordx2 s[56:57], s[0:1], 80")
    a("s_load_dwordx2 s[60:61], s[0:1], 88")
    a("s_mov_b32 s54, 0x200000")
    a("s_mov_b32 s55, 0x20000")
    a("s_mov_b32 s58, 1024")
    a("s_mov_b32 s59, 0x20000")
    a("s_mov_b32 s62, 0x200000")
    a("s_mov_b32 s63, 0x20000")
    T = RB + 70
    a("s_lshr_b32 s23, s6, 2")
    a("v_and_b32 v%d, 255, v0" % T)
    a("s_add_u32 s50, s45, s23")
    a("v_lshlrev_b32 v%d, 4, v%d" % (RB + 1, T))
    if not part:
        a("s_waitcnt lgkmcnt(0)")
    for j in range(2):
        B = RB + 4 + 32 * j
        v2, v3 = RB + 2, B + 27
        if PB:
            a("s_lshr_b32 s51, s6, 1")
            a("s_add_u32 s51, s51, s45")
        else:
            a("s_add_u32 s51, s50, %d" % (2 * j))
        a("s_lshr_b32 s64, s51, 4")
        a("s_lshr_b32 s65, s51, 2")
        a("s_and_b32 s65, s65, 3")
        a("s_and_b32 s66, s51, 3")
        a("s_lshr_b32 s16, s64, 2")
        a("s_and_b32 s17, s64, 3")
        a("s_lshr_b32 s18, s65, 1")
        a("s_and_b32 s19, s65, 1")
        a("s_lshr_b32 s28, s66, 1")
        a("s_and_b32 s29, s66, 1")
        a("s_lshl_b32 s20, s16, 2")
        a("s_lshl_b32 s21, s18, 1")
        a("s_add_u32 s20, s20, s21")
        a("s_add_u32 s20, s20, s28")
        a("s_lshl_b32 s20, s20, 15")
        a("s_lshl_b32 s21, s17, 2")
        a("s_lshl_b32 s22, s19, 1")
        a("s_add_u32 s21, s21, s22")
        a("s_add_u32 s21, s21, s29")
        a("s_lshl_b32 s21, s21, 6")
        a("v_and_b32 v%d, 31, v%d" % (v2, T))
        a("v_lshlrev_b32 v%d, 10, v%d" % (v2, v2))
        if PB:
            a("s_and_b32 s22, s6, 1")
            a("s_lshl_b32 s22, s22, 5")
            a("s_add_u32 s22, s22, %d" % (16 * j))
            a("v_mov_b32 v%d, s22" % v3)
        else:
            a("v_lshrrev_b32 v%d, 6, v%d" % (v3, T))
            a("v_lshlrev_b32 v%d, 4, v%d" % (v3, v3))
        a("v_bfe_u32 v%d, v%d, 5, 1" % (B + 16, T))
        a("v_lshl_add_u32 v%d, v%d, 3, v%d" % (v3, B + 16, v3))
        a("v_add_u32 v%d, s21, v%d" % (v3, v3))
        a("v_add_u32 v%d, v%d, v%d" % (v2, v2, v3))
        a("v_add_u32 v%d, s20, v%d" % (B + 26, v2))
        if not part:
            a("buffer_load_dwordx2 %s, v%d, s[52:55], 0 offen" % (vr(B + 16, 2), B + 26))
            a("buffer_load_dwordx2 %s, v%d, s[56:59], 0 offen" % (vr(B + 18, 2), v3))


def gen_reduce(a):
    a.label("reduce_kernel")
    a.ostamp()
    a.stamp()
    if SENT:
        a("s_mov_b32 s47, 0")
        a.label("red_poll")
    OWN = "own" in EXP
    if PB:
        B0, B1 = RB + 4, RB + 36
        a("s_lshl_b32 s51, s45, 12")
        a("s_lshl_b32 s47, s6, 10")
        a("s_add_u32 s51, s51, s47")
        a("s_add_u32 s51, s51, 0x%x" % PART)
        for p in range(1, 4):
            a("s_add_u32 s46, s5, %d" % p)
            a("s_and_b32 s46, s46, 3")
            a("s_lshl_b32 s46, s46, 22")
            a("s_add_u32 s46, s46, s51")
            a("buffer_load_dwordx4 %s, v11, s[8:11], s46 offen" % vr(B0 + 4 * p, 4))
        a("s_lshl_b32 s46, s6, 11")
        a("s_add_u32 s46, s46, 0x20000")
        a("v_add_u32 v%d, s46, v11" % (RB + 2))
        for j in range(2):
            a("ds_read_b128 %s, v%d offset:%d" % (vr(RB + 4 + 32 * j, 4), RB + 2, j * 1024))
    for j in range(2 if OWN and not PB else 0):
        B = RB + 4 + 32 * j
        a("s_lshl_b32 s51, s50, 12")
        a("s_add_u32 s51, s51, 0x%x" % (PART + j * 8192))
        for p in range(1, 4):
            a("s_add_u32 s46, s5, %d" % p)
            a("s_and_b32 s46, s46, 3")
            a("s_lshl_b32 s46, s46, 22")
            a("s_add_u32 s46, s46, s51")
            a("buffer_load_dwordx4 %s, v%d, s[8:11], s46 offen" % (vr(B + 4 * p, 4), RB + 1))
    if OWN and not PB:
        a("s_lshl_b32 s46, s23, 12")
        a("s_add_u32 s46, s46, 0x20000")
        a("v_add_u32 v%d, s46, v%d" % (RB + 2, RB + 1))
        for j in range(2):
            a("ds_read_b128 %s, v%d offset:%d" % (vr(RB + 4 + 32 * j, 4), RB + 2, j * 8192))
    for j in range(0 if OWN else 2):
        B = RB + 4 + 32 * j
        a("s_lshl_b32 s51, s50, 12")
        a("s_add_u32 s51, s51, 0x%x" % (PART + j * 8192))
        for p in range(4):
            a("buffer_load_dwordx4 %s, v%d, s[8:11], s51 offen%s" % (vr(B + 4 * p, 4), RB + 1, " sc1" if SENT else ""))
            if p < 3:
                a("s_add_u32 s51, s51, 0x400000")
    if SENT:
        for j in range(2):
            B = RB + 4 + 32 * j
            a("s_waitcnt vmcnt(%d)" % (4 - 4 * j))
            a("v_max3_u32 v%d, v%d, v%d, v%d" % (248 + j, B, B + 1, B + 2))
            for i in range(6):
                a("v_max3_u32 v%d, v%d, v%d, v%d" % (248 + j, 248 + j, B + 3 + 2 * i, B + 4 + 2 * i))
            a("v_max_u32 v%d, v%d, v%d" % (248 + j, 248 + j, B + 15))
        a("v_max_u32 v248, v248, v249")
        a("v_cmp_eq_u32 vcc, -1, v248")
        a("s_nop 1")
        a("s_cbranch_vccz red_ok")
        a("s_add_u32 s47, s47, 1")
        a("s_cmp_gt_u32 s47, 20000")
        a("s_cbranch_scc1 red_ok")
        a("s_sleep %s" % os.environ.get("RSL", "4"))
        a("s_branch red_poll")
        a.label("red_ok")
    for j in range(2):
        B = RB + 4 + 32 * j
        for p in range(2):
            a("v_lshlrev_b32 v%d, 16, v%d" % (B + 20, B + 16 + p))
            a("v_and_b32 v%d, 0xffff0000, v%d" % (B + 21, B + 16 + p))
            a("v_lshlrev_b32 v%d, 16, v%d" % (B + 22, B + 18 + p))
            a("v_and_b32 v%d, 0xffff0000, v%d" % (B + 23, B + 18 + p))
            a("v_add_f32 v%d, v%d, v%d" % (B + 28 + 2 * p, B + 20, B + 22))
            a("v_add_f32 v%d, v%d, v%d" % (B + 29 + 2 * p, B + 21, B + 23))
    if PB:
        a("s_waitcnt lgkmcnt(0)")
        for j in range(2):
            B = RB + 4 + 32 * j
            for i in range(4):
                a("v_add_f32 v%d, v%d, v%d" % (B + i, B + i, B + 28 + i))
        for p in range(1, 4):
            a("s_waitcnt vmcnt(%d)" % (3 - p))
            for j in range(2):
                B = RB + 4 + 32 * j
                for h in range(2):
                    src = B0 + 4 * p + 2 * j + h
                    t = B1 + 4 + 4 * j + 2 * h
                    a("v_lshlrev_b32 v%d, 16, v%d" % (t, src))
                    a("v_and_b32 v%d, 0xffff0000, v%d" % (t + 1, src))
                    a("v_add_f32 v%d, v%d, v%d" % (B + 2 * h, B + 2 * h, t))
                    a("v_add_f32 v%d, v%d, v%d" % (B + 2 * h + 1, B + 2 * h + 1, t + 1))
        for j in range(2):
            B = RB + 4 + 32 * j
            for p in range(2):
                a("v_cvt_pk_bf16_f32 v%d, v%d, v%d" % (B + 24 + p, B + 2 * p, B + 1 + 2 * p))
            a("buffer_store_dwordx2 %s, v%d, s[60:63], 0 offen" % (vr(B + 24, 2), B + 26))
    for j in range(0 if PB else 2):
        B = RB + 4 + 32 * j
        if OWN:
            a("s_waitcnt vmcnt(%d) lgkmcnt(0)" % (3 - 2 * j))
        else:
            a("s_waitcnt vmcnt(%d)" % (4 - 3 * j))
        for i in range(4):
            a("v_add_f32 v%d, v%d, v%d" % (B + i, B + i, B + 4 + i))
            a("v_add_f32 v%d, v%d, v%d" % (B + 8 + i, B + 8 + i, B + 12 + i))
        for i in range(4):
            a("v_add_f32 v%d, v%d, v%d" % (B + i, B + i, B + 8 + i))
        for i in range(4):
            a("v_add_f32 v%d, v%d, v%d" % (B + i, B + i, B + 28 + i))
        for p in range(2):
            a("v_cvt_pk_bf16_f32 v%d, v%d, v%d" % (B + 24 + p, B + 2 * p, B + 1 + 2 * p))
        a("buffer_store_dwordx2 %s, v%d, s[60:63], 0 offen" % (vr(B + 24, 2), B + 26))
    a.stamp()
    a.stamp_flush(0)
    if os.environ.get("STAMP"):
        a("s_waitcnt vmcnt(0)")
        a("s_memrealtime s[18:19]")
        a("s_load_dwordx2 s[8:9], s[0:1], 96")
        a("s_mov_b32 s10, 65536")
        a("s_mov_b32 s11, 0x20000")
        a("s_lshl_b32 s20, s2, 4")
        a("s_add_u32 s20, s20, %d" % (4096 + 4096 * 3))
        a("s_waitcnt lgkmcnt(0)")
        a("s_mov_b64 exec, 1")
        a("v_mov_b32 v4, s18")
        a("v_mov_b32 v5, s93")
        a("v_mov_b32 v6, s18")
        a("v_mov_b32 v7, s92")
        a("v_mov_b32 v2, 0")
        a("buffer_store_dwordx4 v[4:7], v2, s[8:11], s20 offen")
    if os.environ.get("OST"):
        a("s_waitcnt vmcnt(0)")
    a.ostamp(True)
    a("s_endpgm")
```

```python
from gen import vr, sr, QF, KF, VF, AF, AF_BLK, PART, CTR, EARLY
import math
import os
EXP = os.environ.get("EXP", "")
SENT = "sent" in EXP
MST = os.environ.get("MST")
AVW = os.environ.get("AVW")
OIL = os.environ.get("OIL")
OFK = os.environ.get("OFK")
PB = "pb" in EXP
SN2 = "sn2" in EXP

SCALE_LOG2E = (128 ** -0.5) * math.log2(math.e)


def f32hex(x):
    import struct
    return "0x%08x" % struct.unpack("<I", struct.pack("<f", x))[0]


def interleave(a, mf, fl):
    n = len(mf)
    pos = 0
    for i in range(n):
        a(mf[i])
        end = (len(fl) * (i + 1)) // n
        while pos < end:
            a(fl[pos])
            pos += 1


def gen_attn(a):
    V_LDS = 2
    V_DMA = 3
    V_LG = 4
    V_NEG = 5
    V_RDV = 6
    V_RDK = 7
    V_M = 8
    V_L = 9
    V_T = 10
    V_Q = 16
    V_O = 48
    V_S = 112
    V_P = 144
    V_K = 152
    V_V = 184
    S_MASK = 36
    S_LB = 35
    S_THR = 34
    V_C = 216
    V_E = 232
    NBUF = 5
    LDSZ = NBUF * 32768

    a.label("attn_kernel")
    if not EARLY:
        a.stamp()
    a("s_load_dwordx2 s[8:9], s[0:1], 104")
    if "df" in EXP:
        a("s_load_dwordx2 s[86:87], s[0:1], 96")
        a("v_mov_b32 v255, 0")
    a("v_lshrrev_b32 v1, 6, v0")
    a("s_nop 0")
    a("v_readfirstlane_b32 s6, v1")
    a("v_and_b32 v1, 63, v0")
    a("s_lshr_b32 s22, s6, 2")
    a("s_and_b32 s23, s6, 3")
    a("s_and_b32 s3, s2, 7")
    a("s_lshl_b32 s3, s3, 2")
    a("s_lshr_b32 s4, s2, 3")
    a("s_and_b32 s4, s4, 3")
    a("s_add_u32 s3, s3, s4")
    a("s_lshr_b32 s4, s2, 5")
    a("s_sub_u32 s5, 15, s4")
    a("s_mov_b32 s24, 0")
    a("s_mov_b32 s77, 1000000")
    a("s_mov_b32 s10, 0x10000000")
    a("s_mov_b32 s11, 0x20000")
    a("s_lshl_b32 s12, s3, 19")
    a("v_lshlrev_b32 v%d, 4, v1" % V_LDS)
    a("s_lshl_b32 s13, s23, 11")
    a("s_lshl_b32 s25, s22, 13")
    a("s_add_u32 s25, s25, s13")
    a("v_add_u32 v%d, s25, v%d" % (V_DMA, V_LDS))
    a("s_lshl_b32 s26, s22, 14")
    a("v_add_u32 v%d, s26, v%d" % (V_LG, V_LDS))
    a("s_add_u32 s27, s26, s13")
    a("v_and_b32 v12, 31, v1")
    a("v_lshrrev_b32 v13, 5, v1")
    a("v_lshlrev_b32 v13, 2, v13")
    a("v_sub_u32 v12, v12, v13")
    for r in range(16):
        kl = 8 * (r >> 2) + (r & 3)
        a("v_cmp_le_i32 %s, %d, v12" % (sr(S_MASK + 2 * r, 2), kl))
    a("v_mov_b32 v%d, 0xf149f2ca" % V_NEG)
    a("s_waitcnt lgkmcnt(0)")

    def bump(sreg):
        return ["s_add_u32 s%d, s%d, 32768" % (sreg, sreg),
                "s_cmp_ge_u32 s%d, %d" % (sreg, LDSZ),
                "s_cselect_b32 s%d, 0, s%d" % (sreg, sreg)]

    def dma_ops():
        ops = []
        ops.append("s_add_u32 m0, s27, s28")
        ops.append("s_cmp_eq_u32 s78, s79")
        ops.append("s_cselect_b32 s16, s80, s16")
        ops.append("s_cselect_b32 s17, s81, s17")
        ops.append("s_add_u32 s78, s78, 1")
        for i in range(2):
            ops.append("buffer_load_dwordx4 v%d, s[8:11], s16 offen offset:%d lds" % (V_DMA, i * 1024))
        ops.append("s_add_u32 m0, m0, 8192")
        ops.append("s_add_u32 s16, s16, 16384")
        for i in range(2):
            ops.append("buffer_load_dwordx4 v%d, s[8:11], s17 offen offset:%d lds" % (V_DMA, i * 1024))
        ops.append("s_add_u32 s17, s17, 16384")
        ops += bump(28)
        return ops

    def dma():
        for x in dma_ops():
            a(x)

    def tstamp(k):
        if not os.environ.get("STAMP"):
            return
        a("s_memtime s[98:99]")
        a("s_waitcnt lgkmcnt(0)")
        a("s_cmp_eq_u32 s24, 0")
        a("s_cselect_b32 s%d, s98, s%d" % (69 + k, 69 + k))
        a("s_cselect_b32 s%d, s%d, s98" % (73 + k, 73 + k))

    def kread_ops():
        return ["ds_read_b128 %s, v%d offset:%d" % (vr(V_K + 4 * s, 4), V_RDK, s * 1024) for s in range(8)] + \
            bump(33) + ["v_add_u32 v%d, s33, v%d" % (V_RDK, V_LG)]

    def vread_ops():
        order = (0, 2, 4, 6, 1, 3, 5, 7) if AVW else range(8)
        return ["ds_read_b128 %s, v%d offset:%d" % (vr(V_V + 4 * i, 4), V_RDV, 8192 + i * 1024) for i in order] + \
            bump(32) + ["v_add_u32 v%d, s32, v%d" % (V_RDV, V_LG)]

    def qk_ops(sp):
        ops = []
        S = V_S + 16 * sp
        for s in range(8):
            c = vr(V_C, 16) if s == 0 else vr(S, 16)
            ops.append("v_mfma_f32_32x32x16_bf16 %s, %s, %s, %s" % (vr(S, 16), vr(V_K + 4 * s, 4), vr(V_Q + 4 * s, 4), c))
        return ops

    def pv_ops():
        ops = []
        for t in range(2):
            for dt in range(4):
                o = vr(V_O + 16 * dt, 16)
                ops.append("v_mfma_f32_32x32x16_bf16 %s, %s, %s, %s" % (o, vr(V_V + 4 * (dt * 2 + t), 4), vr(V_P + 4 * t, 4), o))
        return ops

    def max_ops(S, t0, t1):
        return ["v_max3_f32 v%d, v%d, v%d, v%d" % (t0, S, S + 1, S + 2),
                "v_max3_f32 v%d, v%d, v%d, v%d" % (t1, S + 3, S + 4, S + 5),
                "v_max3_f32 v%d, v%d, v%d, v%d" % (t0, t0, S + 6, S + 7),
                "v_max3_f32 v%d, v%d, v%d, v%d" % (t1, t1, S + 8, S + 9),
                "v_max3_f32 v%d, v%d, v%d, v%d" % (t0, t0, S + 10, S + 11),
                "v_max3_f32 v%d, v%d, v%d, v%d" % (t1, t1, S + 12, S + 13),
                "v_max3_f32 v%d, v%d, v%d, v%d" % (t0, t0, S + 14, S + 15),
                "v_max_f32 v%d, v%d, v%d" % (t0, t0, t1),
                "v_mov_b32 v%d, v%d" % (t1, t0)]

    def soft_ops(S, t2, t3):
        P = V_P
        E = V_E
        vb = []
        for r in range(16):
            vb.append("v_exp_f32 v%d, v%d" % (E + r, S + r))
            if r >= 3 and r % 2 == 1:
                q = r - 3
                vb.append("v_cvt_pk_bf16_f32 v%d, v%d, v%d" % (P + q // 2, E + q, E + q + 1))
                if q == 0:
                    vb.append("v_add_f32 v%d, v%d, v%d" % (t2, E, E + 1))
                elif q == 2:
                    vb.append("v_add_f32 v%d, v%d, v%d" % (t3, E + 2, E + 3))
                else:
                    vb.append("v_add_f32 v%d, v%d, v%d" % (t2, t2, E + q))
                    vb.append("v_add_f32 v%d, v%d, v%d" % (t3, t3, E + q + 1))
        vb.append("v_add_f32 v%d, v%d, v%d" % (t2, t2, t3))
        vb.append("v_cvt_pk_bf16_f32 v%d, v%d, v%d" % (P + 7, E + 14, E + 15))
        vb.append("v_add_f32 v%d, v%d, v%d" % (t3, E + 14, E + 15))
        vb.append("v_add_f32 v%d, v%d, v%d" % (t2, t2, t3))
        return vb

    cnt = [0]
    rare = []

    def mask(L, S):
        a("s_lshl_b32 s29, s18, 1")
        a("s_add_u32 s29, s29, s22")
        a("s_cmp_lt_u32 s29, s30")
        a("s_cbranch_scc1 %s_nomask" % L)
        a("s_cmp_eq_u32 s29, s30")
        a("s_cbranch_scc1 %s_tri" % L)
        for r in range(16):
            a("v_mov_b32 v%d, v%d" % (S + r, V_NEG))
        a("s_branch %s_nomask" % L)
        a.label("%s_tri" % L)
        for r in range(16):
            a("v_cndmask_b32 v%d, v%d, v%d, %s" % (S + r, V_NEG, S + r, sr(S_MASK + 2 * r, 2)))
        a.label("%s_nomask" % L)

    def phaseA(sp, diag, last=False):
        cnt[0] += 1
        L = "attn_it%d" % cnt[0]
        S = V_S + 16 * sp
        T = V_T
        if diag:
            mask(L, S)
        qk = qk_ops(sp ^ 1)
        S2 = V_S + 16 * (sp ^ 1)
        so = soft_ops(S, T + 3, T + 4)
        vrd = vread_ops()
        mix = []
        step = len(so) // len(vrd)
        k = 0
        for i, x in enumerate(so):
            mix.append(x)
            if i % step == step - 1 and k < len(vrd):
                mix.append(vrd[k])
                k += 1
        mix += vrd[k:]
        if last:
            for x in mix:
                a(x)
        else:
            interleave(a, qk, mix)
        a("v_cmp_lt_f32 vcc, s%d, v%d" % (S_THR, T + 3))
        a("s_nop 1")
        a("s_cbranch_vccnz %s_rs" % L)
        a.label("%s_nors" % L)
        a("v_add_f32 v%d, v%d, v%d" % (V_L, V_L, T + 3))
        blk = ["%s_rs:" % L]
        if os.environ.get("STAMP"):
            blk.append("s_add_u32 s77, s77, 1")
        blk += max_ops(S, T, T + 1)
        blk += ["s_nop 1",
                "v_permlane32_swap_b32 v%d, v%d" % (T, T + 1),
                "s_nop 0",
                "v_max3_f32 v%d, v%d, v%d, s%d" % (T, T, T + 1, S_LB),
                "v_exp_f32 v%d, -v%d" % (T + 1, T),
                "v_add_f32 v%d, v%d, v%d" % (V_M, V_M, T),
                "v_min_f32 v%d, 0x7149f2ca, v%d" % (T + 1, T + 1),
                "s_mov_b32 s%d, 0x53800000" % S_THR,
                "s_mov_b32 s%d, 0" % S_LB,
                "v_mul_f32 v%d, v%d, v%d" % (V_L, V_L, T + 1)]
        for i in range(64):
            blk.append("v_mul_f32 v%d, v%d, v%d" % (V_O + i, V_O + i, T + 1))
        for r in range(16):
            blk.append("v_sub_f32 v%d, v%d, v%d" % (S + r, S + r, T))
        blk += so
        for r in range(16):
            blk.append("v_sub_f32 v%d, v%d, v%d" % (V_C + r, V_C + r, T))
        for r in range(16 if not last else 0):
            blk.append("v_sub_f32 v%d, v%d, v%d" % (S2 + r, S2 + r, T))
        blk.append("s_branch %s_nors" % L)
        rare.append(blk)
        a("s_add_u32 s18, s18, 1")

    def phaseC(mode="n"):
        ASP = os.environ.get("ASP", "")
        avw = AVW and mode == "n" and ASP == "a"
        a("s_waitcnt lgkmcnt(%d)" % (4 if avw else 0))
        a("s_nop 0")
        if mode == "n" and ASP:
            k, d = kread_ops(), dma_ops()
            if ASP == "a":
                per = [k[0:3], k[3:5] + d[0:6], k[5:8], k[8:12] + d[6:7], d[7:9], d[9:10], d[10:11], d[11:]]
            elif ASP == "b":
                per = [k[0:2] + d[0:6], k[2:5], k[5:7] + d[6:9], k[7:12], d[9:10], [], d[10:11], d[11:]]
            elif ASP == "d":
                per = [k[0:2] + d[0:6], k[2:4], k[4:5] + d[6:9], k[5:7], k[7:8] + d[9:10], k[8:12], d[10:11], d[11:]]
            elif ASP == "e":
                per = [k[0:3], k[3:5] + d[0:6], k[5:8] + d[6:7], k[8:12] + d[7:9], d[9:10], d[10:11], d[11:], []]
            else:
                per = [k[0:4], k[4:8], k[8:12] + d[0:6], [], d[6:9], d[9:10], [], d[10:]]
            for i, (m, p) in enumerate(zip(pv_ops(), per)):
                if avw and i == 4:
                    a("s_waitcnt lgkmcnt(8)")
                a(m)
                for x in p:
                    a(x)
            return
        if mode == "n":
            f = kread_ops() + dma_ops()
        elif mode == "k":
            f = kread_ops()
        else:
            k = int(mode[1])
            f = ["buffer_load_dwordx4 %s, v%d, s[8:11], s%d offen offset:%d" % (
                vr(V_Q + 16 * k + 4 * s_, 4), V_LDS, 82 + k, s_ * 1024) for s_ in range(4)]
        interleave(a, pv_ops(), f)

    def bar():
        a("s_waitcnt vmcnt(4) lgkmcnt(0)")
        a("s_barrier")

    def tile_front(qt):
        a("s_lshl_b32 s15, s%d, 2" % qt)
        a("s_add_u32 s15, s15, s23")
        a("s_lshl_b32 s15, s15, 13")
        a("s_add_u32 s15, s15, s12")
        for k in range(2):
            for s in range(4):
                a("buffer_load_dwordx4 %s, v%d, s[8:11], s15 offen offset:%d" % (vr(V_Q + 16 * k + 4 * s, 4), V_LDS, s * 1024))
            a("s_add_u32 s15, s15, 4096")
        a("s_add_u32 s16, s12, 0x%x" % KF)
        a("s_add_u32 s17, s12, 0x%x" % VF)
        a("s_mov_b32 s28, 98304")
        a("s_mov_b32 s78, 0")
        a("s_mov_b32 s79, -1")
        dma()
        dma()
        dma()
        dma()

    if EARLY:
        ring = [98304, 131072, 0, 32768]
        a.eb_pre()
        a("s_lshl_b32 s15, s5, 2")
        a("s_add_u32 s15, s15, s23")
        a("s_lshl_b32 s15, s15, 13")
        a("s_add_u32 s15, s15, s12")
        a("s_add_u32 s16, s12, 0x%x" % KF)
        a("s_add_u32 s17, s12, 0x%x" % VF)
        for st in range(4):
            a("s_add_u32 m0, s27, %d" % ring[st])
            a("s_nop 0")
            for i in range(2):
                a("buffer_load_dwordx4 v%d, s[8:11], s16 offen offset:%d lds" % (V_DMA, i * 1024))
            a("s_add_u32 s16, s16, 16384")
            if st == 0:
                for k in range(2):
                    for s_ in range(4):
                        a("buffer_load_dwordx4 %s, v%d, s[8:11], s15 offen offset:%d" % (vr(V_Q + 16 * k + 4 * s_, 4), V_LDS, s_ * 1024))
                    a("s_add_u32 s15, s15, 4096")
        a.eb_post()
        a.stamp()
        for st in range(4):
            a("s_add_u32 m0, s27, %d" % (ring[st] + 8192))
            a("s_nop 0")
            for i in range(2):
                a("buffer_load_dwordx4 v%d, s[8:11], s17 offen offset:%d lds" % (V_DMA, i * 1024))
            a("s_add_u32 s17, s17, 16384")
        a("s_mov_b32 s28, 65536")
        a("s_mov_b32 s78, 4")
    else:
        tile_front(5)
    a("s_mov_b32 s32, 98304")
    a("s_add_u32 s80, s12, 0x%x" % KF)
    a("s_add_u32 s81, s12, 0x%x" % VF)
    a("s_lshl_b32 s82, s4, 2")
    a("s_add_u32 s82, s82, s23")
    a("s_lshl_b32 s82, s82, 13")
    a("s_add_u32 s82, s82, s12")
    a("s_add_u32 s83, s82, 4096")
    a.label("attn_tile")
    a("s_lshl_b32 s14, s5, 2")
    a("s_add_u32 s14, s14, s23")
    a("s_mov_b32 s30, s14")
    a("s_lshl_b32 s79, s5, 1")
    a("s_add_u32 s79, s79, 2")
    a("s_mov_b32 s33, s32")
    a("v_add_u32 v%d, s32, v%d" % (V_RDV, V_LG))
    a("v_add_u32 v%d, s32, v%d" % (V_RDK, V_LG))
    a("v_mov_b32 v%d, 0" % V_M)
    a("s_mov_b32 s%d, 0xbf800000" % S_THR)
    a("s_mov_b32 s%d, 0xff7fffff" % S_LB)
    for i in range(16):
        a("v_mov_b32 v%d, 0" % (V_C + i))
    a("v_mov_b32 v%d, 0" % V_L)
    for i in range(64):
        a("v_mov_b32 v%d, 0" % (V_O + i))
    a("s_lshl_b32 s19, s5, 1")
    a("s_mov_b32 s18, 0")
    a("s_waitcnt vmcnt(%d)" % (12 if "aps" in EXP else 8))
    a("s_cmp_eq_u32 s24, 0")
    a("s_cbranch_scc1 attn_w2")
    a("s_waitcnt vmcnt(%d)" % (12 if SENT else (8 if SN2 else 4)))
    a.label("attn_w2")
    a("s_barrier")
    if "df" in EXP:
        a("global_load_dword v254, v255, s[86:87] sc1")
    if not MST:
        tstamp(0)
    for x in kread_ops():
        a(x)
    a("s_cmp_eq_u32 s24, 0")
    a("s_cbranch_scc1 attn_w3")
    a("s_mov_b32 s78, 2")
    dma()
    dma()
    a.label("attn_w3")
    a("s_waitcnt lgkmcnt(0)")
    for x in qk_ops(0):
        a(x)
    if "aps" in EXP:
        a("s_cmp_lg_u32 s24, 0")
        a("s_cbranch_scc1 attn_w4")
        a("s_waitcnt vmcnt(8)")
        a("s_barrier")
        a.label("attn_w4")
    for x in kread_ops():
        a(x)
    if "noinit" not in EXP:
        a.nop(8)
        S, T = V_S, V_T
        a("s_cmp_lg_u32 s5, 0")
        a("s_cbranch_scc1 attn_im_nomask")
        mask("attn_im", S)
        for x in max_ops(S, T, T + 1):
            a(x)
        a("s_nop 1")
        a("v_permlane32_swap_b32 v%d, v%d" % (T, T + 1))
        a("s_nop 0")
        a("v_max_f32 v%d, v%d, v%d" % (T, T, T + 1))
        a("s_mov_b32 s%d, 0x53800000" % S_THR)
        a("s_mov_b32 s%d, 0" % S_LB)
        a("v_mov_b32 v%d, v%d" % (V_M, T))
        for r in range(16):
            a("v_sub_f32 v%d, v%d, v%d" % (S + r, S + r, T))
        for r in range(16):
            a("v_sub_f32 v%d, 0, v%d" % (V_C + r, T))
    a("s_cmp_eq_u32 s22, 1")
    a("s_cbranch_scc1 attn_g1")
    a("s_cmp_eq_u32 s5, 0")
    a("s_cbranch_scc1 attn_diag0")
    a.label("attn_loop0")
    a.inloop = "og" not in EXP
    for sp in range(2):
        bar()
        a("s_waitcnt lgkmcnt(0)")
        phaseA(sp, False)
        phaseC()
    a.inloop = False
    a("s_cmp_lt_u32 s18, s19")
    a("s_cbranch_scc1 attn_loop0")
    a.label("attn_diag0")
    if not MST:
        tstamp(1)
    for sp in range(2):
        bar()
        a("s_waitcnt lgkmcnt(0)")
        phaseA(sp, True, sp == 1)
        phaseC("q%d" % sp)
    tstamp(2)
    a("s_branch attn_merge")
    a.label("attn_g1")
    bar()
    a("s_waitcnt lgkmcnt(0)")
    a("s_cmp_eq_u32 s5, 0")
    a("s_cbranch_scc1 attn_diag1a")
    dma()
    phaseA(0, False)
    a.label("attn_loop1")
    a.inloop = "og" not in EXP
    bar()
    phaseC()
    a("s_waitcnt lgkmcnt(0)")
    phaseA(1, False)
    a.inloop = False
    a("s_cmp_ge_u32 s18, s19")
    a("s_cbranch_scc1 attn_diag1")
    a.inloop = "og" not in EXP
    bar()
    phaseC()
    a("s_waitcnt lgkmcnt(0)")
    phaseA(0, False)
    a.inloop = False
    a("s_branch attn_loop1")
    a.label("attn_diag1")
    bar()
    phaseC("k")
    a("s_waitcnt lgkmcnt(0)")
    a.label("attn_diag1a")
    phaseA(0, True)
    bar()
    phaseC("q0")
    phaseA(1, True, True)
    phaseC("q1")
    a.label("attn_merge")

    def slot(wreg, vdst):
        a("s_mul_i32 s29, s%d, 11" % wreg)
        a("s_lshr_b32 s29, s29, 5")
        a("s_mul_i32 s84, s29, 3")
        a("s_sub_u32 s84, s%d, s84" % wreg)
        a("s_lshl_b32 s29, s29, 15")
        a("s_add_u32 s29, s29, s28")
        a("s_sub_u32 s85, s29, %d" % LDSZ)
        a("s_cmp_ge_u32 s29, %d" % LDSZ)
        a("s_cselect_b32 s29, s85, s29")
        a("s_mul_i32 s84, s84, 9216")
        a("s_add_u32 s29, s29, s84")
        a("v_add_u32 v%d, s29, v%d" % (vdst, V_LDS))
    slot(6, 12)
    a("s_xor_b32 s31, s6, 4")
    slot(31, 13)
    a("s_waitcnt lgkmcnt(0)")
    a("s_barrier")
    if MST:
        tstamp(0)
    a.nop(4)
    for g in range(2):
        if g == 0:
            a("s_cmp_eq_u32 s22, 1")
            a("s_cbranch_scc1 attn_mg1")
        else:
            a.label("attn_mg1")
        keep, send = V_O + 32 * g, V_O + 32 * (1 - g)
        for i in range(8):
            a("ds_write_b128 v12, %s offset:%d" % (vr(send + 4 * i, 4), i * 1024))
        a("ds_write_b64 v12, v[%d:%d] offset:8192" % (V_M, V_L))
        a("s_waitcnt lgkmcnt(0)")
        a("s_barrier")
        if MST and g == 0:
            tstamp(1)
        a("ds_read_b64 v[14:15], v13 offset:8192")
        for i in range(8):
            a("ds_read_b128 %s, v13 offset:%d" % (vr(V_K + 4 * i, 4), i * 1024))
        a("s_waitcnt lgkmcnt(8)")
        a("v_max_f32 v10, v%d, v14" % V_M)
        a("v_sub_f32 v11, v%d, v10" % V_M)
        a("v_sub_f32 v10, v14, v10")
        a("v_exp_f32 v11, v11")
        a("v_exp_f32 v10, v10")
        a.nop(1)
        a("v_mul_f32 v%d, v%d, v11" % (V_L, V_L))
        a("v_fma_f32 v%d, v15, v10, v%d" % (V_L, V_L))
        a("v_mov_b32 v14, v%d" % V_L)
        a.nop(2)
        a("v_permlane32_swap_b32 v%d, v14" % V_L)
        a.nop(1)
        a("v_add_f32 v14, v14, v%d" % V_L)
        a("v_rcp_f32 v14, v14")
        a.nop(1)
        a("v_mul_f32 v11, v11, v14")
        a("v_mul_f32 v10, v10, v14")
        a("s_mul_i32 s20, s14, %d" % AF_BLK)
        a("s_lshl_b32 s21, s3, 13")
        a("s_add_u32 s20, s20, s21")
        a("s_add_u32 s20, s20, 0x%x" % (AF + 4096 * g))
        a("s_waitcnt lgkmcnt(0)")
        for i in range(32):
            a("v_mul_f32 v%d, v%d, v10" % (V_K + i, V_K + i))
            a("v_fma_f32 v%d, v%d, v11, v%d" % (V_K + i, keep + i, V_K + i))
        for k in range(4):
            d = V_V + k * 4
            for p in range(4):
                x0 = V_K + 8 * k + 2 * p
                a("v_cvt_pk_bf16_f32 v%d, v%d, v%d" % (d + p, x0, x0 + 1))
            a("buffer_store_dwordx4 %s, v%d, s[8:11], s20 offen offset:%d sc1" % (vr(d, 4), V_LDS, k * 1024))
        if g == 0:
            a("s_branch attn_mgdone")
    a.label("attn_mgdone")
    if SN2:
        a("s_cmp_eq_u32 s24, 1")
        a("s_cbranch_scc1 attn_noclr")
        a("s_and_b32 s20, s2, 1")
        a("s_lshl_b32 s20, s20, 3")
        a("s_bfe_u32 s21, s2, 0x30003")
        a("s_or_b32 s20, s20, s21")
        a("s_lshl_b32 s20, s20, 2")
        a("s_lshr_b32 s21, s2, 6")
        a("s_add_u32 s20, s20, s21")
        a("s_lshl_b32 s20, s20, 16")
        a("s_bfe_u32 s21, s2, 0x20001")
        a("s_lshl_b32 s21, s21, 22")
        a("s_add_u32 s20, s20, s21")
        a("s_lshl_b32 s21, s23, 14")
        a("s_add_u32 s20, s20, s21")
        a("s_lshl_b32 s21, s22, 12")
        a("s_add_u32 s20, s20, s21")
        a("s_add_u32 s20, s20, 0x%x" % PART)
        for k in range(4):
            a("v_mov_b32 v%d, -1" % (V_K + k))
        for k in range(4):
            a("buffer_store_dwordx4 %s, v%d, s[8:11], s20 offen offset:%d sc1" % (vr(V_K, 4), V_LDS, k * 1024))
        a.label("attn_noclr")
    if SENT:
        a("s_cmp_eq_u32 s24, 1")
        a("s_cbranch_scc1 attn_noclr")
        a("s_lshl_b32 s20, s2, 16")
        a("s_lshl_b32 s21, s6, 13")
        a("s_add_u32 s20, s20, s21")
        a("s_add_u32 s20, s20, 0x%x" % PART)
        a("s_add_u32 s21, s20, 4096")
        for k in range(4):
            a("v_mov_b32 v%d, -1" % (V_K + k))
        for k in range(8):
            a("buffer_store_dwordx4 %s, v%d, s[8:11], s%d offen offset:%d sc1" % (vr(V_K, 4), V_LDS, 20 if k < 4 else 21, (k & 3) * 1024))
        a.label("attn_noclr")
    tstamp(3)
    a.nst = 10
    a("s_cmp_eq_u32 s24, 1")
    a("s_cbranch_scc1 attn_fin")
    a("s_mov_b32 s24, 1")
    a("s_mov_b32 s5, s4")
    for r in (80, 81, 82, 83):
        a("s_mov_b32 s%d, 0x10000000" % r)
    a("s_branch attn_tile")
    a.label("attn_fin")
    a.stamp_flush(0)
    a.label("attn_end")
    a("s_branch attn_after")
    for blk in rare:
        a.label(blk[0][:-1])
        for x in blk[1:]:
            a(x)
    a.label("attn_after")
    a.ostamp()
    if "ov" in EXP:
        a("s_waitcnt vmcnt(4) lgkmcnt(0)")
    else:
        a("s_waitcnt vmcnt(0) lgkmcnt(0)")
    if "df" in EXP:
        a("s_mov_b32 s88, 0")
        a.label("df_chk")
        a("v_readfirstlane_b32 s89, v254")
        a("s_cmp_ge_u32 s89, 16")
        a("s_cbranch_scc1 df_ok")
        a("s_add_u32 s88, s88, 1")
        a("s_cmp_gt_u32 s88, 40000")
        a("s_cbranch_scc1 df_ok")
        a("s_sleep 8")
        a("global_load_dword v254, v255, s[86:87] sc1")
        a("s_waitcnt vmcnt(0)")
        a("s_branch df_chk")
        a.label("df_ok")
    a("s_barrier")
    a.phase = 2


def gen_ogemm(a):
    V_AL = 2
    V_TR = 4
    V_DA = 8
    V_DB = 9
    V_ST = 11
    V_F = 16
    V_ACC = 48
    if OFK:
        V_ACC = 64
    NST = 23
    a.label("ogemm_kernel")
    a.stamp()
    a("s_load_dwordx2 s[8:9], s[0:1], 104")
    a("s_load_dwordx2 s[24:25], s[0:1], 40")
    a("s_load_dwordx2 s[26:27], s[0:1], 72")
    a("v_lshrrev_b32 v1, 6, v0")
    a("s_nop 0")
    a("v_readfirstlane_b32 s6, v1")
    a("v_and_b32 v1, 63, v0")
    a("s_lshr_b32 s3, s2, 4")
    a("s_and_b32 s4, s2, 1")
    a("s_lshl_b32 s4, s4, 1")
    a("s_bfe_u32 s5, s2, 0x10003")
    a("s_or_b32 s4, s4, s5")
    a("s_bfe_u32 s5, s2, 0x20001")
    if "same" in EXP:
        a("s_mov_b32 s3, 0")
        a("s_mov_b32 s4, 0")
        a("s_mov_b32 s5, 0")
    if "map1" not in EXP:
        a("s_and_b32 s3, s2, 1")
        a("s_lshl_b32 s3, s3, 3")
        a("s_bfe_u32 s4, s2, 0x30003")
        a("s_or_b32 s3, s3, s4")
        a("s_lshr_b32 s4, s2, 6")
    a("s_mov_b32 s10, 0x10000000")
    a("s_mov_b32 s11, 0x20000")
    a("s_mov_b32 s15, 0x20000")
    a("s_lshr_b32 s30, s6, 2")
    a("s_lshr_b32 s31, s6, 1")
    a("s_and_b32 s31, s31, 1")
    a("s_and_b32 s32, s6, 1")
    a("v_lshlrev_b32 v%d, 4, v1" % V_ST)
    a("s_lshl_b32 s33, s31, 13")
    a("s_lshl_b32 s34, s30, %d" % (12 if OFK else 11))
    a("s_add_u32 s33, s33, s34")
    a("v_add_u32 v%d, s33, v%d" % (V_AL, V_ST))
    a("v_add_u32 v%d, 0x10000, v%d" % (V_AL + 1, V_AL))
    a("v_bfe_u32 v12, v1, 2, 2")
    a("v_lshrrev_b32 v13, 5, v1")
    a("v_lshl_add_u32 v13, v13, 2, v12")
    a("v_lshlrev_b32 v13, 8, v13")
    a("v_bfe_u32 v14, v1, 4, 1")
    a("v_lshl_add_u32 v13, v14, 5, v13")
    a("v_and_b32 v14, 3, v1")
    a("v_lshl_add_u32 v13, v14, 3, v13")
    if OFK:
        a("s_movk_i32 s33, 0x4000")
    else:
        a("s_lshl_b32 s33, s30, 13")
        a("s_add_u32 s33, s33, 16384")
    a("v_add_u32 v13, s33, v13")
    a("v_lshlrev_b32 v12, 6, v12")
    a("s_lshl_b32 s34, s32, 7")
    for ntl in range(2):
        a("s_add_u32 s35, s34, %d" % (ntl << 6))
        a("v_xor_b32 v14, s35, v12")
        a("v_add_u32 v%d, v13, v14" % (V_TR + ntl))
        a("v_add_u32 v%d, 0x10000, v%d" % (V_TR + 2 + ntl, V_TR + ntl))
    a("s_lshr_b32 s33, s6, 1")
    a("s_lshl_b32 s34, s3, 2")
    a("s_add_u32 s34, s34, s33")
    a("s_mul_i32 s34, s34, %d" % AF_BLK)
    a("s_lshl_b32 s35, s32, 11")
    a("s_add_u32 s34, s34, s35")
    a("s_add_u32 s34, s34, 0x%x" % AF)
    a("v_add_u32 v%d, s34, v%d" % (V_DA, V_ST))
    a("s_lshl_b32 s36, s6, 11")
    a("v_lshrrev_b32 v12, 4, v1")
    a("v_bfe_u32 v13, v1, 2, 2")
    a("v_xor_b32 v13, v13, v12")
    a("v_lshlrev_b32 v13, 6, v13")
    a("v_and_b32 v14, 3, v1")
    a("v_lshl_add_u32 v13, v14, 4, v13")
    a("s_lshl_b32 s33, s6, 3")
    a("v_add_u32 v12, s33, v12")
    a("v_lshlrev_b32 v12, 10, v12")
    a("v_add_u32 v12, v12, v13")
    a("s_lshl_b32 s33, s4, 8")
    a("v_add_u32 v%d, s33, v12" % V_DB)
    a("v_add_u32 v%d, 3072, v%d" % (V_DB + 1, V_DB))
    a("s_mov_b32 s42, 0x1c0000")
    a("s_mul_i32 s37, s5, 7")
    a("s_add_u32 s37, s37, 64")
    a("s_lshl_b32 s44, s5, 4")
    a("s_mov_b32 s43, 0")
    a("s_waitcnt lgkmcnt(0)")

    def dma_parts(buf):
        p0 = ["s_cmp_lt_u32 s37, 64",
              "s_cselect_b32 s12, s24, s26",
              "s_cselect_b32 s13, s25, s27",
              "s_cselect_b32 s14, 0x400000, s42",
              "s_cselect_b32 s39, 0, 64",
              "s_sub_u32 s39, s37, s39",
              "s_lshl_b32 s39, s39, 16",
              "s_lshl_b32 s40, s37, 12",
              "s_cmp_lt_u32 s43, %d" % NST,
              "s_cselect_b32 s14, s14, 0",
              "s_cselect_b32 s40, s40, 0x10000000",
              "s_add_u32 s37, s37, 1",
              "s_add_u32 s43, s43, 1",
              "s_cmp_eq_u32 s43, 7",
              "s_cselect_b32 s37, s44, s37",
              "s_add_u32 m0, s36, %d" % (buf * 32768),
              "s_nop 0",
              "buffer_load_dwordx4 v%d, s[8:11], s40 offen offset:0 lds" % V_DA]
        p1 = ["buffer_load_dwordx4 v%d, s[8:11], s40 offen offset:1024 lds" % V_DA]
        p2 = ["s_add_u32 m0, s36, %d" % (buf * 32768 + 16384),
              "s_nop 0",
              "buffer_load_dwordx4 v%d, s[12:15], s39 offen offset:0 lds" % V_DB]
        p3 = ["buffer_load_dwordx4 v%d, s[12:15], s39 offen offset:1024 lds" % (V_DB + 1)]
        return [p0, p1, p2, p3]

    def dma(buf):
        for p in dma_parts(buf):
            for x in p:
                a(x)

    def reads(buf, sl, st):
        hi = 1 if buf >= 2 else 0
        bo = (buf & 1) * 32768
        f = V_F + st * 16
        for mbl in range(2):
            a("ds_read_b128 %s, v%d offset:%d" % (vr(f + 4 * mbl, 4), V_AL + hi, bo + mbl * 4096 + sl * 1024))
        for ntl in range(2):
            for ird in range(2):
                a("ds_read_b64_tr_b16 %s, v%d offset:%d" % (
                    vr(f + 8 + 4 * ntl + 2 * ird, 2), V_TR + 2 * hi + ntl, bo + sl * 4096 + ird * 2048))

    def mfmas(st, first, ins=None):
        f = V_F + st * 16
        for mbl in range(2):
            for ntl in range(2):
                acc = vr(V_ACC + 16 * (mbl * 2 + ntl), 16)
                c = "0" if first else acc
                a("v_mfma_f32_32x32x16_bf16 %s, %s, %s, %s" % (acc, vr(f + 8 + 4 * ntl, 4), vr(f + 4 * mbl, 4), c))
                for x in (ins or {}).get(mbl * 2 + ntl, []):
                    a(x)

    dma(0)
    dma(1)
    dma(2)
    for i in range(32 if OFK else 64):
        a("v_mov_b32 v%d, 0" % (V_ACC + i))
    def owg():
        a("s_lshl_b32 s49, s3, 2")
        a("s_add_u32 s49, s49, s4")
        a("s_lshl_b32 s45, s49, 4")
        a("s_lshl_b32 s46, s5, 2")
        a("s_add_u32 s45, s45, s46")

    if "xh" in EXP:
        owg()
        reduce_pre(a, 1)
        a("s_waitcnt lgkmcnt(0)")
    if "ov" in EXP:
        a("s_waitcnt vmcnt(12)")
        a("s_barrier")
    a("s_cmp_lg_u32 s6, 0")
    a("s_cbranch_scc1 ogemm_nosig")
    a.gb_signal(1, "ov" in EXP)
    a.label("ogemm_nosig")
    a("s_mov_b32 s41, 0")
    a("s_waitcnt vmcnt(8)")
    a("s_barrier")
    a.stamp()
    if OIL:
        pass
    else:
        reads(0, 0, 0)

    def rd_ops(buf, sl, st):
        hi = 1 if buf >= 2 else 0
        bo = (buf & 1) * 32768
        f = V_F + st * 16
        A = ["ds_read_b128 %s, v%d offset:%d" % (vr(f + 4 * mbl, 4), V_AL + hi, bo + mbl * 4096 + sl * 1024) for mbl in range(2)]
        B = [["ds_read_b64_tr_b16 %s, v%d offset:%d" % (
            vr(f + 8 + 4 * ntl + 2 * ird, 2), V_TR + 2 * hi + ntl, bo + sl * 4096 + ird * 2048) for ird in range(2)] for ntl in range(2)]
        return [[A[0]] + B[0], B[1], [A[1]], []]

    def body_il(buf, hook, check):
        a("s_waitcnt vmcnt(4)")
        a("s_barrier")
        P = dma_parts((buf + 3) & 3)
        W = ["s_waitcnt lgkmcnt(4)", "s_waitcnt lgkmcnt(5)"]
        R = rd_ops(buf, 1, 1)
        D = [[], [], [], []] if hook else [P[0], [], P[1], []]
        a("s_waitcnt lgkmcnt(3)")
        mfmas(0, False, {0: R[0] + D[0] + W[0:1], 1: R[1] + W[1:2], 2: R[2] + D[2]})
        if hook:
            hook()
        R = rd_ops((buf + 1) & 3, 0, 0)
        D = P if hook else [P[2], [], P[3], []]
        a("s_waitcnt lgkmcnt(3)")
        mfmas(1, False, {0: R[0] + D[0] + W[0:1], 1: R[1] + D[1] + W[1:2], 2: R[2] + D[2], 3: D[3]})
        a("s_add_u32 s41, s41, 1")
        if check:
            a("s_cmp_ge_u32 s41, %d" % NST)
            a("s_cbranch_scc1 ogemm_done")

    def rd_fk(buf, s):
        hi = 1 if buf >= 2 else 0
        bo = (buf & 1) * 32768
        f = V_F + s * 12
        A = "ds_read_b128 %s, v%d offset:%d" % (vr(f, 4), V_AL + hi, bo + s * 1024)
        B = [["ds_read_b64_tr_b16 %s, v%d offset:%d" % (
            vr(f + 4 + 4 * ntl + 2 * ird, 2), V_TR + 2 * hi + ntl, bo + s * 4096 + ird * 2048) for ird in range(2)] for ntl in range(2)]
        return [[A] + B[0], B[1]]

    def body_fk(buf, hook, check):
        a("s_waitcnt vmcnt(4)")
        a("s_barrier")
        P = dma_parts((buf + 3) & 3)
        for s in range(4):
            if hook and s == 2:
                hook()
            R = rd_fk(buf, s + 2) if s < 2 else rd_fk((buf + 1) & 3, s - 2)
            f = V_F + s * 12
            for ntl in range(2):
                a("s_waitcnt lgkmcnt(%d)" % (7 + ntl))
                acc = vr(V_ACC + 16 * ntl, 16)
                a("v_mfma_f32_32x32x16_bf16 %s, %s, %s, %s" % (acc, vr(f + 4 + 4 * ntl, 4), vr(f, 4), acc))
                for x in R[ntl]:
                    a(x)
                if hook:
                    D = P[2 * (s - 2) + ntl] if s >= 2 else []
                else:
                    D = P[s] if ntl == 0 else []
                for x in D:
                    a(x)
        a("s_add_u32 s41, s41, 1")
        if check:
            a("s_cmp_ge_u32 s41, %d" % NST)
            a("s_cbranch_scc1 ogemm_done")

    def body(buf, hook=None, check=True):
        if OFK:
            return body_fk(buf, hook, check)
        if OIL:
            return body_il(buf, hook, check)
        a("s_waitcnt vmcnt(4)")
        a("s_barrier")
        reads(buf, 1, 1)
        a("s_waitcnt lgkmcnt(6)")
        OSP = os.environ.get("OSP", "")
        P = dma_parts((buf + 3) & 3)
        if OSP == "a" and not hook:
            mfmas(0, False, {0: P[0], 2: P[1]})
            reads((buf + 1) & 3, 0, 0)
            a("s_waitcnt lgkmcnt(6)")
            mfmas(1, False, {0: P[2], 2: P[3]})
        elif OSP == "d" and not hook:
            mfmas(0, False, {1: P[0], 3: P[1]})
            reads((buf + 1) & 3, 0, 0)
            a("s_waitcnt lgkmcnt(6)")
            mfmas(1, False, {1: P[2], 3: P[3]})
        elif OSP == "b" and not hook:
            mfmas(0, False, {0: P[0], 1: P[1], 2: P[2], 3: P[3]})
            reads((buf + 1) & 3, 0, 0)
            a("s_waitcnt lgkmcnt(6)")
            mfmas(1, False)
        elif OSP:
            mfmas(0, False)
            reads((buf + 1) & 3, 0, 0)
            if hook:
                hook()
            a("s_waitcnt lgkmcnt(6)")
            mfmas(1, False, {0: P[0], 1: P[1], 2: P[2], 3: P[3]})
        else:
            mfmas(0, False)
            reads((buf + 1) & 3, 0, 0)
            if hook:
                hook()
            dma((buf + 3) & 3)
            a("s_waitcnt lgkmcnt(6)")
            mfmas(1, False)
        a("s_add_u32 s41, s41, 1")
        if check:
            a("s_cmp_ge_u32 s41, %d" % NST)
            a("s_cbranch_scc1 ogemm_done")

    def pollhook():
        if "xh" in EXP:
            reduce_pre(a, 2)
        a("s_cmp_lg_u32 s6, 0")
        a("s_cbranch_scc1 ogemm_nopoll")
        a.gb_poll(1)
        a.label("ogemm_nopoll")
        a("s_barrier")
        a.stamp()

    if OFK:
        for x in sum(rd_fk(0, 0) + rd_fk(0, 1), []):
            a(x)
    elif OIL:
        for x in sum(rd_ops(0, 0, 0), []):
            a(x)

    def sighook():
        a("s_cmp_lg_u32 s6, 0")
        a("s_cbranch_scc1 ogemm_nosig2")
        a.gb_signal2(1)
        a.label("ogemm_nosig2")

    for it in range(8):
        body(it & 3, pollhook if it == 4 else (sighook if it == 1 and "ov" in EXP else None), False)
    a.label("ogemm_loop")
    a.inloop = "og" in EXP
    for buf in range(4):
        body(buf)
    a("s_branch ogemm_loop")
    a.inloop = False
    a.label("ogemm_done")
    a.ostamp()
    a.stamp()
    if not OFK:
        a("s_waitcnt vmcnt(0) lgkmcnt(0)")
        a("s_barrier")
    a.nop(12)
    a("s_and_b32 s33, s6, 3")
    a("s_lshl_b32 s33, s33, 14")
    a("s_lshl_b32 s34, s6, 13")
    a("v_add_u32 v12, s34, v%d" % V_ST)
    a("s_xor_b32 s34, s34, 0x8000")
    a("v_add_u32 v13, s34, v%d" % V_ST)
    a("s_lshl_b32 s34, s3, 2")
    a("s_add_u32 s34, s34, s4")
    a("s_lshl_b32 s34, s34, 16")
    a("s_add_u32 s34, s34, s33")
    a("s_lshl_b32 s35, s5, 22")
    a("s_add_u32 s34, s34, s35")
    a("s_add_u32 s34, s34, 0x%x" % PART)
    if OFK:
        a("s_lshl_b32 s35, s30, %d" % (12 if PB else 13))
        a("s_add_u32 s34, s34, s35")
        a("s_add_u32 s35, s34, 4096")
        a.nop(4)
        if "own" in EXP:
            a("s_and_b32 s46, s6, 3")
            a("s_cmp_eq_u32 s46, s5")
            a("s_cbranch_scc1 own_lds")
            if PB:
                a("s_waitcnt lgkmcnt(0)")
        for i in range(4 if PB else 0):
            for k in range(4):
                a("v_cvt_pk_bf16_f32 v%d, v%d, v%d" % (V_F + 4 * i + k, V_ACC + 8 * i + 2 * k, V_ACC + 8 * i + 2 * k + 1))
            a("buffer_store_dwordx4 %s, v%d, s[8:11], s34 offen offset:%d sc1" % (vr(V_F + 4 * i, 4), V_ST, i * 1024))
        for i in range(0 if PB else 8):
            a("buffer_store_dwordx4 %s, v%d, s[8:11], s%d offen offset:%d sc1" % (vr(V_ACC + 4 * i, 4), V_ST, 34 if i < 4 else 35, (i & 3) * 1024))
        if "own" in EXP:
            a("s_branch ogemm_end")
            a.label("own_lds")
            a("s_lshl_b32 s46, s30, 13")
            a("s_add_u32 s46, s46, 0x20000")
            a("v_add_u32 v12, s46, v%d" % V_ST)
            for i in range(8):
                a("ds_write_b128 v12, %s offset:%d" % (vr(V_ACC + 4 * i, 4), i * 1024))
    else:
        a("s_cmp_eq_u32 s30, 0")
        a("s_cbranch_scc1 ogemm_g0")
    for g in (() if OFK else (1, 0)):
        if g == 0:
            a.label("ogemm_g0")
        keep, send = V_ACC + 32 * g, V_ACC + 32 * (1 - g)
        for i in range(8):
            a("ds_write_b128 v12, %s offset:%d" % (vr(send + 4 * i, 4), i * 1024))
        a("s_waitcnt lgkmcnt(0)")
        a("s_barrier")
        for i in range(8):
            a("ds_read_b128 %s, v13 offset:%d" % (vr(112 + 4 * i, 4), i * 1024))
        a("s_add_u32 s34, s34, %d" % (8192 * g))
        for i in range(8):
            a("s_waitcnt lgkmcnt(%d)" % (7 - i))
            for k in range(4):
                a("v_add_f32 v%d, v%d, v%d" % (keep + 4 * i + k, keep + 4 * i + k, 112 + 4 * i + k))
            if i == 4:
                a("s_add_u32 s34, s34, 4096")
            a("buffer_store_dwordx4 %s, v%d, s[8:11], s34 offen offset:%d sc1" % (vr(keep + 4 * i, 4), V_ST, (i & 3) * 1024))
        if g == 1:
            a("s_branch ogemm_end")
    a.stamp()
    a.stamp_flush(0)
    a.label("ogemm_end")
    if "xh" not in EXP:
        owg()
        reduce_pre(a)
    if SENT:
        a.phase = 3
        return
    if SN2:
        a("s_waitcnt lgkmcnt(0)")
        a("s_barrier")
        a.phase = 3
        return
    a("s_waitcnt vmcnt(0) lgkmcnt(0)")
    a("s_barrier")
    a("s_cmp_lg_u32 s6, 0")
    a("s_cbranch_scc1 tb_wait")
    a("s_add_u32 s46, s49, 32")
    a("s_lshl_b32 s46, s46, 12")
    a("s_add_u32 s46, s46, 0x%x" % CTR)
    a("s_mov_b64 exec, 1")
    a("v_mov_b32 v12, 1")
    a("v_mov_b32 v13, 0")
    a("buffer_atomic_add v12, v13, s[8:11], s46 offen sc1")
    a("s_mov_b32 s47, 0")
    a.label("tb_loop")
    a("buffer_load_dword v14, v13, s[8:11], s46 offen sc1")
    a("s_waitcnt vmcnt(0)")
    a("v_readfirstlane_b32 s48, v14")
    a("s_cmp_ge_u32 s48, 4")
    a("s_cbranch_scc1 tb_done")
    a("s_add_u32 s47, s47, 1")
    a("s_cmp_gt_u32 s47, 40000")
    a("s_cbranch_scc1 tb_done")
    a("s_sleep %s" % os.environ.get("TSL", "4"))
    a("s_branch tb_loop")
    a.label("tb_done")
    a("s_mov_b64 exec, -1")
    a.label("tb_wait")
    a("s_barrier")
    a.phase = 3


RB = 176


def reduce_pre(a, part=None):
    if part == 2:
        for j in range(2):
            B = RB + 4 + 32 * j
            a("buffer_load_dwordx2 %s, v%d, s[52:55], 0 offen" % (vr(B + 16, 2), B + 26))
            a("buffer_load_dwordx2 %s, v%d, s[56:59], 0 offen" % (vr(B + 18, 2), B + 27))
        if "tw" in EXP:
            a("buffer_load_dword v254, v%d, s[60:63], 0 offen" % (RB + 4 + 26))
            a("s_lshl_b32 s46, s49, 16")
            a("s_lshl_b32 s47, s5, 22")
            a("s_add_u32 s46, s46, s47")
            a("s_add_u32 s46, s46, 0x%x" % PART)
            a("buffer_load_dword v254, v11, s[8:11], s46 offen")
        return
    a("s_load_dwordx2 s[52:53], s[0:1], 0")
    a("s_load_dwordx2 s[56:57], s[0:1], 80")
    a("s_load_dwordx2 s[60:61], s[0:1], 88")
    a("s_mov_b32 s54, 0x200000")
    a("s_mov_b32 s55, 0x20000")
    a("s_mov_b32 s58, 1024")
    a("s_mov_b32 s59, 0x20000")
    a("s_mov_b32 s62, 0x200000")
    a("s_mov_b32 s63, 0x20000")
    T = RB + 70
    a("s_lshr_b32 s23, s6, 2")
    a("v_and_b32 v%d, 255, v0" % T)
    a("s_add_u32 s50, s45, s23")
    a("v_lshlrev_b32 v%d, 4, v%d" % (RB + 1, T))
    if not part:
        a("s_waitcnt lgkmcnt(0)")
    for j in range(2):
        B = RB + 4 + 32 * j
        v2, v3 = RB + 2, B + 27
        if PB:
            a("s_lshr_b32 s51, s6, 1")
            a("s_add_u32 s51, s51, s45")
        else:
            a("s_add_u32 s51, s50, %d" % (2 * j))
        a("s_lshr_b32 s64, s51, 4")
        a("s_lshr_b32 s65, s51, 2")
        a("s_and_b32 s65, s65, 3")
        a("s_and_b32 s66, s51, 3")
        a("s_lshr_b32 s16, s64, 2")
        a("s_and_b32 s17, s64, 3")
        a("s_lshr_b32 s18, s65, 1")
        a("s_and_b32 s19, s65, 1")
        a("s_lshr_b32 s28, s66, 1")
        a("s_and_b32 s29, s66, 1")
        a("s_lshl_b32 s20, s16, 2")
        a("s_lshl_b32 s21, s18, 1")
        a("s_add_u32 s20, s20, s21")
        a("s_add_u32 s20, s20, s28")
        a("s_lshl_b32 s20, s20, 15")
        a("s_lshl_b32 s21, s17, 2")
        a("s_lshl_b32 s22, s19, 1")
        a("s_add_u32 s21, s21, s22")
        a("s_add_u32 s21, s21, s29")
        a("s_lshl_b32 s21, s21, 6")
        a("v_and_b32 v%d, 31, v%d" % (v2, T))
        a("v_lshlrev_b32 v%d, 10, v%d" % (v2, v2))
        if PB:
            a("s_and_b32 s22, s6, 1")
            a("s_lshl_b32 s22, s22, 5")
            a("s_add_u32 s22, s22, %d" % (16 * j))
            a("v_mov_b32 v%d, s22" % v3)
        else:
            a("v_lshrrev_b32 v%d, 6, v%d" % (v3, T))
            a("v_lshlrev_b32 v%d, 4, v%d" % (v3, v3))
        a("v_bfe_u32 v%d, v%d, 5, 1" % (B + 16, T))
        a("v_lshl_add_u32 v%d, v%d, 3, v%d" % (v3, B + 16, v3))
        a("v_add_u32 v%d, s21, v%d" % (v3, v3))
        a("v_add_u32 v%d, v%d, v%d" % (v2, v2, v3))
        a("v_add_u32 v%d, s20, v%d" % (B + 26, v2))
        if not part:
            a("buffer_load_dwordx2 %s, v%d, s[52:55], 0 offen" % (vr(B + 16, 2), B + 26))
            a("buffer_load_dwordx2 %s, v%d, s[56:59], 0 offen" % (vr(B + 18, 2), v3))


def gen_reduce(a):
    a.label("reduce_kernel")
    a.ostamp()
    a.stamp()
    if SENT:
        a("s_mov_b32 s47, 0")
        a.label("red_poll")
    OWN = "own" in EXP
    if PB:
        B0, B1 = RB + 4, RB + 36
        a("s_lshl_b32 s51, s45, 12")
        a("s_lshl_b32 s47, s6, 10")
        a("s_add_u32 s51, s51, s47")
        a("s_add_u32 s51, s51, 0x%x" % PART)
        if SN2:
            a("s_mov_b32 s47, 0")
            a.label("red_poll")
        for p in range(1, 4):
            a("s_add_u32 s46, s5, %d" % p)
            a("s_and_b32 s46, s46, 3")
            a("s_lshl_b32 s46, s46, 22")
            a("s_add_u32 s46, s46, s51")
            a("buffer_load_dwordx4 %s, v11, s[8:11], s46 offen%s" % (vr(B0 + 4 * p, 4), " sc1" if SN2 else ""))
        if SN2:
            a("s_waitcnt vmcnt(0)")
            a("v_max3_u32 v248, v%d, v%d, v%d" % (B0 + 4, B0 + 5, B0 + 6))
            for i in range(4):
                a("v_max3_u32 v248, v248, v%d, v%d" % (B0 + 7 + 2 * i, B0 + 8 + 2 * i))
            a("v_max_u32 v248, v248, v%d" % (B0 + 15))
            a("v_cmp_eq_u32 vcc, -1, v248")
            a("s_nop 1")
            a("s_cbranch_vccz red_ok")
            a("s_add_u32 s47, s47, 1")
            a("s_cmp_gt_u32 s47, 20000")
            a("s_cbranch_scc1 red_ok")
            a("s_sleep %s" % os.environ.get("RSL", "4"))
            a("s_branch red_poll")
            a.label("red_ok")
        a("s_lshl_b32 s46, s6, 11")
        a("s_add_u32 s46, s46, 0x20000")
        a("v_add_u32 v%d, s46, v11" % (RB + 2))
        for j in range(2):
            a("ds_read_b128 %s, v%d offset:%d" % (vr(RB + 4 + 32 * j, 4), RB + 2, j * 1024))
    for j in range(2 if OWN and not PB else 0):
        B = RB + 4 + 32 * j
        a("s_lshl_b32 s51, s50, 12")
        a("s_add_u32 s51, s51, 0x%x" % (PART + j * 8192))
        for p in range(1, 4):
            a("s_add_u32 s46, s5, %d" % p)
            a("s_and_b32 s46, s46, 3")
            a("s_lshl_b32 s46, s46, 22")
            a("s_add_u32 s46, s46, s51")
            a("buffer_load_dwordx4 %s, v%d, s[8:11], s46 offen" % (vr(B + 4 * p, 4), RB + 1))
    if OWN and not PB:
        a("s_lshl_b32 s46, s23, 12")
        a("s_add_u32 s46, s46, 0x20000")
        a("v_add_u32 v%d, s46, v%d" % (RB + 2, RB + 1))
        for j in range(2):
            a("ds_read_b128 %s, v%d offset:%d" % (vr(RB + 4 + 32 * j, 4), RB + 2, j * 8192))
    for j in range(0 if OWN else 2):
        B = RB + 4 + 32 * j
        a("s_lshl_b32 s51, s50, 12")
        a("s_add_u32 s51, s51, 0x%x" % (PART + j * 8192))
        for p in range(4):
            a("buffer_load_dwordx4 %s, v%d, s[8:11], s51 offen%s" % (vr(B + 4 * p, 4), RB + 1, " sc1" if SENT else ""))
            if p < 3:
                a("s_add_u32 s51, s51, 0x400000")
    if SENT:
        for j in range(2):
            B = RB + 4 + 32 * j
            a("s_waitcnt vmcnt(%d)" % (4 - 4 * j))
            a("v_max3_u32 v%d, v%d, v%d, v%d" % (248 + j, B, B + 1, B + 2))
            for i in range(6):
                a("v_max3_u32 v%d, v%d, v%d, v%d" % (248 + j, 248 + j, B + 3 + 2 * i, B + 4 + 2 * i))
            a("v_max_u32 v%d, v%d, v%d" % (248 + j, 248 + j, B + 15))
        a("v_max_u32 v248, v248, v249")
        a("v_cmp_eq_u32 vcc, -1, v248")
        a("s_nop 1")
        a("s_cbranch_vccz red_ok")
        a("s_add_u32 s47, s47, 1")
        a("s_cmp_gt_u32 s47, 20000")
        a("s_cbranch_scc1 red_ok")
        a("s_sleep %s" % os.environ.get("RSL", "4"))
        a("s_branch red_poll")
        a.label("red_ok")
    for j in range(2):
        B = RB + 4 + 32 * j
        for p in range(2):
            a("v_lshlrev_b32 v%d, 16, v%d" % (B + 20, B + 16 + p))
            a("v_and_b32 v%d, 0xffff0000, v%d" % (B + 21, B + 16 + p))
            a("v_lshlrev_b32 v%d, 16, v%d" % (B + 22, B + 18 + p))
            a("v_and_b32 v%d, 0xffff0000, v%d" % (B + 23, B + 18 + p))
            a("v_add_f32 v%d, v%d, v%d" % (B + 28 + 2 * p, B + 20, B + 22))
            a("v_add_f32 v%d, v%d, v%d" % (B + 29 + 2 * p, B + 21, B + 23))
    if PB:
        a("s_waitcnt lgkmcnt(0)")
        for j in range(2):
            B = RB + 4 + 32 * j
            for i in range(4):
                a("v_add_f32 v%d, v%d, v%d" % (B + i, B + i, B + 28 + i))
        for p in range(1, 4):
            a("s_waitcnt vmcnt(%d)" % (3 - p))
            for j in range(2):
                B = RB + 4 + 32 * j
                for h in range(2):
                    src = B0 + 4 * p + 2 * j + h
                    t = B1 + 4 + 4 * j + 2 * h
                    a("v_lshlrev_b32 v%d, 16, v%d" % (t, src))
                    a("v_and_b32 v%d, 0xffff0000, v%d" % (t + 1, src))
                    a("v_add_f32 v%d, v%d, v%d" % (B + 2 * h, B + 2 * h, t))
                    a("v_add_f32 v%d, v%d, v%d" % (B + 2 * h + 1, B + 2 * h + 1, t + 1))
        for j in range(2):
            B = RB + 4 + 32 * j
            for p in range(2):
                a("v_cvt_pk_bf16_f32 v%d, v%d, v%d" % (B + 24 + p, B + 2 * p, B + 1 + 2 * p))
            if "o4" not in EXP:
                a("buffer_store_dwordx2 %s, v%d, s[60:63], 0 offen %s" % (vr(B + 24, 2), B + 26, os.environ.get("OSC", "")))
        if "o4" in EXP:
            a("s_nop 1")
            a("v_permlane32_swap_b32 v%d, v%d" % (B0 + 24, B1 + 24))
            a("v_permlane32_swap_b32 v%d, v%d" % (B0 + 25, B1 + 25))
            a("v_lshrrev_b32 v%d, 5, v1" % (B0 + 20))
            a("v_lshlrev_b32 v%d, 3, v%d" % (B0 + 20, B0 + 20))
            a("v_add_u32 v%d, v%d, v%d" % (B0 + 20, B0 + 26, B0 + 20))
            a("v_mov_b32 v%d, v%d" % (B0 + 26, B1 + 24))
            a("v_mov_b32 v%d, v%d" % (B0 + 27, B1 + 25))
            a("buffer_store_dwordx4 %s, v%d, s[60:63], 0 offen %s" % (vr(B0 + 24, 4), B0 + 20, os.environ.get("OSC", "")))
    for j in range(0 if PB else 2):
        B = RB + 4 + 32 * j
        if OWN:
            a("s_waitcnt vmcnt(%d) lgkmcnt(0)" % (3 - 2 * j))
        else:
            a("s_waitcnt vmcnt(%d)" % (4 - 3 * j))
        for i in range(4):
            a("v_add_f32 v%d, v%d, v%d" % (B + i, B + i, B + 4 + i))
            a("v_add_f32 v%d, v%d, v%d" % (B + 8 + i, B + 8 + i, B + 12 + i))
        for i in range(4):
            a("v_add_f32 v%d, v%d, v%d" % (B + i, B + i, B + 8 + i))
        for i in range(4):
            a("v_add_f32 v%d, v%d, v%d" % (B + i, B + i, B + 28 + i))
        for p in range(2):
            a("v_cvt_pk_bf16_f32 v%d, v%d, v%d" % (B + 24 + p, B + 2 * p, B + 1 + 2 * p))
        a("buffer_store_dwordx2 %s, v%d, s[60:63], 0 offen" % (vr(B + 24, 2), B + 26))
    a.stamp()
    a.stamp_flush(0)
    if os.environ.get("STAMP"):
        a("s_waitcnt vmcnt(0)")
        a("s_memrealtime s[18:19]")
        a("s_load_dwordx2 s[8:9], s[0:1], 96")
        a("s_mov_b32 s10, 65536")
        a("s_mov_b32 s11, 0x20000")
        a("s_lshl_b32 s20, s2, 4")
        a("s_add_u32 s20, s20, %d" % (4096 + 4096 * 3))
        a("s_waitcnt lgkmcnt(0)")
        a("s_mov_b64 exec, 1")
        a("v_mov_b32 v4, s18")
        a("v_mov_b32 v5, s93")
        a("v_mov_b32 v6, s18")
        a("v_mov_b32 v7, s92")
        a("v_mov_b32 v2, 0")
        a("buffer_store_dwordx4 v[4:7], v2, s[8:11], s20 offen")
    if os.environ.get("OST"):
        a("s_waitcnt vmcnt(0)")
    a.ostamp(True)
    a("s_endpgm")
```

```python
import sys

NAME = "parallel_sum__compressed_kv_cla__dense_activation_squared_relu__prompt"

MB = 1 << 20
QF = 0
KF = 16 * MB
VF = 32 * MB
AF = 49 * MB
AF_BLK = 368 * 1024
PART = 80 * MB
CTR = 100 * MB
import math, struct
QSC = struct.unpack("<I", struct.pack("<f", (128 ** -0.5) * math.log2(math.e)))[0]


import os
STAMP = os.environ.get("STAMP")
EARLY = "early" in os.environ.get("EXP", "")


class Asm:
    def __init__(self):
        self.lines = []
        self.nst = 0

    def stamp(self):
        if not STAMP:
            return
        self("s_memtime s[98:99]")
        self("s_waitcnt lgkmcnt(0)")
        self("s_mov_b32 s%d, s98" % (68 + self.nst))
        self.nst += 1

    def stamp_flush(self, wgsel, dbgptr_off=96):
        if not STAMP:
            return
        L = "stf_%d" % len(self.lines)
        self("s_cmp_lg_u32 s2, %d" % wgsel)
        self("s_cbranch_scc1 %s" % L)
        self("s_load_dwordx2 s[96:97], s[0:1], %d" % dbgptr_off)
        self("s_waitcnt lgkmcnt(0)")
        self("s_mov_b32 s98, 4096")
        self("s_mov_b32 s99, 0x20000")
        self("v_cmp_eq_u32 vcc, 0, v0")
        self("s_and_saveexec_b64 s[94:95], vcc")
        self("s_cbranch_execz %s" % L)
        for i in range(self.nst):
            self("v_mov_b32 v1, s%d" % (68 + i))
            self("v_mov_b32 v2, %d" % (4 * i + 512 * (self.phase + 1)))
            self("buffer_store_dword v1, v2, s[96:99], 0 offen")
        self.label(L)
        self("s_mov_b64 exec, -1")
        self.nst = 0

    phase = 0
    on = 0

    def code_touch(self, lo, hi, tag, back, n):
        a = self
        lo = "(%s)" % lo
        a("s_getpc_b64 s[88:89]")
        a.label("ct_%s" % tag)
        if back:
            a("s_sub_u32 s88, s88, ct_%s-%s" % (tag, lo))
            a("s_subb_u32 s89, s89, 0")
        else:
            a("s_add_u32 s88, s88, %s-ct_%s" % (lo, tag))
            a("s_addc_u32 s89, s89, 0")
        for k in range(n):
            a("v_lshlrev_b32 v255, 7, v0")
            if k:
                a("v_add_u32 v255, 0x%x, v255" % (k * 65536))
            a("v_min_u32 v255, %s-%s-4, v255" % (hi, lo))
            a("global_load_dword v254, v255, s[88:89]")

    def ostamp(self, last=False):
        OST = os.environ.get("OST")
        if not OST:
            return
        a = self
        a("s_memrealtime s[98:99]")
        a("s_waitcnt lgkmcnt(0)")
        a("s_mov_b32 s%d, s98" % (68 + self.on if self.on else 93))
        self.on += 1
        if last:
            a("s_cmp_lg_u32 s2, %s" % OST)
            a("s_cbranch_scc1 ost_skip")
            a("s_load_dwordx2 s[96:97], s[0:1], 96")
            a("s_mov_b32 s98, 256")
            a("s_mov_b32 s99, 0x20000")
            a("v_cmp_eq_u32 vcc, 0, v0")
            a("s_and_saveexec_b64 s[94:95], vcc")
            a("s_cbranch_execz ost_skip")
            a("s_waitcnt lgkmcnt(0)")
            for i in range(1, self.on):
                a("s_sub_u32 s94, s%d, s93" % (68 + i))
                a("v_mov_b32 v1, s94")
                a("v_mov_b32 v2, %d" % (28 + 4 * i))
                a("buffer_store_dword v1, v2, s[96:99], 0 offen")
            a.label("ost_skip")
            a("s_mov_b64 exec, -1")

    def gb_signal(self, k, split=False):
        a = self
        a("s_load_dwordx2 s[80:81], s[0:1], 96")
        a("s_load_dwordx2 s[84:85], s[0:1], 104")
        a("s_mov_b32 s82, 256")
        a("s_mov_b32 s83, 0x20000")
        a("s_mov_b32 s86, 0x10000000")
        a("s_mov_b32 s87, 0x20000")
        a("s_mov_b64 exec, 1")
        a("v_mov_b32 v12, 1")
        a("v_mov_b32 v13, %d" % (4 * k))
        a("v_mov_b32 v14, 1")
        a("v_mov_b32 v15, 0")
        a("s_and_b32 s88, s2, 15")
        a("s_lshl_b32 s88, s88, 12")
        a("s_add_u32 s88, s88, 0x%x" % (CTR + (k - 1) * 65536))
        a("s_waitcnt lgkmcnt(0)")
        a("buffer_atomic_add v14, v15, s[84:87], s88 offen sc0 sc1")
        if split:
            a("s_mov_b64 exec, -1")
            return
        a("s_waitcnt vmcnt(0)")
        self.gb_signal2(k)

    def gb_signal2(self, k):
        a = self
        a("v_readfirstlane_b32 s89, v14")
        a("s_cmp_lg_u32 s89, 15")
        a("s_cbranch_scc1 gs_nr%d" % k)
        a("s_mov_b64 exec, 1")
        a("buffer_atomic_add v12, v13, s[80:83], 0 offen sc1")
        a.label("gs_nr%d" % k)
        a("s_mov_b64 exec, -1")

    def gb_poll(self, k):
        a = self
        a("s_mov_b64 exec, 1")
        a("v_mov_b32 v13, %d" % (4 * k))
        a("s_mov_b32 s88, 0")
        a.label("gp_loop%d" % k)
        a("buffer_load_dword v14, v13, s[80:83], 0 offen sc1")
        a("s_waitcnt vmcnt(0)")
        a("v_readfirstlane_b32 s89, v14")
        a("s_cmp_ge_u32 s89, 16")
        a("s_cbranch_scc1 gp_done%d" % k)
        a("s_add_u32 s88, s88, 1")
        a("s_cmp_gt_u32 s88, 40000")
        a("s_cbranch_scc1 gp_done%d" % k)
        a("s_sleep %s" % os.environ.get("PSL", "8"))
        a("s_branch gp_loop%d" % k)
        a.label("gp_done%d" % k)
        a("s_mov_b64 exec, -1")

    def eb_pre(self):
        a = self
        if STAMP:
            a("s_memrealtime s[70:71]")
        a("s_load_dwordx2 s[84:85], s[0:1], 96")
        a("s_mov_b32 s86, 256")
        a("s_mov_b32 s87, 0x20000")
        a("v_mov_b32 v248, 0")
        a("v_mov_b32 v249, 1")
        a("v_mov_b32 v250, 8")
        a("s_cmp_ge_u32 s2, 96")
        a("s_cbranch_scc1 eb_noinit")
        a("s_lshl_b32 s88, s2, 12")
        a("s_add_u32 s88, s88, 0x%x" % CTR)
        a("buffer_store_dword v248, v248, s[8:11], s88 offen sc0 sc1")
        a.label("eb_noinit")
        a("s_waitcnt lgkmcnt(0)")
        a("s_cmp_lg_u32 s6, 0")
        a("s_cbranch_scc1 eb_kok")
        a("s_mov_b64 exec, 1")
        a("s_mov_b32 s88, 0")
        a.label("eb_kloop")
        a("buffer_load_dword v251, v250, s[84:87], 0 offen sc1")
        a("s_waitcnt vmcnt(0)")
        a("v_readfirstlane_b32 s89, v251")
        a("s_cmp_ge_u32 s89, 256")
        a("s_cbranch_scc1 eb_kok")
        a("s_add_u32 s88, s88, 1")
        a("s_cmp_gt_u32 s88, 40000")
        a("s_cbranch_scc1 eb_kok")
        a("s_sleep 8")
        a("s_branch eb_kloop")
        a.label("eb_kok")
        a("s_mov_b64 exec, -1")
        a("s_waitcnt vmcnt(0)")
        a("s_barrier")
        if STAMP:
            a("s_memrealtime s[72:73]")
        a("s_cmp_lg_u32 s6, 0")
        a("s_cbranch_scc1 eb_arr")
        a("s_mov_b64 exec, 1")
        a("s_and_b32 s88, s2, 15")
        a("s_lshl_b32 s88, s88, 2")
        a("s_add_u32 s88, s88, 128")
        a("v_mov_b32 v251, 1")
        a("buffer_atomic_add v251, v248, s[84:87], s88 offen sc0 sc1")
        a("s_waitcnt vmcnt(0)")
        a("v_readfirstlane_b32 s89, v251")
        a("s_cmp_lg_u32 s89, 15")
        a("s_cbranch_scc1 eb_arr")
        a("buffer_atomic_add v249, v248, s[84:87], 0 offen sc1")
        a.label("eb_arr")
        a("s_mov_b64 exec, -1")

    def eb_post(self):
        a = self
        a("s_cmp_lg_u32 s6, %s" % os.environ.get("PW", "1"))
        a("s_cbranch_scc1 eb_done")
        a("s_mov_b64 exec, 1")
        a("s_mov_b32 s88, 0")
        a.label("eb_loop")
        a("buffer_load_dword v251, v248, s[84:87], 0 offen sc1")
        a("s_waitcnt vmcnt(0)")
        a("v_readfirstlane_b32 s89, v251")
        a("s_cmp_ge_u32 s89, 16")
        a("s_cbranch_scc1 eb_fin")
        a("s_add_u32 s88, s88, 1")
        a("s_cmp_gt_u32 s88, 40000")
        a("s_cbranch_scc1 eb_fin")
        a("s_sleep %s" % os.environ.get("SLEEP", "8"))
        a("s_branch eb_loop")
        a.label("eb_fin")
        if STAMP:
            a("s_memrealtime s[74:75]")
            a("s_mov_b32 s86, 65536")
            a("s_lshl_b32 s88, s2, 4")
            a("s_add_u32 s88, s88, 4096")
            a("s_waitcnt lgkmcnt(0)")
            a("v_mov_b32 v252, s70")
            a("v_mov_b32 v253, s72")
            a("v_mov_b32 v254, s74")
            a("v_mov_b32 v255, s92")
            a("buffer_store_dwordx4 v[252:255], v248, s[84:87], s88 offen")
        a.label("eb_done")
        a("s_mov_b64 exec, -1")
        a("s_waitcnt vmcnt(0)")
        a("s_barrier")
        a.ostamp()
        self.phase = 1

    def gridbar(self, k):
        a = self
        if STAMP:
            a("s_memrealtime s[14:15]")
        if k == 0:
            a("s_cmp_ge_u32 s2, 96")
            a("s_cbranch_scc1 gb_noinit")
            a("s_load_dwordx2 s[8:9], s[0:1], 104")
            a("s_mov_b32 s10, 0x10000000")
            a("s_mov_b32 s11, 0x20000")
            a("s_lshl_b32 s12, s2, 12")
            a("s_add_u32 s12, s12, 0x%x" % CTR)
            a("v_mov_b32 v1, 0")
            a("v_mov_b32 v2, 0")
            a("s_waitcnt lgkmcnt(0)")
            a("buffer_store_dword v1, v2, s[8:11], s12 offen sc0 sc1")
            a.label("gb_noinit")
        a("s_waitcnt vmcnt(0) lgkmcnt(0)")
        a("s_barrier")
        if STAMP:
            a("s_memrealtime s[16:17]")
        a("v_lshrrev_b32 v1, 6, v0")
        a("s_nop 0")
        a("v_readfirstlane_b32 s6, v1")
        if "ct2" in os.environ.get("EXP", "") and k == 0:
            a("s_cmp_eq_u32 s6, 0")
            a("s_cbranch_scc1 ct2_skip")
            a("s_cmp_gt_u32 s6, 3")
            a("s_cbranch_scc1 gb_wait%d" % k)
            a.code_touch("attn_kernel-8192", "code_end", "b", True, 1)
            a("s_branch gb_wait%d" % k)
            a.label("ct2_skip")
        a("s_cmp_lg_u32 s6, 0")
        a("s_cbranch_scc1 gb_wait%d" % k)
        a("s_load_dwordx2 s[8:9], s[0:1], 96")
        a("s_load_dwordx2 s[24:25], s[0:1], 104")
        a("s_mov_b32 s10, 256")
        a("s_mov_b32 s11, 0x20000")
        a("s_mov_b32 s26, 0x10000000")
        a("s_mov_b32 s27, 0x20000")
        a("s_mov_b64 exec, 1")
        a("v_mov_b32 v1, 1")
        a("v_mov_b32 v2, %d" % (4 * k))
        a("s_waitcnt lgkmcnt(0)")
        tgt = 256
        DF = "df" in os.environ.get("EXP", "") and k == 0
        if DF:
            tgt = 16
            a("s_lshl_b32 s12, s4, 4")
            a("s_add_u32 s12, s12, 8")
            a("v_mov_b32 v3, 1")
            a("v_mov_b32 v4, 0")
            a("buffer_atomic_add v3, v4, s[8:11], s12 offen sc0 sc1")
            a("s_and_b32 s12, s2, 3")
            a("s_lshl_b32 s12, s12, 2")
            a("s_bfe_u32 s13, s2, 0x20003")
            a("s_add_u32 s12, s12, s13")
            a("s_lshl_b32 s12, s12, 4")
            a("s_add_u32 s12, s12, 8")
            a("v_mov_b32 v5, s12")
            a("s_waitcnt vmcnt(0)")
            a("v_readfirstlane_b32 s13, v3")
            a("s_cmp_lg_u32 s13, 15")
            a("s_cbranch_scc1 gb_nr%d" % k)
        elif True:
            tgt = 16
            a("s_and_b32 s12, s2, 15")
            a("v_mov_b32 v3, 1")
            a("v_mov_b32 v4, 0")
            if k > 0:
                a("s_lshl_b32 s12, s12, 12")
                a("s_add_u32 s12, s12, 0x%x" % (CTR + (k - 1) * 65536))
                a("buffer_atomic_add v3, v4, s[24:27], s12 offen sc0 sc1")
            else:
                a("s_lshl_b32 s12, s12, 2")
                a("s_add_u32 s12, s12, 128")
                a("buffer_atomic_add v3, v4, s[8:11], s12 offen sc0 sc1")
            a("s_waitcnt vmcnt(0)")
            a("v_readfirstlane_b32 s13, v3")
            a("s_cmp_lg_u32 s13, 15")
            a("s_cbranch_scc1 gb_nr%d" % k)
        a("buffer_atomic_add v1, v2, s[8:11], 0 offen sc1")
        if True:
            a.label("gb_nr%d" % k)
        a("s_mov_b32 s12, 0")
        if DF:
            a("v_mov_b32 v2, v5")
        a.label("gb_loop%d" % k)
        a("buffer_load_dword v3, v2, s[8:11], 0 offen %s" % os.environ.get("PSC", "sc1"))
        a("s_waitcnt vmcnt(0)")
        a("v_readfirstlane_b32 s13, v3")
        a("s_cmp_ge_u32 s13, %d" % tgt)
        a("s_cbranch_scc1 gb_done%d" % k)
        a("s_add_u32 s12, s12, 1")
        a("s_cmp_gt_u32 s12, 40000")
        a("s_cbranch_scc1 gb_done%d" % k)
        a("s_sleep %s" % os.environ.get("SLEEP", "8"))
        a("s_branch gb_loop%d" % k)
        a.label("gb_done%d" % k)
        if STAMP:
            a("s_memrealtime s[18:19]")
            a("s_mov_b32 s10, 65536")
            a("s_lshl_b32 s20, s2, 4")
            a("s_add_u32 s20, s20, %d" % (4096 + 4096 * k))
            a("s_waitcnt lgkmcnt(0)")
            a("s_mov_b64 exec, 1")
            a("v_mov_b32 v4, s14")
            a("v_mov_b32 v5, s16")
            a("v_mov_b32 v6, s18")
            a("v_mov_b32 v7, s92")
            a("v_mov_b32 v2, 0")
            a("buffer_store_dwordx4 v[4:7], v2, s[8:11], s20 offen")
        a("s_mov_b64 exec, -1")
        a("s_waitcnt lgkmcnt(0)")
        a.label("gb_wait%d" % k)
        a("s_barrier")
        if "inv" in os.environ.get("EXP", ""):
            a("buffer_inv sc1")
        self.phase = k + 1

    inloop = False

    def __call__(self, s):
        EXP = os.environ.get("EXP", "")
        if self.inloop:
            if "nomfma" in EXP and s.startswith("v_mfma"):
                return
            if "novalu" in EXP and s.startswith("v_") and not s.startswith("v_mfma") and not s.startswith("v_cmp") and "0x1ffff" not in s and "0x8000" not in s and not s.startswith("v_mov") and not s.startswith("v_add_u32"):
                return
            if "nolds" in EXP and s.startswith("ds_read"):
                return
            if "nodma" in EXP and s.startswith("buffer_load"):
                return
            if "nobar" in EXP and s.startswith("s_barrier"):
                return
        if "nosc1" in EXP and s.startswith("buffer_store") and s.endswith(" sc1"):
            s = s[:-4]
        self.lines.append("  " + s)

    def label(self, s):
        self.lines.append(s + ":")

    def raw(self, s):
        self.lines.append(s)

    def nop(self, n):
        while n > 0:
            k = min(n, 16)
            self("s_nop %d" % (k - 1))
            n -= k


def vr(a, n):
    return "v[%d:%d]" % (a, a + n - 1)


def sr(a, n):
    return "s[%d:%d]" % (a, a + n - 1)


def gen_proj(a):
    V_LANE = 1
    V_TR = 2
    V_OFFC = 10
    V_OFFN = 11
    V_ST = 12
    V_T0 = 13
    V_B = 16
    V_ACC = 48
    V_A = 112
    V_ROWI = 13
    V_SWZ = 14
    V_T = 15
    V_AOFF = 240

    a.label("mega_kernel")
    a("s_cmp_lt_u32 s2, 256")
    a("s_cbranch_scc1 proj_start")
    a("s_endpgm")
    a.label("proj_start")
    a.ostamp()
    if STAMP:
        a("s_memrealtime s[92:93]")
    a.stamp()
    a("s_load_dwordx2 s[8:9], s[0:1], 96")
    a("s_load_dwordx2 s[82:83], s[0:1], 96")
    a("s_load_dwordx16 s[24:39], s[0:1], 0")
    a("s_load_dwordx4 s[40:43], s[0:1], 64")
    a("s_load_dwordx2 s[44:45], s[0:1], 104")
    EXPF = os.environ.get("EXP", "")
    if "ct1" in EXPF:
        a("s_bfe_u32 s3, s2, 0x20003")
        a("s_cmp_lg_u32 s3, 0")
        a("s_cbranch_scc1 ct1_skip")
        a.code_touch("mega_kernel", "code_end", "a", True, 2)
        a.label("ct1_skip")
    if "tick" in EXPF:
        a("v_lshrrev_b32 v1, 6, v0")
        a("v_lshlrev_b32 v4, 14, v1")
        a("v_add_u32 v4, 0x8000, v4")
        a("v_readfirstlane_b32 s6, v1")
        a("s_getreg_b32 s4, hwreg(HW_REG_XCC_ID)")
        a("s_and_b32 s4, s4, 7")
        if "tkforce" in EXPF:
            a("s_min_u32 s4, s4, 4")
        a("s_mov_b32 s10, 256")
        a("s_mov_b32 s11, 0x20000")
        a("s_lshl_b32 s5, s4, 2")
        a("s_add_u32 s5, s5, 192")
        a("v_mov_b32 v2, s5")
        a("v_mov_b32 v3, 1")
        a("s_cmp_eq_u32 s6, 0")
        a("s_cbranch_scc1 tk_w0")
        a("s_cmp_lg_u32 s6, 7")
        a("s_cbranch_scc1 tk_wait")
        a("s_mov_b64 exec, 1")
        a("s_waitcnt lgkmcnt(0)")
        a("v_subrev_u32 v2, 160, v2")
        a("buffer_atomic_add v3, v2, s[8:11], 0 offen sc1")
        a("s_mov_b64 exec, -1")
        a("s_branch tk_wait")
        a.label("tk_w0")
        a("s_mov_b64 exec, 1")
        a("s_waitcnt lgkmcnt(0)")
        a("buffer_atomic_add v3, v2, s[8:11], 0 offen sc0%s" % (" sc1" if "tkforce" in EXPF or "tkglob" in EXPF else ""))
        a("s_waitcnt vmcnt(0)")
        a("v_readfirstlane_b32 s5, v3")
        a("s_cmp_lt_u32 s5, 32")
        a("s_cbranch_scc1 tk_got")
        a("s_mov_b32 s7, 0")
        a("v_mov_b32 v2, 32")
        a.label("tk_poll")
        a("buffer_load_dwordx4 v[8:11], v2, s[8:11], 0 offen sc1")
        a("buffer_load_dwordx4 v[12:15], v2, s[8:11], 0 offen offset:16 sc1")
        a("s_waitcnt vmcnt(0)")
        a("s_mov_b32 s12, 0")
        for i in range(8):
            a("v_readfirstlane_b32 s%d, v%d" % (48 + i, 8 + i))
            a("s_add_u32 s12, s12, s%d" % (48 + i))
        a("s_cmp_ge_u32 s12, 256")
        a("s_cbranch_scc1 tk_full")
        a("s_add_u32 s7, s7, 1")
        a("s_sleep 8")
        a("s_cmp_lt_u32 s7, 40000")
        a("s_cbranch_scc1 tk_poll")
        a.label("tk_fail")
        a("s_lshr_b32 s5, s2, 3")
        a("s_and_b32 s4, s2, 7")
        a("s_branch tk_got")
        a.label("tk_full")
        a("s_sub_u32 s5, s5, 32")
        for i in range(7):
            a("s_max_u32 s12, s%d, 32" % (48 + i))
            a("s_sub_u32 s12, s12, 32")
            a("s_cmp_gt_u32 s4, %d" % i)
            a("s_cselect_b32 s12, s12, 0")
            a("s_add_u32 s5, s5, s12")
        for i in range(8):
            a("s_min_u32 s12, s%d, 32" % (48 + i))
            a("s_sub_u32 s13, 32, s12")
            a("s_mov_b32 s4, %d" % i)
            a("s_cmp_lt_u32 s5, s13")
            a("s_cbranch_scc1 tk_slot")
            a("s_sub_u32 s5, s5, s13")
        a("s_branch tk_fail")
        a.label("tk_slot")
        a("s_add_u32 s5, s5, s12")
        a.label("tk_got")
        a("s_lshl_b32 s5, s5, 3")
        a("s_add_u32 s5, s5, s4")
        a("s_mov_b64 exec, 0xff")
        a("v_lshlrev_b32 v2, 14, v0")
        a("v_add_u32 v2, 0x8000, v2")
        a("v_mov_b32 v3, s5")
        a("ds_write_b32 v2, v3")
        a("s_mov_b64 exec, -1")
        a("s_waitcnt lgkmcnt(0)")
        a.label("tk_wait")
        a("s_barrier")
        a("ds_read_b32 v3, v4")
        a("s_waitcnt lgkmcnt(0)")
        a("v_readfirstlane_b32 s2, v3")
        a("s_and_b32 s2, s2, 255")
        if STAMP:
            a("s_memrealtime s[96:97]")
            a("s_waitcnt lgkmcnt(0)")
            a("s_mov_b32 s93, s96")
    PM = os.environ.get("PM", "5")
    if PM == "0":
        a("s_lshr_b32 s3, s2, 5")
        a("s_and_b32 s4, s2, 31")
    elif PM == "1":
        a("s_and_b32 s3, s2, 7")
        a("s_lshr_b32 s4, s2, 3")
    elif PM == "2":
        a("s_and_b32 s3, s2, 3")
        a("s_bfe_u32 s4, s2, 0x10003")
        a("s_lshl_b32 s4, s4, 2")
        a("s_or_b32 s3, s3, s4")
        a("s_bfe_u32 s4, s2, 0x10002")
        a("s_lshr_b32 s5, s2, 4")
        a("s_lshl_b32 s5, s5, 1")
        a("s_or_b32 s4, s4, s5")
    elif PM == "3":
        a("s_and_b32 s3, s2, 1")
        a("s_bfe_u32 s4, s2, 0x20003")
        a("s_lshl_b32 s4, s4, 1")
        a("s_or_b32 s3, s3, s4")
        a("s_bfe_u32 s4, s2, 0x20001")
        a("s_lshr_b32 s5, s2, 5")
        a("s_lshl_b32 s5, s5, 2")
        a("s_or_b32 s4, s4, s5")
    elif PM == "4":
        a("s_lshr_b32 s3, s2, 5")
        a("s_bfe_u32 s4, s2, 0x40001")
        a("s_and_b32 s5, s2, 1")
        a("s_lshl_b32 s5, s5, 4")
        a("s_or_b32 s4, s4, s5")
    elif PM == "5":
        a("s_bfe_u32 s3, s2, 0x10001")
        a("s_bfe_u32 s4, s2, 0x20003")
        a("s_lshl_b32 s4, s4, 1")
        a("s_or_b32 s3, s3, s4")
        a("s_bfe_u32 s4, s2, 0x10002")
        a("s_lshr_b32 s5, s2, 5")
        a("s_lshl_b32 s5, s5, 1")
        a("s_or_b32 s4, s4, s5")
        a("s_and_b32 s5, s2, 1")
        a("s_lshl_b32 s5, s5, 4")
        a("s_or_b32 s4, s4, s5")
    elif PM == "7":
        a("s_bfe_u32 s3, s2, 0x10001")
        a("s_bfe_u32 s4, s2, 0x20003")
        a("s_lshl_b32 s4, s4, 1")
        a("s_or_b32 s3, s3, s4")
        a("s_bfe_u32 s4, s2, 0x10002")
        a("s_lshl_b32 s4, s4, 3")
        a("s_lshr_b32 s5, s2, 5")
        a("s_or_b32 s4, s4, s5")
        a("s_and_b32 s5, s2, 1")
        a("s_lshl_b32 s5, s5, 4")
        a("s_or_b32 s4, s4, s5")
    elif PM == "8":
        a("s_bfe_u32 s3, s2, 0x10001")
        a("s_bfe_u32 s4, s2, 0x20003")
        a("s_lshl_b32 s4, s4, 1")
        a("s_or_b32 s3, s3, s4")
        a("s_bfe_u32 s4, s2, 0x10002")
        a("s_lshl_b32 s4, s4, 1")
        a("s_bfe_u32 s5, s2, 0x10005")
        a("s_or_b32 s4, s4, s5")
        a("s_lshr_b32 s5, s2, 6")
        a("s_lshl_b32 s5, s5, 2")
        a("s_or_b32 s4, s4, s5")
        a("s_and_b32 s5, s2, 1")
        a("s_lshl_b32 s5, s5, 4")
        a("s_or_b32 s4, s4, s5")
    elif PM == "6":
        a("s_bfe_u32 s3, s2, 0x30001")
        a("s_lshr_b32 s4, s2, 4")
        a("s_and_b32 s5, s2, 1")
        a("s_lshl_b32 s5, s5, 4")
        a("s_or_b32 s4, s4, s5")
    a("v_lshrrev_b32 v1, 6, v0")
    a("s_nop 0")
    a("v_readfirstlane_b32 s6, v1")
    a("v_and_b32 v1, 63, v0")
    a("s_waitcnt lgkmcnt(0)")
    a.stamp()
    a("s_cmp_lt_u32 s4, 16")
    a("s_cselect_b32 s8, s24, s26")
    a("s_cselect_b32 s9, s25, s27")
    a("s_cselect_b32 s5, 0, 1")
    a("s_and_b32 s4, s4, 15")
    a("s_mov_b32 s10, 0x200000")
    a("s_mov_b32 s11, 0x20000")
    a("s_mov_b32 s16, s44")
    a("s_mov_b32 s17, s45")
    a("s_mov_b32 s18, 0x10000000")
    a("s_mov_b32 s19, 0x20000")
    a("s_mov_b32 s20, s40")
    a("s_mov_b32 s21, s41")
    a("s_mov_b32 s22, 3584")
    a("s_mov_b32 s23, 0x20000")
    a("s_mov_b32 s15, 0x20000")
    a("s_mov_b32 s51, 0x20000")
    a("s_lshl_b32 s58, s6, 12")
    a("s_lshl_b32 s59, s3, 3")
    a("s_add_u32 s59, s59, s6")
    a("v_and_b32 v13, 15, v1")
    a("v_lshlrev_b32 v13, 10, v13")
    a("v_lshrrev_b32 v14, 4, v1")
    a("v_lshlrev_b32 v14, 4, v14")
    a("v_add_u32 v13, v13, v14")
    a("s_movk_i32 s65, 0x4000")
    a("s_lshl_b32 s60, s59, 15")
    a("v_add_u32 v13, s60, v13")
    a("v_mov_b32 v%d, v13" % V_AOFF)

    def aloads(lo, hi):
        for s in range(lo, hi):
            a("buffer_load_dwordx4 %s, v%d, s[8:11], %s offen offset:%d" % (
                vr(V_A + 4 * s, 4), V_AOFF, "s65" if s & 1 else "0", (s >> 1) * 64))

    def aswaps(lo, hi):
        for s in range(lo, hi, 2):
            for j in range(4):
                a("v_permlane16_swap_b32 v%d, v%d" % (V_A + 4 * s + j, V_A + 4 * s + 4 + j))
        a("s_nop 1")
    a("v_bfe_u32 v13, v1, 2, 2")
    a("v_lshrrev_b32 v14, 5, v1")
    a("v_lshl_add_u32 v14, v14, 4, v13")
    a("v_lshlrev_b32 v14, 8, v14")
    a("v_bfe_u32 v15, v1, 4, 1")
    a("v_lshl_add_u32 v14, v15, 5, v14")
    a("v_and_b32 v15, 3, v1")
    a("v_lshl_add_u32 v14, v15, 3, v14")
    a("v_lshlrev_b32 v13, 6, v13")
    for nt in range(4):
        a("v_xor_b32 v15, %d, v13" % (nt << 6))
        a("v_add_u32 v%d, v14, v15" % (V_TR + nt))
        a("v_add_u32 v%d, 0x10000, v%d" % (V_TR + 4 + nt, V_TR + nt))
    a("v_lshlrev_b32 v%d, 4, v1" % V_ST)
    a("v_lshrrev_b32 v13, 4, v1")
    a("v_bfe_u32 v14, v1, 2, 2")
    a("v_xor_b32 v14, v14, v13")
    a("v_lshlrev_b32 v14, 6, v14")
    a("v_and_b32 v15, 3, v1")
    a("v_lshl_add_u32 v14, v15, 4, v14")
    a("s_lshl_b32 s60, s6, 4")
    a("v_add_u32 v13, s60, v13")

    def set_params(which, wlo, whi, nrec, ldw, colexpr_reg):
        base = 12 if which == "cur" else 48
        sl, sc = (52, 53) if which == "cur" else (54, 55)
        voff = V_OFFC if which == "cur" else V_OFFN
        a("s_mov_b32 s%d, s%d" % (base, wlo))
        a("s_mov_b32 s%d, s%d" % (base + 1, whi))
        if isinstance(nrec, str):
            a("s_mov_b32 s%d, %s" % (base + 2, nrec))
        else:
            a("s_mov_b32 s%d, 0x%x" % (base + 2, nrec))
        a("s_mov_b32 s%d, %d" % (sl, ldw))
        a("s_mov_b32 s%d, %s" % (sc, colexpr_reg))
        a("v_mul_lo_u32 v%d, v%d, s%d" % (voff, V_ROWI, sl))
        a("v_add_u32 v%d, v%d, v%d" % (voff, voff, V_SWZ))

    def dma(kc, which, only=None):
        base = 12 if which == "cur" else 48
        sl, sc = (52, 53) if which == "cur" else (54, 55)
        voff = V_OFFC if which == "cur" else V_OFFN
        for i in range(4):
            if only is not None and i != only:
                continue
            a("s_add_u32 m0, s58, %d" % (kc * 32768 + i * 1024))
            a("s_mul_i32 s57, s%d, %d" % (sl, kc * 128 + 4 * i))
            a("s_add_u32 s57, s57, s%d" % sc)
            a("buffer_load_dwordx4 v%d, %s, s57 offen lds" % (voff, sr(base, 4)))

    def reads(kc, s, setidx, tr=False, only=None):
        hi = 4 if kc >= 2 else 0
        off = (kc & 1) * 32768 + (s >> 1) * 8192 + (s & 1) * 2048
        if tr == "L":
            for j in range(4):
                if only is not None and j != only:
                    continue
                jj = 4 * (s & 1) + j
                off = (kc & 1) * 32768 + (jj >> 1) * 8192 + (jj & 1) * 2048
                for ird in range(2):
                    a("ds_read_b64_tr_b16 %s, v%d offset:%d" % (
                        vr(V_B + setidx * 16 + j * 4 + ird * 2, 2), V_TR + hi + (s >> 1), off + ird * 1024))
            return
        if tr:
            for j in range(4):
                if only is not None and j != only:
                    continue
                off = (kc & 1) * 32768 + (j >> 1) * 8192 + (j & 1) * 2048
                for ird in range(2):
                    a("ds_read_b64_tr_b16 %s, v%d offset:%d" % (
                        vr(V_B + setidx * 16 + j * 4 + ird * 2, 2), V_TR + hi + s, off + ird * 1024))
            return
        for nt in range(4):
            if only is not None and nt != only:
                continue
            for ird in range(2):
                a("ds_read_b64_tr_b16 %s, v%d offset:%d" % (
                    vr(V_B + setidx * 16 + nt * 4 + ird * 2, 2), V_TR + hi + nt, off + ird * 1024))

    def epi_part(kind, nt):
        if kind == "Q":
            for i in range(16):
                a("v_mul_f32 v%d, v%d, v%d" % (V_ACC + 16 * nt + i, V_LNR + 1, V_ACC + 16 * nt + i))
        for t in range(2):
            d = V_ACC + 16 * nt + 8 * t
            for p in range(4):
                x0 = V_ACC + 16 * nt + 8 * t + 2 * p
                a("v_cvt_pk_bf16_f32 v%d, v%d, v%d" % (d + p, x0, x0 + 1))
            a("buffer_store_dwordx4 %s, v%d, s[16:19], s%d offen offset:%d sc1" % (
                vr(d, 4), V_ST, 90 if nt < 2 else 91, ((nt * 2 + t) & 3) * 1024))
        a("s_nop 1")

    SPR = os.environ.get("SPR", "")
    sprc = [0]

    TRE = "tre" in os.environ.get("EXP", "")
    ILV = int(os.environ.get("ILV", "0"))

    def compute(kc, kind, extra=None, prev=None, hooks=None, late=None, defer=False, trl=False):
        extra = list(extra or [])
        per = -(-len(extra) // 32)
        slots = {}
        if isinstance(late, dict):
            for s0, fl in late.items():
                for j, f in enumerate(fl):
                    slots.setdefault((s0 + j // 4, j % 4), []).append((f, None))
        elif late:
            if SPR == "a":
                for i, f in enumerate(late):
                    slots.setdefault((min(2 * i + 1, 7), 0 if i < 4 else 2), []).append((f, None))
            elif SPR == "e":
                for i, f in enumerate(late):
                    slots.setdefault((min(2 * i, 6), 1 if i < 4 else 3), []).append((f, None))
            elif SPR == "f":
                for i, f in enumerate(late):
                    slots.setdefault((i + 1, 0), []).append((f, None))
            elif SPR == "g":
                for i, f in enumerate(late):
                    if prev and kc == 0:
                        slots.setdefault((min(4 + i, 7), 0 if i < 4 else 2), []).append((f, None))
                    else:
                        slots.setdefault((min(2 * i + 1, 7), 0 if i < 4 else 2), []).append((f, None))
            elif SPR == "b":
                for i, f in enumerate(late):
                    slots.setdefault((min(2 * i + 1, 7), 0 if i < 4 else 2), []).append((f, 1))
                    slots.setdefault((min(2 * i, 6), 1 if i < 4 else 3), []).append((f, 0))
            elif SPR == "c":
                for i, f in enumerate(late):
                    slots.setdefault((i + 1, 0), []).append((f, 0))
                    slots.setdefault((i + 1, 2), []).append((f, 1))
        for s in range(8):
            if hooks and s in hooks:
                hooks[s]()
            tre = TRE and prev and kc == 0
            ilv = ILV and (not hooks or "ilh" in EXPF)
            if trl and kc == 3 and s < 7:
                rd = lambda only=None: reads(kc, s + 1, (s + 1) & 1, "L", only)
            elif trl and kc == 2 and s == 7:
                rd = lambda only=None: reads(3, 0, 0, "L", only)
            elif s < 7:
                rd = lambda only=None: reads(kc, s + 1, (s + 1) & 1, tre and s + 1 < 4, only)
            else:
                rd = lambda only=None: reads((kc + 1) & 3, 0, 0, TRE and defer and kc == 3, only)
            if trl and kc == 3 and s in (3, 5, 7):
                epi_part(kind, (s - 3) // 2)
            if not ilv:
                rd()
                a("s_waitcnt lgkmcnt(8)")
            ks = kc * 8 + s
            for nt in range(4):
                acc = vr(V_ACC + 16 * nt, 16)
                wf = vr(V_B + (s & 1) * 16 + nt * 4, 4)
                af = vr(V_A + 4 * ks, 4)
                c = "0" if ks == 0 else acc
                if trl and kc == 3:
                    acc = c = vr(V_ACC + 16 * (s >> 1), 16)
                    af = vr(V_A + 4 * (24 + 4 * (s & 1) + nt), 4)
                elif tre and s < 4:
                    acc = vr(V_ACC + 16 * s, 16)
                    af = vr(V_A + 4 * nt, 4)
                    c = "0" if nt == 0 else acc
                    if nt == 0:
                        epi_part(prev, s)
                elif prev and ks == 0:
                    epi_part(prev, nt)
                if ilv:
                    if ILV == 2:
                        rd(nt)
                    a("s_waitcnt lgkmcnt(%d)" % (6 if ILV == 1 else 8))
                if kind == "V":
                    a("v_mfma_f32_32x32x16_bf16 %s, %s, %s, %s" % (acc, af, wf, c))
                else:
                    a("v_mfma_f32_32x32x16_bf16 %s, %s, %s, %s" % (acc, wf, af, c))
                if ilv and ILV == 1:
                    rd(nt)
                for f, half in slots.get((s, nt), []):
                    if half is None:
                        f()
                    else:
                        sprc[0] += 1
                        a("s_cmp_lt_u32 s6, 4")
                        a("s_cbranch_scc%d spr%d" % (half, sprc[0]))
                        f()
                        a.label("spr%d" % sprc[0])
                for x in extra[:per]:
                    a(x)
                extra = extra[per:]
        assert not extra

    def aload_ops(lo, hi):
        ops = []
        for s in range(lo, hi):
            ops.append("buffer_load_dwordx4 %s, v%d, s[8:11], %s offen offset:%d" % (
                vr(V_A + 4 * s, 4), V_AOFF, "s65" if s & 1 else "0", (s >> 1) * 64))
            ops += ["s_nop 0"] * 3
        return ops

    V_LNM = 244
    V_LNR = 246
    V_LNT = 248

    def norm_ops(q):
        ops = []
        for i in range(32 * q, 32 * q + 32):
            r = V_A + i
            t = 248 + 2 * (i % 3)
            ops.append("v_lshlrev_b32 v%d, 16, v%d" % (t, r))
            ops.append("v_and_b32 v%d, 0xffff0000, v%d" % (t + 1, r))
            ops.append("v_pk_add_f32 %s, %s, %s neg_lo:[0,1] neg_hi:[0,1]" % (vr(t, 2), vr(t, 2), vr(V_LNM, 2)))
            ops.append("v_cvt_pk_bf16_f32 v%d, v%d, v%d" % (r, t, t + 1))
        return ops

    def epilogue(kind):
        HB = "hb" in EXPF
        V_BI = V_A if HB else V_B
        if kind == "H":
            a("s_waitcnt lgkmcnt(0)")
            if not HB:
                a("v_lshrrev_b32 v15, 5, v1")
                a("v_lshlrev_b32 v15, 3, v15")
            for nt in range(0 if HB else 4):
                for q in range(4):
                    a("buffer_load_dwordx2 %s, v15, s[20:23], s53 offen offset:%d" % (
                        vr(V_B + (nt * 4 + q) * 2, 2), 64 * nt + 16 * q))
            a.nop(12)
            for i in range(64):
                a("v_mul_f32 v%d, v%d, v%d" % (V_ACC + i, V_LNR, V_ACC + i))
            a("s_waitcnt vmcnt(0)")
            for nt in range(4):
                for q in range(4):
                    r0 = V_ACC + 16 * nt + 4 * q
                    b0 = V_BI + (nt * 4 + q) * 2
                    for p in range(2):
                        x0, x1 = r0 + 2 * p, r0 + 2 * p + 1
                        bb = b0 + p
                        a("v_cvt_pk_bf16_f32 v15, v%d, v%d" % (x0, x1))
                        a("v_lshlrev_b32 v%d, 16, v15" % x0)
                        a("v_and_b32 v%d, 0xffff0000, v15" % x1)
                        a("v_lshlrev_b32 v15, 16, v%d" % bb)
                        a("v_add_f32 v%d, v%d, v15" % (x0, x0))
                        a("v_and_b32 v15, 0xffff0000, v%d" % bb)
                        a("v_add_f32 v%d, v%d, v15" % (x1, x1))
                        a("v_cvt_pk_bf16_f32 v15, v%d, v%d" % (x0, x1))
                        a("v_lshlrev_b32 v%d, 16, v15" % x0)
                        a("v_and_b32 v%d, 0xffff0000, v15" % x1)
                        a("v_max_f32 v%d, 0, v%d" % (x0, x0))
                        a("v_max_f32 v%d, 0, v%d" % (x1, x1))
                        a("v_mul_f32 v%d, v%d, v%d" % (x0, x0, x0))
                        a("v_mul_f32 v%d, v%d, v%d" % (x1, x1, x1))
        else:
            a.nop(12)
        if kind == "Q":
            for i in range(64):
                a("v_mul_f32 v%d, v%d, v%d" % (V_ACC + i, V_LNR + 1, V_ACC + i))
        a("s_add_u32 s67, s56, 4096")
        for nt in range(4):
            for t in range(2):
                d = V_ACC + 16 * nt + 8 * t
                for p in range(4):
                    x0 = V_ACC + 16 * nt + 8 * t + 2 * p
                    a("v_cvt_pk_bf16_f32 v%d, v%d, v%d" % (d + p, x0, x0 + 1))
                a("buffer_store_dwordx4 %s, v%d, s[16:19], s%d offen offset:%d sc1" % (
                    vr(d, 4), V_ST, 56 if nt < 2 else 67, ((nt * 2 + t) & 3) * 1024))
        a.nop(2)

    def W(n):
        a("s_waitcnt vmcnt(%d)" % n)

    sigc = [0]

    def sig_kq():
        if not EARLY:
            return
        sigc[0] += 1
        a("s_cmp_lg_u32 s6, 0")
        a("s_cbranch_scc1 sigkq%d" % sigc[0])
        a("s_mov_b32 s84, s82")
        a("s_mov_b32 s85, s83")
        a("s_mov_b32 s86, 256")
        a("s_mov_b32 s87, 0x20000")
        a("s_mov_b64 exec, 1")
        a("v_mov_b32 v252, 1")
        a("v_mov_b32 v253, 8")
        a("buffer_atomic_add v252, v253, s[84:87], 0 offen sc1")
        a("s_mov_b64 exec, -1")
        a.label("sigkq%d" % sigc[0])

    def ckv_first(kc):
        B = lambda: a("s_barrier")
        if kc == 0:
            return (lambda: None), {
                1: lambda: (W(12 + NP0), a_read(2, 4)),
                2: lambda: a_dma(5, 4),
                4: lambda: (W(8), a_read(3, 2)),
                6: lambda: (B(), dma(2, "cur"))}
        if kc == 1:
            return (lambda: (B(), a_dma(6, 0))), {
                1: lambda: (W(12), a_read(4, 3)),
                3: lambda: (W(8), a_read(5, 4)),
                6: lambda: (W(4), B(), a_dma(7, 4), dma(3, "cur"))}
        if kc == 2:
            return (lambda: (B(), dma(1, "next"))), {
                1: lambda: (W(12), a_read(6, 0)),
                3: lambda: (W(8), a_read(7, 4)),
                6: lambda: (W(4), B(), dma(0, "next"))}
        return (lambda: (B(), dma(2, "next"))), {
            7: lambda: (W(4), B())}

    def ckv_first_spread(kc):
        B = lambda: a("s_barrier")
        AD = lambda e, r: [lambda j=j: a_dma(e, r, j) for j in range(4)]
        D = lambda k, w: [lambda j=j: dma(k, w, j) for j in range(4)]
        if kc == 0:
            return (lambda: None), {
                1: lambda: (W(12 + NP0), a_read(2, 4)),
                4: lambda: (W(8), a_read(3, 2)),
                6: B}, {2: AD(5, 4), 6: D(2, "cur")}
        if kc == 1:
            return B, {
                1: lambda: (W(12), a_read(4, 3)),
                3: lambda: (W(8), a_read(5, 4)),
                6: lambda: (W(4), B())}, {0: AD(6, 0), 6: AD(7, 4) + D(3, "cur")}
        if kc == 2:
            return B, {
                1: lambda: (W(12), a_read(6, 0)),
                3: lambda: (W(8), a_read(7, 4)),
                6: lambda: (W(4), B())}, {0: D(1, "next"), 6: D(0, "next")}
        return B, {7: lambda: (W(4), B())}, {0: D(2, "next")}

    PFS = os.environ.get("PFS", "")
    pfh = [0, 0]

    def pfsched(typ, ci):
        if not PFS:
            if ci == 1:
                return True
            if ci == 2:
                return 2 if NPF == 1 else 0
            return False
        last = 2 if typ == "x" else 3
        r = [None] * 4
        if ci == 1 and PFS[0] == "x":
            if typ == "x":
                r[0] = (3, 0, 1)
                r[1] = (4, 0, 1)
        elif ci == 1:
            n = int(PFS[0])
            for p in range(n):
                r[p * (4 // n) if PFS[2] == "s" else p] = (1, p, n)
        if ci == last:
            n = int(PFS[1])
            for p in range(n):
                r[p + int(PFS[3])] = (2, p, n)
        return r if any(r) else None

    def chunk(kind, set_next, set_out, prev=None, defer=False, first=None, pf=False, sig=False):
        waits = (4, 12, 12, 4) if prev else (8, 4, 4, 4)
        if pf:
            waits = (4, 12 + NPF, 12 + NPF, 4)
        if PFS:
            pfl = pf if pf else [None] * 4
            hist = pfh + [1 if x else 0 for x in pfl]
            waits = tuple(((4, 12, 4 if SPR else 12, 4) if prev else (8, 4, 4, 4))[k] + hist[k] + hist[k + 1] for k in range(4))
            pfh[:] = hist[-2:]
        if prev:
            a("s_mov_b32 s90, s56")
            a("s_add_u32 s91, s56, 4096")
        set_next()
        set_out()
        for kc in range(4):
            extra = hooks = late = None
            if first == "ckv":
                if "fsp" in EXPF:
                    st, hooks, late = ckv_first_spread(kc)
                else:
                    st, hooks = ckv_first(kc)
                st()
            else:
                a("s_waitcnt vmcnt(%d)" % waits[kc])
                a("s_barrier")
                if SPR:
                    assert PFS
                    late = []
                    if kc >= 1 or not first:
                        for i in range(4):
                            late.append(lambda i=i: dma(3, "cur", i) if kc < 1 else dma(kc - 1, "next", i))
                    if pfl[kc]:
                        late.append(lambda: prefetch(*pfl[kc]))
                    if "hb" in EXPF and kind == "H" and kc == 3:
                        a("v_lshrrev_b32 v15, 5, v1")
                        a("v_lshlrev_b32 v15, 3, v15")
                        bl = [lambda i=i: a("buffer_load_dwordx2 %s, v15, s[20:23], s53 offen offset:%d" % (
                            vr(V_A + 2 * i, 2), 64 * (i >> 2) + 16 * (i & 3))) for i in range(16)]
                        late = {0: bl + late}
                elif kc < 1:
                    if not first:
                        dma(kc + 3, "cur")
                    if pf and not PFS:
                        prefetch(pf)
                else:
                    dma(kc - 1, "next")
                if PFS and pfl[kc] and not SPR:
                    prefetch(*pfl[kc])
                if sig and kc == 3:
                    sig_kq()
            if first == "xn" and kc < 3:
                extra = norm_ops(kc + 1)
            if kc == 0:
                a.stamp()
            trl = "trl" in EXPF and kind == "V" and not defer
            if trl and kc == 3:
                a("s_mov_b32 s90, s56")
                a("s_add_u32 s91, s56, 4096")
            compute(kc, kind, extra, prev, hooks, late, defer, trl)
        a.stamp()
        if trl:
            a.nop(16)
            epi_part(kind, 3)
        elif not defer:
            epilogue(kind)
        a.stamp()
        for i in range(3):
            a("s_mov_b32 s%d, s%d" % (12 + i, 48 + i))
        a("s_mov_b32 s52, s54")
        a("s_mov_b32 s53, s55")
        a("v_mov_b32 v%d, v%d" % (V_OFFC, V_OFFN))

    a("s_lshl_b32 s61, s4, 8")
    a("s_mov_b32 s46, s61")
    if "rev" in EXPF:
        a("s_and_b32 s47, s3, 1")
        a("s_lshl_b32 s47, s47, 12")
        a("s_xor_b32 s61, s61, s47")
    a("s_xor_b32 s62, s61, 4096")
    a("s_lshl_b32 s63, s61, 11")
    a("s_lshl_b32 s64, s59, 13")
    a("s_add_u32 s63, s63, s64")
    a("s_xor_b32 s64, s63, 0x800000")
    V_AD, V_AR = 240, 241
    a("v_and_b32 v24, 7, v1")
    a("v_lshrrev_b32 v25, 3, v1")
    a("v_lshrrev_b32 v26, 1, v25")
    a("v_xor_b32 v26, v24, v26")
    a("v_lshlrev_b32 v26, 4, v26")
    a("v_lshl_add_u32 v26, v25, 10, v26")
    a("s_lshl_b32 s60, s59, 15")
    a("v_add_u32 v%d, s60, v26" % V_AD)
    a("s_lshl_b32 s66, s6, 12")
    a("v_and_b32 v24, 31, v1")
    a("v_lshrrev_b32 v25, 5, v1")
    a("v_bfe_u32 v26, v24, 1, 3")
    a("v_lshlrev_b32 v27, 1, v25")
    a("v_xor_b32 v26, v26, v27")
    a("v_lshlrev_b32 v26, 4, v26")
    a("v_lshl_add_u32 v26, v24, 7, v26")
    a("v_add_u32 v%d, s66, v26" % V_AR)
    a("v_add_u32 v%d, 0x10000, v%d" % (V_AR + 1, V_AR))
    a("v_add_u32 v%d, 0x20000, v%d" % (V_AR + 2, V_AR))

    def a_dma(e, reg, only=None):
        for j in range(4):
            if only is not None and j != only:
                continue
            a("v_xor_b32 v%d, %d, v%d" % (248 + j, 64 * (j & 1), V_AD))
            a("s_add_u32 m0, s66, %d" % (reg * 32768 + 1024 * j))
            a("s_movk_i32 s67, %d" % (8192 * j + 128 * e))
            a("buffer_load_dwordx4 v%d, s[8:11], s67 offen lds" % (248 + j))

    def a_read(e, reg):
        for s_ in range(4):
            c0 = (4 * (s_ >> 1) + (s_ & 1)) * 16
            a("v_xor_b32 v%d, %d, v%d" % (248 + s_, c0, V_AR + (reg >> 1)))
            a("ds_read_b128 %s, v%d offset:%d" % (vr(V_A + 4 * (4 * e + s_), 4), 248 + s_, (reg & 1) * 32768))

    def L0():
        a("s_waitcnt lgkmcnt(0)")

    def stats(q):
        for i in range(32 * q, 32 * q + 32):
            r = V_A + i
            t = 20 + 2 * (i & 3)
            a("v_lshlrev_b32 v%d, 16, v%d" % (t, r))
            a("v_and_b32 v%d, 0xffff0000, v%d" % (t + 1, r))
            a("v_pk_add_f32 v[16:17], v[16:17], %s" % vr(t, 2))
            a("v_pk_fma_f32 v[18:19], %s, %s, v[18:19]" % (vr(t, 2), vr(t, 2)))

    NPF = 4 if "pfall" in EXPF else (2 if "pfv2" in EXPF else (0 if "nopf" in EXPF else 1))

    def prefetch(stage=1, part=0, nparts=1):
        if not NPF:
            return
        if stage >= 3:
            a("s_lshr_b32 s88, s2, 1")
            a("s_lshl_b32 s88, s88, 3")
            a("s_add_u32 s88, s88, s6")
            if stage == 4:
                a("s_sub_u32 s88, 1023, s88")
            a("v_lshlrev_b32 v255, 6, v1")
            src = 32 if stage == 3 else 38
            a("s_mov_b32 s84, s%d" % src)
            a("s_mov_b32 s85, s%d" % (src + 1))
            a("s_mov_b32 s86, 0x%x" % (0x400000 if stage == 3 else 0x1c0000))
            a("s_mov_b32 s87, 0x20000")
            a("s_lshl_b32 s89, s88, 12")
            a("buffer_load_dword v254, v255, s[84:87], s89 offen")
            return
        if NPF == 1:
            big, small = (32, 38) if stage == 1 else (34, 42)
            a("s_lshl_b32 s88, s2, 3")
            a("s_add_u32 s88, s88, s6")
            a("v_lshlrev_b32 v255, 6, v1")
            a("s_cmp_lt_u32 s88, 1024")
            a("s_cselect_b32 s84, s%d, s%d" % (big, small))
            a("s_cselect_b32 s85, s%d, s%d" % (big + 1, small + 1))
            a("s_cselect_b32 s86, s7, 0x1c0000")
            a("s_mov_b32 s87, 0x20000")
            a("s_and_b32 s89, s88, 1023")
            a("s_lshl_b32 s89, s89, 12")
            if nparts > 1:
                w = 64 // nparts
                m = ((1 << w) - 1) << (w * part)
                a("s_mov_b32 exec_lo, 0x%x" % (m & 0xffffffff))
                a("s_mov_b32 exec_hi, 0x%x" % (m >> 32))
            a("buffer_load_dword v254, v255, s[84:87], s89 offen")
            if nparts > 1:
                a("s_mov_b64 exec, -1")
            return
        if NPF == 2:
            a("s_lshl_b32 s88, s2, 3")
            a("s_add_u32 s88, s88, s6")
            a("v_lshlrev_b32 v255, 7, v1")
            a("s_lshr_b32 s89, s88, 9")
            a("s_mov_b32 s84, s32")
            a("s_mov_b32 s85, s33")
            a("s_mov_b32 s86, 0x400000")
            for m, src in ((1, 34), (2, 38), (3, 42)):
                a("s_cmp_eq_u32 s89, %d" % m)
                a("s_cselect_b32 s84, s%d, s84" % src)
                a("s_cselect_b32 s85, s%d, s85" % (src + 1))
            a("s_cmp_ge_u32 s89, 2")
            a("s_cselect_b32 s86, 0x1c0000, s86")
            a("s_mov_b32 s87, 0x20000")
            a("s_and_b32 s89, s88, 511")
            a("s_lshl_b32 s89, s89, 13")
            a("buffer_load_dword v254, v255, s[84:87], s89 offen")
            a("buffer_load_dword v254, v255, s[84:87], s89 offen offset:64")
            return
        a("s_lshl_b32 s88, s2, 3")
        a("s_add_u32 s88, s88, s6")
        a("v_lshlrev_b32 v255, 7, v1")
        a("s_lshr_b32 s89, s88, 9")
        a("s_mov_b32 s84, s28")
        a("s_mov_b32 s85, s29")
        for m in range(1, 4):
            a("s_cmp_eq_u32 s89, %d" % m)
            a("s_cselect_b32 s84, s%d, s84" % (28 + 2 * m))
            a("s_cselect_b32 s85, s%d, s85" % (29 + 2 * m))
        a("s_mov_b32 s86, 0x400000")
        a("s_mov_b32 s87, 0x20000")
        a("s_and_b32 s89, s88, 511")
        a("s_lshl_b32 s89, s89, 13")
        a("buffer_load_dword v254, v255, s[84:87], s89 offen")
        a("buffer_load_dword v254, v255, s[84:87], s89 offen offset:64")
        a("s_cmp_lt_u32 s88, 224")
        a("s_cselect_b32 s84, s38, s42")
        a("s_cselect_b32 s85, s39, s43")
        a("s_cselect_b32 s89, 0, 224")
        a("s_sub_u32 s89, s88, s89")
        a("s_lshl_b32 s89, s89, 13")
        a("s_cmp_lt_u32 s88, 448")
        a("s_cselect_b32 s86, 0x1c0000, 0")
        a("buffer_load_dword v254, v255, s[84:87], s89 offen")
        a("buffer_load_dword v254, v255, s[84:87], s89 offen offset:64")

    NP0 = int(os.environ.get("NP0", "0"))

    def prefetch0():
        if not NP0:
            return
        a("s_lshl_b32 s88, s2, 3")
        a("s_add_u32 s88, s88, s6")
        a("v_lshlrev_b32 v255, 7, v1")
        a("s_lshr_b32 s89, s88, 9")
        a("s_mov_b32 s84, s28")
        a("s_mov_b32 s85, s29")
        for m in range(1, 4):
            src = 28 + 2 * m if m < 3 else 38
            a("s_cmp_eq_u32 s89, %d" % m)
            a("s_cselect_b32 s84, s%d, s84" % src)
            a("s_cselect_b32 s85, s%d, s85" % (src + 1))
        a("s_cselect_b32 s86, 0x1c0000, s7")
        a("s_mov_b32 s87, 0x20000")
        a("s_and_b32 s89, s88, 511")
        a("s_lshl_b32 s89, s89, 13")
        for i in range(NP0):
            a("buffer_load_dword v254, v255, s[84:87], s89 offen offset:%d" % (64 * i))

    a("s_mov_b32 s7, 0x400000")
    a("s_cmp_eq_u32 s5, 1")
    a("s_cbranch_scc1 proj_ckv")
    set_params("cur", 28, 29, 0x400000, 8192, "s61")
    a_dma(0, 2)
    a_dma(1, 3)
    a_dma(2, 4)
    dma(0, "cur")
    prefetch0()
    a("v_mov_b32 v16, 0")
    a("v_mov_b32 v17, 0")
    a("v_mov_b32 v18, 0")
    a("v_mov_b32 v19, 0")
    W(12 + NP0); a_read(0, 2); L0(); a_dma(3, 2)
    W(12 + NP0); a_read(1, 3); L0(); a_dma(4, 3)
    W(12 + NP0); a_read(2, 4); L0(); a_dma(5, 4)
    dma(1, "cur")
    stats(0)
    W(12); a_read(3, 2); L0(); a_dma(6, 2)
    W(12); a_read(4, 3); L0(); a_dma(7, 3)
    stats(1)
    W(12); a_read(5, 4); L0()
    stats(2)
    W(4); a_read(6, 2)
    W(0); a_read(7, 3); L0()
    a("s_barrier")
    dma(2, "cur")
    dma(3, "cur")
    stats(3)
    a.stamp()
    a("v_add_f32 v16, v16, v17")
    a("v_add_f32 v18, v18, v19")
    a("v_mov_b32 v17, v16")
    a("v_mov_b32 v19, v18")
    a.nop(2)
    a("v_permlane32_swap_b32 v16, v17")
    a("v_permlane32_swap_b32 v18, v19")
    a.nop(2)
    a("v_add_f32 v16, v16, v17")
    a("v_add_f32 v18, v18, v19")
    a("v_mul_f32 v16, 0x3b000000, v16")
    a("v_mul_f32 v18, 0x3b000000, v18")
    a("v_fma_f32 v18, -v16, v16, v18")
    a("v_max_f32 v18, 0, v18")
    a("v_cvt_pk_bf16_f32 v16, v16, v18")
    a("v_and_b32 v18, 0xffff0000, v16")
    a("v_lshlrev_b32 v16, 16, v16")
    a("v_add_f32 v18, 0x3727c5ac, v18")
    a("v_cvt_pk_bf16_f32 v18, v18, v18")
    a("v_lshlrev_b32 v18, 16, v18")
    a("v_sqrt_f32 v18, v18")
    a("s_nop 0")
    a("v_cvt_pk_bf16_f32 v18, v18, v18")
    a("v_lshlrev_b32 v18, 16, v18")
    a("v_rcp_f32 v18, v18")
    a("v_mov_b32 v%d, v16" % V_LNM)
    a("v_mov_b32 v%d, v16" % (V_LNM + 1))
    a("v_mov_b32 v%d, v18" % V_LNR)
    a("v_mul_f32 v%d, 0x%08x, v18" % (V_LNR + 1, QSC))
    reads(0, 0, 0)
    for x in norm_ops(0):
        a(x)
    a.stamp()

    def out_q0():
        a("s_add_u32 s56, s63, 0x%x" % QF)

    def out_q1():
        a("s_add_u32 s56, s64, 0x%x" % QF)

    def next_q1():
        set_params("next", 28, 29, 0x400000, 8192, "s62")

    def next_h():
        a("s_cmp_lt_u32 s4, 14")
        a("s_cselect_b32 s66, 0x1c0000, 0")
        set_params("next", 38, 39, "s66", 3584, "s46")

    def next_none():
        a("s_mov_b32 s66, 0")
        set_params("next", 38, 39, "s66", 3584, "s46")

    def out_h():
        a("s_mul_i32 s56, s59, %d" % AF_BLK)
        a("s_lshl_b32 s66, s4, 13")
        a("s_add_u32 s56, s56, s66")
        a("s_add_u32 s56, s56, 0x%x" % (AF + 256 * 1024))

    chunk("Q", next_q1, out_q0, None, True, "xn")
    chunk("Q", next_h, out_q1, "Q", True, None, pfsched("x", 1))
    a("s_cmp_lt_u32 s4, 14")
    a("s_cbranch_scc1 proj_h")
    epilogue("Q")
    if EARLY:
        a("s_waitcnt vmcnt(0)")
        a("s_barrier")
        sig_kq()
    if "pf2" in EXPF:
        a("s_sub_u32 s88, s4, 14")
        a("s_lshl_b32 s89, s3, 1")
        a("s_add_u32 s88, s88, s89")
        a("s_lshl_b32 s88, s88, 3")
        a("s_add_u32 s88, s88, s6")
        a("v_lshlrev_b32 v255, 7, v1")
        a("s_mov_b32 s84, s34")
        a("s_mov_b32 s85, s35")
        a("s_mov_b32 s86, 0x400000")
        a("s_mov_b32 s87, 0x20000")
        a("s_lshl_b32 s89, s88, 15")
        for i in range(4):
            a("buffer_load_dword v254, v255, s[84:87], s89 offen")
            a("buffer_load_dword v254, v255, s[84:87], s89 offen offset:64")
            a("s_add_u32 s89, s89, 8192")
        a("s_mov_b32 s84, s42")
        a("s_mov_b32 s85, s43")
        a("s_mov_b32 s86, 0x1c0000")
        a("s_lshl_b32 s89, s88, 14")
        for i in range(2):
            a("buffer_load_dword v254, v255, s[84:87], s89 offen")
            a("buffer_load_dword v254, v255, s[84:87], s89 offen offset:64")
            a("s_add_u32 s89, s89, 8192")
    a("s_branch proj_end")
    a.label("proj_h")
    chunk("H", next_none, out_h, "Q", False, None, pfsched("x", 2), True)
    pfh[:] = [0, 0]
    a.stamp_flush(0)
    a("s_branch proj_end")
    a.nst = 2

    a.label("proj_ckv")
    set_params("cur", 30, 31, 0x400000, 8192, "s61")
    dma(0, "cur")
    a_dma(0, 2)
    a_dma(1, 3)
    a_dma(2, 4)
    dma(1, "cur")
    prefetch0()
    W(12 + NP0); a_read(0, 2); L0(); a_dma(3, 2)
    W(12 + NP0); a_read(1, 3); L0(); a_dma(4, 3)
    a("s_barrier")
    reads(0, 0, 0)

    def out_k0():
        a("s_add_u32 s56, s63, 0x%x" % KF)

    def out_k1():
        a("s_add_u32 s56, s64, 0x%x" % KF)

    def out_v0():
        a("s_add_u32 s56, s63, 0x%x" % VF)

    def out_v1():
        a("s_add_u32 s56, s64, 0x%x" % VF)

    chunk("QK", lambda: set_params("next", 30, 31, 0x400000, 8192, "s62"), out_k0, None, True, "ckv")
    chunk("QK", lambda: set_params("next", 32, 33, 0x400000, 8192, "s61"), out_k1, "QK", True, None, pfsched("c", 1))
    chunk("V", lambda: set_params("next", 32, 33, 0x400000, 8192, "s62"), out_v0, "QK", True, None, pfsched("c", 2), True)
    chunk("V", next_none, out_v1, "V", False, None, pfsched("c", 3))
    a.stamp_flush(int(STAMP) if STAMP else 0)
    a.label("proj_end")
    a.ostamp()
    if not EARLY:
        a.gridbar(0)
        a.ostamp()


def descriptor(a, name, vgpr, sgpr, accum):
    a.raw(".p2align 6")
    a.raw(".amdhsa_kernel %s" % name)
    a.raw("  .amdhsa_next_free_vgpr %d" % vgpr)
    a.raw("  .amdhsa_next_free_sgpr %d" % sgpr)
    a.raw("  .amdhsa_accum_offset %d" % accum)
    a.raw("  .amdhsa_group_segment_fixed_size 0")
    a.raw("  .amdhsa_kernarg_size 112")
    a.raw("  .amdhsa_user_sgpr_count 2")
    a.raw("  .amdhsa_user_sgpr_kernarg_segment_ptr 1")
    a.raw("  .amdhsa_system_sgpr_workgroup_id_x 1")
    a.raw(".end_amdhsa_kernel")


def main():
    from gen_rest import gen_attn, gen_ogemm, gen_reduce
    a = Asm()
    hdr = open("cdna_kernels/%s.s.ref" % NAME).read().split("\n")
    for l in hdr:
        if l.startswith(";") and "@launch" not in l:
            a.raw(l)
        elif not l.startswith(";"):
            break
    a.raw("; @launch kernel=mega_kernel grid=(256,1,1) block=(512,1,1) lds=163840")
    a.raw('.amdgcn_target "amdgcn-amd-amdhsa--gfx950"')
    a.raw(".text")
    a.raw(".globl mega_kernel")
    a.raw(".p2align 8")
    a.raw(".type mega_kernel,@function")
    gen_proj(a)
    gen_attn(a)
    gen_ogemm(a)
    gen_reduce(a)
    a.label("code_end")
    a.raw('.section .rodata,"a"')
    descriptor(a, "mega_kernel", 256, 102, 256)
    out = sys.argv[1] if len(sys.argv) > 1 else "cdna_kernels/%s.s" % NAME
    open(out, "w").write("\n".join(a.lines) + "\n")


if __name__ == "__main__":
    main()
```
